```python
import torch

def _softmax(x, axis=-1):
    return torch.softmax(x, dim=axis)
def _gelu(x):
    return torch.nn.functional.gelu(x, approximate="tanh")
def _silu(x):
    return torch.nn.functional.silu(x)
def _sigmoid(x):
    return torch.sigmoid(x)
def _layernorm(x, axis=-1, eps=1e-5):
    m = x.mean(dim=axis, keepdim=True)
    v = x.var(dim=axis, keepdim=True, unbiased=False)
    return (x - m) / torch.sqrt(v + eps)
def _scatter_add(tgt, idx, src, axis=0):
    return tgt.clone().index_add_(axis, idx, src)
def _segment_sum(src, seg, n):
    out = torch.zeros((n,) + src.shape[1:], dtype=src.dtype)
    return out.index_add_(0, seg, src)
def _pad(x, pw):
    flat = tuple(v for pair in reversed(pw) for v in pair)
    return torch.nn.functional.pad(x, flat)

kernel_name = 'standalone__edge_featured_mpnn_gatedgcn__graph'

def setup_inputs():

    _w = (lambda a: (lambda t: t.to(torch.bfloat16) if t.is_floating_point() else t)(torch.as_tensor(a)))
    N, deg, D, De = 50000, 16, 64, max(16, 1)
    E = N * deg
    return {
        "x": _w((lambda *s: torch.randn(*s, dtype=torch.bfloat16) * 0.4)(N, D)),
        "e_attr": _w((lambda *s: torch.randn(*s, dtype=torch.bfloat16) * 0.8)(E, De)),
        "src": _w((lambda lo, hi, *s: torch.randint(lo, hi, s))(0, N, E).to(torch.int64)),
        "dst": _w((lambda lo, hi, *s: torch.randint(lo, hi, s))(0, N, E).to(torch.int64)),
        "w_a": _w((lambda *s: torch.randn(*s, dtype=torch.bfloat16) * 0.8)(D, D)),
        "w_b": _w((lambda *s: torch.randn(*s, dtype=torch.bfloat16) * 0.4)(D, D)),
        "w_c": _w((lambda *s: torch.randn(*s, dtype=torch.bfloat16) * 0.8)(De, D)),
        "w_u": _w((lambda *s: torch.randn(*s, dtype=torch.bfloat16) * 0.05)(D, D)),
        "w_v": _w((lambda *s: torch.randn(*s, dtype=torch.bfloat16) * 0.05)(D, D)),
    }

def reference(x, e_attr, src, dst, w_a, w_b, w_c, w_u, w_v):
    N, D = x.shape
    hv = x @ w_v
    g = x[dst] @ w_a + x[src] @ w_b + e_attr @ w_c
    eta = _sigmoid(g)
    denom = _segment_sum(eta, dst, N) + 1e-6
    eta_n = eta / denom[dst]
    agg = _segment_sum(eta_n * hv[src], dst, N)
    z = x @ w_u + agg
    relu_z = torch.where(z > 0, z, 0 * z)
    return x + relu_z
```

```python
import sys, re, math

NAME = "standalone__edge_featured_mpnn_gatedgcn__graph"
OPT = dict(kv.split("=") for kv in sys.argv[2:])
def opt(k, d):
    v = OPT.get(k)
    if v is None: return d
    return type(d)(v)

N, E = 50000, 800000
NCH, CH = 250, 3200
NB, BN = 256, 196
CELLB = 128
WS_CELLS = 0
WS_LCELL = NB * NCH * CELLB
LROW = 160
WS_RECS = 0xC00000
WS_LEID = 0x1000000
WS_WIMG = 0x1200000
WS_USED = WS_WIMG + 34816
WI_U, WI_B, WI_V, WI_A, WI_C = 0, 8192, 16384, 24576, 32768
LOG2E = 1.4426950408889634
import struct
def f2u(f): return struct.unpack("<I", struct.pack("<f", f))[0]

out = []
def emit(s=""):
    for l in s.strip("\n").split("\n"):
        out.append(l.rstrip())
def I(s): out.append("    " + s)
def L(s): out.append(s + ":")
def C(s): out.append("    ; " + s)

def srd(d, lo, hi, size, add=None):
    if add is None:
        I(f"s_mov_b32 s{d}, s{lo}")
        I(f"s_mov_b32 s{d+1}, s{hi}")
    else:
        I(f"s_add_u32 s{d}, s{lo}, {add}")
        I(f"s_addc_u32 s{d+1}, s{hi}, 0")
    I(f"s_mov_b32 s{d+2}, {size}")
    I(f"s_mov_b32 s{d+3}, 0x20000")

def wave_scan(v, fill=None, half=False):
    def gap():
        if fill and len(fill) >= 2:
            I(fill.pop(0)); I(fill.pop(0))
        else: I("s_nop 1")
    for sh in (1, 2, 4, 8):
        gap()
        I(f"v_add_u32_dpp v{v}, v{v}, v{v} row_shr:{sh} row_mask:0xf bank_mask:0xf bound_ctrl:0")
    gap()
    I(f"v_add_u32_dpp v{v}, v{v}, v{v} row_bcast:15 row_mask:0xa bank_mask:0xf")
    if half: return
    gap()
    I(f"v_add_u32_dpp v{v}, v{v}, v{v} row_bcast:31 row_mask:0xc bank_mask:0xf")

TS = opt("ts", 0)
WS_TS = 0x3000000
INK2 = False
def stamp(i):
    if TS == 5 and INK2:
        i = {0: 0, 1: 1, 2: 2, 'a': 3, 'b': 4, 'c': 5, 3: 6, 7: 7}.get(i)
        if i is None: return
    elif TS == 6 and INK2:
        i = {0: 0, 'p': 1, 'q': 2, 'r': 3, 1: 4, 's': 5, 2: 6, 7: 7}.get(i)
        if i is None: return
    elif isinstance(i, str): return
    if TS == 3:
        if i not in (0, 5, 6, 7): return
        I("s_memtime s[98:99]")
        I("s_waitcnt lgkmcnt(0)")
        I(f"s_mov_b32 s{88+{5:1,6:2,0:3,7:4}[i]}, s98")
    if TS:
        I("s_memrealtime s[98:99]" if TS != 2 else "s_memtime s[98:99]")
        I("s_waitcnt lgkmcnt(0)")
        I(f"s_mov_b32 s{88+i}, s98")
def stamp_out(n, wslo, swave, nw, off, v):
    if not TS: return
    I("s_waitcnt vmcnt(0)")
    stamp(n - 1)
    I("s_mov_b64 exec, 1")
    I(f"s_mul_i32 s87, s2, {nw}")
    I(f"s_add_u32 s87, s87, s{swave}")
    I("s_lshl_b32 s87, s87, 5")
    I(f"s_add_u32 s87, s87, {WS_TS + off}")
    I(f"v_mov_b32 v{v}, s87")
    for i in range(n):
        I(f"v_mov_b32 v{v+1}, s{88+i}")
        I(f"global_store_dword v{v}, v{v+1}, s[{wslo}:{wslo+1}] offset:{4*i}")
K1_HIST, K1_HDR, K1_DUMMY, K1_CIMG = 0, 1024, 2048, 2304
K1_IIMG = K1_CIMG + 256 * LROW
K1_LDS = K1_CIMG + 384 * LROW
K1_LD = opt("k1ld", "nt")
K1_ST = opt("k1st", "sc1")
K1_PART = opt("k1part", 0)
def pol(p): return (" " + p.replace("_", " ")) if p else ""

def k1():
    emit(f"""
.globl part_kernel
.p2align 8
.type part_kernel,@function
part_kernel:""")
    I("s_cmp_ge_u32 s2, 255")
    I("s_cbranch_scc1 K1_END")
    I("s_load_dwordx4 s[4:7], s[0:1], 16")
    I("s_load_dwordx2 s[10:11], s[0:1], 88")
    C1 = opt("cpf1", 1)
    if C1:
        I("s_getpc_b64 s[76:77]")
        L("K1_PC")
        I("v_lshlrev_b32 v38, 7, v0")
        I(f"v_min_u32 v38, {'K1_END' if C1 == 1 else 'K2_LAST'}-K1_PC, v38")
        I(f"v_cmp_gt_u32 vcc, {64 if C1 == 1 else 128}, v0")
        I("s_cbranch_vccz K1_NOCPF")
        I("global_load_dword v39, v38, s[76:77]")
        L("K1_NOCPF")
    I("s_cmp_ge_u32 s2, 250")
    I("s_cbranch_scc1 K1_WPREP")
    stamp(0)
    if opt("k1map", 1):
        I("s_and_b32 s12, s2, 7")
        I("s_mul_i32 s12, s12, 31")
        I("s_lshr_b32 s14, s2, 3")
        I("s_add_u32 s12, s12, s14")
        I("s_cmp_ge_u32 s2, 248")
        I("s_cselect_b32 s2, s2, s12")
    I("v_lshrrev_b32 v1, 6, v0")
    I("v_and_b32 v2, 63, v0")
    I("v_readfirstlane_b32 s3, v1")
    I("v_lshlrev_b32 v3, 4, v0")
    I("v_lshlrev_b32 v4, 4, v2")
    I(f"s_mul_i32 s13, s2, {CH*4}")
    I("v_mov_b32 v5, 0")
    I("v_and_b32 v6, 0xff, v0")
    I("v_lshlrev_b32 v6, 2, v6")
    I(f"ds_write_b32 v6, v5 offset:{K1_HIST}")
    I("s_waitcnt lgkmcnt(0)")
    srd(16, 6, 7, CH*4, "s13")
    srd(20, 4, 5, CH*4, "s13")
    I(f"buffer_load_dwordx4 v[8:11], v3, s[16:19], 0 offen{pol(K1_LD)}")
    I(f"buffer_load_dwordx4 v[12:15], v3, s[20:23], 0 offen{pol(K1_LD)}")
    I("s_barrier")
    WE_, WX_ = opt("we1", 0), opt("wx1", 0)
    if WE_ or WX_:
        I("s_cmp_lt_u32 s3, 13")
        I("s_cbranch_scc1 K1_NOWARM")
        I("s_load_dwordx4 s[56:59], s[0:1], 0")
        I("v_subrev_u32 v38, 832, v0")
        I("v_lshlrev_b32 v38, 7, v38")
        I(f"s_mul_i32 s62, s{14 if opt('wxr', 0) else 2}, {WX_*128}")
        I(f"s_mul_i32 s63, s2, {WE_*128}")
        I("s_waitcnt lgkmcnt(0)")
        srd(64, 56, 57, WX_*128, "s62"); srd(68, 58, 59, WE_*128, "s63")
        for k in range((WX_ + 191) // 192):
            I(f"s_mov_b32 s62, {k*192*128}")
            I("buffer_load_dword v39, v38, s[64:67], s62 offen")
        for k in range((WE_ + 191) // 192):
            I(f"s_mov_b32 s62, {k*192*128}")
            I("buffer_load_dword v39, v38, s[68:71], s62 offen")
        L("K1_NOWARM")
    I(f"s_mul_i32 s15, s2, {CELLB}")
    srd(32, 10, 11, 383*NCH*CELLB + CELLB, "s15")
    I("s_mov_b32 s40, 85599")
    I(f"s_mov_b32 s41, {-BN & 0xffffffff}")
    I(f"s_movk_i32 s46, {LROW}")
    I(f"s_movk_i32 s54, {LROW//2}")
    I(f"s_mov_b32 s47, {NCH*CELLB}")
    I(f"s_mov_b32 s52, {128*NCH*CELLB}")
    I(f"s_mov_b32 s53, {256*NCH*CELLB}")
    I("v_mov_b32 v7, 0x10000")
    I("s_mov_b32 s48, 85888")
    I(f"s_mov_b32 s49, {opt('phm', 3) << 30:#x}")
    I("v_lshrrev_b32 v44, 3, v0")
    I("v_and_b32 v41, 7, v0")
    I("v_cmp_eq_u32 s[50:51], 0, v41")
    I("v_lshlrev_b32 v41, 4, v41")
    I("v_mad_u32_u24 v40, v44, s47, v41")
    I("v_mad_u32_u24 v41, v44, s46, v41")
    I("v_lshlrev_b32 v44, 2, v44")
    I("v_and_b32 v42, 4, v0")
    I("v_lshl_add_u32 v42, v42, 2, v41")
    for i in range(4):
        I(f"v_lshl_add_u32 v{68+i}, v0, 2, {i}")
    I("v_cmp_gt_u32 vcc, 800, v0")
    I("s_and_saveexec_b64 s[42:43], vcc")
    I("s_cbranch_execz K1_B1")
    I("s_waitcnt vmcnt(0)")
    stamp(1)
    for i in range(4):
        I(f"v_mul_u32_u24 v{16+i}, s40, v{8+i}")
    for i in range(4):
        I(f"v_lshrrev_b32 v{16+i}, 24, v{16+i}")
    for i in range(4):
        I(f"v_lshlrev_b32 v{20+i}, 2, v{16+i}")
        I(f"ds_add_rtn_u32 v{24+i}, v{20+i}, v7 offset:{K1_HIST}")
    for i in range(4):
        I(f"v_mad_i32_i24 v{8+i}, v{16+i}, s41, v{8+i}")
        I(f"v_mul_u32_u24 v37, s48, v{12+i}")
        I(f"v_lshl_or_b32 v{12+i}, v{8+i}, 22, v{12+i}")
        I(f"v_and_or_b32 v{12+i}, v37, s49, v{12+i}")
    for i in range(4):
        I(f"s_waitcnt lgkmcnt({3 + i})")
        I(f"v_lshrrev_b32 v{24+i}, 15, v{24+i}")
        I(f"v_min_u32 v{32+i}, 62, v{24+i}")
        I(f"v_mad_u32_u24 v{32+i}, v{16+i}, s54, v{32+i}")
        I(f"v_lshlrev_b32 v{28+i}, 1, v{32+i}")
        I(f"ds_write_b16 v{32+i}, v{68+i} offset:{K1_IIMG + 2}")
        I(f"ds_write_b32 v{28+i}, v{12+i} offset:{K1_CIMG + 4}")
    L("K1_B1")
    I("s_mov_b64 exec, -1")
    I("s_waitcnt lgkmcnt(0)")
    I("s_barrier")
    stamp(2)
    I(f"ds_read_b128 v[28:31], v4 offset:{K1_HIST}")
    I(f"ds_read_b128 v[60:63], v42 offset:{K1_IIMG}")
    for i in range(2):
        I(f"ds_read_b32 v{48+i}, v44 offset:{K1_HIST + 512*i}")
        I(f"ds_read_b128 v[{52+4*i}:{55+4*i}], v41 offset:{K1_CIMG + 128*LROW*i}")
    I("s_waitcnt lgkmcnt(4)")
    I(f"buffer_store_dwordx4 v[60:63], v40, s[32:35], s53 offen{pol(K1_ST)}")
    I("v_max3_u32 v37, v28, v29, v30")
    I("v_max_u32 v37, v37, v31")
    I(f"v_cmp_lt_u32 vcc, {31 << 16}, v37")
    I("s_cbranch_vccnz K1_OVF")
    L("K1_OUT")
    for i in range(2):
        I(f"s_waitcnt lgkmcnt({2 - 2*i})")
        I(f"v_cndmask_b32 v{52+4*i}, v{52+4*i}, v{48+i}, s[50:51]")
        I(f"buffer_store_dwordx4 v[{52+4*i}:{55+4*i}], v40, s[32:35], {'s52' if i else '0'} offen{pol(K1_ST)}")
    stamp(3)
    stamp(4)
    stamp_out(6, 10, 3, 16, 0, 8)
    I("s_endpgm")
    L("K1_OVF")
    for i in range(4):
        I(f"v_lshrrev_b32 v{64+i}, 16, v{28+i}")
    I("v_add_u32 v33, v64, v65")
    I("v_add_u32 v34, v33, v66")
    I("v_add_u32 v35, v34, v67")
    I("v_mov_b32 v37, v35")
    wave_scan(37)
    I("s_nop 0")
    I("v_sub_u32 v32, v37, v35")
    I("v_add_u32 v35, v32, v34")
    I("v_add_u32 v34, v32, v33")
    I("v_add_u32 v33, v32, v64")
    for i in range(4):
        I(f"v_or_b32 v{32+i}, v{32+i}, v{28+i}")
    I("s_waitcnt lgkmcnt(0)")
    I(f"ds_write_b128 v4, v[32:35] offset:{K1_HDR}")
    for i in range(2):
        I(f"ds_read_b32 v{48+i}, v44 offset:{K1_HDR + 512*i}")
    I(f"s_add_u32 s15, s13, {WS_RECS}")
    srd(36, 10, 11, CH*4, "s15")
    I("s_lshr_b32 s15, s13, 1")
    I(f"s_add_u32 s15, s15, {WS_LEID}")
    srd(28, 10, 11, CH*2, "s15")
    I("v_cmp_gt_u32 vcc, 800, v0")
    I("s_and_saveexec_b64 s[42:43], vcc")
    I("s_cbranch_execz K1_OV2")
    for i in range(4):
        I(f"ds_read_u16 v{28+i}, v{20+i} offset:{K1_HDR}")
    I("s_waitcnt lgkmcnt(0)")
    for i in range(4):
        I(f"v_lshl_add_u32 v{28+i}, v{28+i}, 1, v{24+i}")
        I(f"v_cmp_le_u32 vcc, 62, v{24+i}")
        I(f"v_lshlrev_b32 v{32+i}, 1, v{28+i}")
        I("s_and_saveexec_b64 s[44:45], vcc")
        I(f"s_cbranch_execz K1_OV3_{i}")
        I(f"buffer_store_short v{68+i}, v{28+i}, s[28:31], 0 offen")
        I(f"buffer_store_dword v{12+i}, v{32+i}, s[36:39], 0 offen")
        L(f"K1_OV3_{i}")
        I("s_mov_b64 exec, s[44:45]")
    L("K1_OV2")
    I("s_mov_b64 exec, -1")
    I("s_waitcnt lgkmcnt(0)")
    I("s_branch K1_OUT")
    L("K1_WPREP")
    I("s_load_dwordx4 s[12:15], s[0:1], 32")
    I("s_load_dwordx4 s[16:19], s[0:1], 48")
    I("s_load_dwordx2 s[20:21], s[0:1], 64")
    I("s_sub_u32 s3, s2, 250")
    I("s_lshl_b32 s22, s3, 13")
    I(f"s_add_u32 s22, s22, {WS_WIMG}")
    I("s_mov_b32 s23, 1.0")
    I("s_mov_b32 s34, 8192")
    I("s_mov_b32 s35, 12")
    I("s_mov_b32 s36, 3")
    I("s_mov_b32 s37, 9")
    I("s_waitcnt lgkmcnt(0)")
    I("s_mov_b64 s[24:25], s[18:19]")
    I("s_cmp_eq_u32 s3, 1")
    I("s_cselect_b64 s[24:25], s[14:15], s[24:25]")
    I(f"s_cselect_b32 s23, {f2u(-LOG2E):#x}, s23")
    I("s_cmp_eq_u32 s3, 2")
    I("s_cselect_b64 s[24:25], s[20:21], s[24:25]")
    I("s_cmp_eq_u32 s3, 3")
    I("s_cselect_b64 s[24:25], s[12:13], s[24:25]")
    I("s_cmp_eq_u32 s3, 4")
    I("s_cselect_b64 s[24:25], s[16:17], s[24:25]")
    I(f"s_cselect_b32 s23, {f2u(-LOG2E):#x}, s23")
    I("s_cselect_b32 s34, 2048, s34")
    I("s_cselect_b32 s35, 10, s35")
    I("s_cselect_b32 s36, 0, s36")
    I("s_cselect_b32 s37, 7, s37")
    I("s_mov_b32 s26, s34")
    I("s_mov_b32 s27, 0x20000")
    I("s_add_u32 s28, s10, s22")
    I("s_addc_u32 s29, s11, 0")
    I("s_mov_b32 s30, s34")
    I("s_mov_b32 s31, 0x20000")
    I("v_lshlrev_b32 v9, 3, v0")
    I("v_cmp_gt_u32 vcc, s34, v9")
    I("s_and_saveexec_b64 s[38:39], vcc")
    I("s_cbranch_execz K1_END")
    I("v_and_b32 v1, 1, v0")
    I("v_lshlrev_b32 v1, 9, v1")
    I("v_bfe_u32 v2, v0, 6, 1")
    I("v_lshlrev_b32 v2, s35, v2")
    I("v_lshrrev_b32 v3, 7, v0")
    I("v_and_b32 v3, s36, v3")
    I("v_lshlrev_b32 v3, 10, v3")
    I("v_add3_u32 v1, v1, v2, v3")
    I("v_bfe_u32 v2, v0, 3, 1")
    I("v_lshlrev_b32 v2, 6, v2")
    I("v_lshrrev_b32 v3, s37, v0")
    I("v_lshlrev_b32 v3, 5, v3")
    I("v_add3_u32 v1, v1, v2, v3")
    I("v_bfe_u32 v2, v0, 4, 2")
    I("v_lshlrev_b32 v2, 3, v2")
    I("v_and_b32 v3, 6, v0")
    I("v_add3_u32 v1, v1, v2, v3")
    for i in range(4):
        I(f"buffer_load_ushort v{4+i}, v1, s[24:27], 0 offen offset:{128*i}")
    I("s_waitcnt vmcnt(0)")
    for i in range(4):
        I(f"v_lshlrev_b32 v{4+i}, 16, v{4+i}")
        I(f"v_mul_f32 v{4+i}, s23, v{4+i}")
    I("v_cvt_pk_bf16_f32 v4, v4, v5")
    I("v_cvt_pk_bf16_f32 v5, v6, v7")
    I("buffer_store_dwordx2 v[4:5], v9, s[28:31], 0 offen")
    L("K1_END")
    I("s_endpgm")

SM1 = opt("sm1", 1)
TAB, ZROW, CNT, FLAG, HIST, MAP, HDR = 0, 2048, 2112, 2176, 2304, 6400, 7424
T1B = 8448
LCAP = 544
LMAX = LCAP - 64
LUT = 8448 + 2304
R0 = LUT + 4096
R1 = R0 + 8 * LCAP * 4
assert R1 % 256 == 0 and R0 % 256 == 0
WL = R1 + 8 * LCAP * 4
STG = WL + 34816
SLOT = 5184
DT = 264
PRIV = 4352
WST = SLOT + PRIV
K2_LDS = STG + 8 * WST
assert K2_LDS <= 163840, K2_LDS

vWB, vWV, vWC, vAT = 0, 32, 64, 72
vACC = 88
vX, vE, vT1, vT2 = 152, 168, 172, 180
vP, vQ, vR = 188, 204, 220
vQD = 236
vR1 = 240
vCP, vCH, vAX, vAE, vC1, vC2, vARX, vART, vARP = 241, 242, 243, 244, 245, 246, 247, 248, 249
vL1 = 250
vARE = 251
vT = 252
DEN = lambda ft: vACC + 32 * ft
NUM = lambda ft: vACC + 32 * ft + 16
def rr(a, n): return f"v[{a}:{a+n-1}]"
def mfma(d, a, b, c=None):
    return f"v_mfma_f32_32x32x16_bf16 {rr(d,16)}, {rr(a,4)}, {rr(b,4)}, " + ("0" if c is None else rr(c, 16))

K2_XP = opt("k2x", "")
K2_EP = opt("k2e", "")
K2_CP = opt("k2c", "")
K2_OP = opt("k2o", "sc1")

sW, sB = 3, 12
sX, sEP, sWS, sOUT = 16, 20, 24, 28
sCEL, sWI = 32, 36
sM = 40
sT, sN, sSTG, s128, sL, sSKIP, sMORE = 72, 73, 74, 75, 76, 77, 78
sCI, sCUR, sR0, sCNT, sST, sMSK = 79, 80, 81, 82, 83, 84
sTMP = 86
sWIN = 96

def dma_tile(par):
    r = []
    for i in range(4):
        r.append(f"s_add_u32 m0, s{sSTG}, {par*SLOT + i*1040}")
        r.append(f"v_mad_u32_u16 v{vQD+i}, v{vQD+i}, s{s128}, v{vCP}")
        r.append(f"buffer_load_dwordx4 v{vQD+i}, s[{sX}:{sX+3}], 0 offen{pol(K2_XP)} lds")
    r.append(f"s_add_u32 m0, s{sSTG}, {par*SLOT + 4160}")
    r.append(f"v_add_u32 v{vR1}, v{vR1}, v{vCH}")
    r.append(f"buffer_load_dwordx4 v{vR1}, s[{sEP}:{sEP+3}], 0 offen{pol(K2_EP)} lds")
    return r

def valu_stream(G, H):
    s = []
    ex = [(f"v_exp_f32 v{G+i}, v{G+i}", 8) for i in range(16)]
    ad = [(f"v_add_f32 v{G+i}, 1.0, v{G+i}", 4) for i in range(16)]
    rc = [(f"v_rcp_f32 v{G+i}, v{G+i}", 8) for i in range(16)]
    mu = [(f"v_mul_f32 v{H+i}, v{G+i}, v{H+i}", 4) for i in range(16)]
    ce = [(f"v_cvt_pk_bf16_f32 v{G+i}, v{G+2*i}, v{G+2*i+1}", 4) for i in range(8)]
    cm = [(f"v_cvt_pk_bf16_f32 v{H+i}, v{H+2*i}, v{H+2*i+1}", 4) for i in range(8)]
    PK = opt("pk", 0)
    pa = [(f"v_pk_add_f32 v[{G+2*i}:{G+2*i+1}], v[{G+2*i}:{G+2*i+1}], 1.0 op_sel_hi:[1,0]", 4) for i in range(8)]
    pm = [(f"v_pk_mul_f32 v[{H+2*i}:{H+2*i+1}], v[{G+2*i}:{G+2*i+1}], v[{H+2*i}:{H+2*i+1}]", 4) for i in range(8)]
    if PK & 2:
        s += ex[:8] + ex[8:10] + pa[:4] + ex[10:] + rc[:2] + pa[4:] + rc[2:]
    elif PK & 4:
        s += ex + [("s_nop 0", 0)] + pa + rc
    else:
        for i in range(16 + 4):
            if i < 16: s.append(ex[i])
            if 0 <= i - 2 < 16: s.append(ad[i-2])
            if 0 <= i - 4 < 16: s.append(rc[i-4])
    s += pm if PK & 1 else mu
    s += cm + ce
    return s

def interleave(valu, mf, extra, pos, spacing=opt('sp', 28)):
    res = []
    cum = 0; k = 0
    for ins, c in valu:
        while k < len(mf) and cum >= pos[k] * spacing:
            res.extend(extra.get(('b', k), []))
            res.append(mf[k])
            res.extend(extra.get(('a', k), []))
            k += 1
        res.append(ins); cum += c
    assert k == len(mf)
    return res

def g_mfmas(D, ft):
    m = [mfma(D, vE, vWC + 4*ft)]
    if SM1:
        m += [mfma(D, vX + 4*q, vWB + 16*ft + 4*q, D) for q in range(4)]
        m += [f"v_smfmac_f32_32x32x32_bf16 {rr(D,16)}, {rr(vT1,4)}, {rr(vAT+8*ft,8)}, v{vT1+4}"]
        return m
    m += [mfma(D, vT1 + 4*s, vAT + 8*ft + 4*s, D) for s in range(2)]
    m += [mfma(D, vX + 4*q, vWB + 16*ft + 4*q, D) for q in range(4)]
    return m
def h_mfmas(D, ft):
    return [mfma(D, vX + 4*q, vWV + 16*ft + 4*q, None if q == 0 else D) for q in range(4)]
def s_mfmas(acc, src, sp, par):
    if sp: return [f"v_smfmac_f32_32x32x32_bf16 {rr(acc,16)}, {rr(vT2,4)}, {rr(src,8)}, v{vT2+4+par}"]
    return [mfma(acc, vT2 + 4*s, src + 4*s, acc) for s in range(2)]
def t1_reads():
    return [f"ds_read_b128 {rr(vT1,4)}, v{vL1} offset:{T1B}", f"ds_read_b32 v{vT1+4}, v{vL1} offset:{T1B+16}"]

def layout(sp):
    n = 1 if sp else 2
    H0, DE, E = n, n + 4, 2*n + 4
    last = E + 5
    pos = [k * 12.0 / (last - 1) for k in range(last)] + [14]
    if sp and opt("pos", ""): pos = [float(x) / 28 for x in opt("pos", "").split("_")]
    elif opt("pk", 0): pos = [p * (448 - 32*bin(opt("pk", 0)).count("1") - 56) / 392. for p in pos]
    return H0, DE + n - 1, E, last, pos

def phaseA(par, sp):
    o = par * 128
    H0, DL_, E, last, pos = layout(sp)
    mf = s_mfmas(NUM(1), vQ, sp, par^1) + h_mfmas(vQ, 0) + s_mfmas(DEN(1), vR, sp, par^1) + g_mfmas(vR, 1)
    ex = {}
    lab = f"ds_read_u16 v{vL1}, v{vARP} offset:{o + 128 + 2}"
    if sp:
        ex[('a', 0)] = [f"ds_read_b32 v{vT2+4+par}, v{vART} offset:{par*DT}", lab]
        ex[('a', H0+3)] = ["s_waitcnt lgkmcnt(0)", f"v_lshrrev_b32 v{vQD}, 16, v{vT2+4+par}", f"v_add_u32 v{vL1}, v{vL1}, v{vC1}"]
        ex[('a', DL_)] = [f"ds_read_b128 {rr(vT2,4)}, v{vQD} offset:{LUT}"]
    else:
        ex[('a', 0)] = [f"ds_read_u16 v{vQD+u}, v{vART} offset:{o + 8*u}" for u in range(4)] + [lab]
        ex[('a', H0+3)] = ["s_waitcnt lgkmcnt(0)"] + [f"v_add_u32 v{vQD+u}, v{vQD+u}, v{vC2}" for u in range(4)] + [f"v_add_u32 v{vL1}, v{vL1}, v{vC1}"]
        ex[('a', DL_)] = [f"ds_read_b64_tr_b16 v[{vT2+2*u}:{vT2+2*u+1}], v{vQD+u}" for u in range(4)]
    ex[('a', last)] = t1_reads() + [f"ds_read_b128 {rr(vQD,4)}, v{vARX} offset:{o + 2*128}",
                                    f"ds_read_b32 v{vR1}, v{vARE} offset:{o + 2*128}",
                                    f"s_add_u32 s{sT}, s{sT}, 1"]
    return interleave(valu_stream(vP, vQ), mf, ex, pos)

def phaseB(par, sp):
    H0, DL_, E, last, pos = layout(sp)
    mf = s_mfmas(NUM(0), vQ, sp, par) + h_mfmas(vQ, 1) + s_mfmas(DEN(0), vP, sp, par) + g_mfmas(vP, 0)
    ex = {}
    ex[('b', 0)] = ["s_waitcnt lgkmcnt(4)"]
    ex[('b', H0)] = ["s_waitcnt vmcnt(0)", f"ds_read_b128 {rr(vE,4)}, v{vAE}"]
    for q in range(4):
        ex[('a', H0+q)] = [f"ds_read_b128 {rr(vX+4*q,4)}, v{vAX} offset:{16*q}"]
    ex[('b', E)] = ["s_waitcnt lgkmcnt(4)"]
    for q in range(4): ex[('b', E+1+q)] = [f"s_waitcnt lgkmcnt({3-q})"]
    ex[('a', E+4)] = [f"s_cmp_lt_u32 s{sT}, s{sN}",
                      f"s_cbranch_scc0 K2_ND_{par}{sp}"] + dma_tile(0) + [f"K2_ND_{par}{sp}:"]
    return interleave(valu_stream(vR, vQ), mf, ex, pos)

sF0, sF1, sEND = 13, 14, 15
sXT = 97
sTH = 4
PRIO = opt("prio", 1)

def listaddr(lane, t0, t3):
    I(f"v_bfe_u32 v{t0}, v{lane}, 3, 2")
    I(f"v_lshl_add_u32 v{vARX}, v{t0}, 5, s{sL}")
    I(f"v_lshrrev_b32 v{t0}, 5, v{lane}")
    I(f"v_lshl_add_u32 v{vARX}, v{t0}, 4, v{vARX}")
    I(f"v_and_b32 v{t0}, 3, v{lane}")
    I(f"v_and_b32 v{t3}, 28, v{lane}")
    I(f"v_lshl_add_u32 v{t0}, v{t0}, 5, v{t3}")
    I(f"v_add_u32 v{vARP}, s{sL}, v{t0}")
    I(f"v_lshrrev_b32 v{t3}, 1, v{lane}")
    I(f"v_lshl_add_u32 v{vARE}, v{t3}, 2, s{sL}")
    I(f"v_add_u32 v{vARE}, {R1-R0}, v{vARE}")

vOWN = vT + 1
def pads(lane, t0, t1, t2):
    W2 = f"offset0:0 offset1:{(R1-R0)//256}"
    I(f"v_mov_b32 v{t1}, 0x08000000")
    I(f"v_mov_b32 v{t2}, 0")
    I(f"v_lshl_add_u32 v{t0}, v{lane}, 2, s{sEND}")
    I(f"s_sub_u32 s{sN}, s{sEND}, s{sL}")
    I(f"ds_write2st64_b32 v{t0}, v{t1}, v{t2} {W2}")
    I(f"s_add_u32 s{sN}, s{sN}, 127")
    I(f"s_and_b32 s10, s{sN}, -128")
    I(f"s_lshr_b32 s{sN}, s{sN}, 7")
    I(f"v_add_u32 v{t0}, s10, v{vARP}")
    I(f"ds_write2st64_b32 v{t0}, v{vOWN}, v{t2} {W2}")

def k2():
    global INK2
    INK2 = True
    emit(f"""
.globl main_kernel
.p2align 8
.type main_kernel,@function
main_kernel:""")
    I("s_cmp_ge_u32 s2, 256")
    I("s_cbranch_scc1 K2_END")
    stamp(0)
    I("s_load_dwordx2 s[8:9], s[0:1], 88")
    I("s_load_dwordx4 s[4:7], s[0:1], 0")
    I(f"s_load_dwordx2 s[{sOUT}:{sOUT+1}], s[0:1], 72")
    tid, lane = 255, 254
    CPF = opt("cpf", 2)
    def cpf():
        I(f"s_getpc_b64 s[{sM+8}:{sM+9}]")
        L("K2_PC")
        I(f"v_lshlrev_b32 v{vT}, 7, v0")
        I(f"v_min_u32 v{vT}, K2_LAST-K2_PC, v{vT}")
        I("v_cmp_gt_u32 vcc, 128, v0")
        I("s_cbranch_vccz K2_NOCPF")
        I(f"global_load_dword v{vT+1}, v{vT}, s[{sM+8}:{sM+9}]")
        L("K2_NOCPF")
    if CPF: cpf()
    vWA = vACC
    vC = vACC + 32
    vA = vACC + 48
    vRK = vR
    vH = vQ
    vLE = vAT
    vMIN, vMAX = vQ + 8, vQ + 12
    u = lambda i: vP + i
    k4, ecb, hda, one, l16 = vE, vE + 1, vE + 2, vE + 3, vT1
    I(f"v_mov_b32 v{tid}, v0")
    I(f"v_lshrrev_b32 v{u(0)}, 6, v0")
    I(f"v_and_b32 v{lane}, 63, v0")
    I(f"v_readfirstlane_b32 s{sW}, v{u(0)}")
    ASYM = opt("asym", 16)
    if ASYM:
        I("s_nop 0")
        I(f"s_and_b32 s10, s{sW}, 3")
        I(f"s_lshr_b32 s{sW}, s{sW}, 2")
        I(f"s_lshl1_add_u32 s{sW}, s10, s{sW}")
        if opt("swp", 1): I(f"s_xor_b32 s{sW}, s{sW}, 1")
    I("s_and_b32 s10, s2, 7")
    I("s_lshr_b32 s11, s2, 3")
    I("s_lshl_b32 s10, s10, 5")
    I(f"s_add_u32 s{sB}, s10, s11")
    I(f"s_mul_i32 s10, s{sB}, {NCH*CELLB}")
    I(f"s_add_u32 s10, s10, {WS_CELLS}")
    I(f"v_lshrrev_b32 v{hda}, 3, v0")
    I(f"v_and_b32 v{u(9)}, 7, v0")
    I(f"v_lshlrev_b32 v{u(1)}, 4, v0")
    I(f"v_lshlrev_b32 v{u(15)}, 7, v{hda}")
    I(f"v_lshl_add_u32 v{u(15)}, v{u(9)}, 3, v{u(15)}")
    I(f"s_lshr_b32 s{sM}, s{sB}, 1")
    I(f"s_mul_i32 s{sM}, s{sM}, {NCH*CELLB}")
    I(f"s_and_b32 s{sM+1}, s{sB}, 1")
    I(f"s_lshl_b32 s{sM+1}, s{sM+1}, 6")
    I(f"s_add_u32 s{sM}, s{sM}, s{sM+1}")
    I(f"s_add_u32 s{sM}, s{sM}, {WS_LCELL}")
    I(f"v_lshlrev_b32 v{l16}, 4, v{lane}")
    for k in (1, 2, 3):
        I(f"s_mov_b32 s{sCI+k-1}, {64*CELLB*k}")
    I(f"s_mul_i32 s11, s{sW}, 49")
    I("s_sub_i32 s11, s11, 7")
    I("s_ashr_i32 s11, s11, 1")
    I(f"s_max_i32 s{sWIN}, s11, 0")
    I(f"s_mul_i32 s11, s{sB}, {BN}")
    I(f"s_add_u32 s11, s11, s{sWIN}")
    I(f"s_mov_b32 s{sTMP}, s11")
    I(f"v_bfe_u32 v{u(3)}, v{lane}, 3, 2")
    I(f"v_lshrrev_b32 v{u(5)}, 5, v{lane}")
    I("s_waitcnt lgkmcnt(0)")
    stamp('p')
    srd(sCEL, 8, 9, NCH*CELLB, "s10")
    sSO = sCI
    vq = []
    def younger(tag): return len(vq) - 1 - max(i for i, t in enumerate(vq) if t == tag)
    for i in range(4):
        so = "0" if i == 0 else f"s{sSO+i-1}"
        I(f"buffer_load_dwordx4 {rr(vC+4*i,4)}, v{u(1)}, s[{sCEL}:{sCEL+3}], {so} offen{pol(K2_CP)}")
        vq.append(f"C{i}")
    I(f"s_add_u32 s{sCEL}, s8, s{sM}")
    I(f"s_addc_u32 s{sCEL+1}, s9, 0")
    I(f"s_mov_b32 s{sCEL+2}, {NCH*CELLB - 64}")
    srd(sWI, 8, 9, 34816, WS_WIMG)
    srd(sX, 4, 5, N*128)
    PF = opt("pf", 0)
    def batch(tag):
        if tag == "L":
            for i in range(4):
                so = "0" if i == 0 else f"s{sSO+i-1}"
                I(f"buffer_load_dwordx2 {rr(vLE+2*i,2)}, v{u(15)}, s[{sCEL}:{sCEL+3}], {so} offen{pol(K2_CP)}")
                vq.append("L")
        elif tag == "W":
            I(f"s_lshl_b32 s{sST}, s{sW}, 10")
            I(f"s_cmp_ge_u32 s{sW}, 2")
            I("s_cbranch_scc1 K2_NOW5")
            I(f"s_add_u32 m0, s{sST}, {WL + 32768}")
            I(f"s_add_u32 s{sCNT}, s{sST}, 32768")
            I(f"buffer_load_dwordx4 v{l16}, s[{sWI}:{sWI+3}], s{sCNT} offen lds")
            L("K2_NOW5")
            for k in range(4):
                I(f"s_add_u32 m0, s{sST}, {WL + 8192*k}")
                I(f"s_add_u32 s{sCNT}, s{sST}, {8192*k}")
                I(f"buffer_load_dwordx4 v{l16}, s[{sWI}:{sWI+3}], s{sCNT} offen lds")
                vq.append("W")
        elif tag == "X":
            for i in range(4):
                I(f"s_add_u32 m0, s{sSTG}, {SLOT + i*1040}")
                I("s_nop 0")
                I(f"buffer_load_dwordx4 v{vX+i}, s[{sX}:{sX+3}], 0 offen lds")
                vq.append("X")
        elif tag == "F" and PF:
            I(f"buffer_load_dword v{vT+1}, v{vT}, s[{sX}:{sX+3}], 0 offen")
            vq.append("F")
    SCH = opt("sch", ".W,L,X,,").split(",")
    def point(k, part=None):
        t = SCH[k]
        if k == 0: t = t.split(".")[part]
        for ch in t: batch(ch)
    WB = next(k for k in range(5) if "W" in SCH[k])
    WSY = opt("wsy", 1)
    point(0, 0)
    if PF:
        I(f"s_and_b32 s10, s2, -8")
        I(f"s_add_u32 s10, s10, s{sW}")
        I(f"s_mul_i32 s10, s10, {PF//8}")
        I(f"v_min_u32 v{vT}, {PF//8 - 1}, v{lane}")
        I(f"v_add_lshl_u32 v{vT}, v{vT}, s10, 7")
        assert PF <= 512
    wa = vT1 + 1
    I(f"v_add_u32 v{wa}, {WL}, v{l16}")
    def wread(reg, off): I(f"ds_read_b128 {rr(reg,4)}, v{wa} offset:{off}")
    wl = [(vWA + 4*k, WI_A + 1024*k) for k in range(8)] + [(vWC + 4*k, WI_C + 1024*k) for k in range(2)]
    wl += [(vWB + 4*k, WI_B + 1024*k) for k in range(8)] + [(vWV + 4*k, WI_V + 1024*k) for k in range(8)]
    WE = opt("we", 8)
    I(f"v_lshrrev_b32 v{u(6)}, 5, v{tid}")
    I(f"v_and_b32 v{u(7)}, 15, v{tid}")
    I(f"v_cmp_eq_u32 vcc, v{u(6)}, v{u(7)}")
    I(f"v_and_b32 v{u(6)}, 16, v{tid}")
    I(f"v_mov_b32 v{u(7)}, 0x3f80")
    I(f"v_lshlrev_b32 v{u(7)}, v{u(6)}, v{u(7)}")
    I(f"v_cndmask_b32 v{u(7)}, 0, v{u(7)}, vcc")
    I(f"v_lshlrev_b32 v{u(6)}, 2, v{tid}")
    I(f"v_mov_b32 v{u(8)}, 0")
    I(f"ds_write_b32 v{u(6)}, v{u(7)}")
    if SM1:
        I(f"v_bfe_u32 v{u(7)}, v{tid}, 3, 1")
        I(f"v_and_b32 v{u(13)}, 7, v{tid}")
        I(f"v_lshl_add_u32 v{u(7)}, v{u(7)}, 2, v{u(13)}")
        I(f"v_lshrrev_b32 v{u(12)}, 6, v{tid}")
        I(f"v_cmp_eq_u32 vcc, v{u(7)}, v{u(12)}")
        I(f"v_bfe_u32 v{u(12)}, v{tid}, 4, 2")
        I(f"v_mov_b32 v{u(7)}, 0x3f80")
        I(f"v_cndmask_b32 v{u(7)}, 0, v{u(7)}, vcc")
        I(f"v_cmp_lt_u32 vcc, 3, v{u(13)}")
        I(f"v_mul_u32_u24 v{u(12)}, 0x5555, v{u(12)}")
        I(f"v_and_b32 v{u(13)}, 60, v{u(6)}")
        I(f"v_cndmask_b32 v{u(7)}, v{u(7)}, v{u(12)}, vcc")
        I(f"ds_write_b32 v{u(6)}, v{u(7)} offset:{T1B}")
        I(f"ds_write_b32 v{u(13)}, v{u(8)} offset:{T1B + 2048}")
    I(f"ds_write_b32 v{u(6)}, v{u(8)} offset:{ZROW}")
    I(f"ds_write2st64_b32 v{u(6)}, v{u(8)}, v{u(8)} offset0:{HIST//256} offset1:{HIST//256 + 8}")
    srd(sEP, 6, 7, E*32)
    srd(sWS, 8, 9, WS_USED)
    I(f"s_mov_b32 s{sOUT+2}, {N*128}")
    I(f"s_mov_b32 s{sOUT+3}, 0x20000")
    I(f"s_movk_i32 s{s128}, 128")
    I(f"s_mul_i32 s{sSTG}, s{sW}, {WST}")
    I(f"s_add_u32 s{sSTG}, s{sSTG}, {STG}")
    I(f"s_movk_i32 s{sSKIP}, 39")
    I(f"s_mov_b32 s{sXT}, 0")
    I(f"v_bfe_u32 v{u(6)}, v{lane}, 4, 1")
    I(f"v_lshlrev_b32 v{u(7)}, 4, v{u(9)}")
    I(f"v_lshlrev_b32 v{u(8)}, 6, v{u(6)}")
    I(f"v_xor_b32 v{vCP}, v{u(7)}, v{u(8)}")
    I(f"v_and_b32 v{vCH}, 1, v{lane}")
    I(f"v_lshlrev_b32 v{vCH}, 4, v{vCH}")
    I(f"v_lshlrev_b32 v{vC1}, 5, v{u(5)}")
    I(f"v_and_b32 v{u(7)}, 3, v{lane}")
    I(f"v_lshlrev_b32 v{u(7)}, 3, v{u(7)}")
    I(f"v_lshl_add_u32 v{vC2}, v{u(6)}, 5, v{u(7)}")
    I(f"v_bfe_u32 v{u(8)}, v{lane}, 2, 2")
    I(f"v_mul_u32_u24 v{u(8)}, 1040, v{u(8)}")
    I(f"v_lshl_add_u32 v{u(8)}, v{u(6)}, 9, v{u(8)}")
    I(f"v_lshl_add_u32 v{u(8)}, v{u(7)}, 4, v{u(8)}")
    I(f"v_bfe_u32 v{u(6)}, v{lane}, 1, 1")
    I(f"v_xor_b32 v{u(6)}, v{u(6)}, v{u(5)}")
    I(f"v_lshl_add_u32 v{u(8)}, v{u(6)}, 6, v{u(8)}")
    I(f"v_add_u32 v{vAX}, s{sSTG}, v{u(8)}")
    I(f"v_bfe_u32 v{u(6)}, v{lane}, 2, 3")
    I(f"v_add_u32 v{u(6)}, v{u(6)}, v{u(7)}")
    I(f"v_lshl_add_u32 v{u(6)}, v{u(6)}, 1, v{u(5)}")
    I(f"v_lshl_add_u32 v{vAE}, v{u(6)}, 4, s{sSTG}")
    I(f"v_add_u32 v{vAE}, 4160, v{vAE}")
    I(f"s_mul_i32 s{sL}, s{sW}, {LCAP*4}")
    I(f"s_add_u32 s{sL}, s{sL}, {R0}")
    listaddr(lane, u(6), u(7))
    I(f"v_subrev_u32 v{u(14)}, s{sWIN}, v{lane}")
    I(f"v_and_b32 v{u(14)}, 31, v{u(14)}")
    I(f"v_add_u32 v{u(14)}, s{sTMP}, v{u(14)}")
    I(f"v_or_b32 v{u(14)}, 0x08000000, v{u(14)}")
    I(f"v_lshl_add_u32 v{u(6)}, v{u(5)}, 4, v{u(3)}")
    I(f"v_subrev_u32 v{u(6)}, s{sWIN}, v{u(6)}")
    for i in range(4):
        I(f"v_add_u32 v{vX+i}, {8*(i&1) + 4*(i>>1)}, v{u(6)}")
        I(f"v_and_b32 v{vX+i}, 31, v{vX+i}")
        I(f"v_add_u32 v{vX+i}, s{sTMP}, v{vX+i}")
        I(f"v_lshl_add_u32 v{vX+i}, v{vX+i}, 7, v{vCP}")
    I(f"v_and_b32 v{u(6)}, 1, v{tid}")
    I(f"v_lshl_add_u32 v{u(6)}, v{u(6)}, 2, 1")
    I(f"v_lshrrev_b32 v{u(6)}, v{u(6)}, v{tid}")
    for d in range(2):
        I(f"v_bfe_u32 v{u(12)+d}, v{u(6)}, {2*d}, 2")
        I(f"v_lshl_or_b32 v{u(12)+d}, v{u(12)+d}, 15, v{u(12)+d}")
        I(f"v_and_b32 v{u(12)+d}, 0x10001, v{u(12)+d}")
        I(f"v_mul_u32_u24 v{u(12)+d}, 0x3f80, v{u(12)+d}")
    I(f"v_lshlrev_b32 v{u(6)}, 3, v{tid}")
    I(f"ds_write_b64 v{u(6)}, v[{u(12)}:{u(13)}] offset:{LUT}")
    cb0, cb1, cba = vT1 + 5, vT1 + 6, vT1 + 7
    def dconst(t0, t1):
        I(f"v_and_b32 v{t0}, 1, v{lane}")
        I(f"v_and_b32 v{t1}, 2, v{lane}")
        I(f"v_lshl_add_u32 v{t0}, v{t0}, 2, v{t1}")
        I(f"v_mov_b32 v{t1}, {1 << 20}")
        I(f"v_lshlrev_b32 v{cb0}, v{t0}, v{t1}")
        I(f"v_lshlrev_b32 v{t0}, 1, v{t0}")
        I(f"v_bfe_u32 v{t1}, v{lane}, 3, 2")
        I(f"v_lshlrev_b32 v{t1}, v{t0}, v{t1}")
        I(f"v_lshlrev_b32 v{cb1}, 1, v{cb0}")
        I(f"v_lshl_or_b32 v{cb1}, v{t1}, 2, v{cb1}")
        I(f"v_or_b32 v{cb0}, v{cb0}, v{t1}")
        I(f"v_bfe_u32 v{t0}, v{lane}, 2, 1")
        I(f"v_lshrrev_b32 v{t1}, 5, v{lane}")
        I(f"v_lshl_add_u32 v{t0}, v{t1}, 1, v{t0}")
        I(f"v_mul_u32_u24 v{cba}, {DT//2}, v{t0}")
        I(f"v_add_u32 v{cba}, s{sSTG}, v{cba}")
    dconst(u(6), u(7))
    lo0, hi0, lo1, hi1 = sT, sN, sMSK, sMSK + 1
    I(f"s_mul_i32 s10, s{sW}, 49")
    I(f"s_sub_i32 s{lo0}, s10, 7")
    I(f"s_ashr_i32 s{lo0}, s{lo0}, 1")
    I(f"s_add_i32 s{hi0}, s10, 8")
    I(f"s_ashr_i32 s{hi0}, s{hi0}, 1")
    I(f"s_add_i32 s{lo1}, s10, 42")
    I(f"s_ashr_i32 s{lo1}, s{lo1}, 1")
    I(f"s_add_i32 s{hi1}, s{lo0}, 32")
    I(f"s_cmp_eq_u32 s{sW}, 7")
    I(f"s_cselect_b32 s{lo1}, {BN}, s{lo1}")
    I(f"s_cselect_b32 s{hi1}, {BN}, s{hi1}")
    I(f"v_lshlrev_b32 v{k4}, 2, v{u(9)}")
    I(f"v_cmp_ne_u32 s[10:11], 0, v{k4}")
    vEB = vQ + 4
    I(f"v_mul_u32_u24 v{vEB}, {CH*32}, v{hda}")
    for i in range(1, 4):
        I(f"v_add_u32 v{vEB+i}, {64*i*CH*32}, v{vEB}")
    I(f"v_lshlrev_b32 v{hda}, 2, v{hda}")
    I(f"v_mov_b32 v{one}, 4")
    I(f"v_and_b32 v{u(11)}, 31, v{lane}")
    I(f"v_add_u32 v{u(11)}, s{sWIN}, v{u(11)}")
    I(f"v_lshlrev_b32 v{u(12)}, 2, v{u(11)}")
    I(f"v_lshl_add_u32 v{u(12)}, v{u(5)}, 11, v{u(12)}")
    for i in range(4): I(f"v_mov_b64 v[{vT2+2*i}:{vT2+2*i+1}], 0")
    I(f"s_lshl_b32 s{sEND}, s{sW}, 2")
    I(f"v_mov_b32 v{vMIN}, s{sEND}")
    I(f"v_lshlrev_b32 v{vMIN+1}, 2, v{u(11)}")
    I("s_waitcnt lgkmcnt(0)")
    stamp('q')
    I("s_barrier")
    stamp('r')
    point(0, 1)
    for i in range(4):
        I(f"s_waitcnt vmcnt({younger(f'C{i}')})")
        if i == 0: stamp(1)
        I(f"v_mov_b32_dpp v{vH+i}, v{vC+4*i} row_newbcast:0 row_mask:0xf bank_mask:0x3")
        I(f"v_mov_b32_dpp v{vH+i}, v{vC+4*i} row_newbcast:8 row_mask:0xf bank_mask:0xc")
        for j in range(4):
            I(f"v_lshrrev_b32 v{vA+4*i+j}, 20, v{vC+4*i+j}")
        I(f"v_sub_u32_sdwa v{u(0)}, v{vH+i}, v{k4} dst_sel:DWORD dst_unused:UNUSED_PAD src0_sel:WORD_1 src1_sel:DWORD")
        for j in range(4):
            m = sM + 2*(4*i+j)
            I(f"v_cmp_le_i32 s[{m}:{m+1}], {j}, v{u(0)}")
        m = sM + 8*i
        I(f"s_and_b64 s[{m}:{m+1}], s[{m}:{m+1}], s[10:11]")
        for j in range(4):
            m = sM + 2*(4*i+j)
            I(f"s_mov_b64 exec, s[{m}:{m+1}]")
            I(f"ds_add_rtn_u32 v{vRK+4*i+j}, v{vA+4*i+j}, v{one} offset:{HIST}")
        I("s_mov_b64 exec, -1")
    I(f"v_max3_u32 v{u(0)}, v{vH}, v{vH+1}, v{vH+2}")
    I(f"v_max_u32 v{u(0)}, v{u(0)}, v{vH+3}")
    I(f"v_cmp_le_u32 vcc, {32 << 16}, v{u(0)}")
    for i in range(4):
        I(f"ds_write_b32 v{hda}, v{vH+i} offset:{HDR + 256*i}")
    I("s_cbranch_vccnz K2_XT1")
    L("K2_XT1R")
    stamp('s')
    point(1)
    if WSY == 1: I(f"s_waitcnt vmcnt({younger('W')})")
    I("s_waitcnt lgkmcnt(0)")
    I("s_barrier")
    stamp(2)
    c, p, tot, sc = u(0), u(4), u(8), u(9)
    hh = vWV
    own, ownn, owna = u(10), u(11), u(12)
    SD = "dst_sel:DWORD dst_unused:UNUSED_PAD src0_sel:WORD_0 src1_sel:WORD_0"
    for ph in range(4):
        I(f"ds_read_b128 {rr(hh+4*ph,4)}, v{l16} offset:{HIST + 1024*ph}")
    I(f"ds_read_u16 v{own}, v{owna} offset:{HIST}")
    I(f"ds_read_u16 v{u(13)}, v{owna} offset:{HIST + 1024}")
    assert WE <= 9
    if WSY == 1:
        for r_, o_ in wl[:WE]: wread(r_, o_)
    point(2)
    fill = [f"v_and_b32 v{vC+s}, 0x07ffffff, v{vC+s}" for s in range(16)]
    I(f"s_waitcnt lgkmcnt({WE if WSY == 1 else 0})")
    for i in range(4):
        I(f"v_add_u32_sdwa v{c+i}, v{hh+i}, v{hh+4+i} {SD}")
        I(f"v_add_u32_sdwa v{p+i}, v{hh+8+i}, v{hh+12+i} {SD}")
    for i in range(4):
        I(f"v_add_u32 v{c+i}, v{c+i}, v{p+i}")
    I(f"v_lshl_or_b32 v{own}, v{u(13)}, 16, v{own}")
    W2_, W3_ = opt("w2", 10), opt("w3", 0)
    if W2_:
        I("s_waitcnt lgkmcnt(4)")
        for r_, o_ in wl[WE:WE+W2_]: wread(r_, o_)
    I(f"v_add_u32 v{p+1}, v{c}, v{c+1}")
    I(f"v_add_u32 v{p+2}, v{p+1}, v{c+2}")
    I(f"v_add_u32 v{p+3}, v{p+2}, v{c+3}")
    I(f"v_mov_b32 v{tot}, v{p+3}")
    fill = [f"v_add_u32 v{c+1}, v{c}, v{p+1}", f"v_add_u32 v{c+2}, v{p+1}, v{p+2}", f"v_add_u32 v{c+3}, v{p+2}, v{p+3}"] + fill
    wave_scan(tot, fill)
    I(f"v_sub_u32 v{p}, v{tot}, v{p+3}")
    I(f"v_readlane_b32 s10, v{tot}, 63")
    for i in range(4):
        I(f"v_lshl_add_u32 v{c+i}, v{p}, 1, v{c+i}")
    I("s_lshr_b32 s11, s10, 5")
    I(f"s_add_u32 s11, s11, {ASYM}")
    I("s_and_b32 s11, s11, -32")
    I(f"s_sub_i32 s11, s11, {ASYM}")
    I("s_lshl_b32 s11, s11, 3")
    I("s_lshr_b32 s10, s10, 1")
    I(f"s_lshr_b32 s{sF0}, s{sW}, 1")
    I(f"s_mul_i32 s{sF0}, s{sF0}, s10")
    I(f"s_add_i32 s11, s11, s{sF0}")
    I(f"s_add_i32 s10, s10, s{sF0}")
    I(f"s_bitcmp1_b32 s{sW}, 0")
    I(f"s_cselect_b32 s{sEND}, s11, s{sF0}")
    I("s_cselect_b32 s10, s10, s11")
    I(f"s_mov_b32 s{sF0}, 0")
    I(f"s_mov_b32 s{sF1}, 0")
    if W3_:
        I("s_waitcnt lgkmcnt(4)")
        for r_, o_ in wl[WE+W2_:WE+W2_+W3_]: wread(r_, o_)
    WD = WE + W2_ + W3_
    for i in range(4):
        I(f"v_cmp_gt_i32 vcc, s{sEND}, v{c+i}")
        I(f"v_cmp_gt_i32 s[{sTMP}:{sTMP+1}], s10, v{c+i}")
        I("s_bcnt1_i32_b64 s11, vcc")
        I(f"s_add_u32 s{sF0}, s{sF0}, s11")
        I(f"s_bcnt1_i32_b64 s11, s[{sTMP}:{sTMP+1}]")
        I(f"s_add_u32 s{sF1}, s{sF1}, s11")
    I(f"s_max_i32 s{sF0}, s{sF0}, s{lo0}")
    I(f"s_min_i32 s{sF0}, s{sF0}, s{hi0}")
    I(f"s_max_i32 s{sF1}, s{sF1}, s{lo1}")
    I(f"s_min_i32 s{sF1}, s{sF1}, s{hi1}")
    I(f"v_cmp_le_u32 vcc, s{sF0}, v{ownn}")
    I(f"v_cmp_gt_u32 s[10:11], s{sF1}, v{ownn}")
    I(f"s_mov_b32 s{sMORE}, 2")
    I("s_and_b64 vcc, vcc, s[10:11]")
    I(f"v_cndmask_b32 v{own}, 0, v{own}, vcc")
    I(f"v_mov_b32 v{tot}, v{own}")
    wave_scan(tot, fill, half=True)
    for x_ in fill: I(x_)
    I(f"s_sub_u32 s{sTMP}, s{sL}, {R0}")
    I(f"v_readlane_b32 s10, v{tot}, 31")
    I(f"v_readlane_b32 s11, v{tot}, 63")
    I(f"v_sub_u32 v{tot}, v{tot}, v{own}")
    I(f"v_mov_b32 v{vOWN}, v{u(14)}")
    I(f"s_and_b32 s{sTH}, s10, 0xffff")
    I("s_lshr_b32 s10, s10, 16")
    I(f"s_add_u32 s{sTH+1}, s{sTH}, s10")
    I("s_and_b32 s10, s11, 0xffff")
    I(f"s_add_u32 s{sTH+2}, s{sTH+1}, s10")
    I("s_lshr_b32 s11, s11, 16")
    I(f"s_add_u32 s{sEND}, s{sTH+2}, s11")
    I(f"s_lshl_b32 s10, s{sTH}, 16")
    I(f"s_pack_ll_b32_b16 s11, s{sTH+1}, s{sTH+2}")
    I(f"s_pack_ll_b32_b16 s{sTMP}, s{sTMP}, s{sTMP}")
    I(f"s_add_u32 s10, s10, s{sTMP}")
    I(f"s_add_u32 s11, s11, s{sTMP}")
    I("s_mov_b32 exec_lo, vcc_lo")
    I("s_mov_b32 exec_hi, 0")
    I(f"v_add_u32 v{tot}, s10, v{tot}")
    I("s_mov_b32 exec_lo, 0")
    I("s_mov_b32 exec_hi, vcc_hi")
    I(f"v_add_u32 v{tot}, s11, v{tot}")
    I("s_mov_b64 exec, vcc")
    I(f"ds_write_b16 v{owna}, v{tot} offset:{HIST + 2}")
    I(f"ds_write_b16_d16_hi v{owna}, v{tot} offset:{HIST + 1024 + 2}")
    I(f"ds_write_b32 v{vMIN+1}, v{vMIN} offset:{MAP}")
    I("s_mov_b64 exec, -1")
    I(f"v_mov_b32 v{sc}, {FLAG}")
    I(f"s_cmp_le_u32 s{sEND}, {LMAX*4}")
    I("s_cbranch_scc1 K2_LFIT")
    I(f"ds_write_b32 v{sc}, v{one}")
    I(f"s_mov_b32 s{sEND}, 0")
    L("K2_LFIT")
    I(f"s_add_u32 s{sEND}, s{sEND}, s{sL}")
    for k in range(3):
        I(f"s_add_i32 s{sTH+k}, s{sTH+k}, {opt('tho', 64)}")
        I(f"s_lshr_b32 s{sTH+k}, s{sTH+k}, 7")
    point(3)
    I("s_waitcnt lgkmcnt(0)")
    stamp('a')
    I("s_barrier")
    stamp('b')
    I(f"ds_read_b32 v{sc}, v{sc}")
    for s in range(16):
        m = sM + 2*s
        I(f"s_mov_b64 exec, s[{m}:{m+1}]")
        I(f"ds_read_u16 v{vA+s}, v{vA+s} offset:{HIST + 2}")
    I("s_mov_b64 exec, -1")
    point(4)
    pads(lane, u(0), u(1), u(2))
    I(f"s_waitcnt vmcnt({younger('L')}) lgkmcnt(0)")
    I(f"v_cmp_ne_u32 vcc, 0, v{sc}")
    I("s_cbranch_vccnz K2_OVF")
    for s in range(16):
        m = sM + 2*s
        I(f"s_mov_b64 exec, s[{m}:{m+1}]")
        I(f"v_add_u32 v{vA+s}, v{vA+s}, v{vRK+s}")
        I(f"v_mad_u32_u16 v{vRK+s}, v{vLE + (s>>1)}, 32, v{vEB + (s>>2)} op_sel:[{s&1},0,0,0]")
        I(f"ds_write2st64_b32 v{vA+s}, v{vC+s}, v{vRK+s} offset0:{R0//256} offset1:{R1//256}")
    I("s_mov_b64 exec, -1")
    I(f"s_cmp_lg_u32 s{sXT}, 0")
    I("s_cbranch_scc1 K2_XT2")
    L("K2_PADS0")
    if WSY != 1: I(f"s_waitcnt vmcnt({younger('W')})")
    I("s_waitcnt lgkmcnt(0)")
    stamp('c')
    I("s_barrier")
    vio, e1, e2, nn = sM, sM + 2, sM + 4, sM + 6
    m8, m16, m24 = sM + 8, sM + 10, sM + 12
    def dbuild(tb, tag, extra=(), mid=()):
        z = vR + 12
        extra = list(extra)
        I(f"v_lshl_add_u32 v{vT}, v{lane}, 4, s{sSTG}")
        I(f"v_lshl_add_u32 v{z}, v{lane}, 2, s{sSTG}")
        I(f"v_lshl_add_u32 v{z+1}, v{lane}, 2, s{sL}")
        I(f"v_subrev_u32 v{z+1}, 96, v{z+1}")
        q = []
        def lreads(k):
            for d in range(4):
                I(f"ds_read_u16 v{tb+4*k+d}, v{z+1} offset:{256*k + 96 - 32*d + 2}"); q.append(k)
        lreads(0); lreads(1)
        for k in range(4): I(f"ds_write_b128 v{vT}, {rr(vR,4)} offset:{SLOT + 1024*k}"); q.append('w')
        I(f"ds_write_b32 v{z}, v{vR} offset:{SLOT + 4096}"); q.append('w')
        for r_, v_ in ((m8, 0xffffff00), (m16, 0xffff0000), (m24, 0xff000000)):
            I(f"s_mov_b32 s{r_}, {v_:#x}")
            I(f"s_mov_b32 s{r_+1}, {v_:#x}")
        I(f"s_mov_b64 s[{vio}:{vio+1}], 0")
        I(f"s_movk_i32 s10, 2048")
        for k in range(8):
            I(f"s_cmp_le_u32 s{sN}, {2*k}")
            I(f"s_cbranch_scc1 K2_DB{tag}{k}")
            w = min(14, len(q) - 1 - max(i for i, t in enumerate(q) if t == k))
            I(f"s_waitcnt lgkmcnt({min(w, 8)})")
            if mid: I(mid[k])
            if k + 2 < 8: lreads(k + 2)
            l0 = tb + 4*k
            I(f"v_cmp_eq_u32 vcc, v{l0}, v{l0+1}")
            I(f"v_cmp_eq_u32 s[{e1}:{e1+1}], v{l0}, v{l0+2}")
            I(f"v_cmp_eq_u32 s[{e2}:{e2+1}], v{l0}, v{l0+3}")
            I(f"v_cmp_ne_u32 s[{nn}:{nn+1}], s10, v{l0}")
            I(f"v_lshrrev_b32 v{l0}, 4, v{l0}")
            I(f"s_and_b64 vcc, vcc, s[{m8}:{m8+1}]")
            I(f"v_add_u32 v{l0}, v{l0}, v{cba}")
            I(f"s_and_b64 s[{e1}:{e1+1}], s[{e1}:{e1+1}], s[{m16}:{m16+1}]")
            I(f"v_cndmask_b32 v{l0+1}, v{cb0}, v{cb1}, vcc")
            I(f"s_and_b64 s[{e2}:{e2+1}], s[{e2}:{e2+1}], s[{m24}:{m24+1}]")
            I(f"ds_or_b32 v{l0}, v{l0+1} offset:{SLOT + 2*DT*k}"); q.append('o')
            for x_ in extra[2*k:2*k+2]: I(x_); q.append('x')
            I(f"s_or_b64 s[{e1}:{e1+1}], s[{e1}:{e1+1}], s[{e2}:{e2+1}]")
            I(f"s_and_b64 s[{e1}:{e1+1}], s[{e1}:{e1+1}], s[{nn}:{nn+1}]")
            I(f"s_or_b64 s[{vio}:{vio+1}], s[{vio}:{vio+1}], s[{e1}:{e1+1}]")
        if mid:
            I(f"s_branch K2_DBE{tag}")
            for k in range(8):
                L(f"K2_DB{tag}{k}")
                I("s_waitcnt lgkmcnt(8)")
                I(mid[k])
                for x_ in extra[2*k:2*k+2]: I(x_)
            I("s_nop 3")
            L(f"K2_DBE{tag}")
            for x_ in extra[16:]: I(x_)
        else:
            for k in range(8): L(f"K2_DB{tag}{k}")
    L("K2_GO")
    stamp(3)
    STAG = opt("stag", 1)
    I(f"ds_read_b128 {rr(vQD,4)}, v{vARX}")
    I(f"ds_read_b32 v{vR1}, v{vARE}")
    I(f"ds_read_u16 v{vL1}, v{vARP} offset:2")
    for i in range(4):
        I(f"v_mov_b64 v[{vR+2*i}:{vR+2*i+1}], 0")
    I("s_waitcnt lgkmcnt(1)")
    EM = opt("em", 0xAA)
    if STAG == 1:
        I(f"s_movk_i32 s10, {EM}")
        I(f"s_bitcmp1_b32 s10, s{sW}")
        I("s_cbranch_scc1 K2_EARLY0")
        I("s_waitcnt vmcnt(0)")
        I("s_branch K2_LATE0")
        L("K2_EARLY0")
    for s in dma_tile(0): I(s)
    if STAG == 2:
        I(f"s_bitcmp1_b32 s{sW}, 0")
        I("s_cbranch_scc1 K2_LATE0")
        I("s_waitcnt vmcnt(0)")
    L("K2_LATE0")
    I(f"s_cmp_lg_u32 s{sMORE}, 2")
    I("s_cbranch_scc1 K2_NOTFIRST")
    assert WE >= 8 and WSY == 1
    I(f"s_waitcnt vmcnt({5 + younger('X')})")
    for q in range(4):
        I(f"ds_read_b128 {rr(vX+4*q,4)}, v{vAX} offset:{SLOT + 16*q}")
    I(f"ds_read_b128 {rr(vR+8,4)}, v{l16} offset:{HDR}")
    mid = []
    for ft, D in ((0, vP), (1, vQ)):
        mid += [mfma(D, vX+4*q, vWA+16*ft+4*q, None if q == 0 else D) for q in range(4)]
    dbuild(vACC + 32, "f", [f"ds_read_b128 {rr(r_,4)}, v{wa} offset:{o_}" for r_, o_ in wl[WD:]], mid)
    I(f"s_mov_b32 s10, {f2u(-LOG2E):#x}")
    for i in range(32):
        I(f"v_mul_f32 v{vP+i}, s10, v{vP+i}")
    for i in range(16):
        I(f"v_cvt_pk_bf16_f32 v{vAT+i}, v{vP+2*i}, v{vP+2*i+1}")
    I("s_waitcnt lgkmcnt(0)")
    I(mfma(NUM(0), vT2, vT2))
    I(mfma(NUM(1), vT2, vT2))
    I(f"s_mov_b32 s10, {f2u(1e-6):#x}")
    I(f"s_mov_b32 s11, s10")
    for ft in range(2):
        for i in range(8):
            I(f"v_mov_b64 v[{DEN(ft)+2*i}:{DEN(ft)+2*i+1}], s[10:11]")
    I(f"v_max3_u32 v{vR+8}, v{vR+8}, v{vR+9}, v{vR+10}")
    I(f"v_max_u32 v{vR+8}, v{vR+8}, v{vR+11}")
    I(f"v_lshrrev_b32 v{vR+8}, 16, v{vR+8}")
    I(f"v_cmp_lt_u32 vcc, s{sSKIP}, v{vR+8}")
    I(f"s_mov_b32 s{sCI}, -1")
    I(f"s_mov_b64 s[{sMSK}:{sMSK+1}], 0")
    I(f"s_mov_b32 s{sR0}, 0")
    I(f"s_mov_b32 s{sCNT}, 0")
    I("s_cmp_lg_u64 vcc, 0")
    I(f"s_cselect_b32 s{sMORE}, 1, 0")
    L("K2_BUILT")
    I("s_waitcnt lgkmcnt(0)")
    I(f"v_add_u32 v{vL1}, v{vL1}, v{vC1}")
    if STAG == 1:
        I(f"s_movk_i32 s10, {EM}")
        I(f"s_bitcmp1_b32 s10, s{sW}")
        I("s_cbranch_scc1 K2_HAD0")
        for s in dma_tile(0): I(s)
        L("K2_HAD0")
    I(f"ds_read_b128 {rr(vQD,4)}, v{vARX} offset:128")
    I(f"ds_read_b32 v{vR1}, v{vARE} offset:128")
    for s in t1_reads(): I(s)
    for i in range(4):
        I(f"v_mov_b64 v[{vQ+2*i}:{vQ+2*i+1}], 0")
    I(f"v_lshrrev_b32 v{vT}, 5, v{lane}")
    I(f"v_add_u32 v{vT}, v{vT}, v{lane}")
    I(f"v_lshl_add_u32 v{vART}, v{vT}, 2, s{sSTG}")
    I(f"v_add_u32 v{vART}, {SLOT}, v{vART}")
    stamp(4)
    I("s_waitcnt vmcnt(0)")
    stamp(5)
    I(f"ds_read_b128 {rr(vE,4)}, v{vAE}")
    for q in range(4):
        I(f"ds_read_b128 {rr(vX+4*q,4)}, v{vAX} offset:{16*q}")
    I("s_waitcnt lgkmcnt(0)")
    I(f"s_cmp_eq_u32 s{sN}, 0")
    I("s_cbranch_scc1 K2_DONE")
    for s in g_mfmas(vP, 0):
        if s.startswith("v_smfmac"):
            for x_ in dma_tile(0): I(x_)
        I(s)
    I(f"s_mov_b32 s{sT}, 0")
    def prio_code(uid):
        r = []
        for k in range(3):
            r += [f"s_cmp_lg_u32 s{sT}, s{sTH+k}", f"s_cbranch_scc1 K2_PR{uid}_{k}", f"s_setprio {2-k}", f"K2_PR{uid}_{k}:"]
        return r
    YK = opt("yk", 2)
    if YK:
        I(f"s_sub_u32 s10, s{sN}, {YK - 1 if YK < 10 else 0}")
        I(f"s_bitcmp1_b32 s{sW}, 0")
        I(f"s_cselect_b32 s{sTH+2}, s{sTH+2}, s10")
    I("s_setprio 3")
    I(f"s_cmp_lg_u64 s[{vio}:{vio+1}], 0")
    I("s_nop 8")
    I("s_cbranch_scc1 K2_DENSE" if not opt("fdense", 0) else "s_branch K2_DENSE")
    tst = ["s_memrealtime s[98:99]", "s_waitcnt lgkmcnt(0)", "s_mov_b32 m0, s72", "s_nop 0", "v_writelane_b32 v255, s98, m0"] if TS == 4 else []
    def loop(sp):
        body = tst + phaseA(0, sp) + phaseB(0, sp)
        body += [f"s_cmp_ge_u32 s{sT}, s{sN}", f"s_cbranch_scc1 K2_TAIL0{sp}"] + (prio_code(0) if sp else [])
        body += tst + phaseA(1, sp) + phaseB(1, sp)
        body += [f"v_add_u32 v{r}, 0x100, v{r}" for r in (vARX, vARP, vARE)]
        body += [f"v_add_u32 v{vART}, {2*DT if sp else 256}, v{vART}"]
        body += prio_code(1) if sp else []
        body += [f"s_cmp_lt_u32 s{sT}, s{sN}", f"s_cbranch_scc1 K2_LOOP{sp}"]
        check_body(body)
        DBG = opt("dbg", "")
        if "nodma" in DBG: body = [b for b in body if not b.startswith("buffer_load")]
        if sp: emit(".p2align 6")
        L(f"K2_LOOP{sp}")
        for s in body:
            if s.endswith(":"): L(s[:-1])
            else: I(s)
        if sp:
            for s in s_mfmas(DEN(1), vR, 1, 1) + s_mfmas(NUM(1), vQ, 1, 1): I(s)
            I("s_branch K2_DONE")
        L(f"K2_TAIL0{sp}")
        for s in s_mfmas(DEN(1), vR, sp, 0) + s_mfmas(NUM(1), vQ, sp, 0): I(s)
    loop(1)
    L("K2_DONE")
    I(f"s_cmp_lg_u32 s{sMORE}, 0")
    I("s_cbranch_scc1 K2_SLOW")
    L("K2_EPI")
    stamp(6)
    I(f"v_lshlrev_b32 v{vT}, 4, v{lane}")
    for k in range(8):
        I(f"ds_read_b128 {rr(vWB+4*k,4)}, v{vT} offset:{WL + 1024*k}")
    I(f"v_and_b32 v{vQD+1}, 31, v{lane}")
    I(f"v_lshrrev_b32 v{vQD+2}, 2, v{vC1}")
    I(f"v_lshl_add_u32 v{vQD+1}, v{vQD+1}, 6, v{vQD+2}")
    for s_ in range(2):
        I(f"ds_read2_b64 {rr(vT2+4*s_,4)}, v{vQD+1} offset0:{4*s_} offset1:{4*s_+2}")
    for i in range(16):
        I(f"v_lshlrev_b32 v{vWV+2*i}, 16, v{vX+i}")
        I(f"v_and_b32 v{vWV+2*i+1}, 0xffff0000, v{vX+i}")
    I(f"v_subrev_u32 v{vT+1}, s{sWIN}, v{lane}")
    I(f"v_and_b32 v{vT+1}, 31, v{vT+1}")
    I(f"v_mul_u32_u24 v{vT+1}, 144, v{vT+1}")
    I(f"v_lshl_add_u32 v{vT+1}, v{vC1}, 1, v{vT+1}")
    I(f"v_add_u32 v{vT+1}, s{sSTG}, v{vT+1}")
    I(f"s_sub_u32 s10, s{sF0}, s{sWIN}")
    I("s_mul_i32 s10, s10, 144")
    I(f"s_add_u32 s10, s10, s{sSTG}")
    I(f"v_lshrrev_b32 v{vQD}, 3, v{lane}")
    I(f"v_lshl_add_u32 v{vQD}, v{vQD}, 4, v{vT}")
    I(f"v_add_u32 v{vQD}, s10, v{vQD}")
    I(f"s_mul_i32 s10, s{sB}, {BN}")
    I(f"s_add_u32 s11, s10, s{sF1}")
    I(f"s_add_u32 s10, s10, s{sF0}")
    I(f"s_min_u32 s11, s11, {N}")
    I(f"s_min_u32 s10, s10, {N}")
    I("s_sub_u32 s11, s11, s10")
    I("s_lshl_b32 s10, s10, 7")
    I(f"s_add_u32 s{sOUT}, s{sOUT}, s10")
    I(f"s_addc_u32 s{sOUT+1}, s{sOUT+1}, 0")
    I(f"s_lshl_b32 s{sOUT+2}, s11, 7")
    for ft, D in ((0, vP), (1, vQ)):
        for q in range(4):
            I(f"s_waitcnt lgkmcnt({9 - 4*ft - q})")
            I(mfma(D, vWB+16*ft+4*q, vX+4*q, vWV+16*ft if q == 0 else D))
            for i in range(4):
                r = DEN(ft) + 4*q + i
                I(f"v_rcp_f32 v{r}, v{r}")
    I("s_waitcnt lgkmcnt(0)")
    for ft, D in ((0, vP), (1, vQ)):
        for i in range(16):
            I(f"v_mul_f32 v{NUM(ft)+i}, v{NUM(ft)+i}, v{DEN(ft)+i}")
        for i in range(8):
            I(f"v_cvt_pk_bf16_f32 v{DEN(ft)+i}, v{NUM(ft)+2*i}, v{NUM(ft)+2*i+1}")
        I(mfma(D, DEN(ft), vT2, D))
        I("s_nop 0")
        I(mfma(D, DEN(ft)+4, vT2+4, D))
    for q in range(4):
        for i in range(8*q, 8*q+8):
            I(f"v_max_f32 v{vP+i}, v{vP+i}, v{vWV+i}")
        for d in range(4):
            i = 4*q + d
            I(f"v_cvt_pk_bf16_f32 v{vR+i}, v{vP+2*i}, v{vP+2*i+1}")
        I(f"ds_write_b128 v{vT+1}, {rr(vR+4*q,4)} offset:{16*q}")
    for q in range(4):
        I(f"ds_read_b128 {rr(vX+4*q,4)}, v{vQD} offset:{8*144*q}")
    for q in range(4):
        I(f"s_waitcnt lgkmcnt({3-q})")
        I(f"buffer_store_dwordx4 {rr(vX+4*q,4)}, v{vT}, s[{sOUT}:{sOUT+3}], 0 offen offset:{1024*q}{pol(K2_OP)}")
    if TS == 2 or opt("tsn", 0): I(f"s_mov_b32 s89, s{sN}")
    if TS and ASYM:
        if opt("swp", 1): I(f"s_xor_b32 s{sW}, s{sW}, 1")
        I(f"s_and_b32 s10, s{sW}, 1")
        I(f"s_lshr_b32 s{sW}, s{sW}, 1")
        I(f"s_lshl2_add_u32 s{sW}, s10, s{sW}")
    if TS == 4:
        I("s_mov_b64 exec, -1")
        I(f"s_lshl_b32 s87, s2, 11")
        I(f"s_add_u32 s87, s87, {WS_TS + 0x180000}")
        I(f"s_lshl_b32 s86, s{sW}, 8")
        I("s_add_u32 s87, s87, s86")
        I(f"v_lshl_add_u32 v{vP}, v{lane}, 2, s87")
        I(f"global_store_dword v{vP}, v255, s[8:9]")
    stamp_out(8, 8, sW, 8, 0x100000, vP)
    L("K2_END")
    I("s_endpgm")
    L("K2_NOTFIRST")
    dbuild(vP, "s")
    I("s_branch K2_BUILT")
    L("K2_DENSE")
    I(f"v_bfe_u32 v{vT}, v{lane}, 2, 2")
    I(f"v_lshl_add_u32 v{vART}, v{vT}, 5, s{sL}")
    I(f"v_lshrrev_b32 v{vT}, 5, v{lane}")
    I(f"v_lshl_add_u32 v{vART}, v{vT}, 2, v{vART}")
    I(f"v_add_u32 v{vART}, 2, v{vART}")
    loop(0)
    I("s_branch K2_DONE")
    L("K2_OVF")
    I(f"s_mov_b32 s{sSKIP}, 0")
    I(f"s_mov_b32 s{sEND}, s{sL}")
    pads(lane, vP, vP+1, vP+2)
    I("s_branch K2_PADS0")
    xr, xe, xa, xk = vX + 4, vX + 8, vX + 12, vAT + 8
    xt, xo = vAT + 12, vAT + 13
    def xmask(i):
        I(f"v_lshrrev_b32 v{xo}, 16, v{vH+i}")
        I(f"v_cmp_lt_u32 vcc, v{xt}, v{xo}")
    L("K2_XT1")
    I(f"s_mov_b32 s{sXT}, 1")
    I(f"v_lshrrev_b32 v{xt}, 2, v{k4}")
    I(f"v_add_u32 v{xt}, 31, v{xt}")
    I(f"v_mov_b32 v{xk}, 0x1ffffff0")
    for i in range(4):
        xmask(i)
        I(f"v_and_b32 v{xa+i}, 0xffff, v{vH+i}")
        I(f"v_lshrrev_b32 v{xo}, 5, v{vEB+i}")
        I(f"v_add3_u32 v{xa+i}, v{xa+i}, v{xo}, v{xt}")
        I(f"v_cndmask_b32 v{xa+i}, v{xk}, v{xa+i}, vcc")
        I(f"v_lshlrev_b32 v{xr+i}, 2, v{xa+i}")
        I(f"v_lshlrev_b32 v{xe+i}, 1, v{xa+i}")
        I(f"s_mov_b32 s10, {WS_RECS}")
        I(f"s_mov_b32 s11, {WS_LEID}")
        I(f"buffer_load_dword v{xr+i}, v{xr+i}, s[{sWS}:{sWS+3}], s10 offen")
        I(f"buffer_load_ushort v{xe+i}, v{xe+i}, s[{sWS}:{sWS+3}], s11 offen")
    I("s_waitcnt vmcnt(0)")
    for i in range(4):
        xmask(i)
        I(f"v_lshrrev_b32 v{xa+i}, 20, v{xr+i}")
        I(f"v_and_b32 v{xr+i}, 0x07ffffff, v{xr+i}")
        I(f"v_lshl_add_u32 v{xe+i}, v{xe+i}, 5, v{vEB+i}")
        I("s_mov_b64 exec, vcc")
        I(f"ds_add_rtn_u32 v{xk+i}, v{xa+i}, v{one} offset:{HIST}")
        I("s_mov_b64 exec, -1")
    I("s_branch K2_XT1R")
    L("K2_XT2")
    for i in range(4):
        I(f"ds_read_u16 v{xa+i}, v{xa+i} offset:{HIST + 2}")
    I("s_waitcnt lgkmcnt(0)")
    for i in range(4):
        xmask(i)
        I(f"v_add_u32 v{xa+i}, v{xa+i}, v{xk+i}")
        I("s_mov_b64 exec, vcc")
        I(f"ds_write2st64_b32 v{xa+i}, v{xr+i}, v{xe+i} offset0:{R0//256} offset1:{R1//256}")
        I("s_mov_b64 exec, -1")
    I("s_branch K2_PADS0")
    SB = 448
    t0, t1, t2, t3 = vP, vP+1, vP+2, vP+3
    L("K2_SLOW")
    I(f"s_add_u32 s{sR0}, s{sR0}, {SB}")
    I(f"s_cmp_lt_u32 s{sR0}, s{sCNT}")
    I("s_cbranch_scc1 K2_BATCH")
    L("K2_FIND")
    I(f"s_cmp_lg_u64 s[{sMSK}:{sMSK+1}], 0")
    I("s_cbranch_scc1 K2_GOT")
    I(f"s_add_u32 s{sCI}, s{sCI}, 1")
    I(f"s_cmp_ge_u32 s{sCI}, 4")
    I("s_cbranch_scc1 K2_EPI")
    I(f"s_lshl_b32 s10, s{sCI}, 8")
    I(f"v_lshl_add_u32 v{vT}, v{lane}, 2, s10")
    I(f"ds_read_u16 v{vT}, v{vT} offset:{HDR+2}")
    I("s_waitcnt lgkmcnt(0)")
    I(f"v_cmp_lt_u32 s[{sMSK}:{sMSK+1}], s{sSKIP}, v{vT}")
    I("s_nop 3")
    I("s_branch K2_FIND")
    L("K2_GOT")
    I(f"s_ff1_i32_b64 s10, s[{sMSK}:{sMSK+1}]")
    I(f"s_bitset0_b64 s[{sMSK}:{sMSK+1}], s10")
    I(f"s_lshl_b32 s11, s{sCI}, 6")
    I(f"s_add_u32 s{sCUR}, s10, s11")
    I(f"s_lshl_b32 s10, s{sCUR}, 2")
    I(f"v_mov_b32 v{vT}, s10")
    I(f"ds_read_b32 v{vT}, v{vT} offset:{HDR}")
    I("s_waitcnt lgkmcnt(0)")
    I(f"v_readfirstlane_b32 s10, v{vT}")
    I("s_nop 3")
    I(f"s_lshr_b32 s{sCNT}, s10, 16")
    I(f"s_and_b32 s{sST}, s10, 0xffff")
    I(f"s_mov_b32 s{sR0}, s{sSKIP}")
    L("K2_BATCH")
    I("s_barrier")
    I(f"v_and_b32 v{t0}, 7, v{lane}")
    I(f"v_mul_u32_u24 v{t1}, {LCAP*4}, v{t0}")
    I(f"v_add_u32 v{t1}, {R0}, v{t1}")
    I(f"v_lshlrev_b32 v{t0}, 2, v{t0}")
    I(f"ds_write_b32 v{t0}, v{t1} offset:{CNT}")
    I(f"v_add_u32 v{t0}, s{sR0}, v{tid}")
    I(f"s_mul_i32 s10, s{sB}, {NCH}")
    I(f"s_add_u32 s10, s10, s{sCUR}")
    I(f"s_mul_i32 s10, s10, {CELLB}")
    I(f"s_mul_i32 s11, s{sCUR}, {CH}")
    I(f"s_add_u32 s11, s11, s{sST}")
    I(f"v_cmp_gt_u32 vcc, 31, v{t0}")
    I(f"s_lshl_b32 s{sTMP}, s11, 2")
    I(f"s_add_u32 s{sTMP}, s{sTMP}, {WS_RECS}")
    I(f"v_mov_b32 v{t2}, s{sTMP}")
    I(f"s_add_u32 s{sTMP}, s10, 4")
    I(f"v_mov_b32 v{t1}, s{sTMP}")
    I(f"v_cndmask_b32 v{t1}, v{t2}, v{t1}, vcc")
    I(f"v_lshl_add_u32 v{t1}, v{t0}, 2, v{t1}")
    I(f"s_lshl_b32 s{sTMP}, s11, 1")
    I(f"s_add_u32 s{sTMP}, s{sTMP}, {WS_LEID}")
    I(f"v_mov_b32 v{t2}, s{sTMP}")
    I(f"s_lshr_b32 s10, s{sB}, 1")
    I(f"s_mul_i32 s10, s10, {NCH}")
    I(f"s_add_u32 s10, s10, s{sCUR}")
    I("s_lshl_b32 s10, s10, 1")
    I(f"s_and_b32 s{sTMP}, s{sB}, 1")
    I(f"s_add_u32 s10, s10, s{sTMP}")
    I("s_lshl_b32 s10, s10, 6")
    I(f"s_add_u32 s{sTMP}, s10, {WS_LCELL + 2}")
    I(f"v_mov_b32 v{t3}, s{sTMP}")
    I(f"v_cndmask_b32 v{t3}, v{t2}, v{t3}, vcc")
    I(f"v_lshl_add_u32 v{t3}, v{t0}, 1, v{t3}")
    I(f"s_add_u32 s10, s{sR0}, {SB}")
    I(f"s_min_u32 s10, s10, s{sCNT}")
    I(f"v_cmp_gt_u32 vcc, s10, v{t0}")
    I(f"v_mov_b32 v{t2}, 0x7ffffff0")
    I(f"s_mul_i32 s{sTMP}, s{sCUR}, {CH*32}")
    I(f"v_cndmask_b32 v{t1}, v{t2}, v{t1}, vcc")
    I(f"v_cndmask_b32 v{t3}, v{t2}, v{t3}, vcc")
    I(f"buffer_load_dword v{t1}, v{t1}, s[{sWS}:{sWS+3}], 0 offen")
    I(f"buffer_load_ushort v{t3}, v{t3}, s[{sWS}:{sWS+3}], 0 offen")
    I("s_waitcnt lgkmcnt(0)")
    I("s_barrier")
    I("s_and_saveexec_b64 s[10:11], vcc")
    I("s_waitcnt vmcnt(0)")
    I(f"v_bfe_u32 v{t0}, v{t1}, 20, 10")
    I(f"ds_read_b32 v{t0}, v{t0} offset:{MAP}")
    I(f"v_mov_b32 v{t2}, 4")
    I(f"v_and_b32 v{t1}, 0x07ffffff, v{t1}")
    I(f"v_lshl_add_u32 v{t3}, v{t3}, 5, s{sTMP}")
    I("s_waitcnt lgkmcnt(0)")
    I(f"ds_add_rtn_u32 v{t0}, v{t0}, v{t2} offset:{CNT}")
    I("s_waitcnt lgkmcnt(0)")
    I(f"ds_write2st64_b32 v{t0}, v{t1}, v{t3} offset0:0 offset1:{(R1-R0)//256}")
    I("s_mov_b64 exec, -1")
    I("s_waitcnt lgkmcnt(0)")
    I("s_barrier")
    I(f"s_lshl_b32 s10, s{sW}, 2")
    I(f"v_mov_b32 v{t0}, s10")
    I(f"ds_read_b32 v{t0}, v{t0} offset:{CNT}")
    for i in range(8): I(f"v_mov_b32 v{vT2+i}, 0")
    listaddr(lane, t1, t2)
    I("s_waitcnt lgkmcnt(0)")
    I(f"v_readfirstlane_b32 s{sEND}, v{t0}")
    I("s_nop 3")
    pads(lane, t0, t1, t2)
    L("K2_LAST")
    I("s_branch K2_GO")

def regs_of(tok):
    tok = tok.strip()
    m = re.fullmatch(r"v\[(\d+):(\d+)\]", tok)
    if m: return list(range(int(m.group(1)), int(m.group(2)) + 1))
    m = re.fullmatch(r"v(\d+)", tok)
    if m: return [int(m.group(1))]
    return []
def parse(ins):
    op, _, rest = ins.partition(" ")
    ops = [o.strip().split(" ")[0] for o in rest.split(",")] if rest else []
    if op.startswith("v_mfma"):
        return "mfma", regs_of(ops[0]), regs_of(ops[1]) + regs_of(ops[2]), regs_of(ops[3])
    if op.startswith("v_smfmac"):
        return "mfma", regs_of(ops[0]), regs_of(ops[1]) + regs_of(ops[2]) + regs_of(ops[3]), regs_of(ops[0])
    if op.startswith("v_"):
        k = "trans" if op in ("v_exp_f32", "v_rcp_f32") else "valu"
        return k, regs_of(ops[0]), sum((regs_of(o) for o in ops[1:]), []), []
    if op.startswith("ds_read"):
        return "ds", regs_of(ops[0]), regs_of(ops[1]), []
    if op.startswith("buffer_load"):
        return "vm", [], regs_of(ops[0]) + regs_of(ops[1]), []
    return "other", [], [], []
def check_body(body):
    seq = [b for b in body if not b.endswith(":")]
    for skip_dma in (False, True):
        s2 = []
        sk = False
        for b in body:
            if skip_dma and b.startswith("s_cbranch_scc0 K2_ND"):
                s2.append(b); sk = True; continue
            if b.startswith("K2_ND"): sk = False
            if b.endswith(":") or sk: continue
            s2.append(b)
        seq = s2 * 3
        last = {}
        lastc = {}
        pend = []
        for i, ins in enumerate(seq):
            k, d, s, c = parse(ins)
            m = re.search(r"lgkmcnt\((\d+)\)", ins)
            if m:
                n = int(m.group(1))
                while len(pend) > n: pend.pop(0)
            pr = set(sum(pend, []))
            for r in d + s + c:
                assert r not in pr or i < len(s2), f"pending LDS reg v{r} used by {ins} @{i}"
            for r in s + c + d:
                if r not in last: continue
                pk, pi = last[r]; dist = i - pi - 1
                if pk == "mfma":
                    if k == "mfma" and r in c and r not in s: need = 0
                    elif k == "mfma" and r in d and r not in s: need = 0
                    else: need = 12
                elif pk in ("valu", "trans") and k == "mfma" and r in s + c: need = 2
                elif pk == "trans" and k in ("valu", "mfma", "ds", "vm") and r in s: need = 1
                else: need = 0
                assert dist >= need, f"hazard {pk}->{k} v{r} dist {dist} need {need}: {ins} @{i}"
            if k in ("valu", "trans"):
                for r in d:
                    if r in lastc: assert i - lastc[r] - 1 >= 7, f"srcC WAR {ins}"
            for r in c: lastc[r] = i
            for r in d: last[r] = (k, i)
            if k == "ds":
                pend.append(d); assert len(pend) <= 15

hdr = open("/code/" + NAME + ".s.ref").read().split("\n")
for l in hdr:
    if l.startswith("; Override"): break
    out.append(l)
LL = {"1": f"; @launch kernel=part_kernel grid=(255,1,1) block=(1024,1,1) lds={K1_LDS}",
      "2": f"; @launch kernel=main_kernel grid=(256,1,1) block=(512,1,1) lds={K2_LDS}",
      "x": "; @launch kernel=spin_kernel grid=(1,1,1) block=(64,1,1) lds=0",
      "e": "; @launch kernel=empty_kernel grid=(256,1,1) block=(64,1,1) lds=0"}
SEQ = opt("seq", "12")
for ch in SEQ: out.append(LL[ch])
emit('.amdgcn_target "amdgcn-amd-amdhsa--gfx950"\n.text')
k1()
k2()
KL = [("part_kernel", 72, 100), ("main_kernel", 256, 100)]
if "x" in SEQ:
    def saddr(sp):
        k, i = sp.split(".")
        return WS_TS + (100*16*32 if k == "1" else 0x100000 + (100*8 + int(opt("xw", 0)))*32) + 4*int(i)
    emit(".globl spin_kernel\n.p2align 8\n.type spin_kernel,@function\nspin_kernel:")
    I("s_memrealtime s[8:9]")
    I("s_cmp_lg_u32 s2, 0")
    I("s_cbranch_scc1 SP_END")
    I("s_load_dwordx2 s[4:5], s[0:1], 88")
    I("s_waitcnt lgkmcnt(0)")
    I(f"s_add_u32 s4, s4, {WS_TS}")
    I("s_addc_u32 s5, s5, 0")
    I(f"v_mov_b32 v1, {saddr(opt('a', '1.0')) - WS_TS}")
    I("global_load_dword v2, v1, s[4:5]")
    if opt("b", "now") == "now":
        I("v_mov_b32 v3, s8")
    else:
        I(f"v_mov_b32 v1, {saddr(opt('b', '1.0')) - WS_TS}")
        I("global_load_dword v3, v1, s[4:5]")
    I("s_waitcnt vmcnt(0)")
    I("v_sub_u32 v2, v3, v2")
    I("v_min_u32 v2, 10000, v2")
    I("s_nop 0")
    I("v_readfirstlane_b32 s6, v2")
    I("s_memrealtime s[8:9]")
    I("s_waitcnt lgkmcnt(0)")
    L("SP_L")
    I("s_memrealtime s[10:11]")
    I("s_waitcnt lgkmcnt(0)")
    I("s_sub_u32 s7, s10, s8")
    I("s_cmp_lt_u32 s7, s6")
    I("s_cbranch_scc1 SP_L")
    L("SP_END")
    I("s_endpgm")
    KL.append(("spin_kernel", 8, 16))
if "e" in SEQ:
    emit(".globl empty_kernel\n.p2align 8\n.type empty_kernel,@function\nempty_kernel:\n    s_endpgm")
    KL.append(("empty_kernel", 8, 16))
emit('.section .rodata,"a"')
for name, vg, sg in KL:
    emit(f""".p2align 6
.amdhsa_kernel {name}
  .amdhsa_next_free_vgpr {vg}
  .amdhsa_next_free_sgpr {sg}
  .amdhsa_accum_offset {vg}
  .amdhsa_group_segment_fixed_size 0
  .amdhsa_kernarg_size 96
  .amdhsa_user_sgpr_count 2
  .amdhsa_user_sgpr_kernarg_segment_ptr 1
  .amdhsa_system_sgpr_workgroup_id_x 1
.end_amdhsa_kernel""")
path = sys.argv[1] if len(sys.argv) > 1 else "/code/" + NAME + ".s"
open(path, "w").write("\n".join(out) + "\n")
print("wrote", path, len(out), "lines; K1 lds", K1_LDS, "K2 lds", K2_LDS)
```

```python
import sys, re, math

NAME = "standalone__edge_featured_mpnn_gatedgcn__graph"
OPT = dict(kv.split("=") for kv in sys.argv[2:])
def opt(k, d):
    v = OPT.get(k)
    if v is None: return d
    return type(d)(v)

N, E = 50000, 800000
NCH, CH = 256, 3125
NB, BN = 256, 196
CELLB = 128
RS = 257 * CELLB
WS_CELLS = 0
WS_LCELL = NB * RS
LROW = 160
WS_RECS = 0xD00000
WS_LEID = 0x1100000
WS_EPOCH = 0x1300000
WS_USED = WS_EPOCH + 128
WI_U, WI_B, WI_V, WI_A, WI_C = 0, 8192, 16384, 24576, 32768
RMASK = 0x07c0ffff
LOG2E = 1.4426950408889634
import struct
def f2u(f): return struct.unpack("<I", struct.pack("<f", f))[0]

out = []
def emit(s=""):
    for l in s.strip("\n").split("\n"):
        out.append(l.rstrip())
def I(s): out.append("    " + s)
def L(s): out.append(s + ":")
def C(s): out.append("    ; " + s)

def srd(d, lo, hi, size, add=None):
    if add is None:
        I(f"s_mov_b32 s{d}, s{lo}")
        I(f"s_mov_b32 s{d+1}, s{hi}")
    else:
        I(f"s_add_u32 s{d}, s{lo}, {add}")
        I(f"s_addc_u32 s{d+1}, s{hi}, 0")
    I(f"s_mov_b32 s{d+2}, {size}")
    I(f"s_mov_b32 s{d+3}, 0x20000")

def wave_scan(v, fill=None, half=False):
    def gap():
        if fill and len(fill) >= 2:
            I(fill.pop(0)); I(fill.pop(0))
        else: I("s_nop 1")
    for sh in (1, 2, 4, 8):
        gap()
        I(f"v_add_u32_dpp v{v}, v{v}, v{v} row_shr:{sh} row_mask:0xf bank_mask:0xf bound_ctrl:0")
    gap()
    I(f"v_add_u32_dpp v{v}, v{v}, v{v} row_bcast:15 row_mask:0xa bank_mask:0xf")
    if half: return
    gap()
    I(f"v_add_u32_dpp v{v}, v{v}, v{v} row_bcast:31 row_mask:0xc bank_mask:0xf")

TS = opt("ts", 0)
WS_TS = 0x3000000
SMAP = {1: {0: 0, 'd': 1, 'i': 2, 'w': 3, 2: 4, 5: 5, 6: 6, 7: 7},
        5: {0: 0, 'w': 1, 2: 2, 'a': 3, 'b': 4, 'c': 5, 3: 6, 7: 7},
        6: {0: 0, 'p': 1, 'q': 2, 'd': 3, 'i': 4, 'o': 5, 'k': 6, 7: 7},
        8: {0: 0, 'i': 1, 'w': 2, 1: 3, 2: 4, 3: 5, 7: 7},
        7: {0: 0, 'k': 1, 'w': 2, 1: 3, 's': 4, 2: 5, 3: 6, 7: 7}}
def stamp(i):
    if TS in SMAP:
        i = SMAP[TS].get(i)
        if i is None: return
    elif isinstance(i, str): return
    if TS == 3:
        if i not in (0, 5, 6, 7): return
        I("s_memtime s[98:99]")
        I("s_waitcnt lgkmcnt(0)")
        I(f"s_mov_b32 s{88+{5:1,6:2,0:3,7:4}[i]}, s98")
    if TS:
        I("s_memrealtime s[98:99]" if TS != 2 else "s_memtime s[98:99]")
        I("s_waitcnt lgkmcnt(0)")
        I(f"s_mov_b32 s{88+i}, s98")
def stamp_out(n, wslo, swave, nw, off, v):
    if not TS: return
    I("s_waitcnt vmcnt(0)")
    stamp(7)
    I("s_mov_b64 exec, 1")
    I(f"s_mul_i32 s87, s2, {nw}")
    I(f"s_add_u32 s87, s87, s{swave}")
    I("s_lshl_b32 s87, s87, 5")
    I(f"s_add_u32 s87, s87, {WS_TS + off}")
    I(f"v_mov_b32 v{v}, s87")
    for i in range(n):
        I(f"v_mov_b32 v{v+1}, s{88+i}")
        I(f"global_store_dword v{v}, v{v+1}, s[{wslo}:{wslo+1}] offset:{4*i}")
K1_LD = opt("k1ld", "nt")
def pol(p): return (" " + p.replace("_", " ")) if p else ""

SM1 = opt("sm1", 1)
TAB, ZROW, CNT, FLAG, HIST, MAP, HDR = 0, 2048, 2112, 2176, 2304, 6400, 7424
T1B = 8448
LCAP = 544
LMAX = LCAP - 64
LUT = 8448 + 2304
R0 = LUT + 4096
R1 = R0 + 8 * LCAP * 4
assert R1 % 256 == 0 and R0 % 256 == 0
WL = R1 + 8 * LCAP * 4
STG = WL + 34816
SLOT = 5184
DT = 264
PRIV = 4352
WST = SLOT + PRIV
K2_LDS = STG + 8 * WST
assert K2_LDS <= 163840, K2_LDS

vWB, vWV, vWC, vAT = 0, 32, 64, 72
vACC = 88
vX, vE, vT1, vT2 = 152, 168, 172, 180
vP, vQ, vR = 188, 204, 220
vQD = 236
vR1 = 240
vCP, vCH, vAX, vAE, vC1, vC2, vARX, vART, vARP = 241, 242, 243, 244, 245, 246, 247, 248, 249
vL1 = 250
vARE = 251
vT = 252
DEN = lambda ft: vACC + 32 * ft
NUM = lambda ft: vACC + 32 * ft + 16
def rr(a, n): return f"v[{a}:{a+n-1}]"
def mfma(d, a, b, c=None):
    return f"v_mfma_f32_32x32x16_bf16 {rr(d,16)}, {rr(a,4)}, {rr(b,4)}, " + ("0" if c is None else rr(c, 16))

K2_XP = opt("k2x", "")
K2_EP = opt("k2e", "")
K2_CP = opt("k2c", "")
K2_OP = opt("k2o", "sc1")

sW, sB = 3, 12
sX, sEP, sWS, sOUT = 16, 20, 24, 28
sCEL, sWI = 32, 36
sM = 40
sT, sN, sSTG, s128, sL, sSKIP, sMORE = 72, 73, 74, 75, 76, 77, 78
sCI, sCUR, sR0, sCNT, sST, sMSK = 79, 80, 81, 82, 83, 84
sTMP = 86
sWIN = 96

def dma_tile(par):
    r = []
    for i in range(4):
        r.append(f"s_add_u32 m0, s{sSTG}, {par*SLOT + i*1040}")
        r.append(f"v_mad_u32_u16 v{vQD+i}, v{vQD+i}, s{s128}, v{vCP}")
        r.append(f"buffer_load_dwordx4 v{vQD+i}, s[{sX}:{sX+3}], 0 offen{pol(K2_XP)} lds")
    r.append(f"s_add_u32 m0, s{sSTG}, {par*SLOT + 4160}")
    r.append(f"v_add_u32 v{vR1}, v{vR1}, v{vCH}")
    r.append(f"buffer_load_dwordx4 v{vR1}, s[{sEP}:{sEP+3}], 0 offen{pol(K2_EP)} lds")
    return r

def valu_stream(G, H):
    s = []
    ex = [(f"v_exp_f32 v{G+i}, v{G+i}", 8) for i in range(16)]
    ad = [(f"v_add_f32 v{G+i}, 1.0, v{G+i}", 4) for i in range(16)]
    rc = [(f"v_rcp_f32 v{G+i}, v{G+i}", 8) for i in range(16)]
    mu = [(f"v_mul_f32 v{H+i}, v{G+i}, v{H+i}", 4) for i in range(16)]
    ce = [(f"v_cvt_pk_bf16_f32 v{G+i}, v{G+2*i}, v{G+2*i+1}", 4) for i in range(8)]
    cm = [(f"v_cvt_pk_bf16_f32 v{H+i}, v{H+2*i}, v{H+2*i+1}", 4) for i in range(8)]
    PK = opt("pk", 0)
    pa = [(f"v_pk_add_f32 v[{G+2*i}:{G+2*i+1}], v[{G+2*i}:{G+2*i+1}], 1.0 op_sel_hi:[1,0]", 4) for i in range(8)]
    pm = [(f"v_pk_mul_f32 v[{H+2*i}:{H+2*i+1}], v[{G+2*i}:{G+2*i+1}], v[{H+2*i}:{H+2*i+1}]", 4) for i in range(8)]
    if PK & 2:
        s += ex[:8] + ex[8:10] + pa[:4] + ex[10:] + rc[:2] + pa[4:] + rc[2:]
    elif PK & 4:
        s += ex + [("s_nop 0", 0)] + pa + rc
    else:
        for i in range(16 + 4):
            if i < 16: s.append(ex[i])
            if 0 <= i - 2 < 16: s.append(ad[i-2])
            if 0 <= i - 4 < 16: s.append(rc[i-4])
    s += pm if PK & 1 else mu
    s += cm + ce
    return s

def interleave(valu, mf, extra, pos, spacing=opt('sp', 28)):
    res = []
    cum = 0; k = 0
    for ins, c in valu:
        while k < len(mf) and cum >= pos[k] * spacing:
            res.extend(extra.get(('b', k), []))
            res.append(mf[k])
            res.extend(extra.get(('a', k), []))
            k += 1
        res.append(ins); cum += c
    assert k == len(mf)
    return res

def g_mfmas(D, ft):
    m = [mfma(D, vE, vWC + 4*ft)]
    if SM1:
        m += [mfma(D, vX + 4*q, vWB + 16*ft + 4*q, D) for q in range(4)]
        m += [f"v_smfmac_f32_32x32x32_bf16 {rr(D,16)}, {rr(vT1,4)}, {rr(vAT+8*ft,8)}, v{vT1+4}"]
        return m
    m += [mfma(D, vT1 + 4*s, vAT + 8*ft + 4*s, D) for s in range(2)]
    m += [mfma(D, vX + 4*q, vWB + 16*ft + 4*q, D) for q in range(4)]
    return m
def h_mfmas(D, ft):
    return [mfma(D, vX + 4*q, vWV + 16*ft + 4*q, None if q == 0 else D) for q in range(4)]
def s_mfmas(acc, src, sp, par):
    if sp: return [f"v_smfmac_f32_32x32x32_bf16 {rr(acc,16)}, {rr(vT2,4)}, {rr(src,8)}, v{vT2+4+par}"]
    return [mfma(acc, vT2 + 4*s, src + 4*s, acc) for s in range(2)]
def t1_reads():
    return [f"ds_read_b128 {rr(vT1,4)}, v{vL1} offset:{T1B}", f"ds_read_b32 v{vT1+4}, v{vL1} offset:{T1B+16}"]

def layout(sp):
    n = 1 if sp else 2
    H0, DE, E = n, n + 4, 2*n + 4
    last = E + 5
    pos = [k * 12.0 / (last - 1) for k in range(last)] + [14]
    if sp and opt("pos", ""): pos = [float(x) / 28 for x in opt("pos", "").split("_")]
    elif opt("pk", 0): pos = [p * (448 - 32*bin(opt("pk", 0)).count("1") - 56) / 392. for p in pos]
    return H0, DE + n - 1, E, last, pos

def phaseA(par, sp):
    o = par * 128
    H0, DL_, E, last, pos = layout(sp)
    mf = s_mfmas(NUM(1), vQ, sp, par^1) + h_mfmas(vQ, 0) + s_mfmas(DEN(1), vR, sp, par^1) + g_mfmas(vR, 1)
    ex = {}
    lab = f"ds_read_u16 v{vL1}, v{vARP} offset:{o + 128 + 2}"
    if sp:
        ex[('a', 0)] = [f"ds_read_b32 v{vT2+4+par}, v{vART} offset:{par*DT}", lab]
        ex[('a', H0+3)] = ["s_waitcnt lgkmcnt(0)", f"v_lshrrev_b32 v{vQD}, 16, v{vT2+4+par}", f"v_add_u32 v{vL1}, v{vL1}, v{vC1}"]
        ex[('a', DL_)] = [f"ds_read_b128 {rr(vT2,4)}, v{vQD} offset:{LUT}"]
    else:
        ex[('a', 0)] = [f"ds_read_u16 v{vQD+u}, v{vART} offset:{o + 8*u}" for u in range(4)] + [lab]
        ex[('a', H0+3)] = ["s_waitcnt lgkmcnt(0)"] + [f"v_add_u32 v{vQD+u}, v{vQD+u}, v{vC2}" for u in range(4)] + [f"v_add_u32 v{vL1}, v{vL1}, v{vC1}"]
        ex[('a', DL_)] = [f"ds_read_b64_tr_b16 v[{vT2+2*u}:{vT2+2*u+1}], v{vQD+u}" for u in range(4)]
    ex[('a', last)] = t1_reads() + [f"ds_read_b128 {rr(vQD,4)}, v{vARX} offset:{o + 2*128}",
                                    f"ds_read_b32 v{vR1}, v{vARE} offset:{o + 2*128}",
                                    f"s_add_u32 s{sT}, s{sT}, 1"]
    return interleave(valu_stream(vP, vQ), mf, ex, pos)

def phaseB(par, sp):
    H0, DL_, E, last, pos = layout(sp)
    mf = s_mfmas(NUM(0), vQ, sp, par) + h_mfmas(vQ, 1) + s_mfmas(DEN(0), vP, sp, par) + g_mfmas(vP, 0)
    ex = {}
    ex[('b', 0)] = ["s_waitcnt lgkmcnt(4)"]
    ex[('b', H0)] = ["s_waitcnt vmcnt(0)", f"ds_read_b128 {rr(vE,4)}, v{vAE}"]
    for q in range(4):
        ex[('a', H0+q)] = [f"ds_read_b128 {rr(vX+4*q,4)}, v{vAX} offset:{16*q}"]
    ex[('b', E)] = ["s_waitcnt lgkmcnt(4)"]
    for q in range(4): ex[('b', E+1+q)] = [f"s_waitcnt lgkmcnt({3-q})"]
    ex[('a', E+4)] = [f"s_cmp_lt_u32 s{sT}, s{sN}",
                      f"s_cbranch_scc0 K2_ND_{par}{sp}"] + dma_tile(0) + [f"K2_ND_{par}{sp}:"]
    return interleave(valu_stream(vR, vQ), mf, ex, pos)

sF0, sF1, sEND = 13, 14, 15
sXT = 97
sTH = 4
PRIO = opt("prio", 1)

def listaddr(lane, t0, t3):
    I(f"v_bfe_u32 v{t0}, v{lane}, 3, 2")
    I(f"v_lshl_add_u32 v{vARX}, v{t0}, 5, s{sL}")
    I(f"v_lshrrev_b32 v{t0}, 5, v{lane}")
    I(f"v_lshl_add_u32 v{vARX}, v{t0}, 4, v{vARX}")
    I(f"v_and_b32 v{t0}, 3, v{lane}")
    I(f"v_and_b32 v{t3}, 28, v{lane}")
    I(f"v_lshl_add_u32 v{t0}, v{t0}, 5, v{t3}")
    I(f"v_add_u32 v{vARP}, s{sL}, v{t0}")
    I(f"v_lshrrev_b32 v{t3}, 1, v{lane}")
    I(f"v_lshl_add_u32 v{vARE}, v{t3}, 2, s{sL}")
    I(f"v_add_u32 v{vARE}, {R1-R0}, v{vARE}")

vOWN = vT + 1
def pads(lane, t0, t1, t2):
    W2 = f"offset0:0 offset1:{(R1-R0)//256}"
    I(f"v_mov_b32 v{t1}, 0x08000000")
    I(f"v_mov_b32 v{t2}, 0")
    I(f"v_lshl_add_u32 v{t0}, v{lane}, 2, s{sEND}")
    I(f"s_sub_u32 s{sN}, s{sEND}, s{sL}")
    I(f"ds_write2st64_b32 v{t0}, v{t1}, v{t2} {W2}")
    I(f"s_add_u32 s{sN}, s{sN}, 127")
    I(f"s_and_b32 s10, s{sN}, -128")
    I(f"s_lshr_b32 s{sN}, s{sN}, 7")
    I(f"v_add_u32 v{t0}, s10, v{vARP}")
    I(f"ds_write2st64_b32 v{t0}, v{vOWN}, v{t2} {W2}")

KN = NAME + "_kernel"
P_HIST, P_HDR = MAP, R0
P_IIMG = STG
P_CIMG = P_IIMG + 128 * LROW
assert P_CIMG + 256 * LROW <= K2_LDS and P_HDR + 1024 <= WL
sSA, sSB, sEPN, sSPIN = 36, 37, 100, 101
def k2():
    emit(f"""
.globl {KN}
.p2align 8
.type {KN},@function
{KN}:""")
    I("s_cmp_ge_u32 s2, 256")
    I("s_cbranch_scc1 K2_END")
    stamp(0)
    KA = sM
    I(f"s_load_dwordx4 s[{KA+4}:{KA+7}], s[0:1], 16")
    I(f"s_load_dwordx2 s[8:9], s[0:1], 88")
    I(f"s_load_dwordx4 s[{KA}:{KA+3}], s[0:1], 0")
    I(f"s_load_dwordx8 s[{KA+8}:{KA+15}], s[0:1], 32")
    I(f"s_load_dwordx4 s[{KA+16}:{KA+19}], s[0:1], 64")
    tid, lane = 255, 254
    CPF = opt("cpf", 192)
    if CPF:
        I(f"s_getpc_b64 s[{sTMP}:{sTMP+1}]")
        L("K2_PC")
        I(f"v_lshlrev_b32 v{vT}, 7, v0")
        I(f"v_min_u32 v{vT}, K2_LAST-K2_PC, v{vT}")
        I(f"v_cmp_gt_u32 vcc, {CPF}, v0")
        I("s_cbranch_vccz K2_NOCPF")
        I(f"global_load_dword v{vT+1}, v{vT}, s[{sTMP}:{sTMP+1}]")
        L("K2_NOCPF")
    vC = vACC
    vA = vACC + 16
    vLE = vACC + 32
    hh = vACC + 40
    vRK = vR
    vH = vQ
    vMIN, vMAX = vQ + 8, vQ + 12
    u = lambda i: vP + i
    k4, ecb, hda, one, l16 = vE, vE + 1, vE + 2, vE + 3, vT1
    pD, pS, pH, pK, pA, pB, pI, pW = 8, 16, 24, 32, 40, 48, 56, 64
    I(f"v_mov_b32 v{tid}, v0")
    I(f"v_lshrrev_b32 v{u(0)}, 6, v0")
    I(f"v_and_b32 v{lane}, 63, v0")
    I(f"v_readfirstlane_b32 s7, v{u(0)}")
    I("s_and_b32 s10, s2, 7")
    I("s_lshr_b32 s11, s2, 3")
    I("s_lshl_b32 s10, s10, 5")
    I(f"s_add_u32 s{sB}, s10, s11")
    I(f"s_mul_i32 s13, s{sB}, {CH*4}")
    I(f"v_lshlrev_b32 v{u(1)}, 4, v0")
    I(f"v_lshlrev_b32 v1, 3, v0")
    I(f"v_lshlrev_b32 v2, 2, v0")
    I(f"v_mov_b32 v3, 0")
    I(f"v_and_b32 v4, 0x3fc, v2")
    I(f"ds_write_b32 v4, v3 offset:{P_HIST}")
    ASYM = opt("asym", 16)
    I(f"s_and_b32 s10, s7, 3")
    I(f"s_lshr_b32 s{sW}, s7, 2")
    I(f"s_lshl1_add_u32 s{sW}, s10, s{sW}")
    I(f"s_xor_b32 s{sW}, s{sW}, 1")
    I(f"s_movk_i32 s14, 8192")
    I(f"s_movk_i32 s15, 12288")
    I("s_waitcnt lgkmcnt(0)")
    stamp('p')
    vq = []
    def younger(tag): return len(vq) - 1 - max(i for i, t in enumerate(vq) if t == tag)
    q0, q1 = 64, 68
    srd(q0, KA+6, KA+7, CH*4, "s13")
    srd(q1, KA+4, KA+5, CH*4, "s13")
    for r_, q_ in ((pD, q0), (pS, q1)):
        I(f"buffer_load_dwordx4 {rr(r_,4)}, v{u(1)}, s[{q_}:{q_+3}], 0 offen{pol(K1_LD)}")
        I(f"buffer_load_dwordx2 {rr(r_+4,2)}, v1, s[{q_}:{q_+3}], s14 offen{pol(K1_LD)}")
        I(f"buffer_load_dword v{r_+6}, v2, s[{q_}:{q_+3}], s15 offen{pol(K1_LD)}")
        vq += ["D" if r_ == pD else "S"] * 3
    I(f"s_add_u32 s10, s8, {WS_EPOCH}")
    I("s_addc_u32 s11, s9, 0")
    I(f"s_load_dword s{sEPN}, s[10:11], 0")
    I("s_barrier")
    I(f"v_lshrrev_b32 v1, 3, v0")
    I(f"v_lshlrev_b32 v{hda}, 2, v1")
    I(f"v_and_b32 v{u(9)}, 7, v0")
    I(f"v_and_b32 v5, 16, v0")
    I(f"v_lshlrev_b32 v5, 1, v5")
    I(f"v_xor_b32 v5, v5, v{u(1)}")
    WLPOS = len(out)
    mark = len(out)
    srd(sX, KA, KA+1, N*128)
    I(f"s_mul_i32 s11, s{sW}, 49")
    I("s_sub_i32 s11, s11, 7")
    I("s_ashr_i32 s11, s11, 1")
    I(f"s_max_i32 s{sWIN}, s11, 0")
    I(f"s_mul_i32 s11, s{sB}, {BN}")
    I(f"s_add_u32 s{sTMP}, s11, s{sWIN}")
    I(f"v_bfe_u32 v{u(3)}, v{lane}, 3, 2")
    I(f"v_lshrrev_b32 v{u(5)}, 5, v{lane}")
    I(f"v_bfe_u32 v{u(6)}, v{lane}, 4, 1")
    I(f"v_lshlrev_b32 v{u(7)}, 4, v{u(9)}")
    I(f"v_lshlrev_b32 v{u(8)}, 6, v{u(6)}")
    I(f"v_xor_b32 v{vCP}, v{u(7)}, v{u(8)}")
    I(f"v_lshl_add_u32 v{u(6)}, v{u(5)}, 4, v{u(3)}")
    I(f"v_subrev_u32 v{u(6)}, s{sWIN}, v{u(6)}")
    for i in range(4):
        I(f"v_add_u32 v{vX+i}, {8*(i&1) + 4*(i>>1)}, v{u(6)}")
        I(f"v_and_b32 v{vX+i}, 31, v{vX+i}")
        I(f"v_add_u32 v{vX+i}, s{sTMP}, v{vX+i}")
        I(f"v_lshl_add_u32 v{vX+i}, v{vX+i}, 7, v{vCP}")
    def wloads():
        srd(q0, KA+10, KA+11, 8192)
        I(f"buffer_load_dwordx4 {rr(pW,4)}, v5, s[{q0}:{q0+3}], 0 offen"); vq.append("B")
        srd(q1, KA+12, KA+13, 2048)
        I(f"buffer_load_dwordx4 {rr(pW+4,4)}, v5, s[{q1}:{q1+3}], 0 offen"); vq.append("B")
        I(f"s_lshl_b32 s10, s7, 10")
        for kp, off in ((KA+8, WI_A), (KA+16, WI_V), (KA+14, WI_U)):
            I(f"s_mov_b32 s{q0}, s{kp}")
            I(f"s_mov_b32 s{q0+1}, s{kp+1}")
            I(f"s_add_u32 m0, s10, {WL + off}")
            I("s_nop 0")
            I(f"buffer_load_dwordx4 v5, s[{q0}:{q0+3}], 0 offen lds"); vq.append("W")
    def xloads():
        for i in range(4):
            I(f"s_add_u32 m0, s{sSTG}, {SLOT + i*1040}")
            I("s_nop 0")
            I(f"buffer_load_dwordx4 v{vX+i}, s[{sX}:{sX+3}], 0 offen lds"); vq.append("X")
    srd(sEP, KA+2, KA+3, E*32)
    srd(sOUT, KA+18, KA+19, N*128)
    srd(sWS, 8, 9, WS_USED)
    I(f"v_lshlrev_b32 v{u(15)}, 5, v{hda}")
    I(f"v_lshl_add_u32 v{u(15)}, v{u(9)}, 3, v{u(15)}")
    I(f"v_lshrrev_b32 v{u(6)}, 5, v{tid}")
    I(f"v_and_b32 v{u(7)}, 15, v{tid}")
    I(f"v_cmp_eq_u32 vcc, v{u(6)}, v{u(7)}")
    I(f"v_and_b32 v{u(6)}, 16, v{tid}")
    I(f"v_mov_b32 v{u(7)}, 0x3f80")
    I(f"v_lshlrev_b32 v{u(7)}, v{u(6)}, v{u(7)}")
    I(f"v_cndmask_b32 v{u(7)}, 0, v{u(7)}, vcc")
    I(f"v_lshlrev_b32 v{u(6)}, 2, v{tid}")
    I(f"v_mov_b32 v{u(8)}, 0")
    I(f"ds_write_b32 v{u(6)}, v{u(7)}")
    if SM1:
        I(f"v_bfe_u32 v{u(7)}, v{tid}, 3, 1")
        I(f"v_and_b32 v{u(13)}, 7, v{tid}")
        I(f"v_lshl_add_u32 v{u(7)}, v{u(7)}, 2, v{u(13)}")
        I(f"v_lshrrev_b32 v{u(12)}, 6, v{tid}")
        I(f"v_cmp_eq_u32 vcc, v{u(7)}, v{u(12)}")
        I(f"v_bfe_u32 v{u(12)}, v{tid}, 4, 2")
        I(f"v_mov_b32 v{u(7)}, 0x3f80")
        I(f"v_cndmask_b32 v{u(7)}, 0, v{u(7)}, vcc")
        I(f"v_cmp_lt_u32 vcc, 3, v{u(13)}")
        I(f"v_mul_u32_u24 v{u(12)}, 0x5555, v{u(12)}")
        I(f"v_and_b32 v{u(13)}, 60, v{u(6)}")
        I(f"v_cndmask_b32 v{u(7)}, v{u(7)}, v{u(12)}, vcc")
        I(f"ds_write_b32 v{u(6)}, v{u(7)} offset:{T1B}")
        I(f"ds_write_b32 v{u(13)}, v{u(8)} offset:{T1B + 2048}")
    I(f"ds_write_b32 v{u(6)}, v{u(8)} offset:{ZROW}")
    I(f"ds_write2st64_b32 v{u(6)}, v{u(8)}, v{u(8)} offset0:{HIST//256} offset1:{HIST//256 + 8}")
    I(f"s_movk_i32 s{s128}, 128")
    I(f"s_mul_i32 s{sSTG}, s{sW}, {WST}")
    I(f"s_add_u32 s{sSTG}, s{sSTG}, {STG}")
    I(f"s_movk_i32 s{sSKIP}, 39")
    I(f"s_mov_b32 s{sXT}, 0")
    I(f"v_bfe_u32 v{u(6)}, v{lane}, 4, 1")
    I(f"v_and_b32 v{vCH}, 1, v{lane}")
    I(f"v_lshlrev_b32 v{vCH}, 4, v{vCH}")
    I(f"v_lshlrev_b32 v{vC1}, 5, v{u(5)}")
    I(f"v_and_b32 v{u(7)}, 3, v{lane}")
    I(f"v_lshlrev_b32 v{u(7)}, 3, v{u(7)}")
    I(f"v_lshl_add_u32 v{vC2}, v{u(6)}, 5, v{u(7)}")
    I(f"v_bfe_u32 v{u(8)}, v{lane}, 2, 2")
    I(f"v_mul_u32_u24 v{u(8)}, 1040, v{u(8)}")
    I(f"v_lshl_add_u32 v{u(8)}, v{u(6)}, 9, v{u(8)}")
    I(f"v_lshl_add_u32 v{u(8)}, v{u(7)}, 4, v{u(8)}")
    I(f"v_bfe_u32 v{u(6)}, v{lane}, 1, 1")
    I(f"v_xor_b32 v{u(6)}, v{u(6)}, v{u(5)}")
    I(f"v_lshl_add_u32 v{u(8)}, v{u(6)}, 6, v{u(8)}")
    I(f"v_add_u32 v{vAX}, s{sSTG}, v{u(8)}")
    I(f"v_bfe_u32 v{u(6)}, v{lane}, 2, 3")
    I(f"v_add_u32 v{u(6)}, v{u(6)}, v{u(7)}")
    I(f"v_lshl_add_u32 v{u(6)}, v{u(6)}, 1, v{u(5)}")
    I(f"v_lshl_add_u32 v{vAE}, v{u(6)}, 4, s{sSTG}")
    I(f"v_add_u32 v{vAE}, 4160, v{vAE}")
    I(f"s_mul_i32 s{sL}, s{sW}, {LCAP*4}")
    I(f"s_add_u32 s{sL}, s{sL}, {R0}")
    listaddr(lane, u(6), u(7))
    I(f"v_subrev_u32 v{u(14)}, s{sWIN}, v{lane}")
    I(f"v_and_b32 v{u(14)}, 31, v{u(14)}")
    I(f"v_add_u32 v{u(14)}, s{sTMP}, v{u(14)}")
    I(f"v_or_b32 v{u(14)}, 0x08000000, v{u(14)}")
    I(f"v_and_b32 v{u(6)}, 1, v{tid}")
    I(f"v_lshl_add_u32 v{u(6)}, v{u(6)}, 2, 1")
    I(f"v_lshrrev_b32 v{u(6)}, v{u(6)}, v{tid}")
    for d in range(2):
        I(f"v_bfe_u32 v{u(12)+d}, v{u(6)}, {2*d}, 2")
        I(f"v_lshl_or_b32 v{u(12)+d}, v{u(12)+d}, 15, v{u(12)+d}")
        I(f"v_and_b32 v{u(12)+d}, 0x10001, v{u(12)+d}")
        I(f"v_mul_u32_u24 v{u(12)+d}, 0x3f80, v{u(12)+d}")
    I(f"v_lshlrev_b32 v{u(6)}, 3, v{tid}")
    I(f"ds_write_b64 v{u(6)}, v[{u(12)}:{u(13)}] offset:{LUT}")
    cb0, cb1, cba = vT1 + 5, vT1 + 6, vT1 + 7
    def dconst(t0, t1):
        I(f"v_and_b32 v{t0}, 1, v{lane}")
        I(f"v_and_b32 v{t1}, 2, v{lane}")
        I(f"v_lshl_add_u32 v{t0}, v{t0}, 2, v{t1}")
        I(f"v_mov_b32 v{t1}, {1 << 20}")
        I(f"v_lshlrev_b32 v{cb0}, v{t0}, v{t1}")
        I(f"v_lshlrev_b32 v{t0}, 1, v{t0}")
        I(f"v_bfe_u32 v{t1}, v{lane}, 3, 2")
        I(f"v_lshlrev_b32 v{t1}, v{t0}, v{t1}")
        I(f"v_lshlrev_b32 v{cb1}, 1, v{cb0}")
        I(f"v_lshl_or_b32 v{cb1}, v{t1}, 2, v{cb1}")
        I(f"v_or_b32 v{cb0}, v{cb0}, v{t1}")
        I(f"v_bfe_u32 v{t0}, v{lane}, 2, 1")
        I(f"v_lshrrev_b32 v{t1}, 5, v{lane}")
        I(f"v_lshl_add_u32 v{t0}, v{t1}, 1, v{t0}")
        I(f"v_mul_u32_u24 v{cba}, {DT//2}, v{t0}")
        I(f"v_add_u32 v{cba}, s{sSTG}, v{cba}")
    dconst(u(6), u(7))
    lo0, hi0, lo1, hi1 = sT, sN, sMSK, sMSK + 1
    I(f"s_mul_i32 s10, s{sW}, 49")
    I(f"s_sub_i32 s{lo0}, s10, 7")
    I(f"s_ashr_i32 s{lo0}, s{lo0}, 1")
    I(f"s_add_i32 s{hi0}, s10, 8")
    I(f"s_ashr_i32 s{hi0}, s{hi0}, 1")
    I(f"s_add_i32 s{lo1}, s10, 42")
    I(f"s_ashr_i32 s{lo1}, s{lo1}, 1")
    I(f"s_add_i32 s{hi1}, s{lo0}, 32")
    I(f"s_cmp_eq_u32 s{sW}, 7")
    I(f"s_cselect_b32 s{lo1}, {BN}, s{lo1}")
    I(f"s_cselect_b32 s{hi1}, {BN}, s{hi1}")
    I(f"v_lshlrev_b32 v{k4}, 2, v{u(9)}")
    vEB = vQ + 4
    I(f"v_mul_u32_u24 v{vEB}, {CH*8}, v{hda}")
    for i in range(1, 4):
        I(f"v_add_u32 v{vEB+i}, {64*i*CH*32}, v{vEB}")
    I(f"v_mov_b32 v{one}, 4")
    I(f"v_and_b32 v{u(11)}, 31, v{lane}")
    I(f"v_add_u32 v{u(11)}, s{sWIN}, v{u(11)}")
    I(f"v_lshlrev_b32 v{u(12)}, 2, v{u(11)}")
    I(f"v_lshl_add_u32 v{u(12)}, v{u(5)}, 11, v{u(12)}")
    for i in range(4): I(f"v_mov_b64 v[{vT2+2*i}:{vT2+2*i+1}], 0")
    I(f"s_lshl_b32 s{sEND}, s{sW}, 2")
    I(f"v_mov_b32 v{vMIN}, s{sEND}")
    I(f"v_lshlrev_b32 v{vMIN+1}, 2, v{u(11)}")
    static = out[mark:]; del out[mark:]
    WLP = opt("wl", 0)
    if WLP == 0: wloads()
    I(f"v_lshlrev_b32 v{l16}, 4, v{lane}")
    SP = opt("sp0", 1)
    if SP: out.extend(static)
    c1, c2, c3, c4, c5 = 60, 61, 62, 63, 5
    pm, pf = 78, 80
    I(f"s_mov_b32 s{c1}, 85599")
    I(f"s_mov_b32 s{c2}, {-BN & 0xffffffff}")
    I(f"s_movk_i32 s{c3}, 2048")
    I(f"s_mov_b32 s{c4}, 85888")
    I(f"s_mov_b32 s{c5}, {opt('phm', 3) << 30:#x}")
    I("v_mov_b32 v7, 0x10000")
    for i in range(4): I(f"v_add_u32 v{pI+i}, {i}, v2")
    I(f"v_lshl_add_u32 v{pI+4}, v{tid}, 1, s{c3}")
    I(f"v_add_u32 v{pI+5}, 1, v{pI+4}")
    I(f"v_add_u32 v{pI+6}, 3072, v{tid}")
    I(f"v_cmp_gt_u32 s[{pm}:{pm+1}], {CH - 3072}, v{tid}")
    I(f"s_movk_i32 s10, {LROW}")
    I(f"s_mov_b32 s11, {RS}")
    I(f"v_cmp_eq_u32 s[{pf}:{pf+1}], 0, v{u(9)}")
    I(f"v_lshlrev_b32 v3, 4, v{u(9)}")
    I(f"v_mad_u32_u24 v4, v1, s11, v3")
    I(f"v_mad_u32_u24 v3, v1, s10, v3")
    I(f"v_add_u32 v3, {P_IIMG}, v3")
    I(f"v_and_b32 v6, 4, v{tid}")
    I(f"v_lshl_add_u32 v6, v6, 2, v3")
    X0 = 20 * 2048
    sSO = sCI
    def consumer_setup():
        I(f"s_mul_i32 s10, s{sB}, {RS}")
        srd(sCEL, 8, 9, NCH*CELLB, "s10")
        for k in (1, 2, 3):
            I(f"s_movk_i32 s{sSO+k-1}, {64*CELLB*k}")
        I(f"s_lshr_b32 s6, s{sB}, 1")
        I(f"s_mul_i32 s6, s6, {RS}")
        I(f"s_and_b32 s5, s{sB}, 1")
        I(f"s_lshl_b32 s5, s5, 6")
        I(f"s_add_u32 s6, s6, s5")
        I(f"s_add_u32 s6, s6, {WS_LCELL}")
    def cload(i):
        so = "0" if i == 0 else f"s{sSO+i-1}"
        I(f"buffer_load_dwordx4 {rr(vC+4*i,4)}, v{u(1)}, s[{sCEL}:{sCEL+3}], {so} offen sc1")
    def lloads():
        for i in range(4):
            so = "0" if i == 0 else f"s{sSO+i-1}"
            I(f"buffer_load_dwordx2 {rr(vLE+2*i,2)}, v{u(15)}, s[{sCEL}:{sCEL+3}], {so} offen sc1")
    def cloads():
        WST = opt("wst", -1)
        if WST >= 0: I(f"s_waitcnt vmcnt({WST})")
        stamp('A')
        if opt("dly", 0): I(f"s_sleep {opt('dly', 0)}")
        stamp('w')
        for i in range(4): cload(i); vq.append("C")
    def prod(idx):
        n = len(idx)
        for i in idx: I(f"v_mul_u32_u24 v{pB+i}, s{c1}, v{pD+i}")
        for i in idx: I(f"v_lshrrev_b32 v{pB+i}, 24, v{pB+i}")
        for i in idx:
            I(f"v_lshl_add_u32 v{pH+i}, v{pB+i}, 2, s{c3}")
            I(f"ds_add_rtn_u32 v{pK+i}, v{pH+i}, v7 offset:{P_HIST - 2048}")
        I(f"s_waitcnt vmcnt({younger('S')})")
        for i in idx:
            I(f"v_mad_i32_i24 v{pD+i}, v{pB+i}, s{c2}, v{pD+i}")
            I(f"v_mul_u32_u24 v15, s{c4}, v{pS+i}")
            I(f"v_lshl_or_b32 v{pS+i}, v{pD+i}, 22, v{pS+i}")
            I(f"v_and_or_b32 v{pS+i}, v15, s{c5}, v{pS+i}")
        for j, i in enumerate(idx):
            I(f"s_waitcnt lgkmcnt({n - 1 + j})")
            I(f"v_lshrrev_b32 v{pK+i}, 15, v{pK+i}")
            I(f"v_min_u32 v{pA+i}, 62, v{pK+i}")
            I(f"v_mad_u32_u24 v{pA+i}, v{pH+i}, 20, v{pA+i}")
            I(f"v_lshlrev_b32 v{pB+i}, 1, v{pA+i}")
            I(f"ds_write_b16 v{pA+i}, v{pI+i} offset:{P_IIMG + 2 - X0}")
            I(f"ds_write_b32 v{pB+i}, v{pS+i} offset:{P_CIMG + 4 - 2*X0}")
    stamp('q')
    I(f"s_waitcnt vmcnt({younger('D')})")
    stamp('d')
    if WLP == 1: wloads()
    prod(range(6))
    I(f"s_cmp_lg_u32 s7, 0")
    I("s_cbranch_scc1 K1_NO7")
    I(f"s_mov_b64 exec, s[{pm}:{pm+1}]")
    I("s_waitcnt lgkmcnt(0)")
    prod([6])
    I("s_mov_b64 exec, -1")
    L("K1_NO7")
    I(f"s_lshl_b32 s15, s{sB}, 7")
    sST_ = sCEL
    srd(sST_, 8, 9, 383*RS + CELLB, "s15")
    I(f"v_mov_b32 v15, 0xf0000")
    I(f"v_mov_b32 v23, 0xf000f000")
    I("s_waitcnt lgkmcnt(0)")
    I(f"s_add_u32 s{sEPN}, s{sEPN}, 1")
    I(f"s_and_b32 s10, s{sEPN}, 15")
    I(f"s_bfe_u32 s11, s{sEPN}, 0x40004")
    I(f"s_mul_i32 s{sSA}, s10, 0x11111111")
    I(f"s_mul_i32 s{sSB}, s11, 0x11111111")
    I(f"s_xor_b32 s{sSA}, s{sSA}, 0xf0000000")
    I(f"s_xor_b32 s{sSB}, s{sSB}, 0xf0000000")
    I(f"s_mov_b32 s{sSPIN}, {opt('spin', 200000)}")
    I("s_barrier")
    stamp('i')
    oC, oI, oH, oA = vACC, vACC + 48, vACC + 24, vACC + 28
    I(f"ds_read_b128 {rr(oA,4)}, v{l16} offset:{P_HIST}")
    for i in range(4):
        I(f"ds_read_b32 v{oH+i}, v{hda} offset:{P_HIST + 256*i}")
        I(f"ds_read_b128 {rr(oC+4*i,4)}, v3 offset:{128*LROW + 64*LROW*i}")
    for i in range(2):
        I(f"ds_read_b128 {rr(oI+4*i,4)}, v6 offset:{64*LROW*i}")
    I("s_waitcnt lgkmcnt(10)")
    I(f"v_max3_u32 v1, v{oA}, v{oA+1}, v{oA+2}")
    I(f"v_max_u32 v1, v1, v{oA+3}")
    I(f"v_cmp_lt_u32 vcc, {31 << 16}, v1")
    I("s_mov_b32 s10, 0")
    I("s_cbranch_vccnz K1_OVF")
    L("K1_OUT")
    K1_ST = opt("k1st", "sc1")
    for i in range(4):
        r = oC + 4*i
        I(f"s_waitcnt lgkmcnt({8 - 2*i})")
        I(f"v_cndmask_b32 v{r}, v{r}, v{oH+i}, s[{pf}:{pf+1}]")
        I(f"v_bitop3_b32 v{r+1}, v{r+1}, v15, s{sSA} bitop3:0xb8")
        I(f"v_bitop3_b32 v{r+2}, v{r+2}, v15, s{sSA} bitop3:0x74")
        I(f"v_bitop3_b32 v{r+3}, v{r+3}, v15, s{sSB} bitop3:0xb8")
        I(f"buffer_store_dwordx4 {rr(r,4)}, v4, s[{sST_}:{sST_+3}], s10 offen{pol(K1_ST)}"); vq.append("O")
        I(f"s_add_u32 s10, s10, {64*RS}")
    stamp('o')
    if opt("bar", 1):
        I("s_waitcnt lgkmcnt(0)")
        I("s_barrier")
    if WLP == 2: wloads()
    if not SP: out.extend(static)
    IDP = opt("idp", 1)
    vG = vQ + 10
    I(f"v_lshl_add_u32 v{vG}, s{sB}, 7, v4")
    I(f"v_add_u32 v{vG}, {256*RS}, v{vG}")
    I(f"v_add_u32 v{vG+1}, {64*RS}, v{vG}")
    for i in range(2):
        r = oI + 4*i
        I(f"s_waitcnt lgkmcnt({1 - i})")
        for d in range(4):
            I(f"v_bitop3_b32 v{r+d}, v{r+d}, v23, s{sSB if d & 1 else sSA} bitop3:0xb8")
    def idstores():
        for i in range(2):
            I(f"buffer_store_dwordx4 {rr(oI+4*i,4)}, v{vG+i}, s[{sWS}:{sWS+3}], 0 offen{pol(K1_ST)}"); vq.append("O")
    if IDP == 0: idstores()
    if WLP == 3: wloads()
    consumer_setup()
    CP = opt("cp", 0)
    if CP == 0: cloads()
    I(f"s_mov_b32 s10, {f2u(-LOG2E):#x}")
    I(f"s_waitcnt vmcnt({younger('B')})")
    for i in range(8):
        I(f"v_lshlrev_b32 v{vAT+2*i}, 16, v{pW+i}")
        I(f"v_and_b32 v{vAT+2*i+1}, 0xffff0000, v{pW+i}")
    for i in range(16): I(f"v_mul_f32 v{vAT+i}, s10, v{vAT+i}")
    for i in range(8): I(f"v_cvt_pk_bf16_f32 v{pW+i}, v{vAT+2*i}, v{vAT+2*i+1}")
    I(f"ds_write_b128 v{u(1)}, {rr(pW,4)} offset:{WL + WI_B}")
    I(f"s_cmp_ge_u32 s7, 2")
    I("s_cbranch_scc1 K1_NOWC")
    I(f"v_add_u32 v5, {WL + WI_C}, v{u(1)}")
    I(f"ds_write_b128 v5, {rr(pW+4,4)}")
    L("K1_NOWC")
    w0, w1, wc0, wc1, xa_ = vT1 + 1, vT1 + 2, vT1 + 3, vT1 + 4, vT
    I(f"v_bfe_u32 v{w0}, v{lane}, 2, 2")
    I(f"v_lshlrev_b32 v{w0}, 7, v{w0}")
    I(f"v_lshl_add_u32 v{w0}, v{vCH}, 2, v{w0}")
    I(f"v_and_b32 v{w1}, 16, v{lane}")
    I(f"v_and_b32 v{wc0}, 2, v{lane}")
    I(f"v_lshl_add_u32 v{w1}, v{wc0}, 2, v{w1}")
    I(f"v_and_b32 v{wc0}, 8, v{lane}")
    I(f"v_lshl_add_u32 v{w1}, v{wc0}, 2, v{w1}")
    assert WL & 0x1dff == 0
    I(f"s_mov_b32 s10, {WL}")
    I(f"v_add3_u32 v{w0}, v{w0}, v{w1}, s10")
    I(f"v_lshl_add_u32 v{wc0}, v{u(5)}, 10, v{w0}")
    I(f"v_lshl_add_u32 v{w0}, v{u(5)}, 12, v{w0}")
    I(f"v_xor_b32 v{w1}, 32, v{w0}")
    I(f"v_xor_b32 v{wc1}, 32, v{wc0}")
    def wtr(reg, img, ft, s_, c=False):
        ad = (wc0, wc1)[ft] if c else (w0, w1)[ft]
        return [f"ds_read_b64_tr_b16 {rr(reg+2*h_,2)}, v{ad} offset:{img + 1024*s_ + 512*h_}" for h_ in range(2)]
    I(f"s_lshl_b32 s10, s7, 10")
    I(f"s_and_b32 s11, s7, 4")
    I(f"s_mul_i32 s11, s11, {8 - 1024}")
    I(f"s_add_u32 s11, s11, s10")
    I(f"v_xor_b32 v{xa_}, s11, v{w0}")
    I(f"s_waitcnt vmcnt({younger('W')}) lgkmcnt(0)")
    I("s_barrier")
    if CP == 1: cloads()
    rest = []
    for h_ in range(2):
        rest.append(f"ds_read_b64_tr_b16 {rr(vAT+2*h_,2)}, v{xa_} offset:{WI_U + 512*h_}")
        rest.append(f"ds_read_b64_tr_b16 {rr(vAT+4+2*h_,2)}, v{xa_} offset:{WI_A + 512*h_}")
    for reg, img in ((vWB, WI_B), (vWC, WI_C), (vWV, WI_V)):
        for ft in range(2):
            if img == WI_C: rest += wtr(vWC + 4*ft, WI_C, ft, 0, True)
            else:
                for s_ in range(4): rest += wtr(reg + 16*ft + 4*s_, img, ft, s_)
    while rest:
        for x_ in rest[:6]: I(x_)
        rest = rest[6:]
        if rest: I("s_waitcnt lgkmcnt(8)")
    I(f"v_add_u32 v{xa_}, s10, v{l16}")
    I(f"v_add_u32 v{xa_}, {WL}, v{xa_}")
    stamp('k')
    I(f"v_cmp_ne_u32 s[10:11], 0, v{k4}")
    if CP == 2: cloads()
    for i in range(4):
        L(f"K2_CHK{i}")
        I(f"s_waitcnt vmcnt({3 - i})")
        r = vC + 4*i
        I(f"v_xor_b32 v{u(0)}, s{sSA}, v{r+1}")
        I(f"v_bitop3_b32 v{u(0)}, v{r+2}, s{sSA}, v{u(0)} bitop3:0xeb")
        I(f"v_bitop3_b32 v{u(0)}, v{r+3}, s{sSB}, v{u(0)} bitop3:0xbe")
        I(f"v_and_b32 v{u(0)}, 0xf0000, v{u(0)}")
        I(f"v_cmp_ne_u32 vcc, 0, v{u(0)}")
        I(f"v_mov_b32_dpp v{vH+i}, v{vC+4*i} row_newbcast:0 row_mask:0xf bank_mask:0x3")
        I(f"v_mov_b32_dpp v{vH+i}, v{vC+4*i} row_newbcast:8 row_mask:0xf bank_mask:0xc")
        I(f"s_cbranch_vccnz K2_RETRY{i}")
        if i == 0: stamp(1)
        if i == 3:
            I(f"s_add_u32 s{sCEL}, s8, s6")
            I(f"s_addc_u32 s{sCEL+1}, s9, 0")
            I(f"s_mov_b32 s{sCEL+2}, {NCH*CELLB - 64}")
            XP_ = opt("xp", 1)
            if IDP == 1: idstores()
            else:
                lloads()
                if XP_ == 0: xloads()
        for j in range(4):
            I(f"v_lshrrev_b32 v{vA+4*i+j}, 20, v{vC+4*i+j}")
        I(f"v_sub_u32_sdwa v{u(0)}, v{vH+i}, v{k4} dst_sel:DWORD dst_unused:UNUSED_PAD src0_sel:WORD_1 src1_sel:DWORD")
        for j in range(4):
            m = sM + 2*(4*i+j)
            I(f"v_cmp_le_i32 s[{m}:{m+1}], {j}, v{u(0)}")
        m = sM + 8*i
        I(f"s_and_b64 s[{m}:{m+1}], s[{m}:{m+1}], s[10:11]")
        for j in range(4):
            m = sM + 2*(4*i+j)
            I(f"s_mov_b64 exec, s[{m}:{m+1}]")
            I(f"ds_add_rtn_u32 v{vRK+4*i+j}, v{vA+4*i+j}, v{one} offset:{HIST}")
        I("s_mov_b64 exec, -1")
    I(f"v_max3_u32 v{u(0)}, v{vH}, v{vH+1}, v{vH+2}")
    I(f"v_max_u32 v{u(0)}, v{u(0)}, v{vH+3}")
    I(f"v_cmp_le_u32 vcc, {32 << 16}, v{u(0)}")
    for i in range(4):
        I(f"ds_write_b32 v{hda}, v{vH+i} offset:{HDR + 256*i}")
    I("s_cbranch_vccnz K2_XT1")
    L("K2_XT1R")
    stamp('s')
    I("s_waitcnt lgkmcnt(0)")
    I("s_barrier")
    stamp(2)
    c, p, tot, sc = u(0), u(4), u(8), u(9)
    own, ownn, owna = u(10), u(11), u(12)
    SD = "dst_sel:DWORD dst_unused:UNUSED_PAD src0_sel:WORD_0 src1_sel:WORD_0"
    for ph in range(4):
        I(f"ds_read_b128 {rr(hh+4*ph,4)}, v{l16} offset:{HIST + 1024*ph}")
    I(f"ds_read_u16 v{own}, v{owna} offset:{HIST}")
    I(f"ds_read_u16 v{u(13)}, v{owna} offset:{HIST + 1024}")
    I(f"ds_write_b128 v{xa_}, {rr(vAT,4)} offset:{WI_U}")
    I(f"ds_write_b128 v{xa_}, {rr(vAT+4,4)} offset:{WI_A}")
    LP = opt("lp", 0)
    if IDP == 1 and LP == 0: lloads()
    if XP_ == 1 and LP == 0: xloads()
    fill = [f"v_and_b32 v{vC+s}, {RMASK:#x}, v{vC+s}" for s in range(16)]
    I(f"s_waitcnt lgkmcnt(2)")
    for i in range(4):
        I(f"v_add_u32_sdwa v{c+i}, v{hh+i}, v{hh+4+i} {SD}")
        I(f"v_add_u32_sdwa v{p+i}, v{hh+8+i}, v{hh+12+i} {SD}")
    for i in range(4):
        I(f"v_add_u32 v{c+i}, v{c+i}, v{p+i}")
    I(f"v_lshl_or_b32 v{own}, v{u(13)}, 16, v{own}")
    I(f"v_add_u32 v{p+1}, v{c}, v{c+1}")
    I(f"v_add_u32 v{p+2}, v{p+1}, v{c+2}")
    I(f"v_add_u32 v{p+3}, v{p+2}, v{c+3}")
    I(f"v_mov_b32 v{tot}, v{p+3}")
    fill = [f"v_add_u32 v{c+1}, v{c}, v{p+1}", f"v_add_u32 v{c+2}, v{p+1}, v{p+2}", f"v_add_u32 v{c+3}, v{p+2}, v{p+3}"] + fill
    wave_scan(tot, fill)
    I(f"v_sub_u32 v{p}, v{tot}, v{p+3}")
    I(f"v_readlane_b32 s10, v{tot}, 63")
    for i in range(4):
        I(f"v_lshl_add_u32 v{c+i}, v{p}, 1, v{c+i}")
    I("s_lshr_b32 s11, s10, 5")
    I(f"s_add_u32 s11, s11, {ASYM}")
    I("s_and_b32 s11, s11, -32")
    I(f"s_sub_i32 s11, s11, {ASYM}")
    I("s_lshl_b32 s11, s11, 3")
    I("s_lshr_b32 s10, s10, 1")
    I(f"s_lshr_b32 s{sF0}, s{sW}, 1")
    I(f"s_mul_i32 s{sF0}, s{sF0}, s10")
    I(f"s_add_i32 s11, s11, s{sF0}")
    I(f"s_add_i32 s10, s10, s{sF0}")
    I(f"s_bitcmp1_b32 s{sW}, 0")
    I(f"s_cselect_b32 s{sEND}, s11, s{sF0}")
    I("s_cselect_b32 s10, s10, s11")
    I(f"s_mov_b32 s{sF0}, 0")
    I(f"s_mov_b32 s{sF1}, 0")
    for i in range(4):
        I(f"v_cmp_gt_i32 vcc, s{sEND}, v{c+i}")
        I(f"v_cmp_gt_i32 s[{sTMP}:{sTMP+1}], s10, v{c+i}")
        I("s_bcnt1_i32_b64 s11, vcc")
        I(f"s_add_u32 s{sF0}, s{sF0}, s11")
        I(f"s_bcnt1_i32_b64 s11, s[{sTMP}:{sTMP+1}]")
        I(f"s_add_u32 s{sF1}, s{sF1}, s11")
    I(f"s_max_i32 s{sF0}, s{sF0}, s{lo0}")
    I(f"s_min_i32 s{sF0}, s{sF0}, s{hi0}")
    I(f"s_max_i32 s{sF1}, s{sF1}, s{lo1}")
    I(f"s_min_i32 s{sF1}, s{sF1}, s{hi1}")
    I(f"v_cmp_le_u32 vcc, s{sF0}, v{ownn}")
    I(f"v_cmp_gt_u32 s[10:11], s{sF1}, v{ownn}")
    I(f"s_mov_b32 s{sMORE}, 2")
    I("s_and_b64 vcc, vcc, s[10:11]")
    I(f"v_cndmask_b32 v{own}, 0, v{own}, vcc")
    I(f"v_mov_b32 v{tot}, v{own}")
    wave_scan(tot, fill, half=True)
    for x_ in fill: I(x_)
    I(f"s_sub_u32 s{sTMP}, s{sL}, {R0}")
    I(f"v_readlane_b32 s10, v{tot}, 31")
    I(f"v_readlane_b32 s11, v{tot}, 63")
    I(f"v_sub_u32 v{tot}, v{tot}, v{own}")
    I(f"v_mov_b32 v{vOWN}, v{u(14)}")
    I(f"s_and_b32 s{sTH}, s10, 0xffff")
    I("s_lshr_b32 s10, s10, 16")
    I(f"s_add_u32 s{sTH+1}, s{sTH}, s10")
    I("s_and_b32 s10, s11, 0xffff")
    I(f"s_add_u32 s{sTH+2}, s{sTH+1}, s10")
    I("s_lshr_b32 s11, s11, 16")
    I(f"s_add_u32 s{sEND}, s{sTH+2}, s11")
    I(f"s_lshl_b32 s10, s{sTH}, 16")
    I(f"s_pack_ll_b32_b16 s11, s{sTH+1}, s{sTH+2}")
    I(f"s_pack_ll_b32_b16 s{sTMP}, s{sTMP}, s{sTMP}")
    I(f"s_add_u32 s10, s10, s{sTMP}")
    I(f"s_add_u32 s11, s11, s{sTMP}")
    I("s_mov_b32 exec_lo, vcc_lo")
    I("s_mov_b32 exec_hi, 0")
    I(f"v_add_u32 v{tot}, s10, v{tot}")
    I("s_mov_b32 exec_lo, 0")
    I("s_mov_b32 exec_hi, vcc_hi")
    I(f"v_add_u32 v{tot}, s11, v{tot}")
    I("s_mov_b64 exec, vcc")
    I(f"ds_write_b16 v{owna}, v{tot} offset:{HIST + 2}")
    I(f"ds_write_b16_d16_hi v{owna}, v{tot} offset:{HIST + 1024 + 2}")
    I(f"ds_write_b32 v{vMIN+1}, v{vMIN} offset:{MAP}")
    I("s_mov_b64 exec, -1")
    I(f"v_mov_b32 v{sc}, {FLAG}")
    I(f"s_cmp_le_u32 s{sEND}, {LMAX*4}")
    I("s_cbranch_scc1 K2_LFIT")
    I(f"ds_write_b32 v{sc}, v{one}")
    I(f"s_mov_b32 s{sEND}, 0")
    L("K2_LFIT")
    I(f"s_add_u32 s{sEND}, s{sEND}, s{sL}")
    for k in range(3):
        I(f"s_add_i32 s{sTH+k}, s{sTH+k}, {opt('tho', 64)}")
        I(f"s_lshr_b32 s{sTH+k}, s{sTH+k}, 7")
    if LP == 1: lloads(); xloads()
    I("s_waitcnt lgkmcnt(0)")
    stamp('a')
    I("s_barrier")
    stamp('b')
    I(f"ds_read_b32 v{sc}, v{sc}")
    for s in range(16):
        m = sM + 2*s
        I(f"s_mov_b64 exec, s[{m}:{m+1}]")
        I(f"ds_read_u16 v{vA+s}, v{vA+s} offset:{HIST + 2}")
    I("s_mov_b64 exec, -1")
    pads(lane, u(0), u(1), u(2))
    I(f"s_waitcnt vmcnt(4)")
    L("K2_CHKL")
    I(f"v_xor_b32 v{u(0)}, s{sSA}, v{vLE}")
    for d in range(1, 8):
        I(f"v_bitop3_b32 v{u(0)}, v{vLE+d}, s{sSB if d & 1 else sSA}, v{u(0)} bitop3:0xbe")
    I(f"v_and_b32 v{u(0)}, 0xf000f000, v{u(0)}")
    I(f"v_cmp_ne_u32 vcc, 0, v{u(0)}")
    I("s_cbranch_vccnz K2_RETRYL")
    for d in range(8): I(f"v_and_b32 v{vLE+d}, 0x0fff0fff, v{vLE+d}")
    I(f"s_waitcnt lgkmcnt(0)")
    I(f"v_cmp_ne_u32 vcc, 0, v{sc}")
    I("s_cbranch_vccnz K2_OVF")
    for s in range(16):
        m = sM + 2*s
        I(f"s_mov_b64 exec, s[{m}:{m+1}]")
        I(f"v_add_u32 v{vA+s}, v{vA+s}, v{vRK+s}")
        I(f"v_mad_u32_u16 v{vRK+s}, v{vLE + (s>>1)}, 32, v{vEB + (s>>2)} op_sel:[{s&1},0,0,0]")
        I(f"ds_write2st64_b32 v{vA+s}, v{vC+s}, v{vRK+s} offset0:{R0//256} offset1:{R1//256}")
    I("s_mov_b64 exec, -1")
    I(f"s_cmp_lg_u32 s{sXT}, 0")
    I("s_cbranch_scc1 K2_XT2")
    L("K2_PADS0")
    I("s_waitcnt lgkmcnt(0)")
    stamp('c')
    I("s_barrier")
    vio, e1, e2, nn = sM, sM + 2, sM + 4, sM + 6
    m8, m16, m24 = sM + 8, sM + 10, sM + 12
    def dbuild(tb, tag, extra=(), mid=()):
        z = vR + 12
        extra = list(extra)
        I(f"v_lshl_add_u32 v{vT}, v{lane}, 4, s{sSTG}")
        I(f"v_lshl_add_u32 v{z}, v{lane}, 2, s{sSTG}")
        I(f"v_lshl_add_u32 v{z+1}, v{lane}, 2, s{sL}")
        I(f"v_subrev_u32 v{z+1}, 96, v{z+1}")
        q = []
        def lreads(k):
            for d in range(4):
                I(f"ds_read_u16 v{tb+4*k+d}, v{z+1} offset:{256*k + 96 - 32*d + 2}"); q.append(k)
        lreads(0); lreads(1)
        for k in range(4): I(f"ds_write_b128 v{vT}, {rr(vR,4)} offset:{SLOT + 1024*k}"); q.append('w')
        I(f"ds_write_b32 v{z}, v{vR} offset:{SLOT + 4096}"); q.append('w')
        for r_, v_ in ((m8, 0xffffff00), (m16, 0xffff0000), (m24, 0xff000000)):
            I(f"s_mov_b32 s{r_}, {v_:#x}")
            I(f"s_mov_b32 s{r_+1}, {v_:#x}")
        I(f"s_mov_b64 s[{vio}:{vio+1}], 0")
        I(f"s_movk_i32 s10, 2048")
        for k in range(8):
            I(f"s_cmp_le_u32 s{sN}, {2*k}")
            I(f"s_cbranch_scc1 K2_DB{tag}{k}")
            w = min(14, len(q) - 1 - max(i for i, t in enumerate(q) if t == k))
            I(f"s_waitcnt lgkmcnt({min(w, 8)})")
            if mid: I(mid[k])
            if k + 2 < 8: lreads(k + 2)
            l0 = tb + 4*k
            I(f"v_cmp_eq_u32 vcc, v{l0}, v{l0+1}")
            I(f"v_cmp_eq_u32 s[{e1}:{e1+1}], v{l0}, v{l0+2}")
            I(f"v_cmp_eq_u32 s[{e2}:{e2+1}], v{l0}, v{l0+3}")
            I(f"v_cmp_ne_u32 s[{nn}:{nn+1}], s10, v{l0}")
            I(f"v_lshrrev_b32 v{l0}, 4, v{l0}")
            I(f"s_and_b64 vcc, vcc, s[{m8}:{m8+1}]")
            I(f"v_add_u32 v{l0}, v{l0}, v{cba}")
            I(f"s_and_b64 s[{e1}:{e1+1}], s[{e1}:{e1+1}], s[{m16}:{m16+1}]")
            I(f"v_cndmask_b32 v{l0+1}, v{cb0}, v{cb1}, vcc")
            I(f"s_and_b64 s[{e2}:{e2+1}], s[{e2}:{e2+1}], s[{m24}:{m24+1}]")
            I(f"ds_or_b32 v{l0}, v{l0+1} offset:{SLOT + 2*DT*k}"); q.append('o')
            for x_ in extra[2*k:2*k+2]: I(x_); q.append('x')
            I(f"s_or_b64 s[{e1}:{e1+1}], s[{e1}:{e1+1}], s[{e2}:{e2+1}]")
            I(f"s_and_b64 s[{e1}:{e1+1}], s[{e1}:{e1+1}], s[{nn}:{nn+1}]")
            I(f"s_or_b64 s[{vio}:{vio+1}], s[{vio}:{vio+1}], s[{e1}:{e1+1}]")
        if mid:
            I(f"s_branch K2_DBE{tag}")
            for k in range(8):
                L(f"K2_DB{tag}{k}")
                I("s_waitcnt lgkmcnt(8)")
                I(mid[k])
                for x_ in extra[2*k:2*k+2]: I(x_)
            I("s_nop 3")
            L(f"K2_DBE{tag}")
            for x_ in extra[16:]: I(x_)
        else:
            for k in range(8): L(f"K2_DB{tag}{k}")
    L("K2_GO")
    stamp(3)
    STAG = opt("stag", 1)
    I(f"ds_read_b128 {rr(vQD,4)}, v{vARX}")
    I(f"ds_read_b32 v{vR1}, v{vARE}")
    I(f"ds_read_u16 v{vL1}, v{vARP} offset:2")
    for i in range(4):
        I(f"v_mov_b64 v[{vR+2*i}:{vR+2*i+1}], 0")
    I("s_waitcnt lgkmcnt(1)")
    EM = opt("em", 0xAA)
    if STAG == 1:
        I(f"s_movk_i32 s10, {EM}")
        I(f"s_bitcmp1_b32 s10, s{sW}")
        I("s_cbranch_scc1 K2_EARLY0")
        I("s_waitcnt vmcnt(0)")
        I("s_branch K2_LATE0")
        L("K2_EARLY0")
    for s in dma_tile(0): I(s)
    if STAG == 2:
        I(f"s_bitcmp1_b32 s{sW}, 0")
        I("s_cbranch_scc1 K2_LATE0")
        I("s_waitcnt vmcnt(0)")
    L("K2_LATE0")
    I(f"s_cmp_lg_u32 s{sMORE}, 2")
    I("s_cbranch_scc1 K2_NOTFIRST")
    vWA = vACC
    I(f"v_add_u32 v{w0}, {WL}, v{l16}")
    for k in range(8): I(f"ds_read_b128 {rr(vWA+4*k,4)}, v{w0} offset:{WI_A + 1024*k}")
    I(f"s_waitcnt vmcnt(5)")
    for q in range(4):
        I(f"ds_read_b128 {rr(vX+4*q,4)}, v{vAX} offset:{SLOT + 16*q}")
    I(f"ds_read_b128 {rr(vR+8,4)}, v{l16} offset:{HDR}")
    I("s_waitcnt lgkmcnt(5)")
    mid = []
    for ft, D in ((0, vP), (1, vQ)):
        mid += [mfma(D, vX+4*q, vWA+16*ft+4*q, None if q == 0 else D) for q in range(4)]
    dbuild(vACC + 32, "f", [], mid)
    I(f"s_mov_b32 s10, {f2u(-LOG2E):#x}")
    for i in range(32):
        I(f"v_mul_f32 v{vP+i}, s10, v{vP+i}")
    for i in range(16):
        I(f"v_cvt_pk_bf16_f32 v{vAT+i}, v{vP+2*i}, v{vP+2*i+1}")
    I("s_waitcnt lgkmcnt(0)")
    I(mfma(NUM(0), vT2, vT2))
    I(mfma(NUM(1), vT2, vT2))
    I(f"s_mov_b32 s10, {f2u(1e-6):#x}")
    I(f"s_mov_b32 s11, s10")
    for ft in range(2):
        for i in range(8):
            I(f"v_mov_b64 v[{DEN(ft)+2*i}:{DEN(ft)+2*i+1}], s[10:11]")
    I(f"v_max3_u32 v{vR+8}, v{vR+8}, v{vR+9}, v{vR+10}")
    I(f"v_max_u32 v{vR+8}, v{vR+8}, v{vR+11}")
    I(f"v_lshrrev_b32 v{vR+8}, 16, v{vR+8}")
    I(f"v_cmp_lt_u32 vcc, s{sSKIP}, v{vR+8}")
    I(f"s_mov_b32 s{sCI}, -1")
    I(f"s_mov_b64 s[{sMSK}:{sMSK+1}], 0")
    I(f"s_mov_b32 s{sR0}, 0")
    I(f"s_mov_b32 s{sCNT}, 0")
    I("s_cmp_lg_u64 vcc, 0")
    I(f"s_cselect_b32 s{sMORE}, 1, 0")
    L("K2_BUILT")
    I("s_waitcnt lgkmcnt(0)")
    I(f"v_add_u32 v{vL1}, v{vL1}, v{vC1}")
    if STAG == 1:
        I(f"s_movk_i32 s10, {EM}")
        I(f"s_bitcmp1_b32 s10, s{sW}")
        I("s_cbranch_scc1 K2_HAD0")
        for s in dma_tile(0): I(s)
        L("K2_HAD0")
    I(f"ds_read_b128 {rr(vQD,4)}, v{vARX} offset:128")
    I(f"ds_read_b32 v{vR1}, v{vARE} offset:128")
    for s in t1_reads(): I(s)
    for i in range(4):
        I(f"v_mov_b64 v[{vQ+2*i}:{vQ+2*i+1}], 0")
    I(f"v_lshrrev_b32 v{vT}, 5, v{lane}")
    I(f"v_add_u32 v{vT}, v{vT}, v{lane}")
    I(f"v_lshl_add_u32 v{vART}, v{vT}, 2, s{sSTG}")
    I(f"v_add_u32 v{vART}, {SLOT}, v{vART}")
    stamp(4)
    I("s_waitcnt vmcnt(0)")
    stamp(5)
    I(f"ds_read_b128 {rr(vE,4)}, v{vAE}")
    for q in range(4):
        I(f"ds_read_b128 {rr(vX+4*q,4)}, v{vAX} offset:{16*q}")
    I("s_waitcnt lgkmcnt(0)")
    I(f"s_cmp_eq_u32 s{sN}, 0")
    I("s_cbranch_scc1 K2_DONE")
    for s in g_mfmas(vP, 0):
        if s.startswith("v_smfmac"):
            for x_ in dma_tile(0): I(x_)
        I(s)
    I(f"s_mov_b32 s{sT}, 0")
    def prio_code(uid):
        r = []
        for k in range(3):
            r += [f"s_cmp_lg_u32 s{sT}, s{sTH+k}", f"s_cbranch_scc1 K2_PR{uid}_{k}", f"s_setprio {2-k}", f"K2_PR{uid}_{k}:"]
        return r
    YK = opt("yk", 2)
    if YK:
        I(f"s_sub_u32 s10, s{sN}, {YK - 1 if YK < 10 else 0}")
        I(f"s_bitcmp1_b32 s{sW}, 0")
        I(f"s_cselect_b32 s{sTH+2}, s{sTH+2}, s10")
    I("s_setprio 3")
    I(f"s_cmp_lg_u64 s[{vio}:{vio+1}], 0")
    I("s_nop 8")
    I("s_cbranch_scc1 K2_DENSE" if not opt("fdense", 0) else "s_branch K2_DENSE")
    tst = ["s_memrealtime s[98:99]", "s_waitcnt lgkmcnt(0)", "s_mov_b32 m0, s72", "s_nop 0", "v_writelane_b32 v255, s98, m0"] if TS == 4 else []
    def loop(sp):
        body = tst + phaseA(0, sp) + phaseB(0, sp)
        body += [f"s_cmp_ge_u32 s{sT}, s{sN}", f"s_cbranch_scc1 K2_TAIL0{sp}"] + (prio_code(0) if sp else [])
        body += tst + phaseA(1, sp) + phaseB(1, sp)
        body += [f"v_add_u32 v{r}, 0x100, v{r}" for r in (vARX, vARP, vARE)]
        body += [f"v_add_u32 v{vART}, {2*DT if sp else 256}, v{vART}"]
        body += prio_code(1) if sp else []
        body += [f"s_cmp_lt_u32 s{sT}, s{sN}", f"s_cbranch_scc1 K2_LOOP{sp}"]
        check_body(body)
        DBG = opt("dbg", "")
        if "nodma" in DBG: body = [b for b in body if not b.startswith("buffer_load")]
        if sp: emit(".p2align 6")
        L(f"K2_LOOP{sp}")
        for s in body:
            if s.endswith(":"): L(s[:-1])
            else: I(s)
        if sp:
            for s in s_mfmas(DEN(1), vR, 1, 1) + s_mfmas(NUM(1), vQ, 1, 1): I(s)
            I("s_branch K2_DONE")
        L(f"K2_TAIL0{sp}")
        for s in s_mfmas(DEN(1), vR, sp, 0) + s_mfmas(NUM(1), vQ, sp, 0): I(s)
    loop(1)
    L("K2_DONE")
    I(f"s_cmp_lg_u32 s{sMORE}, 0")
    I("s_cbranch_scc1 K2_SLOW")
    L("K2_EPI")
    stamp(6)
    I(f"v_lshlrev_b32 v{vT}, 4, v{lane}")
    for k in range(8):
        I(f"ds_read_b128 {rr(vWB+4*k,4)}, v{vT} offset:{WL + 1024*k}")
    I(f"v_and_b32 v{vQD+1}, 31, v{lane}")
    I(f"v_lshrrev_b32 v{vQD+2}, 2, v{vC1}")
    I(f"v_lshl_add_u32 v{vQD+1}, v{vQD+1}, 6, v{vQD+2}")
    for s_ in range(2):
        I(f"ds_read2_b64 {rr(vT2+4*s_,4)}, v{vQD+1} offset0:{4*s_} offset1:{4*s_+2}")
    for i in range(16):
        I(f"v_lshlrev_b32 v{vWV+2*i}, 16, v{vX+i}")
        I(f"v_and_b32 v{vWV+2*i+1}, 0xffff0000, v{vX+i}")
    I(f"v_subrev_u32 v{vT+1}, s{sWIN}, v{lane}")
    I(f"v_and_b32 v{vT+1}, 31, v{vT+1}")
    I(f"v_mul_u32_u24 v{vT+1}, 144, v{vT+1}")
    I(f"v_lshl_add_u32 v{vT+1}, v{vC1}, 1, v{vT+1}")
    I(f"v_add_u32 v{vT+1}, s{sSTG}, v{vT+1}")
    I(f"s_sub_u32 s10, s{sF0}, s{sWIN}")
    I("s_mul_i32 s10, s10, 144")
    I(f"s_add_u32 s10, s10, s{sSTG}")
    I(f"v_lshrrev_b32 v{vQD}, 3, v{lane}")
    I(f"v_lshl_add_u32 v{vQD}, v{vQD}, 4, v{vT}")
    I(f"v_add_u32 v{vQD}, s10, v{vQD}")
    I(f"s_mul_i32 s10, s{sB}, {BN}")
    I(f"s_add_u32 s11, s10, s{sF1}")
    I(f"s_add_u32 s10, s10, s{sF0}")
    I(f"s_min_u32 s11, s11, {N}")
    I(f"s_min_u32 s10, s10, {N}")
    I("s_sub_u32 s11, s11, s10")
    I("s_lshl_b32 s10, s10, 7")
    I(f"s_add_u32 s{sOUT}, s{sOUT}, s10")
    I(f"s_addc_u32 s{sOUT+1}, s{sOUT+1}, 0")
    I(f"s_lshl_b32 s{sOUT+2}, s11, 7")
    for ft, D in ((0, vP), (1, vQ)):
        for q in range(4):
            I(f"s_waitcnt lgkmcnt({9 - 4*ft - q})")
            I(mfma(D, vWB+16*ft+4*q, vX+4*q, vWV+16*ft if q == 0 else D))
            for i in range(4):
                r = DEN(ft) + 4*q + i
                I(f"v_rcp_f32 v{r}, v{r}")
    I("s_waitcnt lgkmcnt(0)")
    for ft, D in ((0, vP), (1, vQ)):
        for i in range(16):
            I(f"v_mul_f32 v{NUM(ft)+i}, v{NUM(ft)+i}, v{DEN(ft)+i}")
        for i in range(8):
            I(f"v_cvt_pk_bf16_f32 v{DEN(ft)+i}, v{NUM(ft)+2*i}, v{NUM(ft)+2*i+1}")
        I(mfma(D, DEN(ft), vT2, D))
        I("s_nop 0")
        I(mfma(D, DEN(ft)+4, vT2+4, D))
    for q in range(4):
        for i in range(8*q, 8*q+8):
            I(f"v_max_f32 v{vP+i}, v{vP+i}, v{vWV+i}")
        for d in range(4):
            i = 4*q + d
            I(f"v_cvt_pk_bf16_f32 v{vR+i}, v{vP+2*i}, v{vP+2*i+1}")
        I(f"ds_write_b128 v{vT+1}, {rr(vR+4*q,4)} offset:{16*q}")
    for q in range(4):
        I(f"ds_read_b128 {rr(vX+4*q,4)}, v{vQD} offset:{8*144*q}")
    for q in range(4):
        I(f"s_waitcnt lgkmcnt({3-q})")
        I(f"buffer_store_dwordx4 {rr(vX+4*q,4)}, v{vT}, s[{sOUT}:{sOUT+3}], 0 offen offset:{1024*q}{pol(K2_OP)}")
    I(f"s_add_u32 s10, s2, s7")
    I("s_cmp_lg_u32 s10, 0")
    I("s_cbranch_scc1 K2_NOEP")
    I(f"v_mov_b32 v{vP}, {WS_EPOCH}")
    I(f"v_mov_b32 v{vP+1}, s{sEPN}")
    I(f"buffer_store_dword v{vP+1}, v{vP}, s[{sWS}:{sWS+3}], 0 offen sc1")
    L("K2_NOEP")
    if TS == 2 or opt("tsn", 0): I(f"s_mov_b32 s89, s{sN}")
    if TS == 8:
        I(f"s_sub_u32 s94, {opt('spin', 200000)}, s{sSPIN}")
        I(f"s_mul_i32 s94, s94, 100")
        I(f"s_add_u32 s94, s94, s88")
    if TS: I(f"s_mov_b32 s{sW}, s7")
    if TS == 4:
        I("s_mov_b64 exec, -1")
        I(f"s_lshl_b32 s87, s2, 11")
        I(f"s_add_u32 s87, s87, {WS_TS + 0x180000}")
        I(f"s_lshl_b32 s86, s{sW}, 8")
        I("s_add_u32 s87, s87, s86")
        I(f"v_lshl_add_u32 v{vP}, v{lane}, 2, s87")
        I(f"global_store_dword v{vP}, v255, s[8:9]")
    stamp_out(8, 8, sW, 8, 0x100000, vP)
    L("K2_END")
    I("s_endpgm")
    L("K2_NOTFIRST")
    dbuild(vP, "s")
    I("s_branch K2_BUILT")
    def spin():
        if opt("slp", 1): I(f"s_sleep {opt('slp', 1)}")
        I(f"s_sub_u32 s{sSPIN}, s{sSPIN}, 1")
        I("s_cbranch_scc1 K2_END")
    for i in range(4):
        L(f"K2_RETRY{i}")
        spin()
        for j in range(i, 4): cload(j)
        I(f"s_branch K2_CHK{i}")
    L("K2_RETRYL")
    spin()
    lloads()
    I("s_waitcnt vmcnt(0)")
    I("s_branch K2_CHKL")
    L("K1_OVF")
    t = vAT
    for i in range(4):
        I(f"v_lshrrev_b32 v{t+i}, 16, v{oA+i}")
    I(f"v_add_u32 v{t+5}, v{t}, v{t+1}")
    I(f"v_add_u32 v{t+6}, v{t+5}, v{t+2}")
    I(f"v_add_u32 v{t+7}, v{t+6}, v{t+3}")
    I(f"v_mov_b32 v1, v{t+7}")
    wave_scan(1)
    I("s_nop 0")
    I(f"v_sub_u32 v{t+4}, v1, v{t+7}")
    I(f"v_add_u32 v{t+7}, v{t+4}, v{t+6}")
    I(f"v_add_u32 v{t+6}, v{t+4}, v{t+5}")
    I(f"v_add_u32 v{t+5}, v{t+4}, v{t}")
    for i in range(4):
        I(f"v_or_b32 v{t+4+i}, v{t+4+i}, v{oA+i}")
    I("s_waitcnt lgkmcnt(0)")
    I(f"ds_write_b128 v{l16}, {rr(t+4,4)} offset:{P_HDR}")
    for i in range(4):
        I(f"ds_read_b32 v{oH+i}, v{hda} offset:{P_HDR + 256*i}")
    I(f"s_add_u32 s15, s13, {WS_RECS}")
    srd(q0, 8, 9, CH*4, "s15")
    I("s_lshr_b32 s15, s13, 1")
    I(f"s_add_u32 s15, s15, {WS_LEID}")
    srd(q1, 8, 9, CH*2, "s15")
    I(f"v_cndmask_b32 v{pH+6}, v{pH}, v{pH+6}, s[{pm}:{pm+1}]")
    I(f"v_cndmask_b32 v{pK+6}, 0, v{pK+6}, s[{pm}:{pm+1}]")
    for i in range(7):
        I(f"ds_read_u16 v{pA+i}, v{pH+i} offset:{P_HDR - 2048}")
    I("s_waitcnt lgkmcnt(0)")
    for i in range(7):
        I(f"v_lshl_add_u32 v{pA+i}, v{pA+i}, 1, v{pK+i}")
        I(f"v_cmp_le_u32 vcc, 62, v{pK+i}")
        I(f"v_lshlrev_b32 v{pB+i}, 1, v{pA+i}")
        I("s_and_saveexec_b64 s[14:15], vcc")
        I(f"s_cbranch_execz K1_OV3_{i}")
        I(f"buffer_store_short v{pI+i}, v{pA+i}, s[{q1}:{q1+3}], 0 offen sc1")
        I(f"buffer_store_dword v{pS+i}, v{pB+i}, s[{q0}:{q0+3}], 0 offen sc1")
        L(f"K1_OV3_{i}")
        I("s_mov_b64 exec, -1")
    I("s_waitcnt vmcnt(0)")
    I("s_barrier")
    I("s_branch K1_OUT")
    L("K2_DENSE")
    I(f"v_bfe_u32 v{vT}, v{lane}, 2, 2")
    I(f"v_lshl_add_u32 v{vART}, v{vT}, 5, s{sL}")
    I(f"v_lshrrev_b32 v{vT}, 5, v{lane}")
    I(f"v_lshl_add_u32 v{vART}, v{vT}, 2, v{vART}")
    I(f"v_add_u32 v{vART}, 2, v{vART}")
    loop(0)
    I("s_branch K2_DONE")
    L("K2_OVF")
    I(f"s_mov_b32 s{sSKIP}, 0")
    I(f"s_mov_b32 s{sEND}, s{sL}")
    pads(lane, vP, vP+1, vP+2)
    I("s_branch K2_PADS0")
    xr, xe, xa, xk = vX + 4, vX + 8, vX + 12, vACC + 56
    xt, xo = vACC + 60, vACC + 61
    def xmask(i):
        I(f"v_lshrrev_b32 v{xo}, 16, v{vH+i}")
        I(f"v_cmp_lt_u32 vcc, v{xt}, v{xo}")
    L("K2_XT1")
    I(f"s_mov_b32 s{sXT}, 1")
    I(f"v_lshrrev_b32 v{xt}, 2, v{k4}")
    I(f"v_add_u32 v{xt}, 31, v{xt}")
    I(f"v_mov_b32 v{xk}, 0x1ffffff0")
    for i in range(4):
        xmask(i)
        I(f"v_and_b32 v{xa+i}, 0xffff, v{vH+i}")
        I(f"v_lshrrev_b32 v{xo}, 5, v{vEB+i}")
        I(f"v_add3_u32 v{xa+i}, v{xa+i}, v{xo}, v{xt}")
        I(f"v_cndmask_b32 v{xa+i}, v{xk}, v{xa+i}, vcc")
        I(f"v_lshlrev_b32 v{xr+i}, 2, v{xa+i}")
        I(f"v_lshlrev_b32 v{xe+i}, 1, v{xa+i}")
        I(f"s_mov_b32 s10, {WS_RECS}")
        I(f"s_mov_b32 s11, {WS_LEID}")
        I(f"buffer_load_dword v{xr+i}, v{xr+i}, s[{sWS}:{sWS+3}], s10 offen sc1")
        I(f"buffer_load_ushort v{xe+i}, v{xe+i}, s[{sWS}:{sWS+3}], s11 offen sc1")
    I("s_waitcnt vmcnt(0)")
    for i in range(4):
        xmask(i)
        I(f"v_lshrrev_b32 v{xa+i}, 20, v{xr+i}")
        I(f"v_and_b32 v{xr+i}, {RMASK:#x}, v{xr+i}")
        I(f"v_lshl_add_u32 v{xe+i}, v{xe+i}, 5, v{vEB+i}")
        I("s_mov_b64 exec, vcc")
        I(f"ds_add_rtn_u32 v{xk+i}, v{xa+i}, v{one} offset:{HIST}")
        I("s_mov_b64 exec, -1")
    I("s_branch K2_XT1R")
    L("K2_XT2")
    for i in range(4):
        I(f"ds_read_u16 v{xa+i}, v{xa+i} offset:{HIST + 2}")
    I("s_waitcnt lgkmcnt(0)")
    for i in range(4):
        xmask(i)
        I(f"v_add_u32 v{xa+i}, v{xa+i}, v{xk+i}")
        I("s_mov_b64 exec, vcc")
        I(f"ds_write2st64_b32 v{xa+i}, v{xr+i}, v{xe+i} offset0:{R0//256} offset1:{R1//256}")
        I("s_mov_b64 exec, -1")
    I("s_branch K2_PADS0")
    SB = 448
    t0, t1, t2, t3 = vP, vP+1, vP+2, vP+3
    L("K2_SLOW")
    I(f"s_add_u32 s{sR0}, s{sR0}, {SB}")
    I(f"s_cmp_lt_u32 s{sR0}, s{sCNT}")
    I("s_cbranch_scc1 K2_BATCH")
    L("K2_FIND")
    I(f"s_cmp_lg_u64 s[{sMSK}:{sMSK+1}], 0")
    I("s_cbranch_scc1 K2_GOT")
    I(f"s_add_u32 s{sCI}, s{sCI}, 1")
    I(f"s_cmp_ge_u32 s{sCI}, 4")
    I("s_cbranch_scc1 K2_EPI")
    I(f"s_lshl_b32 s10, s{sCI}, 8")
    I(f"v_lshl_add_u32 v{vT}, v{lane}, 2, s10")
    I(f"ds_read_u16 v{vT}, v{vT} offset:{HDR+2}")
    I("s_waitcnt lgkmcnt(0)")
    I(f"v_cmp_lt_u32 s[{sMSK}:{sMSK+1}], s{sSKIP}, v{vT}")
    I("s_nop 3")
    I("s_branch K2_FIND")
    L("K2_GOT")
    I(f"s_ff1_i32_b64 s10, s[{sMSK}:{sMSK+1}]")
    I(f"s_bitset0_b64 s[{sMSK}:{sMSK+1}], s10")
    I(f"s_lshl_b32 s11, s{sCI}, 6")
    I(f"s_add_u32 s{sCUR}, s10, s11")
    I(f"s_lshl_b32 s10, s{sCUR}, 2")
    I(f"v_mov_b32 v{vT}, s10")
    I(f"ds_read_b32 v{vT}, v{vT} offset:{HDR}")
    I("s_waitcnt lgkmcnt(0)")
    I(f"v_readfirstlane_b32 s10, v{vT}")
    I("s_nop 3")
    I(f"s_lshr_b32 s{sCNT}, s10, 16")
    I(f"s_and_b32 s{sST}, s10, 0xffff")
    I(f"s_mov_b32 s{sR0}, s{sSKIP}")
    L("K2_BATCH")
    I("s_barrier")
    I(f"v_and_b32 v{t0}, 7, v{lane}")
    I(f"v_mul_u32_u24 v{t1}, {LCAP*4}, v{t0}")
    I(f"v_add_u32 v{t1}, {R0}, v{t1}")
    I(f"v_lshlrev_b32 v{t0}, 2, v{t0}")
    I(f"ds_write_b32 v{t0}, v{t1} offset:{CNT}")
    I(f"v_add_u32 v{t0}, s{sR0}, v{tid}")
    I(f"s_mul_i32 s10, s{sB}, {RS // CELLB}")
    I(f"s_add_u32 s10, s10, s{sCUR}")
    I(f"s_mul_i32 s10, s10, {CELLB}")
    I(f"s_mul_i32 s11, s{sCUR}, {CH}")
    I(f"s_add_u32 s11, s11, s{sST}")
    I(f"v_cmp_gt_u32 vcc, 31, v{t0}")
    I(f"s_lshl_b32 s{sTMP}, s11, 2")
    I(f"s_add_u32 s{sTMP}, s{sTMP}, {WS_RECS}")
    I(f"v_mov_b32 v{t2}, s{sTMP}")
    I(f"s_add_u32 s{sTMP}, s10, 4")
    I(f"v_mov_b32 v{t1}, s{sTMP}")
    I(f"v_cndmask_b32 v{t1}, v{t2}, v{t1}, vcc")
    I(f"v_lshl_add_u32 v{t1}, v{t0}, 2, v{t1}")
    I(f"s_lshl_b32 s{sTMP}, s11, 1")
    I(f"s_add_u32 s{sTMP}, s{sTMP}, {WS_LEID}")
    I(f"v_mov_b32 v{t2}, s{sTMP}")
    I(f"s_lshr_b32 s10, s{sB}, 1")
    I(f"s_mul_i32 s10, s10, {RS // CELLB}")
    I(f"s_add_u32 s10, s10, s{sCUR}")
    I("s_lshl_b32 s10, s10, 1")
    I(f"s_and_b32 s{sTMP}, s{sB}, 1")
    I(f"s_add_u32 s10, s10, s{sTMP}")
    I("s_lshl_b32 s10, s10, 6")
    I(f"s_add_u32 s{sTMP}, s10, {WS_LCELL + 2}")
    I(f"v_mov_b32 v{t3}, s{sTMP}")
    I(f"v_cndmask_b32 v{t3}, v{t2}, v{t3}, vcc")
    I(f"v_lshl_add_u32 v{t3}, v{t0}, 1, v{t3}")
    I(f"s_add_u32 s10, s{sR0}, {SB}")
    I(f"s_min_u32 s10, s10, s{sCNT}")
    I(f"v_cmp_gt_u32 vcc, s10, v{t0}")
    I(f"v_mov_b32 v{t2}, 0x7ffffff0")
    I(f"s_mul_i32 s{sTMP}, s{sCUR}, {CH*32}")
    I(f"v_cndmask_b32 v{t1}, v{t2}, v{t1}, vcc")
    I(f"v_cndmask_b32 v{t3}, v{t2}, v{t3}, vcc")
    I(f"buffer_load_dword v{t1}, v{t1}, s[{sWS}:{sWS+3}], 0 offen sc1")
    I(f"buffer_load_ushort v{t3}, v{t3}, s[{sWS}:{sWS+3}], 0 offen sc1")
    I("s_waitcnt lgkmcnt(0)")
    I("s_barrier")
    I("s_and_saveexec_b64 s[10:11], vcc")
    I("s_waitcnt vmcnt(0)")
    I(f"v_bfe_u32 v{t0}, v{t1}, 20, 10")
    I(f"ds_read_b32 v{t0}, v{t0} offset:{MAP}")
    I(f"v_mov_b32 v{t2}, 4")
    I(f"v_and_b32 v{t1}, {RMASK:#x}, v{t1}")
    I(f"v_and_b32 v{t3}, 0xfff, v{t3}")
    I(f"v_lshl_add_u32 v{t3}, v{t3}, 5, s{sTMP}")
    I("s_waitcnt lgkmcnt(0)")
    I(f"ds_add_rtn_u32 v{t0}, v{t0}, v{t2} offset:{CNT}")
    I("s_waitcnt lgkmcnt(0)")
    I(f"ds_write2st64_b32 v{t0}, v{t1}, v{t3} offset0:0 offset1:{(R1-R0)//256}")
    I("s_mov_b64 exec, -1")
    I("s_waitcnt lgkmcnt(0)")
    I("s_barrier")
    I(f"s_lshl_b32 s10, s{sW}, 2")
    I(f"v_mov_b32 v{t0}, s10")
    I(f"ds_read_b32 v{t0}, v{t0} offset:{CNT}")
    for i in range(8): I(f"v_mov_b32 v{vT2+i}, 0")
    listaddr(lane, t1, t2)
    I("s_waitcnt lgkmcnt(0)")
    I(f"v_readfirstlane_b32 s{sEND}, v{t0}")
    I("s_nop 3")
    pads(lane, t0, t1, t2)
    L("K2_LAST")
    I("s_branch K2_GO")

def regs_of(tok):
    tok = tok.strip()
    m = re.fullmatch(r"v\[(\d+):(\d+)\]", tok)
    if m: return list(range(int(m.group(1)), int(m.group(2)) + 1))
    m = re.fullmatch(r"v(\d+)", tok)
    if m: return [int(m.group(1))]
    return []
def parse(ins):
    op, _, rest = ins.partition(" ")
    ops = [o.strip().split(" ")[0] for o in rest.split(",")] if rest else []
    if op.startswith("v_mfma"):
        return "mfma", regs_of(ops[0]), regs_of(ops[1]) + regs_of(ops[2]), regs_of(ops[3])
    if op.startswith("v_smfmac"):
        return "mfma", regs_of(ops[0]), regs_of(ops[1]) + regs_of(ops[2]) + regs_of(ops[3]), regs_of(ops[0])
    if op.startswith("v_"):
        k = "trans" if op in ("v_exp_f32", "v_rcp_f32") else "valu"
        return k, regs_of(ops[0]), sum((regs_of(o) for o in ops[1:]), []), []
    if op.startswith("ds_read"):
        return "ds", regs_of(ops[0]), regs_of(ops[1]), []
    if op.startswith("buffer_load"):
        return "vm", [], regs_of(ops[0]) + regs_of(ops[1]), []
    return "other", [], [], []
def check_body(body):
    seq = [b for b in body if not b.endswith(":")]
    for skip_dma in (False, True):
        s2 = []
        sk = False
        for b in body:
            if skip_dma and b.startswith("s_cbranch_scc0 K2_ND"):
                s2.append(b); sk = True; continue
            if b.startswith("K2_ND"): sk = False
            if b.endswith(":") or sk: continue
            s2.append(b)
        seq = s2 * 3
        last = {}
        lastc = {}
        pend = []
        for i, ins in enumerate(seq):
            k, d, s, c = parse(ins)
            m = re.search(r"lgkmcnt\((\d+)\)", ins)
            if m:
                n = int(m.group(1))
                while len(pend) > n: pend.pop(0)
            pr = set(sum(pend, []))
            for r in d + s + c:
                assert r not in pr or i < len(s2), f"pending LDS reg v{r} used by {ins} @{i}"
            for r in s + c + d:
                if r not in last: continue
                pk, pi = last[r]; dist = i - pi - 1
                if pk == "mfma":
                    if k == "mfma" and r in c and r not in s: need = 0
                    elif k == "mfma" and r in d and r not in s: need = 0
                    else: need = 12
                elif pk in ("valu", "trans") and k == "mfma" and r in s + c: need = 2
                elif pk == "trans" and k in ("valu", "mfma", "ds", "vm") and r in s: need = 1
                else: need = 0
                assert dist >= need, f"hazard {pk}->{k} v{r} dist {dist} need {need}: {ins} @{i}"
            if k in ("valu", "trans"):
                for r in d:
                    if r in lastc: assert i - lastc[r] - 1 >= 7, f"srcC WAR {ins}"
            for r in c: lastc[r] = i
            for r in d: last[r] = (k, i)
            if k == "ds":
                pend.append(d); assert len(pend) <= 15

hdr = open("/code/" + NAME + ".s.ref").read().split("\n")
for l in hdr:
    if l.startswith("; Override"): break
    out.append(l)
out.append(f"; @launch grid=(256,1,1) block=(512,1,1) lds={K2_LDS}")
emit('.amdgcn_target "amdgcn-amd-amdhsa--gfx950"\n.text')
k2()
KL = [(KN, 256, 102)]
emit('.section .rodata,"a"')
for name, vg, sg in KL:
    emit(f""".p2align 6
.amdhsa_kernel {name}
  .amdhsa_next_free_vgpr {vg}
  .amdhsa_next_free_sgpr {sg}
  .amdhsa_accum_offset {vg}
  .amdhsa_group_segment_fixed_size 0
  .amdhsa_kernarg_size 96
  .amdhsa_user_sgpr_count 2
  .amdhsa_user_sgpr_kernarg_segment_ptr 1
  .amdhsa_system_sgpr_workgroup_id_x 1
.end_amdhsa_kernel""")
path = sys.argv[1] if len(sys.argv) > 1 else "/code/" + NAME + ".s"
open(path, "w").write("\n".join(out) + "\n")
print("wrote", path, len(out), "lines; lds", K2_LDS)
```

```python
import sys, re, math

NAME = "standalone__edge_featured_mpnn_gatedgcn__graph"
OPT = dict(kv.split("=") for kv in sys.argv[2:])
def opt(k, d):
    v = OPT.get(k)
    if v is None: return d
    return type(d)(v)

N, E = 50000, 800000
NCH, CH = 256, 3125
NB, BN = 256, 196
CELLB = 128
RS = 257 * CELLB
WS_CELLS = 0
WS_LCELL = NB * RS
LROW = 160
WS_RECS = 0xD00000
WS_LEID = 0x1100000
WS_EPOCH = 0x1300000
WS_USED = WS_EPOCH + 128
WI_U, WI_B, WI_V, WI_A, WI_C = 0, 8192, 16384, 24576, 32768
RMASK = 0x07c0ffff
LOG2E = 1.4426950408889634
import struct
def f2u(f): return struct.unpack("<I", struct.pack("<f", f))[0]

out = []
def emit(s=""):
    for l in s.strip("\n").split("\n"):
        out.append(l.rstrip())
def I(s): out.append("    " + s)
def L(s): out.append(s + ":")
def C(s): out.append("    ; " + s)

def srd(d, lo, hi, size, add=None):
    if add is None:
        I(f"s_mov_b32 s{d}, s{lo}")
        I(f"s_mov_b32 s{d+1}, s{hi}")
    else:
        I(f"s_add_u32 s{d}, s{lo}, {add}")
        I(f"s_addc_u32 s{d+1}, s{hi}, 0")
    I(f"s_mov_b32 s{d+2}, {size}")
    I(f"s_mov_b32 s{d+3}, 0x20000")

def wave_scan(v, fill=None, half=False):
    def gap():
        if fill and len(fill) >= 2:
            I(fill.pop(0)); I(fill.pop(0))
        else: I("s_nop 1")
    for sh in (1, 2, 4, 8):
        gap()
        I(f"v_add_u32_dpp v{v}, v{v}, v{v} row_shr:{sh} row_mask:0xf bank_mask:0xf bound_ctrl:0")
    gap()
    I(f"v_add_u32_dpp v{v}, v{v}, v{v} row_bcast:15 row_mask:0xa bank_mask:0xf")
    if half: return
    gap()
    I(f"v_add_u32_dpp v{v}, v{v}, v{v} row_bcast:31 row_mask:0xc bank_mask:0xf")

TS = opt("ts", 0)
WS_TS = 0x3000000
SMAP = {1: {0: 0, 'd': 1, 'i': 2, 'w': 3, 2: 4, 5: 5, 6: 6, 7: 7},
        5: {0: 0, 'w': 1, 2: 2, 'a': 3, 'b': 4, 'c': 5, 3: 6, 7: 7},
        6: {0: 0, 'p': 1, 'q': 2, 'd': 3, 'i': 4, 'o': 5, 'k': 6, 7: 7},
        8: {0: 0, 'i': 1, 'w': 2, 1: 3, 2: 4, 3: 5, 7: 7},
        7: {0: 0, 'k': 1, 'w': 2, 1: 3, 's': 4, 2: 5, 3: 6, 7: 7}}
def stamp(i):
    if TS in SMAP:
        i = SMAP[TS].get(i)
        if i is None: return
    elif isinstance(i, str): return
    if TS == 3:
        if i not in (0, 5, 6, 7): return
        I("s_memtime s[98:99]")
        I("s_waitcnt lgkmcnt(0)")
        I(f"s_mov_b32 s{88+{5:1,6:2,0:3,7:4}[i]}, s98")
    if TS:
        I("s_memrealtime s[98:99]" if TS != 2 else "s_memtime s[98:99]")
        I("s_waitcnt lgkmcnt(0)")
        I(f"s_mov_b32 s{88+i}, s98")
def stamp_out(n, wslo, swave, nw, off, v):
    if not TS: return
    I("s_waitcnt vmcnt(0)")
    stamp(7)
    I("s_mov_b64 exec, 1")
    I(f"s_mul_i32 s87, s2, {nw}")
    I(f"s_add_u32 s87, s87, s{swave}")
    I("s_lshl_b32 s87, s87, 5")
    I(f"s_add_u32 s87, s87, {WS_TS + off}")
    I(f"v_mov_b32 v{v}, s87")
    for i in range(n):
        I(f"v_mov_b32 v{v+1}, s{88+i}")
        I(f"global_store_dword v{v}, v{v+1}, s[{wslo}:{wslo+1}] offset:{4*i}")
K1_LD = opt("k1ld", "nt")
def pol(p): return (" " + p.replace("_", " ")) if p else ""

SM1 = opt("sm1", 1)
TAB, ZROW, CNT, FLAG, HIST, MAP, HDR = 0, 2048, 2112, 2176, 2304, 6400, 7424
T1B = 8448
LCAP = 544
LMAX = LCAP - 64
LUT = 8448 + 2304
R0 = LUT + 4096
R1 = R0 + 8 * LCAP * 4
assert R1 % 256 == 0 and R0 % 256 == 0
WL = R1 + 8 * LCAP * 4
STG = WL + 34816
SLOT = 5184
DT = 264
PRIV = 4352
WST = SLOT + PRIV
K2_LDS = STG + 8 * WST
assert K2_LDS <= 163840, K2_LDS

vWB, vWV, vWC, vAT = 0, 32, 64, 72
vACC = 88
vX, vE, vT1, vT2 = 152, 168, 172, 180
vP, vQ, vR = 188, 204, 220
vQD = 236
vR1 = 240
vCP, vCH, vAX, vAE, vC1, vC2, vARX, vART, vARP = 241, 242, 243, 244, 245, 246, 247, 248, 249
vL1 = 250
vARE = 251
vT = 252
DEN = lambda ft: vACC + 32 * ft
NUM = lambda ft: vACC + 32 * ft + 16
def rr(a, n): return f"v[{a}:{a+n-1}]"
def mfma(d, a, b, c=None):
    return f"v_mfma_f32_32x32x16_bf16 {rr(d,16)}, {rr(a,4)}, {rr(b,4)}, " + ("0" if c is None else rr(c, 16))

K2_XP = opt("k2x", "")
K2_EP = opt("k2e", "")
K2_CP = opt("k2c", "")
K2_OP = opt("k2o", "sc1")

sW, sB = 3, 12
sX, sEP, sWS, sOUT = 16, 20, 24, 28
sCEL, sWI = 32, 36
sM = 40
sT, sN, sSTG, s128, sL, sSKIP, sMORE = 72, 73, 74, 75, 76, 77, 78
sCI, sCUR, sR0, sCNT, sST, sMSK = 79, 80, 81, 82, 83, 84
sTMP = 86
sWIN = 96

def dma_tile(par):
    r = []
    for i in range(4):
        r.append(f"s_add_u32 m0, s{sSTG}, {par*SLOT + i*1040}")
        r.append(f"v_mad_u32_u16 v{vQD+i}, v{vQD+i}, s{s128}, v{vCP}")
        r.append(f"buffer_load_dwordx4 v{vQD+i}, s[{sX}:{sX+3}], 0 offen{pol(K2_XP)} lds")
    r.append(f"s_add_u32 m0, s{sSTG}, {par*SLOT + 4160}")
    r.append(f"v_add_u32 v{vR1}, v{vR1}, v{vCH}")
    r.append(f"buffer_load_dwordx4 v{vR1}, s[{sEP}:{sEP+3}], 0 offen{pol(K2_EP)} lds")
    return r

def valu_stream(G, H):
    s = []
    ex = [(f"v_exp_f32 v{G+i}, v{G+i}", 8) for i in range(16)]
    ad = [(f"v_add_f32 v{G+i}, 1.0, v{G+i}", 4) for i in range(16)]
    rc = [(f"v_rcp_f32 v{G+i}, v{G+i}", 8) for i in range(16)]
    mu = [(f"v_mul_f32 v{H+i}, v{G+i}, v{H+i}", 4) for i in range(16)]
    ce = [(f"v_cvt_pk_bf16_f32 v{G+i}, v{G+2*i}, v{G+2*i+1}", 4) for i in range(8)]
    cm = [(f"v_cvt_pk_bf16_f32 v{H+i}, v{H+2*i}, v{H+2*i+1}", 4) for i in range(8)]
    PK = opt("pk", 0)
    pa = [(f"v_pk_add_f32 v[{G+2*i}:{G+2*i+1}], v[{G+2*i}:{G+2*i+1}], 1.0 op_sel_hi:[1,0]", 4) for i in range(8)]
    pm = [(f"v_pk_mul_f32 v[{H+2*i}:{H+2*i+1}], v[{G+2*i}:{G+2*i+1}], v[{H+2*i}:{H+2*i+1}]", 4) for i in range(8)]
    if PK & 2:
        s += ex[:8] + ex[8:10] + pa[:4] + ex[10:] + rc[:2] + pa[4:] + rc[2:]
    elif PK & 4:
        s += ex + [("s_nop 0", 0)] + pa + rc
    else:
        for i in range(16 + 4):
            if i < 16: s.append(ex[i])
            if 0 <= i - 2 < 16: s.append(ad[i-2])
            if 0 <= i - 4 < 16: s.append(rc[i-4])
    s += pm if PK & 1 else mu
    s += cm + ce
    return s

def interleave(valu, mf, extra, pos, spacing=opt('sp', 28)):
    res = []
    cum = 0; k = 0
    for ins, c in valu:
        while k < len(mf) and cum >= pos[k] * spacing:
            res.extend(extra.get(('b', k), []))
            res.append(mf[k])
            res.extend(extra.get(('a', k), []))
            k += 1
        res.append(ins); cum += c
    assert k == len(mf)
    return res

def g_mfmas(D, ft):
    m = [mfma(D, vE, vWC + 4*ft)]
    if SM1:
        m += [mfma(D, vX + 4*q, vWB + 16*ft + 4*q, D) for q in range(4)]
        m += [f"v_smfmac_f32_32x32x32_bf16 {rr(D,16)}, {rr(vT1,4)}, {rr(vAT+8*ft,8)}, v{vT1+4}"]
        return m
    m += [mfma(D, vT1 + 4*s, vAT + 8*ft + 4*s, D) for s in range(2)]
    m += [mfma(D, vX + 4*q, vWB + 16*ft + 4*q, D) for q in range(4)]
    return m
def h_mfmas(D, ft):
    return [mfma(D, vX + 4*q, vWV + 16*ft + 4*q, None if q == 0 else D) for q in range(4)]
def s_mfmas(acc, src, sp, par):
    if sp: return [f"v_smfmac_f32_32x32x32_bf16 {rr(acc,16)}, {rr(vT2,4)}, {rr(src,8)}, v{vT2+4+par}"]
    return [mfma(acc, vT2 + 4*s, src + 4*s, acc) for s in range(2)]
def t1_reads():
    return [f"ds_read_b128 {rr(vT1,4)}, v{vL1} offset:{T1B}", f"ds_read_b32 v{vT1+4}, v{vL1} offset:{T1B+16}"]

def layout(sp):
    n = 1 if sp else 2
    H0, DE, E = n, n + 4, 2*n + 4
    last = E + 5
    pos = [k * 12.0 / (last - 1) for k in range(last)] + [14]
    if sp and opt("pos", ""): pos = [float(x) / 28 for x in opt("pos", "").split("_")]
    elif opt("pk", 0): pos = [p * (448 - 32*bin(opt("pk", 0)).count("1") - 56) / 392. for p in pos]
    return H0, DE + n - 1, E, last, pos

def phaseA(par, sp):
    o = par * 128
    H0, DL_, E, last, pos = layout(sp)
    mf = s_mfmas(NUM(1), vQ, sp, par^1) + h_mfmas(vQ, 0) + s_mfmas(DEN(1), vR, sp, par^1) + g_mfmas(vR, 1)
    ex = {}
    lab = f"ds_read_u16 v{vL1}, v{vARP} offset:{o + 128 + 2}"
    if sp:
        ex[('a', 0)] = [f"ds_read_b32 v{vT2+4+par}, v{vART} offset:{par*DT}", lab]
        ex[('a', H0+3)] = ["s_waitcnt lgkmcnt(0)", f"v_lshrrev_b32 v{vQD}, 16, v{vT2+4+par}", f"v_add_u32 v{vL1}, v{vL1}, v{vC1}"]
        ex[('a', DL_)] = [f"ds_read_b128 {rr(vT2,4)}, v{vQD} offset:{LUT}"]
    else:
        ex[('a', 0)] = [f"ds_read_u16 v{vQD+u}, v{vART} offset:{o + 8*u}" for u in range(4)] + [lab]
        ex[('a', H0+3)] = ["s_waitcnt lgkmcnt(0)"] + [f"v_add_u32 v{vQD+u}, v{vQD+u}, v{vC2}" for u in range(4)] + [f"v_add_u32 v{vL1}, v{vL1}, v{vC1}"]
        ex[('a', DL_)] = [f"ds_read_b64_tr_b16 v[{vT2+2*u}:{vT2+2*u+1}], v{vQD+u}" for u in range(4)]
    ex[('a', last)] = t1_reads() + [f"ds_read_b128 {rr(vQD,4)}, v{vARX} offset:{o + 2*128}",
                                    f"ds_read_b32 v{vR1}, v{vARE} offset:{o + 2*128}",
                                    f"s_add_u32 s{sT}, s{sT}, 1"]
    return interleave(valu_stream(vP, vQ), mf, ex, pos)

def phaseB(par, sp):
    H0, DL_, E, last, pos = layout(sp)
    mf = s_mfmas(NUM(0), vQ, sp, par) + h_mfmas(vQ, 1) + s_mfmas(DEN(0), vP, sp, par) + g_mfmas(vP, 0)
    ex = {}
    ex[('b', 0)] = ["s_waitcnt lgkmcnt(4)"]
    ex[('b', H0)] = ["s_waitcnt vmcnt(0)", f"ds_read_b128 {rr(vE,4)}, v{vAE}"]
    for q in range(4):
        ex[('a', H0+q)] = [f"ds_read_b128 {rr(vX+4*q,4)}, v{vAX} offset:{16*q}"]
    ex[('b', E)] = ["s_waitcnt lgkmcnt(4)"]
    for q in range(4): ex[('b', E+1+q)] = [f"s_waitcnt lgkmcnt({3-q})"]
    ex[('a', E+4)] = [f"s_cmp_lt_u32 s{sT}, s{sN}",
                      f"s_cbranch_scc0 K2_ND_{par}{sp}"] + dma_tile(0) + [f"K2_ND_{par}{sp}:"]
    return interleave(valu_stream(vR, vQ), mf, ex, pos)

sF0, sF1, sEND = 13, 14, 15
sXT = 97
sTH = 4
PRIO = opt("prio", 1)

def listaddr(lane, t0, t3):
    I(f"v_bfe_u32 v{t0}, v{lane}, 3, 2")
    I(f"v_lshl_add_u32 v{vARX}, v{t0}, 5, s{sL}")
    I(f"v_lshrrev_b32 v{t0}, 5, v{lane}")
    I(f"v_lshl_add_u32 v{vARX}, v{t0}, 4, v{vARX}")
    I(f"v_and_b32 v{t0}, 3, v{lane}")
    I(f"v_and_b32 v{t3}, 28, v{lane}")
    I(f"v_lshl_add_u32 v{t0}, v{t0}, 5, v{t3}")
    I(f"v_add_u32 v{vARP}, s{sL}, v{t0}")
    I(f"v_lshrrev_b32 v{t3}, 1, v{lane}")
    I(f"v_lshl_add_u32 v{vARE}, v{t3}, 2, s{sL}")
    I(f"v_add_u32 v{vARE}, {R1-R0}, v{vARE}")

vOWN = vT + 1
def pads(lane, t0, t1, t2):
    W2 = f"offset0:0 offset1:{(R1-R0)//256}"
    I(f"v_mov_b32 v{t1}, 0x08000000")
    I(f"v_mov_b32 v{t2}, 0")
    I(f"v_lshl_add_u32 v{t0}, v{lane}, 2, s{sEND}")
    I(f"s_sub_u32 s{sN}, s{sEND}, s{sL}")
    I(f"ds_write2st64_b32 v{t0}, v{t1}, v{t2} {W2}")
    I(f"s_add_u32 s{sN}, s{sN}, 127")
    I(f"s_and_b32 s10, s{sN}, -128")
    I(f"s_lshr_b32 s{sN}, s{sN}, 7")
    I(f"v_add_u32 v{t0}, s10, v{vARP}")
    I(f"ds_write2st64_b32 v{t0}, v{vOWN}, v{t2} {W2}")

KN = NAME + "_kernel"
P_HIST, P_HDR = MAP, R0
P_IIMG = STG
P_CIMG = P_IIMG + 128 * LROW
assert P_CIMG + 256 * LROW <= K2_LDS and P_HDR + 1024 <= WL
sSA, sSB, sEPN, sSPIN = 36, 37, 100, 101
def k2():
    emit(f"""
.globl {KN}
.p2align 8
.type {KN},@function
{KN}:""")
    I("s_cmp_ge_u32 s2, 256")
    I("s_cbranch_scc1 K2_END")
    stamp(0)
    KA = sM
    I(f"s_load_dwordx4 s[{KA+4}:{KA+7}], s[0:1], 16")
    I(f"s_load_dwordx2 s[8:9], s[0:1], 88")
    I(f"s_load_dwordx4 s[{KA}:{KA+3}], s[0:1], 0")
    I(f"s_load_dwordx8 s[{KA+8}:{KA+15}], s[0:1], 32")
    I(f"s_load_dwordx4 s[{KA+16}:{KA+19}], s[0:1], 64")
    tid, lane = 255, 254
    CPF = opt("cpf", 192)
    if CPF:
        I(f"s_getpc_b64 s[{sTMP}:{sTMP+1}]")
        L("K2_PC")
        I(f"v_lshlrev_b32 v{vT}, 7, v0")
        I(f"v_min_u32 v{vT}, K2_LAST-K2_PC, v{vT}")
        I(f"v_cmp_gt_u32 vcc, {CPF}, v0")
        I("s_cbranch_vccz K2_NOCPF")
        I(f"global_load_dword v{vT+1}, v{vT}, s[{sTMP}:{sTMP+1}]")
        L("K2_NOCPF")
    vC = vACC
    vA = vACC + 16
    vLE = vACC + 32
    hh = vACC + 40
    vRK = vR
    vH = vQ
    vMIN, vMAX = vQ + 8, vQ + 12
    u = lambda i: vP + i
    k4, ecb, hda, one, l16 = vE, vE + 1, vE + 2, vE + 3, vT1
    pD, pS, pH, pK, pA, pB, pI, pW = 8, 16, 24, 32, 40, 48, 56, 64
    I(f"v_mov_b32 v{tid}, v0")
    I(f"v_lshrrev_b32 v{u(0)}, 6, v0")
    I(f"v_and_b32 v{lane}, 63, v0")
    I(f"v_readfirstlane_b32 s7, v{u(0)}")
    I("s_and_b32 s10, s2, 7")
    I("s_lshr_b32 s11, s2, 3")
    I("s_lshl_b32 s10, s10, 5")
    I(f"s_add_u32 s{sB}, s10, s11")
    I(f"s_mul_i32 s13, s{sB}, {CH*4}")
    I(f"v_lshlrev_b32 v{u(1)}, 4, v0")
    I(f"v_lshlrev_b32 v1, 3, v0")
    I(f"v_lshlrev_b32 v2, 2, v0")
    I(f"v_mov_b32 v3, 0")
    I(f"v_and_b32 v4, 0x3fc, v2")
    I(f"ds_write_b32 v4, v3 offset:{P_HIST}")
    ASYM = opt("asym", 16)
    I(f"s_and_b32 s10, s7, 3")
    I(f"s_lshr_b32 s{sW}, s7, 2")
    I(f"s_lshl1_add_u32 s{sW}, s10, s{sW}")
    I(f"s_xor_b32 s{sW}, s{sW}, 1")
    I(f"s_movk_i32 s14, 8192")
    I(f"s_movk_i32 s15, 12288")
    I("s_waitcnt lgkmcnt(0)")
    stamp('p')
    vq = []
    def younger(tag): return len(vq) - 1 - max(i for i, t in enumerate(vq) if t == tag)
    q0, q1 = 64, 68
    srd(q0, KA+6, KA+7, CH*4, "s13")
    srd(q1, KA+4, KA+5, CH*4, "s13")
    for r_, q_ in ((pD, q0), (pS, q1)):
        I(f"buffer_load_dwordx4 {rr(r_,4)}, v{u(1)}, s[{q_}:{q_+3}], 0 offen{pol(K1_LD)}")
        I(f"buffer_load_dwordx2 {rr(r_+4,2)}, v1, s[{q_}:{q_+3}], s14 offen{pol(K1_LD)}")
        I(f"buffer_load_dword v{r_+6}, v2, s[{q_}:{q_+3}], s15 offen{pol(K1_LD)}")
        vq += ["D" if r_ == pD else "S"] * 3
    I(f"s_add_u32 s10, s8, {WS_EPOCH}")
    I("s_addc_u32 s11, s9, 0")
    I(f"s_load_dword s{sEPN}, s[10:11], 0")
    I("s_barrier")
    I(f"v_lshrrev_b32 v1, 3, v0")
    I(f"v_lshlrev_b32 v{hda}, 2, v1")
    I(f"v_and_b32 v{u(9)}, 7, v0")
    I(f"v_and_b32 v5, 16, v0")
    I(f"v_lshlrev_b32 v5, 1, v5")
    I(f"v_xor_b32 v5, v5, v{u(1)}")
    WLPOS = len(out)
    mark = len(out)
    srd(sX, KA, KA+1, N*128)
    I(f"s_mul_i32 s11, s{sW}, 49")
    I("s_sub_i32 s11, s11, 7")
    I("s_ashr_i32 s11, s11, 1")
    I(f"s_max_i32 s{sWIN}, s11, 0")
    I(f"s_mul_i32 s11, s{sB}, {BN}")
    I(f"s_add_u32 s{sTMP}, s11, s{sWIN}")
    I(f"v_bfe_u32 v{u(3)}, v{lane}, 3, 2")
    I(f"v_lshrrev_b32 v{u(5)}, 5, v{lane}")
    I(f"v_bfe_u32 v{u(6)}, v{lane}, 4, 1")
    I(f"v_lshlrev_b32 v{u(7)}, 4, v{u(9)}")
    I(f"v_lshlrev_b32 v{u(8)}, 6, v{u(6)}")
    I(f"v_xor_b32 v{vCP}, v{u(7)}, v{u(8)}")
    I(f"v_lshl_add_u32 v{u(6)}, v{u(5)}, 4, v{u(3)}")
    I(f"v_subrev_u32 v{u(6)}, s{sWIN}, v{u(6)}")
    for i in range(4):
        I(f"v_add_u32 v{vX+i}, {8*(i&1) + 4*(i>>1)}, v{u(6)}")
        I(f"v_and_b32 v{vX+i}, 31, v{vX+i}")
        I(f"v_add_u32 v{vX+i}, s{sTMP}, v{vX+i}")
        I(f"v_lshl_add_u32 v{vX+i}, v{vX+i}, 7, v{vCP}")
    def wloads():
        srd(q0, KA+10, KA+11, 8192)
        I(f"buffer_load_dwordx4 {rr(pW,4)}, v5, s[{q0}:{q0+3}], 0 offen"); vq.append("B")
        srd(q1, KA+12, KA+13, 2048)
        I(f"buffer_load_dwordx4 {rr(pW+4,4)}, v5, s[{q1}:{q1+3}], 0 offen"); vq.append("B")
        I(f"s_lshl_b32 s10, s7, 10")
        for kp, off in ((KA+8, WI_A), (KA+16, WI_V), (KA+14, WI_U)):
            I(f"s_mov_b32 s{q0}, s{kp}")
            I(f"s_mov_b32 s{q0+1}, s{kp+1}")
            I(f"s_add_u32 m0, s10, {WL + off}")
            I("s_nop 0")
            I(f"buffer_load_dwordx4 v5, s[{q0}:{q0+3}], 0 offen lds"); vq.append("W")
    def xloads():
        for i in range(4):
            I(f"s_add_u32 m0, s{sSTG}, {SLOT + i*1040}")
            I("s_nop 0")
            I(f"buffer_load_dwordx4 v{vX+i}, s[{sX}:{sX+3}], 0 offen lds"); vq.append("X")
    srd(sEP, KA+2, KA+3, E*32)
    srd(sOUT, KA+18, KA+19, N*128)
    srd(sWS, 8, 9, WS_USED)
    I(f"v_lshlrev_b32 v{u(15)}, 5, v{hda}")
    I(f"v_lshl_add_u32 v{u(15)}, v{u(9)}, 3, v{u(15)}")
    I(f"v_lshrrev_b32 v{u(6)}, 5, v{tid}")
    I(f"v_and_b32 v{u(7)}, 15, v{tid}")
    I(f"v_cmp_eq_u32 vcc, v{u(6)}, v{u(7)}")
    I(f"v_and_b32 v{u(6)}, 16, v{tid}")
    I(f"v_mov_b32 v{u(7)}, 0x3f80")
    I(f"v_lshlrev_b32 v{u(7)}, v{u(6)}, v{u(7)}")
    I(f"v_cndmask_b32 v{u(7)}, 0, v{u(7)}, vcc")
    I(f"v_lshlrev_b32 v{u(6)}, 2, v{tid}")
    I(f"v_mov_b32 v{u(8)}, 0")
    I(f"ds_write_b32 v{u(6)}, v{u(7)}")
    if SM1:
        I(f"v_bfe_u32 v{u(7)}, v{tid}, 3, 1")
        I(f"v_and_b32 v{u(13)}, 7, v{tid}")
        I(f"v_lshl_add_u32 v{u(7)}, v{u(7)}, 2, v{u(13)}")
        I(f"v_lshrrev_b32 v{u(12)}, 6, v{tid}")
        I(f"v_cmp_eq_u32 vcc, v{u(7)}, v{u(12)}")
        I(f"v_bfe_u32 v{u(12)}, v{tid}, 4, 2")
        I(f"v_mov_b32 v{u(7)}, 0x3f80")
        I(f"v_cndmask_b32 v{u(7)}, 0, v{u(7)}, vcc")
        I(f"v_cmp_lt_u32 vcc, 3, v{u(13)}")
        I(f"v_mul_u32_u24 v{u(12)}, 0x5555, v{u(12)}")
        I(f"v_and_b32 v{u(13)}, 60, v{u(6)}")
        I(f"v_cndmask_b32 v{u(7)}, v{u(7)}, v{u(12)}, vcc")
        I(f"ds_write_b32 v{u(6)}, v{u(7)} offset:{T1B}")
        I(f"ds_write_b32 v{u(13)}, v{u(8)} offset:{T1B + 2048}")
    I(f"ds_write_b32 v{u(6)}, v{u(8)} offset:{ZROW}")
    I(f"ds_write2st64_b32 v{u(6)}, v{u(8)}, v{u(8)} offset0:{HIST//256} offset1:{HIST//256 + 8}")
    I(f"s_movk_i32 s{s128}, 128")
    I(f"s_mul_i32 s{sSTG}, s{sW}, {WST}")
    I(f"s_add_u32 s{sSTG}, s{sSTG}, {STG}")
    I(f"s_movk_i32 s{sSKIP}, 39")
    I(f"s_mov_b32 s{sXT}, 0")
    I(f"v_bfe_u32 v{u(6)}, v{lane}, 4, 1")
    I(f"v_and_b32 v{vCH}, 1, v{lane}")
    I(f"v_lshlrev_b32 v{vCH}, 4, v{vCH}")
    I(f"v_lshlrev_b32 v{vC1}, 5, v{u(5)}")
    I(f"v_and_b32 v{u(7)}, 3, v{lane}")
    I(f"v_lshlrev_b32 v{u(7)}, 3, v{u(7)}")
    I(f"v_lshl_add_u32 v{vC2}, v{u(6)}, 5, v{u(7)}")
    I(f"v_bfe_u32 v{u(8)}, v{lane}, 2, 2")
    I(f"v_mul_u32_u24 v{u(8)}, 1040, v{u(8)}")
    I(f"v_lshl_add_u32 v{u(8)}, v{u(6)}, 9, v{u(8)}")
    I(f"v_lshl_add_u32 v{u(8)}, v{u(7)}, 4, v{u(8)}")
    I(f"v_bfe_u32 v{u(6)}, v{lane}, 1, 1")
    I(f"v_xor_b32 v{u(6)}, v{u(6)}, v{u(5)}")
    I(f"v_lshl_add_u32 v{u(8)}, v{u(6)}, 6, v{u(8)}")
    I(f"v_add_u32 v{vAX}, s{sSTG}, v{u(8)}")
    I(f"v_bfe_u32 v{u(6)}, v{lane}, 2, 3")
    I(f"v_add_u32 v{u(6)}, v{u(6)}, v{u(7)}")
    I(f"v_lshl_add_u32 v{u(6)}, v{u(6)}, 1, v{u(5)}")
    I(f"v_lshl_add_u32 v{vAE}, v{u(6)}, 4, s{sSTG}")
    I(f"v_add_u32 v{vAE}, 4160, v{vAE}")
    I(f"s_mul_i32 s{sL}, s{sW}, {LCAP*4}")
    I(f"s_add_u32 s{sL}, s{sL}, {R0}")
    listaddr(lane, u(6), u(7))
    I(f"v_subrev_u32 v{u(14)}, s{sWIN}, v{lane}")
    I(f"v_and_b32 v{u(14)}, 31, v{u(14)}")
    I(f"v_add_u32 v{u(14)}, s{sTMP}, v{u(14)}")
    I(f"v_or_b32 v{u(14)}, 0x08000000, v{u(14)}")
    I(f"v_and_b32 v{u(6)}, 1, v{tid}")
    I(f"v_lshl_add_u32 v{u(6)}, v{u(6)}, 2, 1")
    I(f"v_lshrrev_b32 v{u(6)}, v{u(6)}, v{tid}")
    for d in range(2):
        I(f"v_bfe_u32 v{u(12)+d}, v{u(6)}, {2*d}, 2")
        I(f"v_lshl_or_b32 v{u(12)+d}, v{u(12)+d}, 15, v{u(12)+d}")
        I(f"v_and_b32 v{u(12)+d}, 0x10001, v{u(12)+d}")
        I(f"v_mul_u32_u24 v{u(12)+d}, 0x3f80, v{u(12)+d}")
    I(f"v_lshlrev_b32 v{u(6)}, 3, v{tid}")
    I(f"ds_write_b64 v{u(6)}, v[{u(12)}:{u(13)}] offset:{LUT}")
    cb0, cb1, cba = vT1 + 5, vT1 + 6, vT1 + 7
    def dconst(t0, t1):
        I(f"v_and_b32 v{t0}, 1, v{lane}")
        I(f"v_and_b32 v{t1}, 2, v{lane}")
        I(f"v_lshl_add_u32 v{t0}, v{t0}, 2, v{t1}")
        I(f"v_mov_b32 v{t1}, {1 << 20}")
        I(f"v_lshlrev_b32 v{cb0}, v{t0}, v{t1}")
        I(f"v_lshlrev_b32 v{t0}, 1, v{t0}")
        I(f"v_bfe_u32 v{t1}, v{lane}, 3, 2")
        I(f"v_lshlrev_b32 v{t1}, v{t0}, v{t1}")
        I(f"v_lshlrev_b32 v{cb1}, 1, v{cb0}")
        I(f"v_lshl_or_b32 v{cb1}, v{t1}, 2, v{cb1}")
        I(f"v_or_b32 v{cb0}, v{cb0}, v{t1}")
        I(f"v_bfe_u32 v{t0}, v{lane}, 2, 1")
        I(f"v_lshrrev_b32 v{t1}, 5, v{lane}")
        I(f"v_lshl_add_u32 v{t0}, v{t1}, 1, v{t0}")
        I(f"v_mul_u32_u24 v{cba}, {DT//2}, v{t0}")
        I(f"v_add_u32 v{cba}, s{sSTG}, v{cba}")
    dconst(u(6), u(7))
    lo0, hi0, lo1, hi1 = sT, sN, sMSK, sMSK + 1
    I(f"s_mul_i32 s10, s{sW}, 49")
    I(f"s_sub_i32 s{lo0}, s10, 7")
    I(f"s_ashr_i32 s{lo0}, s{lo0}, 1")
    I(f"s_add_i32 s{hi0}, s10, 8")
    I(f"s_ashr_i32 s{hi0}, s{hi0}, 1")
    I(f"s_add_i32 s{lo1}, s10, 42")
    I(f"s_ashr_i32 s{lo1}, s{lo1}, 1")
    I(f"s_add_i32 s{hi1}, s{lo0}, 32")
    I(f"s_cmp_eq_u32 s{sW}, 7")
    I(f"s_cselect_b32 s{lo1}, {BN}, s{lo1}")
    I(f"s_cselect_b32 s{hi1}, {BN}, s{hi1}")
    I(f"v_lshlrev_b32 v{k4}, 2, v{u(9)}")
    vEB = vQ + 4
    I(f"v_mul_u32_u24 v{vEB}, {CH*8}, v{hda}")
    for i in range(1, 4):
        I(f"v_add_u32 v{vEB+i}, {64*i*CH*32}, v{vEB}")
    I(f"v_mov_b32 v{one}, 4")
    I(f"v_and_b32 v{u(11)}, 31, v{lane}")
    I(f"v_add_u32 v{u(11)}, s{sWIN}, v{u(11)}")
    I(f"v_lshlrev_b32 v{u(12)}, 2, v{u(11)}")
    I(f"v_lshl_add_u32 v{u(12)}, v{u(5)}, 11, v{u(12)}")
    for i in range(4): I(f"v_mov_b64 v[{vT2+2*i}:{vT2+2*i+1}], 0")
    I(f"s_lshl_b32 s{sEND}, s{sW}, 2")
    I(f"v_mov_b32 v{vMIN}, s{sEND}")
    I(f"v_lshlrev_b32 v{vMIN+1}, 2, v{u(11)}")
    static = out[mark:]; del out[mark:]
    WLP = opt("wl", 0)
    if WLP == 0: wloads()
    I(f"v_lshlrev_b32 v{l16}, 4, v{lane}")
    SP = opt("sp0", 1)
    if SP: out.extend(static)
    c1, c2, c3, c4, c5 = 60, 61, 62, 63, 5
    pm, pf = 78, 80
    I(f"s_mov_b32 s{c1}, 85599")
    I(f"s_mov_b32 s{c2}, {-BN & 0xffffffff}")
    I(f"s_movk_i32 s{c3}, 2048")
    I(f"s_mov_b32 s{c4}, 85888")
    I(f"s_mov_b32 s{c5}, {opt('phm', 3) << 30:#x}")
    I("v_mov_b32 v7, 0x10000")
    for i in range(4): I(f"v_add_u32 v{pI+i}, {i}, v2")
    I(f"v_lshl_add_u32 v{pI+4}, v{tid}, 1, s{c3}")
    I(f"v_add_u32 v{pI+5}, 1, v{pI+4}")
    I(f"v_add_u32 v{pI+6}, 3072, v{tid}")
    I(f"v_cmp_gt_u32 s[{pm}:{pm+1}], {CH - 3072}, v{tid}")
    I(f"s_movk_i32 s10, {LROW}")
    I(f"s_mov_b32 s11, {RS}")
    I(f"v_cmp_eq_u32 s[{pf}:{pf+1}], 0, v{u(9)}")
    I(f"v_lshlrev_b32 v3, 4, v{u(9)}")
    I(f"v_mad_u32_u24 v4, v1, s11, v3")
    I(f"v_mad_u32_u24 v3, v1, s10, v3")
    I(f"v_add_u32 v3, {P_IIMG}, v3")
    I(f"v_and_b32 v6, 4, v{tid}")
    I(f"v_lshl_add_u32 v6, v6, 2, v3")
    X0 = 20 * 2048
    sSO = sCI
    def consumer_setup():
        I(f"s_mul_i32 s10, s{sB}, {RS}")
        srd(sCEL, 8, 9, NCH*CELLB, "s10")
        for k in (1, 2, 3):
            I(f"s_movk_i32 s{sSO+k-1}, {64*CELLB*k}")
        I(f"s_lshr_b32 s6, s{sB}, 1")
        I(f"s_mul_i32 s6, s6, {RS}")
        I(f"s_and_b32 s5, s{sB}, 1")
        I(f"s_lshl_b32 s5, s5, 6")
        I(f"s_add_u32 s6, s6, s5")
        I(f"s_add_u32 s6, s6, {WS_LCELL}")
    def cload(i):
        so = "0" if i == 0 else f"s{sSO+i-1}"
        I(f"buffer_load_dwordx4 {rr(vC+4*i,4)}, v{u(1)}, s[{sCEL}:{sCEL+3}], {so} offen sc1")
    def lloads():
        for i in range(4):
            so = "0" if i == 0 else f"s{sSO+i-1}"
            I(f"buffer_load_dwordx2 {rr(vLE+2*i,2)}, v{u(15)}, s[{sCEL}:{sCEL+3}], {so} offen sc1")
    def cloads():
        WST = opt("wst", -1)
        if WST >= 0: I(f"s_waitcnt vmcnt({WST})")
        stamp('A')
        if opt("dly", 0): I(f"s_sleep {opt('dly', 0)}")
        stamp('w')
        for i in range(4): cload(i); vq.append("C")
    def prod(idx):
        n = len(idx)
        for i in idx: I(f"v_mul_u32_u24 v{pB+i}, s{c1}, v{pD+i}")
        for i in idx: I(f"v_lshrrev_b32 v{pB+i}, 24, v{pB+i}")
        for i in idx:
            I(f"v_lshl_add_u32 v{pH+i}, v{pB+i}, 2, s{c3}")
            I(f"ds_add_rtn_u32 v{pK+i}, v{pH+i}, v7 offset:{P_HIST - 2048}")
        I(f"s_waitcnt vmcnt({younger('S')})")
        for i in idx:
            I(f"v_mad_i32_i24 v{pD+i}, v{pB+i}, s{c2}, v{pD+i}")
            I(f"v_mul_u32_u24 v15, s{c4}, v{pS+i}")
            I(f"v_lshl_or_b32 v{pS+i}, v{pD+i}, 22, v{pS+i}")
            I(f"v_and_or_b32 v{pS+i}, v15, s{c5}, v{pS+i}")
        for j, i in enumerate(idx):
            I(f"s_waitcnt lgkmcnt({n - 1 + j})")
            I(f"v_lshrrev_b32 v{pK+i}, 15, v{pK+i}")
            I(f"v_min_u32 v{pA+i}, 62, v{pK+i}")
            I(f"v_mad_u32_u24 v{pA+i}, v{pH+i}, 20, v{pA+i}")
            I(f"v_lshlrev_b32 v{pB+i}, 1, v{pA+i}")
            I(f"ds_write_b16 v{pA+i}, v{pI+i} offset:{P_IIMG + 2 - X0}")
            I(f"ds_write_b32 v{pB+i}, v{pS+i} offset:{P_CIMG + 4 - 2*X0}")
    stamp('q')
    I(f"s_waitcnt vmcnt({younger('D')})")
    stamp('d')
    if WLP == 1: wloads()
    prod(range(6))
    I(f"s_cmp_lg_u32 s7, 0")
    I("s_cbranch_scc1 K1_NO7")
    I(f"s_mov_b64 exec, s[{pm}:{pm+1}]")
    I("s_waitcnt lgkmcnt(0)")
    prod([6])
    I("s_mov_b64 exec, -1")
    L("K1_NO7")
    I(f"s_lshl_b32 s15, s{sB}, 7")
    sST_ = sCEL
    srd(sST_, 8, 9, 383*RS + CELLB, "s15")
    I(f"v_mov_b32 v15, 0xf0000")
    I(f"v_mov_b32 v23, 0xf000f000")
    I("s_waitcnt lgkmcnt(0)")
    I(f"s_add_u32 s{sEPN}, s{sEPN}, 1")
    I(f"s_and_b32 s10, s{sEPN}, 15")
    I(f"s_bfe_u32 s11, s{sEPN}, 0x40004")
    I(f"s_mul_i32 s{sSA}, s10, 0x11111111")
    I(f"s_mul_i32 s{sSB}, s11, 0x11111111")
    I(f"s_xor_b32 s{sSA}, s{sSA}, 0xf0000000")
    I(f"s_xor_b32 s{sSB}, s{sSB}, 0xf0000000")
    I(f"s_mov_b32 s{sSPIN}, {opt('spin', 200000)}")
    I("s_barrier")
    stamp('i')
    oC, oI, oH, oA = vACC, vACC + 48, vACC + 24, vACC + 28
    I(f"ds_read_b128 {rr(oA,4)}, v{l16} offset:{P_HIST}")
    for i in range(4):
        I(f"ds_read_b32 v{oH+i}, v{hda} offset:{P_HIST + 256*i}")
        I(f"ds_read_b128 {rr(oC+4*i,4)}, v3 offset:{128*LROW + 64*LROW*i}")
    for i in range(2):
        I(f"ds_read_b128 {rr(oI+4*i,4)}, v6 offset:{64*LROW*i}")
    I("s_waitcnt lgkmcnt(10)")
    I(f"v_max3_u32 v1, v{oA}, v{oA+1}, v{oA+2}")
    I(f"v_max_u32 v1, v1, v{oA+3}")
    I(f"v_cmp_lt_u32 vcc, {31 << 16}, v1")
    I("s_mov_b32 s10, 0")
    I("s_cbranch_vccnz K1_OVF")
    L("K1_OUT")
    K1_ST = opt("k1st", "sc1")
    for i in range(4):
        r = oC + 4*i
        I(f"s_waitcnt lgkmcnt({8 - 2*i})")
        I(f"v_cndmask_b32 v{r}, v{r}, v{oH+i}, s[{pf}:{pf+1}]")
        I(f"v_bitop3_b32 v{r+1}, v{r+1}, v15, s{sSA} bitop3:0xb8")
        I(f"v_bitop3_b32 v{r+2}, v{r+2}, v15, s{sSA} bitop3:0x74")
        I(f"v_bitop3_b32 v{r+3}, v{r+3}, v15, s{sSB} bitop3:0xb8")
        I(f"buffer_store_dwordx4 {rr(r,4)}, v4, s[{sST_}:{sST_+3}], s10 offen{pol(K1_ST)}"); vq.append("O")
        I(f"s_add_u32 s10, s10, {64*RS}")
    stamp('o')
    if opt("bar", 1):
        I("s_waitcnt lgkmcnt(0)")
        I("s_barrier")
    if WLP == 2: wloads()
    if not SP: out.extend(static)
    IDP = opt("idp", 1)
    vG = vQ + 10
    I(f"v_lshl_add_u32 v{vG}, s{sB}, 7, v4")
    I(f"v_add_u32 v{vG}, {256*RS}, v{vG}")
    I(f"v_add_u32 v{vG+1}, {64*RS}, v{vG}")
    for i in range(2):
        r = oI + 4*i
        I(f"s_waitcnt lgkmcnt({1 - i})")
        for d in range(4):
            I(f"v_bitop3_b32 v{r+d}, v{r+d}, v23, s{sSB if d & 1 else sSA} bitop3:0xb8")
    def idstores():
        for i in range(2):
            I(f"buffer_store_dwordx4 {rr(oI+4*i,4)}, v{vG+i}, s[{sWS}:{sWS+3}], 0 offen{pol(K1_ST)}"); vq.append("O")
    if IDP == 0: idstores()
    if WLP == 3: wloads()
    consumer_setup()
    CP = opt("cp", 0)
    if CP == 0: cloads()
    I(f"s_mov_b32 s10, {f2u(-LOG2E):#x}")
    I(f"s_waitcnt vmcnt({younger('B')})")
    for i in range(8):
        I(f"v_lshlrev_b32 v{vAT+2*i}, 16, v{pW+i}")
        I(f"v_and_b32 v{vAT+2*i+1}, 0xffff0000, v{pW+i}")
    for i in range(16): I(f"v_mul_f32 v{vAT+i}, s10, v{vAT+i}")
    for i in range(8): I(f"v_cvt_pk_bf16_f32 v{pW+i}, v{vAT+2*i}, v{vAT+2*i+1}")
    I(f"ds_write_b128 v{u(1)}, {rr(pW,4)} offset:{WL + WI_B}")
    I(f"s_cmp_ge_u32 s7, 2")
    I("s_cbranch_scc1 K1_NOWC")
    I(f"v_add_u32 v5, {WL + WI_C}, v{u(1)}")
    I(f"ds_write_b128 v5, {rr(pW+4,4)}")
    L("K1_NOWC")
    w0, w1, wc0, wc1, xa_ = vT1 + 1, vT1 + 2, vT1 + 3, vT1 + 4, vT
    I(f"v_bfe_u32 v{w0}, v{lane}, 2, 2")
    I(f"v_lshlrev_b32 v{w0}, 7, v{w0}")
    I(f"v_lshl_add_u32 v{w0}, v{vCH}, 2, v{w0}")
    I(f"v_and_b32 v{w1}, 16, v{lane}")
    I(f"v_and_b32 v{wc0}, 2, v{lane}")
    I(f"v_lshl_add_u32 v{w1}, v{wc0}, 2, v{w1}")
    I(f"v_and_b32 v{wc0}, 8, v{lane}")
    I(f"v_lshl_add_u32 v{w1}, v{wc0}, 2, v{w1}")
    assert WL & 0x1dff == 0
    I(f"s_mov_b32 s10, {WL}")
    I(f"v_add3_u32 v{w0}, v{w0}, v{w1}, s10")
    I(f"v_lshl_add_u32 v{wc0}, v{u(5)}, 10, v{w0}")
    I(f"v_lshl_add_u32 v{w0}, v{u(5)}, 12, v{w0}")
    I(f"v_xor_b32 v{w1}, 32, v{w0}")
    I(f"v_xor_b32 v{wc1}, 32, v{wc0}")
    def wtr(reg, img, ft, s_, c=False):
        ad = (wc0, wc1)[ft] if c else (w0, w1)[ft]
        return [f"ds_read_b64_tr_b16 {rr(reg+2*h_,2)}, v{ad} offset:{img + 1024*s_ + 512*h_}" for h_ in range(2)]
    I(f"s_lshl_b32 s10, s7, 10")
    I(f"s_and_b32 s11, s7, 4")
    I(f"s_mul_i32 s11, s11, {8 - 1024}")
    I(f"s_add_u32 s11, s11, s10")
    I(f"v_xor_b32 v{xa_}, s11, v{w0}")
    I(f"s_waitcnt vmcnt({younger('W')}) lgkmcnt(0)")
    I("s_barrier")
    if CP == 1: cloads()
    rest = []
    for h_ in range(2):
        rest.append(f"ds_read_b64_tr_b16 {rr(vAT+2*h_,2)}, v{xa_} offset:{WI_U + 512*h_}")
        rest.append(f"ds_read_b64_tr_b16 {rr(vAT+4+2*h_,2)}, v{xa_} offset:{WI_A + 512*h_}")
    for reg, img in ((vWB, WI_B), (vWC, WI_C), (vWV, WI_V)):
        for ft in range(2):
            if img == WI_C: rest += wtr(vWC + 4*ft, WI_C, ft, 0, True)
            else:
                for s_ in range(4): rest += wtr(reg + 16*ft + 4*s_, img, ft, s_)
    while rest:
        for x_ in rest[:6]: I(x_)
        rest = rest[6:]
        if rest: I("s_waitcnt lgkmcnt(8)")
    I(f"v_add_u32 v{xa_}, s10, v{l16}")
    I(f"v_add_u32 v{xa_}, {WL}, v{xa_}")
    stamp('k')
    I(f"v_cmp_ne_u32 s[10:11], 0, v{k4}")
    if CP == 2: cloads()
    for i in range(4):
        L(f"K2_CHK{i}")
        I(f"s_waitcnt vmcnt({3 - i})")
        r = vC + 4*i
        I(f"v_xor_b32 v{u(0)}, s{sSA}, v{r+1}")
        I(f"v_bitop3_b32 v{u(0)}, v{r+2}, s{sSA}, v{u(0)} bitop3:0xeb")
        I(f"v_bitop3_b32 v{u(0)}, v{r+3}, s{sSB}, v{u(0)} bitop3:0xbe")
        I(f"v_and_b32 v{u(0)}, 0xf0000, v{u(0)}")
        I(f"v_cmp_ne_u32 vcc, 0, v{u(0)}")
        I(f"v_mov_b32_dpp v{vH+i}, v{vC+4*i} row_newbcast:0 row_mask:0xf bank_mask:0x3")
        I(f"v_mov_b32_dpp v{vH+i}, v{vC+4*i} row_newbcast:8 row_mask:0xf bank_mask:0xc")
        I(f"s_cbranch_vccnz K2_RETRY{i}")
        if i == 0: stamp(1)
        if i == 3:
            I(f"s_add_u32 s{sCEL}, s8, s6")
            I(f"s_addc_u32 s{sCEL+1}, s9, 0")
            I(f"s_mov_b32 s{sCEL+2}, {NCH*CELLB - 64}")
            XP_ = opt("xp", 1)
            if IDP == 1: idstores()
            else:
                lloads()
                if XP_ == 0: xloads()
        for j in range(4):
            I(f"v_lshrrev_b32 v{vA+4*i+j}, 20, v{vC+4*i+j}")
        I(f"v_sub_u32_sdwa v{u(0)}, v{vH+i}, v{k4} dst_sel:DWORD dst_unused:UNUSED_PAD src0_sel:WORD_1 src1_sel:DWORD")
        for j in range(4):
            m = sM + 2*(4*i+j)
            I(f"v_cmp_le_i32 s[{m}:{m+1}], {j}, v{u(0)}")
        m = sM + 8*i
        I(f"s_and_b64 s[{m}:{m+1}], s[{m}:{m+1}], s[10:11]")
        for j in range(4):
            m = sM + 2*(4*i+j)
            I(f"s_mov_b64 exec, s[{m}:{m+1}]")
            I(f"ds_add_rtn_u32 v{vRK+4*i+j}, v{vA+4*i+j}, v{one} offset:{HIST}")
        I("s_mov_b64 exec, -1")
    I(f"v_max3_u32 v{u(0)}, v{vH}, v{vH+1}, v{vH+2}")
    I(f"v_max_u32 v{u(0)}, v{u(0)}, v{vH+3}")
    I(f"v_cmp_le_u32 vcc, {32 << 16}, v{u(0)}")
    for i in range(4):
        I(f"ds_write_b32 v{hda}, v{vH+i} offset:{HDR + 256*i}")
    I("s_cbranch_vccnz K2_XT1")
    L("K2_XT1R")
    stamp('s')
    I("s_waitcnt lgkmcnt(0)")
    I("s_barrier")
    stamp(2)
    c, p, tot, sc = u(0), u(4), u(8), u(9)
    own, ownn, owna = u(10), u(11), u(12)
    SD = "dst_sel:DWORD dst_unused:UNUSED_PAD src0_sel:WORD_0 src1_sel:WORD_0"
    for ph in range(4):
        I(f"ds_read_b128 {rr(hh+4*ph,4)}, v{l16} offset:{HIST + 1024*ph}")
    I(f"ds_read_u16 v{own}, v{owna} offset:{HIST}")
    I(f"ds_read_u16 v{u(13)}, v{owna} offset:{HIST + 1024}")
    I(f"ds_write_b128 v{xa_}, {rr(vAT,4)} offset:{WI_U}")
    I(f"ds_write_b128 v{xa_}, {rr(vAT+4,4)} offset:{WI_A}")
    LP = opt("lp", 0)
    if IDP == 1 and LP == 0: lloads()
    if XP_ == 1 and LP == 0: xloads()
    fill = [f"v_and_b32 v{vC+s}, {RMASK:#x}, v{vC+s}" for s in range(16)]
    I(f"s_waitcnt lgkmcnt(2)")
    for i in range(4):
        I(f"v_add_u32_sdwa v{c+i}, v{hh+i}, v{hh+4+i} {SD}")
        I(f"v_add_u32_sdwa v{p+i}, v{hh+8+i}, v{hh+12+i} {SD}")
    for i in range(4):
        I(f"v_add_u32 v{c+i}, v{c+i}, v{p+i}")
    I(f"v_lshl_or_b32 v{own}, v{u(13)}, 16, v{own}")
    I(f"v_add_u32 v{p+1}, v{c}, v{c+1}")
    I(f"v_add_u32 v{p+2}, v{p+1}, v{c+2}")
    I(f"v_add_u32 v{p+3}, v{p+2}, v{c+3}")
    I(f"v_mov_b32 v{tot}, v{p+3}")
    fill = [f"v_add_u32 v{c+1}, v{c}, v{p+1}", f"v_add_u32 v{c+2}, v{p+1}, v{p+2}", f"v_add_u32 v{c+3}, v{p+2}, v{p+3}"] + fill
    wave_scan(tot, fill)
    I(f"v_sub_u32 v{p}, v{tot}, v{p+3}")
    I(f"v_readlane_b32 s10, v{tot}, 63")
    for i in range(4):
        I(f"v_lshl_add_u32 v{c+i}, v{p}, 1, v{c+i}")
    I("s_lshr_b32 s11, s10, 5")
    I(f"s_add_u32 s11, s11, {ASYM}")
    I("s_and_b32 s11, s11, -32")
    I(f"s_sub_i32 s11, s11, {ASYM}")
    I("s_lshl_b32 s11, s11, 3")
    I("s_lshr_b32 s10, s10, 1")
    I(f"s_lshr_b32 s{sF0}, s{sW}, 1")
    I(f"s_mul_i32 s{sF0}, s{sF0}, s10")
    I(f"s_add_i32 s11, s11, s{sF0}")
    I(f"s_add_i32 s10, s10, s{sF0}")
    I(f"s_bitcmp1_b32 s{sW}, 0")
    I(f"s_cselect_b32 s{sEND}, s11, s{sF0}")
    I("s_cselect_b32 s10, s10, s11")
    I(f"s_mov_b32 s{sF0}, 0")
    I(f"s_mov_b32 s{sF1}, 0")
    for i in range(4):
        I(f"v_cmp_gt_i32 vcc, s{sEND}, v{c+i}")
        I(f"v_cmp_gt_i32 s[{sTMP}:{sTMP+1}], s10, v{c+i}")
        I("s_bcnt1_i32_b64 s11, vcc")
        I(f"s_add_u32 s{sF0}, s{sF0}, s11")
        I(f"s_bcnt1_i32_b64 s11, s[{sTMP}:{sTMP+1}]")
        I(f"s_add_u32 s{sF1}, s{sF1}, s11")
    I(f"s_max_i32 s{sF0}, s{sF0}, s{lo0}")
    I(f"s_min_i32 s{sF0}, s{sF0}, s{hi0}")
    I(f"s_max_i32 s{sF1}, s{sF1}, s{lo1}")
    I(f"s_min_i32 s{sF1}, s{sF1}, s{hi1}")
    I(f"v_cmp_le_u32 vcc, s{sF0}, v{ownn}")
    I(f"v_cmp_gt_u32 s[10:11], s{sF1}, v{ownn}")
    I(f"s_mov_b32 s{sMORE}, 2")
    I("s_and_b64 vcc, vcc, s[10:11]")
    I(f"v_cndmask_b32 v{own}, 0, v{own}, vcc")
    I(f"v_mov_b32 v{tot}, v{own}")
    wave_scan(tot, fill, half=True)
    for x_ in fill: I(x_)
    I(f"s_sub_u32 s{sTMP}, s{sL}, {R0}")
    I(f"v_readlane_b32 s10, v{tot}, 31")
    I(f"v_readlane_b32 s11, v{tot}, 63")
    I(f"v_sub_u32 v{tot}, v{tot}, v{own}")
    I(f"v_mov_b32 v{vOWN}, v{u(14)}")
    I(f"s_and_b32 s{sTH}, s10, 0xffff")
    I("s_lshr_b32 s10, s10, 16")
    I(f"s_add_u32 s{sTH+1}, s{sTH}, s10")
    I("s_and_b32 s10, s11, 0xffff")
    I(f"s_add_u32 s{sTH+2}, s{sTH+1}, s10")
    I("s_lshr_b32 s11, s11, 16")
    I(f"s_add_u32 s{sEND}, s{sTH+2}, s11")
    I(f"s_lshl_b32 s10, s{sTH}, 16")
    I(f"s_pack_ll_b32_b16 s11, s{sTH+1}, s{sTH+2}")
    I(f"s_pack_ll_b32_b16 s{sTMP}, s{sTMP}, s{sTMP}")
    I(f"s_add_u32 s10, s10, s{sTMP}")
    I(f"s_add_u32 s11, s11, s{sTMP}")
    I("s_mov_b32 exec_lo, vcc_lo")
    I("s_mov_b32 exec_hi, 0")
    I(f"v_add_u32 v{tot}, s10, v{tot}")
    I("s_mov_b32 exec_lo, 0")
    I("s_mov_b32 exec_hi, vcc_hi")
    I(f"v_add_u32 v{tot}, s11, v{tot}")
    I("s_mov_b64 exec, vcc")
    I(f"ds_write_b16 v{owna}, v{tot} offset:{HIST + 2}")
    I(f"ds_write_b16_d16_hi v{owna}, v{tot} offset:{HIST + 1024 + 2}")
    I(f"ds_write_b32 v{vMIN+1}, v{vMIN} offset:{MAP}")
    I("s_mov_b64 exec, -1")
    I(f"v_mov_b32 v{sc}, {FLAG}")
    I(f"s_cmp_le_u32 s{sEND}, {LMAX*4}")
    I("s_cbranch_scc1 K2_LFIT")
    I(f"ds_write_b32 v{sc}, v{one}")
    I(f"s_mov_b32 s{sEND}, 0")
    L("K2_LFIT")
    I(f"s_add_u32 s{sEND}, s{sEND}, s{sL}")
    for k in range(3):
        I(f"s_add_i32 s{sTH+k}, s{sTH+k}, {opt('tho', 64)}")
        I(f"s_lshr_b32 s{sTH+k}, s{sTH+k}, 7")
    if LP == 1: lloads(); xloads()
    I("s_waitcnt lgkmcnt(0)")
    stamp('a')
    I("s_barrier")
    stamp('b')
    I(f"ds_read_b32 v{sc}, v{sc}")
    for s in range(16):
        m = sM + 2*s
        I(f"s_mov_b64 exec, s[{m}:{m+1}]")
        I(f"ds_read_u16 v{vA+s}, v{vA+s} offset:{HIST + 2}")
    I("s_mov_b64 exec, -1")
    pads(lane, u(0), u(1), u(2))
    I(f"s_waitcnt vmcnt(4)")
    L("K2_CHKL")
    I(f"v_xor_b32 v{u(0)}, s{sSA}, v{vLE}")
    for d in range(1, 8):
        I(f"v_bitop3_b32 v{u(0)}, v{vLE+d}, s{sSB if d & 1 else sSA}, v{u(0)} bitop3:0xbe")
    I(f"v_and_b32 v{u(0)}, 0xf000f000, v{u(0)}")
    I(f"v_cmp_ne_u32 vcc, 0, v{u(0)}")
    I("s_cbranch_vccnz K2_RETRYL")
    for d in range(8): I(f"v_and_b32 v{vLE+d}, 0x0fff0fff, v{vLE+d}")
    I(f"s_waitcnt lgkmcnt(0)")
    I(f"v_cmp_ne_u32 vcc, 0, v{sc}")
    I("s_cbranch_vccnz K2_OVF")
    for s in range(16):
        m = sM + 2*s
        I(f"s_mov_b64 exec, s[{m}:{m+1}]")
        I(f"v_add_u32 v{vA+s}, v{vA+s}, v{vRK+s}")
        I(f"v_mad_u32_u16 v{vRK+s}, v{vLE + (s>>1)}, 32, v{vEB + (s>>2)} op_sel:[{s&1},0,0,0]")
        I(f"ds_write2st64_b32 v{vA+s}, v{vC+s}, v{vRK+s} offset0:{R0//256} offset1:{R1//256}")
    I("s_mov_b64 exec, -1")
    I(f"s_cmp_lg_u32 s{sXT}, 0")
    I("s_cbranch_scc1 K2_XT2")
    L("K2_PADS0")
    I("s_waitcnt lgkmcnt(0)")
    stamp('c')
    I("s_barrier")
    vio, e1, e2, nn = sM, sM + 2, sM + 4, sM + 6
    m8, m16, m24 = sM + 8, sM + 10, sM + 12
    def dbuild(tb, tag, extra=(), mid=()):
        z = vR + 12
        extra = list(extra)
        I(f"v_lshl_add_u32 v{vT}, v{lane}, 4, s{sSTG}")
        I(f"v_lshl_add_u32 v{z}, v{lane}, 2, s{sSTG}")
        I(f"v_lshl_add_u32 v{z+1}, v{lane}, 2, s{sL}")
        I(f"v_subrev_u32 v{z+1}, 96, v{z+1}")
        q = []
        def lreads(k):
            for d in range(4):
                I(f"ds_read_u16 v{tb+4*k+d}, v{z+1} offset:{256*k + 96 - 32*d + 2}"); q.append(k)
        lreads(0); lreads(1)
        for k in range(4): I(f"ds_write_b128 v{vT}, {rr(vR,4)} offset:{SLOT + 1024*k}"); q.append('w')
        I(f"ds_write_b32 v{z}, v{vR} offset:{SLOT + 4096}"); q.append('w')
        for r_, v_ in ((m8, 0xffffff00), (m16, 0xffff0000), (m24, 0xff000000)):
            I(f"s_mov_b32 s{r_}, {v_:#x}")
            I(f"s_mov_b32 s{r_+1}, {v_:#x}")
        I(f"s_mov_b64 s[{vio}:{vio+1}], 0")
        I(f"s_movk_i32 s10, 2048")
        for k in range(8):
            I(f"s_cmp_le_u32 s{sN}, {2*k}")
            I(f"s_cbranch_scc1 K2_DB{tag}{k}")
            w = min(14, len(q) - 1 - max(i for i, t in enumerate(q) if t == k))
            I(f"s_waitcnt lgkmcnt({min(w, 8)})")
            if mid: I(mid[k])
            if k + 2 < 8: lreads(k + 2)
            l0 = tb + 4*k
            I(f"v_cmp_eq_u32 vcc, v{l0}, v{l0+1}")
            I(f"v_cmp_eq_u32 s[{e1}:{e1+1}], v{l0}, v{l0+2}")
            I(f"v_cmp_eq_u32 s[{e2}:{e2+1}], v{l0}, v{l0+3}")
            I(f"v_cmp_ne_u32 s[{nn}:{nn+1}], s10, v{l0}")
            I(f"v_lshrrev_b32 v{l0}, 4, v{l0}")
            I(f"s_and_b64 vcc, vcc, s[{m8}:{m8+1}]")
            I(f"v_add_u32 v{l0}, v{l0}, v{cba}")
            I(f"s_and_b64 s[{e1}:{e1+1}], s[{e1}:{e1+1}], s[{m16}:{m16+1}]")
            I(f"v_cndmask_b32 v{l0+1}, v{cb0}, v{cb1}, vcc")
            I(f"s_and_b64 s[{e2}:{e2+1}], s[{e2}:{e2+1}], s[{m24}:{m24+1}]")
            I(f"ds_or_b32 v{l0}, v{l0+1} offset:{SLOT + 2*DT*k}"); q.append('o')
            for x_ in extra[2*k:2*k+2]: I(x_); q.append('x')
            I(f"s_or_b64 s[{e1}:{e1+1}], s[{e1}:{e1+1}], s[{e2}:{e2+1}]")
            I(f"s_and_b64 s[{e1}:{e1+1}], s[{e1}:{e1+1}], s[{nn}:{nn+1}]")
            I(f"s_or_b64 s[{vio}:{vio+1}], s[{vio}:{vio+1}], s[{e1}:{e1+1}]")
        if mid:
            I(f"s_branch K2_DBE{tag}")
            for k in range(8):
                L(f"K2_DB{tag}{k}")
                I("s_waitcnt lgkmcnt(8)")
                I(mid[k])
                for x_ in extra[2*k:2*k+2]: I(x_)
            I("s_nop 3")
            L(f"K2_DBE{tag}")
            for x_ in extra[16:]: I(x_)
        else:
            for k in range(8): L(f"K2_DB{tag}{k}")
    L("K2_GO")
    stamp(3)
    STAG = opt("stag", 1)
    I(f"ds_read_b128 {rr(vQD,4)}, v{vARX}")
    I(f"ds_read_b32 v{vR1}, v{vARE}")
    I(f"ds_read_u16 v{vL1}, v{vARP} offset:2")
    for i in range(4):
        I(f"v_mov_b64 v[{vR+2*i}:{vR+2*i+1}], 0")
    I("s_waitcnt lgkmcnt(1)")
    EM = opt("em", 0xAA)
    if STAG == 1:
        I(f"s_movk_i32 s10, {EM}")
        I(f"s_bitcmp1_b32 s10, s{sW}")
        I("s_cbranch_scc1 K2_EARLY0")
        I("s_waitcnt vmcnt(0)")
        I("s_branch K2_LATE0")
        L("K2_EARLY0")
    for s in dma_tile(0): I(s)
    if STAG == 2:
        I(f"s_bitcmp1_b32 s{sW}, 0")
        I("s_cbranch_scc1 K2_LATE0")
        I("s_waitcnt vmcnt(0)")
    L("K2_LATE0")
    I(f"s_cmp_lg_u32 s{sMORE}, 2")
    I("s_cbranch_scc1 K2_NOTFIRST")
    vWA = vACC
    I(f"v_add_u32 v{w0}, {WL}, v{l16}")
    for k in range(8): I(f"ds_read_b128 {rr(vWA+4*k,4)}, v{w0} offset:{WI_A + 1024*k}")
    I(f"s_waitcnt vmcnt(5)")
    for q in range(4):
        I(f"ds_read_b128 {rr(vX+4*q,4)}, v{vAX} offset:{SLOT + 16*q}")
    I(f"ds_read_b128 {rr(vR+8,4)}, v{l16} offset:{HDR}")
    I("s_waitcnt lgkmcnt(5)")
    mid = []
    for ft, D in ((0, vP), (1, vQ)):
        mid += [mfma(D, vX+4*q, vWA+16*ft+4*q, None if q == 0 else D) for q in range(4)]
    dbuild(vACC + 32, "f", [], mid)
    I(f"s_mov_b32 s10, {f2u(-LOG2E):#x}")
    for i in range(32):
        I(f"v_mul_f32 v{vP+i}, s10, v{vP+i}")
    for i in range(16):
        I(f"v_cvt_pk_bf16_f32 v{vAT+i}, v{vP+2*i}, v{vP+2*i+1}")
    I("s_waitcnt lgkmcnt(0)")
    I(mfma(NUM(0), vT2, vT2))
    I(mfma(NUM(1), vT2, vT2))
    I(f"s_mov_b32 s10, {f2u(1e-6):#x}")
    I(f"s_mov_b32 s11, s10")
    for ft in range(2):
        for i in range(8):
            I(f"v_mov_b64 v[{DEN(ft)+2*i}:{DEN(ft)+2*i+1}], s[10:11]")
    I(f"v_max3_u32 v{vR+8}, v{vR+8}, v{vR+9}, v{vR+10}")
    I(f"v_max_u32 v{vR+8}, v{vR+8}, v{vR+11}")
    I(f"v_lshrrev_b32 v{vR+8}, 16, v{vR+8}")
    I(f"v_cmp_lt_u32 vcc, s{sSKIP}, v{vR+8}")
    I(f"s_mov_b32 s{sCI}, -1")
    I(f"s_mov_b64 s[{sMSK}:{sMSK+1}], 0")
    I(f"s_mov_b32 s{sR0}, 0")
    I(f"s_mov_b32 s{sCNT}, 0")
    I("s_cmp_lg_u64 vcc, 0")
    I(f"s_cselect_b32 s{sMORE}, 1, 0")
    L("K2_BUILT")
    I("s_waitcnt lgkmcnt(0)")
    I(f"v_add_u32 v{vL1}, v{vL1}, v{vC1}")
    if STAG == 1:
        I(f"s_movk_i32 s10, {EM}")
        I(f"s_bitcmp1_b32 s10, s{sW}")
        I("s_cbranch_scc1 K2_HAD0")
        for s in dma_tile(0): I(s)
        L("K2_HAD0")
    I(f"ds_read_b128 {rr(vQD,4)}, v{vARX} offset:128")
    I(f"ds_read_b32 v{vR1}, v{vARE} offset:128")
    for s in t1_reads(): I(s)
    for i in range(4):
        I(f"v_mov_b64 v[{vQ+2*i}:{vQ+2*i+1}], 0")
    I(f"v_lshrrev_b32 v{vT}, 5, v{lane}")
    I(f"v_add_u32 v{vT}, v{vT}, v{lane}")
    I(f"v_lshl_add_u32 v{vART}, v{vT}, 2, s{sSTG}")
    I(f"v_add_u32 v{vART}, {SLOT}, v{vART}")
    stamp(4)
    I("s_waitcnt vmcnt(0)")
    stamp(5)
    I(f"ds_read_b128 {rr(vE,4)}, v{vAE}")
    for q in range(4):
        I(f"ds_read_b128 {rr(vX+4*q,4)}, v{vAX} offset:{16*q}")
    I("s_waitcnt lgkmcnt(0)")
    I(f"s_cmp_eq_u32 s{sN}, 0")
    I("s_cbranch_scc1 K2_DONE")
    for s in g_mfmas(vP, 0):
        if s.startswith("v_smfmac"):
            for x_ in dma_tile(0): I(x_)
        I(s)
    I(f"s_mov_b32 s{sT}, 0")
    def prio_code(uid):
        r = []
        for k in range(3):
            r += [f"s_cmp_lg_u32 s{sT}, s{sTH+k}", f"s_cbranch_scc1 K2_PR{uid}_{k}", f"s_setprio {2-k}", f"K2_PR{uid}_{k}:"]
        return r
    YK = opt("yk", 2)
    if YK:
        I(f"s_sub_u32 s10, s{sN}, {YK - 1 if YK < 10 else 0}")
        I(f"s_bitcmp1_b32 s{sW}, 0")
        I(f"s_cselect_b32 s{sTH+2}, s{sTH+2}, s10")
    I("s_setprio 3")
    I(f"s_cmp_lg_u64 s[{vio}:{vio+1}], 0")
    I("s_nop 8")
    I("s_cbranch_scc1 K2_DENSE" if not opt("fdense", 0) else "s_branch K2_DENSE")
    tst = ["s_memrealtime s[98:99]", "s_waitcnt lgkmcnt(0)", "s_mov_b32 m0, s72", "s_nop 0", "v_writelane_b32 v255, s98, m0"] if TS == 4 else []
    def loop(sp):
        body = tst + phaseA(0, sp) + phaseB(0, sp)
        body += [f"s_cmp_ge_u32 s{sT}, s{sN}", f"s_cbranch_scc1 K2_TAIL0{sp}"] + (prio_code(0) if sp else [])
        body += tst + phaseA(1, sp) + phaseB(1, sp)
        body += [f"v_add_u32 v{r}, 0x100, v{r}" for r in (vARX, vARP, vARE)]
        body += [f"v_add_u32 v{vART}, {2*DT if sp else 256}, v{vART}"]
        body += prio_code(1) if sp else []
        body += [f"s_cmp_lt_u32 s{sT}, s{sN}", f"s_cbranch_scc1 K2_LOOP{sp}"]
        check_body(body)
        DBG = opt("dbg", "")
        if "nodma" in DBG: body = [b for b in body if not b.startswith("buffer_load")]
        if sp: emit(".p2align 6")
        L(f"K2_LOOP{sp}")
        for s in body:
            if s.endswith(":"): L(s[:-1])
            else: I(s)
        if sp:
            for s in s_mfmas(DEN(1), vR, 1, 1) + s_mfmas(NUM(1), vQ, 1, 1): I(s)
            I("s_branch K2_DONE")
        L(f"K2_TAIL0{sp}")
        for s in s_mfmas(DEN(1), vR, sp, 0) + s_mfmas(NUM(1), vQ, sp, 0): I(s)
    loop(1)
    L("K2_DONE")
    I(f"s_cmp_lg_u32 s{sMORE}, 0")
    I("s_cbranch_scc1 K2_SLOW")
    L("K2_EPI")
    stamp(6)
    I(f"v_lshlrev_b32 v{vT}, 4, v{lane}")
    for k in range(8):
        I(f"ds_read_b128 {rr(vWB+4*k,4)}, v{vT} offset:{WL + 1024*k}")
    I(f"v_and_b32 v{vQD+1}, 31, v{lane}")
    I(f"v_lshrrev_b32 v{vQD+2}, 2, v{vC1}")
    I(f"v_lshl_add_u32 v{vQD+1}, v{vQD+1}, 6, v{vQD+2}")
    for s_ in range(2):
        I(f"ds_read2_b64 {rr(vT2+4*s_,4)}, v{vQD+1} offset0:{4*s_} offset1:{4*s_+2}")
    for i in range(16):
        I(f"v_lshlrev_b32 v{vWV+2*i}, 16, v{vX+i}")
        I(f"v_and_b32 v{vWV+2*i+1}, 0xffff0000, v{vX+i}")
    I(f"v_subrev_u32 v{vT+1}, s{sWIN}, v{lane}")
    I(f"v_and_b32 v{vT+1}, 31, v{vT+1}")
    I(f"v_mul_u32_u24 v{vT+1}, 144, v{vT+1}")
    I(f"v_lshl_add_u32 v{vT+1}, v{vC1}, 1, v{vT+1}")
    I(f"v_add_u32 v{vT+1}, s{sSTG}, v{vT+1}")
    I(f"s_sub_u32 s10, s{sF0}, s{sWIN}")
    I("s_mul_i32 s10, s10, 144")
    I(f"s_add_u32 s10, s10, s{sSTG}")
    I(f"v_lshrrev_b32 v{vQD}, 3, v{lane}")
    I(f"v_lshl_add_u32 v{vQD}, v{vQD}, 4, v{vT}")
    I(f"v_add_u32 v{vQD}, s10, v{vQD}")
    I(f"s_mul_i32 s10, s{sB}, {BN}")
    I(f"s_add_u32 s11, s10, s{sF1}")
    I(f"s_add_u32 s10, s10, s{sF0}")
    I(f"s_min_u32 s11, s11, {N}")
    I(f"s_min_u32 s10, s10, {N}")
    I("s_sub_u32 s11, s11, s10")
    I("s_lshl_b32 s10, s10, 7")
    I(f"s_add_u32 s{sOUT}, s{sOUT}, s10")
    I(f"s_addc_u32 s{sOUT+1}, s{sOUT+1}, 0")
    I(f"s_lshl_b32 s{sOUT+2}, s11, 7")
    for ft, D in ((0, vP), (1, vQ)):
        for q in range(4):
            I(f"s_waitcnt lgkmcnt({9 - 4*ft - q})")
            I(mfma(D, vWB+16*ft+4*q, vX+4*q, vWV+16*ft if q == 0 else D))
            for i in range(4):
                r = DEN(ft) + 4*q + i
                I(f"v_rcp_f32 v{r}, v{r}")
    I("s_waitcnt lgkmcnt(0)")
    for ft, D in ((0, vP), (1, vQ)):
        for i in range(16):
            I(f"v_mul_f32 v{NUM(ft)+i}, v{NUM(ft)+i}, v{DEN(ft)+i}")
        for i in range(8):
            I(f"v_cvt_pk_bf16_f32 v{DEN(ft)+i}, v{NUM(ft)+2*i}, v{NUM(ft)+2*i+1}")
        I(mfma(D, DEN(ft), vT2, D))
        I("s_nop 0")
        I(mfma(D, DEN(ft)+4, vT2+4, D))
    for q in range(4):
        for i in range(8*q, 8*q+8):
            I(f"v_max_f32 v{vP+i}, v{vP+i}, v{vWV+i}")
        for d in range(4):
            i = 4*q + d
            I(f"v_cvt_pk_bf16_f32 v{vR+i}, v{vP+2*i}, v{vP+2*i+1}")
        I(f"ds_write_b128 v{vT+1}, {rr(vR+4*q,4)} offset:{16*q}")
    for q in range(4):
        I(f"ds_read_b128 {rr(vX+4*q,4)}, v{vQD} offset:{8*144*q}")
    for q in range(4):
        I(f"s_waitcnt lgkmcnt({3-q})")
        I(f"buffer_store_dwordx4 {rr(vX+4*q,4)}, v{vT}, s[{sOUT}:{sOUT+3}], 0 offen offset:{1024*q}{pol(K2_OP)}")
    I(f"s_add_u32 s10, s2, s7")
    I("s_cmp_lg_u32 s10, 0")
    I("s_cbranch_scc1 K2_NOEP")
    I(f"v_mov_b32 v{vP}, {WS_EPOCH}")
    I(f"v_mov_b32 v{vP+1}, s{sEPN}")
    I(f"buffer_store_dword v{vP+1}, v{vP}, s[{sWS}:{sWS+3}], 0 offen sc1")
    L("K2_NOEP")
    if TS == 2 or opt("tsn", 0): I(f"s_mov_b32 s89, s{sN}")
    if TS == 8:
        I(f"s_sub_u32 s94, {opt('spin', 200000)}, s{sSPIN}")
        I(f"s_mul_i32 s94, s94, 100")
        I(f"s_add_u32 s94, s94, s88")
    if TS: I(f"s_mov_b32 s{sW}, s7")
    if TS == 4:
        I("s_mov_b64 exec, -1")
        I(f"s_lshl_b32 s87, s2, 11")
        I(f"s_add_u32 s87, s87, {WS_TS + 0x180000}")
        I(f"s_lshl_b32 s86, s{sW}, 8")
        I("s_add_u32 s87, s87, s86")
        I(f"v_lshl_add_u32 v{vP}, v{lane}, 2, s87")
        I(f"global_store_dword v{vP}, v255, s[8:9]")
    stamp_out(8, 8, sW, 8, 0x100000, vP)
    L("K2_END")
    I("s_endpgm")
    L("K2_NOTFIRST")
    dbuild(vP, "s")
    I("s_branch K2_BUILT")
    def spin():
        if opt("slp", 1): I(f"s_sleep {opt('slp', 1)}")
        I(f"s_sub_u32 s{sSPIN}, s{sSPIN}, 1")
        I("s_cbranch_scc1 K2_END")
    for i in range(4):
        L(f"K2_RETRY{i}")
        spin()
        for j in range(i, 4): cload(j)
        I(f"s_branch K2_CHK{i}")
    L("K2_RETRYL")
    spin()
    lloads()
    I("s_waitcnt vmcnt(0)")
    I("s_branch K2_CHKL")
    L("K1_OVF")
    t = vAT
    for i in range(4):
        I(f"v_lshrrev_b32 v{t+i}, 16, v{oA+i}")
    I(f"v_add_u32 v{t+5}, v{t}, v{t+1}")
    I(f"v_add_u32 v{t+6}, v{t+5}, v{t+2}")
    I(f"v_add_u32 v{t+7}, v{t+6}, v{t+3}")
    I(f"v_mov_b32 v1, v{t+7}")
    wave_scan(1)
    I("s_nop 0")
    I(f"v_sub_u32 v{t+4}, v1, v{t+7}")
    I(f"v_add_u32 v{t+7}, v{t+4}, v{t+6}")
    I(f"v_add_u32 v{t+6}, v{t+4}, v{t+5}")
    I(f"v_add_u32 v{t+5}, v{t+4}, v{t}")
    for i in range(4):
        I(f"v_or_b32 v{t+4+i}, v{t+4+i}, v{oA+i}")
    I("s_waitcnt lgkmcnt(0)")
    I(f"ds_write_b128 v{l16}, {rr(t+4,4)} offset:{P_HDR}")
    for i in range(4):
        I(f"ds_read_b32 v{oH+i}, v{hda} offset:{P_HDR + 256*i}")
    I(f"s_add_u32 s15, s13, {WS_RECS}")
    srd(q0, 8, 9, CH*4, "s15")
    I("s_lshr_b32 s15, s13, 1")
    I(f"s_add_u32 s15, s15, {WS_LEID}")
    srd(q1, 8, 9, CH*2, "s15")
    I(f"v_cndmask_b32 v{pH+6}, v{pH}, v{pH+6}, s[{pm}:{pm+1}]")
    I(f"v_cndmask_b32 v{pK+6}, 0, v{pK+6}, s[{pm}:{pm+1}]")
    for i in range(7):
        I(f"ds_read_u16 v{pA+i}, v{pH+i} offset:{P_HDR - 2048}")
    I("s_waitcnt lgkmcnt(0)")
    for i in range(7):
        I(f"v_lshl_add_u32 v{pA+i}, v{pA+i}, 1, v{pK+i}")
        I(f"v_cmp_le_u32 vcc, 62, v{pK+i}")
        I(f"v_lshlrev_b32 v{pB+i}, 1, v{pA+i}")
        I("s_and_saveexec_b64 s[14:15], vcc")
        I(f"s_cbranch_execz K1_OV3_{i}")
        I(f"buffer_store_short v{pI+i}, v{pA+i}, s[{q1}:{q1+3}], 0 offen sc1")
        I(f"buffer_store_dword v{pS+i}, v{pB+i}, s[{q0}:{q0+3}], 0 offen sc1")
        L(f"K1_OV3_{i}")
        I("s_mov_b64 exec, -1")
    I("s_waitcnt vmcnt(0)")
    I("s_barrier")
    I("s_branch K1_OUT")
    L("K2_DENSE")
    I(f"v_bfe_u32 v{vT}, v{lane}, 2, 2")
    I(f"v_lshl_add_u32 v{vART}, v{vT}, 5, s{sL}")
    I(f"v_lshrrev_b32 v{vT}, 5, v{lane}")
    I(f"v_lshl_add_u32 v{vART}, v{vT}, 2, v{vART}")
    I(f"v_add_u32 v{vART}, 2, v{vART}")
    loop(0)
    I("s_branch K2_DONE")
    L("K2_OVF")
    I(f"s_mov_b32 s{sSKIP}, 0")
    I(f"s_mov_b32 s{sEND}, s{sL}")
    pads(lane, vP, vP+1, vP+2)
    I("s_branch K2_PADS0")
    xr, xe, xa, xk = vX + 4, vX + 8, vX + 12, vACC + 56
    xt, xo = vACC + 60, vACC + 61
    def xmask(i):
        I(f"v_lshrrev_b32 v{xo}, 16, v{vH+i}")
        I(f"v_cmp_lt_u32 vcc, v{xt}, v{xo}")
    L("K2_XT1")
    I(f"s_mov_b32 s{sXT}, 1")
    I(f"v_lshrrev_b32 v{xt}, 2, v{k4}")
    I(f"v_add_u32 v{xt}, 31, v{xt}")
    I(f"v_mov_b32 v{xk}, 0x1ffffff0")
    for i in range(4):
        xmask(i)
        I(f"v_and_b32 v{xa+i}, 0xffff, v{vH+i}")
        I(f"v_lshrrev_b32 v{xo}, 5, v{vEB+i}")
        I(f"v_add3_u32 v{xa+i}, v{xa+i}, v{xo}, v{xt}")
        I(f"v_cndmask_b32 v{xa+i}, v{xk}, v{xa+i}, vcc")
        I(f"v_lshlrev_b32 v{xr+i}, 2, v{xa+i}")
        I(f"v_lshlrev_b32 v{xe+i}, 1, v{xa+i}")
        I(f"s_mov_b32 s10, {WS_RECS}")
        I(f"s_mov_b32 s11, {WS_LEID}")
        I(f"buffer_load_dword v{xr+i}, v{xr+i}, s[{sWS}:{sWS+3}], s10 offen sc1")
        I(f"buffer_load_ushort v{xe+i}, v{xe+i}, s[{sWS}:{sWS+3}], s11 offen sc1")
    I("s_waitcnt vmcnt(0)")
    for i in range(4):
        xmask(i)
        I(f"v_lshrrev_b32 v{xa+i}, 20, v{xr+i}")
        I(f"v_and_b32 v{xr+i}, {RMASK:#x}, v{xr+i}")
        I(f"v_lshl_add_u32 v{xe+i}, v{xe+i}, 5, v{vEB+i}")
        I("s_mov_b64 exec, vcc")
        I(f"ds_add_rtn_u32 v{xk+i}, v{xa+i}, v{one} offset:{HIST}")
        I("s_mov_b64 exec, -1")
    I("s_branch K2_XT1R")
    L("K2_XT2")
    for i in range(4):
        I(f"ds_read_u16 v{xa+i}, v{xa+i} offset:{HIST + 2}")
    I("s_waitcnt lgkmcnt(0)")
    for i in range(4):
        xmask(i)
        I(f"v_add_u32 v{xa+i}, v{xa+i}, v{xk+i}")
        I("s_mov_b64 exec, vcc")
        I(f"ds_write2st64_b32 v{xa+i}, v{xr+i}, v{xe+i} offset0:{R0//256} offset1:{R1//256}")
        I("s_mov_b64 exec, -1")
    I("s_branch K2_PADS0")
    SB = 448
    t0, t1, t2, t3 = vP, vP+1, vP+2, vP+3
    L("K2_SLOW")
    I(f"s_add_u32 s{sR0}, s{sR0}, {SB}")
    I(f"s_cmp_lt_u32 s{sR0}, s{sCNT}")
    I("s_cbranch_scc1 K2_BATCH")
    L("K2_FIND")
    I(f"s_cmp_lg_u64 s[{sMSK}:{sMSK+1}], 0")
    I("s_cbranch_scc1 K2_GOT")
    I(f"s_add_u32 s{sCI}, s{sCI}, 1")
    I(f"s_cmp_ge_u32 s{sCI}, 4")
    I("s_cbranch_scc1 K2_EPI")
    I(f"s_lshl_b32 s10, s{sCI}, 8")
    I(f"v_lshl_add_u32 v{vT}, v{lane}, 2, s10")
    I(f"ds_read_u16 v{vT}, v{vT} offset:{HDR+2}")
    I("s_waitcnt lgkmcnt(0)")
    I(f"v_cmp_lt_u32 s[{sMSK}:{sMSK+1}], s{sSKIP}, v{vT}")
    I("s_nop 3")
    I("s_branch K2_FIND")
    L("K2_GOT")
    I(f"s_ff1_i32_b64 s10, s[{sMSK}:{sMSK+1}]")
    I(f"s_bitset0_b64 s[{sMSK}:{sMSK+1}], s10")
    I(f"s_lshl_b32 s11, s{sCI}, 6")
    I(f"s_add_u32 s{sCUR}, s10, s11")
    I(f"s_lshl_b32 s10, s{sCUR}, 2")
    I(f"v_mov_b32 v{vT}, s10")
    I(f"ds_read_b32 v{vT}, v{vT} offset:{HDR}")
    I("s_waitcnt lgkmcnt(0)")
    I(f"v_readfirstlane_b32 s10, v{vT}")
    I("s_nop 3")
    I(f"s_lshr_b32 s{sCNT}, s10, 16")
    I(f"s_and_b32 s{sST}, s10, 0xffff")
    I(f"s_mov_b32 s{sR0}, s{sSKIP}")
    L("K2_BATCH")
    I("s_barrier")
    I(f"v_and_b32 v{t0}, 7, v{lane}")
    I(f"v_mul_u32_u24 v{t1}, {LCAP*4}, v{t0}")
    I(f"v_add_u32 v{t1}, {R0}, v{t1}")
    I(f"v_lshlrev_b32 v{t0}, 2, v{t0}")
    I(f"ds_write_b32 v{t0}, v{t1} offset:{CNT}")
    I(f"v_add_u32 v{t0}, s{sR0}, v{tid}")
    I(f"s_mul_i32 s10, s{sB}, {RS // CELLB}")
    I(f"s_add_u32 s10, s10, s{sCUR}")
    I(f"s_mul_i32 s10, s10, {CELLB}")
    I(f"s_mul_i32 s11, s{sCUR}, {CH}")
    I(f"s_add_u32 s11, s11, s{sST}")
    I(f"v_cmp_gt_u32 vcc, 31, v{t0}")
    I(f"s_lshl_b32 s{sTMP}, s11, 2")
    I(f"s_add_u32 s{sTMP}, s{sTMP}, {WS_RECS}")
    I(f"v_mov_b32 v{t2}, s{sTMP}")
    I(f"s_add_u32 s{sTMP}, s10, 4")
    I(f"v_mov_b32 v{t1}, s{sTMP}")
    I(f"v_cndmask_b32 v{t1}, v{t2}, v{t1}, vcc")
    I(f"v_lshl_add_u32 v{t1}, v{t0}, 2, v{t1}")
    I(f"s_lshl_b32 s{sTMP}, s11, 1")
    I(f"s_add_u32 s{sTMP}, s{sTMP}, {WS_LEID}")
    I(f"v_mov_b32 v{t2}, s{sTMP}")
    I(f"s_lshr_b32 s10, s{sB}, 1")
    I(f"s_mul_i32 s10, s10, {RS // CELLB}")
    I(f"s_add_u32 s10, s10, s{sCUR}")
    I("s_lshl_b32 s10, s10, 1")
    I(f"s_and_b32 s{sTMP}, s{sB}, 1")
    I(f"s_add_u32 s10, s10, s{sTMP}")
    I("s_lshl_b32 s10, s10, 6")
    I(f"s_add_u32 s{sTMP}, s10, {WS_LCELL + 2}")
    I(f"v_mov_b32 v{t3}, s{sTMP}")
    I(f"v_cndmask_b32 v{t3}, v{t2}, v{t3}, vcc")
    I(f"v_lshl_add_u32 v{t3}, v{t0}, 1, v{t3}")
    I(f"s_add_u32 s10, s{sR0}, {SB}")
    I(f"s_min_u32 s10, s10, s{sCNT}")
    I(f"v_cmp_gt_u32 vcc, s10, v{t0}")
    I(f"v_mov_b32 v{t2}, 0x7ffffff0")
    I(f"s_mul_i32 s{sTMP}, s{sCUR}, {CH*32}")
    I(f"v_cndmask_b32 v{t1}, v{t2}, v{t1}, vcc")
    I(f"v_cndmask_b32 v{t3}, v{t2}, v{t3}, vcc")
    I(f"buffer_load_dword v{t1}, v{t1}, s[{sWS}:{sWS+3}], 0 offen sc1")
    I(f"buffer_load_ushort v{t3}, v{t3}, s[{sWS}:{sWS+3}], 0 offen sc1")
    I("s_waitcnt lgkmcnt(0)")
    I("s_barrier")
    I("s_and_saveexec_b64 s[10:11], vcc")
    I("s_waitcnt vmcnt(0)")
    I(f"v_bfe_u32 v{t0}, v{t1}, 20, 10")
    I(f"ds_read_b32 v{t0}, v{t0} offset:{MAP}")
    I(f"v_mov_b32 v{t2}, 4")
    I(f"v_and_b32 v{t1}, {RMASK:#x}, v{t1}")
    I(f"v_and_b32 v{t3}, 0xfff, v{t3}")
    I(f"v_lshl_add_u32 v{t3}, v{t3}, 5, s{sTMP}")
    I("s_waitcnt lgkmcnt(0)")
    I(f"ds_add_rtn_u32 v{t0}, v{t0}, v{t2} offset:{CNT}")
    I("s_waitcnt lgkmcnt(0)")
    I(f"ds_write2st64_b32 v{t0}, v{t1}, v{t3} offset0:0 offset1:{(R1-R0)//256}")
    I("s_mov_b64 exec, -1")
    I("s_waitcnt lgkmcnt(0)")
    I("s_barrier")
    I(f"s_lshl_b32 s10, s{sW}, 2")
    I(f"v_mov_b32 v{t0}, s10")
    I(f"ds_read_b32 v{t0}, v{t0} offset:{CNT}")
    for i in range(8): I(f"v_mov_b32 v{vT2+i}, 0")
    listaddr(lane, t1, t2)
    I("s_waitcnt lgkmcnt(0)")
    I(f"v_readfirstlane_b32 s{sEND}, v{t0}")
    I("s_nop 3")
    pads(lane, t0, t1, t2)
    L("K2_LAST")
    I("s_branch K2_GO")

def regs_of(tok):
    tok = tok.strip()
    m = re.fullmatch(r"v\[(\d+):(\d+)\]", tok)
    if m: return list(range(int(m.group(1)), int(m.group(2)) + 1))
    m = re.fullmatch(r"v(\d+)", tok)
    if m: return [int(m.group(1))]
    return []
def parse(ins):
    op, _, rest = ins.partition(" ")
    ops = [o.strip().split(" ")[0] for o in rest.split(",")] if rest else []
    if op.startswith("v_mfma"):
        return "mfma", regs_of(ops[0]), regs_of(ops[1]) + regs_of(ops[2]), regs_of(ops[3])
    if op.startswith("v_smfmac"):
        return "mfma", regs_of(ops[0]), regs_of(ops[1]) + regs_of(ops[2]) + regs_of(ops[3]), regs_of(ops[0])
    if op.startswith("v_"):
        k = "trans" if op in ("v_exp_f32", "v_rcp_f32") else "valu"
        return k, regs_of(ops[0]), sum((regs_of(o) for o in ops[1:]), []), []
    if op.startswith("ds_read"):
        return "ds", regs_of(ops[0]), regs_of(ops[1]), []
    if op.startswith("buffer_load"):
        return "vm", [], regs_of(ops[0]) + regs_of(ops[1]), []
    return "other", [], [], []
def check_body(body):
    seq = [b for b in body if not b.endswith(":")]
    for skip_dma in (False, True):
        s2 = []
        sk = False
        for b in body:
            if skip_dma and b.startswith("s_cbranch_scc0 K2_ND"):
                s2.append(b); sk = True; continue
            if b.startswith("K2_ND"): sk = False
            if b.endswith(":") or sk: continue
            s2.append(b)
        seq = s2 * 3
        last = {}
        lastc = {}
        pend = []
        for i, ins in enumerate(seq):
            k, d, s, c = parse(ins)
            m = re.search(r"lgkmcnt\((\d+)\)", ins)
            if m:
                n = int(m.group(1))
                while len(pend) > n: pend.pop(0)
            pr = set(sum(pend, []))
            for r in d + s + c:
                assert r not in pr or i < len(s2), f"pending LDS reg v{r} used by {ins} @{i}"
            for r in s + c + d:
                if r not in last: continue
                pk, pi = last[r]; dist = i - pi - 1
                if pk == "mfma":
                    if k == "mfma" and r in c and r not in s: need = 0
                    elif k == "mfma" and r in d and r not in s: need = 0
                    else: need = 12
                elif pk in ("valu", "trans") and k == "mfma" and r in s + c: need = 2
                elif pk == "trans" and k in ("valu", "mfma", "ds", "vm") and r in s: need = 1
                else: need = 0
                assert dist >= need, f"hazard {pk}->{k} v{r} dist {dist} need {need}: {ins} @{i}"
            if k in ("valu", "trans"):
                for r in d:
                    if r in lastc: assert i - lastc[r] - 1 >= 7, f"srcC WAR {ins}"
            for r in c: lastc[r] = i
            for r in d: last[r] = (k, i)
            if k == "ds":
                pend.append(d); assert len(pend) <= 15

hdr = open("/code/" + NAME + ".s.ref").read().split("\n")
for l in hdr:
    if l.startswith("; Override"): break
    out.append(l)
LEAK = opt("leak", "")
if LEAK:
    out.append(f"; @launch kernel={KN} grid=(256,1,1) block=(512,1,1) lds={K2_LDS}")
    out.append("; @launch kernel=spin_kernel grid=(1,1,1) block=(64,1,1) lds=0")
else: out.append(f"; @launch grid=(256,1,1) block=(512,1,1) lds={K2_LDS}")
emit('.amdgcn_target "amdgcn-amd-amdhsa--gfx950"\n.text')
k2()
KL = [(KN, 256, 102)]
if LEAK:
    kind, k = LEAK[:3], int(LEAK[3:])
    emit(".globl spin_kernel\n.p2align 8\n.type spin_kernel,@function\nspin_kernel:")
    I("s_memrealtime s[12:13]")
    I("s_cmp_lg_u32 s2, 0")
    I("s_cbranch_scc1 SP_END")
    I("s_load_dwordx2 s[4:5], s[0:1], 88")
    I("s_waitcnt lgkmcnt(0)")
    I(f"s_add_u32 s4, s4, {WS_TS + 0x100000}")
    I("s_addc_u32 s5, s5, 0")
    I("v_lshlrev_b32 v1, 5, v0")
    for j in range(31):
        I(f"global_load_dword v{2+j}, v1, s[4:5]")
        I(f"global_load_dword v{34+j}, v1, s[4:5] offset:{4*(k%8)}")
        I("v_add_u32 v1, 2048, v1")
    I("s_waitcnt vmcnt(0)")
    I("v_readfirstlane_b32 s6, v2")
    I("s_nop 1")
    I("s_sub_u32 s6, s6, 1000")
    for j in range(31):
        I(f"v_subrev_u32 v{2+j}, s6, v{2+j}")
        I(f"v_subrev_u32 v{34+j}, s6, v{34+j}")
    op = {"max": "max_u32", "min": "min_u32", "avg": "add_u32", "now": "max_u32"}[kind]
    for j in range(1, 31):
        I(f"v_min_u32 v2, v2, v{2+j}")
        I(f"v_{op} v34, v34, v{34+j}")
    I("s_nop 1")
    I("v_readlane_b32 s8, v2, 0")
    I("v_readlane_b32 s9, v34, 0")
    for l in range(1, 64):
        I(f"v_readlane_b32 s10, v2, {l}")
        I(f"v_readlane_b32 s11, v34, {l}")
        I("s_min_u32 s8, s8, s10")
        I(f"s_{op} s9, s9, s11")
    if kind == "avg":
        I(f"s_mul_hi_u32 s9, s9, {(1 << 32) // (31*64)}")
    if kind == "now":
        I("s_sub_u32 s8, s12, s6")
        I("s_sub_u32 s6, s8, s9")
    else: I("s_sub_u32 s6, s9, s8")
    I("s_lshl_b32 s6, s6, 2")
    I("s_min_u32 s6, s6, 30000")
    I("s_memrealtime s[8:9]")
    I("s_waitcnt lgkmcnt(0)")
    L("SP_L")
    I("s_memrealtime s[10:11]")
    I("s_waitcnt lgkmcnt(0)")
    I("s_sub_u32 s7, s10, s8")
    I("s_cmp_lt_u32 s7, s6")
    I("s_cbranch_scc1 SP_L")
    L("SP_END")
    I("s_endpgm")
    KL.append(("spin_kernel", 72, 16))
emit('.section .rodata,"a"')
for name, vg, sg in KL:
    emit(f""".p2align 6
.amdhsa_kernel {name}
  .amdhsa_next_free_vgpr {vg}
  .amdhsa_next_free_sgpr {sg}
  .amdhsa_accum_offset {vg}
  .amdhsa_group_segment_fixed_size 0
  .amdhsa_kernarg_size 96
  .amdhsa_user_sgpr_count 2
  .amdhsa_user_sgpr_kernarg_segment_ptr 1
  .amdhsa_system_sgpr_workgroup_id_x 1
.end_amdhsa_kernel""")
path = sys.argv[1] if len(sys.argv) > 1 else "/code/" + NAME + ".s"
open(path, "w").write("\n".join(out) + "\n")
print("wrote", path, len(out), "lines; lds", K2_LDS)
```

```python
import sys, re, math

NAME = "standalone__edge_featured_mpnn_gatedgcn__graph"
OPT = dict(kv.split("=") for kv in sys.argv[2:])
def opt(k, d):
    v = OPT.get(k)
    if v is None: return d
    return type(d)(v)

N, E = 50000, 800000
NCH, CH = 256, 3125
NB, BN = 256, 196
CELLB = 128
RS = 257 * CELLB
WS_EXT = NB * RS
QCAP = 48
KQ = 87382
LROW = 4 * (QCAP + 4)
WS_RECS = 0x1100000
WS_XB = 0x1500000
WS_HDR = 0x1600000
WS_EPOCH = 0x1700000
WS_USED = WS_EPOCH + 128
WI_U, WI_B, WI_V, WI_A, WI_C = 0, 8192, 16384, 24576, 32768
TMASK = 0x00f0f0f0
T0 = opt("t0", 12500)
LPH = (N - T0 + 2) // 3
SOFF = LPH - T0
PHM = (1 << 30) // LPH
assert 0 <= SOFF and N + SOFF <= 65536 and ((N - 1 + SOFF) * PHM) >> 30 <= 3
LOG2E = 1.4426950408889634
import struct
def f2u(f): return struct.unpack("<I", struct.pack("<f", f))[0]

out = []
def emit(s=""):
    for l in s.strip("\n").split("\n"):
        out.append(l.rstrip())
def I(s): out.append("    " + s)
def L(s): out.append(s + ":")
def C(s): out.append("    ; " + s)

def srd(d, lo, hi, size, add=None):
    if add is None:
        I(f"s_mov_b32 s{d}, s{lo}")
        I(f"s_mov_b32 s{d+1}, s{hi}")
    else:
        I(f"s_add_u32 s{d}, s{lo}, {add}")
        I(f"s_addc_u32 s{d+1}, s{hi}, 0")
    I(f"s_mov_b32 s{d+2}, {size}")
    I(f"s_mov_b32 s{d+3}, 0x20000")

def wave_scan(v, fill=None, half=False):
    def gap():
        if fill and len(fill) >= 2:
            I(fill.pop(0)); I(fill.pop(0))
        else: I("s_nop 1")
    for sh in (1, 2, 4, 8):
        gap()
        I(f"v_add_u32_dpp v{v}, v{v}, v{v} row_shr:{sh} row_mask:0xf bank_mask:0xf bound_ctrl:0")
    gap()
    I(f"v_add_u32_dpp v{v}, v{v}, v{v} row_bcast:15 row_mask:0xa bank_mask:0xf")
    if half: return
    gap()
    I(f"v_add_u32_dpp v{v}, v{v}, v{v} row_bcast:31 row_mask:0xc bank_mask:0xf")

TS = opt("ts", 0)
WS_TS = 0x3000000
SMAP = {1: {0: 0, 'd': 1, 'i': 2, 'w': 3, 2: 4, 5: 5, 6: 6, 7: 7},
        5: {0: 0, 'w': 1, 2: 2, 'a': 3, 'b': 4, 'c': 5, 3: 6, 7: 7},
        6: {0: 0, 'p': 1, 'q': 2, 'd': 3, 'i': 4, 'o': 5, 'k': 6, 7: 7},
        8: {0: 0, 'i': 1, 'w': 2, 1: 3, 2: 4, 3: 5, 7: 7},
        10: {0: 0, 'd': 1, 'i': 2, 'o': 3, 'A': 4, 'w': 5, 2: 6, 7: 7},
        9: {0: 0, 'q': 1, 'd': 2, 'i': 3, 'w': 4, 2: 5, 3: 6, 7: 7},
        7: {0: 0, 'k': 1, 'w': 2, 1: 3, 's': 4, 2: 5, 3: 6, 7: 7}}
def stamp(i):
    if TS in SMAP:
        i = SMAP[TS].get(i)
        if i is None: return
    elif isinstance(i, str): return
    if TS == 3:
        if i not in (0, 5, 6, 7): return
        I("s_memtime s[98:99]")
        I("s_waitcnt lgkmcnt(0)")
        I(f"s_mov_b32 s{88+{5:1,6:2,0:3,7:4}[i]}, s98")
    if TS:
        I("s_memrealtime s[98:99]" if TS != 2 else "s_memtime s[98:99]")
        I("s_waitcnt lgkmcnt(0)")
        I(f"s_mov_b32 s{88+i}, s98")
def stamp_out(n, wslo, swave, nw, off, v):
    if not TS: return
    I("s_waitcnt vmcnt(0)")
    stamp(7)
    I("s_mov_b64 exec, 1")
    I(f"s_mul_i32 s87, s2, {nw}")
    I(f"s_add_u32 s87, s87, s{swave}")
    I("s_lshl_b32 s87, s87, 5")
    I(f"s_add_u32 s87, s87, {WS_TS + off}")
    I(f"v_mov_b32 v{v}, s87")
    for i in range(n):
        I(f"v_mov_b32 v{v+1}, s{88+i}")
        I(f"global_store_dword v{v}, v{v+1}, s[{wslo}:{wslo+1}] offset:{4*i}")
K1_LD = opt("k1ld", "nt")
def pol(p): return (" " + p.replace("_", " ")) if p else ""

SM1 = opt("sm1", 1)
TAB, ZROW, CNT, FLAG, HIST, MAP = 0, 2048, 2112, 2176, 2304, 6400
T1B = 8448
LCAP = 544
LMAX = LCAP - 64
LUT = 8448 + 2304
R0 = LUT + 4096
R1 = R0 + 8 * LCAP * 4
assert R1 % 256 == 0 and R0 % 256 == 0
WL = R0
WU = R1 + 8 * LCAP * 4
XO = WU + 8192
STG = XO + 26112
SLOT = 5184
DT = 264
PRIV = 4352
WST = SLOT + PRIV
K2_LDS = STG + 8 * WST
assert K2_LDS <= 163840, K2_LDS

vWB, vWV, vWC, vAT = 0, 32, 64, 72
vACC = 88
vX, vE, vT1, vT2 = 152, 168, 172, 180
vP, vQ, vR = 188, 204, 220
vQD = 236
vR1 = 240
vCP, vCH, vAX, vAE, vC1, vC2, vARX, vART, vARP = 241, 242, 243, 244, 245, 246, 247, 248, 249
vL1 = 250
vARE = 251
vT = 252
DEN = lambda ft: vACC + 32 * ft
NUM = lambda ft: vACC + 32 * ft + 16
def rr(a, n): return f"v[{a}:{a+n-1}]"
def mfma(d, a, b, c=None):
    return f"v_mfma_f32_32x32x16_bf16 {rr(d,16)}, {rr(a,4)}, {rr(b,4)}, " + ("0" if c is None else rr(c, 16))

K2_XP = opt("k2x", "")
K2_EP = opt("k2e", "")
K2_CP = opt("k2c", "")
K2_OP = opt("k2o", "sc1")

sW, sB = 3, 12
sX, sEP, sWS, sOUT = 16, 20, 24, 28
sCEL, sWI = 32, 36
sM = 40
sT, sN, sSTG, s128, sL, sSKIP, sMORE = 72, 73, 74, 75, 76, 77, 78
sCI, sCUR, sR0, sCNT, sST, sMSK = 79, 80, 81, 82, 83, 84
sTMP = 86
sWIN = 96

def dma_tile(par):
    r = []
    for i in range(4):
        r.append(f"s_add_u32 m0, s{sSTG}, {par*SLOT + i*1040}")
        r.append(f"v_mad_u32_u16 v{vQD+i}, v{vQD+i}, s{s128}, v{vCP} op_sel:[1,0,0,0]")
        r.append(f"buffer_load_dwordx4 v{vQD+i}, s[{sX}:{sX+3}], 0 offen{pol(K2_XP)} lds")
    r.append(f"s_add_u32 m0, s{sSTG}, {par*SLOT + 4160}")
    r.append(f"v_add_u32 v{vR1}, v{vR1}, v{vCH}")
    r.append(f"buffer_load_dwordx4 v{vR1}, s[{sEP}:{sEP+3}], 0 offen{pol(K2_EP)} lds")
    return r

def valu_stream(G, H):
    s = []
    ex = [(f"v_exp_f32 v{G+i}, v{G+i}", 8) for i in range(16)]
    ad = [(f"v_add_f32 v{G+i}, 1.0, v{G+i}", 4) for i in range(16)]
    rc = [(f"v_rcp_f32 v{G+i}, v{G+i}", 8) for i in range(16)]
    mu = [(f"v_mul_f32 v{H+i}, v{G+i}, v{H+i}", 4) for i in range(16)]
    ce = [(f"v_cvt_pk_bf16_f32 v{G+i}, v{G+2*i}, v{G+2*i+1}", 4) for i in range(8)]
    cm = [(f"v_cvt_pk_bf16_f32 v{H+i}, v{H+2*i}, v{H+2*i+1}", 4) for i in range(8)]
    PK = opt("pk", 0)
    pa = [(f"v_pk_add_f32 v[{G+2*i}:{G+2*i+1}], v[{G+2*i}:{G+2*i+1}], 1.0 op_sel_hi:[1,0]", 4) for i in range(8)]
    pm = [(f"v_pk_mul_f32 v[{H+2*i}:{H+2*i+1}], v[{G+2*i}:{G+2*i+1}], v[{H+2*i}:{H+2*i+1}]", 4) for i in range(8)]
    if PK & 2:
        s += ex[:8] + ex[8:10] + pa[:4] + ex[10:] + rc[:2] + pa[4:] + rc[2:]
    elif PK & 4:
        s += ex + [("s_nop 0", 0)] + pa + rc
    else:
        for i in range(16 + 4):
            if i < 16: s.append(ex[i])
            if 0 <= i - 2 < 16: s.append(ad[i-2])
            if 0 <= i - 4 < 16: s.append(rc[i-4])
    s += pm if PK & 1 else mu
    return s

def interleave(valu, mf, extra, pos, spacing=opt('sp', 28)):
    res = []
    cum = 0; k = 0
    for ins, c in valu:
        while k < len(mf) and cum >= pos[k] * spacing:
            res.extend(extra.get(('b', k), []))
            res.append(mf[k])
            res.extend(extra.get(('a', k), []))
            k += 1
        res.append(ins); cum += c
    assert k == len(mf)
    return res

def g_mfmas(D, ft):
    m = [mfma(D, vE, vWC + 4*ft)]
    if SM1:
        m += [mfma(D, vX + 4*q, vWB + 16*ft + 4*q, D) for q in range(4)]
        m += [f"v_smfmac_f32_32x32x32_bf16 {rr(D,16)}, {rr(vT1,4)}, {rr(vAT+8*ft,8)}, v{vT1+4}"]
        return m
    m += [mfma(D, vT1 + 4*s, vAT + 8*ft + 4*s, D) for s in range(2)]
    m += [mfma(D, vX + 4*q, vWB + 16*ft + 4*q, D) for q in range(4)]
    return m
def h_mfmas(D, ft):
    return [mfma(D, vX + 4*q, vWV + 16*ft + 4*q, None if q == 0 else D) for q in range(4)]
vIX = vT1 + 5
def s_mfmas(acc, src):
    return [f"v_smfmac_f32_32x32x32_bf16 {rr(acc,16)}, {rr(vT2+4*s,4)}, {rr(src+8*s,8)}, v{vIX}" for s in range(2)]
def t1_reads():
    return [f"ds_read_b128 {rr(vT1,4)}, v{vL1} offset:{T1B}", f"ds_read_b32 v{vT1+4}, v{vL1} offset:{T1B+16}"]

H0_, DL_, E_, LAST_ = 2, 7, 8, 13
POS = [float(x) / 28 for x in opt("pos", "0_24_48_72_96_120_148_176_204_228_252_276_300_352").split("_")]
def phaseA(par):
    o = par * 128
    mf = s_mfmas(NUM(1), vQ) + h_mfmas(vQ, 0) + s_mfmas(DEN(1), vR) + g_mfmas(vR, 1)
    ex = {}
    ex[('a', 0)] = [f"ds_read_u8 v{vQD+u}, v{vART} offset:{o + 16*(u>>1) + 4*(u&1)}" for u in range(4)] + \
                   [f"ds_read_u8 v{vL1}, v{vARP} offset:{o + 128}"]
    ex[('a', H0_+3)] = ["s_waitcnt lgkmcnt(0)"] + [f"v_lshl_add_u32 v{vQD+u}, v{vQD+u}, 6, v{vC2}" for u in range(4)] + \
                       [f"v_lshl_add_u32 v{vL1}, v{vL1}, 6, v{vC1}"]
    ex[('a', DL_)] = [f"ds_read_b64_tr_b16 v[{vT2+2*u}:{vT2+2*u+1}], v{vQD+u}" for u in range(4)]
    ex[('a', LAST_)] = t1_reads() + [f"ds_read_b128 {rr(vQD,4)}, v{vARX} offset:{o + 2*128}",
                                     f"ds_read_b32 v{vR1}, v{vARE} offset:{o + 2*128}",
                                     f"s_add_u32 s{sT}, s{sT}, 1"]
    return interleave(valu_stream(vP, vQ), mf, ex, POS)

def phaseB(par):
    mf = s_mfmas(NUM(0), vQ) + h_mfmas(vQ, 1) + s_mfmas(DEN(0), vP) + g_mfmas(vP, 0)
    ex = {}
    ex[('b', 0)] = ["s_waitcnt lgkmcnt(4)"]
    ex[('b', H0_)] = ["s_waitcnt vmcnt(0)", f"ds_read_b128 {rr(vE,4)}, v{vAE}"]
    for q in range(4):
        ex[('a', H0_+q)] = [f"ds_read_b128 {rr(vX+4*q,4)}, v{vAX} offset:{16*q}"]
    ex[('b', E_)] = ["s_waitcnt lgkmcnt(4)"]
    for q in range(4): ex[('b', E_+1+q)] = [f"s_waitcnt lgkmcnt({3-q})"]
    ex[('a', E_+4)] = [f"s_cmp_lt_i32 s{sT}, s{sN1}",
                       f"s_cbranch_scc0 K2_ND_{par}"] + dma_tile(0) + [f"K2_ND_{par}:"]
    return interleave(valu_stream(vR, vQ), mf, ex, POS)

sF0, sF1, sEND = 13, 14, 15
sXT = 97
sN1 = 38
sNUL = 39
sTH = 4
PRIO = opt("prio", 1)

def listaddr(lane, t0, t3):
    I(f"v_bfe_u32 v{t0}, v{lane}, 3, 2")
    I(f"v_lshl_add_u32 v{vARX}, v{t0}, 5, s{sL}")
    I(f"v_lshrrev_b32 v{t0}, 5, v{lane}")
    I(f"v_lshl_add_u32 v{vARX}, v{t0}, 4, v{vARX}")
    I(f"v_and_b32 v{t0}, 3, v{lane}")
    I(f"v_and_b32 v{t3}, 28, v{lane}")
    I(f"v_lshl_add_u32 v{t0}, v{t0}, 5, v{t3}")
    I(f"v_add_u32 v{vARP}, s{sL}, v{t0}")
    I(f"v_lshrrev_b32 v{t3}, 1, v{lane}")
    I(f"v_lshl_add_u32 v{vARE}, v{t3}, 2, s{sL}")
    I(f"v_add_u32 v{vARE}, {R1-R0}, v{vARE}")
    I(f"v_bfe_u32 v{t0}, v{lane}, 2, 2")
    I(f"v_lshl_add_u32 v{vART}, v{t0}, 5, s{sL}")
    I(f"v_lshrrev_b32 v{t0}, 5, v{lane}")
    I(f"v_lshl_add_u32 v{vART}, v{t0}, 3, v{vART}")

vOWN = vT + 1
def pads(lane, t0, t1, t2):
    W2 = f"offset0:0 offset1:{(R1-R0)//256}"
    I(f"v_mov_b32 v{t2}, 0xffff0000")
    I(f"v_or_b32 v{t1}, s{sNUL}, v{t2}")
    I(f"v_mov_b32 v{t2}, 0x7fffff00")
    I(f"v_lshl_add_u32 v{t0}, v{lane}, 2, s{sEND}")
    I(f"s_sub_u32 s{sN}, s{sEND}, s{sL}")
    I(f"ds_write2st64_b32 v{t0}, v{t1}, v{t2} {W2}")
    I(f"s_add_u32 s{sN}, s{sN}, 127")
    I(f"s_lshr_b32 s{sN}, s{sN}, 7")
    I(f"s_sub_i32 s{sN1}, s{sN}, 1")

KN = NAME + "_kernel"
P_HIST, P_HDR = MAP, WU
H0 = 1536
P_EIMG = STG
P_CIMG = P_EIMG + 64 * LROW
assert P_CIMG + 256 * LROW <= K2_LDS
sTAG, sEPN, sSPIN = 36, 100, 101
def k2():
    emit(f"""
.globl {KN}
.p2align 8
.type {KN},@function
{KN}:""")
    I("s_cmp_ge_u32 s2, 256")
    I("s_cbranch_scc1 K2_END")
    stamp(0)
    KA = sM
    I(f"s_load_dwordx4 s[{KA+4}:{KA+7}], s[0:1], 16")
    I(f"s_load_dwordx2 s[8:9], s[0:1], 88")
    I(f"s_load_dwordx4 s[{KA}:{KA+3}], s[0:1], 0")
    I(f"s_load_dwordx8 s[{KA+8}:{KA+15}], s[0:1], 32")
    I(f"s_load_dwordx4 s[{KA+16}:{KA+19}], s[0:1], 64")
    tid, lane = 255, 254
    CPF = opt("cpf", 192)
    if CPF:
        I(f"s_getpc_b64 s[{sTMP}:{sTMP+1}]")
        L("K2_PC")
        I(f"v_lshlrev_b32 v{vT}, 7, v0")
        I(f"v_min_u32 v{vT}, K2_LAST-K2_PC, v{vT}")
        I(f"v_cmp_gt_u32 vcc, {CPF}, v0")
        I("s_cbranch_vccz K2_NOCPF")
        I(f"global_load_dword v{vT+1}, v{vT}, s[{sTMP}:{sTMP+1}]")
        L("K2_NOCPF")
    vC = vACC
    vA = vACC + 16
    hh = vACC + 28
    vRK = vR
    vMIN = vQ + 8
    vTM = vQ + 10
    u = lambda i: vP + i
    k4, ecb, hda, one, l16 = vE, vE + 1, vE + 2, vE + 3, vT1
    pD, pS, pH, pK, pA, pB, pI, pW = 8, 16, 24, 32, 40, 48, 56, 64
    I(f"v_mov_b32 v{tid}, v0")
    I(f"v_lshrrev_b32 v{u(0)}, 6, v0")
    I(f"v_and_b32 v{lane}, 63, v0")
    I(f"v_readfirstlane_b32 s7, v{u(0)}")
    I("s_and_b32 s10, s2, 7")
    I("s_lshr_b32 s11, s2, 3")
    I("s_lshl_b32 s10, s10, 5")
    I(f"s_add_u32 s{sB}, s10, s11")
    I(f"s_mul_i32 s13, s{sB}, {CH*4}")
    I(f"v_lshlrev_b32 v{u(1)}, 4, v0")
    I(f"v_lshlrev_b32 v1, 3, v0")
    I(f"v_lshlrev_b32 v2, 2, v0")
    I(f"v_mov_b32 v3, 0")
    I(f"v_and_b32 v4, 0x3fc, v2")
    I(f"ds_write_b32 v4, v3 offset:{P_HIST}")
    ASYM = opt("asym", 16)
    I(f"s_and_b32 s10, s7, 3")
    I(f"s_lshr_b32 s{sW}, s7, 2")
    I(f"s_lshl1_add_u32 s{sW}, s10, s{sW}")
    I(f"s_xor_b32 s{sW}, s{sW}, 1")
    I(f"s_movk_i32 s14, 8192")
    I(f"s_movk_i32 s15, 12288")
    I("s_waitcnt lgkmcnt(0)")
    stamp('p')
    vq = []
    def younger(tag): return len(vq) - 1 - max(i for i, t in enumerate(vq) if t == tag)
    q0, q1 = 64, 68
    srd(q0, KA+6, KA+7, CH*4, "s13")
    srd(q1, KA+4, KA+5, CH*4, "s13")
    for r_, q_ in ((pD, q0), (pS, q1)):
        I(f"buffer_load_dwordx4 {rr(r_,4)}, v{u(1)}, s[{q_}:{q_+3}], 0 offen{pol(K1_LD)}")
        I(f"buffer_load_dwordx2 {rr(r_+4,2)}, v1, s[{q_}:{q_+3}], s14 offen{pol(K1_LD)}")
        I(f"buffer_load_dword v{r_+6}, v2, s[{q_}:{q_+3}], s15 offen{pol(K1_LD)}")
        vq += ["D" if r_ == pD else "S"] * 3
        if r_ == pD and opt("db", 1): I("s_barrier")
    I(f"s_add_u32 s10, s8, {WS_EPOCH}")
    I("s_addc_u32 s11, s9, 0")
    I(f"s_load_dword s{sEPN}, s[10:11], 0")
    if not opt("db", 1): I("s_barrier")
    I(f"v_lshrrev_b32 v1, 3, v0")
    I(f"v_lshlrev_b32 v{hda}, 2, v1")
    I(f"v_and_b32 v{u(9)}, 7, v0")
    I(f"v_and_b32 v5, 16, v0")
    I(f"v_lshlrev_b32 v5, 1, v5")
    I(f"v_xor_b32 v5, v5, v{u(1)}")
    I(f"v_lshlrev_b32 v{l16}, 4, v{lane}")
    I(f"v_and_b32 v{vCP}, 16, v{lane}")
    I(f"v_lshlrev_b32 v{vCP}, 2, v{vCP}")
    I(f"v_xor_b32 v{vX}, v{vCP}, v{l16}")
    I(f"v_and_b32 v{vCP}, 0x70, v{vX}")
    if SOFF: I(f"v_subrev_u32 v{vCP}, {SOFF * 128}, v{vCP}")
    srd(sX, KA, KA+1, N*128)
    WLPOS = len(out)
    mark = len(out)
    I(f"s_mul_i32 s11, s{sW}, 49")
    I("s_sub_i32 s11, s11, 7")
    I("s_ashr_i32 s11, s11, 1")
    I(f"s_max_i32 s{sWIN}, s11, 0")
    I(f"v_lshrrev_b32 v{u(5)}, 5, v{lane}")
    def wloads():
        srd(q0, KA+10, KA+11, 8192)
        I(f"buffer_load_dwordx4 {rr(pW,4)}, v5, s[{q0}:{q0+3}], 0 offen"); vq.append("B")
        srd(q1, KA+12, KA+13, 2048)
        I(f"buffer_load_dwordx4 {rr(pW+4,4)}, v5, s[{q1}:{q1+3}], 0 offen"); vq.append("B")
        I(f"s_lshl_b32 s10, s7, 10")
        for kp, off in ((KA+8, WI_A), (KA+16, WI_V), (KA+14, WI_U)):
            I(f"s_mov_b32 s{q0}, s{kp}")
            I(f"s_mov_b32 s{q0+1}, s{kp+1}")
            I(f"s_add_u32 m0, s10, {WL + off}")
            I("s_nop 0")
            I(f"buffer_load_dwordx4 v5, s[{q0}:{q0+3}], 0 offen lds"); vq.append("W")
    def xloads():
        I(f"s_mul_i32 s10, s{sB}, {BN*128}")
        I(f"s_lshl_b32 s11, s7, 10")
        I(f"s_add_u32 s10, s10, s11")
        I(f"s_mul_i32 s11, s7, 1040")
        I(f"s_cmp_lg_u32 s7, 0")
        I(f"s_cbranch_scc1 K2_NOX3")
        for i in (3, 0, 1, 2):
            I(f"s_add_u32 m0, s11, {XO + i*8320}")
            I(f"s_add_u32 s14, s10, {i*8192}")
            I(f"buffer_load_dwordx4 v{vX}, s[{sX}:{sX+3}], s14 offen lds")
            if i == 3: L("K2_NOX3")
            else: vq.append("X")
    srd(sEP, KA+2, KA+3, E*32)
    srd(sOUT, KA+18, KA+19, N*128)
    srd(sWS, 8, 9, WS_USED)
    I(f"v_lshrrev_b32 v{u(6)}, 5, v{tid}")
    I(f"v_and_b32 v{u(7)}, 15, v{tid}")
    I(f"v_cmp_eq_u32 vcc, v{u(6)}, v{u(7)}")
    I(f"v_and_b32 v{u(6)}, 16, v{tid}")
    I(f"v_mov_b32 v{u(7)}, 0x3f80")
    I(f"v_lshlrev_b32 v{u(7)}, v{u(6)}, v{u(7)}")
    I(f"v_cndmask_b32 v{u(7)}, 0, v{u(7)}, vcc")
    I(f"v_lshlrev_b32 v{u(6)}, 2, v{tid}")
    I(f"v_mov_b32 v{u(8)}, 0")
    I(f"ds_write_b32 v{u(6)}, v{u(7)}")
    if SM1:
        I(f"v_bfe_u32 v{u(7)}, v{tid}, 3, 1")
        I(f"v_and_b32 v{u(13)}, 7, v{tid}")
        I(f"v_lshl_add_u32 v{u(7)}, v{u(7)}, 2, v{u(13)}")
        I(f"v_lshrrev_b32 v{u(12)}, 6, v{tid}")
        I(f"v_cmp_eq_u32 vcc, v{u(7)}, v{u(12)}")
        I(f"v_bfe_u32 v{u(12)}, v{tid}, 4, 2")
        I(f"v_mov_b32 v{u(7)}, 0x3f80")
        I(f"v_cndmask_b32 v{u(7)}, 0, v{u(7)}, vcc")
        I(f"v_cmp_lt_u32 vcc, 3, v{u(13)}")
        I(f"v_mul_u32_u24 v{u(12)}, 0x5555, v{u(12)}")
        I(f"v_and_b32 v{u(13)}, 60, v{u(6)}")
        I(f"v_cndmask_b32 v{u(7)}, v{u(7)}, v{u(12)}, vcc")
        I(f"ds_write_b32 v{u(6)}, v{u(7)} offset:{T1B}")
        I(f"ds_write_b32 v{u(13)}, v{u(8)} offset:{T1B + 2048}")
    I(f"ds_write_b32 v{u(6)}, v{u(8)} offset:{ZROW}")
    I(f"ds_write2st64_b32 v{u(6)}, v{u(8)}, v{u(8)} offset0:{HIST//256} offset1:{HIST//256 + 8}")
    I(f"s_movk_i32 s{s128}, 128")
    I(f"s_mul_i32 s{sSTG}, s{sW}, {WST}")
    I(f"s_add_u32 s{sSTG}, s{sSTG}, {STG}")
    I(f"s_movk_i32 s{sSKIP}, {QCAP}")
    I(f"s_add_u32 s{sNUL}, s{sWIN}, 32")
    I(f"s_lshl_b32 s11, s{sWIN}, 6")
    I(f"s_mov_b32 s{sXT}, 0")
    I(f"v_bfe_u32 v{u(6)}, v{lane}, 4, 1")
    I(f"v_and_b32 v{vCH}, 1, v{lane}")
    I(f"v_lshlrev_b32 v{vCH}, 4, v{vCH}")
    I(f"v_lshlrev_b32 v{vC1}, 5, v{u(5)}")
    I(f"v_subrev_u32 v{vC1}, s11, v{vC1}")
    I(f"v_and_b32 v{u(7)}, 3, v{lane}")
    I(f"v_lshlrev_b32 v{u(7)}, 3, v{u(7)}")
    I(f"v_lshl_add_u32 v{vC2}, v{u(6)}, 5, v{u(7)}")
    I(f"v_subrev_u32 v{vC2}, s11, v{vC2}")
    I(f"v_bfe_u32 v{u(8)}, v{lane}, 2, 2")
    I(f"v_mul_u32_u24 v{u(8)}, 1040, v{u(8)}")
    I(f"v_lshl_add_u32 v{u(8)}, v{u(6)}, 9, v{u(8)}")
    I(f"v_lshl_add_u32 v{u(8)}, v{u(7)}, 4, v{u(8)}")
    I(f"v_bfe_u32 v{u(6)}, v{lane}, 1, 1")
    I(f"v_xor_b32 v{u(6)}, v{u(6)}, v{u(5)}")
    I(f"v_lshl_add_u32 v{u(8)}, v{u(6)}, 6, v{u(8)}")
    I(f"v_add_u32 v{vAX}, s{sSTG}, v{u(8)}")
    I(f"v_bfe_u32 v{u(6)}, v{lane}, 2, 3")
    I(f"v_add_u32 v{u(6)}, v{u(6)}, v{u(7)}")
    I(f"v_lshl_add_u32 v{u(6)}, v{u(6)}, 1, v{u(5)}")
    I(f"v_lshl_add_u32 v{vAE}, v{u(6)}, 4, s{sSTG}")
    I(f"v_add_u32 v{vAE}, 4160, v{vAE}")
    I(f"s_mul_i32 s{sL}, s{sW}, {LCAP*4}")
    I(f"s_add_u32 s{sL}, s{sL}, {R0}")
    listaddr(lane, u(6), u(7))
    def ownaddr(d, lab, t):
        I(f"v_and_b32 v{d}, 31, v{lab}")
        I(f"v_add_u32 v{d}, s{sWIN}, v{d}")
        I(f"v_bfe_u32 v{t}, v{d}, 1, 1")
        I(f"v_xor_b32 v{t}, v{t}, v{u(5)}")
        I(f"v_lshlrev_b32 v{t}, 6, v{t}")
        I(f"v_lshl_add_u32 v{t}, v{d}, 7, v{t}")
        I(f"v_lshrrev_b32 v{d}, 3, v{d}")
        I(f"v_lshl_add_u32 v{d}, v{d}, 4, v{t}")
    ownaddr(u(14), lane, u(6))
    I(f"v_lshrrev_b32 v{u(6)}, 1, v{lane}")
    I(f"v_xor_b32 v{u(6)}, v{u(6)}, v{lane}")
    I(f"v_and_b32 v{u(6)}, 4, v{u(6)}")
    I(f"v_mul_u32_u24 v{u(6)}, 3, v{u(6)}")
    I(f"v_xor_b32 v{u(6)}, v{u(6)}, v{lane}")
    ownaddr(u(3), u(6), u(7))
    I(f"v_mov_b32 v{vIX}, 0xdddd")
    lo0, hi0, lo1, hi1 = sT, sN, sMSK, sMSK + 1
    I(f"s_mul_i32 s10, s{sW}, 49")
    I(f"s_sub_i32 s{lo0}, s10, 7")
    I(f"s_ashr_i32 s{lo0}, s{lo0}, 1")
    I(f"s_add_i32 s{hi0}, s10, 8")
    I(f"s_ashr_i32 s{hi0}, s{hi0}, 1")
    I(f"s_add_i32 s{lo1}, s10, 42")
    I(f"s_ashr_i32 s{lo1}, s{lo1}, 1")
    I(f"s_add_i32 s{hi1}, s{lo0}, 32")
    I(f"s_cmp_eq_u32 s{sW}, 7")
    I(f"s_cselect_b32 s{lo1}, {BN}, s{lo1}")
    I(f"s_cselect_b32 s{hi1}, {BN}, s{hi1}")
    I(f"v_lshlrev_b32 v{k4}, 2, v{u(9)}")
    vEB = vQ + 4
    I(f"v_mul_u32_u24 v{vEB}, {CH*8}, v{hda}")
    for i in range(1, 4):
        I(f"v_add_u32 v{vEB+i}, {64*i*CH*32}, v{vEB}")
    I(f"v_mov_b32 v{one}, 4")
    I(f"v_mov_b32 v{ecb}, 1")
    I(f"v_and_b32 v{u(11)}, 31, v{lane}")
    I(f"v_add_u32 v{u(11)}, s{sWIN}, v{u(11)}")
    I(f"v_lshlrev_b32 v{u(12)}, 4, v{u(11)}")
    I(f"v_lshl_add_u32 v{u(12)}, v{u(5)}, 3, v{u(12)}")
    for i in range(4): I(f"v_mov_b64 v[{vT2+2*i}:{vT2+2*i+1}], 0")
    I(f"s_lshl_b32 s{sEND}, s{sW}, 2")
    I(f"v_mov_b32 v{vMIN}, s{sEND}")
    I(f"v_lshlrev_b32 v{vMIN+1}, 2, v{u(11)}")
    static = out[mark:]; del out[mark:]
    WLP = opt("wl", 2)
    if WLP == 0: wloads()
    XP_ = opt("xp", 4)
    if XP_ == 0: xloads()
    SP = opt("sp0", 0)
    SPN = opt("spn", 1000)
    if SP:
        out.extend(static[:SPN]); static = static[SPN:]
    c1, c2, c3 = 60, 61, 62
    pm = 78
    pX = 23
    xb = lambda i: (23, 23, 23, 23, 31, 31, 39)[i]
    I(f"s_mov_b32 s{c1}, 85599")
    I(f"s_mov_b32 s{c2}, {-BN & 0xffffffff}")
    I(f"s_movk_i32 s{c3}, {H0}")
    I(f"v_mov_b32 v7, {KQ}")
    I(f"s_mov_b32 s10, {SOFF << 16}")
    I(f"v_lshl_add_u32 v{pI}, v{lane}, 10, s10")
    for i in range(1, 4): I(f"v_add_u32 v{pI+i}, {i << 8}, v{pI}")
    I(f"v_and_b32 v{pI+4}, 127, v{tid}")
    I(f"v_lshl_add_u32 v{pI+4}, v{pI+4}, 9, s10")
    I(f"v_add_u32 v{pI+5}, 256, v{pI+4}")
    I(f"v_lshl_add_u32 v{pI+6}, v{lane}, 8, s10")
    I(f"v_lshrrev_b32 v23, 6, v{tid}")
    I(f"v_lshrrev_b32 v31, 7, v{tid}")
    I(f"v_add_u32 v31, 8, v31")
    I(f"v_mov_b32 v39, 12")
    I(f"v_cmp_gt_u32 s[{pm}:{pm+1}], {CH - 3072}, v{tid}")
    I(f"s_mov_b32 s11, {RS}")
    I(f"v_lshlrev_b32 v3, 4, v{u(9)}")
    I(f"v_mad_u32_u24 v4, v1, s11, v3")
    I(f"v_mul_u32_u24 v6, {LROW // 4}, v1")
    I(f"v_lshl_add_u32 v6, v{u(9)}, 2, v6")
    I(f"v_lshlrev_b32 v3, 2, v6")
    I(f"v_add_u32 v3, {P_CIMG}, v3")
    I(f"v_add_u32 v6, {P_EIMG}, v6")
    I(f"v_mov_b32 v{vTM}, {TMASK:#x}")
    I(f"v_mov_b32 v15, 0x0f0f0f")
    X0 = (LROW // 16) * H0
    sSO = sCI
    def cload(i):
        so = "0" if i == 0 else f"s{sSO+i-1}"
        I(f"buffer_load_dwordx4 {rr(vC+4*i,4)}, v{u(1)}, s[{sCEL}:{sCEL+3}], {so} offen sc1")
    def cloads():
        if opt("dly", 0): I(f"s_sleep {opt('dly', 0)}")
        stamp('w')
        for i in range(4): cload(i); vq.append("C")
    def prod(idx):
        n = len(idx)
        for i in idx: I(f"v_mul_u32_u24 v{pB+i}, s{c1}, v{pD+i}")
        for i in idx: I(f"v_lshrrev_b32 v{pB+i}, 24, v{pB+i}")
        for i in idx:
            I(f"v_lshl_add_u32 v{pH+i}, v{pB+i}, 2, s{c3}")
            I(f"ds_add_rtn_u32 v{pK+i}, v{pH+i}, v7 offset:{P_HIST - H0}")
        for i in idx:
            I(f"v_mad_i32_i24 v{pD+i}, v{pB+i}, s{c2}, v{pD+i}")
            I(f"v_or_b32 v{pD+i}, v{pD+i}, v{pI+i}")
        for j, i in enumerate(idx):
            I(f"s_waitcnt lgkmcnt({n - 1})")
            I(f"v_lshrrev_b32 v{pK+i}, 16, v{pK+i}")
            I(f"v_min_u32 v{pA+i}, {QCAP}, v{pK+i}")
            I(f"v_mad_u32_u24 v{pA+i}, v{pH+i}, {LROW // 16}, v{pA+i}")
            I(f"v_lshlrev_b32 v{pB+i}, 2, v{pA+i}")
            I(f"ds_write_b8 v{pA+i}, v{xb(i)} offset:{P_EIMG - X0}")
    def prod2(idx):
        for i in idx:
            I(f"v_lshl_add_u32 v{pS+i}, v{pS+i}, 16, v{pD+i}")
            I(f"ds_write_b32 v{pB+i}, v{pS+i} offset:{P_CIMG - 4*X0}")
    if WLP == 1: wloads()
    stamp('q')
    I(f"s_waitcnt vmcnt({younger('D')})")
    stamp('d')
    prod(range(6))
    I(f"s_cmp_lg_u32 s7, 0")
    I("s_cbranch_scc1 K1_NO7")
    I(f"s_mov_b64 exec, s[{pm}:{pm+1}]")
    I("s_waitcnt lgkmcnt(0)")
    prod([6])
    I(f"s_waitcnt vmcnt({younger('S')})")
    prod2([6])
    I("s_mov_b64 exec, -1")
    L("K1_NO7")
    if WLP == 2: wloads()
    I(f"s_waitcnt vmcnt({younger('S')})")
    prod2(range(6))
    if XP_ == 4: xloads()
    I(f"s_lshl_b32 s15, s{sB}, 7")
    sST_ = sCEL
    srd(sST_, 8, 9, 511*RS + CELLB, "s15")
    I("s_waitcnt lgkmcnt(0)")
    I(f"s_add_u32 s{sEPN}, s{sEPN}, 1")
    I(f"s_and_b32 s10, s{sEPN}, 15")
    I(f"s_and_b32 s11, s{sEPN}, 0xf0")
    I(f"s_mul_i32 s{sTAG}, s10, 0x1010")
    I(f"s_lshl_b32 s11, s11, 16")
    I(f"s_xor_b32 s{sTAG}, s{sTAG}, 0xf000")
    I(f"s_or_b32 s{sTAG}, s{sTAG}, s11")
    I(f"s_mov_b32 s{sSPIN}, {opt('spin', 200000)}")
    I("s_barrier")
    stamp('i')
    oC, oE, oH, oA = vACC, vACC + 16, vACC + 20, vACC + 24
    I(f"ds_read_b128 {rr(oA,4)}, v{l16} offset:{P_HIST}")
    for i in range(4):
        I(f"ds_read_u16 v{oH+i}, v{hda} offset:{P_HIST + 256*i + 2}")
        I(f"ds_read_b32 v{oE+i}, v6 offset:{16*LROW*i}")
        I(f"ds_read_b128 {rr(oC+4*i,4)}, v3 offset:{64*LROW*i}")
    I("s_waitcnt lgkmcnt(12)")
    I(f"v_max3_u32 v1, v{oA}, v{oA+1}, v{oA+2}")
    I(f"v_max_u32 v1, v1, v{oA+3}")
    I(f"v_cmp_le_u32 vcc, {(QCAP + 1) << 16}, v1")
    I("s_mov_b32 s10, 0")
    I("s_cbranch_vccnz K1_OVF")
    L("K1_OUT")
    for i in range(4):
        r = oC + 4*i
        I(f"s_waitcnt lgkmcnt({9 - 3*i})")
        I(f"v_lshl_or_b32 v{oH+i}, v{oH+i}, 24, s{sTAG}")
        I(f"v_and_or_b32 v{r+3}, v{oE+i}, v15, v{oH+i}")
        I(f"buffer_store_dwordx4 {rr(r,4)}, v4, s[{sST_}:{sST_+3}], s10 offen sc1"); vq.append("O")
        I(f"s_add_u32 s10, s10, {64*RS}")
    I(f"v_max3_u32 v1, v{oH}, v{oH+1}, v{oH+2}")
    I(f"v_max_u32 v1, v1, v{oH+3}")
    I(f"v_cmp_le_u32 vcc, {33 << 24}, v1")
    I("s_cbranch_vccnz K1_EXT")
    L("K1_EXTR")
    stamp('o')
    if TS == 10:
        I("s_waitcnt vmcnt(0)")
        stamp('A')
    if opt("bar", 0): I("s_barrier")
    out.extend(static)
    I(f"s_mul_i32 s10, s{sB}, {RS}")
    srd(sCEL, 8, 9, NCH*CELLB, "s10")
    for k in (1, 2, 3):
        I(f"s_movk_i32 s{sSO+k-1}, {64*CELLB*k}")
    CP = opt("cp", 2)
    if CP == 0: cloads()
    I(f"s_mov_b32 s10, {f2u(-LOG2E):#x}")
    I(f"s_waitcnt vmcnt({younger('B')})")
    for i in range(8):
        I(f"v_lshlrev_b32 v{vAT+2*i}, 16, v{pW+i}")
        I(f"v_and_b32 v{vAT+2*i+1}, 0xffff0000, v{pW+i}")
    for i in range(16): I(f"v_mul_f32 v{vAT+i}, s10, v{vAT+i}")
    for i in range(8): I(f"v_cvt_pk_bf16_f32 v{pW+i}, v{vAT+2*i}, v{vAT+2*i+1}")
    I(f"ds_write_b128 v{u(1)}, {rr(pW,4)} offset:{WL + WI_B}")
    I(f"s_cmp_ge_u32 s7, 2")
    I("s_cbranch_scc1 K1_NOWC")
    I(f"ds_write_b128 v{u(1)}, {rr(pW+4,4)} offset:{WL + WI_C}")
    L("K1_NOWC")
    w0, w1, wc0, wc1, xa_ = vT1 + 1, vT1 + 2, vT1 + 3, vT1 + 4, vT
    I(f"v_bfe_u32 v{w0}, v{lane}, 2, 2")
    I(f"v_lshlrev_b32 v{w0}, 7, v{w0}")
    I(f"v_lshl_add_u32 v{w0}, v{vCH}, 2, v{w0}")
    I(f"v_and_b32 v{w1}, 16, v{lane}")
    I(f"v_and_b32 v{wc0}, 2, v{lane}")
    I(f"v_lshl_add_u32 v{w1}, v{wc0}, 2, v{w1}")
    I(f"v_and_b32 v{wc0}, 8, v{lane}")
    I(f"v_lshl_add_u32 v{w1}, v{wc0}, 2, v{w1}")
    I(f"v_add_u32 v{w0}, v{w0}, v{w1}")
    I(f"v_lshl_add_u32 v{wc0}, v{u(5)}, 10, v{w0}")
    I(f"v_lshl_add_u32 v{w0}, v{u(5)}, 12, v{w0}")
    I(f"v_xor_b32 v{w1}, 32, v{w0}")
    I(f"v_xor_b32 v{wc1}, 32, v{wc0}")
    def wtr(reg, img, ft, s_, c=False):
        ad = (wc0, wc1)[ft] if c else (w0, w1)[ft]
        return [f"ds_read_b64_tr_b16 {rr(reg+2*h_,2)}, v{ad} offset:{WL + img + 1024*s_ + 512*h_}" for h_ in range(2)]
    I(f"s_lshl_b32 s10, s7, 10")
    I(f"s_and_b32 s11, s7, 4")
    I(f"s_mul_i32 s11, s11, {8 - 1024}")
    I(f"s_add_u32 s11, s11, s10")
    I(f"v_xor_b32 v{xa_}, s11, v{w0}")
    I(f"s_waitcnt vmcnt({min(younger('W'), younger('X'))}) lgkmcnt(0)")
    I("s_barrier")
    if CP == 1: cloads()
    vWA, vAD = vWV, vACC + 32
    for h_ in range(2): I(f"ds_read_b64_tr_b16 {rr(vAT+2*h_,2)}, v{xa_} offset:{WL + WI_U + 512*h_}")
    for q in range(4): I(f"ds_read_b128 {rr(vX+4*q,4)}, v{u(3)} offset:{XO + 16*q}")
    I(f"v_add_u32 v{xa_}, s10, v{l16}")
    rest = []
    for reg, img in ((vWB, WI_B), (vWC, WI_C), (vWV, WI_V)):
        for ft in range(2):
            if img == WI_C: rest += wtr(vWC + 4*ft, WI_C, ft, 0, True)
            else:
                for s_ in range(4): rest += wtr(reg + 16*ft + 4*s_, img, ft, s_)
    for k in range(8):
        if k == 4:
            I("s_waitcnt lgkmcnt(5)")
            I(f"ds_write_b128 v{xa_}, {rr(vAT,4)} offset:{WU}")
        for x_ in wtr(vWA + 4*k, WI_A, k >> 2, k & 3): I(x_)
    for k in range(8):
        I("s_waitcnt lgkmcnt(12)")
        I(mfma(vAD + 16*(k >> 2), vX + 4*(k & 3), vWA + 4*k, None if k & 3 == 0 else vAD + 16*(k >> 2)))
        for x_ in rest[2*k:2*k+2]: I(x_)
    rest = rest[16:]
    while rest:
        I("s_waitcnt lgkmcnt(8)")
        for x_ in rest[:6]: I(x_)
        rest = rest[6:]
    if CP == 3: cloads()
    I(f"s_mov_b32 s10, {f2u(-LOG2E):#x}")
    for i in range(32):
        I(f"v_mul_f32 v{vAD+i}, s10, v{vAD+i}")
    for i in range(16):
        I(f"v_cvt_pk_bf16_f32 v{vAT+i}, v{vAD+2*i}, v{vAD+2*i+1}")
    stamp('k')
    sPH = 5
    I(f"s_mov_b32 s{sPH}, {PHM}")
    if CP == 2: cloads()
    SW1 = "dst_sel:DWORD dst_unused:UNUSED_PAD src0_sel:DWORD src1_sel:WORD_1"
    def haddr(d, r):
        return [f"v_mul_u32_u24_sdwa v{d}, s{sPH}, v{r} {SW1}", f"v_alignbit_b32 v{d}, v{r}, v{d}, 28", f"v_and_b32 v{d}, 0xffc, v{d}"]
    def remain(d, r, k):
        I(f"v_sub_u32_sdwa v{d}, v{r}, v{k} dst_sel:DWORD dst_unused:UNUSED_PAD src0_sel:BYTE_3 src1_sel:DWORD")
    for i in range(4):
        L(f"K2_CHK{i}")
        I(f"s_waitcnt vmcnt({3 - i})")
        r = vC + 4*i
        I(f"v_bitop3_b32 v{u(0)}, v{r+3}, s{sTAG}, v{vTM} bitop3:0x28")
        I(f"v_cmp_ne_u32 vcc, 0, v{u(0)}")
        remain(u(0), r + 3, k4)
        hs = [haddr(vA+3*i+j, r+j) for j in range(3)]
        for j in range(3): I(hs[j][0])
        I(f"s_cbranch_vccnz K2_RETRY{i}")
        if i == 0: stamp(1)
        for j in range(3):
            m = sM + 2*(3*i+j)
            I(f"v_cmp_lt_i32 s[{m}:{m+1}], {j}, v{u(0)}")
        for st in (1, 2):
            for j in range(3): I(hs[j][st])
        for j in range(3):
            m = sM + 2*(3*i+j)
            I(f"s_mov_b64 exec, s[{m}:{m+1}]")
            I(f"ds_add_rtn_u32 v{vRK+3*i+j}, v{vA+3*i+j}, v{one} offset:{HIST}")
        I("s_mov_b64 exec, -1")
    I(f"v_max3_u32 v{u(0)}, v{vC+3}, v{vC+7}, v{vC+11}")
    I(f"v_max_u32 v{u(0)}, v{u(0)}, v{vC+15}")
    I(f"v_cmp_le_u32 vcc, {33 << 24}, v{u(0)}")
    sSEL = sM + 24
    for j in range(3): I(f"s_mov_b32 s{sSEL+j}, {0x0c0c0001 | (4 + j) << 8:#x}")
    I(f"s_mov_b32 s{sSEL+3}, 0x05040100")
    I("s_cbranch_vccnz K2_XT1")
    L("K2_XT1R")
    vEO = vX
    fill = []
    for i in range(4):
        fill.append(f"v_and_b32 v{vC+4*i+3}, 0x0f0f0f, v{vC+4*i+3}")
    for i in range(4):
        for j in range(3): fill.append(f"v_perm_b32 v{vEO+3*i+j}, v{vC+4*i+3}, v{vC+4*i+j}, s{sSEL+j}")
    for i in range(4):
        for j in range(3): fill.append(f"v_lshl_add_u32 v{vEO+3*i+j}, v{vEO+3*i+j}, 5, v{vEB+i}")
    EPF, XPF = opt("epf", 0), opt("xpf", 0)
    def epref(fill):
        dm = vT1 + 6
        if XPF:
            I(f"s_lshr_b32 s10, s2, 3")
            I(f"s_mul_i32 s10, s10, {XPF}")
            I(f"v_cmp_gt_u32 vcc, {XPF}, v{tid}")
            I(f"v_add_lshl_u32 v{dm}, v{tid}, s10, 7")
            I("s_and_b64 exec, exec, vcc")
            I("s_cbranch_execz K2_NOXPF")
            I(f"buffer_load_dword v{dm}, v{dm}, s[{sX}:{sX+3}], 0 offen")
            L("K2_NOXPF")
            I("s_mov_b64 exec, -1")
        while fill: I(fill.pop(0))
        I(f"s_mov_b32 s10, {(SOFF + opt('et', T0)) << 16:#x}")
        for s in range(12):
            m = sM + 2*s
            I(f"s_mov_b64 exec, s[{m}:{m+1}]")
            I(f"v_cmpx_gt_u32 vcc, s10, v{vC+4*(s//3)+s%3}")
            I(f"buffer_load_dword v{dm}, v{vEO+s}, s[{sEP}:{sEP+3}], 0 offen")
        I("s_mov_b64 exec, -1")
    if EPF == 1: epref(fill)
    stamp('s')
    I("s_waitcnt lgkmcnt(0)")
    I("s_barrier")
    stamp(2)
    c, p, tot, sc = u(0), u(4), u(8), u(9)
    own, ownn, owna = u(10), u(11), u(12)
    SD = "dst_sel:DWORD dst_unused:UNUSED_PAD src0_sel:WORD_0 src1_sel:WORD_0"
    for i in range(4):
        I(f"ds_read_b128 {rr(hh+4*i,4)}, v{l16} offset:{HIST + 1024*i}")
    I(f"ds_read_b64 v[{u(6)}:{u(7)}], v{owna} offset:{HIST}")
    if EPF == 2: epref(fill)
    for k in range(8):
        if fill: I(fill.pop(0))
    for i in range(4):
        I(f"s_waitcnt lgkmcnt({4 - i})")
        I(f"v_add_u32_sdwa v{c+i}, v{hh+4*i}, v{hh+4*i+1} {SD}")
        I(f"v_add_u32_sdwa v{hh+4*i}, v{hh+4*i+2}, v{hh+4*i+3} {SD}")
        I(f"v_add_u32 v{c+i}, v{c+i}, v{hh+4*i}")
    I(f"v_lshl_or_b32 v{p}, v{c+1}, 16, v{c}")
    I(f"v_lshl_or_b32 v{p+1}, v{c+3}, 16, v{c+2}")
    I("s_waitcnt lgkmcnt(0)")
    I(f"v_perm_b32 v{own}, v{u(7)}, v{u(6)}, s{sSEL+3}")
    for dp in ["row_shr:%d row_mask:0xf bank_mask:0xf bound_ctrl:0" % sh for sh in (1, 2, 4, 8)] + \
              ["row_bcast:15 row_mask:0xa bank_mask:0xf", "row_bcast:31 row_mask:0xc bank_mask:0xf"]:
        I(f"v_add_u32_dpp v{p}, v{p}, v{p} {dp}")
        I(f"v_add_u32_dpp v{p+1}, v{p+1}, v{p+1} {dp}")
        I(fill.pop(0) if fill else "s_nop 0")
    I(f"v_readlane_b32 s10, v{p}, 63")
    I(f"v_readlane_b32 s11, v{p+1}, 63")
    for i in range(4):
        I(f"v_lshlrev_b32_sdwa v{hh+i}, v{ecb}, v{p+(i>>1)} dst_sel:DWORD dst_unused:UNUSED_PAD src0_sel:DWORD src1_sel:WORD_{i&1}")
        I(f"v_sub_u32 v{c+i}, v{hh+i}, v{c+i}")
    b1, b2, b3 = 4, 5, 6
    I(f"s_and_b32 s{b1}, s10, 0xffff")
    I("s_lshr_b32 s10, s10, 16")
    I(f"s_add_u32 s{b2}, s{b1}, s10")
    I("s_and_b32 s10, s11, 0xffff")
    I(f"s_add_u32 s{b3}, s{b2}, s10")
    I("s_lshr_b32 s11, s11, 16")
    I(f"s_add_u32 s10, s{b3}, s11")
    for i, b in ((1, b1), (2, b2), (3, b3)):
        I(f"v_lshl_add_u32 v{c+i}, s{b}, 1, v{c+i}")
    I("s_lshr_b32 s11, s10, 5")
    I(f"s_add_u32 s11, s11, {ASYM}")
    I("s_and_b32 s11, s11, -32")
    I(f"s_sub_i32 s11, s11, {ASYM}")
    I("s_lshl_b32 s11, s11, 3")
    I("s_lshr_b32 s10, s10, 1")
    I(f"s_lshr_b32 s{sF0}, s{sW}, 1")
    I(f"s_mul_i32 s{sF0}, s{sF0}, s10")
    I(f"s_add_i32 s11, s11, s{sF0}")
    I(f"s_add_i32 s10, s10, s{sF0}")
    I(f"s_bitcmp1_b32 s{sW}, 0")
    I(f"s_cselect_b32 s{sEND}, s11, s{sF0}")
    I("s_cselect_b32 s10, s10, s11")
    I(f"s_mov_b32 s{sF0}, 0")
    I(f"s_mov_b32 s{sF1}, 0")
    for i in range(4):
        I(f"v_cmp_gt_i32 vcc, s{sEND}, v{c+i}")
        I(f"v_cmp_gt_i32 s[{sTMP}:{sTMP+1}], s10, v{c+i}")
        I("s_bcnt1_i32_b64 s11, vcc")
        I(f"s_add_u32 s{sF0}, s{sF0}, s11")
        I(f"s_bcnt1_i32_b64 s11, s[{sTMP}:{sTMP+1}]")
        I(f"s_add_u32 s{sF1}, s{sF1}, s11")
    I(f"s_max_i32 s{sF0}, s{sF0}, s{lo0}")
    I(f"s_min_i32 s{sF0}, s{sF0}, s{hi0}")
    I(f"s_max_i32 s{sF1}, s{sF1}, s{lo1}")
    I(f"s_min_i32 s{sF1}, s{sF1}, s{hi1}")
    I(f"v_cmp_le_u32 vcc, s{sF0}, v{ownn}")
    I(f"v_cmp_gt_u32 s[10:11], s{sF1}, v{ownn}")
    I(f"s_mov_b32 s{sMORE}, 2")
    I("s_and_b64 vcc, vcc, s[10:11]")
    I(f"v_cndmask_b32 v{own}, 0, v{own}, vcc")
    I(f"v_mov_b32 v{tot}, v{own}")
    wave_scan(tot, fill, half=True)
    for x_ in fill: I(x_)
    I(f"s_sub_u32 s{sTMP}, s{sL}, {R0}")
    I(f"v_readlane_b32 s10, v{tot}, 31")
    I(f"v_readlane_b32 s11, v{tot}, 63")
    I(f"v_sub_u32 v{tot}, v{tot}, v{own}")
    I(f"v_mov_b32 v{vOWN}, v{u(14)}")
    I(f"s_and_b32 s{sTH}, s10, 0xffff")
    I("s_lshr_b32 s10, s10, 16")
    I(f"s_add_u32 s{sTH+1}, s{sTH}, s10")
    I("s_and_b32 s10, s11, 0xffff")
    I(f"s_add_u32 s{sTH+2}, s{sTH+1}, s10")
    I("s_lshr_b32 s11, s11, 16")
    I(f"s_add_u32 s{sEND}, s{sTH+2}, s11")
    I(f"s_lshl_b32 s10, s{sTH}, 16")
    I(f"s_pack_ll_b32_b16 s11, s{sTH+1}, s{sTH+2}")
    I(f"s_pack_ll_b32_b16 s{sTMP}, s{sTMP}, s{sTMP}")
    I(f"s_add_u32 s10, s10, s{sTMP}")
    I(f"s_add_u32 s11, s11, s{sTMP}")
    I("s_mov_b32 exec_lo, vcc_lo")
    I("s_mov_b32 exec_hi, 0")
    I(f"v_add_u32 v{tot}, s10, v{tot}")
    I("s_mov_b32 exec_lo, 0")
    I("s_mov_b32 exec_hi, vcc_hi")
    I(f"v_add_u32 v{tot}, s11, v{tot}")
    I("s_mov_b64 exec, vcc")
    I(f"ds_write_b16 v{owna}, v{tot} offset:{HIST + 2}")
    I(f"ds_write_b16_d16_hi v{owna}, v{tot} offset:{HIST + 6}")
    I(f"ds_write_b32 v{vMIN+1}, v{vMIN} offset:{MAP}")
    I("s_mov_b64 exec, -1")
    I(f"v_mov_b32 v{sc}, {FLAG}")
    I(f"s_cmp_le_u32 s{sEND}, {LMAX*4}")
    I("s_cbranch_scc1 K2_LFIT")
    I(f"ds_write_b32 v{sc}, v{one}")
    I(f"s_mov_b32 s{sEND}, 0")
    L("K2_LFIT")
    I(f"s_add_u32 s{sEND}, s{sEND}, s{sL}")
    for k in range(3):
        I(f"s_add_i32 s{sTH+k}, s{sTH+k}, {opt('tho', 64)}")
        I(f"s_lshr_b32 s{sTH+k}, s{sTH+k}, 7")
    I("s_waitcnt lgkmcnt(0)")
    stamp('a')
    I("s_barrier")
    stamp('b')
    I(f"ds_read_b64 v[{u(6)}:{u(7)}], v{sc}")
    RM = opt("rm", 1)
    for s in range(12):
        m = sM + 2*s
        if RM: I(f"s_mov_b64 exec, s[{m}:{m+1}]")
        I(f"ds_read_u16 v{vA+s}, v{vA+s} offset:{HIST + 2}")
    if RM: I("s_mov_b64 exec, -1")
    pads(lane, u(0), u(1), u(2))
    I(f"s_waitcnt lgkmcnt({0 if RM else 7})")
    I(f"v_cmp_ne_u32 vcc, 0, v{u(6)}")
    I(f"v_readfirstlane_b32 s{sCUR}, v{u(7)}")
    for s in range(12):
        if s == 6: I(f"s_waitcnt lgkmcnt(1)")
        I(f"v_add_u32 v{vA+s}, v{vA+s}, v{vRK+s}")
    I("s_cbranch_vccnz K2_OVF")
    for s in range(12):
        m = sM + 2*s
        I(f"s_mov_b64 exec, s[{m}:{m+1}]")
        I(f"ds_write2st64_b32 v{vA+s}, v{vC+4*(s//3)+s%3}, v{vEO+s} offset0:{R0//256} offset1:{R1//256}")
    I("s_mov_b64 exec, -1")
    I(f"s_cmp_lg_u32 s{sXT}, 0")
    I("s_cbranch_scc1 K2_XT2")
    L("K2_PADS0")
    I("s_waitcnt lgkmcnt(0)")
    stamp('c')
    I("s_barrier")
    L("K2_GO")
    stamp(3)
    STAG = opt("stag", 1)
    I(f"ds_read_b128 {rr(vQD,4)}, v{vARX}")
    I(f"ds_read_b32 v{vR1}, v{vARE}")
    I(f"ds_read_u8 v{vL1}, v{vARP}")
    I("s_waitcnt lgkmcnt(1)")
    EM = opt("em", 0xAA)
    if STAG == 1:
        I(f"s_movk_i32 s10, {EM}")
        I(f"s_bitcmp1_b32 s10, s{sW}")
        I("s_cbranch_scc0 K2_LATE0")
    for s in dma_tile(0): I(s)
    if STAG == 2:
        I(f"s_bitcmp1_b32 s{sW}, 0")
        I("s_cbranch_scc1 K2_LATE0")
        I("s_waitcnt vmcnt(0)")
    L("K2_LATE0")
    I(f"s_cmp_lg_u32 s{sMORE}, 2")
    I("s_cbranch_scc1 K2_BUILT")
    I("s_waitcnt lgkmcnt(0)")
    I(mfma(NUM(0), vT2, vT2))
    I(mfma(NUM(1), vT2, vT2))
    I(f"s_mov_b32 s10, {f2u(1e-6):#x}")
    I(f"s_mov_b32 s11, s10")
    for ft in range(2):
        for i in range(8):
            I(f"v_mov_b64 v[{DEN(ft)+2*i}:{DEN(ft)+2*i+1}], s[10:11]")
    I(f"s_mov_b32 s{sCI}, -1")
    I(f"s_mov_b64 s[{sMSK}:{sMSK+1}], 0")
    I(f"s_mov_b32 s{sR0}, 0")
    I(f"s_mov_b32 s{sCNT}, 0")
    I(f"s_cmp_lg_u32 s{sCUR}, 0")
    I(f"s_cselect_b32 s{sMORE}, 1, 0")
    L("K2_BUILT")
    I("s_waitcnt lgkmcnt(0)")
    I(f"v_lshl_add_u32 v{vL1}, v{vL1}, 6, v{vC1}")
    if STAG == 1:
        I(f"s_movk_i32 s10, {EM}")
        I(f"s_bitcmp1_b32 s10, s{sW}")
        I("s_cbranch_scc1 K2_HAD0")
        for s in dma_tile(0): I(s)
        L("K2_HAD0")
    I(f"ds_read_b128 {rr(vQD,4)}, v{vARX} offset:128")
    I(f"ds_read_b32 v{vR1}, v{vARE} offset:128")
    for s in t1_reads(): I(s)
    I(mfma(vQ, vT2, vT2))
    I(mfma(vR, vT2, vT2))
    stamp(4)
    I("s_waitcnt vmcnt(0)")
    stamp(5)
    I(f"ds_read_b128 {rr(vE,4)}, v{vAE}")
    for q in range(4):
        I(f"ds_read_b128 {rr(vX+4*q,4)}, v{vAX} offset:{16*q}")
    I("s_waitcnt lgkmcnt(0)")
    I(f"s_cmp_eq_u32 s{sN}, 0")
    I("s_cbranch_scc1 K2_DONE")
    for s in g_mfmas(vP, 0):
        if s.startswith("v_smfmac"):
            for x_ in dma_tile(0): I(x_)
        I(s)
    I(f"s_mov_b32 s{sT}, 0")
    def prio_code(uid):
        r = []
        for k in range(3):
            r += [f"s_cmp_lg_u32 s{sT}, s{sTH+k}", f"s_cbranch_scc1 K2_PR{uid}_{k}", f"s_setprio {2-k}", f"K2_PR{uid}_{k}:"]
        return r
    YK = opt("yk", 2)
    if YK:
        I(f"s_sub_u32 s10, s{sN}, {YK - 1 if YK < 10 else 0}")
        I(f"s_bitcmp1_b32 s{sW}, 0")
        I(f"s_cselect_b32 s{sTH+2}, s{sTH+2}, s10")
    I("s_setprio 3")
    I("s_nop 8")
    tst = ["s_memrealtime s[98:99]", "s_waitcnt lgkmcnt(0)", "s_mov_b32 m0, s72", "s_nop 0", "v_writelane_b32 v255, s98, m0"] if TS == 4 else []
    body = tst + phaseA(0) + phaseB(0)
    body += [f"s_cmp_ge_u32 s{sT}, s{sN}", f"s_cbranch_scc1 K2_TAIL"] + prio_code(0)
    body += tst + phaseA(1) + phaseB(1)
    body += [f"v_add_u32 v{r}, 0x100, v{r}" for r in (vARX, vARP, vARE, vART)]
    body += prio_code(1)
    body += [f"s_cmp_lt_u32 s{sT}, s{sN}", f"s_cbranch_scc1 K2_LOOP"]
    check_body(body)
    DBG = opt("dbg", "")
    if "nodma" in DBG: body = [b for b in body if not b.startswith("buffer_load")]
    emit(".p2align 6")
    L("K2_LOOP")
    for s in body:
        if s.endswith(":"): L(s[:-1])
        else: I(s)
    L("K2_TAIL")
    for s in s_mfmas(DEN(1), vR) + s_mfmas(NUM(1), vQ): I(s)
    L("K2_DONE")
    I(f"s_cmp_lg_u32 s{sMORE}, 0")
    I("s_cbranch_scc1 K2_SLOW")
    L("K2_EPI")
    stamp(6)
    I(f"v_lshlrev_b32 v{vT}, 4, v{lane}")
    for q in range(4):
        I(f"ds_read_b128 {rr(vX+4*q,4)}, v{vOWN} offset:{XO + 16*q}")
    for k in range(8):
        I(f"ds_read_b128 {rr(vWB+4*k,4)}, v{vT} offset:{WU + 1024*k}")
    I(f"v_and_b32 v{vQD+1}, 31, v{lane}")
    I(f"v_and_b32 v{vC1}, 32, v{lane}")
    I(f"v_mul_u32_u24 v{vC2}, 144, v{vQD+1}")
    I(f"v_lshrrev_b32 v{vQD+2}, 2, v{vC1}")
    I(f"v_lshl_add_u32 v{vQD+1}, v{vQD+1}, 6, v{vQD+2}")
    for s_ in range(2):
        I(f"ds_read2_b64 {rr(vT2+4*s_,4)}, v{vQD+1} offset0:{4*s_} offset1:{4*s_+2}")
    I("s_waitcnt lgkmcnt(10)")
    for i in range(16):
        I(f"v_lshlrev_b32 v{vWV+2*i}, 16, v{vX+i}")
        I(f"v_and_b32 v{vWV+2*i+1}, 0xffff0000, v{vX+i}")
    I(f"v_lshl_add_u32 v{vT+1}, v{vC1}, 1, v{vC2}")
    I(f"v_add_u32 v{vT+1}, s{sSTG}, v{vT+1}")
    I(f"s_sub_u32 s10, s{sF0}, s{sWIN}")
    I("s_mul_i32 s10, s10, 144")
    I(f"s_add_u32 s10, s10, s{sSTG}")
    I(f"v_lshrrev_b32 v{vQD}, 3, v{lane}")
    I(f"v_lshl_add_u32 v{vQD}, v{vQD}, 4, v{vT}")
    I(f"v_add_u32 v{vQD}, s10, v{vQD}")
    I(f"s_mul_i32 s10, s{sB}, {BN}")
    I(f"s_add_u32 s11, s10, s{sF1}")
    I(f"s_add_u32 s10, s10, s{sF0}")
    I(f"s_min_u32 s11, s11, {N}")
    I(f"s_min_u32 s10, s10, {N}")
    I("s_sub_u32 s11, s11, s10")
    I("s_lshl_b32 s10, s10, 7")
    I(f"s_add_u32 s{sOUT}, s{sOUT}, s10")
    I(f"s_addc_u32 s{sOUT+1}, s{sOUT+1}, 0")
    I(f"s_lshl_b32 s{sOUT+2}, s11, 7")
    for ft, D in ((0, vP), (1, vQ)):
        for q in range(4):
            I(f"s_waitcnt lgkmcnt({9 - 4*ft - q})")
            I(mfma(D, vWB+16*ft+4*q, vX+4*q, vWV+16*ft if q == 0 else D))
            for i in range(4):
                r = DEN(ft) + 4*q + i
                I(f"v_rcp_f32 v{r}, v{r}")
    I("s_waitcnt lgkmcnt(0)")
    for ft, D in ((0, vP), (1, vQ)):
        for i in range(16):
            I(f"v_mul_f32 v{NUM(ft)+i}, v{NUM(ft)+i}, v{DEN(ft)+i}")
        for i in range(8):
            I(f"v_cvt_pk_bf16_f32 v{DEN(ft)+i}, v{NUM(ft)+2*i}, v{NUM(ft)+2*i+1}")
        I(mfma(D, DEN(ft), vT2, D))
        I("s_nop 0")
        I(mfma(D, DEN(ft)+4, vT2+4, D))
    for q in range(4):
        for i in range(8*q, 8*q+8):
            I(f"v_max_f32 v{vP+i}, v{vP+i}, v{vWV+i}")
        for d in range(4):
            i = 4*q + d
            I(f"v_cvt_pk_bf16_f32 v{vR+i}, v{vP+2*i}, v{vP+2*i+1}")
        I(f"ds_write_b128 v{vT+1}, {rr(vR+4*q,4)} offset:{16*q}")
    for q in range(4):
        I(f"ds_read_b128 {rr(vX+4*q,4)}, v{vQD} offset:{8*144*q}")
    for q in range(4):
        I(f"s_waitcnt lgkmcnt({3-q})")
        I(f"buffer_store_dwordx4 {rr(vX+4*q,4)}, v{vT}, s[{sOUT}:{sOUT+3}], 0 offen offset:{1024*q}{pol(K2_OP)}")
    I(f"s_add_u32 s10, s2, s7")
    I("s_cmp_lg_u32 s10, 0")
    I("s_cbranch_scc1 K2_NOEP")
    I(f"v_mov_b32 v{vP}, {WS_EPOCH}")
    I(f"v_mov_b32 v{vP+1}, s{sEPN}")
    I(f"buffer_store_dword v{vP+1}, v{vP}, s[{sWS}:{sWS+3}], 0 offen sc1")
    L("K2_NOEP")
    if TS == 2 or opt("tsn", 0): I(f"s_mov_b32 s89, s{sN}")
    if TS == 8:
        I(f"s_sub_u32 s94, {opt('spin', 200000)}, s{sSPIN}")
        I(f"s_mul_i32 s94, s94, 100")
        I(f"s_add_u32 s94, s94, s88")
    if TS: I(f"s_mov_b32 s{sW}, s7")
    if TS == 4:
        I("s_mov_b64 exec, -1")
        I(f"s_lshl_b32 s87, s2, 11")
        I(f"s_add_u32 s87, s87, {WS_TS + 0x180000}")
        I(f"s_lshl_b32 s86, s{sW}, 8")
        I("s_add_u32 s87, s87, s86")
        I(f"v_lshl_add_u32 v{vP}, v{lane}, 2, s87")
        I(f"global_store_dword v{vP}, v255, s[8:9]")
    stamp_out(8, 8, sW, 8, 0x100000, vP)
    L("K2_END")
    I("s_endpgm")
    def spin():
        if opt("slp", 1): I(f"s_sleep {opt('slp', 1)}")
        I(f"s_sub_u32 s{sSPIN}, s{sSPIN}, 1")
        I("s_cbranch_scc1 K2_END")
    for i in range(4):
        L(f"K2_RETRY{i}")
        spin()
        for j in range(i, 4): cload(j)
        I(f"s_branch K2_CHK{i}")
    L("K1_EXT")
    I(f"s_mov_b32 s14, 0x0f0f0f0f")
    I(f"s_mov_b32 s15, s14")
    for i in range(4):
        I(f"ds_read_b32 v{oE+i}, v6 offset:{16*LROW*i + 32}")
        I(f"ds_read_b128 {rr(pD+8*i,4)}, v3 offset:{64*LROW*i + 128}")
    I("s_waitcnt lgkmcnt(0)")
    for i in range(4):
        I(f"v_cmp_le_u32 vcc, {33 << 24}, v{oH+i}")
        I(f"v_and_or_b32 v{pD+8*i+3}, v{oE+i}, v15, v{oH+i}")
        I("s_and_b64 exec, vcc, s[14:15]")
        I(f"s_cbranch_execz K1_EX{i}")
        I(f"buffer_store_dwordx4 {rr(pD+8*i,4)}, v4, s[{sST_}:{sST_+3}], s10 offen sc1")
        L(f"K1_EX{i}")
        I("s_mov_b64 exec, -1")
        I(f"s_add_u32 s10, s10, {64*RS}")
    I("s_branch K1_EXTR")
    L("K1_OVF")
    t = vAT
    for i in range(4):
        I(f"v_lshrrev_b32 v{t+i}, 16, v{oA+i}")
        I(f"v_lshrrev_b32 v{t+4}, 18, v{oA+i}")
        I(f"v_sub_u32 v{t+i}, v{t+i}, v{t+4}")
    I(f"v_add_u32 v{t+5}, v{t}, v{t+1}")
    I(f"v_add_u32 v{t+6}, v{t+5}, v{t+2}")
    I(f"v_add_u32 v{t+7}, v{t+6}, v{t+3}")
    I(f"v_mov_b32 v1, v{t+7}")
    wave_scan(1)
    I("s_nop 0")
    I(f"v_sub_u32 v{t+4}, v1, v{t+7}")
    I(f"v_add_u32 v{t+7}, v{t+4}, v{t+6}")
    I(f"v_add_u32 v{t+6}, v{t+4}, v{t+5}")
    I(f"v_add_u32 v{t+5}, v{t+4}, v{t}")
    for i in range(4):
        I(f"v_lshl_or_b32 v{t+4+i}, v{t+i}, 16, v{t+4+i}")
    I("s_waitcnt lgkmcnt(0)")
    I(f"ds_write_b128 v{l16}, {rr(t+4,4)} offset:{P_HDR}")
    for i in range(4): I(f"v_min_u32 v{oH+i}, 255, v{oH+i}")
    I(f"s_lshl_b32 s15, s{sB}, 2")
    I(f"s_add_u32 s15, s15, {WS_HDR}")
    srd(q0, 8, 9, NB*NCH*4, "s15")
    I(f"v_lshlrev_b32 v1, 12, v{lane}")
    for i in range(4):
        I(f"buffer_store_dword v{t+4+i}, v1, s[{q0}:{q0+3}], 0 offen offset:{1024*i} sc1")
    I(f"s_add_u32 s15, s13, {WS_RECS}")
    srd(q0, 8, 9, CH*4, "s15")
    I("s_lshr_b32 s15, s13, 2")
    I(f"s_add_u32 s15, s15, {WS_XB}")
    srd(q1, 8, 9, CH, "s15")
    I(f"v_cndmask_b32 v{pH+6}, v{pH}, v{pH+6}, s[{pm}:{pm+1}]")
    I(f"v_cndmask_b32 v{pK+6}, 0, v{pK+6}, s[{pm}:{pm+1}]")
    for i in range(7):
        I(f"ds_read_u16 v{pA+i}, v{pH+i} offset:{P_HDR - H0}")
    I("s_waitcnt lgkmcnt(0)")
    for i in range(7):
        I(f"v_lshrrev_b32 v1, 2, v{pK+i}")
        I(f"v_sub_u32 v1, v{pK+i}, v1")
        I(f"v_add_u32 v{pA+i}, v{pA+i}, v1")
        I(f"v_cmp_le_u32 vcc, {QCAP}, v{pK+i}")
        I(f"v_lshlrev_b32 v{pB+i}, 2, v{pA+i}")
        I("s_and_saveexec_b64 s[14:15], vcc")
        I(f"s_cbranch_execz K1_OV3_{i}")
        I(f"buffer_store_byte v{xb(i)}, v{pA+i}, s[{q1}:{q1+3}], 0 offen sc1")
        I(f"buffer_store_dword v{pS+i}, v{pB+i}, s[{q0}:{q0+3}], 0 offen sc1")
        L(f"K1_OV3_{i}")
        I("s_mov_b64 exec, -1")
    I("s_waitcnt vmcnt(0)")
    I("s_barrier")
    I("s_branch K1_OUT")
    L("K2_OVF")
    I(f"s_mov_b32 s{sCUR}, 1")
    I(f"s_mov_b32 s{sSKIP}, 0")
    I(f"s_mov_b32 s{sEND}, s{sL}")
    pads(lane, vP, vP+1, vP+2)
    I("s_branch K2_PADS0")
    xd, xa, xk, xrem, xeb, xad, xt = vACC + 44, vACC + 52, vACC + 58, vQ, vQ + 2, vX + 12, vX + 14
    L("K2_XT1")
    I(f"s_mov_b32 s{sXT}, 1")
    I(f"v_cmp_le_u32 vcc, {(QCAP + 1) << 24}, v{u(0)}")
    I(f"v_mov_b32 v{xt}, {FLAG + 4}")
    I("s_cbranch_vccz K2_XT1A")
    I(f"ds_write_b32 v{xt}, v{one}")
    L("K2_XT1A")
    I("s_mov_b32 s10, 0xf0f0f0f0")
    I("s_mov_b32 s11, s10")
    I(f"v_and_b32 v{xt}, 12, v{k4}")
    I(f"v_add_u32 v{xt}, 32, v{xt}")
    I(f"v_and_b32 v{xad}, 64, v{u(1)}")
    I(f"v_mul_u32_u24 v{xad}, 127, v{xad}")
    I(f"v_add_u32 v{xad}, v{xad}, v{u(1)}")
    I(f"v_add_u32 v{xad+1}, 16384, v{xad}")
    I(f"v_mov_b32 v{xt+1}, 0x7ffffff0")
    for g in range(2):
        I(f"v_cndmask_b32 v{xrem+g}, v{vC+8*g+3}, v{vC+8*g+7}, s[10:11]")
        I(f"v_cndmask_b32 v{xeb+g}, v{vEB+2*g}, v{vEB+2*g+1}, s[10:11]")
        remain(xrem + g, xrem + g, xt)
        I(f"v_cmp_lt_i32 vcc, 0, v{xrem+g}")
        I("s_nop 1")
        I(f"v_cndmask_b32 v{xad+g}, v{xt+1}, v{xad+g}, vcc")
    I(f"s_add_u32 s{sCEL}, s{sCEL}, {WS_EXT}")
    I(f"s_addc_u32 s{sCEL+1}, s{sCEL+1}, 0")
    L("K2_XT1L")
    for g in range(2):
        I(f"buffer_load_dwordx4 {rr(xd+4*g,4)}, v{xad+g}, s[{sCEL}:{sCEL+3}], 0 offen sc1")
    I("s_waitcnt vmcnt(0)")
    for g in range(2):
        I(f"v_bitop3_b32 v{xt}, v{xd+4*g+3}, s{sTAG}, v{vTM} bitop3:0x28")
        I(f"v_cmp_lt_i32 s[10:11], 0, v{xrem+g}")
        I(f"v_cmp_ne_u32 vcc, 0, v{xt}")
        I("s_and_b64 vcc, vcc, s[10:11]")
        I("s_cbranch_scc1 K2_XT1S")
    for g in range(2):
        for j in range(3):
            for x_ in haddr(xa+3*g+j, xd+4*g+j): I(x_)
            I(f"v_cmp_lt_i32 vcc, {j}, v{xrem+g}")
            I("s_mov_b64 exec, vcc")
            I(f"ds_add_rtn_u32 v{xk+3*g+j}, v{xa+3*g+j}, v{one} offset:{HIST}")
            I("s_mov_b64 exec, -1")
    I("s_branch K2_XT1R")
    L("K2_XT1S")
    spin()
    I("s_branch K2_XT1L")
    L("K2_XT2")
    for i in range(6):
        I(f"ds_read_u16 v{xa+i}, v{xa+i} offset:{HIST + 2}")
    for g in range(2): I(f"v_and_b32 v{xd+4*g+3}, 0x0f0f0f, v{xd+4*g+3}")
    I("s_waitcnt lgkmcnt(0)")
    for g in range(2):
        for j in range(3):
            i = 3*g + j
            I(f"v_add_u32 v{xa+i}, v{xa+i}, v{xk+i}")
            I(f"v_perm_b32 v{xk+i}, v{xd+4*g+3}, v{xd+4*g+j}, s{sSEL+j}")
            I(f"v_cmp_lt_i32 vcc, {j}, v{xrem+g}")
            I(f"v_lshl_add_u32 v{xk+i}, v{xk+i}, 5, v{xeb+g}")
            I("s_mov_b64 exec, vcc")
            I(f"ds_write2st64_b32 v{xa+i}, v{xd+4*g+j}, v{xk+i} offset0:{R0//256} offset1:{R1//256}")
            I("s_mov_b64 exec, -1")
    I("s_branch K2_PADS0")
    SB = 448
    t0, t1, t2, t3, t4 = vP, vP+1, vP+2, vP+3, vP+4
    L("K2_SLOW")
    I(f"s_add_u32 s{sR0}, s{sR0}, {SB}")
    I(f"s_cmp_lt_u32 s{sR0}, s{sCNT}")
    I("s_cbranch_scc1 K2_BATCH")
    L("K2_FIND")
    I(f"s_cmp_lg_u64 s[{sMSK}:{sMSK+1}], 0")
    I("s_cbranch_scc1 K2_GOT")
    I(f"s_add_u32 s{sCI}, s{sCI}, 1")
    I(f"s_cmp_ge_u32 s{sCI}, 4")
    I("s_cbranch_scc1 K2_EPI")
    I(f"s_mul_i32 s10, s{sB}, {RS}")
    I(f"s_lshl_b32 s11, s{sCI}, 13")
    I("s_add_u32 s10, s10, s11")
    I(f"v_lshlrev_b32 v{vT}, 7, v{lane}")
    I(f"buffer_load_ubyte v{vT}, v{vT}, s[{sWS}:{sWS+3}], s10 offen offset:15 sc1")
    I("s_waitcnt vmcnt(0)")
    I(f"v_cmp_lt_u32 s[{sMSK}:{sMSK+1}], s{sSKIP}, v{vT}")
    I("s_nop 3")
    I("s_branch K2_FIND")
    L("K2_GOT")
    I(f"s_ff1_i32_b64 s10, s[{sMSK}:{sMSK+1}]")
    I(f"s_bitset0_b64 s[{sMSK}:{sMSK+1}], s10")
    I(f"s_lshl_b32 s11, s{sCI}, 6")
    I(f"s_add_u32 s{sCUR}, s10, s11")
    I(f"s_mul_i32 s10, s{sB}, {RS}")
    I(f"s_lshl_b32 s11, s{sCUR}, 7")
    I("s_add_u32 s10, s10, s11")
    I(f"s_lshl_b32 s11, s{sB}, 8")
    I(f"s_add_u32 s11, s11, s{sCUR}")
    I(f"s_lshl_b32 s11, s11, 2")
    I(f"s_add_u32 s11, s11, {WS_HDR}")
    I(f"v_mov_b32 v{t0}, 0")
    I(f"buffer_load_ubyte v{t1}, v{t0}, s[{sWS}:{sWS+3}], s10 offen offset:15 sc1")
    I(f"buffer_load_dword v{t2}, v{t0}, s[{sWS}:{sWS+3}], s11 offen sc1")
    I("s_waitcnt vmcnt(0)")
    I(f"v_readfirstlane_b32 s10, v{t1}")
    I(f"v_readfirstlane_b32 s11, v{t2}")
    I("s_nop 3")
    I(f"s_and_b32 s{sST}, s11, 0xffff")
    I("s_lshr_b32 s11, s11, 16")
    I(f"s_lshr_b32 s{sCNT}, s10, 2")
    I(f"s_sub_u32 s{sCNT}, s10, s{sCNT}")
    I(f"s_cmp_gt_u32 s10, {QCAP}")
    I(f"s_cselect_b32 s{sCNT}, s11, s{sCNT}")
    I(f"s_lshr_b32 s10, s{sSKIP}, 2")
    I(f"s_sub_u32 s{sR0}, s{sSKIP}, s10")
    L("K2_BATCH")
    I("s_barrier")
    I(f"v_and_b32 v{t0}, 7, v{lane}")
    I(f"v_mul_u32_u24 v{t1}, {LCAP*4}, v{t0}")
    I(f"v_add_u32 v{t1}, {R0}, v{t1}")
    I(f"v_lshlrev_b32 v{t0}, 2, v{t0}")
    I(f"ds_write_b32 v{t0}, v{t1} offset:{CNT}")
    I(f"v_add_u32 v{t0}, s{sR0}, v{tid}")
    I(f"s_mul_i32 s10, s{sB}, {RS}")
    I(f"s_lshl_b32 s11, s{sCUR}, 7")
    I("s_add_u32 s10, s10, s11")
    I(f"v_mul_u32_u24 v{t2}, {KQ}, v{t0}")
    I(f"v_lshrrev_b32 v{t2}, 16, v{t2}")
    I(f"v_lshl_add_u32 v{t1}, v{t2}, 2, s10")
    I(f"v_add_u32 v{t3}, {WS_EXT - 128}, v{t1}")
    I(f"v_cmp_lt_u32 vcc, 31, v{t2}")
    I(f"s_mul_i32 s11, s{sCUR}, {CH}")
    I(f"s_add_u32 s11, s11, s{sST}")
    I(f"v_cndmask_b32 v{t1}, v{t1}, v{t3}, vcc")
    I(f"v_or_b32 v{t3}, 12, v{t1}")
    I(f"v_and_b32 v{t4}, 3, v{t2}")
    I(f"v_add_u32 v{t3}, v{t3}, v{t4}")
    I(f"v_cmp_le_u32 vcc, {QCAP}, v{t2}")
    I(f"v_add_u32 v{t2}, s11, v{t0}")
    I(f"v_add_u32 v{t4}, {WS_XB}, v{t2}")
    I(f"v_cndmask_b32 v{t3}, v{t3}, v{t4}, vcc")
    I(f"v_lshlrev_b32 v{t2}, 2, v{t2}")
    I(f"v_add_u32 v{t2}, {WS_RECS}, v{t2}")
    I(f"v_cndmask_b32 v{t1}, v{t1}, v{t2}, vcc")
    I(f"s_add_u32 s10, s{sR0}, {SB}")
    I(f"s_min_u32 s10, s10, s{sCNT}")
    I(f"v_cmp_gt_u32 vcc, s10, v{t0}")
    I(f"v_mov_b32 v{t2}, 0x7ffffff0")
    I(f"s_mul_i32 s{sTMP}, s{sCUR}, {CH*32}")
    I(f"v_cndmask_b32 v{t1}, v{t2}, v{t1}, vcc")
    I(f"v_cndmask_b32 v{t3}, v{t2}, v{t3}, vcc")
    I(f"buffer_load_dword v{t1}, v{t1}, s[{sWS}:{sWS+3}], 0 offen sc1")
    I(f"buffer_load_ubyte v{t3}, v{t3}, s[{sWS}:{sWS+3}], 0 offen sc1")
    I("s_waitcnt lgkmcnt(0)")
    I("s_barrier")
    I("s_and_saveexec_b64 s[10:11], vcc")
    I("s_waitcnt vmcnt(0)")
    I(f"v_and_b32 v{t0}, 255, v{t1}")
    I(f"v_lshlrev_b32 v{t0}, 2, v{t0}")
    I(f"ds_read_b32 v{t0}, v{t0} offset:{MAP}")
    I(f"v_bfe_u32 v{t2}, v{t1}, 8, 8")
    I(f"v_and_b32 v{t3}, 15, v{t3}")
    I(f"v_lshl_or_b32 v{t3}, v{t3}, 8, v{t2}")
    I(f"v_mov_b32 v{t2}, 4")
    I(f"v_lshl_add_u32 v{t3}, v{t3}, 5, s{sTMP}")
    I("s_waitcnt lgkmcnt(0)")
    I(f"ds_add_rtn_u32 v{t0}, v{t0}, v{t2} offset:{CNT}")
    I("s_waitcnt lgkmcnt(0)")
    I(f"ds_write2st64_b32 v{t0}, v{t1}, v{t3} offset0:0 offset1:{(R1-R0)//256}")
    I("s_mov_b64 exec, -1")
    I("s_waitcnt lgkmcnt(0)")
    I("s_barrier")
    I(f"s_lshl_b32 s10, s{sW}, 2")
    I(f"v_mov_b32 v{t0}, s10")
    I(f"ds_read_b32 v{t0}, v{t0} offset:{CNT}")
    for i in range(8): I(f"v_mov_b32 v{vT2+i}, 0")
    listaddr(lane, t1, t2)
    I("s_waitcnt lgkmcnt(0)")
    I(f"v_readfirstlane_b32 s{sEND}, v{t0}")
    I("s_nop 3")
    pads(lane, t0, t1, t2)
    L("K2_LAST")
    I("s_branch K2_GO")

def regs_of(tok):
    tok = tok.strip()
    m = re.fullmatch(r"v\[(\d+):(\d+)\]", tok)
    if m: return list(range(int(m.group(1)), int(m.group(2)) + 1))
    m = re.fullmatch(r"v(\d+)", tok)
    if m: return [int(m.group(1))]
    return []
def parse(ins):
    op, _, rest = ins.partition(" ")
    ops = [o.strip().split(" ")[0] for o in rest.split(",")] if rest else []
    if op.startswith("v_mfma"):
        return "mfma", regs_of(ops[0]), regs_of(ops[1]) + regs_of(ops[2]), regs_of(ops[3])
    if op.startswith("v_smfmac"):
        return "mfma", regs_of(ops[0]), regs_of(ops[1]) + regs_of(ops[2]) + regs_of(ops[3]), regs_of(ops[0])
    if op.startswith("v_"):
        k = "trans" if op in ("v_exp_f32", "v_rcp_f32") else "valu"
        return k, regs_of(ops[0]), sum((regs_of(o) for o in ops[1:]), []), []
    if op.startswith("ds_read"):
        return "ds", regs_of(ops[0]), regs_of(ops[1]), []
    if op.startswith("buffer_load"):
        return "vm", [], regs_of(ops[0]) + regs_of(ops[1]), []
    return "other", [], [], []
def check_body(body):
    seq = [b for b in body if not b.endswith(":")]
    for skip_dma in (False, True):
        s2 = []
        sk = False
        for b in body:
            if skip_dma and b.startswith("s_cbranch_scc0 K2_ND"):
                s2.append(b); sk = True; continue
            if b.startswith("K2_ND"): sk = False
            if b.endswith(":") or sk: continue
            s2.append(b)
        seq = s2 * 3
        last = {}
        lastc = {}
        pend = []
        for i, ins in enumerate(seq):
            k, d, s, c = parse(ins)
            m = re.search(r"lgkmcnt\((\d+)\)", ins)
            if m:
                n = int(m.group(1))
                while len(pend) > n: pend.pop(0)
            pr = set(sum(pend, []))
            for r in d + s + c:
                assert r not in pr or i < len(s2), f"pending LDS reg v{r} used by {ins} @{i}"
            for r in s + c + d:
                if r not in last: continue
                pk, pi = last[r]; dist = i - pi - 1
                if pk == "mfma":
                    if k == "mfma" and r in c and r not in s: need = 0
                    elif k == "mfma" and r in d and r not in s: need = 0
                    else: need = 12
                elif pk in ("valu", "trans") and k == "mfma" and r in s + c: need = 2
                elif pk == "trans" and k in ("valu", "mfma", "ds", "vm") and r in s: need = 1
                else: need = 0
                assert dist >= need, f"hazard {pk}->{k} v{r} dist {dist} need {need}: {ins} @{i}"
            if k in ("valu", "trans"):
                for r in d:
                    if r in lastc: assert i - lastc[r] - 1 >= 7, f"srcC WAR {ins}"
            for r in c: lastc[r] = i
            for r in d: last[r] = (k, i)
            if k == "ds":
                pend.append(d); assert len(pend) <= 15

hdr = open("/code/" + NAME + ".s.ref").read().split("\n")
for l in hdr:
    if l.startswith("; Override"): break
    out.append(l)
LEAK = opt("leak", "")
if LEAK:
    out.append(f"; @launch kernel={KN} grid=(256,1,1) block=(512,1,1) lds={K2_LDS}")
    out.append("; @launch kernel=spin_kernel grid=(1,1,1) block=(64,1,1) lds=0")
else: out.append(f"; @launch grid=(256,1,1) block=(512,1,1) lds={K2_LDS}")
emit('.amdgcn_target "amdgcn-amd-amdhsa--gfx950"\n.text')
k2()
KL = [(KN, 256, 102)]
if LEAK:
    kind, k = LEAK[:3], int(LEAK[3:])
    emit(".globl spin_kernel\n.p2align 8\n.type spin_kernel,@function\nspin_kernel:")
    I("s_memrealtime s[12:13]")
    I("s_cmp_lg_u32 s2, 0")
    I("s_cbranch_scc1 SP_END")
    I("s_load_dwordx2 s[4:5], s[0:1], 88")
    I("s_waitcnt lgkmcnt(0)")
    I(f"s_add_u32 s4, s4, {WS_TS + 0x100000}")
    I("s_addc_u32 s5, s5, 0")
    I("v_lshlrev_b32 v1, 5, v0")
    for j in range(31):
        I(f"global_load_dword v{2+j}, v1, s[4:5]")
        I(f"global_load_dword v{34+j}, v1, s[4:5] offset:{4*(k%8)}")
        I("v_add_u32 v1, 2048, v1")
    I("s_waitcnt vmcnt(0)")
    I("v_readfirstlane_b32 s6, v2")
    I("s_nop 1")
    I("s_sub_u32 s6, s6, 1000")
    for j in range(31):
        I(f"v_subrev_u32 v{2+j}, s6, v{2+j}")
        I(f"v_subrev_u32 v{34+j}, s6, v{34+j}")
    op = {"max": "max_u32", "min": "min_u32", "avg": "add_u32", "now": "max_u32"}[kind]
    for j in range(1, 31):
        I(f"v_min_u32 v2, v2, v{2+j}")
        I(f"v_{op} v34, v34, v{34+j}")
    I("s_nop 1")
    I("v_readlane_b32 s8, v2, 0")
    I("v_readlane_b32 s9, v34, 0")
    for l in range(1, 64):
        I(f"v_readlane_b32 s10, v2, {l}")
        I(f"v_readlane_b32 s11, v34, {l}")
        I("s_min_u32 s8, s8, s10")
        I(f"s_{op} s9, s9, s11")
    if kind == "avg":
        I(f"s_mul_hi_u32 s9, s9, {(1 << 32) // (31*64)}")
    if kind == "now":
        I("s_sub_u32 s8, s12, s6")
        I("s_sub_u32 s6, s8, s9")
    else: I("s_sub_u32 s6, s9, s8")
    I("s_lshl_b32 s6, s6, 2")
    I("s_min_u32 s6, s6, 30000")
    I("s_memrealtime s[8:9]")
    I("s_waitcnt lgkmcnt(0)")
    L("SP_L")
    I("s_memrealtime s[10:11]")
    I("s_waitcnt lgkmcnt(0)")
    I("s_sub_u32 s7, s10, s8")
    I("s_cmp_lt_u32 s7, s6")
    I("s_cbranch_scc1 SP_L")
    L("SP_END")
    I("s_endpgm")
    KL.append(("spin_kernel", 72, 16))
emit('.section .rodata,"a"')
for name, vg, sg in KL:
    emit(f""".p2align 6
.amdhsa_kernel {name}
  .amdhsa_next_free_vgpr {vg}
  .amdhsa_next_free_sgpr {sg}
  .amdhsa_accum_offset {vg}
  .amdhsa_group_segment_fixed_size 0
  .amdhsa_kernarg_size 96
  .amdhsa_user_sgpr_count 2
  .amdhsa_user_sgpr_kernarg_segment_ptr 1
  .amdhsa_system_sgpr_workgroup_id_x 1
.end_amdhsa_kernel""")
path = sys.argv[1] if len(sys.argv) > 1 else "/code/" + NAME + ".s"
open(path, "w").write("\n".join(out) + "\n")
print("wrote", path, len(out), "lines; lds", K2_LDS)
```

```python
import sys, re, math

NAME = "standalone__edge_featured_mpnn_gatedgcn__graph"
OPT = dict(kv.split("=") for kv in sys.argv[2:])
def opt(k, d):
    v = OPT.get(k)
    if v is None: return d
    return type(d)(v)

N, E = 50000, 800000
NCH, CH = 256, 3125
NB, BN = 256, 196
CELLB = 128
RS = 257 * CELLB
WS_EXT = NB * RS
QCAP = 48
KQ = 87382
LROW = 4 * (QCAP + 4)
WS_RECS = 0x1100000
WS_XB = 0x1500000
WS_HDR = 0x1600000
WS_EPOCH = 0x1700000
WS_USED = WS_EPOCH + 128
WI_U, WI_B, WI_V, WI_A, WI_C = 0, 8192, 16384, 24576, 32768
TMASK = 0x00f0f0f0
T0 = opt("t0", 12500)
LPH = (N - T0 + 2) // 3
SOFF = LPH - T0
PHM = (1 << 30) // LPH
assert 0 <= SOFF and N + SOFF <= 65536 and ((N - 1 + SOFF) * PHM) >> 30 <= 3
LOG2E = 1.4426950408889634
import struct
def f2u(f): return struct.unpack("<I", struct.pack("<f", f))[0]

out = []
def emit(s=""):
    for l in s.strip("\n").split("\n"):
        out.append(l.rstrip())
def I(s): out.append("    " + s)
def L(s): out.append(s + ":")
def C(s): out.append("    ; " + s)

def srd(d, lo, hi, size, add=None):
    if add is None:
        I(f"s_mov_b32 s{d}, s{lo}")
        I(f"s_mov_b32 s{d+1}, s{hi}")
    else:
        I(f"s_add_u32 s{d}, s{lo}, {add}")
        I(f"s_addc_u32 s{d+1}, s{hi}, 0")
    I(f"s_mov_b32 s{d+2}, {size}")
    I(f"s_mov_b32 s{d+3}, 0x20000")

def wave_scan(v, fill=None, half=False):
    def gap():
        if fill and len(fill) >= 2:
            I(fill.pop(0)); I(fill.pop(0))
        else: I("s_nop 1")
    for sh in (1, 2, 4, 8):
        gap()
        I(f"v_add_u32_dpp v{v}, v{v}, v{v} row_shr:{sh} row_mask:0xf bank_mask:0xf bound_ctrl:0")
    gap()
    I(f"v_add_u32_dpp v{v}, v{v}, v{v} row_bcast:15 row_mask:0xa bank_mask:0xf")
    if half: return
    gap()
    I(f"v_add_u32_dpp v{v}, v{v}, v{v} row_bcast:31 row_mask:0xc bank_mask:0xf")

TS = opt("ts", 0)
WS_TS = 0x3000000
SMAP = {1: {0: 0, 'd': 1, 'i': 2, 'w': 3, 2: 4, 5: 5, 6: 6, 7: 7},
        5: {0: 0, 'w': 1, 2: 2, 'a': 3, 'b': 4, 'c': 5, 3: 6, 7: 7},
        6: {0: 0, 'p': 1, 'q': 2, 'd': 3, 'i': 4, 'o': 5, 'k': 6, 7: 7},
        8: {0: 0, 'i': 1, 'w': 2, 1: 3, 2: 4, 3: 5, 7: 7},
        10: {0: 0, 'd': 1, 'i': 2, 'o': 3, 'A': 4, 'w': 5, 2: 6, 7: 7},
        9: {0: 0, 'q': 1, 'd': 2, 'i': 3, 'w': 4, 2: 5, 3: 6, 7: 7},
        7: {0: 0, 'k': 1, 'w': 2, 1: 3, 's': 4, 2: 5, 3: 6, 7: 7}}
def stamp(i):
    if TS in SMAP:
        i = SMAP[TS].get(i)
        if i is None: return
    elif isinstance(i, str): return
    if TS == 3:
        if i not in (0, 5, 6, 7): return
        I("s_memtime s[98:99]")
        I("s_waitcnt lgkmcnt(0)")
        I(f"s_mov_b32 s{88+{5:1,6:2,0:3,7:4}[i]}, s98")
    if TS:
        I("s_memrealtime s[98:99]" if TS != 2 else "s_memtime s[98:99]")
        I("s_waitcnt lgkmcnt(0)")
        I(f"s_mov_b32 s{88+i}, s98")
def stamp_out(n, wslo, swave, nw, off, v):
    if not TS: return
    I("s_waitcnt vmcnt(0)")
    stamp(7)
    I("s_mov_b64 exec, 1")
    I(f"s_mul_i32 s87, s2, {nw}")
    I(f"s_add_u32 s87, s87, s{swave}")
    I("s_lshl_b32 s87, s87, 5")
    I(f"s_add_u32 s87, s87, {WS_TS + off}")
    I(f"v_mov_b32 v{v}, s87")
    for i in range(n):
        I(f"v_mov_b32 v{v+1}, s{88+i}")
        I(f"global_store_dword v{v}, v{v+1}, s[{wslo}:{wslo+1}] offset:{4*i}")
K1_LD = opt("k1ld", "nt")
def pol(p): return (" " + p.replace("_", " ")) if p else ""

SM1 = opt("sm1", 1)
TAB, ZROW, CNT, FLAG, HIST, MAP = 0, 2048, 2112, 2176, 2304, 6400
T1B = 8448
LCAP = 544
LMAX = LCAP - 64
LUT = 8448 + 2304
R0 = LUT + 4096
R1 = R0 + 8 * LCAP * 4
assert R1 % 256 == 0 and R0 % 256 == 0
WL = R0
WU = R1 + 8 * LCAP * 4
XO = WU + 8192
STG = XO + 26112
SLOT = 5184
DT = 264
PRIV = 4352
WST = SLOT + PRIV
K2_LDS = STG + 8 * WST
assert K2_LDS <= 163840, K2_LDS

vWB, vWV, vWC, vAT = 0, 32, 64, 72
vACC = 88
vX, vE, vT1, vT2 = 152, 168, 172, 180
vP, vQ, vR = 188, 204, 220
vQD = 236
vR1 = 240
vCP, vCH, vAX, vAE, vC1, vC2, vARX, vART, vARP = 241, 242, 243, 244, 245, 246, 247, 248, 249
vL1 = 250
vARE = 251
vT = 252
DEN = lambda ft: vACC + 32 * ft
NUM = lambda ft: vACC + 32 * ft + 16
def rr(a, n): return f"v[{a}:{a+n-1}]"
def mfma(d, a, b, c=None):
    return f"v_mfma_f32_32x32x16_bf16 {rr(d,16)}, {rr(a,4)}, {rr(b,4)}, " + ("0" if c is None else rr(c, 16))

K2_XP = opt("k2x", "")
K2_EP = opt("k2e", "")
K2_CP = opt("k2c", "")
K2_OP = opt("k2o", "sc1")

sW, sB = 3, 12
sX, sEP, sWS, sOUT = 16, 20, 24, 28
sCEL, sWI = 32, 36
sM = 40
sT, sN, sSTG, s128, sL, sSKIP, sMORE = 72, 73, 74, 75, 76, 77, 78
sCI, sCUR, sR0, sCNT, sST, sMSK = 79, 80, 81, 82, 83, 84
sTMP = 86
sWIN = 96

def dma_tile(par):
    r = []
    for i in range(4):
        r.append(f"s_add_u32 m0, s{sSTG}, {par*SLOT + i*1040}")
        r.append(f"v_mad_u32_u16 v{vQD+i}, v{vQD+i}, s{s128}, v{vCP} op_sel:[1,0,0,0]")
        r.append(f"buffer_load_dwordx4 v{vQD+i}, s[{sX}:{sX+3}], 0 offen{pol(K2_XP)} lds")
    r.append(f"s_add_u32 m0, s{sSTG}, {par*SLOT + 4160}")
    r.append(f"v_add_u32 v{vR1}, v{vR1}, v{vCH}")
    r.append(f"buffer_load_dwordx4 v{vR1}, s[{sEP}:{sEP+3}], 0 offen{pol(K2_EP)} lds")
    return r

def valu_stream(G, H):
    s = []
    ex = [(f"v_exp_f32 v{G+i}, v{G+i}", 8) for i in range(16)]
    ad = [(f"v_add_f32 v{G+i}, 1.0, v{G+i}", 4) for i in range(16)]
    rc = [(f"v_rcp_f32 v{G+i}, v{G+i}", 8) for i in range(16)]
    mu = [(f"v_mul_f32 v{H+i}, v{G+i}, v{H+i}", 4) for i in range(16)]
    ce = [(f"v_cvt_pk_bf16_f32 v{G+i}, v{G+2*i}, v{G+2*i+1}", 4) for i in range(8)]
    cm = [(f"v_cvt_pk_bf16_f32 v{H+i}, v{H+2*i}, v{H+2*i+1}", 4) for i in range(8)]
    PK = opt("pk", 0)
    pa = [(f"v_pk_add_f32 v[{G+2*i}:{G+2*i+1}], v[{G+2*i}:{G+2*i+1}], 1.0 op_sel_hi:[1,0]", 4) for i in range(8)]
    pm = [(f"v_pk_mul_f32 v[{H+2*i}:{H+2*i+1}], v[{G+2*i}:{G+2*i+1}], v[{H+2*i}:{H+2*i+1}]", 4) for i in range(8)]
    if PK & 2:
        s += ex[:8] + ex[8:10] + pa[:4] + ex[10:] + rc[:2] + pa[4:] + rc[2:]
    elif PK & 4:
        s += ex + [("s_nop 0", 0)] + pa + rc
    else:
        for i in range(16 + 4):
            if i < 16: s.append(ex[i])
            if 0 <= i - 2 < 16: s.append(ad[i-2])
            if 0 <= i - 4 < 16: s.append(rc[i-4])
    s += pm if PK & 1 else mu
    return s

def interleave(valu, mf, extra, pos, spacing=opt('sp', 28)):
    res = []
    cum = 0; k = 0
    for ins, c in valu:
        while k < len(mf) and cum >= pos[k] * spacing:
            res.extend(extra.get(('b', k), []))
            res.append(mf[k])
            res.extend(extra.get(('a', k), []))
            k += 1
        res.append(ins); cum += c
    assert k == len(mf)
    return res

def g_mfmas(D, ft):
    m = [mfma(D, vE, vWC + 4*ft)]
    if SM1:
        m += [mfma(D, vX + 4*q, vWB + 16*ft + 4*q, D) for q in range(4)]
        m += [f"v_smfmac_f32_32x32x32_bf16 {rr(D,16)}, {rr(vT1,4)}, {rr(vAT+8*ft,8)}, v{vT1+4}"]
        return m
    m += [mfma(D, vT1 + 4*s, vAT + 8*ft + 4*s, D) for s in range(2)]
    m += [mfma(D, vX + 4*q, vWB + 16*ft + 4*q, D) for q in range(4)]
    return m
def h_mfmas(D, ft):
    return [mfma(D, vX + 4*q, vWV + 16*ft + 4*q, None if q == 0 else D) for q in range(4)]
vIX = vT1 + 5
def s_mfmas(acc, src):
    return [f"v_smfmac_f32_32x32x32_bf16 {rr(acc,16)}, {rr(vT2+4*s,4)}, {rr(src+8*s,8)}, v{vIX}" for s in range(2)]
def t1_reads():
    return [f"ds_read_b128 {rr(vT1,4)}, v{vL1} offset:{T1B}", f"ds_read_b32 v{vT1+4}, v{vL1} offset:{T1B+16}"]

H0_, DL_, E_, LAST_ = 2, 7, 8, 13
POS = [float(x) / 28 for x in opt("pos", "0_24_48_72_96_120_148_176_204_228_252_276_300_352").split("_")]
def phaseA(par):
    o = par * 128
    mf = s_mfmas(NUM(1), vQ) + h_mfmas(vQ, 0) + s_mfmas(DEN(1), vR) + g_mfmas(vR, 1)
    ex = {}
    ex[('a', 0)] = [f"ds_read_u8 v{vQD+u}, v{vART} offset:{o + 16*(u>>1) + 4*(u&1)}" for u in range(4)] + \
                   [f"ds_read_u8 v{vL1}, v{vARP} offset:{o + 128}"]
    ex[('a', H0_+3)] = ["s_waitcnt lgkmcnt(0)"] + [f"v_lshl_add_u32 v{vQD+u}, v{vQD+u}, 6, v{vC2}" for u in range(4)] + \
                       [f"v_lshl_add_u32 v{vL1}, v{vL1}, 6, v{vC1}"]
    ex[('a', DL_)] = [f"ds_read_b64_tr_b16 v[{vT2+2*u}:{vT2+2*u+1}], v{vQD+u}" for u in range(4)]
    ex[('a', LAST_)] = t1_reads() + [f"ds_read_b128 {rr(vQD,4)}, v{vARX} offset:{o + 2*128}",
                                     f"ds_read_b32 v{vR1}, v{vARE} offset:{o + 2*128}",
                                     f"s_add_u32 s{sT}, s{sT}, 1"]
    return interleave(valu_stream(vP, vQ), mf, ex, POS)

def phaseB(par):
    mf = s_mfmas(NUM(0), vQ) + h_mfmas(vQ, 1) + s_mfmas(DEN(0), vP) + g_mfmas(vP, 0)
    ex = {}
    ex[('b', 0)] = ["s_waitcnt lgkmcnt(4)"]
    ex[('b', H0_)] = ["s_waitcnt vmcnt(0)", f"ds_read_b128 {rr(vE,4)}, v{vAE}"]
    if TS == 4:
        ex[('b', H0_)] = ["s_memtime s[94:95]", "s_waitcnt vmcnt(0) lgkmcnt(0)", "s_memtime s[98:99]", "s_waitcnt lgkmcnt(0)", "s_sub_u32 s98, s98, s94",
                          "s_add_u32 m0, s72, 15", "s_nop 0", "v_writelane_b32 v255, s98, m0", f"ds_read_b128 {rr(vE,4)}, v{vAE}"]
    for q in range(4):
        ex[('a', H0_+q)] = [f"ds_read_b128 {rr(vX+4*q,4)}, v{vAX} offset:{16*q}"]
    ex[('b', E_)] = ["s_waitcnt lgkmcnt(4)"]
    for q in range(4): ex[('b', E_+1+q)] = [f"s_waitcnt lgkmcnt({3-q})"]
    ex[('a', E_+4)] = [f"s_cmp_lt_i32 s{sT}, s{sN1}",
                       f"s_cbranch_scc0 K2_ND_{par}"] + dma_tile(0) + [f"K2_ND_{par}:"]
    return interleave(valu_stream(vR, vQ), mf, ex, POS)

sF0, sF1, sEND = 13, 14, 15
sXT = 97
sN1 = 38
sSB = 37
SBK = opt('sbk', 0)
sNUL = 39
sTH = 4
PRIO = opt("prio", 1)

def listaddr(lane, t0, t3):
    I(f"v_bfe_u32 v{t0}, v{lane}, 3, 2")
    I(f"v_lshl_add_u32 v{vARX}, v{t0}, 5, s{sL}")
    I(f"v_lshrrev_b32 v{t0}, 5, v{lane}")
    I(f"v_lshl_add_u32 v{vARX}, v{t0}, 4, v{vARX}")
    I(f"v_and_b32 v{t0}, 3, v{lane}")
    I(f"v_and_b32 v{t3}, 28, v{lane}")
    I(f"v_lshl_add_u32 v{t0}, v{t0}, 5, v{t3}")
    I(f"v_add_u32 v{vARP}, s{sL}, v{t0}")
    I(f"v_lshrrev_b32 v{t3}, 1, v{lane}")
    I(f"v_lshl_add_u32 v{vARE}, v{t3}, 2, s{sL}")
    I(f"v_add_u32 v{vARE}, {R1-R0}, v{vARE}")
    I(f"v_bfe_u32 v{t0}, v{lane}, 2, 2")
    I(f"v_lshl_add_u32 v{vART}, v{t0}, 5, s{sL}")
    I(f"v_lshrrev_b32 v{t0}, 5, v{lane}")
    I(f"v_lshl_add_u32 v{vART}, v{t0}, 3, v{vART}")

vOWN = vT + 1
def pads(lane, t0, t1, t2):
    W2 = f"offset0:0 offset1:{(R1-R0)//256}"
    I(f"v_mov_b32 v{t2}, 0xffff0000")
    I(f"v_or_b32 v{t1}, s{sNUL}, v{t2}")
    I(f"v_mov_b32 v{t2}, 0x7fffff00")
    I(f"v_lshl_add_u32 v{t0}, v{lane}, 2, s{sEND}")
    I(f"s_sub_u32 s{sN}, s{sEND}, s{sL}")
    I(f"ds_write2st64_b32 v{t0}, v{t1}, v{t2} {W2}")
    I(f"s_add_u32 s{sN}, s{sN}, 127")
    I(f"s_lshr_b32 s{sN}, s{sN}, 7")
    I(f"s_sub_i32 s{sN1}, s{sN}, 1")

KN = NAME + "_kernel"
P_HIST, P_HDR = MAP, WU
H0 = 1536
P_EIMG = STG
P_CIMG = P_EIMG + 64 * LROW
assert P_CIMG + 256 * LROW <= K2_LDS
sTAG, sEPN, sSPIN = 36, 100, 101
def k2():
    emit(f"""
.globl {KN}
.p2align 8
.type {KN},@function
{KN}:""")
    I("s_cmp_ge_u32 s2, 256")
    I("s_cbranch_scc1 K2_END")
    stamp(0)
    KA = sM
    I(f"s_load_dwordx4 s[{KA+4}:{KA+7}], s[0:1], 16")
    I(f"s_load_dwordx2 s[8:9], s[0:1], 88")
    I(f"s_load_dwordx4 s[{KA}:{KA+3}], s[0:1], 0")
    I(f"s_load_dwordx8 s[{KA+8}:{KA+15}], s[0:1], 32")
    I(f"s_load_dwordx4 s[{KA+16}:{KA+19}], s[0:1], 64")
    tid, lane = 255, 254
    CPF = opt("cpf", 192)
    if CPF:
        I(f"s_getpc_b64 s[{sTMP}:{sTMP+1}]")
        L("K2_PC")
        I(f"v_lshlrev_b32 v{vT}, 7, v0")
        I(f"v_min_u32 v{vT}, K2_LAST-K2_PC, v{vT}")
        I(f"v_cmp_gt_u32 vcc, {CPF}, v0")
        I("s_cbranch_vccz K2_NOCPF")
        I(f"global_load_dword v{vT+1}, v{vT}, s[{sTMP}:{sTMP+1}]")
        L("K2_NOCPF")
    vC = vACC
    vA = vACC + 16
    hh = vACC + 28
    vRK = vR
    vMIN = vQ + 8
    vTM = vQ + 10
    u = lambda i: vP + i
    k4, ecb, hda, one, l16 = vE, vE + 1, vE + 2, vE + 3, vT1
    pD, pS, pH, pK, pA, pB, pI, pW = 8, 16, 24, 32, 40, 48, 56, 64
    I(f"v_mov_b32 v{tid}, v0")
    I(f"v_lshrrev_b32 v{u(0)}, 6, v0")
    I(f"v_and_b32 v{lane}, 63, v0")
    I(f"v_readfirstlane_b32 s7, v{u(0)}")
    I("s_and_b32 s10, s2, 7")
    I("s_lshr_b32 s11, s2, 3")
    I("s_lshl_b32 s10, s10, 5")
    I(f"s_add_u32 s{sB}, s10, s11")
    I(f"s_mul_i32 s13, s{sB}, {CH*4}")
    I(f"v_lshlrev_b32 v{u(1)}, 4, v0")
    I(f"v_lshlrev_b32 v1, 3, v0")
    I(f"v_lshlrev_b32 v2, 2, v0")
    I(f"v_mov_b32 v3, 0")
    I(f"v_and_b32 v4, 0x3fc, v2")
    I(f"ds_write_b32 v4, v3 offset:{P_HIST}")
    ASYM = opt("asym", 16)
    I(f"s_and_b32 s10, s7, 3")
    I(f"s_lshr_b32 s{sW}, s7, 2")
    I(f"s_lshl1_add_u32 s{sW}, s10, s{sW}")
    I(f"s_xor_b32 s{sW}, s{sW}, 1")
    I(f"s_movk_i32 s14, 8192")
    I(f"s_movk_i32 s15, 12288")
    I("s_waitcnt lgkmcnt(0)")
    stamp('p')
    vq = []
    def younger(tag): return len(vq) - 1 - max(i for i, t in enumerate(vq) if t == tag)
    q0, q1 = 64, 68
    srd(q0, KA+6, KA+7, CH*4, "s13")
    srd(q1, KA+4, KA+5, CH*4, "s13")
    for r_, q_ in ((pD, q0), (pS, q1)):
        I(f"buffer_load_dwordx4 {rr(r_,4)}, v{u(1)}, s[{q_}:{q_+3}], 0 offen{pol(K1_LD)}")
        I(f"buffer_load_dwordx2 {rr(r_+4,2)}, v1, s[{q_}:{q_+3}], s14 offen{pol(K1_LD)}")
        I(f"buffer_load_dword v{r_+6}, v2, s[{q_}:{q_+3}], s15 offen{pol(K1_LD)}")
        vq += ["D" if r_ == pD else "S"] * 3
        if r_ == pD and opt("db", 1): I("s_barrier")
    I(f"s_add_u32 s10, s8, {WS_EPOCH}")
    I("s_addc_u32 s11, s9, 0")
    I(f"s_load_dword s{sEPN}, s[10:11], 0")
    if not opt("db", 1): I("s_barrier")
    I(f"v_lshrrev_b32 v1, 3, v0")
    I(f"v_lshlrev_b32 v{hda}, 2, v1")
    I(f"v_and_b32 v{u(9)}, 7, v0")
    I(f"v_and_b32 v5, 16, v0")
    I(f"v_lshlrev_b32 v5, 1, v5")
    I(f"v_xor_b32 v5, v5, v{u(1)}")
    I(f"v_lshlrev_b32 v{l16}, 4, v{lane}")
    I(f"v_and_b32 v{vCP}, 16, v{lane}")
    I(f"v_lshlrev_b32 v{vCP}, 2, v{vCP}")
    I(f"v_xor_b32 v{vX}, v{vCP}, v{l16}")
    I(f"v_and_b32 v{vCP}, 0x70, v{vX}")
    if SOFF: I(f"v_subrev_u32 v{vCP}, {SOFF * 128}, v{vCP}")
    srd(sX, KA, KA+1, N*128)
    WLPOS = len(out)
    mark = len(out)
    I(f"s_mul_i32 s11, s{sW}, 49")
    I("s_sub_i32 s11, s11, 7")
    I("s_ashr_i32 s11, s11, 1")
    I(f"s_max_i32 s{sWIN}, s11, 0")
    I(f"v_lshrrev_b32 v{u(5)}, 5, v{lane}")
    def wloads():
        srd(q0, KA+10, KA+11, 8192)
        I(f"buffer_load_dwordx4 {rr(pW,4)}, v5, s[{q0}:{q0+3}], 0 offen"); vq.append("B")
        srd(q1, KA+12, KA+13, 2048)
        I(f"buffer_load_dwordx4 {rr(pW+4,4)}, v5, s[{q1}:{q1+3}], 0 offen"); vq.append("B")
        I(f"s_lshl_b32 s10, s7, 10")
        for kp, off in ((KA+8, WI_A), (KA+16, WI_V), (KA+14, WI_U)):
            I(f"s_mov_b32 s{q0}, s{kp}")
            I(f"s_mov_b32 s{q0+1}, s{kp+1}")
            I(f"s_add_u32 m0, s10, {WL + off}")
            I("s_nop 0")
            I(f"buffer_load_dwordx4 v5, s[{q0}:{q0+3}], 0 offen lds"); vq.append("W")
    def xloads():
        I(f"s_mul_i32 s10, s{sB}, {BN*128}")
        I(f"s_lshl_b32 s11, s7, 10")
        I(f"s_add_u32 s10, s10, s11")
        I(f"s_mul_i32 s11, s7, 1040")
        I(f"s_cmp_lg_u32 s7, 0")
        I(f"s_cbranch_scc1 K2_NOX3")
        for i in (3, 0, 1, 2):
            I(f"s_add_u32 m0, s11, {XO + i*8320}")
            I(f"s_add_u32 s14, s10, {i*8192}")
            I(f"buffer_load_dwordx4 v{vX}, s[{sX}:{sX+3}], s14 offen lds")
            if i == 3: L("K2_NOX3")
            else: vq.append("X")
    srd(sEP, KA+2, KA+3, E*32)
    srd(sOUT, KA+18, KA+19, N*128)
    srd(sWS, 8, 9, WS_USED)
    I(f"v_lshrrev_b32 v{u(6)}, 5, v{tid}")
    I(f"v_and_b32 v{u(7)}, 15, v{tid}")
    I(f"v_cmp_eq_u32 vcc, v{u(6)}, v{u(7)}")
    I(f"v_and_b32 v{u(6)}, 16, v{tid}")
    I(f"v_mov_b32 v{u(7)}, 0x3f80")
    I(f"v_lshlrev_b32 v{u(7)}, v{u(6)}, v{u(7)}")
    I(f"v_cndmask_b32 v{u(7)}, 0, v{u(7)}, vcc")
    I(f"v_lshlrev_b32 v{u(6)}, 2, v{tid}")
    I(f"v_mov_b32 v{u(8)}, 0")
    I(f"ds_write_b32 v{u(6)}, v{u(7)}")
    if SM1:
        I(f"v_bfe_u32 v{u(7)}, v{tid}, 3, 1")
        I(f"v_and_b32 v{u(13)}, 7, v{tid}")
        I(f"v_lshl_add_u32 v{u(7)}, v{u(7)}, 2, v{u(13)}")
        I(f"v_lshrrev_b32 v{u(12)}, 6, v{tid}")
        I(f"v_cmp_eq_u32 vcc, v{u(7)}, v{u(12)}")
        I(f"v_bfe_u32 v{u(12)}, v{tid}, 4, 2")
        I(f"v_mov_b32 v{u(7)}, 0x3f80")
        I(f"v_cndmask_b32 v{u(7)}, 0, v{u(7)}, vcc")
        I(f"v_cmp_lt_u32 vcc, 3, v{u(13)}")
        I(f"v_mul_u32_u24 v{u(12)}, 0x5555, v{u(12)}")
        I(f"v_and_b32 v{u(13)}, 60, v{u(6)}")
        I(f"v_cndmask_b32 v{u(7)}, v{u(7)}, v{u(12)}, vcc")
        I(f"ds_write_b32 v{u(6)}, v{u(7)} offset:{T1B}")
        I(f"ds_write_b32 v{u(13)}, v{u(8)} offset:{T1B + 2048}")
    I(f"ds_write_b32 v{u(6)}, v{u(8)} offset:{ZROW}")
    I(f"ds_write2st64_b32 v{u(6)}, v{u(8)}, v{u(8)} offset0:{HIST//256} offset1:{HIST//256 + 8}")
    I(f"s_movk_i32 s{s128}, 128")
    I(f"s_mul_i32 s{sSTG}, s{sW}, {WST}")
    I(f"s_add_u32 s{sSTG}, s{sSTG}, {STG}")
    I(f"s_movk_i32 s{sSKIP}, {QCAP}")
    I(f"s_add_u32 s{sNUL}, s{sWIN}, 32")
    I(f"s_lshl_b32 s11, s{sWIN}, 6")
    I(f"s_mov_b32 s{sXT}, 0")
    I(f"v_bfe_u32 v{u(6)}, v{lane}, 4, 1")
    I(f"v_and_b32 v{vCH}, 1, v{lane}")
    I(f"v_lshlrev_b32 v{vCH}, 4, v{vCH}")
    I(f"v_lshlrev_b32 v{vC1}, 5, v{u(5)}")
    I(f"v_subrev_u32 v{vC1}, s11, v{vC1}")
    I(f"v_and_b32 v{u(7)}, 3, v{lane}")
    I(f"v_lshlrev_b32 v{u(7)}, 3, v{u(7)}")
    I(f"v_lshl_add_u32 v{vC2}, v{u(6)}, 5, v{u(7)}")
    I(f"v_subrev_u32 v{vC2}, s11, v{vC2}")
    I(f"v_bfe_u32 v{u(8)}, v{lane}, 2, 2")
    I(f"v_mul_u32_u24 v{u(8)}, 1040, v{u(8)}")
    I(f"v_lshl_add_u32 v{u(8)}, v{u(6)}, 9, v{u(8)}")
    I(f"v_lshl_add_u32 v{u(8)}, v{u(7)}, 4, v{u(8)}")
    I(f"v_bfe_u32 v{u(6)}, v{lane}, 1, 1")
    I(f"v_xor_b32 v{u(6)}, v{u(6)}, v{u(5)}")
    I(f"v_lshl_add_u32 v{u(8)}, v{u(6)}, 6, v{u(8)}")
    I(f"v_add_u32 v{vAX}, s{sSTG}, v{u(8)}")
    I(f"v_bfe_u32 v{u(6)}, v{lane}, 2, 3")
    I(f"v_add_u32 v{u(6)}, v{u(6)}, v{u(7)}")
    I(f"v_lshl_add_u32 v{u(6)}, v{u(6)}, 1, v{u(5)}")
    I(f"v_lshl_add_u32 v{vAE}, v{u(6)}, 4, s{sSTG}")
    I(f"v_add_u32 v{vAE}, 4160, v{vAE}")
    I(f"s_mul_i32 s{sL}, s{sW}, {LCAP*4}")
    I(f"s_add_u32 s{sL}, s{sL}, {R0}")
    listaddr(lane, u(6), u(7))
    def ownaddr(d, lab, t):
        I(f"v_and_b32 v{d}, 31, v{lab}")
        I(f"v_add_u32 v{d}, s{sWIN}, v{d}")
        I(f"v_bfe_u32 v{t}, v{d}, 1, 1")
        I(f"v_xor_b32 v{t}, v{t}, v{u(5)}")
        I(f"v_lshlrev_b32 v{t}, 6, v{t}")
        I(f"v_lshl_add_u32 v{t}, v{d}, 7, v{t}")
        I(f"v_lshrrev_b32 v{d}, 3, v{d}")
        I(f"v_lshl_add_u32 v{d}, v{d}, 4, v{t}")
    ownaddr(u(14), lane, u(6))
    I(f"v_lshrrev_b32 v{u(6)}, 1, v{lane}")
    I(f"v_xor_b32 v{u(6)}, v{u(6)}, v{lane}")
    I(f"v_and_b32 v{u(6)}, 4, v{u(6)}")
    I(f"v_mul_u32_u24 v{u(6)}, 3, v{u(6)}")
    I(f"v_xor_b32 v{u(6)}, v{u(6)}, v{lane}")
    ownaddr(u(3), u(6), u(7))
    I(f"v_mov_b32 v{vIX}, 0xdddd")
    lo0, hi0, lo1, hi1 = sT, sN, sMSK, sMSK + 1
    I(f"s_mul_i32 s10, s{sW}, 49")
    I(f"s_sub_i32 s{lo0}, s10, 7")
    I(f"s_ashr_i32 s{lo0}, s{lo0}, 1")
    I(f"s_add_i32 s{hi0}, s10, 8")
    I(f"s_ashr_i32 s{hi0}, s{hi0}, 1")
    I(f"s_add_i32 s{lo1}, s10, 42")
    I(f"s_ashr_i32 s{lo1}, s{lo1}, 1")
    I(f"s_add_i32 s{hi1}, s{lo0}, 32")
    I(f"s_cmp_eq_u32 s{sW}, 7")
    I(f"s_cselect_b32 s{lo1}, {BN}, s{lo1}")
    I(f"s_cselect_b32 s{hi1}, {BN}, s{hi1}")
    I(f"v_lshlrev_b32 v{k4}, 2, v{u(9)}")
    vEB = vQ + 4
    I(f"v_mul_u32_u24 v{vEB}, {CH*8}, v{hda}")
    for i in range(1, 4):
        I(f"v_add_u32 v{vEB+i}, {64*i*CH*32}, v{vEB}")
    I(f"v_mov_b32 v{one}, 4")
    I(f"v_mov_b32 v{ecb}, 1")
    I(f"v_and_b32 v{u(11)}, 31, v{lane}")
    I(f"v_add_u32 v{u(11)}, s{sWIN}, v{u(11)}")
    I(f"v_lshlrev_b32 v{u(12)}, 4, v{u(11)}")
    I(f"v_lshl_add_u32 v{u(12)}, v{u(5)}, 3, v{u(12)}")
    for i in range(4): I(f"v_mov_b64 v[{vT2+2*i}:{vT2+2*i+1}], 0")
    I(f"s_lshl_b32 s{sEND}, s{sW}, 2")
    I(f"v_mov_b32 v{vMIN}, s{sEND}")
    I(f"v_lshlrev_b32 v{vMIN+1}, 2, v{u(11)}")
    static = out[mark:]; del out[mark:]
    WLP = opt("wl", 2)
    if WLP == 0: wloads()
    XP_ = opt("xp", 4)
    if XP_ == 0: xloads()
    SP = opt("sp0", 0)
    SPN = opt("spn", 1000)
    if SP:
        out.extend(static[:SPN]); static = static[SPN:]
    c1, c2, c3 = 60, 61, 62
    pm = 78
    pX = 23
    xb = lambda i: (23, 23, 23, 23, 31, 31, 39)[i]
    I(f"s_mov_b32 s{c1}, 85599")
    I(f"s_mov_b32 s{c2}, {-BN & 0xffffffff}")
    I(f"s_movk_i32 s{c3}, {H0}")
    I(f"v_mov_b32 v7, {KQ}")
    I(f"s_mov_b32 s10, {SOFF << 16}")
    I(f"v_lshl_add_u32 v{pI}, v{lane}, 10, s10")
    for i in range(1, 4): I(f"v_add_u32 v{pI+i}, {i << 8}, v{pI}")
    I(f"v_and_b32 v{pI+4}, 127, v{tid}")
    I(f"v_lshl_add_u32 v{pI+4}, v{pI+4}, 9, s10")
    I(f"v_add_u32 v{pI+5}, 256, v{pI+4}")
    I(f"v_lshl_add_u32 v{pI+6}, v{lane}, 8, s10")
    I(f"v_lshrrev_b32 v23, 6, v{tid}")
    I(f"v_lshrrev_b32 v31, 7, v{tid}")
    I(f"v_add_u32 v31, 8, v31")
    I(f"v_mov_b32 v39, 12")
    I(f"v_cmp_gt_u32 s[{pm}:{pm+1}], {CH - 3072}, v{tid}")
    I(f"s_mov_b32 s11, {RS}")
    I(f"v_lshlrev_b32 v3, 4, v{u(9)}")
    I(f"v_mad_u32_u24 v4, v1, s11, v3")
    I(f"v_mul_u32_u24 v6, {LROW // 4}, v1")
    I(f"v_lshl_add_u32 v6, v{u(9)}, 2, v6")
    I(f"v_lshlrev_b32 v3, 2, v6")
    I(f"v_add_u32 v3, {P_CIMG}, v3")
    I(f"v_add_u32 v6, {P_EIMG}, v6")
    I(f"v_mov_b32 v{vTM}, {TMASK:#x}")
    I(f"v_mov_b32 v15, 0x0f0f0f")
    X0 = (LROW // 16) * H0
    sSO = sCI
    def cload(i):
        so = "0" if i == 0 else f"s{sSO+i-1}"
        I(f"buffer_load_dwordx4 {rr(vC+4*i,4)}, v{u(1)}, s[{sCEL}:{sCEL+3}], {so} offen sc1")
    def cloads():
        if opt("dly", 0): I(f"s_sleep {opt('dly', 0)}")
        stamp('w')
        for i in range(4): cload(i); vq.append("C")
    def prod(idx):
        n = len(idx)
        for i in idx: I(f"v_mul_u32_u24 v{pB+i}, s{c1}, v{pD+i}")
        for i in idx: I(f"v_lshrrev_b32 v{pB+i}, 24, v{pB+i}")
        for i in idx:
            I(f"v_lshl_add_u32 v{pH+i}, v{pB+i}, 2, s{c3}")
            I(f"ds_add_rtn_u32 v{pK+i}, v{pH+i}, v7 offset:{P_HIST - H0}")
        for i in idx:
            I(f"v_mad_i32_i24 v{pD+i}, v{pB+i}, s{c2}, v{pD+i}")
            I(f"v_or_b32 v{pD+i}, v{pD+i}, v{pI+i}")
        for j, i in enumerate(idx):
            I(f"s_waitcnt lgkmcnt({n - 1})")
            I(f"v_lshrrev_b32 v{pK+i}, 16, v{pK+i}")
            I(f"v_min_u32 v{pA+i}, {QCAP}, v{pK+i}")
            I(f"v_mad_u32_u24 v{pA+i}, v{pH+i}, {LROW // 16}, v{pA+i}")
            I(f"v_lshlrev_b32 v{pB+i}, 2, v{pA+i}")
            I(f"ds_write_b8 v{pA+i}, v{xb(i)} offset:{P_EIMG - X0}")
    def prod2(idx):
        for i in idx:
            I(f"v_lshl_add_u32 v{pS+i}, v{pS+i}, 16, v{pD+i}")
            I(f"ds_write_b32 v{pB+i}, v{pS+i} offset:{P_CIMG - 4*X0}")
    if WLP == 1: wloads()
    stamp('q')
    I(f"s_waitcnt vmcnt({younger('D')})")
    stamp('d')
    prod(range(6))
    I(f"s_cmp_lg_u32 s7, 0")
    I("s_cbranch_scc1 K1_NO7")
    I(f"s_mov_b64 exec, s[{pm}:{pm+1}]")
    I("s_waitcnt lgkmcnt(0)")
    prod([6])
    I(f"s_waitcnt vmcnt({younger('S')})")
    prod2([6])
    I("s_mov_b64 exec, -1")
    L("K1_NO7")
    if WLP == 2: wloads()
    I(f"s_waitcnt vmcnt({younger('S')})")
    prod2(range(6))
    if XP_ == 4: xloads()
    I(f"s_lshl_b32 s15, s{sB}, 7")
    sST_ = sCEL
    srd(sST_, 8, 9, 511*RS + CELLB, "s15")
    I("s_waitcnt lgkmcnt(0)")
    I(f"s_add_u32 s{sEPN}, s{sEPN}, 1")
    I(f"s_and_b32 s10, s{sEPN}, 15")
    I(f"s_and_b32 s11, s{sEPN}, 0xf0")
    I(f"s_mul_i32 s{sTAG}, s10, 0x1010")
    I(f"s_lshl_b32 s11, s11, 16")
    I(f"s_xor_b32 s{sTAG}, s{sTAG}, 0xf000")
    I(f"s_or_b32 s{sTAG}, s{sTAG}, s11")
    I(f"s_mov_b32 s{sSPIN}, {opt('spin', 200000)}")
    I("s_barrier")
    stamp('i')
    oC, oE, oH, oA = vACC, vACC + 16, vACC + 20, vACC + 24
    I(f"ds_read_b128 {rr(oA,4)}, v{l16} offset:{P_HIST}")
    for i in range(4):
        I(f"ds_read_u16 v{oH+i}, v{hda} offset:{P_HIST + 256*i + 2}")
        I(f"ds_read_b32 v{oE+i}, v6 offset:{16*LROW*i}")
        I(f"ds_read_b128 {rr(oC+4*i,4)}, v3 offset:{64*LROW*i}")
    I("s_waitcnt lgkmcnt(12)")
    I(f"v_max3_u32 v1, v{oA}, v{oA+1}, v{oA+2}")
    I(f"v_max_u32 v1, v1, v{oA+3}")
    I(f"v_cmp_le_u32 vcc, {(QCAP + 1) << 16}, v1")
    I("s_mov_b32 s10, 0")
    I("s_cbranch_vccnz K1_OVF")
    L("K1_OUT")
    for i in range(4):
        r = oC + 4*i
        I(f"s_waitcnt lgkmcnt({9 - 3*i})")
        I(f"v_lshl_or_b32 v{oH+i}, v{oH+i}, 24, s{sTAG}")
        I(f"v_and_or_b32 v{r+3}, v{oE+i}, v15, v{oH+i}")
        I(f"buffer_store_dwordx4 {rr(r,4)}, v4, s[{sST_}:{sST_+3}], s10 offen sc1"); vq.append("O")
        I(f"s_add_u32 s10, s10, {64*RS}")
    I(f"v_max3_u32 v1, v{oH}, v{oH+1}, v{oH+2}")
    I(f"v_max_u32 v1, v1, v{oH+3}")
    I(f"v_cmp_le_u32 vcc, {33 << 24}, v1")
    I("s_cbranch_vccnz K1_EXT")
    L("K1_EXTR")
    stamp('o')
    if TS == 10:
        I("s_waitcnt vmcnt(0)")
        stamp('A')
    if opt("bar", 0): I("s_barrier")
    out.extend(static)
    I(f"s_mul_i32 s10, s{sB}, {RS}")
    srd(sCEL, 8, 9, NCH*CELLB, "s10")
    for k in (1, 2, 3):
        I(f"s_movk_i32 s{sSO+k-1}, {64*CELLB*k}")
    CP = opt("cp", 2)
    if CP == 0: cloads()
    I(f"s_mov_b32 s10, {f2u(-LOG2E):#x}")
    I(f"s_waitcnt vmcnt({younger('B')})")
    for i in range(8):
        I(f"v_lshlrev_b32 v{vAT+2*i}, 16, v{pW+i}")
        I(f"v_and_b32 v{vAT+2*i+1}, 0xffff0000, v{pW+i}")
    for i in range(16): I(f"v_mul_f32 v{vAT+i}, s10, v{vAT+i}")
    for i in range(8): I(f"v_cvt_pk_bf16_f32 v{pW+i}, v{vAT+2*i}, v{vAT+2*i+1}")
    I(f"ds_write_b128 v{u(1)}, {rr(pW,4)} offset:{WL + WI_B}")
    I(f"s_cmp_ge_u32 s7, 2")
    I("s_cbranch_scc1 K1_NOWC")
    I(f"ds_write_b128 v{u(1)}, {rr(pW+4,4)} offset:{WL + WI_C}")
    L("K1_NOWC")
    w0, w1, wc0, wc1, xa_ = vT1 + 1, vT1 + 2, vT1 + 3, vT1 + 4, vT
    I(f"v_bfe_u32 v{w0}, v{lane}, 2, 2")
    I(f"v_lshlrev_b32 v{w0}, 7, v{w0}")
    I(f"v_lshl_add_u32 v{w0}, v{vCH}, 2, v{w0}")
    I(f"v_and_b32 v{w1}, 16, v{lane}")
    I(f"v_and_b32 v{wc0}, 2, v{lane}")
    I(f"v_lshl_add_u32 v{w1}, v{wc0}, 2, v{w1}")
    I(f"v_and_b32 v{wc0}, 8, v{lane}")
    I(f"v_lshl_add_u32 v{w1}, v{wc0}, 2, v{w1}")
    I(f"v_add_u32 v{w0}, v{w0}, v{w1}")
    I(f"v_lshl_add_u32 v{wc0}, v{u(5)}, 10, v{w0}")
    I(f"v_lshl_add_u32 v{w0}, v{u(5)}, 12, v{w0}")
    I(f"v_xor_b32 v{w1}, 32, v{w0}")
    I(f"v_xor_b32 v{wc1}, 32, v{wc0}")
    def wtr(reg, img, ft, s_, c=False):
        ad = (wc0, wc1)[ft] if c else (w0, w1)[ft]
        return [f"ds_read_b64_tr_b16 {rr(reg+2*h_,2)}, v{ad} offset:{WL + img + 1024*s_ + 512*h_}" for h_ in range(2)]
    I(f"s_lshl_b32 s10, s7, 10")
    I(f"s_and_b32 s11, s7, 4")
    I(f"s_mul_i32 s11, s11, {8 - 1024}")
    I(f"s_add_u32 s11, s11, s10")
    I(f"v_xor_b32 v{xa_}, s11, v{w0}")
    I(f"s_waitcnt vmcnt({min(younger('W'), younger('X'))}) lgkmcnt(0)")
    I("s_barrier")
    if CP == 1: cloads()
    vWA, vAD = vWV, vACC + 32
    for h_ in range(2): I(f"ds_read_b64_tr_b16 {rr(vAT+2*h_,2)}, v{xa_} offset:{WL + WI_U + 512*h_}")
    for q in range(4): I(f"ds_read_b128 {rr(vX+4*q,4)}, v{u(3)} offset:{XO + 16*q}")
    I(f"v_add_u32 v{xa_}, s10, v{l16}")
    rest = []
    for reg, img in ((vWB, WI_B), (vWC, WI_C), (vWV, WI_V)):
        for ft in range(2):
            if img == WI_C: rest += wtr(vWC + 4*ft, WI_C, ft, 0, True)
            else:
                for s_ in range(4): rest += wtr(reg + 16*ft + 4*s_, img, ft, s_)
    for k in range(8):
        if k == 4:
            I("s_waitcnt lgkmcnt(5)")
            I(f"ds_write_b128 v{xa_}, {rr(vAT,4)} offset:{WU}")
        for x_ in wtr(vWA + 4*k, WI_A, k >> 2, k & 3): I(x_)
    for k in range(8):
        I("s_waitcnt lgkmcnt(12)")
        I(mfma(vAD + 16*(k >> 2), vX + 4*(k & 3), vWA + 4*k, None if k & 3 == 0 else vAD + 16*(k >> 2)))
        for x_ in rest[2*k:2*k+2]: I(x_)
    rest = rest[16:]
    while rest:
        I("s_waitcnt lgkmcnt(8)")
        for x_ in rest[:6]: I(x_)
        rest = rest[6:]
    if CP == 3: cloads()
    I(f"s_mov_b32 s10, {f2u(-LOG2E):#x}")
    for i in range(32):
        I(f"v_mul_f32 v{vAD+i}, s10, v{vAD+i}")
    for i in range(16):
        I(f"v_cvt_pk_bf16_f32 v{vAT+i}, v{vAD+2*i}, v{vAD+2*i+1}")
    stamp('k')
    sPH = 5
    I(f"s_mov_b32 s{sPH}, {PHM}")
    if CP == 2: cloads()
    SW1 = "dst_sel:DWORD dst_unused:UNUSED_PAD src0_sel:DWORD src1_sel:WORD_1"
    def haddr(d, r):
        return [f"v_mul_u32_u24_sdwa v{d}, s{sPH}, v{r} {SW1}", f"v_alignbit_b32 v{d}, v{r}, v{d}, 28", f"v_and_b32 v{d}, 0xffc, v{d}"]
    def remain(d, r, k):
        I(f"v_sub_u32_sdwa v{d}, v{r}, v{k} dst_sel:DWORD dst_unused:UNUSED_PAD src0_sel:BYTE_3 src1_sel:DWORD")
    for i in range(4):
        L(f"K2_CHK{i}")
        I(f"s_waitcnt vmcnt({3 - i})")
        r = vC + 4*i
        I(f"v_bitop3_b32 v{u(0)}, v{r+3}, s{sTAG}, v{vTM} bitop3:0x28")
        I(f"v_cmp_ne_u32 vcc, 0, v{u(0)}")
        remain(u(0), r + 3, k4)
        hs = [haddr(vA+3*i+j, r+j) for j in range(3)]
        for j in range(3): I(hs[j][0])
        I(f"s_cbranch_vccnz K2_RETRY{i}")
        if i == 0: stamp(1)
        for j in range(3):
            m = sM + 2*(3*i+j)
            I(f"v_cmp_lt_i32 s[{m}:{m+1}], {j}, v{u(0)}")
        for st in (1, 2):
            for j in range(3): I(hs[j][st])
        for j in range(3):
            m = sM + 2*(3*i+j)
            I(f"s_mov_b64 exec, s[{m}:{m+1}]")
            I(f"ds_add_rtn_u32 v{vRK+3*i+j}, v{vA+3*i+j}, v{one} offset:{HIST}")
        I("s_mov_b64 exec, -1")
    I(f"v_max3_u32 v{u(0)}, v{vC+3}, v{vC+7}, v{vC+11}")
    I(f"v_max_u32 v{u(0)}, v{u(0)}, v{vC+15}")
    I(f"v_cmp_le_u32 vcc, {33 << 24}, v{u(0)}")
    sSEL = sM + 24
    for j in range(3): I(f"s_mov_b32 s{sSEL+j}, {0x0c0c0001 | (4 + j) << 8:#x}")
    I(f"s_mov_b32 s{sSEL+3}, 0x05040100")
    I("s_cbranch_vccnz K2_XT1")
    L("K2_XT1R")
    vEO = vX
    fill = []
    for i in range(4):
        fill.append(f"v_and_b32 v{vC+4*i+3}, 0x0f0f0f, v{vC+4*i+3}")
    for i in range(4):
        for j in range(3): fill.append(f"v_perm_b32 v{vEO+3*i+j}, v{vC+4*i+3}, v{vC+4*i+j}, s{sSEL+j}")
    for i in range(4):
        for j in range(3): fill.append(f"v_lshl_add_u32 v{vEO+3*i+j}, v{vEO+3*i+j}, 5, v{vEB+i}")
    EPF, XPF = opt("epf", 0), opt("xpf", 0)
    def epref(fill):
        dm = vT1 + 6
        if XPF:
            I(f"s_lshr_b32 s10, s2, 3")
            I(f"s_mul_i32 s10, s10, {XPF}")
            I(f"v_cmp_gt_u32 vcc, {XPF}, v{tid}")
            I(f"v_add_lshl_u32 v{dm}, v{tid}, s10, 7")
            I("s_and_b64 exec, exec, vcc")
            I("s_cbranch_execz K2_NOXPF")
            I(f"buffer_load_dword v{dm}, v{dm}, s[{sX}:{sX+3}], 0 offen")
            L("K2_NOXPF")
            I("s_mov_b64 exec, -1")
        while fill: I(fill.pop(0))
        I(f"s_mov_b32 s10, {(SOFF + opt('et', T0)) << 16:#x}")
        for s in range(12):
            m = sM + 2*s
            I(f"s_mov_b64 exec, s[{m}:{m+1}]")
            I(f"v_cmpx_gt_u32 vcc, s10, v{vC+4*(s//3)+s%3}")
            I(f"buffer_load_dword v{dm}, v{vEO+s}, s[{sEP}:{sEP+3}], 0 offen")
        I("s_mov_b64 exec, -1")
    if EPF == 1: epref(fill)
    stamp('s')
    I("s_waitcnt lgkmcnt(0)")
    I("s_barrier")
    stamp(2)
    c, p, tot, sc = u(0), u(4), u(8), u(9)
    own, ownn, owna = u(10), u(11), u(12)
    SD = "dst_sel:DWORD dst_unused:UNUSED_PAD src0_sel:WORD_0 src1_sel:WORD_0"
    for i in range(4):
        I(f"ds_read_b128 {rr(hh+4*i,4)}, v{l16} offset:{HIST + 1024*i}")
    I(f"ds_read_b64 v[{u(6)}:{u(7)}], v{owna} offset:{HIST}")
    if EPF == 2: epref(fill)
    for k in range(8):
        if fill: I(fill.pop(0))
    for i in range(4):
        I(f"s_waitcnt lgkmcnt({4 - i})")
        I(f"v_add_u32_sdwa v{c+i}, v{hh+4*i}, v{hh+4*i+1} {SD}")
        I(f"v_add_u32_sdwa v{hh+4*i}, v{hh+4*i+2}, v{hh+4*i+3} {SD}")
        I(f"v_add_u32 v{c+i}, v{c+i}, v{hh+4*i}")
    I(f"v_lshl_or_b32 v{p}, v{c+1}, 16, v{c}")
    I(f"v_lshl_or_b32 v{p+1}, v{c+3}, 16, v{c+2}")
    I("s_waitcnt lgkmcnt(0)")
    I(f"v_perm_b32 v{own}, v{u(7)}, v{u(6)}, s{sSEL+3}")
    for dp in ["row_shr:%d row_mask:0xf bank_mask:0xf bound_ctrl:0" % sh for sh in (1, 2, 4, 8)] + \
              ["row_bcast:15 row_mask:0xa bank_mask:0xf", "row_bcast:31 row_mask:0xc bank_mask:0xf"]:
        I(f"v_add_u32_dpp v{p}, v{p}, v{p} {dp}")
        I(f"v_add_u32_dpp v{p+1}, v{p+1}, v{p+1} {dp}")
        I(fill.pop(0) if fill else "s_nop 0")
    I(f"v_readlane_b32 s10, v{p}, 63")
    I(f"v_readlane_b32 s11, v{p+1}, 63")
    for i in range(4):
        I(f"v_lshlrev_b32_sdwa v{hh+i}, v{ecb}, v{p+(i>>1)} dst_sel:DWORD dst_unused:UNUSED_PAD src0_sel:DWORD src1_sel:WORD_{i&1}")
        I(f"v_sub_u32 v{c+i}, v{hh+i}, v{c+i}")
    b1, b2, b3 = 4, 5, 6
    I(f"s_and_b32 s{b1}, s10, 0xffff")
    I("s_lshr_b32 s10, s10, 16")
    I(f"s_add_u32 s{b2}, s{b1}, s10")
    I("s_and_b32 s10, s11, 0xffff")
    I(f"s_add_u32 s{b3}, s{b2}, s10")
    I("s_lshr_b32 s11, s11, 16")
    I(f"s_add_u32 s10, s{b3}, s11")
    for i, b in ((1, b1), (2, b2), (3, b3)):
        I(f"v_lshl_add_u32 v{c+i}, s{b}, 1, v{c+i}")
    I("s_lshr_b32 s11, s10, 5")
    I(f"s_add_u32 s11, s11, {ASYM}")
    I("s_and_b32 s11, s11, -32")
    I(f"s_sub_i32 s11, s11, {ASYM + 32*opt('sh', 0)}")
    I("s_lshl_b32 s11, s11, 3")
    I("s_lshr_b32 s10, s10, 1")
    I(f"s_lshr_b32 s{sF0}, s{sW}, 1")
    I(f"s_mul_i32 s{sF0}, s{sF0}, s10")
    I(f"s_add_i32 s11, s11, s{sF0}")
    I(f"s_add_i32 s10, s10, s{sF0}")
    I(f"s_bitcmp1_b32 s{sW}, 0")
    I(f"s_cselect_b32 s{sEND}, s11, s{sF0}")
    I("s_cselect_b32 s10, s10, s11")
    I(f"s_mov_b32 s{sF0}, 0")
    I(f"s_mov_b32 s{sF1}, 0")
    for i in range(4):
        I(f"v_cmp_gt_i32 vcc, s{sEND}, v{c+i}")
        I(f"v_cmp_gt_i32 s[{sTMP}:{sTMP+1}], s10, v{c+i}")
        I("s_bcnt1_i32_b64 s11, vcc")
        I(f"s_add_u32 s{sF0}, s{sF0}, s11")
        I(f"s_bcnt1_i32_b64 s11, s[{sTMP}:{sTMP+1}]")
        I(f"s_add_u32 s{sF1}, s{sF1}, s11")
    I(f"s_max_i32 s{sF0}, s{sF0}, s{lo0}")
    I(f"s_min_i32 s{sF0}, s{sF0}, s{hi0}")
    I(f"s_max_i32 s{sF1}, s{sF1}, s{lo1}")
    I(f"s_min_i32 s{sF1}, s{sF1}, s{hi1}")
    I(f"v_cmp_le_u32 vcc, s{sF0}, v{ownn}")
    I(f"v_cmp_gt_u32 s[10:11], s{sF1}, v{ownn}")
    I(f"s_mov_b32 s{sMORE}, 2")
    I("s_and_b64 vcc, vcc, s[10:11]")
    I(f"v_cndmask_b32 v{own}, 0, v{own}, vcc")
    I(f"v_mov_b32 v{tot}, v{own}")
    wave_scan(tot, fill, half=True)
    for x_ in fill: I(x_)
    I(f"s_sub_u32 s{sTMP}, s{sL}, {R0}")
    I(f"v_readlane_b32 s10, v{tot}, 31")
    I(f"v_readlane_b32 s11, v{tot}, 63")
    I(f"v_sub_u32 v{tot}, v{tot}, v{own}")
    I(f"v_mov_b32 v{vOWN}, v{u(14)}")
    I(f"s_and_b32 s{sTH}, s10, 0xffff")
    I("s_lshr_b32 s10, s10, 16")
    I(f"s_add_u32 s{sTH+1}, s{sTH}, s10")
    I("s_and_b32 s10, s11, 0xffff")
    I(f"s_add_u32 s{sTH+2}, s{sTH+1}, s10")
    I("s_lshr_b32 s11, s11, 16")
    I(f"s_add_u32 s{sEND}, s{sTH+2}, s11")
    I(f"s_lshl_b32 s10, s{sTH}, 16")
    I(f"s_pack_ll_b32_b16 s11, s{sTH+1}, s{sTH+2}")
    I(f"s_pack_ll_b32_b16 s{sTMP}, s{sTMP}, s{sTMP}")
    I(f"s_add_u32 s10, s10, s{sTMP}")
    I(f"s_add_u32 s11, s11, s{sTMP}")
    I("s_mov_b32 exec_lo, vcc_lo")
    I("s_mov_b32 exec_hi, 0")
    I(f"v_add_u32 v{tot}, s10, v{tot}")
    I("s_mov_b32 exec_lo, 0")
    I("s_mov_b32 exec_hi, vcc_hi")
    I(f"v_add_u32 v{tot}, s11, v{tot}")
    I("s_mov_b64 exec, vcc")
    I(f"ds_write_b16 v{owna}, v{tot} offset:{HIST + 2}")
    I(f"ds_write_b16_d16_hi v{owna}, v{tot} offset:{HIST + 6}")
    I(f"ds_write_b32 v{vMIN+1}, v{vMIN} offset:{MAP}")
    I("s_mov_b64 exec, -1")
    I(f"v_mov_b32 v{sc}, {FLAG}")
    I(f"s_cmp_le_u32 s{sEND}, {LMAX*4}")
    I("s_cbranch_scc1 K2_LFIT")
    I(f"ds_write_b32 v{sc}, v{one}")
    I(f"s_mov_b32 s{sEND}, 0")
    L("K2_LFIT")
    I(f"s_add_u32 s{sEND}, s{sEND}, s{sL}")
    for k in range(3):
        I(f"s_add_i32 s{sTH+k}, s{sTH+k}, {opt('tho', 64)}")
        I(f"s_lshr_b32 s{sTH+k}, s{sTH+k}, 7")
    I("s_waitcnt lgkmcnt(0)")
    stamp('a')
    I("s_barrier")
    stamp('b')
    I(f"ds_read_b64 v[{u(6)}:{u(7)}], v{sc}")
    RM = opt("rm", 1)
    for s in range(12):
        m = sM + 2*s
        if RM: I(f"s_mov_b64 exec, s[{m}:{m+1}]")
        I(f"ds_read_u16 v{vA+s}, v{vA+s} offset:{HIST + 2}")
    if RM: I("s_mov_b64 exec, -1")
    pads(lane, u(0), u(1), u(2))
    I(f"s_waitcnt lgkmcnt({0 if RM else 7})")
    I(f"v_cmp_ne_u32 vcc, 0, v{u(6)}")
    I(f"v_readfirstlane_b32 s{sCUR}, v{u(7)}")
    for s in range(12):
        if s == 6: I(f"s_waitcnt lgkmcnt(1)")
        I(f"v_add_u32 v{vA+s}, v{vA+s}, v{vRK+s}")
    I("s_cbranch_vccnz K2_OVF")
    for s in range(12):
        m = sM + 2*s
        I(f"s_mov_b64 exec, s[{m}:{m+1}]")
        I(f"ds_write2st64_b32 v{vA+s}, v{vC+4*(s//3)+s%3}, v{vEO+s} offset0:{R0//256} offset1:{R1//256}")
    I("s_mov_b64 exec, -1")
    I(f"s_cmp_lg_u32 s{sXT}, 0")
    I("s_cbranch_scc1 K2_XT2")
    L("K2_PADS0")
    I("s_waitcnt lgkmcnt(0)")
    stamp('c')
    I("s_barrier")
    L("K2_GO")
    stamp(3)
    STAG = opt("stag", 1)
    I(f"ds_read_b128 {rr(vQD,4)}, v{vARX}")
    I(f"ds_read_b32 v{vR1}, v{vARE}")
    I(f"ds_read_u8 v{vL1}, v{vARP}")
    I("s_waitcnt lgkmcnt(1)")
    EM = opt("em", 0xAA)
    if STAG == 1:
        I(f"s_movk_i32 s10, {EM}")
        I(f"s_bitcmp1_b32 s10, s{sW}")
        I("s_cbranch_scc0 K2_LATE0")
    for s in dma_tile(0): I(s)
    if STAG == 2:
        I(f"s_bitcmp1_b32 s{sW}, 0")
        I("s_cbranch_scc1 K2_LATE0")
        I("s_waitcnt vmcnt(0)")
    L("K2_LATE0")
    I(f"s_cmp_lg_u32 s{sMORE}, 2")
    I("s_cbranch_scc1 K2_BUILT")
    I("s_waitcnt lgkmcnt(0)")
    I(mfma(NUM(0), vT2, vT2))
    I(mfma(NUM(1), vT2, vT2))
    I(f"s_mov_b32 s10, {f2u(1e-6):#x}")
    I(f"s_mov_b32 s11, s10")
    for ft in range(2):
        for i in range(8):
            I(f"v_mov_b64 v[{DEN(ft)+2*i}:{DEN(ft)+2*i+1}], s[10:11]")
    if SBK: I(f"s_mov_b32 s{sSB}, {SBK}")
    I(f"s_mov_b32 s{sCI}, -1")
    I(f"s_mov_b64 s[{sMSK}:{sMSK+1}], 0")
    I(f"s_mov_b32 s{sR0}, 0")
    I(f"s_mov_b32 s{sCNT}, 0")
    I(f"s_cmp_lg_u32 s{sCUR}, 0")
    I(f"s_cselect_b32 s{sMORE}, 1, 0")
    L("K2_BUILT")
    I("s_waitcnt lgkmcnt(0)")
    I(f"v_lshl_add_u32 v{vL1}, v{vL1}, 6, v{vC1}")
    if STAG == 1:
        I(f"s_movk_i32 s10, {EM}")
        I(f"s_bitcmp1_b32 s10, s{sW}")
        I("s_cbranch_scc1 K2_HAD0")
        if SBK and opt("sbl", 0):
            I(f"s_cmp_lt_i32 s{sSB}, 0")
            I("s_cbranch_scc1 K2_SBY")
            I("s_barrier")
            I(f"s_mov_b32 s{sSB}, -1")
            L("K2_SBY")
        if opt("ys", 0): I(f"s_sleep {opt('ys', 0)}")
        for s in dma_tile(0): I(s)
        L("K2_HAD0")
    I(f"ds_read_b128 {rr(vQD,4)}, v{vARX} offset:128")
    I(f"ds_read_b32 v{vR1}, v{vARE} offset:128")
    for s in t1_reads(): I(s)
    I(mfma(vQ, vT2, vT2))
    I(mfma(vR, vT2, vT2))
    stamp(4)
    I("s_waitcnt vmcnt(0)")
    stamp(5)
    I(f"ds_read_b128 {rr(vE,4)}, v{vAE}")
    for q in range(4):
        I(f"ds_read_b128 {rr(vX+4*q,4)}, v{vAX} offset:{16*q}")
    I("s_waitcnt lgkmcnt(0)")
    I(f"s_cmp_eq_u32 s{sN}, 0")
    I("s_cbranch_scc1 K2_DONE")
    YC = opt("yc", 0) or (SBK and not opt("sbl", 0))
    if YC:
        for x_ in dma_tile(0): I(x_)
        I(f"s_movk_i32 s10, {EM}")
        I(f"s_bitcmp1_b32 s10, s{sW}")
        I("s_cbranch_scc1 K2_NOYC")
        if not SBK: I(f"s_sleep {YC}")
        else:
            I(f"s_cmp_lt_i32 s{sSB}, 0")
            I("s_cbranch_scc1 K2_SBY")
            I("s_barrier")
            I(f"s_mov_b32 s{sSB}, -1")
            L("K2_SBY")
        L("K2_NOYC")
    for s in g_mfmas(vP, 0):
        if s.startswith("v_smfmac"):
            if YC: I("s_nop 9")
            else:
                for x_ in dma_tile(0): I(x_)
        I(s)
    I(f"s_mov_b32 s{sT}, 0")
    def prio_code(uid):
        r = []
        if SBK: r += [f"s_cmp_lg_u32 s{sT}, s{sSB}", f"s_cbranch_scc1 K2_SB{uid}", "s_barrier", f"s_mov_b32 s{sSB}, -1", f"K2_SB{uid}:"]
        for k in range(3):
            r += [f"s_cmp_lg_u32 s{sT}, s{sTH+k}", f"s_cbranch_scc1 K2_PR{uid}_{k}", f"s_setprio {2-k}", f"K2_PR{uid}_{k}:"]
        return r
    YK = opt("yk", 2)
    if YK:
        I(f"s_sub_u32 s10, s{sN}, {YK - 1 if YK < 10 else 0}")
        I(f"s_bitcmp1_b32 s{sW}, 0")
        I(f"s_cselect_b32 s{sTH+2}, s{sTH+2}, s10")
    I("s_setprio 3")
    I("s_nop 8")
    tst = ["s_memrealtime s[98:99]", "s_waitcnt lgkmcnt(0)", "s_mov_b32 m0, s72", "s_nop 0", "v_writelane_b32 v255, s98, m0", "s_memtime s[98:99]", "s_waitcnt lgkmcnt(0)", "s_add_u32 m0, s72, 32", "s_nop 0", "v_writelane_b32 v255, s98, m0"] if TS == 4 else []
    body = tst + phaseA(0) + phaseB(0)
    body += [f"s_cmp_ge_u32 s{sT}, s{sN}", f"s_cbranch_scc1 K2_TAIL"] + prio_code(0)
    body += tst + phaseA(1) + phaseB(1)
    body += [f"v_add_u32 v{r}, 0x100, v{r}" for r in (vARX, vARP, vARE, vART)]
    body += prio_code(1)
    body += [f"s_cmp_lt_u32 s{sT}, s{sN}", f"s_cbranch_scc1 K2_LOOP"]
    check_body(body)
    DBG = opt("dbg", "")
    if "ell" in DBG:
        nb = []
        for b in body:
            if b.startswith("v_smfmac") and b.endswith(f"v{vIX}"): continue
            if b.startswith("v_smfmac") and "noA" in DBG: continue
            if b.startswith("ds_read_b64_tr") or b.startswith("ds_read_u8 v23") or b.startswith("v_lshl_add_u32 v23"): continue
            m = re.fullmatch(r"v_mul_f32 v(\d+), v(\d+), v\d+", b)
            if m:
                h, g = int(m.group(1)), int(m.group(2)); ft = 0 if g < vQ else 1; i = h - vQ
                nb.append(f"v_fmac_f32 v{NUM(ft)+i}, v{g}, v{h}")
                nb.append(f"v_add_f32 v{DEN(ft)+i}, v{DEN(ft)+i}, v{g}")
                continue
            nb.append(b)
        body = nb
    if "half" in DBG:
        body = [b for b in body if not (b.startswith("v_smfmac") and b.endswith(f"v{vIX}") and f"v[{vT2+4}:" in b)]
    if "nodma" in DBG: body = [b for b in body if not b.startswith("buffer_load")]
    emit(".p2align 6")
    L("K2_LOOP")
    for s in body:
        if s.endswith(":"): L(s[:-1])
        else: I(s)
    L("K2_TAIL")
    for s in s_mfmas(DEN(1), vR) + s_mfmas(NUM(1), vQ): I(s)
    L("K2_DONE")
    if SBK:
        I(f"s_cmp_lt_i32 s{sSB}, 0")
        I("s_cbranch_scc1 K2_SBD")
        I("s_barrier")
        I(f"s_mov_b32 s{sSB}, -1")
        L("K2_SBD")
    I(f"s_cmp_lg_u32 s{sMORE}, 0")
    I("s_cbranch_scc1 K2_SLOW")
    L("K2_EPI")
    stamp(6)
    I(f"v_lshlrev_b32 v{vT}, 4, v{lane}")
    for q in range(4):
        I(f"ds_read_b128 {rr(vX+4*q,4)}, v{vOWN} offset:{XO + 16*q}")
    for k in range(8):
        I(f"ds_read_b128 {rr(vWB+4*k,4)}, v{vT} offset:{WU + 1024*k}")
    I(f"v_and_b32 v{vQD+1}, 31, v{lane}")
    I(f"v_and_b32 v{vC1}, 32, v{lane}")
    I(f"v_mul_u32_u24 v{vC2}, 144, v{vQD+1}")
    I(f"v_lshrrev_b32 v{vQD+2}, 2, v{vC1}")
    I(f"v_lshl_add_u32 v{vQD+1}, v{vQD+1}, 6, v{vQD+2}")
    for s_ in range(2):
        I(f"ds_read2_b64 {rr(vT2+4*s_,4)}, v{vQD+1} offset0:{4*s_} offset1:{4*s_+2}")
    I("s_waitcnt lgkmcnt(10)")
    for i in range(16):
        I(f"v_lshlrev_b32 v{vWV+2*i}, 16, v{vX+i}")
        I(f"v_and_b32 v{vWV+2*i+1}, 0xffff0000, v{vX+i}")
    I(f"v_lshl_add_u32 v{vT+1}, v{vC1}, 1, v{vC2}")
    I(f"v_add_u32 v{vT+1}, s{sSTG}, v{vT+1}")
    I(f"s_sub_u32 s10, s{sF0}, s{sWIN}")
    I("s_mul_i32 s10, s10, 144")
    I(f"s_add_u32 s10, s10, s{sSTG}")
    I(f"v_lshrrev_b32 v{vQD}, 3, v{lane}")
    I(f"v_lshl_add_u32 v{vQD}, v{vQD}, 4, v{vT}")
    I(f"v_add_u32 v{vQD}, s10, v{vQD}")
    I(f"s_mul_i32 s10, s{sB}, {BN}")
    I(f"s_add_u32 s11, s10, s{sF1}")
    I(f"s_add_u32 s10, s10, s{sF0}")
    I(f"s_min_u32 s11, s11, {N}")
    I(f"s_min_u32 s10, s10, {N}")
    I("s_sub_u32 s11, s11, s10")
    I("s_lshl_b32 s10, s10, 7")
    I(f"s_add_u32 s{sOUT}, s{sOUT}, s10")
    I(f"s_addc_u32 s{sOUT+1}, s{sOUT+1}, 0")
    I(f"s_lshl_b32 s{sOUT+2}, s11, 7")
    for ft, D in ((0, vP), (1, vQ)):
        for q in range(4):
            I(f"s_waitcnt lgkmcnt({9 - 4*ft - q})")
            I(mfma(D, vWB+16*ft+4*q, vX+4*q, vWV+16*ft if q == 0 else D))
            for i in range(4):
                r = DEN(ft) + 4*q + i
                I(f"v_rcp_f32 v{r}, v{r}")
    I("s_waitcnt lgkmcnt(0)")
    for ft, D in ((0, vP), (1, vQ)):
        for i in range(16):
            I(f"v_mul_f32 v{NUM(ft)+i}, v{NUM(ft)+i}, v{DEN(ft)+i}")
        for i in range(8):
            I(f"v_cvt_pk_bf16_f32 v{DEN(ft)+i}, v{NUM(ft)+2*i}, v{NUM(ft)+2*i+1}")
        I(mfma(D, DEN(ft), vT2, D))
        I("s_nop 0")
        I(mfma(D, DEN(ft)+4, vT2+4, D))
    for q in range(4):
        for i in range(8*q, 8*q+8):
            I(f"v_max_f32 v{vP+i}, v{vP+i}, v{vWV+i}")
        for d in range(4):
            i = 4*q + d
            I(f"v_cvt_pk_bf16_f32 v{vR+i}, v{vP+2*i}, v{vP+2*i+1}")
        I(f"ds_write_b128 v{vT+1}, {rr(vR+4*q,4)} offset:{16*q}")
    for q in range(4):
        I(f"ds_read_b128 {rr(vX+4*q,4)}, v{vQD} offset:{8*144*q}")
    for q in range(4):
        I(f"s_waitcnt lgkmcnt({3-q})")
        I(f"buffer_store_dwordx4 {rr(vX+4*q,4)}, v{vT}, s[{sOUT}:{sOUT+3}], 0 offen offset:{1024*q}{pol(K2_OP)}")
    I(f"s_add_u32 s10, s2, s7")
    I("s_cmp_lg_u32 s10, 0")
    I("s_cbranch_scc1 K2_NOEP")
    I(f"v_mov_b32 v{vP}, {WS_EPOCH}")
    I(f"v_mov_b32 v{vP+1}, s{sEPN}")
    I(f"buffer_store_dword v{vP+1}, v{vP}, s[{sWS}:{sWS+3}], 0 offen sc1")
    L("K2_NOEP")
    if TS == 2 or opt("tsn", 0): I(f"s_mov_b32 s89, s{sN}")
    if TS == 8:
        I(f"s_sub_u32 s94, {opt('spin', 200000)}, s{sSPIN}")
        I(f"s_mul_i32 s94, s94, 100")
        I(f"s_add_u32 s94, s94, s88")
    if TS: I(f"s_mov_b32 s{sW}, s7")
    if TS == 4:
        I("s_mov_b64 exec, -1")
        I(f"s_lshl_b32 s87, s2, 11")
        I(f"s_add_u32 s87, s87, {WS_TS + 0x180000}")
        I(f"s_lshl_b32 s86, s{sW}, 8")
        I("s_add_u32 s87, s87, s86")
        I(f"v_lshl_add_u32 v{vP}, v{lane}, 2, s87")
        I(f"global_store_dword v{vP}, v255, s[8:9]")
    stamp_out(8, 8, sW, 8, 0x100000, vP)
    L("K2_END")
    I("s_endpgm")
    def spin():
        if opt("slp", 1): I(f"s_sleep {opt('slp', 1)}")
        I(f"s_sub_u32 s{sSPIN}, s{sSPIN}, 1")
        I("s_cbranch_scc1 K2_END")
    for i in range(4):
        L(f"K2_RETRY{i}")
        spin()
        for j in range(i, 4): cload(j)
        I(f"s_branch K2_CHK{i}")
    L("K1_EXT")
    I(f"s_mov_b32 s14, 0x0f0f0f0f")
    I(f"s_mov_b32 s15, s14")
    for i in range(4):
        I(f"ds_read_b32 v{oE+i}, v6 offset:{16*LROW*i + 32}")
        I(f"ds_read_b128 {rr(pD+8*i,4)}, v3 offset:{64*LROW*i + 128}")
    I("s_waitcnt lgkmcnt(0)")
    for i in range(4):
        I(f"v_cmp_le_u32 vcc, {33 << 24}, v{oH+i}")
        I(f"v_and_or_b32 v{pD+8*i+3}, v{oE+i}, v15, v{oH+i}")
        I("s_and_b64 exec, vcc, s[14:15]")
        I(f"s_cbranch_execz K1_EX{i}")
        I(f"buffer_store_dwordx4 {rr(pD+8*i,4)}, v4, s[{sST_}:{sST_+3}], s10 offen sc1")
        L(f"K1_EX{i}")
        I("s_mov_b64 exec, -1")
        I(f"s_add_u32 s10, s10, {64*RS}")
    I("s_branch K1_EXTR")
    L("K1_OVF")
    t = vAT
    for i in range(4):
        I(f"v_lshrrev_b32 v{t+i}, 16, v{oA+i}")
        I(f"v_lshrrev_b32 v{t+4}, 18, v{oA+i}")
        I(f"v_sub_u32 v{t+i}, v{t+i}, v{t+4}")
    I(f"v_add_u32 v{t+5}, v{t}, v{t+1}")
    I(f"v_add_u32 v{t+6}, v{t+5}, v{t+2}")
    I(f"v_add_u32 v{t+7}, v{t+6}, v{t+3}")
    I(f"v_mov_b32 v1, v{t+7}")
    wave_scan(1)
    I("s_nop 0")
    I(f"v_sub_u32 v{t+4}, v1, v{t+7}")
    I(f"v_add_u32 v{t+7}, v{t+4}, v{t+6}")
    I(f"v_add_u32 v{t+6}, v{t+4}, v{t+5}")
    I(f"v_add_u32 v{t+5}, v{t+4}, v{t}")
    for i in range(4):
        I(f"v_lshl_or_b32 v{t+4+i}, v{t+i}, 16, v{t+4+i}")
    I("s_waitcnt lgkmcnt(0)")
    I(f"ds_write_b128 v{l16}, {rr(t+4,4)} offset:{P_HDR}")
    for i in range(4): I(f"v_min_u32 v{oH+i}, 255, v{oH+i}")
    I(f"s_lshl_b32 s15, s{sB}, 2")
    I(f"s_add_u32 s15, s15, {WS_HDR}")
    srd(q0, 8, 9, NB*NCH*4, "s15")
    I(f"v_lshlrev_b32 v1, 12, v{lane}")
    for i in range(4):
        I(f"buffer_store_dword v{t+4+i}, v1, s[{q0}:{q0+3}], 0 offen offset:{1024*i} sc1")
    I(f"s_add_u32 s15, s13, {WS_RECS}")
    srd(q0, 8, 9, CH*4, "s15")
    I("s_lshr_b32 s15, s13, 2")
    I(f"s_add_u32 s15, s15, {WS_XB}")
    srd(q1, 8, 9, CH, "s15")
    I(f"v_cndmask_b32 v{pH+6}, v{pH}, v{pH+6}, s[{pm}:{pm+1}]")
    I(f"v_cndmask_b32 v{pK+6}, 0, v{pK+6}, s[{pm}:{pm+1}]")
    for i in range(7):
        I(f"ds_read_u16 v{pA+i}, v{pH+i} offset:{P_HDR - H0}")
    I("s_waitcnt lgkmcnt(0)")
    for i in range(7):
        I(f"v_lshrrev_b32 v1, 2, v{pK+i}")
        I(f"v_sub_u32 v1, v{pK+i}, v1")
        I(f"v_add_u32 v{pA+i}, v{pA+i}, v1")
        I(f"v_cmp_le_u32 vcc, {QCAP}, v{pK+i}")
        I(f"v_lshlrev_b32 v{pB+i}, 2, v{pA+i}")
        I("s_and_saveexec_b64 s[14:15], vcc")
        I(f"s_cbranch_execz K1_OV3_{i}")
        I(f"buffer_store_byte v{xb(i)}, v{pA+i}, s[{q1}:{q1+3}], 0 offen sc1")
        I(f"buffer_store_dword v{pS+i}, v{pB+i}, s[{q0}:{q0+3}], 0 offen sc1")
        L(f"K1_OV3_{i}")
        I("s_mov_b64 exec, -1")
    I("s_waitcnt vmcnt(0)")
    I("s_barrier")
    I("s_branch K1_OUT")
    L("K2_OVF")
    I(f"s_mov_b32 s{sCUR}, 1")
    I(f"s_mov_b32 s{sSKIP}, 0")
    I(f"s_mov_b32 s{sEND}, s{sL}")
    pads(lane, vP, vP+1, vP+2)
    I("s_branch K2_PADS0")
    xd, xa, xk, xrem, xeb, xad, xt = vACC + 44, vACC + 52, vACC + 58, vQ, vQ + 2, vX + 12, vX + 14
    L("K2_XT1")
    I(f"s_mov_b32 s{sXT}, 1")
    I(f"v_cmp_le_u32 vcc, {(QCAP + 1) << 24}, v{u(0)}")
    I(f"v_mov_b32 v{xt}, {FLAG + 4}")
    I("s_cbranch_vccz K2_XT1A")
    I(f"ds_write_b32 v{xt}, v{one}")
    L("K2_XT1A")
    I("s_mov_b32 s10, 0xf0f0f0f0")
    I("s_mov_b32 s11, s10")
    I(f"v_and_b32 v{xt}, 12, v{k4}")
    I(f"v_add_u32 v{xt}, 32, v{xt}")
    I(f"v_and_b32 v{xad}, 64, v{u(1)}")
    I(f"v_mul_u32_u24 v{xad}, 127, v{xad}")
    I(f"v_add_u32 v{xad}, v{xad}, v{u(1)}")
    I(f"v_add_u32 v{xad+1}, 16384, v{xad}")
    I(f"v_mov_b32 v{xt+1}, 0x7ffffff0")
    for g in range(2):
        I(f"v_cndmask_b32 v{xrem+g}, v{vC+8*g+3}, v{vC+8*g+7}, s[10:11]")
        I(f"v_cndmask_b32 v{xeb+g}, v{vEB+2*g}, v{vEB+2*g+1}, s[10:11]")
        remain(xrem + g, xrem + g, xt)
        I(f"v_cmp_lt_i32 vcc, 0, v{xrem+g}")
        I("s_nop 1")
        I(f"v_cndmask_b32 v{xad+g}, v{xt+1}, v{xad+g}, vcc")
    I(f"s_add_u32 s{sCEL}, s{sCEL}, {WS_EXT}")
    I(f"s_addc_u32 s{sCEL+1}, s{sCEL+1}, 0")
    L("K2_XT1L")
    for g in range(2):
        I(f"buffer_load_dwordx4 {rr(xd+4*g,4)}, v{xad+g}, s[{sCEL}:{sCEL+3}], 0 offen sc1")
    I("s_waitcnt vmcnt(0)")
    for g in range(2):
        I(f"v_bitop3_b32 v{xt}, v{xd+4*g+3}, s{sTAG}, v{vTM} bitop3:0x28")
        I(f"v_cmp_lt_i32 s[10:11], 0, v{xrem+g}")
        I(f"v_cmp_ne_u32 vcc, 0, v{xt}")
        I("s_and_b64 vcc, vcc, s[10:11]")
        I("s_cbranch_scc1 K2_XT1S")
    for g in range(2):
        for j in range(3):
            for x_ in haddr(xa+3*g+j, xd+4*g+j): I(x_)
            I(f"v_cmp_lt_i32 vcc, {j}, v{xrem+g}")
            I("s_mov_b64 exec, vcc")
            I(f"ds_add_rtn_u32 v{xk+3*g+j}, v{xa+3*g+j}, v{one} offset:{HIST}")
            I("s_mov_b64 exec, -1")
    I("s_branch K2_XT1R")
    L("K2_XT1S")
    spin()
    I("s_branch K2_XT1L")
    L("K2_XT2")
    for i in range(6):
        I(f"ds_read_u16 v{xa+i}, v{xa+i} offset:{HIST + 2}")
    for g in range(2): I(f"v_and_b32 v{xd+4*g+3}, 0x0f0f0f, v{xd+4*g+3}")
    I("s_waitcnt lgkmcnt(0)")
    for g in range(2):
        for j in range(3):
            i = 3*g + j
            I(f"v_add_u32 v{xa+i}, v{xa+i}, v{xk+i}")
            I(f"v_perm_b32 v{xk+i}, v{xd+4*g+3}, v{xd+4*g+j}, s{sSEL+j}")
            I(f"v_cmp_lt_i32 vcc, {j}, v{xrem+g}")
            I(f"v_lshl_add_u32 v{xk+i}, v{xk+i}, 5, v{xeb+g}")
            I("s_mov_b64 exec, vcc")
            I(f"ds_write2st64_b32 v{xa+i}, v{xd+4*g+j}, v{xk+i} offset0:{R0//256} offset1:{R1//256}")
            I("s_mov_b64 exec, -1")
    I("s_branch K2_PADS0")
    SB = 448
    t0, t1, t2, t3, t4 = vP, vP+1, vP+2, vP+3, vP+4
    L("K2_SLOW")
    I(f"s_add_u32 s{sR0}, s{sR0}, {SB}")
    I(f"s_cmp_lt_u32 s{sR0}, s{sCNT}")
    I("s_cbranch_scc1 K2_BATCH")
    L("K2_FIND")
    I(f"s_cmp_lg_u64 s[{sMSK}:{sMSK+1}], 0")
    I("s_cbranch_scc1 K2_GOT")
    I(f"s_add_u32 s{sCI}, s{sCI}, 1")
    I(f"s_cmp_ge_u32 s{sCI}, 4")
    I("s_cbranch_scc1 K2_EPI")
    I(f"s_mul_i32 s10, s{sB}, {RS}")
    I(f"s_lshl_b32 s11, s{sCI}, 13")
    I("s_add_u32 s10, s10, s11")
    I(f"v_lshlrev_b32 v{vT}, 7, v{lane}")
    I(f"buffer_load_ubyte v{vT}, v{vT}, s[{sWS}:{sWS+3}], s10 offen offset:15 sc1")
    I("s_waitcnt vmcnt(0)")
    I(f"v_cmp_lt_u32 s[{sMSK}:{sMSK+1}], s{sSKIP}, v{vT}")
    I("s_nop 3")
    I("s_branch K2_FIND")
    L("K2_GOT")
    I(f"s_ff1_i32_b64 s10, s[{sMSK}:{sMSK+1}]")
    I(f"s_bitset0_b64 s[{sMSK}:{sMSK+1}], s10")
    I(f"s_lshl_b32 s11, s{sCI}, 6")
    I(f"s_add_u32 s{sCUR}, s10, s11")
    I(f"s_mul_i32 s10, s{sB}, {RS}")
    I(f"s_lshl_b32 s11, s{sCUR}, 7")
    I("s_add_u32 s10, s10, s11")
    I(f"s_lshl_b32 s11, s{sB}, 8")
    I(f"s_add_u32 s11, s11, s{sCUR}")
    I(f"s_lshl_b32 s11, s11, 2")
    I(f"s_add_u32 s11, s11, {WS_HDR}")
    I(f"v_mov_b32 v{t0}, 0")
    I(f"buffer_load_ubyte v{t1}, v{t0}, s[{sWS}:{sWS+3}], s10 offen offset:15 sc1")
    I(f"buffer_load_dword v{t2}, v{t0}, s[{sWS}:{sWS+3}], s11 offen sc1")
    I("s_waitcnt vmcnt(0)")
    I(f"v_readfirstlane_b32 s10, v{t1}")
    I(f"v_readfirstlane_b32 s11, v{t2}")
    I("s_nop 3")
    I(f"s_and_b32 s{sST}, s11, 0xffff")
    I("s_lshr_b32 s11, s11, 16")
    I(f"s_lshr_b32 s{sCNT}, s10, 2")
    I(f"s_sub_u32 s{sCNT}, s10, s{sCNT}")
    I(f"s_cmp_gt_u32 s10, {QCAP}")
    I(f"s_cselect_b32 s{sCNT}, s11, s{sCNT}")
    I(f"s_lshr_b32 s10, s{sSKIP}, 2")
    I(f"s_sub_u32 s{sR0}, s{sSKIP}, s10")
    L("K2_BATCH")
    I("s_barrier")
    I(f"v_and_b32 v{t0}, 7, v{lane}")
    I(f"v_mul_u32_u24 v{t1}, {LCAP*4}, v{t0}")
    I(f"v_add_u32 v{t1}, {R0}, v{t1}")
    I(f"v_lshlrev_b32 v{t0}, 2, v{t0}")
    I(f"ds_write_b32 v{t0}, v{t1} offset:{CNT}")
    I(f"v_add_u32 v{t0}, s{sR0}, v{tid}")
    I(f"s_mul_i32 s10, s{sB}, {RS}")
    I(f"s_lshl_b32 s11, s{sCUR}, 7")
    I("s_add_u32 s10, s10, s11")
    I(f"v_mul_u32_u24 v{t2}, {KQ}, v{t0}")
    I(f"v_lshrrev_b32 v{t2}, 16, v{t2}")
    I(f"v_lshl_add_u32 v{t1}, v{t2}, 2, s10")
    I(f"v_add_u32 v{t3}, {WS_EXT - 128}, v{t1}")
    I(f"v_cmp_lt_u32 vcc, 31, v{t2}")
    I(f"s_mul_i32 s11, s{sCUR}, {CH}")
    I(f"s_add_u32 s11, s11, s{sST}")
    I(f"v_cndmask_b32 v{t1}, v{t1}, v{t3}, vcc")
    I(f"v_or_b32 v{t3}, 12, v{t1}")
    I(f"v_and_b32 v{t4}, 3, v{t2}")
    I(f"v_add_u32 v{t3}, v{t3}, v{t4}")
    I(f"v_cmp_le_u32 vcc, {QCAP}, v{t2}")
    I(f"v_add_u32 v{t2}, s11, v{t0}")
    I(f"v_add_u32 v{t4}, {WS_XB}, v{t2}")
    I(f"v_cndmask_b32 v{t3}, v{t3}, v{t4}, vcc")
    I(f"v_lshlrev_b32 v{t2}, 2, v{t2}")
    I(f"v_add_u32 v{t2}, {WS_RECS}, v{t2}")
    I(f"v_cndmask_b32 v{t1}, v{t1}, v{t2}, vcc")
    I(f"s_add_u32 s10, s{sR0}, {SB}")
    I(f"s_min_u32 s10, s10, s{sCNT}")
    I(f"v_cmp_gt_u32 vcc, s10, v{t0}")
    I(f"v_mov_b32 v{t2}, 0x7ffffff0")
    I(f"s_mul_i32 s{sTMP}, s{sCUR}, {CH*32}")
    I(f"v_cndmask_b32 v{t1}, v{t2}, v{t1}, vcc")
    I(f"v_cndmask_b32 v{t3}, v{t2}, v{t3}, vcc")
    I(f"buffer_load_dword v{t1}, v{t1}, s[{sWS}:{sWS+3}], 0 offen sc1")
    I(f"buffer_load_ubyte v{t3}, v{t3}, s[{sWS}:{sWS+3}], 0 offen sc1")
    I("s_waitcnt lgkmcnt(0)")
    I("s_barrier")
    I("s_and_saveexec_b64 s[10:11], vcc")
    I("s_waitcnt vmcnt(0)")
    I(f"v_and_b32 v{t0}, 255, v{t1}")
    I(f"v_lshlrev_b32 v{t0}, 2, v{t0}")
    I(f"ds_read_b32 v{t0}, v{t0} offset:{MAP}")
    I(f"v_bfe_u32 v{t2}, v{t1}, 8, 8")
    I(f"v_and_b32 v{t3}, 15, v{t3}")
    I(f"v_lshl_or_b32 v{t3}, v{t3}, 8, v{t2}")
    I(f"v_mov_b32 v{t2}, 4")
    I(f"v_lshl_add_u32 v{t3}, v{t3}, 5, s{sTMP}")
    I("s_waitcnt lgkmcnt(0)")
    I(f"ds_add_rtn_u32 v{t0}, v{t0}, v{t2} offset:{CNT}")
    I("s_waitcnt lgkmcnt(0)")
    I(f"ds_write2st64_b32 v{t0}, v{t1}, v{t3} offset0:0 offset1:{(R1-R0)//256}")
    I("s_mov_b64 exec, -1")
    I("s_waitcnt lgkmcnt(0)")
    I("s_barrier")
    I(f"s_lshl_b32 s10, s{sW}, 2")
    I(f"v_mov_b32 v{t0}, s10")
    I(f"ds_read_b32 v{t0}, v{t0} offset:{CNT}")
    for i in range(8): I(f"v_mov_b32 v{vT2+i}, 0")
    listaddr(lane, t1, t2)
    I("s_waitcnt lgkmcnt(0)")
    I(f"v_readfirstlane_b32 s{sEND}, v{t0}")
    I("s_nop 3")
    pads(lane, t0, t1, t2)
    L("K2_LAST")
    I("s_branch K2_GO")

def regs_of(tok):
    tok = tok.strip()
    m = re.fullmatch(r"v\[(\d+):(\d+)\]", tok)
    if m: return list(range(int(m.group(1)), int(m.group(2)) + 1))
    m = re.fullmatch(r"v(\d+)", tok)
    if m: return [int(m.group(1))]
    return []
def parse(ins):
    op, _, rest = ins.partition(" ")
    ops = [o.strip().split(" ")[0] for o in rest.split(",")] if rest else []
    if op.startswith("v_mfma"):
        return "mfma", regs_of(ops[0]), regs_of(ops[1]) + regs_of(ops[2]), regs_of(ops[3])
    if op.startswith("v_smfmac"):
        return "mfma", regs_of(ops[0]), regs_of(ops[1]) + regs_of(ops[2]) + regs_of(ops[3]), regs_of(ops[0])
    if op.startswith("v_"):
        k = "trans" if op in ("v_exp_f32", "v_rcp_f32") else "valu"
        return k, regs_of(ops[0]), sum((regs_of(o) for o in ops[1:]), []), []
    if op.startswith("ds_read"):
        return "ds", regs_of(ops[0]), regs_of(ops[1]), []
    if op.startswith("buffer_load"):
        return "vm", [], regs_of(ops[0]) + regs_of(ops[1]), []
    return "other", [], [], []
def check_body(body):
    seq = [b for b in body if not b.endswith(":")]
    for skip_dma in (False, True):
        s2 = []
        sk = False
        for b in body:
            if skip_dma and b.startswith("s_cbranch_scc0 K2_ND"):
                s2.append(b); sk = True; continue
            if b.startswith("K2_ND"): sk = False
            if b.endswith(":") or sk: continue
            s2.append(b)
        seq = s2 * 3
        last = {}
        lastc = {}
        pend = []
        for i, ins in enumerate(seq):
            k, d, s, c = parse(ins)
            m = re.search(r"lgkmcnt\((\d+)\)", ins)
            if m:
                n = int(m.group(1))
                while len(pend) > n: pend.pop(0)
            pr = set(sum(pend, []))
            for r in d + s + c:
                assert r not in pr or i < len(s2), f"pending LDS reg v{r} used by {ins} @{i}"
            for r in s + c + d:
                if r not in last: continue
                pk, pi = last[r]; dist = i - pi - 1
                if pk == "mfma":
                    if k == "mfma" and r in c and r not in s: need = 0
                    elif k == "mfma" and r in d and r not in s: need = 0
                    else: need = 12
                elif pk in ("valu", "trans") and k == "mfma" and r in s + c: need = 2
                elif pk == "trans" and k in ("valu", "mfma", "ds", "vm") and r in s: need = 1
                else: need = 0
                assert dist >= need, f"hazard {pk}->{k} v{r} dist {dist} need {need}: {ins} @{i}"
            if k in ("valu", "trans"):
                for r in d:
                    if r in lastc: assert i - lastc[r] - 1 >= 7, f"srcC WAR {ins}"
            for r in c: lastc[r] = i
            for r in d: last[r] = (k, i)
            if k == "ds":
                pend.append(d); assert len(pend) <= 15

hdr = open("/code/" + NAME + ".s.ref").read().split("\n")
for l in hdr:
    if l.startswith("; Override"): break
    out.append(l)
LEAK = opt("leak", "")
if LEAK:
    out.append(f"; @launch kernel={KN} grid=(256,1,1) block=(512,1,1) lds={K2_LDS}")
    out.append("; @launch kernel=spin_kernel grid=(1,1,1) block=(64,1,1) lds=0")
else: out.append(f"; @launch grid=(256,1,1) block=(512,1,1) lds={K2_LDS}")
emit('.amdgcn_target "amdgcn-amd-amdhsa--gfx950"\n.text')
k2()
KL = [(KN, 256, 102)]
if LEAK:
    kind, k = LEAK[:3], int(LEAK[3:])
    emit(".globl spin_kernel\n.p2align 8\n.type spin_kernel,@function\nspin_kernel:")
    I("s_memrealtime s[12:13]")
    I("s_cmp_lg_u32 s2, 0")
    I("s_cbranch_scc1 SP_END")
    I("s_load_dwordx2 s[4:5], s[0:1], 88")
    I("s_waitcnt lgkmcnt(0)")
    I(f"s_add_u32 s4, s4, {WS_TS + 0x100000}")
    I("s_addc_u32 s5, s5, 0")
    I("v_lshlrev_b32 v1, 5, v0")
    for j in range(31):
        I(f"global_load_dword v{2+j}, v1, s[4:5]")
        I(f"global_load_dword v{34+j}, v1, s[4:5] offset:{4*(k%8)}")
        I("v_add_u32 v1, 2048, v1")
    I("s_waitcnt vmcnt(0)")
    I("v_readfirstlane_b32 s6, v2")
    I("s_nop 1")
    I("s_sub_u32 s6, s6, 1000")
    for j in range(31):
        I(f"v_subrev_u32 v{2+j}, s6, v{2+j}")
        I(f"v_subrev_u32 v{34+j}, s6, v{34+j}")
    op = {"max": "max_u32", "min": "min_u32", "avg": "add_u32", "now": "max_u32"}[kind]
    for j in range(1, 31):
        I(f"v_min_u32 v2, v2, v{2+j}")
        I(f"v_{op} v34, v34, v{34+j}")
    I("s_nop 1")
    I("v_readlane_b32 s8, v2, 0")
    I("v_readlane_b32 s9, v34, 0")
    for l in range(1, 64):
        I(f"v_readlane_b32 s10, v2, {l}")
        I(f"v_readlane_b32 s11, v34, {l}")
        I("s_min_u32 s8, s8, s10")
        I(f"s_{op} s9, s9, s11")
    if kind == "avg":
        I(f"s_mul_hi_u32 s9, s9, {(1 << 32) // (31*64)}")
    if kind == "now":
        I("s_sub_u32 s8, s12, s6")
        I("s_sub_u32 s6, s8, s9")
    else: I("s_sub_u32 s6, s9, s8")
    I("s_lshl_b32 s6, s6, 2")
    I("s_min_u32 s6, s6, 30000")
    I("s_memrealtime s[8:9]")
    I("s_waitcnt lgkmcnt(0)")
    L("SP_L")
    I("s_memrealtime s[10:11]")
    I("s_waitcnt lgkmcnt(0)")
    I("s_sub_u32 s7, s10, s8")
    I("s_cmp_lt_u32 s7, s6")
    I("s_cbranch_scc1 SP_L")
    L("SP_END")
    I("s_endpgm")
    KL.append(("spin_kernel", 72, 16))
emit('.section .rodata,"a"')
for name, vg, sg in KL:
    emit(f""".p2align 6
.amdhsa_kernel {name}
  .amdhsa_next_free_vgpr {vg}
  .amdhsa_next_free_sgpr {sg}
  .amdhsa_accum_offset {vg}
  .amdhsa_group_segment_fixed_size 0
  .amdhsa_kernarg_size 96
  .amdhsa_user_sgpr_count 2
  .amdhsa_user_sgpr_kernarg_segment_ptr 1
  .amdhsa_system_sgpr_workgroup_id_x 1
.end_amdhsa_kernel""")
path = sys.argv[1] if len(sys.argv) > 1 else "/code/" + NAME + ".s"
open(path, "w").write("\n".join(out) + "\n")
print("wrote", path, len(out), "lines; lds", K2_LDS)
```

```python
import sys, re, math

NAME = "standalone__edge_featured_mpnn_gatedgcn__graph"
OPT = dict(kv.split("=") for kv in sys.argv[2:])
def opt(k, d):
    v = OPT.get(k)
    if v is None: return d
    return type(d)(v)

N, E = 50000, 800000
NCH, CH = 256, 3125
NB, BN = 256, 196
CELLB = 128
RS = 257 * CELLB
WS_EXT = NB * RS
QCAP = 48
KQ = 87382
LROW = 4 * (QCAP + 4)
WS_RECS = 0x1100000
WS_XB = 0x1500000
WS_HDR = 0x1600000
WS_EPOCH = 0x1700000
WS_USED = WS_EPOCH + 128
WI_U, WI_B, WI_V, WI_A, WI_C = 0, 8192, 16384, 24576, 32768
TMASK = 0x00f0f0f0
T0 = opt("t0", 12500)
LPH = (N - T0 + 2) // 3
SOFF = LPH - T0
PHM = (1 << 30) // LPH
assert 0 <= SOFF and N + SOFF <= 65536 and ((N - 1 + SOFF) * PHM) >> 30 <= 3
LOG2E = 1.4426950408889634
import struct
def f2u(f): return struct.unpack("<I", struct.pack("<f", f))[0]

out = []
def emit(s=""):
    for l in s.strip("\n").split("\n"):
        out.append(l.rstrip())
def I(s): out.append("    " + s)
def L(s): out.append(s + ":")
def C(s): out.append("    ; " + s)

def srd(d, lo, hi, size, add=None):
    if add is None:
        I(f"s_mov_b32 s{d}, s{lo}")
        I(f"s_mov_b32 s{d+1}, s{hi}")
    else:
        I(f"s_add_u32 s{d}, s{lo}, {add}")
        I(f"s_addc_u32 s{d+1}, s{hi}, 0")
    I(f"s_mov_b32 s{d+2}, {size}")
    I(f"s_mov_b32 s{d+3}, 0x20000")

def wave_scan(v, fill=None, half=False):
    def gap():
        if fill and len(fill) >= 2:
            I(fill.pop(0)); I(fill.pop(0))
        else: I("s_nop 1")
    for sh in (1, 2, 4, 8):
        gap()
        I(f"v_add_u32_dpp v{v}, v{v}, v{v} row_shr:{sh} row_mask:0xf bank_mask:0xf bound_ctrl:0")
    gap()
    I(f"v_add_u32_dpp v{v}, v{v}, v{v} row_bcast:15 row_mask:0xa bank_mask:0xf")
    if half: return
    gap()
    I(f"v_add_u32_dpp v{v}, v{v}, v{v} row_bcast:31 row_mask:0xc bank_mask:0xf")

TS = opt("ts", 0)
WS_TS = 0x3000000
SMAP = {1: {0: 0, 'd': 1, 'i': 2, 'w': 3, 2: 4, 5: 5, 6: 6, 7: 7},
        5: {0: 0, 'w': 1, 2: 2, 'a': 3, 'b': 4, 'c': 5, 3: 6, 7: 7},
        6: {0: 0, 'p': 1, 'q': 2, 'd': 3, 'i': 4, 'o': 5, 'k': 6, 7: 7},
        8: {0: 0, 'i': 1, 'w': 2, 1: 3, 2: 4, 3: 5, 7: 7},
        10: {0: 0, 'd': 1, 'i': 2, 'o': 3, 'A': 4, 'w': 5, 2: 6, 7: 7},
        9: {0: 0, 'q': 1, 'd': 2, 'i': 3, 'w': 4, 2: 5, 3: 6, 7: 7},
        7: {0: 0, 'k': 1, 'w': 2, 1: 3, 's': 4, 2: 5, 3: 6, 7: 7}}
def stamp(i):
    if TS in SMAP:
        i = SMAP[TS].get(i)
        if i is None: return
    elif isinstance(i, str): return
    if TS == 3:
        if i not in (0, 5, 6, 7): return
        I("s_memtime s[98:99]")
        I("s_waitcnt lgkmcnt(0)")
        I(f"s_mov_b32 s{88+{5:1,6:2,0:3,7:4}[i]}, s98")
    if TS:
        I("s_memrealtime s[98:99]" if TS != 2 else "s_memtime s[98:99]")
        I("s_waitcnt lgkmcnt(0)")
        I(f"s_mov_b32 s{88+i}, s98")
def stamp_out(n, wslo, swave, nw, off, v):
    if not TS: return
    I("s_waitcnt vmcnt(0)")
    stamp(7)
    I("s_mov_b64 exec, 1")
    I(f"s_mul_i32 s87, s2, {nw}")
    I(f"s_add_u32 s87, s87, s{swave}")
    I("s_lshl_b32 s87, s87, 5")
    I(f"s_add_u32 s87, s87, {WS_TS + off}")
    I(f"v_mov_b32 v{v}, s87")
    for i in range(n):
        I(f"v_mov_b32 v{v+1}, s{88+i}")
        I(f"global_store_dword v{v}, v{v+1}, s[{wslo}:{wslo+1}] offset:{4*i}")
K1_LD = opt("k1ld", "nt")
def pol(p): return (" " + p.replace("_", " ")) if p else ""

SM1 = opt("sm1", 1)
TAB, ZROW, CNT, FLAG, HIST, MAP = 0, 2048, 2112, 2176, 2304, 6400
T1B = 7424
LCAP = 608
XMAX = 64
LMAX = LCAP - 128
R0 = T1B + 2304
R1 = R0 + 8 * LCAP * 4
assert R1 % 256 == 0 and R0 % 256 == 0
WL = R0
WU = R1 + 8 * LCAP * 4
WA = WU + 8192
XO = WA + 8192
STG = XO + 26112
SLOT = 5184
WST = SLOT
K2_LDS = STG + 320 * LROW
assert K2_LDS <= 163840, K2_LDS

vWB, vWV, vWC, vAT = 0, 32, 64, 72
vACC = 88
vX, vE, vT1, vT2 = 152, 168, 172, 180
vP, vQ, vR = 188, 204, 220
vQD = 236
vR1 = 240
vCP, vCH, vAX, vAE, vC1, vC2, vARX, vART, vARP = 241, 242, 243, 244, 245, 246, 247, 248, 249
vL1 = 250
vARE = 251
vT = 252
DEN = lambda ft: vACC + 32 * ft
NUM = lambda ft: vACC + 32 * ft + 16
def rr(a, n): return f"v[{a}:{a+n-1}]"
def mfma(d, a, b, c=None):
    return f"v_mfma_f32_32x32x16_bf16 {rr(d,16)}, {rr(a,4)}, {rr(b,4)}, " + ("0" if c is None else rr(c, 16))

K2_XP = opt("k2x", "")
K2_EP = opt("k2e", "")
K2_CP = opt("k2c", "")
K2_OP = opt("k2o", "sc1")

sW, sB = 3, 12
sX, sEP, sWS, sOUT = 16, 20, 24, 28
sCEL, sWI = 32, 36
sM = 40
sT, sN, sSTG, s128, sL, sSKIP, sMORE = 72, 73, 74, 75, 76, 77, 78
sCI, sCUR, sR0, sCNT, sST, sMSK = 79, 80, 81, 82, 83, 84
sTMP = 86
sWIN = 96

def dma_tile(par):
    r = []
    for i in range(4):
        r.append(f"s_add_u32 m0, s{sSTG}, {par*SLOT + i*1040}")
        r.append(f"v_mad_u32_u16 v{vQD+i}, v{vQD+i}, s{s128}, v{vCP} op_sel:[1,0,0,0]")
        r.append(f"buffer_load_dwordx4 v{vQD+i}, s[{sX}:{sX+3}], 0 offen{pol(K2_XP)} lds")
    r.append(f"s_add_u32 m0, s{sSTG}, {par*SLOT + 4160}")
    r.append(f"v_add_u32 v{vR1}, v{vR1}, v{vCH}")
    r.append(f"buffer_load_dwordx4 v{vR1}, s[{sEP}:{sEP+3}], 0 offen{pol(K2_EP)} lds")
    return r

def valu_stream(G, H):
    s = []
    ex = [(f"v_exp_f32 v{G+i}, v{G+i}", 8) for i in range(16)]
    ad = [(f"v_add_f32 v{G+i}, 1.0, v{G+i}", 4) for i in range(16)]
    rc = [(f"v_rcp_f32 v{G+i}, v{G+i}", 8) for i in range(16)]
    mu = [(f"v_mul_f32 v{H+i}, v{G+i}, v{H+i}", 4) for i in range(16)]
    ce = [(f"v_cvt_pk_bf16_f32 v{G+i}, v{G+2*i}, v{G+2*i+1}", 4) for i in range(8)]
    cm = [(f"v_cvt_pk_bf16_f32 v{H+i}, v{H+2*i}, v{H+2*i+1}", 4) for i in range(8)]
    PK = opt("pk", 0)
    pa = [(f"v_pk_add_f32 v[{G+2*i}:{G+2*i+1}], v[{G+2*i}:{G+2*i+1}], 1.0 op_sel_hi:[1,0]", 4) for i in range(8)]
    pm = [(f"v_pk_mul_f32 v[{H+2*i}:{H+2*i+1}], v[{G+2*i}:{G+2*i+1}], v[{H+2*i}:{H+2*i+1}]", 4) for i in range(8)]
    if PK & 2:
        s += ex[:8] + ex[8:10] + pa[:4] + ex[10:] + rc[:2] + pa[4:] + rc[2:]
    elif PK & 4:
        s += ex + [("s_nop 0", 0)] + pa + rc
    else:
        for i in range(16 + 4):
            if i < 16: s.append(ex[i])
            if 0 <= i - 2 < 16: s.append(ad[i-2])
            if 0 <= i - 4 < 16: s.append(rc[i-4])
    s += pm if PK & 1 else mu
    return s

def interleave(valu, mf, extra, pos, spacing=opt('sp', 28)):
    res = []
    cum = 0; k = 0
    for ins, c in valu:
        while k < len(mf) and cum >= pos[k] * spacing:
            res.extend(extra.get(('b', k), []))
            res.append(mf[k])
            res.extend(extra.get(('a', k), []))
            k += 1
        res.append(ins); cum += c
    assert k == len(mf)
    return res

def g_mfmas(D, ft):
    m = [mfma(D, vE, vWC + 4*ft)]
    if SM1:
        m += [mfma(D, vX + 4*q, vWB + 16*ft + 4*q, D) for q in range(4)]
        m += [f"v_smfmac_f32_32x32x32_bf16 {rr(D,16)}, {rr(vT1,4)}, {rr(vAT+8*ft,8)}, v{vT1+4}"]
        return m
    m += [mfma(D, vT1 + 4*s, vAT + 8*ft + 4*s, D) for s in range(2)]
    m += [mfma(D, vX + 4*q, vWB + 16*ft + 4*q, D) for q in range(4)]
    return m
def h_mfmas(D, ft):
    return [mfma(D, vX + 4*q, vWV + 16*ft + 4*q, None if q == 0 else D) for q in range(4)]
vIX = vT1 + 5
def s_mfmas(acc, src):
    return [f"v_smfmac_f32_32x32x32_bf16 {rr(acc,16)}, {rr(vT2+4*s,4)}, {rr(src+8*s,8)}, v{vIX}" for s in range(2)]
def t1_reads():
    return [f"ds_read_b128 {rr(vT1,4)}, v{vL1} offset:{T1B}", f"ds_read_b32 v{vT1+4}, v{vL1} offset:{T1B+16}"]

ORD = opt("ord", "n0 n1 e h0 h1 a h2 h3 x0 x1 x2 x3 d0 d1").replace("_", " ").split()
POS = [float(x) / 28 for x in opt("pos", "0_27_54_81_108_135_162_189_216_243_270_297_328_356").split("_")]
def phase_ops(G, Gn, ft):
    n = s_mfmas(NUM(1-ft), vQ); d = s_mfmas(DEN(ft), G); h = h_mfmas(vQ, ft); g = g_mfmas(Gn, 1-ft)
    m = {"n0": n[0], "n1": n[1], "d0": d[0], "d1": d[1], "e": g[0], "a": g[5]}
    for q in range(4): m[f"h{q}"] = h[q]; m[f"x{q}"] = g[1+q]
    return [m[k] for k in ORD]
K = lambda k: ORD.index(k)
def phaseA(par):
    o = par * 128
    ex = {}
    ex[('a', K("n0"))] = [f"ds_read_u8 v{vQD+u}, v{vART} offset:{o + 16*(u>>1) + 4*(u&1)}" for u in range(4)] + \
                         [f"ds_read_u8 v{vL1}, v{vARP} offset:{o + 128}"]
    ex[('a', K("h1"))] = ["s_waitcnt lgkmcnt(0)"] + [f"v_lshl_add_u32 v{vQD+u}, v{vQD+u}, 6, v{vC2}" for u in range(4)] + \
                         [f"v_lshl_add_u32 v{vL1}, v{vL1}, 6, v{vC1}"]
    ex[('a', K("a"))] = [f"ds_read_b64_tr_b16 v[{vT2+2*u}:{vT2+2*u+1}], v{vQD+u}" for u in range(4)] + t1_reads()
    ex[('a', K("x0"))] = [f"ds_read_b128 {rr(vQD,4)}, v{vARX} offset:{o + 2*128}",
                          f"ds_read_b32 v{vR1}, v{vARE} offset:{o + 2*128}",
                          f"s_add_u32 s{sT}, s{sT}, 1"]
    ex[('b', K("d0"))] = ["s_waitcnt lgkmcnt(0)"]
    return interleave(valu_stream(vP, vQ), phase_ops(vP, vR, 0), ex, POS)

def phaseB(par):
    ex = {}
    ex[('a', K("n0"))] = ["s_waitcnt vmcnt(0)", f"ds_read_b128 {rr(vE,4)}, v{vAE}"]
    if TS == 4:
        ex[('a', K("n0"))] = ["s_memtime s[94:95]", "s_waitcnt vmcnt(0) lgkmcnt(0)", "s_memtime s[98:99]", "s_waitcnt lgkmcnt(0)", "s_sub_u32 s98, s98, s94",
                              "s_add_u32 m0, s72, 15", "s_nop 0", "v_writelane_b32 v255, s98, m0", f"ds_read_b128 {rr(vE,4)}, v{vAE}"]
    for q in range(4):
        ex[('a', K(f"h{q}"))] = [f"ds_read_b128 {rr(vX+4*q,4)}, v{vAX} offset:{16*q}"]
    ex[('b', K("e"))] = [f"s_waitcnt lgkmcnt({sum(K(f'h{q}') < K('e') for q in range(4))})"]
    for q in range(4): ex[('b', K(f"x{q}"))] = [f"s_waitcnt lgkmcnt({sum(K(f'h{p}') < K(f'x{q}') for p in range(q+1, 4))})"]
    dk = opt("dk", "x3")
    ex[('a', K(dk))] = ([] if dk == "x3" or K(dk) > K("x3") else ["s_waitcnt lgkmcnt(0)"]) + \
                       [f"s_cmp_lt_i32 s{sT}, s{sN1}", f"s_cbranch_scc0 K2_ND_{par}"] + dma_tile(0) + [f"K2_ND_{par}:"]
    return interleave(valu_stream(vR, vQ), phase_ops(vR, vP, 1), ex, POS)

sF0, sF1, sEND = 13, 14, 15
sXT = 97
sN1 = 38
sSB = 37
SBK = opt('sbk', 2)
sNUL = 39
sTH = 4
PRIO = opt("prio", 1)

def listaddr(lane, t0, t3):
    I(f"v_bfe_u32 v{t0}, v{lane}, 3, 2")
    I(f"v_lshl_add_u32 v{vARX}, v{t0}, 5, s{sL}")
    I(f"v_lshrrev_b32 v{t0}, 5, v{lane}")
    I(f"v_lshl_add_u32 v{vARX}, v{t0}, 4, v{vARX}")
    I(f"v_and_b32 v{t0}, 3, v{lane}")
    I(f"v_and_b32 v{t3}, 28, v{lane}")
    I(f"v_lshl_add_u32 v{t0}, v{t0}, 5, v{t3}")
    I(f"v_add_u32 v{vARP}, s{sL}, v{t0}")
    I(f"v_lshrrev_b32 v{t3}, 1, v{lane}")
    I(f"v_lshl_add_u32 v{vARE}, v{t3}, 2, s{sL}")
    I(f"v_add_u32 v{vARE}, {R1-R0}, v{vARE}")
    I(f"v_bfe_u32 v{t0}, v{lane}, 2, 2")
    I(f"v_lshl_add_u32 v{vART}, v{t0}, 5, s{sL}")
    I(f"v_lshrrev_b32 v{t0}, 5, v{lane}")
    I(f"v_lshl_add_u32 v{vART}, v{t0}, 3, v{vART}")

vOWN = vT + 1
def pads(lane, t0, t1, t2):
    W2 = f"offset0:0 offset1:{(R1-R0)//256}"
    I(f"v_mov_b32 v{t2}, 0xffff0000")
    I(f"v_or_b32 v{t1}, s{sNUL}, v{t2}")
    I(f"v_mov_b32 v{t2}, 0x7fffff00")
    I(f"v_lshl_add_u32 v{t0}, v{lane}, 2, s{sEND}")
    I(f"s_sub_u32 s{sN}, s{sEND}, s{sL}")
    I(f"ds_write2st64_b32 v{t0}, v{t1}, v{t2} {W2}")
    I(f"ds_write2st64_b32 v{t0}, v{t1}, v{t2} offset0:1 offset1:{(R1-R0)//256 + 1}")
    ntiles(False)
def ntiles(sub=True):
    if sub: I(f"s_sub_u32 s{sN}, s{sEND}, s{sL}")
    I(f"s_add_u32 s{sN}, s{sN}, 127")
    I(f"s_lshr_b32 s{sN}, s{sN}, 7")
    I(f"s_sub_i32 s{sN1}, s{sN}, 1")

KN = NAME + "_kernel"
P_HIST, P_HDR = MAP, WU
H0 = 2000
P_EIMG = STG
P_CIMG = P_EIMG + 64 * LROW
assert P_CIMG + 256 * LROW <= K2_LDS
sTAG, sEPN, sSPIN = 36, 100, 101
def k2():
    emit(f"""
.globl {KN}
.p2align 8
.type {KN},@function
{KN}:""")
    I("s_cmp_ge_u32 s2, 256")
    I("s_cbranch_scc1 K2_END")
    stamp(0)
    KA = sM
    I(f"s_load_dwordx4 s[{KA+4}:{KA+7}], s[0:1], 16")
    I(f"s_load_dwordx2 s[8:9], s[0:1], 88")
    I(f"s_load_dwordx4 s[{KA}:{KA+3}], s[0:1], 0")
    I(f"s_load_dwordx8 s[{KA+8}:{KA+15}], s[0:1], 32")
    I(f"s_load_dwordx4 s[{KA+16}:{KA+19}], s[0:1], 64")
    tid, lane = 255, 254
    CPF = opt("cpf", 192)
    if CPF:
        I(f"s_getpc_b64 s[{sTMP}:{sTMP+1}]")
        L("K2_PC")
        I(f"v_lshlrev_b32 v{vT}, 7, v0")
        I(f"v_min_u32 v{vT}, K2_LAST-K2_PC, v{vT}")
        I(f"v_cmp_gt_u32 vcc, {CPF}, v0")
        I("s_cbranch_vccz K2_NOCPF")
        I(f"global_load_dword v{vT+1}, v{vT}, s[{sTMP}:{sTMP+1}]")
        L("K2_NOCPF")
    vC = vACC
    vA = vACC + 16
    hh = vACC + 28
    vRK = vR
    vMIN = vQ + 8
    vTM = vQ + 10
    u = lambda i: vP + i
    k4, ecb, hda, one, l16 = vE, vE + 1, vE + 2, vE + 3, vT1
    pD, pS, pH, pK, pA, pB, pI, pW = 8, 16, 24, 32, 40, 48, 56, 64
    I(f"v_mov_b32 v{tid}, v0")
    I(f"v_lshrrev_b32 v{u(0)}, 6, v0")
    I(f"v_and_b32 v{lane}, 63, v0")
    I(f"v_readfirstlane_b32 s7, v{u(0)}")
    I("s_and_b32 s10, s2, 7")
    I("s_lshr_b32 s11, s2, 3")
    I("s_lshl_b32 s10, s10, 5")
    I(f"s_add_u32 s{sB}, s10, s11")
    I(f"s_mul_i32 s13, s{sB}, {CH*4}")
    I(f"v_lshlrev_b32 v{u(1)}, 4, v0")
    I(f"v_lshlrev_b32 v1, 3, v0")
    I(f"v_lshlrev_b32 v2, 2, v0")
    I(f"v_mov_b32 v3, 0")
    I(f"v_and_b32 v4, 0x3fc, v2")
    I(f"ds_write_b32 v4, v3 offset:{P_HIST}")
    ASYM = opt("asym", 16)
    I(f"s_and_b32 s10, s7, 3")
    I(f"s_lshr_b32 s{sW}, s7, 2")
    I(f"s_lshl1_add_u32 s{sW}, s10, s{sW}")
    I(f"s_xor_b32 s{sW}, s{sW}, 1")
    I(f"s_movk_i32 s14, 8192")
    I(f"s_movk_i32 s15, 12288")
    I("s_waitcnt lgkmcnt(0)")
    stamp('p')
    vq = []
    def younger(tag): return len(vq) - 1 - max(i for i, t in enumerate(vq) if t == tag)
    q0, q1 = 64, 68
    srd(q0, KA+6, KA+7, CH*4, "s13")
    srd(q1, KA+4, KA+5, CH*4, "s13")
    for r_, q_ in ((pD, q0), (pS, q1)):
        I(f"buffer_load_dwordx4 {rr(r_,4)}, v{u(1)}, s[{q_}:{q_+3}], 0 offen{pol(K1_LD)}")
        I(f"buffer_load_dwordx2 {rr(r_+4,2)}, v1, s[{q_}:{q_+3}], s14 offen{pol(K1_LD)}")
        I(f"buffer_load_dword v{r_+6}, v2, s[{q_}:{q_+3}], s15 offen{pol(K1_LD)}")
        vq += ["D" if r_ == pD else "S"] * 3
        if r_ == pD and opt("db", 1): I("s_barrier")
    I(f"s_add_u32 s10, s8, {WS_EPOCH}")
    I("s_addc_u32 s11, s9, 0")
    I(f"s_load_dword s{sEPN}, s[10:11], 0")
    if not opt("db", 1): I("s_barrier")
    I(f"v_lshrrev_b32 v1, 3, v0")
    I(f"v_lshlrev_b32 v{hda}, 2, v1")
    I(f"v_and_b32 v{u(9)}, 7, v0")
    I(f"v_and_b32 v5, 16, v0")
    I(f"v_lshlrev_b32 v5, 1, v5")
    I(f"v_xor_b32 v5, v5, v{u(1)}")
    I(f"v_lshlrev_b32 v{l16}, 4, v{lane}")
    I(f"v_and_b32 v{vCP}, 16, v{lane}")
    I(f"v_lshlrev_b32 v{vCP}, 2, v{vCP}")
    vXS, vXA = vR + 14, vR + 15
    I(f"v_xor_b32 v{vXS}, v{vCP}, v{l16}")
    I(f"v_and_b32 v{vCP}, 0x70, v{vXS}")
    if SOFF: I(f"v_subrev_u32 v{vCP}, {SOFF * 128}, v{vCP}")
    srd(sX, KA, KA+1, N*128)
    WLPOS = len(out)
    mark = len(out)
    I(f"s_mul_i32 s11, s{sW}, 49")
    I("s_sub_i32 s11, s11, 7")
    I("s_ashr_i32 s11, s11, 1")
    I(f"s_max_i32 s{sWIN}, s11, 0")
    I(f"v_lshrrev_b32 v{u(5)}, 5, v{lane}")
    def wloads():
        srd(q0, KA+10, KA+11, 8192)
        I(f"buffer_load_dwordx4 {rr(pW,4)}, v5, s[{q0}:{q0+3}], 0 offen"); vq.append("B")
        srd(q1, KA+12, KA+13, 2048)
        I(f"buffer_load_dwordx4 {rr(pW+4,4)}, v5, s[{q1}:{q1+3}], 0 offen"); vq.append("B")
        I(f"s_lshl_b32 s10, s7, 10")
        for kp, off in ((KA+8, WI_A), (KA+16, WI_V), (KA+14, WI_U)):
            I(f"s_mov_b32 s{q0}, s{kp}")
            I(f"s_mov_b32 s{q0+1}, s{kp+1}")
            I(f"s_add_u32 m0, s10, {WL + off}")
            I("s_nop 0")
            I(f"buffer_load_dwordx4 v5, s[{q0}:{q0+3}], 0 offen lds"); vq.append("W")
    def xloads():
        I(f"s_mul_i32 s10, s{sB}, {BN*128}")
        I(f"s_lshl_b32 s11, s7, 10")
        I(f"s_add_u32 s10, s10, s11")
        I(f"s_mul_i32 s11, s7, 1040")
        I(f"s_cmp_lg_u32 s7, 0")
        I(f"s_cbranch_scc1 K2_NOX3")
        for i in (3, 0, 1, 2):
            I(f"s_add_u32 m0, s11, {XO + i*8320}")
            I(f"s_add_u32 s14, s10, {i*8192}")
            I(f"buffer_load_dwordx4 v{vXS}, s[{sX}:{sX+3}], s14 offen lds")
            if i == 3: L("K2_NOX3")
            else: vq.append("X")
    srd(sEP, KA+2, KA+3, E*32)
    srd(sOUT, KA+18, KA+19, N*128)
    srd(sWS, 8, 9, WS_USED)
    I(f"v_lshrrev_b32 v{u(6)}, 5, v{tid}")
    I(f"v_and_b32 v{u(7)}, 15, v{tid}")
    I(f"v_cmp_eq_u32 vcc, v{u(6)}, v{u(7)}")
    I(f"v_and_b32 v{u(6)}, 16, v{tid}")
    I(f"v_mov_b32 v{u(7)}, 0x3f80")
    I(f"v_lshlrev_b32 v{u(7)}, v{u(6)}, v{u(7)}")
    I(f"v_cndmask_b32 v{u(7)}, 0, v{u(7)}, vcc")
    I(f"v_lshlrev_b32 v{u(6)}, 2, v{tid}")
    I(f"v_mov_b32 v{u(8)}, 0")
    I(f"ds_write_b32 v{u(6)}, v{u(7)}")
    if SM1:
        I(f"v_bfe_u32 v{u(7)}, v{tid}, 3, 1")
        I(f"v_and_b32 v{u(13)}, 7, v{tid}")
        I(f"v_lshl_add_u32 v{u(7)}, v{u(7)}, 2, v{u(13)}")
        I(f"v_lshrrev_b32 v{u(12)}, 6, v{tid}")
        I(f"v_cmp_eq_u32 vcc, v{u(7)}, v{u(12)}")
        I(f"v_bfe_u32 v{u(12)}, v{tid}, 4, 2")
        I(f"v_mov_b32 v{u(7)}, 0x3f80")
        I(f"v_cndmask_b32 v{u(7)}, 0, v{u(7)}, vcc")
        I(f"v_cmp_lt_u32 vcc, 3, v{u(13)}")
        I(f"v_mul_u32_u24 v{u(12)}, 0x5555, v{u(12)}")
        I(f"v_and_b32 v{u(13)}, 60, v{u(6)}")
        I(f"v_cndmask_b32 v{u(7)}, v{u(7)}, v{u(12)}, vcc")
        I(f"ds_write_b32 v{u(6)}, v{u(7)} offset:{T1B}")
        I(f"ds_write_b32 v{u(13)}, v{u(8)} offset:{T1B + 2048}")
    I(f"ds_write_b32 v{u(6)}, v{u(8)} offset:{ZROW}")
    I(f"ds_write2st64_b32 v{u(6)}, v{u(8)}, v{u(8)} offset0:{HIST//256} offset1:{HIST//256 + 8}")
    I(f"s_movk_i32 s{s128}, 128")
    I(f"s_mul_i32 s{sSTG}, s{sW}, {WST}")
    I(f"s_add_u32 s{sSTG}, s{sSTG}, {STG}")
    I(f"s_movk_i32 s{sSKIP}, {QCAP}")
    I(f"s_add_u32 s{sNUL}, s{sWIN}, 32")
    I(f"s_lshl_b32 s11, s{sWIN}, 6")
    I(f"s_mov_b32 s{sXT}, 0")
    I(f"v_bfe_u32 v{u(6)}, v{lane}, 4, 1")
    I(f"v_and_b32 v{vCH}, 1, v{lane}")
    I(f"v_lshlrev_b32 v{vCH}, 4, v{vCH}")
    I(f"v_lshlrev_b32 v{vC1}, 5, v{u(5)}")
    I(f"v_subrev_u32 v{vC1}, s11, v{vC1}")
    I(f"v_and_b32 v{u(7)}, 3, v{lane}")
    I(f"v_lshlrev_b32 v{u(7)}, 3, v{u(7)}")
    I(f"v_lshl_add_u32 v{vC2}, v{u(6)}, 5, v{u(7)}")
    I(f"v_subrev_u32 v{vC2}, s11, v{vC2}")
    I(f"v_bfe_u32 v{u(8)}, v{lane}, 2, 2")
    I(f"v_mul_u32_u24 v{u(8)}, 1040, v{u(8)}")
    I(f"v_lshl_add_u32 v{u(8)}, v{u(6)}, 9, v{u(8)}")
    I(f"v_lshl_add_u32 v{u(8)}, v{u(7)}, 4, v{u(8)}")
    I(f"v_bfe_u32 v{u(6)}, v{lane}, 1, 1")
    I(f"v_xor_b32 v{u(6)}, v{u(6)}, v{u(5)}")
    I(f"v_lshl_add_u32 v{u(8)}, v{u(6)}, 6, v{u(8)}")
    I(f"v_add_u32 v{vAX}, s{sSTG}, v{u(8)}")
    I(f"v_bfe_u32 v{u(6)}, v{lane}, 2, 3")
    I(f"v_add_u32 v{u(6)}, v{u(6)}, v{u(7)}")
    I(f"v_lshl_add_u32 v{u(6)}, v{u(6)}, 1, v{u(5)}")
    I(f"v_lshl_add_u32 v{vAE}, v{u(6)}, 4, s{sSTG}")
    I(f"v_add_u32 v{vAE}, 4160, v{vAE}")
    I(f"s_mul_i32 s{sL}, s{sW}, {LCAP*4}")
    I(f"s_add_u32 s{sL}, s{sL}, {R0}")
    listaddr(lane, u(6), u(7))
    def ownaddr(d, lab, t):
        I(f"v_and_b32 v{d}, 31, v{lab}")
        I(f"v_add_u32 v{d}, s{sWIN}, v{d}")
        I(f"v_bfe_u32 v{t}, v{d}, 1, 1")
        I(f"v_xor_b32 v{t}, v{t}, v{u(5)}")
        I(f"v_lshlrev_b32 v{t}, 6, v{t}")
        I(f"v_lshl_add_u32 v{t}, v{d}, 7, v{t}")
        I(f"v_lshrrev_b32 v{d}, 3, v{d}")
        I(f"v_lshl_add_u32 v{d}, v{d}, 4, v{t}")
    ownaddr(u(14), lane, u(6))
    I(f"v_lshrrev_b32 v{u(6)}, 1, v{lane}")
    I(f"v_xor_b32 v{u(6)}, v{u(6)}, v{lane}")
    I(f"v_and_b32 v{u(6)}, 4, v{u(6)}")
    I(f"v_mul_u32_u24 v{u(6)}, 3, v{u(6)}")
    I(f"v_xor_b32 v{u(6)}, v{u(6)}, v{lane}")
    ownaddr(vXA, u(6), u(7))
    I(f"v_mov_b32 v{vIX}, 0xdddd")
    lo0, hi0, lo1, hi1 = sT, sN, sMSK, sMSK + 1
    I(f"s_mul_i32 s10, s{sW}, 49")
    I(f"s_sub_i32 s{lo0}, s10, 7")
    I(f"s_ashr_i32 s{lo0}, s{lo0}, 1")
    I(f"s_add_i32 s{hi0}, s10, 8")
    I(f"s_ashr_i32 s{hi0}, s{hi0}, 1")
    I(f"s_add_i32 s{lo1}, s10, 42")
    I(f"s_ashr_i32 s{lo1}, s{lo1}, 1")
    I(f"s_add_i32 s{hi1}, s{lo0}, 32")
    I(f"s_cmp_eq_u32 s{sW}, 7")
    I(f"s_cselect_b32 s{lo1}, {BN}, s{lo1}")
    I(f"s_cselect_b32 s{hi1}, {BN}, s{hi1}")
    I(f"v_lshlrev_b32 v{k4}, 2, v{u(9)}")
    vEB = vQ + 4
    I(f"v_mul_u32_u24 v{vEB}, {CH*8}, v{hda}")
    for i in range(1, 4):
        I(f"v_add_u32 v{vEB+i}, {64*i*CH*32}, v{vEB}")
    I(f"v_mov_b32 v{one}, 4")
    I(f"v_mov_b32 v{ecb}, 1")
    I(f"v_and_b32 v{u(11)}, 31, v{lane}")
    I(f"v_add_u32 v{u(11)}, s{sWIN}, v{u(11)}")
    I(f"v_lshlrev_b32 v{u(12)}, 4, v{u(11)}")
    I(f"v_lshl_add_u32 v{u(12)}, v{u(5)}, 3, v{u(12)}")
    for i in range(4): I(f"v_mov_b64 v[{vT2+2*i}:{vT2+2*i+1}], 0")
    I(f"s_lshl_b32 s{sEND}, s{sW}, 2")
    I(f"v_mov_b32 v{vMIN}, s{sEND}")
    I(f"v_lshlrev_b32 v{vMIN+1}, 2, v{u(11)}")
    static = out[mark:]; del out[mark:]
    WLP = opt("wl", 2)
    if WLP == 0: wloads()
    XP_ = opt("xp", 6)
    if XP_ == 0: xloads()
    SP = opt("sp0", 0)
    SPN = opt("spn", 1000)
    if SP:
        out.extend(static[:SPN]); static = static[SPN:]
    c1, c2, c3 = 60, 61, 62
    pm = 78
    pX = 23
    xb = lambda i: (23, 23, 23, 23, 31, 31, 39)[i]
    I(f"s_mov_b32 s{c1}, 85599")
    I(f"s_mov_b32 s{c2}, {-BN & 0xffffffff}")
    I(f"s_movk_i32 s{c3}, {H0}")
    I(f"v_mov_b32 v7, {KQ}")
    I(f"s_mov_b32 s10, {SOFF << 16}")
    I(f"v_lshl_add_u32 v{pI}, v{lane}, 10, s10")
    for i in range(1, 4): I(f"v_add_u32 v{pI+i}, {i << 8}, v{pI}")
    I(f"v_and_b32 v{pI+4}, 127, v{tid}")
    I(f"v_lshl_add_u32 v{pI+4}, v{pI+4}, 9, s10")
    I(f"v_add_u32 v{pI+5}, 256, v{pI+4}")
    I(f"v_lshl_add_u32 v{pI+6}, v{lane}, 8, s10")
    I(f"v_lshrrev_b32 v23, 6, v{tid}")
    I(f"v_lshrrev_b32 v31, 7, v{tid}")
    I(f"v_add_u32 v31, 8, v31")
    I(f"v_mov_b32 v39, 12")
    I(f"v_cmp_gt_u32 s[{pm}:{pm+1}], {CH - 3072}, v{tid}")
    I(f"s_mov_b32 s11, {RS}")
    I(f"v_lshlrev_b32 v3, 4, v{u(9)}")
    I(f"v_mad_u32_u24 v4, v1, s11, v3")
    I(f"v_mul_u32_u24 v6, {LROW // 4}, v1")
    I(f"v_lshl_add_u32 v6, v{u(9)}, 2, v6")
    I(f"v_lshlrev_b32 v3, 2, v6")
    I(f"v_add_u32 v3, {P_CIMG}, v3")
    I(f"v_add_u32 v6, {P_EIMG}, v6")
    I(f"v_mov_b32 v{vTM}, {TMASK:#x}")
    I(f"v_mov_b32 v15, 0x0f0f0f")
    X0 = (LROW // 16) * H0
    sSO = sCI
    def cload(i):
        so = "0" if i == 0 else f"s{sSO+i-1}"
        I(f"buffer_load_dwordx4 {rr(vC+4*i,4)}, v{u(1)}, s[{sCEL}:{sCEL+3}], {so} offen sc1")
    def cloads():
        if opt("dly", 0): I(f"s_sleep {opt('dly', 0)}")
        stamp('w')
        for i in range(4): cload(i); vq.append("C")
    def prod(idx):
        n = len(idx)
        for i in idx: I(f"v_mul_u32_u24 v{pB+i}, s{c1}, v{pD+i}")
        for i in idx: I(f"v_lshrrev_b32 v{pB+i}, 24, v{pB+i}")
        for i in idx:
            I(f"v_lshl_add_u32 v{pH+i}, v{pB+i}, 2, s{c3}")
            I(f"ds_add_rtn_u32 v{pK+i}, v{pH+i}, v7 offset:{P_HIST - H0}")
        for i in idx:
            I(f"v_mad_i32_i24 v{pD+i}, v{pB+i}, s{c2}, v{pD+i}")
            I(f"v_or_b32 v{pD+i}, v{pD+i}, v{pI+i}")
        for j, i in enumerate(idx):
            I(f"s_waitcnt lgkmcnt({n - 1})")
            I(f"v_lshrrev_b32 v{pK+i}, 16, v{pK+i}")
            I(f"v_min_u32 v{pA+i}, {QCAP}, v{pK+i}")
            I(f"v_mad_u32_u24 v{pA+i}, v{pH+i}, {LROW // 16}, v{pA+i}")
            I(f"v_lshlrev_b32 v{pB+i}, 2, v{pA+i}")
            I(f"ds_write_b8 v{pA+i}, v{xb(i)} offset:{P_EIMG - X0}")
    def prod2(idx):
        for i in idx:
            I(f"v_lshl_add_u32 v{pS+i}, v{pS+i}, 16, v{pD+i}")
            I(f"ds_write_b32 v{pB+i}, v{pS+i} offset:{P_CIMG - 4*X0}")
    if WLP == 1: wloads()
    stamp('q')
    I(f"s_waitcnt vmcnt({younger('D')})")
    stamp('d')
    prod(range(6))
    I(f"s_cmp_lg_u32 s7, 0")
    I("s_cbranch_scc1 K1_NO7")
    I(f"s_mov_b64 exec, s[{pm}:{pm+1}]")
    I("s_waitcnt lgkmcnt(0)")
    prod([6])
    I(f"s_waitcnt vmcnt({younger('S')})")
    prod2([6])
    I("s_mov_b64 exec, -1")
    L("K1_NO7")
    if WLP == 2: wloads()
    I(f"s_waitcnt vmcnt({younger('S')})")
    prod2(range(6))
    if XP_ == 4: xloads()
    I(f"s_lshl_b32 s15, s{sB}, 7")
    sST_ = sCEL
    srd(sST_, 8, 9, 511*RS + CELLB, "s15")
    I("s_waitcnt lgkmcnt(0)")
    I(f"s_add_u32 s{sEPN}, s{sEPN}, 1")
    I(f"s_and_b32 s10, s{sEPN}, 15")
    I(f"s_and_b32 s11, s{sEPN}, 0xf0")
    I(f"s_mul_i32 s{sTAG}, s10, 0x1010")
    I(f"s_lshl_b32 s11, s11, 16")
    I(f"s_xor_b32 s{sTAG}, s{sTAG}, 0xf000")
    I(f"s_or_b32 s{sTAG}, s{sTAG}, s11")
    I(f"s_mov_b32 s{sSPIN}, {opt('spin', 200000)}")
    I("s_barrier")
    stamp('i')
    oC, oE, oH, oA = vACC, vACC + 16, vACC + 20, vACC + 24
    I(f"ds_read_b128 {rr(oA,4)}, v{l16} offset:{P_HIST}")
    for i in range(4):
        I(f"ds_read_u16 v{oH+i}, v{hda} offset:{P_HIST + 256*i + 2}")
        I(f"ds_read_b32 v{oE+i}, v6 offset:{16*LROW*i}")
        I(f"ds_read_b128 {rr(oC+4*i,4)}, v3 offset:{64*LROW*i}")
    I("s_waitcnt lgkmcnt(12)")
    I(f"v_max3_u32 v1, v{oA}, v{oA+1}, v{oA+2}")
    I(f"v_max_u32 v1, v1, v{oA+3}")
    I(f"v_cmp_le_u32 vcc, {(QCAP + 1) << 16}, v1")
    I("s_mov_b32 s10, 0")
    I("s_cbranch_vccnz K1_OVF")
    L("K1_OUT")
    for i in range(4):
        r = oC + 4*i
        I(f"s_waitcnt lgkmcnt({9 - 3*i})")
        I(f"v_lshl_or_b32 v{oH+i}, v{oH+i}, 24, s{sTAG}")
        I(f"v_and_or_b32 v{r+3}, v{oE+i}, v15, v{oH+i}")
        I(f"buffer_store_dwordx4 {rr(r,4)}, v4, s[{sST_}:{sST_+3}], s10 offen sc1"); vq.append("O")
        I(f"s_add_u32 s10, s10, {64*RS}")
    I(f"v_max3_u32 v1, v{oH}, v{oH+1}, v{oH+2}")
    I(f"v_max_u32 v1, v1, v{oH+3}")
    I(f"v_cmp_le_u32 vcc, {33 << 24}, v1")
    I("s_cbranch_vccnz K1_EXT")
    L("K1_EXTR")
    stamp('o')
    if TS == 10:
        I("s_waitcnt vmcnt(0)")
        stamp('A')
    if opt("bar", 0): I("s_barrier")
    out.extend(static)
    I(f"s_mul_i32 s10, s{sB}, {RS}")
    srd(sCEL, 8, 9, NCH*CELLB, "s10")
    for k in (1, 2, 3):
        I(f"s_movk_i32 s{sSO+k-1}, {64*CELLB*k}")
    CP = opt("cp", 2)
    if CP == 0: cloads()
    I(f"s_mov_b32 s10, {f2u(-LOG2E):#x}")
    I(f"s_waitcnt vmcnt({younger('B')})")
    for i in range(8):
        I(f"v_lshlrev_b32 v{vAT+2*i}, 16, v{pW+i}")
        I(f"v_and_b32 v{vAT+2*i+1}, 0xffff0000, v{pW+i}")
    for i in range(16): I(f"v_mul_f32 v{vAT+i}, s10, v{vAT+i}")
    for i in range(8): I(f"v_cvt_pk_bf16_f32 v{pW+i}, v{vAT+2*i}, v{vAT+2*i+1}")
    I(f"ds_write_b128 v{u(1)}, {rr(pW,4)} offset:{WL + WI_B}")
    I(f"s_cmp_ge_u32 s7, 2")
    I("s_cbranch_scc1 K1_NOWC")
    I(f"ds_write_b128 v{u(1)}, {rr(pW+4,4)} offset:{WL + WI_C}")
    L("K1_NOWC")
    w0, w1, wc0, wc1, xa_ = vT1 + 1, vT1 + 2, vT1 + 3, vT1 + 4, vT
    I(f"v_bfe_u32 v{w0}, v{lane}, 2, 2")
    I(f"v_lshlrev_b32 v{w0}, 7, v{w0}")
    I(f"v_lshl_add_u32 v{w0}, v{vCH}, 2, v{w0}")
    I(f"v_and_b32 v{w1}, 16, v{lane}")
    I(f"v_and_b32 v{wc0}, 2, v{lane}")
    I(f"v_lshl_add_u32 v{w1}, v{wc0}, 2, v{w1}")
    I(f"v_and_b32 v{wc0}, 8, v{lane}")
    I(f"v_lshl_add_u32 v{w1}, v{wc0}, 2, v{w1}")
    I(f"v_add_u32 v{w0}, v{w0}, v{w1}")
    I(f"v_lshl_add_u32 v{wc0}, v{u(5)}, 10, v{w0}")
    I(f"v_lshl_add_u32 v{w0}, v{u(5)}, 12, v{w0}")
    I(f"v_xor_b32 v{w1}, 32, v{w0}")
    I(f"v_xor_b32 v{wc1}, 32, v{wc0}")
    def wtr(reg, img, ft, s_, c=False):
        ad = (wc0, wc1)[ft] if c else (w0, w1)[ft]
        return [f"ds_read_b64_tr_b16 {rr(reg+2*h_,2)}, v{ad} offset:{WL + img + 1024*s_ + 512*h_}" for h_ in range(2)]
    I(f"s_lshl_b32 s10, s7, 10")
    I(f"s_and_b32 s11, s7, 4")
    I(f"s_mul_i32 s11, s11, {8 - 1024}")
    I(f"s_add_u32 s11, s11, s10")
    I(f"v_xor_b32 v{xa_}, s11, v{w0}")
    I(f"s_waitcnt vmcnt({0 if opt('ack', 1) else younger('W')}) lgkmcnt(0)")
    I("s_barrier")
    if CP == 1: cloads()
    for h_ in range(2):
        I(f"ds_read_b64_tr_b16 {rr(vAT+2*h_,2)}, v{xa_} offset:{WL + WI_U + 512*h_}")
        I(f"ds_read_b64_tr_b16 {rr(vAT+4+2*h_,2)}, v{xa_} offset:{WL + WI_A + 512*h_}")
    I(f"v_add_u32 v{xa_}, s10, v{l16}")
    rest = []
    for reg, img in ((vWB, WI_B), (vWC, WI_C), (vWV, WI_V)):
        for ft in range(2):
            if img == WI_C: rest += wtr(vWC + 4*ft, WI_C, ft, 0, True)
            else:
                for s_ in range(4): rest += wtr(reg + 16*ft + 4*s_, img, ft, s_)
    for x_ in rest[:8]: I(x_)
    rest = rest[8:]
    I("s_waitcnt lgkmcnt(8)")
    I(f"ds_write_b128 v{xa_}, {rr(vAT,4)} offset:{WU}")
    I(f"ds_write_b128 v{xa_}, {rr(vAT+4,4)} offset:{WA}")
    while rest:
        I("s_waitcnt lgkmcnt(8)")
        for x_ in rest[:6]: I(x_)
        rest = rest[6:]
    stamp('k')
    sPH = 5
    I(f"s_mov_b32 s{sPH}, {PHM}")
    if CP == 2: cloads()
    SW1 = "dst_sel:DWORD dst_unused:UNUSED_PAD src0_sel:DWORD src1_sel:WORD_1"
    def haddr(d, r):
        return [f"v_mul_u32_u24_sdwa v{d}, s{sPH}, v{r} {SW1}", f"v_alignbit_b32 v{d}, v{r}, v{d}, 28", f"v_and_b32 v{d}, 0xffc, v{d}"]
    def remain(d, r, k):
        I(f"v_sub_u32_sdwa v{d}, v{r}, v{k} dst_sel:DWORD dst_unused:UNUSED_PAD src0_sel:BYTE_3 src1_sel:DWORD")
    for i in range(4):
        L(f"K2_CHK{i}")
        I(f"s_waitcnt vmcnt({3 - i})")
        r = vC + 4*i
        I(f"v_bitop3_b32 v{u(0)}, v{r+3}, s{sTAG}, v{vTM} bitop3:0x28")
        I(f"v_cmp_ne_u32 vcc, 0, v{u(0)}")
        remain(u(0), r + 3, k4)
        hs = [haddr(vA+3*i+j, r+j) for j in range(3)]
        for j in range(3): I(hs[j][0])
        I(f"s_cbranch_vccnz K2_RETRY{i}")
        if i == 0: stamp(1)
        for j in range(3):
            m = sM + 2*(3*i+j)
            I(f"v_cmp_lt_i32 s[{m}:{m+1}], {j}, v{u(0)}")
        for st in (1, 2):
            for j in range(3): I(hs[j][st])
        for j in range(3):
            m = sM + 2*(3*i+j)
            I(f"s_mov_b64 exec, s[{m}:{m+1}]")
            I(f"ds_add_rtn_u32 v{vRK+3*i+j}, v{vA+3*i+j}, v{one} offset:{HIST}")
        I("s_mov_b64 exec, -1")
    I(f"v_max3_u32 v{u(0)}, v{vC+3}, v{vC+7}, v{vC+11}")
    I(f"v_max_u32 v{u(0)}, v{u(0)}, v{vC+15}")
    I(f"v_cmp_le_u32 vcc, {33 << 24}, v{u(0)}")
    sSEL = sM + 24
    for j in range(3): I(f"s_mov_b32 s{sSEL+j}, {0x0c0c0001 | (4 + j) << 8:#x}")
    I(f"s_mov_b32 s{sSEL+3}, 0x05040100")
    I("s_cbranch_vccnz K2_XT1")
    L("K2_XT1R")
    vEO = vX
    fill = []
    for i in range(4):
        fill.append(f"v_and_b32 v{vC+4*i+3}, 0x0f0f0f, v{vC+4*i+3}")
    for i in range(4):
        for j in range(3): fill.append(f"v_perm_b32 v{vEO+3*i+j}, v{vC+4*i+3}, v{vC+4*i+j}, s{sSEL+j}")
    for i in range(4):
        for j in range(3): fill.append(f"v_lshl_add_u32 v{vEO+3*i+j}, v{vEO+3*i+j}, 5, v{vEB+i}")
    EPF, XPF = opt("epf", 0), opt("xpf", 0)
    def epref(fill):
        dm = vT1 + 6
        if XPF:
            I(f"s_lshr_b32 s10, s2, 3")
            I(f"s_mul_i32 s10, s10, {XPF}")
            I(f"v_cmp_gt_u32 vcc, {XPF}, v{tid}")
            I(f"v_add_lshl_u32 v{dm}, v{tid}, s10, 7")
            I("s_and_b64 exec, exec, vcc")
            I("s_cbranch_execz K2_NOXPF")
            I(f"buffer_load_dword v{dm}, v{dm}, s[{sX}:{sX+3}], 0 offen")
            L("K2_NOXPF")
            I("s_mov_b64 exec, -1")
        while fill: I(fill.pop(0))
        I(f"s_mov_b32 s10, {(SOFF + opt('et', T0)) << 16:#x}")
        for s in range(12):
            m = sM + 2*s
            I(f"s_mov_b64 exec, s[{m}:{m+1}]")
            I(f"v_cmpx_gt_u32 vcc, s10, v{vC+4*(s//3)+s%3}")
            I(f"buffer_load_dword v{dm}, v{vEO+s}, s[{sEP}:{sEP+3}], 0 offen")
        I("s_mov_b64 exec, -1")
    if XP_ == 5: xloads()
    if EPF == 1: epref(fill)
    MT, MTP = opt("mt", 0), opt("mtp", 0)
    def mtouch():
        dm = vT1 + 6
        I(f"s_mul_i32 s10, s{sB}, {CH*32}")
        for k in range((MT + 511) // 512):
            n = min(512, MT - 512*k)
            I(f"v_min_u32 v{dm+1}, {n - 1}, v{tid}")
            I(f"v_lshlrev_b32 v{dm+1}, {opt('mts', 7)}, v{dm+1}")
            if n < 512:
                I(f"s_cmp_ge_u32 s7, {(n + 63) // 64}")
                I(f"s_cbranch_scc1 K2_NOMT{k}")
            I(f"buffer_load_dword v{dm}, v{dm+1}, s[{sEP}:{sEP+3}], s10 offen")
            if n < 512: L(f"K2_NOMT{k}")
            I(f"s_add_u32 s10, s10, 65536")
    if MT and MTP == 0: mtouch()
    stamp('s')
    I("s_waitcnt lgkmcnt(0)")
    I("s_barrier")
    stamp(2)
    c, p, tot, sc = u(0), u(4), u(8), u(9)
    own, ownn, owna = u(10), u(11), u(12)
    SD = "dst_sel:DWORD dst_unused:UNUSED_PAD src0_sel:WORD_0 src1_sel:WORD_0"
    for i in range(4):
        I(f"ds_read_b128 {rr(hh+4*i,4)}, v{l16} offset:{HIST + 1024*i}")
    I(f"ds_read_b64 v[{u(6)}:{u(7)}], v{owna} offset:{HIST}")
    if XP_ == 6: xloads()
    if EPF == 2: epref(fill)
    if MT and MTP == 1: mtouch()
    for k in range(8):
        if fill: I(fill.pop(0))
    for i in range(4):
        I(f"s_waitcnt lgkmcnt({4 - i})")
        I(f"v_add_u32_sdwa v{c+i}, v{hh+4*i}, v{hh+4*i+1} {SD}")
        I(f"v_add_u32_sdwa v{hh+4*i}, v{hh+4*i+2}, v{hh+4*i+3} {SD}")
        I(f"v_add_u32 v{c+i}, v{c+i}, v{hh+4*i}")
    I(f"v_lshl_or_b32 v{p}, v{c+1}, 16, v{c}")
    I(f"v_lshl_or_b32 v{p+1}, v{c+3}, 16, v{c+2}")
    I("s_waitcnt lgkmcnt(0)")
    I(f"v_perm_b32 v{own}, v{u(7)}, v{u(6)}, s{sSEL+3}")
    for dp in ["row_shr:%d row_mask:0xf bank_mask:0xf bound_ctrl:0" % sh for sh in (1, 2, 4, 8)] + \
              ["row_bcast:15 row_mask:0xa bank_mask:0xf", "row_bcast:31 row_mask:0xc bank_mask:0xf"]:
        I(f"v_add_u32_dpp v{p}, v{p}, v{p} {dp}")
        I(f"v_add_u32_dpp v{p+1}, v{p+1}, v{p+1} {dp}")
        I(fill.pop(0) if fill else "s_nop 0")
    I(f"v_readlane_b32 s10, v{p}, 63")
    I(f"v_readlane_b32 s11, v{p+1}, 63")
    for i in range(4):
        I(f"v_lshlrev_b32_sdwa v{hh+i}, v{ecb}, v{p+(i>>1)} dst_sel:DWORD dst_unused:UNUSED_PAD src0_sel:DWORD src1_sel:WORD_{i&1}")
        I(f"v_sub_u32 v{c+i}, v{hh+i}, v{c+i}")
    b1, b2, b3 = 4, 5, 6
    I(f"s_and_b32 s{b1}, s10, 0xffff")
    I("s_lshr_b32 s10, s10, 16")
    I(f"s_add_u32 s{b2}, s{b1}, s10")
    I("s_and_b32 s10, s11, 0xffff")
    I(f"s_add_u32 s{b3}, s{b2}, s10")
    I("s_lshr_b32 s11, s11, 16")
    I(f"s_add_u32 s10, s{b3}, s11")
    for i, b in ((1, b1), (2, b2), (3, b3)):
        I(f"v_lshl_add_u32 v{c+i}, s{b}, 1, v{c+i}")
    KV = opt("kv", "")
    if KV:
        klo, khi, kref, ksh = [int(x) for x in KV.split("_")]
        I(f"s_sub_i32 s{sSB}, {4*kref}, s10")
        I(f"s_ashr_i32 s{sSB}, s{sSB}, {ksh + 2}")
        I(f"s_max_i32 s{sSB}, s{sSB}, {klo}")
        I(f"s_min_i32 s{sSB}, s{sSB}, {khi}")
    I("s_lshr_b32 s11, s10, 5")
    I(f"s_add_u32 s11, s11, {ASYM}")
    I("s_and_b32 s11, s11, -32")
    I(f"s_sub_i32 s11, s11, {ASYM + 32*opt('sh', 1)}")
    I("s_lshl_b32 s11, s11, 3")
    I("s_lshr_b32 s10, s10, 1")
    I(f"s_lshr_b32 s{sF0}, s{sW}, 1")
    I(f"s_mul_i32 s{sF0}, s{sF0}, s10")
    I(f"s_add_i32 s11, s11, s{sF0}")
    I(f"s_add_i32 s10, s10, s{sF0}")
    I(f"s_bitcmp1_b32 s{sW}, 0")
    I(f"s_cselect_b32 s{sEND}, s11, s{sF0}")
    I("s_cselect_b32 s10, s10, s11")
    I(f"s_mov_b32 s{sF0}, 0")
    I(f"s_mov_b32 s{sF1}, 0")
    for i in range(4):
        I(f"v_cmp_gt_i32 vcc, s{sEND}, v{c+i}")
        I(f"v_cmp_gt_i32 s[{sTMP}:{sTMP+1}], s10, v{c+i}")
        I("s_bcnt1_i32_b64 s11, vcc")
        I(f"s_add_u32 s{sF0}, s{sF0}, s11")
        I(f"s_bcnt1_i32_b64 s11, s[{sTMP}:{sTMP+1}]")
        I(f"s_add_u32 s{sF1}, s{sF1}, s11")
    I(f"s_max_i32 s{sF0}, s{sF0}, s{lo0}")
    I(f"s_min_i32 s{sF0}, s{sF0}, s{hi0}")
    I(f"s_max_i32 s{sF1}, s{sF1}, s{lo1}")
    I(f"s_min_i32 s{sF1}, s{sF1}, s{hi1}")
    I(f"v_cmp_le_u32 vcc, s{sF0}, v{ownn}")
    I(f"v_cmp_gt_u32 s[10:11], s{sF1}, v{ownn}")
    I(f"s_mov_b32 s{sMORE}, 2")
    I("s_and_b64 vcc, vcc, s[10:11]")
    I(f"v_cndmask_b32 v{own}, 0, v{own}, vcc")
    I(f"v_mov_b32 v{tot}, v{own}")
    wave_scan(tot, fill, half=True)
    for x_ in fill: I(x_)
    I(f"s_sub_u32 s{sTMP}, s{sL}, {R0}")
    I(f"v_readlane_b32 s10, v{tot}, 31")
    I(f"v_readlane_b32 s11, v{tot}, 63")
    I(f"v_sub_u32 v{tot}, v{tot}, v{own}")
    I(f"v_mov_b32 v{vOWN}, v{u(14)}")
    I(f"s_and_b32 s{sTH}, s10, 0xffff")
    I("s_lshr_b32 s10, s10, 16")
    I(f"s_add_u32 s{sTH+1}, s{sTH}, s10")
    I("s_and_b32 s10, s11, 0xffff")
    I(f"s_add_u32 s{sTH+2}, s{sTH+1}, s10")
    I("s_lshr_b32 s11, s11, 16")
    I(f"s_add_u32 s{sEND}, s{sTH+2}, s11")
    I(f"s_lshl_b32 s10, s{sTH}, 16")
    I(f"s_pack_ll_b32_b16 s11, s{sTH+1}, s{sTH+2}")
    I(f"s_pack_ll_b32_b16 s{sTMP}, s{sTMP}, s{sTMP}")
    I(f"s_add_u32 s10, s10, s{sTMP}")
    I(f"s_add_u32 s11, s11, s{sTMP}")
    I("s_mov_b32 exec_lo, vcc_lo")
    I("s_mov_b32 exec_hi, 0")
    I(f"v_add_u32 v{tot}, s10, v{tot}")
    I("s_mov_b32 exec_lo, 0")
    I("s_mov_b32 exec_hi, vcc_hi")
    I(f"v_add_u32 v{tot}, s11, v{tot}")
    I("s_mov_b64 exec, vcc")
    I(f"ds_write_b16 v{owna}, v{tot} offset:{HIST + 2}")
    I(f"ds_write_b16_d16_hi v{owna}, v{tot} offset:{HIST + 6}")
    I(f"ds_write_b32 v{vMIN+1}, v{vMIN} offset:{MAP}")
    I("s_mov_b64 exec, -1")
    I(f"v_mov_b32 v{sc}, {FLAG}")
    I(f"s_cmp_le_u32 s{sEND}, {LMAX*4}")
    I("s_cbranch_scc1 K2_LFIT")
    I(f"ds_write_b32 v{sc}, v{sc}")
    I(f"s_mov_b32 s{sEND}, 0")
    L("K2_LFIT")
    I(f"s_add_u32 s{sEND}, s{sEND}, s{sL}")
    for k in range(3):
        I(f"s_add_i32 s{sTH+k}, s{sTH+k}, {opt('tho', 64)}")
        I(f"s_lshr_b32 s{sTH+k}, s{sTH+k}, 7")
    pads(lane, u(0), u(1), u(2))
    I(f"v_mov_b32 v{u(0)}, s{sEND}")
    I(f"ds_write_b32 v{vMIN}, v{u(0)} offset:{CNT}")
    I("s_waitcnt lgkmcnt(0)")
    stamp('a')
    I("s_barrier")
    stamp('b')
    I(f"ds_read_b64 v[{u(6)}:{u(7)}], v{sc}")
    for s in range(12):
        m = sM + 2*s
        I(f"s_mov_b64 exec, s[{m}:{m+1}]")
        I(f"ds_read_u16 v{vA+s}, v{vA+s} offset:{HIST + 2}")
    I("s_mov_b64 exec, -1")
    I(f"s_waitcnt lgkmcnt(0)")
    I(f"v_readfirstlane_b32 s{sST}, v{u(6)}")
    I(f"v_readfirstlane_b32 s{sCUR}, v{u(7)}")
    for s in range(12): I(f"v_add_u32 v{vA+s}, v{vA+s}, v{vRK+s}")
    I(f"s_cmp_gt_u32 s{sST}, {XMAX}")
    I("s_cbranch_scc1 K2_OVF")
    for s in range(12):
        m = sM + 2*s
        I(f"s_mov_b64 exec, s[{m}:{m+1}]")
        I(f"ds_write2st64_b32 v{vA+s}, v{vC+4*(s//3)+s%3}, v{vEO+s} offset0:{R0//256} offset1:{R1//256}")
    I("s_mov_b64 exec, -1")
    I(f"s_cmp_lg_u32 s{sXT}, 0")
    I("s_cbranch_scc1 K2_XT2")
    L("K2_PADS0")
    I("s_waitcnt vmcnt(0)")
    I("s_waitcnt lgkmcnt(0)")
    stamp('c')
    I("s_barrier")
    I(f"s_cmp_lg_u32 s{sST}, 0")
    I("s_cbranch_scc1 K2_XT3")
    L("K2_GO")
    stamp(3)
    STAG = opt("stag", 1)
    I(f"ds_read_b128 {rr(vQD,4)}, v{vARX}")
    I(f"ds_read_b32 v{vR1}, v{vARE}")
    I(f"ds_read_u8 v{vL1}, v{vARP}")
    I("s_waitcnt lgkmcnt(1)")
    EM = opt("em", 0xAA)
    if STAG == 1:
        I(f"s_movk_i32 s10, {EM}")
        I(f"s_bitcmp1_b32 s10, s{sW}")
        I("s_cbranch_scc0 K2_LATE0")
    for s in dma_tile(0): I(s)
    if STAG == 2:
        I(f"s_bitcmp1_b32 s{sW}, 0")
        I("s_cbranch_scc1 K2_LATE0")
        I("s_waitcnt vmcnt(0)")
    L("K2_LATE0")
    I(f"s_cmp_lg_u32 s{sMORE}, 2")
    I("s_cbranch_scc1 K2_BUILT")
    vWA = vACC
    for q in range(4): I(f"ds_read_b128 {rr(vX+4*q,4)}, v{vXA} offset:{XO + 16*q}")
    for k in range(8): I(f"ds_read_b128 {rr(vWA+4*k,4)}, v{l16} offset:{WA + 1024*k}")
    I(f"s_mov_b32 s10, {f2u(1e-6):#x}")
    I(f"s_mov_b32 s11, s10")
    I(mfma(NUM(1), vT2, vT2))
    for i in range(8): I(f"v_mov_b64 v[{DEN(1)+2*i}:{DEN(1)+2*i+1}], s[10:11]")
    for k in range(8):
        D = (vP, vQ)[k >> 2]
        I(f"s_waitcnt lgkmcnt({7 - k})")
        I(mfma(D, vX + 4*(k & 3), vWA + 4*k, None if k & 3 == 0 else D))
    I(mfma(NUM(0), vT2, vT2))
    for i in range(8): I(f"v_mov_b64 v[{DEN(0)+2*i}:{DEN(0)+2*i+1}], s[10:11]")
    I(f"s_mov_b32 s10, {f2u(-LOG2E):#x}")
    for i in range(32): I(f"v_mul_f32 v{vP+i}, s10, v{vP+i}")
    for i in range(16): I(f"v_cvt_pk_bf16_f32 v{vAT+i}, v{vP+2*i}, v{vP+2*i+1}")

    if SBK and not KV: I(f"s_mov_b32 s{sSB}, {SBK}")
    I(f"s_mov_b32 s{sCI}, -1")
    I(f"s_mov_b64 s[{sMSK}:{sMSK+1}], 0")
    I(f"s_mov_b32 s{sR0}, 0")
    I(f"s_mov_b32 s{sCNT}, 0")
    I(f"s_cmp_lg_u32 s{sCUR}, 0")
    I(f"s_cselect_b32 s{sMORE}, 1, 0")
    L("K2_BUILT")
    I("s_waitcnt lgkmcnt(0)")
    I(f"v_lshl_add_u32 v{vL1}, v{vL1}, 6, v{vC1}")
    if STAG == 1:
        I(f"s_movk_i32 s10, {EM}")
        I(f"s_bitcmp1_b32 s10, s{sW}")
        I("s_cbranch_scc1 K2_HAD0")
        if SBK and opt("sbl", 1):
            I(f"s_cmp_lt_i32 s{sSB}, 0")
            I("s_cbranch_scc1 K2_SBY")
            I("s_barrier")
            I(f"s_mov_b32 s{sSB}, -1")
            L("K2_SBY")
        if opt("ys", 0): I(f"s_sleep {opt('ys', 0)}")
        for s in dma_tile(0): I(s)
        L("K2_HAD0")
    I(f"ds_read_b128 {rr(vQD,4)}, v{vARX} offset:128")
    I(f"ds_read_b32 v{vR1}, v{vARE} offset:128")
    for s in t1_reads(): I(s)
    I(mfma(vQ, vT2, vT2))
    stamp(4)
    I("s_waitcnt vmcnt(0)")
    stamp(5)
    I(f"ds_read_b128 {rr(vE,4)}, v{vAE}")
    for q in range(4):
        I(f"ds_read_b128 {rr(vX+4*q,4)}, v{vAX} offset:{16*q}")
    I("s_waitcnt lgkmcnt(0)")
    I(f"s_cmp_eq_u32 s{sN}, 0")
    I("s_cbranch_scc1 K2_DONE")
    YC = opt("yc", 0) or (SBK and not opt("sbl", 1))
    if YC:
        for x_ in dma_tile(0): I(x_)
        I(f"s_movk_i32 s10, {EM}")
        I(f"s_bitcmp1_b32 s10, s{sW}")
        I("s_cbranch_scc1 K2_NOYC")
        if not SBK: I(f"s_sleep {YC}")
        else:
            I(f"s_cmp_lt_i32 s{sSB}, 0")
            I("s_cbranch_scc1 K2_SBY")
            I("s_barrier")
            I(f"s_mov_b32 s{sSB}, -1")
            L("K2_SBY")
        L("K2_NOYC")
    for s in g_mfmas(vP, 0):
        if s.startswith("v_smfmac"):
            if YC: I("s_nop 9")
            else:
                for x_ in dma_tile(0): I(x_)
        I(s)
    I(f"s_mov_b32 s{sT}, 0")
    sEV = 87
    def prio_code(uid):
        return [f"s_cmp_ge_u32 s{sT}, s{sEV}", f"s_cbranch_scc1 K2_EV{uid}", f"K2_EVR{uid}:"]
    def next_event():
        I(f"s_mov_b32 s{sEV}, s{sN}")
        for r in [sTH, sTH+1, sTH+2] + ([sSB] if SBK else []):
            I(f"s_cmp_gt_i32 s{r}, s{sT}")
            I(f"s_cselect_b32 s10, s{r}, s{sEV}")
            I(f"s_min_u32 s{sEV}, s{sEV}, s10")
    YK = opt("yk", 2)
    if YK:
        I(f"s_sub_u32 s10, s{sN}, {YK - 1 if YK < 10 else 0}")
        I(f"s_bitcmp1_b32 s{sW}, 0")
        I(f"s_cselect_b32 s{sTH+2}, s{sTH+2}, s10")
    I("s_setprio 3")
    next_event()
    tst = ["s_memrealtime s[98:99]", "s_waitcnt lgkmcnt(0)", "s_mov_b32 m0, s72", "s_nop 0", "v_writelane_b32 v255, s98, m0", "s_memtime s[98:99]", "s_waitcnt lgkmcnt(0)", "s_add_u32 m0, s72, 32", "s_nop 0", "v_writelane_b32 v255, s98, m0"] if TS == 4 else []
    body = tst + phaseA(0) + phaseB(0)
    body += prio_code(0)
    body += tst + phaseA(1) + phaseB(1)
    body += [f"v_add_u32 v{r}, 0x100, v{r}" for r in (vARX, vARP, vARE, vART)]
    body += [f"s_cmp_lt_u32 s{sT}, s{sEV}", f"s_cbranch_scc1 K2_LOOP"]
    check_body(body)
    DBG = opt("dbg", "")
    if "ell" in DBG:
        nb = []
        for b in body:
            if b.startswith("v_smfmac") and b.endswith(f"v{vIX}"): continue
            if b.startswith("v_smfmac") and "noA" in DBG: continue
            if b.startswith("ds_read_b64_tr") or b.startswith("ds_read_u8 v23") or b.startswith("v_lshl_add_u32 v23"): continue
            m = re.fullmatch(r"v_mul_f32 v(\d+), v(\d+), v\d+", b)
            if m:
                h, g = int(m.group(1)), int(m.group(2)); ft = 0 if g < vQ else 1; i = h - vQ
                nb.append(f"v_fmac_f32 v{NUM(ft)+i}, v{g}, v{h}")
                nb.append(f"v_add_f32 v{DEN(ft)+i}, v{DEN(ft)+i}, v{g}")
                continue
            nb.append(b)
        body = nb
    if "half" in DBG:
        body = [b for b in body if not (b.startswith("v_smfmac") and b.endswith(f"v{vIX}") and f"v[{vT2+4}:" in b)]
    if "nodma" in DBG: body = [b for b in body if not b.startswith("buffer_load")]
    emit(".p2align 6")
    L("K2_LOOP")
    for s in body:
        if s.endswith(":"): L(s[:-1])
        else: I(s)
    for uid in (1, 0):
        if uid == 0: L("K2_EV0")
        I(f"s_cmp_ge_u32 s{sT}, s{sN}")
        I("s_cbranch_scc1 K2_TAIL")
        if SBK:
            I(f"s_cmp_lg_u32 s{sT}, s{sSB}")
            I(f"s_cbranch_scc1 K2_SB{uid}")
            I("s_barrier")
            I(f"s_mov_b32 s{sSB}, -1")
            L(f"K2_SB{uid}")
        for k in range(3):
            I(f"s_cmp_lg_u32 s{sT}, s{sTH+k}")
            I(f"s_cbranch_scc1 K2_PR{uid}_{k}")
            I(f"s_setprio {2-k}")
            L(f"K2_PR{uid}_{k}")
        next_event()
        I("s_branch K2_LOOP" if uid else "s_branch K2_EVR0")
    L("K2_TAIL")
    for s in s_mfmas(NUM(1), vQ): I(s)
    L("K2_DONE")
    if SBK:
        I(f"s_cmp_lt_i32 s{sSB}, 0")
        I("s_cbranch_scc1 K2_SBD")
        I("s_barrier")
        I(f"s_mov_b32 s{sSB}, -1")
        L("K2_SBD")
    I(f"s_cmp_lg_u32 s{sMORE}, 0")
    I("s_cbranch_scc1 K2_SLOW")
    L("K2_EPI")
    stamp(6)
    I(f"v_lshlrev_b32 v{vT}, 4, v{lane}")
    for q in range(4):
        I(f"ds_read_b128 {rr(vX+4*q,4)}, v{vOWN} offset:{XO + 16*q}")
    for k in range(8):
        I(f"ds_read_b128 {rr(vWB+4*k,4)}, v{vT} offset:{WU + 1024*k}")
    I(f"v_and_b32 v{vQD+1}, 31, v{lane}")
    I(f"v_and_b32 v{vC1}, 32, v{lane}")
    I(f"v_mul_u32_u24 v{vC2}, 144, v{vQD+1}")
    I(f"v_lshrrev_b32 v{vQD+2}, 2, v{vC1}")
    I(f"v_lshl_add_u32 v{vQD+1}, v{vQD+1}, 6, v{vQD+2}")
    for s_ in range(2):
        I(f"ds_read2_b64 {rr(vT2+4*s_,4)}, v{vQD+1} offset0:{4*s_} offset1:{4*s_+2}")
    I("s_waitcnt lgkmcnt(10)")
    for i in range(16):
        I(f"v_lshlrev_b32 v{vWV+2*i}, 16, v{vX+i}")
        I(f"v_and_b32 v{vWV+2*i+1}, 0xffff0000, v{vX+i}")
    I(f"v_lshl_add_u32 v{vT+1}, v{vC1}, 1, v{vC2}")
    I(f"v_add_u32 v{vT+1}, s{sSTG}, v{vT+1}")
    I(f"s_sub_u32 s10, s{sF0}, s{sWIN}")
    I("s_mul_i32 s10, s10, 144")
    I(f"s_add_u32 s10, s10, s{sSTG}")
    I(f"v_lshrrev_b32 v{vQD}, 3, v{lane}")
    I(f"v_lshl_add_u32 v{vQD}, v{vQD}, 4, v{vT}")
    I(f"v_add_u32 v{vQD}, s10, v{vQD}")
    I(f"s_mul_i32 s10, s{sB}, {BN}")
    I(f"s_add_u32 s11, s10, s{sF1}")
    I(f"s_add_u32 s10, s10, s{sF0}")
    I(f"s_min_u32 s11, s11, {N}")
    I(f"s_min_u32 s10, s10, {N}")
    I("s_sub_u32 s11, s11, s10")
    I("s_lshl_b32 s10, s10, 7")
    I(f"s_add_u32 s{sOUT}, s{sOUT}, s10")
    I(f"s_addc_u32 s{sOUT+1}, s{sOUT+1}, 0")
    I(f"s_lshl_b32 s{sOUT+2}, s11, 7")
    for ft, D in ((0, vP), (1, vQ)):
        for q in range(4):
            I(f"s_waitcnt lgkmcnt({9 - 4*ft - q})")
            I(mfma(D, vWB+16*ft+4*q, vX+4*q, vWV+16*ft if q == 0 else D))
            for i in range(4):
                r = DEN(ft) + 4*q + i
                I(f"v_rcp_f32 v{r}, v{r}")
    I("s_waitcnt lgkmcnt(0)")
    for ft, D in ((0, vP), (1, vQ)):
        for i in range(16):
            I(f"v_mul_f32 v{NUM(ft)+i}, v{NUM(ft)+i}, v{DEN(ft)+i}")
        for i in range(8):
            I(f"v_cvt_pk_bf16_f32 v{DEN(ft)+i}, v{NUM(ft)+2*i}, v{NUM(ft)+2*i+1}")
        I(mfma(D, DEN(ft), vT2, D))
        I("s_nop 0")
        I(mfma(D, DEN(ft)+4, vT2+4, D))
    for q in range(4):
        for i in range(8*q, 8*q+8):
            I(f"v_max_f32 v{vP+i}, v{vP+i}, v{vWV+i}")
        for d in range(4):
            i = 4*q + d
            I(f"v_cvt_pk_bf16_f32 v{vR+i}, v{vP+2*i}, v{vP+2*i+1}")
        I(f"ds_write_b128 v{vT+1}, {rr(vR+4*q,4)} offset:{16*q}")
    for q in range(4):
        I(f"ds_read_b128 {rr(vX+4*q,4)}, v{vQD} offset:{8*144*q}")
    for q in range(4):
        I(f"s_waitcnt lgkmcnt({3-q})")
        I(f"buffer_store_dwordx4 {rr(vX+4*q,4)}, v{vT}, s[{sOUT}:{sOUT+3}], 0 offen offset:{1024*q}{pol(K2_OP)}")
    I(f"s_add_u32 s10, s2, s7")
    I("s_cmp_lg_u32 s10, 0")
    I("s_cbranch_scc1 K2_NOEP")
    I(f"v_mov_b32 v{vP}, {WS_EPOCH}")
    I(f"v_mov_b32 v{vP+1}, s{sEPN}")
    I(f"buffer_store_dword v{vP+1}, v{vP}, s[{sWS}:{sWS+3}], 0 offen sc1")
    L("K2_NOEP")
    if TS == 2 or opt("tsn", 0): I(f"s_mov_b32 s89, s{sN}")
    if TS == 8:
        I(f"s_sub_u32 s94, {opt('spin', 200000)}, s{sSPIN}")
        I(f"s_mul_i32 s94, s94, 100")
        I(f"s_add_u32 s94, s94, s88")
    if TS: I(f"s_mov_b32 s{sW}, s7")
    if TS == 4:
        I("s_mov_b64 exec, -1")
        I(f"s_lshl_b32 s87, s2, 11")
        I(f"s_add_u32 s87, s87, {WS_TS + 0x180000}")
        I(f"s_lshl_b32 s86, s{sW}, 8")
        I("s_add_u32 s87, s87, s86")
        I(f"v_lshl_add_u32 v{vP}, v{lane}, 2, s87")
        I(f"global_store_dword v{vP}, v255, s[8:9]")
    stamp_out(8, 8, sW, 8, 0x100000, vP)
    L("K2_END")
    I("s_endpgm")
    def spin():
        if opt("slp", 1): I(f"s_sleep {opt('slp', 1)}")
        I(f"s_sub_u32 s{sSPIN}, s{sSPIN}, 1")
        I("s_cbranch_scc1 K2_END")
    for i in range(4):
        L(f"K2_RETRY{i}")
        spin()
        I("s_waitcnt vmcnt(0)")
        for j in range(i, 4):
            I(f"v_bitop3_b32 v{u(0)}, v{vC+4*j+3}, s{sTAG}, v{vTM} bitop3:0x28")
            I(f"v_cmp_ne_u32 vcc, 0, v{u(0)}")
            I("s_and_b64 exec, exec, vcc")
            I(f"s_cbranch_execz K2_RT{i}{j}")
            cload(j)
            L(f"K2_RT{i}{j}")
            I("s_mov_b64 exec, -1")
        I("s_waitcnt vmcnt(0)")
        I(f"s_branch K2_CHK{i}")
    L("K1_EXT")
    I(f"s_mov_b32 s14, 0x0f0f0f0f")
    I(f"s_mov_b32 s15, s14")
    for i in range(4):
        I(f"ds_read_b32 v{oE+i}, v6 offset:{16*LROW*i + 32}")
        I(f"ds_read_b128 {rr(pD+8*i,4)}, v3 offset:{64*LROW*i + 128}")
    I("s_waitcnt lgkmcnt(0)")
    for i in range(4):
        I(f"v_cmp_le_u32 vcc, {33 << 24}, v{oH+i}")
        I(f"v_and_or_b32 v{pD+8*i+3}, v{oE+i}, v15, v{oH+i}")
        I("s_and_b64 exec, vcc, s[14:15]")
        I(f"s_cbranch_execz K1_EX{i}")
        I(f"buffer_store_dwordx4 {rr(pD+8*i,4)}, v4, s[{sST_}:{sST_+3}], s10 offen sc1")
        L(f"K1_EX{i}")
        I("s_mov_b64 exec, -1")
        I(f"s_add_u32 s10, s10, {64*RS}")
    I("s_branch K1_EXTR")
    L("K1_OVF")
    t = vAT
    for i in range(4):
        I(f"v_lshrrev_b32 v{t+i}, 16, v{oA+i}")
        I(f"v_lshrrev_b32 v{t+4}, 18, v{oA+i}")
        I(f"v_sub_u32 v{t+i}, v{t+i}, v{t+4}")
    I(f"v_add_u32 v{t+5}, v{t}, v{t+1}")
    I(f"v_add_u32 v{t+6}, v{t+5}, v{t+2}")
    I(f"v_add_u32 v{t+7}, v{t+6}, v{t+3}")
    I(f"v_mov_b32 v1, v{t+7}")
    wave_scan(1)
    I("s_nop 0")
    I(f"v_sub_u32 v{t+4}, v1, v{t+7}")
    I(f"v_add_u32 v{t+7}, v{t+4}, v{t+6}")
    I(f"v_add_u32 v{t+6}, v{t+4}, v{t+5}")
    I(f"v_add_u32 v{t+5}, v{t+4}, v{t}")
    for i in range(4):
        I(f"v_lshl_or_b32 v{t+4+i}, v{t+i}, 16, v{t+4+i}")
    I("s_waitcnt lgkmcnt(0)")
    I(f"ds_write_b128 v{l16}, {rr(t+4,4)} offset:{P_HDR}")
    for i in range(4): I(f"v_min_u32 v{oH+i}, 255, v{oH+i}")
    I(f"s_lshl_b32 s15, s{sB}, 2")
    I(f"s_add_u32 s15, s15, {WS_HDR}")
    srd(q0, 8, 9, NB*NCH*4, "s15")
    I(f"v_lshlrev_b32 v1, 12, v{lane}")
    for i in range(4):
        I(f"buffer_store_dword v{t+4+i}, v1, s[{q0}:{q0+3}], 0 offen offset:{1024*i} sc1")
    I(f"s_add_u32 s15, s13, {WS_RECS}")
    srd(q0, 8, 9, CH*4, "s15")
    I("s_lshr_b32 s15, s13, 2")
    I(f"s_add_u32 s15, s15, {WS_XB}")
    srd(q1, 8, 9, CH, "s15")
    I(f"v_cndmask_b32 v{pH+6}, v{pH}, v{pH+6}, s[{pm}:{pm+1}]")
    I(f"v_cndmask_b32 v{pK+6}, 0, v{pK+6}, s[{pm}:{pm+1}]")
    for i in range(7):
        I(f"ds_read_u16 v{pA+i}, v{pH+i} offset:{P_HDR - H0}")
    I("s_waitcnt lgkmcnt(0)")
    for i in range(7):
        I(f"v_lshrrev_b32 v1, 2, v{pK+i}")
        I(f"v_sub_u32 v1, v{pK+i}, v1")
        I(f"v_add_u32 v{pA+i}, v{pA+i}, v1")
        I(f"v_cmp_le_u32 vcc, {QCAP}, v{pK+i}")
        I(f"v_lshlrev_b32 v{pB+i}, 2, v{pA+i}")
        I("s_and_saveexec_b64 s[14:15], vcc")
        I(f"s_cbranch_execz K1_OV3_{i}")
        I(f"buffer_store_byte v{xb(i)}, v{pA+i}, s[{q1}:{q1+3}], 0 offen sc1")
        I(f"buffer_store_dword v{pS+i}, v{pB+i}, s[{q0}:{q0+3}], 0 offen sc1")
        L(f"K1_OV3_{i}")
        I("s_mov_b64 exec, -1")
    I("s_waitcnt vmcnt(0)")
    I("s_barrier")
    I("s_branch K1_OUT")
    xd, xa, xk, xrem, xeb, xad, xt = vACC + 44, vACC + 52, vACC + 58, vQ, vQ + 2, vX + 12, vX + 14
    L("K2_XT1")
    I(f"s_mov_b32 s{sXT}, 1")
    I(f"v_cmp_le_u32 vcc, {(QCAP + 1) << 24}, v{u(0)}")
    I(f"v_mov_b32 v{xt}, {FLAG + 4}")
    I("s_cbranch_vccz K2_XT1A")
    I(f"ds_write_b32 v{xt}, v{one}")
    L("K2_XT1A")
    I("s_mov_b32 s10, 0xf0f0f0f0")
    I("s_mov_b32 s11, s10")
    I(f"v_and_b32 v{xt}, 12, v{k4}")
    I(f"v_add_u32 v{xt}, 32, v{xt}")
    I(f"v_and_b32 v{xad}, 64, v{u(1)}")
    I(f"v_mul_u32_u24 v{xad}, 127, v{xad}")
    I(f"v_add_u32 v{xad}, v{xad}, v{u(1)}")
    I(f"v_add_u32 v{xad+1}, 16384, v{xad}")
    I(f"v_mov_b32 v{xt+1}, 0x7ffffff0")
    for g in range(2):
        I(f"v_cndmask_b32 v{xrem+g}, v{vC+8*g+3}, v{vC+8*g+7}, s[10:11]")
        I(f"v_cndmask_b32 v{xeb+g}, v{vEB+2*g}, v{vEB+2*g+1}, s[10:11]")
        remain(xrem + g, xrem + g, xt)
        I(f"v_cmp_lt_i32 vcc, 0, v{xrem+g}")
        I("s_nop 1")
        I(f"v_cndmask_b32 v{xad+g}, v{xt+1}, v{xad+g}, vcc")
    I(f"s_add_u32 s{sCEL}, s{sCEL}, {WS_EXT}")
    I(f"s_addc_u32 s{sCEL+1}, s{sCEL+1}, 0")
    def xloads2():
        for g in range(2):
            I(f"buffer_load_dwordx4 {rr(xd+4*g,4)}, v{xad+g}, s[{sCEL}:{sCEL+3}], 0 offen sc1")
    xloads2()
    I(f"v_med3_i32 v{xt}, v{xrem}, 0, 3")
    I(f"v_med3_i32 v{xt+1}, v{xrem+1}, 0, 3")
    I(f"v_add_u32 v{xt}, v{xt}, v{xt+1}")
    I(f"v_mov_b32 v{xt+1}, {FLAG}")
    I(f"v_cmpx_lt_u32 vcc, 0, v{xt}")
    I(f"ds_add_u32 v{xt+1}, v{xt}")
    I("s_mov_b64 exec, -1")
    I("s_branch K2_XT1R")
    def xvalid(tag):
        L(f"K2_XV{tag}")
        I("s_waitcnt vmcnt(0)")
        I("s_mov_b64 s[10:11], 0")
        for g in range(2):
            I(f"v_bitop3_b32 v{xt}, v{xd+4*g+3}, s{sTAG}, v{vTM} bitop3:0x28")
            I(f"v_cmp_lt_i32 s[{sTMP}:{sTMP+1}], 0, v{xrem+g}")
            I(f"v_cmp_ne_u32 vcc, 0, v{xt}")
            I(f"s_and_b64 vcc, vcc, s[{sTMP}:{sTMP+1}]")
            I("s_or_b64 s[10:11], s[10:11], vcc")
        I(f"s_cbranch_scc0 K2_XW{tag}")
        spin()
        xloads2()
        I(f"s_branch K2_XV{tag}")
        L(f"K2_XW{tag}")
    L("K2_XT2")
    xvalid("a")
    for g in range(2):
        for j in range(3):
            I(f"v_and_b32 v{xa+3*g+j}, 255, v{xd+4*g+j}")
            I(f"v_lshlrev_b32 v{xa+3*g+j}, 2, v{xa+3*g+j}")
            I(f"ds_read_b32 v{xa+3*g+j}, v{xa+3*g+j} offset:{MAP}")
        I(f"v_and_b32 v{xd+4*g+3}, 0x0f0f0f, v{xd+4*g+3}")
    I("s_waitcnt lgkmcnt(0)")
    for g in range(2):
        for j in range(3):
            i = 3*g + j
            I(f"v_perm_b32 v{xk+i}, v{xd+4*g+3}, v{xd+4*g+j}, s{sSEL+j}")
            I(f"v_lshl_add_u32 v{xk+i}, v{xk+i}, 5, v{xeb+g}")
            I(f"v_cmpx_lt_i32 vcc, {j}, v{xrem+g}")
            I(f"ds_add_rtn_u32 v{xa+i}, v{xa+i}, v{one} offset:{CNT}")
            I("s_mov_b64 exec, -1")
    I("s_waitcnt lgkmcnt(0)")
    for g in range(2):
        for j in range(3):
            i = 3*g + j
            I(f"v_cmpx_lt_i32 vcc, {j}, v{xrem+g}")
            I(f"ds_write2st64_b32 v{xa+i}, v{xd+4*g+j}, v{xk+i} offset0:0 offset1:{(R1-R0)//256}")
            I("s_mov_b64 exec, -1")
    I("s_branch K2_PADS0")
    L("K2_XT3")
    I(f"ds_read_b32 v{xt}, v{vMIN} offset:{CNT}")
    I("s_waitcnt lgkmcnt(0)")
    I(f"v_readfirstlane_b32 s{sEND}, v{xt}")
    I("s_nop 3")
    ntiles()
    I("s_branch K2_GO")
    L("K2_OVF")
    I(f"s_mov_b32 s{sCUR}, 1")
    I(f"s_mov_b32 s{sST}, 0")
    I(f"s_mov_b32 s{sSKIP}, 0")
    I(f"s_mov_b32 s{sEND}, s{sL}")
    pads(lane, vP, vP+1, vP+2)
    I(f"s_cmp_eq_u32 s{sXT}, 0")
    I("s_cbranch_scc1 K2_PADS0")
    xvalid("b")
    I("s_branch K2_PADS0")
    SB = 448
    t0, t1, t2, t3, t4 = vP, vP+1, vP+2, vP+3, vP+4
    L("K2_SLOW")
    I(f"s_add_u32 s{sR0}, s{sR0}, {SB}")
    I(f"s_cmp_lt_u32 s{sR0}, s{sCNT}")
    I("s_cbranch_scc1 K2_BATCH")
    L("K2_FIND")
    I(f"s_cmp_lg_u64 s[{sMSK}:{sMSK+1}], 0")
    I("s_cbranch_scc1 K2_GOT")
    I(f"s_add_u32 s{sCI}, s{sCI}, 1")
    I(f"s_cmp_ge_u32 s{sCI}, 4")
    I("s_cbranch_scc1 K2_EPI")
    I(f"s_mul_i32 s10, s{sB}, {RS}")
    I(f"s_lshl_b32 s11, s{sCI}, 13")
    I("s_add_u32 s10, s10, s11")
    I(f"v_lshlrev_b32 v{vT}, 7, v{lane}")
    I(f"buffer_load_ubyte v{vT}, v{vT}, s[{sWS}:{sWS+3}], s10 offen offset:15 sc1")
    I("s_waitcnt vmcnt(0)")
    I(f"v_cmp_lt_u32 s[{sMSK}:{sMSK+1}], s{sSKIP}, v{vT}")
    I("s_nop 3")
    I("s_branch K2_FIND")
    L("K2_GOT")
    I(f"s_ff1_i32_b64 s10, s[{sMSK}:{sMSK+1}]")
    I(f"s_bitset0_b64 s[{sMSK}:{sMSK+1}], s10")
    I(f"s_lshl_b32 s11, s{sCI}, 6")
    I(f"s_add_u32 s{sCUR}, s10, s11")
    I(f"s_mul_i32 s10, s{sB}, {RS}")
    I(f"s_lshl_b32 s11, s{sCUR}, 7")
    I("s_add_u32 s10, s10, s11")
    I(f"s_lshl_b32 s11, s{sB}, 8")
    I(f"s_add_u32 s11, s11, s{sCUR}")
    I(f"s_lshl_b32 s11, s11, 2")
    I(f"s_add_u32 s11, s11, {WS_HDR}")
    I(f"v_mov_b32 v{t0}, 0")
    I(f"buffer_load_ubyte v{t1}, v{t0}, s[{sWS}:{sWS+3}], s10 offen offset:15 sc1")
    I(f"buffer_load_dword v{t2}, v{t0}, s[{sWS}:{sWS+3}], s11 offen sc1")
    I("s_waitcnt vmcnt(0)")
    I(f"v_readfirstlane_b32 s10, v{t1}")
    I(f"v_readfirstlane_b32 s11, v{t2}")
    I("s_nop 3")
    I(f"s_and_b32 s{sST}, s11, 0xffff")
    I("s_lshr_b32 s11, s11, 16")
    I(f"s_lshr_b32 s{sCNT}, s10, 2")
    I(f"s_sub_u32 s{sCNT}, s10, s{sCNT}")
    I(f"s_cmp_gt_u32 s10, {QCAP}")
    I(f"s_cselect_b32 s{sCNT}, s11, s{sCNT}")
    I(f"s_lshr_b32 s10, s{sSKIP}, 2")
    I(f"s_sub_u32 s{sR0}, s{sSKIP}, s10")
    L("K2_BATCH")
    I("s_barrier")
    I(f"v_and_b32 v{t0}, 7, v{lane}")
    I(f"v_mul_u32_u24 v{t1}, {LCAP*4}, v{t0}")
    I(f"v_add_u32 v{t1}, {R0}, v{t1}")
    I(f"v_lshlrev_b32 v{t0}, 2, v{t0}")
    I(f"ds_write_b32 v{t0}, v{t1} offset:{CNT}")
    I(f"v_add_u32 v{t0}, s{sR0}, v{tid}")
    I(f"s_mul_i32 s10, s{sB}, {RS}")
    I(f"s_lshl_b32 s11, s{sCUR}, 7")
    I("s_add_u32 s10, s10, s11")
    I(f"v_mul_u32_u24 v{t2}, {KQ}, v{t0}")
    I(f"v_lshrrev_b32 v{t2}, 16, v{t2}")
    I(f"v_lshl_add_u32 v{t1}, v{t2}, 2, s10")
    I(f"v_add_u32 v{t3}, {WS_EXT - 128}, v{t1}")
    I(f"v_cmp_lt_u32 vcc, 31, v{t2}")
    I(f"s_mul_i32 s11, s{sCUR}, {CH}")
    I(f"s_add_u32 s11, s11, s{sST}")
    I(f"v_cndmask_b32 v{t1}, v{t1}, v{t3}, vcc")
    I(f"v_or_b32 v{t3}, 12, v{t1}")
    I(f"v_and_b32 v{t4}, 3, v{t2}")
    I(f"v_add_u32 v{t3}, v{t3}, v{t4}")
    I(f"v_cmp_le_u32 vcc, {QCAP}, v{t2}")
    I(f"v_add_u32 v{t2}, s11, v{t0}")
    I(f"v_add_u32 v{t4}, {WS_XB}, v{t2}")
    I(f"v_cndmask_b32 v{t3}, v{t3}, v{t4}, vcc")
    I(f"v_lshlrev_b32 v{t2}, 2, v{t2}")
    I(f"v_add_u32 v{t2}, {WS_RECS}, v{t2}")
    I(f"v_cndmask_b32 v{t1}, v{t1}, v{t2}, vcc")
    I(f"s_add_u32 s10, s{sR0}, {SB}")
    I(f"s_min_u32 s10, s10, s{sCNT}")
    I(f"v_cmp_gt_u32 vcc, s10, v{t0}")
    I(f"v_mov_b32 v{t2}, 0x7ffffff0")
    I(f"s_mul_i32 s{sTMP}, s{sCUR}, {CH*32}")
    I(f"v_cndmask_b32 v{t1}, v{t2}, v{t1}, vcc")
    I(f"v_cndmask_b32 v{t3}, v{t2}, v{t3}, vcc")
    I(f"buffer_load_dword v{t1}, v{t1}, s[{sWS}:{sWS+3}], 0 offen sc1")
    I(f"buffer_load_ubyte v{t3}, v{t3}, s[{sWS}:{sWS+3}], 0 offen sc1")
    I("s_waitcnt lgkmcnt(0)")
    I("s_barrier")
    I("s_and_saveexec_b64 s[10:11], vcc")
    I("s_waitcnt vmcnt(0)")
    I(f"v_and_b32 v{t0}, 255, v{t1}")
    I(f"v_lshlrev_b32 v{t0}, 2, v{t0}")
    I(f"ds_read_b32 v{t0}, v{t0} offset:{MAP}")
    I(f"v_bfe_u32 v{t2}, v{t1}, 8, 8")
    I(f"v_and_b32 v{t3}, 15, v{t3}")
    I(f"v_lshl_or_b32 v{t3}, v{t3}, 8, v{t2}")
    I(f"v_mov_b32 v{t2}, 4")
    I(f"v_lshl_add_u32 v{t3}, v{t3}, 5, s{sTMP}")
    I("s_waitcnt lgkmcnt(0)")
    I(f"ds_add_rtn_u32 v{t0}, v{t0}, v{t2} offset:{CNT}")
    I("s_waitcnt lgkmcnt(0)")
    I(f"ds_write2st64_b32 v{t0}, v{t1}, v{t3} offset0:0 offset1:{(R1-R0)//256}")
    I("s_mov_b64 exec, -1")
    I("s_waitcnt lgkmcnt(0)")
    I("s_barrier")
    I(f"s_lshl_b32 s10, s{sW}, 2")
    I(f"v_mov_b32 v{t0}, s10")
    I(f"ds_read_b32 v{t0}, v{t0} offset:{CNT}")
    for i in range(8): I(f"v_mov_b32 v{vT2+i}, 0")
    listaddr(lane, t1, t2)
    I("s_waitcnt lgkmcnt(0)")
    I(f"v_readfirstlane_b32 s{sEND}, v{t0}")
    I("s_nop 3")
    pads(lane, t0, t1, t2)
    L("K2_LAST")
    I("s_branch K2_GO")

def regs_of(tok):
    tok = tok.strip()
    m = re.fullmatch(r"v\[(\d+):(\d+)\]", tok)
    if m: return list(range(int(m.group(1)), int(m.group(2)) + 1))
    m = re.fullmatch(r"v(\d+)", tok)
    if m: return [int(m.group(1))]
    return []
def parse(ins):
    op, _, rest = ins.partition(" ")
    ops = [o.strip().split(" ")[0] for o in rest.split(",")] if rest else []
    if op.startswith("v_mfma"):
        return "mfma", regs_of(ops[0]), regs_of(ops[1]) + regs_of(ops[2]), regs_of(ops[3])
    if op.startswith("v_smfmac"):
        return "mfma", regs_of(ops[0]), regs_of(ops[1]) + regs_of(ops[2]) + regs_of(ops[3]), regs_of(ops[0])
    if op.startswith("v_"):
        k = "trans" if op in ("v_exp_f32", "v_rcp_f32") else "valu"
        return k, regs_of(ops[0]), sum((regs_of(o) for o in ops[1:]), []), []
    if op.startswith("ds_read"):
        return "ds", regs_of(ops[0]), regs_of(ops[1]), []
    if op.startswith("buffer_load"):
        return "vm", [], regs_of(ops[0]) + regs_of(ops[1]), []
    return "other", [], [], []
def check_body(body):
    seq = [b for b in body if not b.endswith(":")]
    for skip_dma in (False, True):
        s2 = []
        sk = False
        for b in body:
            if skip_dma and b.startswith("s_cbranch_scc0 K2_ND"):
                s2.append(b); sk = True; continue
            if b.startswith("K2_ND"): sk = False
            if b.endswith(":") or sk: continue
            s2.append(b)
        seq = s2 * 3
        last = {}
        lastc = {}
        pend = []
        for i, ins in enumerate(seq):
            k, d, s, c = parse(ins)
            m = re.search(r"lgkmcnt\((\d+)\)", ins)
            if m:
                n = int(m.group(1))
                while len(pend) > n: pend.pop(0)
            pr = set(sum(pend, []))
            for r in d + s + c:
                assert r not in pr or i < len(s2), f"pending LDS reg v{r} used by {ins} @{i}"
            for r in s + c + d:
                if r not in last: continue
                pk, pi = last[r]; dist = i - pi - 1
                if pk == "mfma":
                    if k == "mfma" and r in c and r not in s: need = 0
                    elif k == "mfma" and r in d and r not in s: need = 0
                    else: need = 12
                elif pk in ("valu", "trans") and k == "mfma" and r in s + c: need = 2
                elif pk == "trans" and k in ("valu", "mfma", "ds", "vm") and r in s: need = 1
                else: need = 0
                assert dist >= need, f"hazard {pk}->{k} v{r} dist {dist} need {need}: {ins} @{i}"
            if k in ("valu", "trans"):
                for r in d:
                    if r in lastc: assert i - lastc[r] - 1 >= 7, f"srcC WAR {ins}"
            for r in c: lastc[r] = i
            for r in d: last[r] = (k, i)
            if k == "ds":
                pend.append(d); assert len(pend) <= 15

hdr = open("/code/" + NAME + ".s.ref").read().split("\n")
for l in hdr:
    if l.startswith("; Override"): break
    out.append(l)
LEAK = opt("leak", "")
if LEAK:
    out.append(f"; @launch kernel={KN} grid=(256,1,1) block=(512,1,1) lds={K2_LDS}")
    out.append("; @launch kernel=spin_kernel grid=(1,1,1) block=(64,1,1) lds=0")
else: out.append(f"; @launch grid=(256,1,1) block=(512,1,1) lds={K2_LDS}")
emit('.amdgcn_target "amdgcn-amd-amdhsa--gfx950"\n.text')
k2()
KL = [(KN, 256, 102)]
if LEAK:
    kind, k = LEAK[:3], int(LEAK[3:])
    emit(".globl spin_kernel\n.p2align 8\n.type spin_kernel,@function\nspin_kernel:")
    I("s_memrealtime s[12:13]")
    I("s_cmp_lg_u32 s2, 0")
    I("s_cbranch_scc1 SP_END")
    I("s_load_dwordx2 s[4:5], s[0:1], 88")
    I("s_waitcnt lgkmcnt(0)")
    I(f"s_add_u32 s4, s4, {WS_TS + 0x100000}")
    I("s_addc_u32 s5, s5, 0")
    I("v_lshlrev_b32 v1, 5, v0")
    for j in range(31):
        I(f"global_load_dword v{2+j}, v1, s[4:5]")
        I(f"global_load_dword v{34+j}, v1, s[4:5] offset:{4*(k%8)}")
        I("v_add_u32 v1, 2048, v1")
    I("s_waitcnt vmcnt(0)")
    I("v_readfirstlane_b32 s6, v2")
    I("s_nop 1")
    I("s_sub_u32 s6, s6, 1000")
    for j in range(31):
        I(f"v_subrev_u32 v{2+j}, s6, v{2+j}")
        I(f"v_subrev_u32 v{34+j}, s6, v{34+j}")
    op = {"max": "max_u32", "min": "min_u32", "avg": "add_u32", "now": "max_u32"}[kind]
    for j in range(1, 31):
        I(f"v_min_u32 v2, v2, v{2+j}")
        I(f"v_{op} v34, v34, v{34+j}")
    I("s_nop 1")
    I("v_readlane_b32 s8, v2, 0")
    I("v_readlane_b32 s9, v34, 0")
    for l in range(1, 64):
        I(f"v_readlane_b32 s10, v2, {l}")
        I(f"v_readlane_b32 s11, v34, {l}")
        I("s_min_u32 s8, s8, s10")
        I(f"s_{op} s9, s9, s11")
    if kind == "avg":
        I(f"s_mul_hi_u32 s9, s9, {(1 << 32) // (31*64)}")
    if kind == "now":
        I("s_sub_u32 s8, s12, s6")
        I("s_sub_u32 s6, s8, s9")
    else: I("s_sub_u32 s6, s9, s8")
    I("s_lshl_b32 s6, s6, 2")
    I("s_min_u32 s6, s6, 30000")
    I("s_memrealtime s[8:9]")
    I("s_waitcnt lgkmcnt(0)")
    L("SP_L")
    I("s_memrealtime s[10:11]")
    I("s_waitcnt lgkmcnt(0)")
    I("s_sub_u32 s7, s10, s8")
    I("s_cmp_lt_u32 s7, s6")
    I("s_cbranch_scc1 SP_L")
    L("SP_END")
    I("s_endpgm")
    KL.append(("spin_kernel", 72, 16))
emit('.section .rodata,"a"')
for name, vg, sg in KL:
    emit(f""".p2align 6
.amdhsa_kernel {name}
  .amdhsa_next_free_vgpr {vg}
  .amdhsa_next_free_sgpr {sg}
  .amdhsa_accum_offset {vg}
  .amdhsa_group_segment_fixed_size 0
  .amdhsa_kernarg_size 96
  .amdhsa_user_sgpr_count 2
  .amdhsa_user_sgpr_kernarg_segment_ptr 1
  .amdhsa_system_sgpr_workgroup_id_x 1
.end_amdhsa_kernel""")
path = sys.argv[1] if len(sys.argv) > 1 else "/code/" + NAME + ".s"
open(path, "w").write("\n".join(out) + "\n")
print("wrote", path, len(out), "lines; lds", K2_LDS)
```

```python
import sys, re, math

NAME = "standalone__edge_featured_mpnn_gatedgcn__graph"
OPT = dict(kv.split("=") for kv in sys.argv[2:])
def opt(k, d):
    v = OPT.get(k)
    if v is None: return d
    return type(d)(v)

N, E = 50000, 800000
NCH, CH = 256, 3125
NB, BN = 256, 196
CELLB = 128
RS = 257 * CELLB
WS_EXT = NB * RS
QCAP = 48
KQ = 87382
LROW = 4 * (QCAP + 4)
WS_RECS = 0x1100000
WS_XB = 0x1500000
WS_HDR = 0x1600000
WS_EPOCH = 0x1700000
WS_USED = WS_EPOCH + 128
WI_U, WI_B, WI_V, WI_A, WI_C = 0, 8192, 16384, 24576, 32768
TMASK = 0x00f0f0f0
T0 = opt("t0", 12500)
LPH = (N - T0 + 2) // 3
SOFF = LPH - T0
PHM = (1 << 30) // LPH
assert 0 <= SOFF and N + SOFF <= 65536 and ((N - 1 + SOFF) * PHM) >> 30 <= 3
LOG2E = 1.4426950408889634
import struct
def f2u(f): return struct.unpack("<I", struct.pack("<f", f))[0]

out = []
def emit(s=""):
    for l in s.strip("\n").split("\n"):
        out.append(l.rstrip())
def I(s): out.append("    " + s)
def L(s): out.append(s + ":")
def C(s): out.append("    ; " + s)

def srd(d, lo, hi, size, add=None):
    if add is None:
        I(f"s_mov_b32 s{d}, s{lo}")
        I(f"s_mov_b32 s{d+1}, s{hi}")
    else:
        I(f"s_add_u32 s{d}, s{lo}, {add}")
        I(f"s_addc_u32 s{d+1}, s{hi}, 0")
    I(f"s_mov_b32 s{d+2}, {size}")
    I(f"s_mov_b32 s{d+3}, 0x20000")

def wave_scan(v, fill=None, half=False):
    def gap():
        if fill and len(fill) >= 2:
            I(fill.pop(0)); I(fill.pop(0))
        else: I("s_nop 1")
    for sh in (1, 2, 4, 8):
        gap()
        I(f"v_add_u32_dpp v{v}, v{v}, v{v} row_shr:{sh} row_mask:0xf bank_mask:0xf bound_ctrl:0")
    gap()
    I(f"v_add_u32_dpp v{v}, v{v}, v{v} row_bcast:15 row_mask:0xa bank_mask:0xf")
    if half: return
    gap()
    I(f"v_add_u32_dpp v{v}, v{v}, v{v} row_bcast:31 row_mask:0xc bank_mask:0xf")

TS = opt("ts", 0)
WS_TS = 0x3000000
SMAP = {1: {0: 0, 'd': 1, 'i': 2, 'w': 3, 2: 4, 5: 5, 6: 6, 7: 7},
        5: {0: 0, 'w': 1, 2: 2, 'a': 3, 'b': 4, 'c': 5, 3: 6, 7: 7},
        6: {0: 0, 'p': 1, 'q': 2, 'd': 3, 'i': 4, 'o': 5, 'k': 6, 7: 7},
        8: {0: 0, 'i': 1, 'w': 2, 1: 3, 2: 4, 3: 5, 7: 7},
        10: {0: 0, 'd': 1, 'i': 2, 'o': 3, 'A': 4, 'w': 5, 2: 6, 7: 7},
        9: {0: 0, 'q': 1, 'd': 2, 'i': 3, 'w': 4, 2: 5, 3: 6, 7: 7},
        7: {0: 0, 'k': 1, 'w': 2, 1: 3, 's': 4, 2: 5, 3: 6, 7: 7}}
def stamp(i):
    if TS in SMAP:
        i = SMAP[TS].get(i)
        if i is None: return
    elif isinstance(i, str): return
    if TS == 3:
        if i not in (0, 5, 6, 7): return
        I("s_memtime s[98:99]")
        I("s_waitcnt lgkmcnt(0)")
        I(f"s_mov_b32 s{88+{5:1,6:2,0:3,7:4}[i]}, s98")
    if TS:
        I("s_memrealtime s[98:99]" if TS != 2 else "s_memtime s[98:99]")
        I("s_waitcnt lgkmcnt(0)")
        I(f"s_mov_b32 s{88+i}, s98")
def stamp_out(n, wslo, swave, nw, off, v):
    if not TS: return
    I("s_waitcnt vmcnt(0)")
    stamp(7)
    I("s_mov_b64 exec, 1")
    I(f"s_mul_i32 s87, s2, {nw}")
    I(f"s_add_u32 s87, s87, s{swave}")
    I("s_lshl_b32 s87, s87, 5")
    I(f"s_add_u32 s87, s87, {WS_TS + off}")
    I(f"v_mov_b32 v{v}, s87")
    for i in range(n):
        I(f"v_mov_b32 v{v+1}, s{88+i}")
        I(f"global_store_dword v{v}, v{v+1}, s[{wslo}:{wslo+1}] offset:{4*i}")
K1_LD = opt("k1ld", "nt")
def pol(p): return (" " + p.replace("_", " ")) if p else ""

SM1 = opt("sm1", 1)
TAB, ZROW, CNT, FLAG, HIST, MAP = 0, 2048, 2112, 2176, 2304, 6400
T1B = 8448
LCAP = 544
LMAX = LCAP - 64
LUT = 8448 + 2304
R0 = LUT + 4096
R1 = R0 + 8 * LCAP * 4
assert R1 % 256 == 0 and R0 % 256 == 0
WL = R0
WU = R1 + 8 * LCAP * 4
XO = WU + 8192
STG = XO + 26112
SLOT = 5184
DT = 264
PRIV = 4352
WST = SLOT + PRIV
K2_LDS = STG + 8 * WST
assert K2_LDS <= 163840, K2_LDS

vWB, vWV, vWC, vAT = 0, 32, 64, 72
vACC = 88
vX, vE, vT1, vT2 = 152, 168, 172, 180
vP, vQ, vR = 188, 204, 220
vQD = 236
vR1 = 240
vCP, vCH, vAX, vAE, vC1, vC2, vARX, vART, vARP = 241, 242, 243, 244, 245, 246, 247, 248, 249
vL1 = 250
vARE = 251
vT = 252
DEN = lambda ft: vACC + 32 * ft
NUM = lambda ft: vACC + 32 * ft + 16
def rr(a, n): return f"v[{a}:{a+n-1}]"
def mfma(d, a, b, c=None):
    return f"v_mfma_f32_32x32x16_bf16 {rr(d,16)}, {rr(a,4)}, {rr(b,4)}, " + ("0" if c is None else rr(c, 16))

K2_XP = opt("k2x", "")
K2_EP = opt("k2e", "")
K2_CP = opt("k2c", "")
K2_OP = opt("k2o", "sc1")

sW, sB = 3, 12
sX, sEP, sWS, sOUT = 16, 20, 24, 28
sCEL, sWI = 32, 36
sM = 40
sT, sN, sSTG, s128, sL, sSKIP, sMORE = 72, 73, 74, 75, 76, 77, 78
sCI, sCUR, sR0, sCNT, sST, sMSK = 79, 80, 81, 82, 83, 84
sTMP = 86
sWIN = 96

def dma_tile(par):
    r = []
    for i in range(4):
        r.append(f"s_add_u32 m0, s{sSTG}, {par*SLOT + i*1040}")
        r.append(f"v_mad_u32_u16 v{vQD+i}, v{vQD+i}, s{s128}, v{vCP} op_sel:[1,0,0,0]")
        r.append(f"buffer_load_dwordx4 v{vQD+i}, s[{sX}:{sX+3}], 0 offen{pol(K2_XP)} lds")
    r.append(f"s_add_u32 m0, s{sSTG}, {par*SLOT + 4160}")
    r.append(f"v_add_u32 v{vR1}, v{vR1}, v{vCH}")
    r.append(f"buffer_load_dwordx4 v{vR1}, s[{sEP}:{sEP+3}], 0 offen{pol(K2_EP)} lds")
    return r

def valu_stream(G, H):
    s = []
    ex = [(f"v_exp_f32 v{G+i}, v{G+i}", 8) for i in range(16)]
    ad = [(f"v_add_f32 v{G+i}, 1.0, v{G+i}", 4) for i in range(16)]
    rc = [(f"v_rcp_f32 v{G+i}, v{G+i}", 8) for i in range(16)]
    mu = [(f"v_mul_f32 v{H+i}, v{G+i}, v{H+i}", 4) for i in range(16)]
    ce = [(f"v_cvt_pk_bf16_f32 v{G+i}, v{G+2*i}, v{G+2*i+1}", 4) for i in range(8)]
    cm = [(f"v_cvt_pk_bf16_f32 v{H+i}, v{H+2*i}, v{H+2*i+1}", 4) for i in range(8)]
    PK = opt("pk", 0)
    pa = [(f"v_pk_add_f32 v[{G+2*i}:{G+2*i+1}], v[{G+2*i}:{G+2*i+1}], 1.0 op_sel_hi:[1,0]", 4) for i in range(8)]
    pm = [(f"v_pk_mul_f32 v[{H+2*i}:{H+2*i+1}], v[{G+2*i}:{G+2*i+1}], v[{H+2*i}:{H+2*i+1}]", 4) for i in range(8)]
    if PK & 2:
        s += ex[:8] + ex[8:10] + pa[:4] + ex[10:] + rc[:2] + pa[4:] + rc[2:]
    elif PK & 4:
        s += ex + [("s_nop 0", 0)] + pa + rc
    else:
        for i in range(16 + 4):
            if i < 16: s.append(ex[i])
            if 0 <= i - 2 < 16: s.append(ad[i-2])
            if 0 <= i - 4 < 16: s.append(rc[i-4])
    s += pm if PK & 1 else mu
    return s

def interleave(valu, mf, extra, pos, spacing=opt('sp', 28)):
    res = []
    cum = 0; k = 0
    for ins, c in valu:
        while k < len(mf) and cum >= pos[k] * spacing:
            res.extend(extra.get(('b', k), []))
            res.append(mf[k])
            res.extend(extra.get(('a', k), []))
            k += 1
        res.append(ins); cum += c
    assert k == len(mf)
    return res

def g_mfmas(D, ft):
    m = [mfma(D, vE, vWC + 4*ft)]
    if SM1:
        m += [mfma(D, vX + 4*q, vWB + 16*ft + 4*q, D) for q in range(4)]
        m += [f"v_smfmac_f32_32x32x32_bf16 {rr(D,16)}, {rr(vT1,4)}, {rr(vAT+8*ft,8)}, v{vT1+4}"]
        return m
    m += [mfma(D, vT1 + 4*s, vAT + 8*ft + 4*s, D) for s in range(2)]
    m += [mfma(D, vX + 4*q, vWB + 16*ft + 4*q, D) for q in range(4)]
    return m
def h_mfmas(D, ft):
    return [mfma(D, vX + 4*q, vWV + 16*ft + 4*q, None if q == 0 else D) for q in range(4)]
vIX = vT1 + 5
def s_mfmas(acc, src):
    return [f"v_smfmac_f32_32x32x32_bf16 {rr(acc,16)}, {rr(vT2+4*s,4)}, {rr(src+8*s,8)}, v{vIX}" for s in range(2)]
def t1_reads():
    return [f"ds_read_b128 {rr(vT1,4)}, v{vL1} offset:{T1B}", f"ds_read_b32 v{vT1+4}, v{vL1} offset:{T1B+16}"]

H0_, DL_, E_, LAST_ = 2, 7, 8, 13
POS = [float(x) / 28 for x in opt("pos", "0_24_48_72_96_120_148_176_204_228_252_276_300_352").split("_")]
def phaseA(par):
    o = par * 128
    mf = s_mfmas(NUM(1), vQ) + h_mfmas(vQ, 0) + s_mfmas(DEN(1), vR) + g_mfmas(vR, 1)
    ex = {}
    ex[('a', 0)] = [f"ds_read_u8 v{vQD+u}, v{vART} offset:{o + 16*(u>>1) + 4*(u&1)}" for u in range(4)] + \
                   [f"ds_read_u8 v{vL1}, v{vARP} offset:{o + 128}"]
    ex[('a', H0_+3)] = ["s_waitcnt lgkmcnt(0)"] + [f"v_lshl_add_u32 v{vQD+u}, v{vQD+u}, 6, v{vC2}" for u in range(4)] + \
                       [f"v_lshl_add_u32 v{vL1}, v{vL1}, 6, v{vC1}"]
    ex[('a', DL_)] = [f"ds_read_b64_tr_b16 v[{vT2+2*u}:{vT2+2*u+1}], v{vQD+u}" for u in range(4)]
    ex[('a', LAST_)] = t1_reads() + [f"ds_read_b128 {rr(vQD,4)}, v{vARX} offset:{o + 2*128}",
                                     f"ds_read_b32 v{vR1}, v{vARE} offset:{o + 2*128}",
                                     f"s_add_u32 s{sT}, s{sT}, 1"]
    return interleave(valu_stream(vP, vQ), mf, ex, POS)

def phaseB(par):
    mf = s_mfmas(NUM(0), vQ) + h_mfmas(vQ, 1) + s_mfmas(DEN(0), vP) + g_mfmas(vP, 0)
    ex = {}
    ex[('b', 0)] = ["s_waitcnt lgkmcnt(4)"]
    ex[('b', H0_)] = ["s_waitcnt vmcnt(0)", f"ds_read_b128 {rr(vE,4)}, v{vAE}"]
    if TS == 4:
        ex[('b', H0_)] = ["s_memtime s[94:95]", "s_waitcnt vmcnt(0) lgkmcnt(0)", "s_memtime s[98:99]", "s_waitcnt lgkmcnt(0)", "s_sub_u32 s98, s98, s94",
                          "s_add_u32 m0, s72, 15", "s_nop 0", "v_writelane_b32 v255, s98, m0", f"ds_read_b128 {rr(vE,4)}, v{vAE}"]
    for q in range(4):
        ex[('a', H0_+q)] = [f"ds_read_b128 {rr(vX+4*q,4)}, v{vAX} offset:{16*q}"]
    ex[('b', E_)] = ["s_waitcnt lgkmcnt(4)"]
    for q in range(4): ex[('b', E_+1+q)] = [f"s_waitcnt lgkmcnt({3-q})"]
    ex[('a', E_+4)] = [f"s_cmp_lt_i32 s{sT}, s{sN1}",
                       f"s_cbranch_scc0 K2_ND_{par}"] + dma_tile(0) + [f"K2_ND_{par}:"]
    return interleave(valu_stream(vR, vQ), mf, ex, POS)

sF0, sF1, sEND = 13, 14, 15
sXT = 97
sN1 = 38
sSB = 37
SBK = opt('sbk', 0)
sNUL = 39
sTH = 4
PRIO = opt("prio", 1)

def listaddr(lane, t0, t3):
    I(f"v_bfe_u32 v{t0}, v{lane}, 3, 2")
    I(f"v_lshl_add_u32 v{vARX}, v{t0}, 5, s{sL}")
    I(f"v_lshrrev_b32 v{t0}, 5, v{lane}")
    I(f"v_lshl_add_u32 v{vARX}, v{t0}, 4, v{vARX}")
    I(f"v_and_b32 v{t0}, 3, v{lane}")
    I(f"v_and_b32 v{t3}, 28, v{lane}")
    I(f"v_lshl_add_u32 v{t0}, v{t0}, 5, v{t3}")
    I(f"v_add_u32 v{vARP}, s{sL}, v{t0}")
    I(f"v_lshrrev_b32 v{t3}, 1, v{lane}")
    I(f"v_lshl_add_u32 v{vARE}, v{t3}, 2, s{sL}")
    I(f"v_add_u32 v{vARE}, {R1-R0}, v{vARE}")
    I(f"v_bfe_u32 v{t0}, v{lane}, 2, 2")
    I(f"v_lshl_add_u32 v{vART}, v{t0}, 5, s{sL}")
    I(f"v_lshrrev_b32 v{t0}, 5, v{lane}")
    I(f"v_lshl_add_u32 v{vART}, v{t0}, 3, v{vART}")

vOWN = vT + 1
def pads(lane, t0, t1, t2):
    W2 = f"offset0:0 offset1:{(R1-R0)//256}"
    I(f"v_mov_b32 v{t2}, 0xffff0000")
    I(f"v_or_b32 v{t1}, s{sNUL}, v{t2}")
    I(f"v_mov_b32 v{t2}, 0x7fffff00")
    I(f"v_lshl_add_u32 v{t0}, v{lane}, 2, s{sEND}")
    I(f"s_sub_u32 s{sN}, s{sEND}, s{sL}")
    I(f"ds_write2st64_b32 v{t0}, v{t1}, v{t2} {W2}")
    I(f"s_add_u32 s{sN}, s{sN}, 127")
    I(f"s_lshr_b32 s{sN}, s{sN}, 7")
    I(f"s_sub_i32 s{sN1}, s{sN}, 1")

KN = NAME + "_kernel"
P_HIST, P_HDR = MAP, WU
H0 = 1536
P_EIMG = STG
P_CIMG = P_EIMG + 64 * LROW
assert P_CIMG + 256 * LROW <= K2_LDS
sTAG, sEPN, sSPIN = 36, 100, 101
def k2():
    emit(f"""
.globl {KN}
.p2align 8
.type {KN},@function
{KN}:""")
    I("s_cmp_ge_u32 s2, 256")
    I("s_cbranch_scc1 K2_END")
    stamp(0)
    KA = sM
    I(f"s_load_dwordx4 s[{KA+4}:{KA+7}], s[0:1], 16")
    I(f"s_load_dwordx2 s[8:9], s[0:1], 88")
    I(f"s_load_dwordx4 s[{KA}:{KA+3}], s[0:1], 0")
    I(f"s_load_dwordx8 s[{KA+8}:{KA+15}], s[0:1], 32")
    I(f"s_load_dwordx4 s[{KA+16}:{KA+19}], s[0:1], 64")
    tid, lane = 255, 254
    CPF = opt("cpf", 192)
    if CPF:
        I(f"s_getpc_b64 s[{sTMP}:{sTMP+1}]")
        L("K2_PC")
        I(f"v_lshlrev_b32 v{vT}, 7, v0")
        I(f"v_min_u32 v{vT}, K2_LAST-K2_PC, v{vT}")
        I(f"v_cmp_gt_u32 vcc, {CPF}, v0")
        I("s_cbranch_vccz K2_NOCPF")
        I(f"global_load_dword v{vT+1}, v{vT}, s[{sTMP}:{sTMP+1}]")
        L("K2_NOCPF")
    vC = vACC
    vA = vACC + 16
    hh = vACC + 28
    vRK = vR
    vMIN = vQ + 8
    vTM = vQ + 10
    u = lambda i: vP + i
    k4, ecb, hda, one, l16 = vE, vE + 1, vE + 2, vE + 3, vT1
    pD, pS, pH, pK, pA, pB, pI, pW = 8, 16, 24, 32, 40, 48, 56, 64
    I(f"v_mov_b32 v{tid}, v0")
    I(f"v_lshrrev_b32 v{u(0)}, 6, v0")
    I(f"v_and_b32 v{lane}, 63, v0")
    I(f"v_readfirstlane_b32 s7, v{u(0)}")
    I("s_and_b32 s10, s2, 7")
    I("s_lshr_b32 s11, s2, 3")
    I("s_lshl_b32 s10, s10, 5")
    I(f"s_add_u32 s{sB}, s10, s11")
    I(f"s_mul_i32 s13, s{sB}, {CH*4}")
    I(f"v_lshlrev_b32 v{u(1)}, 4, v0")
    I(f"v_lshlrev_b32 v1, 3, v0")
    I(f"v_lshlrev_b32 v2, 2, v0")
    I(f"v_mov_b32 v3, 0")
    I(f"v_and_b32 v4, 0x3fc, v2")
    I(f"ds_write_b32 v4, v3 offset:{P_HIST}")
    ASYM = opt("asym", 16)
    I(f"s_and_b32 s10, s7, 3")
    I(f"s_lshr_b32 s{sW}, s7, 2")
    I(f"s_lshl1_add_u32 s{sW}, s10, s{sW}")
    I(f"s_xor_b32 s{sW}, s{sW}, 1")
    I(f"s_movk_i32 s14, 8192")
    I(f"s_movk_i32 s15, 12288")
    I("s_waitcnt lgkmcnt(0)")
    stamp('p')
    vq = []
    def younger(tag): return len(vq) - 1 - max(i for i, t in enumerate(vq) if t == tag)
    q0, q1 = 64, 68
    srd(q0, KA+6, KA+7, CH*4, "s13")
    srd(q1, KA+4, KA+5, CH*4, "s13")
    for r_, q_ in ((pD, q0), (pS, q1)):
        I(f"buffer_load_dwordx4 {rr(r_,4)}, v{u(1)}, s[{q_}:{q_+3}], 0 offen{pol(K1_LD)}")
        I(f"buffer_load_dwordx2 {rr(r_+4,2)}, v1, s[{q_}:{q_+3}], s14 offen{pol(K1_LD)}")
        I(f"buffer_load_dword v{r_+6}, v2, s[{q_}:{q_+3}], s15 offen{pol(K1_LD)}")
        vq += ["D" if r_ == pD else "S"] * 3
        if r_ == pD and opt("db", 1): I("s_barrier")
    I(f"s_add_u32 s10, s8, {WS_EPOCH}")
    I("s_addc_u32 s11, s9, 0")
    I(f"s_load_dword s{sEPN}, s[10:11], 0")
    if not opt("db", 1): I("s_barrier")
    I(f"v_lshrrev_b32 v1, 3, v0")
    I(f"v_lshlrev_b32 v{hda}, 2, v1")
    I(f"v_and_b32 v{u(9)}, 7, v0")
    I(f"v_and_b32 v5, 16, v0")
    I(f"v_lshlrev_b32 v5, 1, v5")
    I(f"v_xor_b32 v5, v5, v{u(1)}")
    I(f"v_lshlrev_b32 v{l16}, 4, v{lane}")
    I(f"v_and_b32 v{vCP}, 16, v{lane}")
    I(f"v_lshlrev_b32 v{vCP}, 2, v{vCP}")
    I(f"v_xor_b32 v{vX}, v{vCP}, v{l16}")
    I(f"v_and_b32 v{vCP}, 0x70, v{vX}")
    if SOFF: I(f"v_subrev_u32 v{vCP}, {SOFF * 128}, v{vCP}")
    srd(sX, KA, KA+1, N*128)
    WLPOS = len(out)
    mark = len(out)
    I(f"s_mul_i32 s11, s{sW}, 49")
    I("s_sub_i32 s11, s11, 7")
    I("s_ashr_i32 s11, s11, 1")
    I(f"s_max_i32 s{sWIN}, s11, 0")
    I(f"v_lshrrev_b32 v{u(5)}, 5, v{lane}")
    def wloads():
        srd(q0, KA+10, KA+11, 8192)
        I(f"buffer_load_dwordx4 {rr(pW,4)}, v5, s[{q0}:{q0+3}], 0 offen"); vq.append("B")
        srd(q1, KA+12, KA+13, 2048)
        I(f"buffer_load_dwordx4 {rr(pW+4,4)}, v5, s[{q1}:{q1+3}], 0 offen"); vq.append("B")
        I(f"s_lshl_b32 s10, s7, 10")
        for kp, off in ((KA+8, WI_A), (KA+16, WI_V), (KA+14, WI_U)):
            I(f"s_mov_b32 s{q0}, s{kp}")
            I(f"s_mov_b32 s{q0+1}, s{kp+1}")
            I(f"s_add_u32 m0, s10, {WL + off}")
            I("s_nop 0")
            I(f"buffer_load_dwordx4 v5, s[{q0}:{q0+3}], 0 offen lds"); vq.append("W")
    def xloads():
        I(f"s_mul_i32 s10, s{sB}, {BN*128}")
        I(f"s_lshl_b32 s11, s7, 10")
        I(f"s_add_u32 s10, s10, s11")
        I(f"s_mul_i32 s11, s7, 1040")
        I(f"s_cmp_lg_u32 s7, 0")
        I(f"s_cbranch_scc1 K2_NOX3")
        for i in (3, 0, 1, 2):
            I(f"s_add_u32 m0, s11, {XO + i*8320}")
            I(f"s_add_u32 s14, s10, {i*8192}")
            I(f"buffer_load_dwordx4 v{vX}, s[{sX}:{sX+3}], s14 offen lds")
            if i == 3: L("K2_NOX3")
            else: vq.append("X")
    srd(sEP, KA+2, KA+3, E*32)
    srd(sOUT, KA+18, KA+19, N*128)
    srd(sWS, 8, 9, WS_USED)
    I(f"v_lshrrev_b32 v{u(6)}, 5, v{tid}")
    I(f"v_and_b32 v{u(7)}, 15, v{tid}")
    I(f"v_cmp_eq_u32 vcc, v{u(6)}, v{u(7)}")
    I(f"v_and_b32 v{u(6)}, 16, v{tid}")
    I(f"v_mov_b32 v{u(7)}, 0x3f80")
    I(f"v_lshlrev_b32 v{u(7)}, v{u(6)}, v{u(7)}")
    I(f"v_cndmask_b32 v{u(7)}, 0, v{u(7)}, vcc")
    I(f"v_lshlrev_b32 v{u(6)}, 2, v{tid}")
    I(f"v_mov_b32 v{u(8)}, 0")
    I(f"ds_write_b32 v{u(6)}, v{u(7)}")
    if SM1:
        I(f"v_bfe_u32 v{u(7)}, v{tid}, 3, 1")
        I(f"v_and_b32 v{u(13)}, 7, v{tid}")
        I(f"v_lshl_add_u32 v{u(7)}, v{u(7)}, 2, v{u(13)}")
        I(f"v_lshrrev_b32 v{u(12)}, 6, v{tid}")
        I(f"v_cmp_eq_u32 vcc, v{u(7)}, v{u(12)}")
        I(f"v_bfe_u32 v{u(12)}, v{tid}, 4, 2")
        I(f"v_mov_b32 v{u(7)}, 0x3f80")
        I(f"v_cndmask_b32 v{u(7)}, 0, v{u(7)}, vcc")
        I(f"v_cmp_lt_u32 vcc, 3, v{u(13)}")
        I(f"v_mul_u32_u24 v{u(12)}, 0x5555, v{u(12)}")
        I(f"v_and_b32 v{u(13)}, 60, v{u(6)}")
        I(f"v_cndmask_b32 v{u(7)}, v{u(7)}, v{u(12)}, vcc")
        I(f"ds_write_b32 v{u(6)}, v{u(7)} offset:{T1B}")
        I(f"ds_write_b32 v{u(13)}, v{u(8)} offset:{T1B + 2048}")
    I(f"ds_write_b32 v{u(6)}, v{u(8)} offset:{ZROW}")
    I(f"ds_write2st64_b32 v{u(6)}, v{u(8)}, v{u(8)} offset0:{HIST//256} offset1:{HIST//256 + 8}")
    I(f"s_movk_i32 s{s128}, 128")
    I(f"s_mul_i32 s{sSTG}, s{sW}, {WST}")
    I(f"s_add_u32 s{sSTG}, s{sSTG}, {STG}")
    I(f"s_movk_i32 s{sSKIP}, {QCAP}")
    I(f"s_add_u32 s{sNUL}, s{sWIN}, 32")
    I(f"s_lshl_b32 s11, s{sWIN}, 6")
    I(f"s_mov_b32 s{sXT}, 0")
    I(f"v_bfe_u32 v{u(6)}, v{lane}, 4, 1")
    I(f"v_and_b32 v{vCH}, 1, v{lane}")
    I(f"v_lshlrev_b32 v{vCH}, 4, v{vCH}")
    I(f"v_lshlrev_b32 v{vC1}, 5, v{u(5)}")
    I(f"v_subrev_u32 v{vC1}, s11, v{vC1}")
    I(f"v_and_b32 v{u(7)}, 3, v{lane}")
    I(f"v_lshlrev_b32 v{u(7)}, 3, v{u(7)}")
    I(f"v_lshl_add_u32 v{vC2}, v{u(6)}, 5, v{u(7)}")
    I(f"v_subrev_u32 v{vC2}, s11, v{vC2}")
    I(f"v_bfe_u32 v{u(8)}, v{lane}, 2, 2")
    I(f"v_mul_u32_u24 v{u(8)}, 1040, v{u(8)}")
    I(f"v_lshl_add_u32 v{u(8)}, v{u(6)}, 9, v{u(8)}")
    I(f"v_lshl_add_u32 v{u(8)}, v{u(7)}, 4, v{u(8)}")
    I(f"v_bfe_u32 v{u(6)}, v{lane}, 1, 1")
    I(f"v_xor_b32 v{u(6)}, v{u(6)}, v{u(5)}")
    I(f"v_lshl_add_u32 v{u(8)}, v{u(6)}, 6, v{u(8)}")
    I(f"v_add_u32 v{vAX}, s{sSTG}, v{u(8)}")
    I(f"v_bfe_u32 v{u(6)}, v{lane}, 2, 3")
    I(f"v_add_u32 v{u(6)}, v{u(6)}, v{u(7)}")
    I(f"v_lshl_add_u32 v{u(6)}, v{u(6)}, 1, v{u(5)}")
    I(f"v_lshl_add_u32 v{vAE}, v{u(6)}, 4, s{sSTG}")
    I(f"v_add_u32 v{vAE}, 4160, v{vAE}")
    I(f"s_mul_i32 s{sL}, s{sW}, {LCAP*4}")
    I(f"s_add_u32 s{sL}, s{sL}, {R0}")
    listaddr(lane, u(6), u(7))
    def ownaddr(d, lab, t):
        I(f"v_and_b32 v{d}, 31, v{lab}")
        I(f"v_add_u32 v{d}, s{sWIN}, v{d}")
        I(f"v_bfe_u32 v{t}, v{d}, 1, 1")
        I(f"v_xor_b32 v{t}, v{t}, v{u(5)}")
        I(f"v_lshlrev_b32 v{t}, 6, v{t}")
        I(f"v_lshl_add_u32 v{t}, v{d}, 7, v{t}")
        I(f"v_lshrrev_b32 v{d}, 3, v{d}")
        I(f"v_lshl_add_u32 v{d}, v{d}, 4, v{t}")
    ownaddr(u(14), lane, u(6))
    I(f"v_lshrrev_b32 v{u(6)}, 1, v{lane}")
    I(f"v_xor_b32 v{u(6)}, v{u(6)}, v{lane}")
    I(f"v_and_b32 v{u(6)}, 4, v{u(6)}")
    I(f"v_mul_u32_u24 v{u(6)}, 3, v{u(6)}")
    I(f"v_xor_b32 v{u(6)}, v{u(6)}, v{lane}")
    ownaddr(u(3), u(6), u(7))
    I(f"v_mov_b32 v{vIX}, 0xdddd")
    lo0, hi0, lo1, hi1 = sT, sN, sMSK, sMSK + 1
    I(f"s_mul_i32 s10, s{sW}, 49")
    I(f"s_sub_i32 s{lo0}, s10, 7")
    I(f"s_ashr_i32 s{lo0}, s{lo0}, 1")
    I(f"s_add_i32 s{hi0}, s10, 8")
    I(f"s_ashr_i32 s{hi0}, s{hi0}, 1")
    I(f"s_add_i32 s{lo1}, s10, 42")
    I(f"s_ashr_i32 s{lo1}, s{lo1}, 1")
    I(f"s_add_i32 s{hi1}, s{lo0}, 32")
    I(f"s_cmp_eq_u32 s{sW}, 7")
    I(f"s_cselect_b32 s{lo1}, {BN}, s{lo1}")
    I(f"s_cselect_b32 s{hi1}, {BN}, s{hi1}")
    I(f"v_lshlrev_b32 v{k4}, 2, v{u(9)}")
    vEB = vQ + 4
    I(f"v_mul_u32_u24 v{vEB}, {CH*8}, v{hda}")
    for i in range(1, 4):
        I(f"v_add_u32 v{vEB+i}, {64*i*CH*32}, v{vEB}")
    I(f"v_mov_b32 v{one}, 4")
    I(f"v_mov_b32 v{ecb}, 1")
    I(f"v_and_b32 v{u(11)}, 31, v{lane}")
    I(f"v_add_u32 v{u(11)}, s{sWIN}, v{u(11)}")
    I(f"v_lshlrev_b32 v{u(12)}, 4, v{u(11)}")
    I(f"v_lshl_add_u32 v{u(12)}, v{u(5)}, 3, v{u(12)}")
    for i in range(4): I(f"v_mov_b64 v[{vT2+2*i}:{vT2+2*i+1}], 0")
    I(f"s_lshl_b32 s{sEND}, s{sW}, 2")
    I(f"v_mov_b32 v{vMIN}, s{sEND}")
    I(f"v_lshlrev_b32 v{vMIN+1}, 2, v{u(11)}")
    static = out[mark:]; del out[mark:]
    WLP = opt("wl", 2)
    if WLP == 0: wloads()
    XP_ = opt("xp", 4)
    if XP_ == 0: xloads()
    SP = opt("sp0", 0)
    SPN = opt("spn", 1000)
    if SP:
        out.extend(static[:SPN]); static = static[SPN:]
    c1, c2, c3 = 60, 61, 62
    pm = 78
    pX = 23
    xb = lambda i: (23, 23, 23, 23, 31, 31, 39)[i]
    I(f"s_mov_b32 s{c1}, 85599")
    I(f"s_mov_b32 s{c2}, {-BN & 0xffffffff}")
    I(f"s_movk_i32 s{c3}, {H0}")
    I(f"v_mov_b32 v7, {KQ}")
    I(f"s_mov_b32 s10, {SOFF << 16}")
    I(f"v_lshl_add_u32 v{pI}, v{lane}, 10, s10")
    for i in range(1, 4): I(f"v_add_u32 v{pI+i}, {i << 8}, v{pI}")
    I(f"v_and_b32 v{pI+4}, 127, v{tid}")
    I(f"v_lshl_add_u32 v{pI+4}, v{pI+4}, 9, s10")
    I(f"v_add_u32 v{pI+5}, 256, v{pI+4}")
    I(f"v_lshl_add_u32 v{pI+6}, v{lane}, 8, s10")
    I(f"v_lshrrev_b32 v23, 6, v{tid}")
    I(f"v_lshrrev_b32 v31, 7, v{tid}")
    I(f"v_add_u32 v31, 8, v31")
    I(f"v_mov_b32 v39, 12")
    I(f"v_cmp_gt_u32 s[{pm}:{pm+1}], {CH - 3072}, v{tid}")
    I(f"s_mov_b32 s11, {RS}")
    I(f"v_lshlrev_b32 v3, 4, v{u(9)}")
    I(f"v_mad_u32_u24 v4, v1, s11, v3")
    I(f"v_mul_u32_u24 v6, {LROW // 4}, v1")
    I(f"v_lshl_add_u32 v6, v{u(9)}, 2, v6")
    I(f"v_lshlrev_b32 v3, 2, v6")
    I(f"v_add_u32 v3, {P_CIMG}, v3")
    I(f"v_add_u32 v6, {P_EIMG}, v6")
    I(f"v_mov_b32 v{vTM}, {TMASK:#x}")
    I(f"v_mov_b32 v15, 0x0f0f0f")
    X0 = (LROW // 16) * H0
    sSO = sCI
    def cload(i):
        so = "0" if i == 0 else f"s{sSO+i-1}"
        I(f"buffer_load_dwordx4 {rr(vC+4*i,4)}, v{u(1)}, s[{sCEL}:{sCEL+3}], {so} offen sc1")
    def cloads():
        if opt("dly", 0): I(f"s_sleep {opt('dly', 0)}")
        stamp('w')
        for i in range(4): cload(i); vq.append("C")
    def prod(idx):
        n = len(idx)
        for i in idx: I(f"v_mul_u32_u24 v{pB+i}, s{c1}, v{pD+i}")
        for i in idx: I(f"v_lshrrev_b32 v{pB+i}, 24, v{pB+i}")
        for i in idx:
            I(f"v_lshl_add_u32 v{pH+i}, v{pB+i}, 2, s{c3}")
            I(f"ds_add_rtn_u32 v{pK+i}, v{pH+i}, v7 offset:{P_HIST - H0}")
        for i in idx:
            I(f"v_mad_i32_i24 v{pD+i}, v{pB+i}, s{c2}, v{pD+i}")
            I(f"v_or_b32 v{pD+i}, v{pD+i}, v{pI+i}")
        for j, i in enumerate(idx):
            I(f"s_waitcnt lgkmcnt({n - 1})")
            I(f"v_lshrrev_b32 v{pK+i}, 16, v{pK+i}")
            I(f"v_min_u32 v{pA+i}, {QCAP}, v{pK+i}")
            I(f"v_mad_u32_u24 v{pA+i}, v{pH+i}, {LROW // 16}, v{pA+i}")
            I(f"v_lshlrev_b32 v{pB+i}, 2, v{pA+i}")
            I(f"ds_write_b8 v{pA+i}, v{xb(i)} offset:{P_EIMG - X0}")
    def prod2(idx):
        for i in idx:
            I(f"v_lshl_add_u32 v{pS+i}, v{pS+i}, 16, v{pD+i}")
            I(f"ds_write_b32 v{pB+i}, v{pS+i} offset:{P_CIMG - 4*X0}")
    if WLP == 1: wloads()
    stamp('q')
    I(f"s_waitcnt vmcnt({younger('D')})")
    stamp('d')
    prod(range(6))
    I(f"s_cmp_lg_u32 s7, 0")
    I("s_cbranch_scc1 K1_NO7")
    I(f"s_mov_b64 exec, s[{pm}:{pm+1}]")
    I("s_waitcnt lgkmcnt(0)")
    prod([6])
    I(f"s_waitcnt vmcnt({younger('S')})")
    prod2([6])
    I("s_mov_b64 exec, -1")
    L("K1_NO7")
    if WLP == 2: wloads()
    I(f"s_waitcnt vmcnt({younger('S')})")
    prod2(range(6))
    if XP_ == 4: xloads()
    I(f"s_lshl_b32 s15, s{sB}, 7")
    sST_ = sCEL
    srd(sST_, 8, 9, 511*RS + CELLB, "s15")
    I("s_waitcnt lgkmcnt(0)")
    I(f"s_add_u32 s{sEPN}, s{sEPN}, 1")
    I(f"s_and_b32 s10, s{sEPN}, 15")
    I(f"s_and_b32 s11, s{sEPN}, 0xf0")
    I(f"s_mul_i32 s{sTAG}, s10, 0x1010")
    I(f"s_lshl_b32 s11, s11, 16")
    I(f"s_xor_b32 s{sTAG}, s{sTAG}, 0xf000")
    I(f"s_or_b32 s{sTAG}, s{sTAG}, s11")
    I(f"s_mov_b32 s{sSPIN}, {opt('spin', 200000)}")
    I("s_barrier")
    stamp('i')
    oC, oE, oH, oA = vACC, vACC + 16, vACC + 20, vACC + 24
    I(f"ds_read_b128 {rr(oA,4)}, v{l16} offset:{P_HIST}")
    for i in range(4):
        I(f"ds_read_u16 v{oH+i}, v{hda} offset:{P_HIST + 256*i + 2}")
        I(f"ds_read_b32 v{oE+i}, v6 offset:{16*LROW*i}")
        I(f"ds_read_b128 {rr(oC+4*i,4)}, v3 offset:{64*LROW*i}")
    I("s_waitcnt lgkmcnt(12)")
    I(f"v_max3_u32 v1, v{oA}, v{oA+1}, v{oA+2}")
    I(f"v_max_u32 v1, v1, v{oA+3}")
    I(f"v_cmp_le_u32 vcc, {(QCAP + 1) << 16}, v1")
    I("s_mov_b32 s10, 0")
    I("s_cbranch_vccnz K1_OVF")
    L("K1_OUT")
    for i in range(4):
        r = oC + 4*i
        I(f"s_waitcnt lgkmcnt({9 - 3*i})")
        I(f"v_lshl_or_b32 v{oH+i}, v{oH+i}, 24, s{sTAG}")
        I(f"v_and_or_b32 v{r+3}, v{oE+i}, v15, v{oH+i}")
        I(f"buffer_store_dwordx4 {rr(r,4)}, v4, s[{sST_}:{sST_+3}], s10 offen sc1"); vq.append("O")
        I(f"s_add_u32 s10, s10, {64*RS}")
    I(f"v_max3_u32 v1, v{oH}, v{oH+1}, v{oH+2}")
    I(f"v_max_u32 v1, v1, v{oH+3}")
    I(f"v_cmp_le_u32 vcc, {33 << 24}, v1")
    I("s_cbranch_vccnz K1_EXT")
    L("K1_EXTR")
    stamp('o')
    if TS == 10:
        I("s_waitcnt vmcnt(0)")
        stamp('A')
    if opt("bar", 0): I("s_barrier")
    out.extend(static)
    I(f"s_mul_i32 s10, s{sB}, {RS}")
    srd(sCEL, 8, 9, NCH*CELLB, "s10")
    for k in (1, 2, 3):
        I(f"s_movk_i32 s{sSO+k-1}, {64*CELLB*k}")
    CP = opt("cp", 2)
    if CP == 0: cloads()
    I(f"s_mov_b32 s10, {f2u(-LOG2E):#x}")
    I(f"s_waitcnt vmcnt({younger('B')})")
    for i in range(8):
        I(f"v_lshlrev_b32 v{vAT+2*i}, 16, v{pW+i}")
        I(f"v_and_b32 v{vAT+2*i+1}, 0xffff0000, v{pW+i}")
    for i in range(16): I(f"v_mul_f32 v{vAT+i}, s10, v{vAT+i}")
    for i in range(8): I(f"v_cvt_pk_bf16_f32 v{pW+i}, v{vAT+2*i}, v{vAT+2*i+1}")
    I(f"ds_write_b128 v{u(1)}, {rr(pW,4)} offset:{WL + WI_B}")
    I(f"s_cmp_ge_u32 s7, 2")
    I("s_cbranch_scc1 K1_NOWC")
    I(f"ds_write_b128 v{u(1)}, {rr(pW+4,4)} offset:{WL + WI_C}")
    L("K1_NOWC")
    w0, w1, wc0, wc1, xa_ = vT1 + 1, vT1 + 2, vT1 + 3, vT1 + 4, vT
    I(f"v_bfe_u32 v{w0}, v{lane}, 2, 2")
    I(f"v_lshlrev_b32 v{w0}, 7, v{w0}")
    I(f"v_lshl_add_u32 v{w0}, v{vCH}, 2, v{w0}")
    I(f"v_and_b32 v{w1}, 16, v{lane}")
    I(f"v_and_b32 v{wc0}, 2, v{lane}")
    I(f"v_lshl_add_u32 v{w1}, v{wc0}, 2, v{w1}")
    I(f"v_and_b32 v{wc0}, 8, v{lane}")
    I(f"v_lshl_add_u32 v{w1}, v{wc0}, 2, v{w1}")
    I(f"v_add_u32 v{w0}, v{w0}, v{w1}")
    I(f"v_lshl_add_u32 v{wc0}, v{u(5)}, 10, v{w0}")
    I(f"v_lshl_add_u32 v{w0}, v{u(5)}, 12, v{w0}")
    I(f"v_xor_b32 v{w1}, 32, v{w0}")
    I(f"v_xor_b32 v{wc1}, 32, v{wc0}")
    def wtr(reg, img, ft, s_, c=False):
        ad = (wc0, wc1)[ft] if c else (w0, w1)[ft]
        return [f"ds_read_b64_tr_b16 {rr(reg+2*h_,2)}, v{ad} offset:{WL + img + 1024*s_ + 512*h_}" for h_ in range(2)]
    I(f"s_lshl_b32 s10, s7, 10")
    I(f"s_and_b32 s11, s7, 4")
    I(f"s_mul_i32 s11, s11, {8 - 1024}")
    I(f"s_add_u32 s11, s11, s10")
    I(f"v_xor_b32 v{xa_}, s11, v{w0}")
    I(f"s_waitcnt vmcnt({min(younger('W'), younger('X'))}) lgkmcnt(0)")
    I("s_barrier")
    if CP == 1: cloads()
    vWA, vAD = vWV, vACC + 32
    for h_ in range(2): I(f"ds_read_b64_tr_b16 {rr(vAT+2*h_,2)}, v{xa_} offset:{WL + WI_U + 512*h_}")
    for q in range(4): I(f"ds_read_b128 {rr(vX+4*q,4)}, v{u(3)} offset:{XO + 16*q}")
    I(f"v_add_u32 v{xa_}, s10, v{l16}")
    rest = []
    for reg, img in ((vWB, WI_B), (vWC, WI_C), (vWV, WI_V)):
        for ft in range(2):
            if img == WI_C: rest += wtr(vWC + 4*ft, WI_C, ft, 0, True)
            else:
                for s_ in range(4): rest += wtr(reg + 16*ft + 4*s_, img, ft, s_)
    for k in range(8):
        if k == 4:
            I("s_waitcnt lgkmcnt(5)")
            I(f"ds_write_b128 v{xa_}, {rr(vAT,4)} offset:{WU}")
        for x_ in wtr(vWA + 4*k, WI_A, k >> 2, k & 3): I(x_)
    for k in range(8):
        I("s_waitcnt lgkmcnt(12)")
        I(mfma(vAD + 16*(k >> 2), vX + 4*(k & 3), vWA + 4*k, None if k & 3 == 0 else vAD + 16*(k >> 2)))
        for x_ in rest[2*k:2*k+2]: I(x_)
    rest = rest[16:]
    while rest:
        I("s_waitcnt lgkmcnt(8)")
        for x_ in rest[:6]: I(x_)
        rest = rest[6:]
    if CP == 3: cloads()
    I(f"s_mov_b32 s10, {f2u(-LOG2E):#x}")
    for i in range(32):
        I(f"v_mul_f32 v{vAD+i}, s10, v{vAD+i}")
    for i in range(16):
        I(f"v_cvt_pk_bf16_f32 v{vAT+i}, v{vAD+2*i}, v{vAD+2*i+1}")
    stamp('k')
    sPH = 5
    I(f"s_mov_b32 s{sPH}, {PHM}")
    if CP == 2: cloads()
    SW1 = "dst_sel:DWORD dst_unused:UNUSED_PAD src0_sel:DWORD src1_sel:WORD_1"
    def haddr(d, r):
        return [f"v_mul_u32_u24_sdwa v{d}, s{sPH}, v{r} {SW1}", f"v_alignbit_b32 v{d}, v{r}, v{d}, 28", f"v_and_b32 v{d}, 0xffc, v{d}"]
    def remain(d, r, k):
        I(f"v_sub_u32_sdwa v{d}, v{r}, v{k} dst_sel:DWORD dst_unused:UNUSED_PAD src0_sel:BYTE_3 src1_sel:DWORD")
    for i in range(4):
        L(f"K2_CHK{i}")
        I(f"s_waitcnt vmcnt({3 - i})")
        r = vC + 4*i
        I(f"v_bitop3_b32 v{u(0)}, v{r+3}, s{sTAG}, v{vTM} bitop3:0x28")
        I(f"v_cmp_ne_u32 vcc, 0, v{u(0)}")
        remain(u(0), r + 3, k4)
        hs = [haddr(vA+3*i+j, r+j) for j in range(3)]
        for j in range(3): I(hs[j][0])
        I(f"s_cbranch_vccnz K2_RETRY{i}")
        if i == 0: stamp(1)
        for j in range(3):
            m = sM + 2*(3*i+j)
            I(f"v_cmp_lt_i32 s[{m}:{m+1}], {j}, v{u(0)}")
        for st in (1, 2):
            for j in range(3): I(hs[j][st])
        for j in range(3):
            m = sM + 2*(3*i+j)
            I(f"s_mov_b64 exec, s[{m}:{m+1}]")
            I(f"ds_add_rtn_u32 v{vRK+3*i+j}, v{vA+3*i+j}, v{one} offset:{HIST}")
        I("s_mov_b64 exec, -1")
    I(f"v_max3_u32 v{u(0)}, v{vC+3}, v{vC+7}, v{vC+11}")
    I(f"v_max_u32 v{u(0)}, v{u(0)}, v{vC+15}")
    I(f"v_cmp_le_u32 vcc, {33 << 24}, v{u(0)}")
    sSEL = sM + 24
    for j in range(3): I(f"s_mov_b32 s{sSEL+j}, {0x0c0c0001 | (4 + j) << 8:#x}")
    I(f"s_mov_b32 s{sSEL+3}, 0x05040100")
    I("s_cbranch_vccnz K2_XT1")
    L("K2_XT1R")
    vEO = vX
    fill = []
    for i in range(4):
        fill.append(f"v_and_b32 v{vC+4*i+3}, 0x0f0f0f, v{vC+4*i+3}")
    for i in range(4):
        for j in range(3): fill.append(f"v_perm_b32 v{vEO+3*i+j}, v{vC+4*i+3}, v{vC+4*i+j}, s{sSEL+j}")
    for i in range(4):
        for j in range(3): fill.append(f"v_lshl_add_u32 v{vEO+3*i+j}, v{vEO+3*i+j}, 5, v{vEB+i}")
    EPF, XPF = opt("epf", 0), opt("xpf", 0)
    def epref(fill):
        dm = vT1 + 6
        if XPF:
            I(f"s_lshr_b32 s10, s2, 3")
            I(f"s_mul_i32 s10, s10, {XPF}")
            I(f"v_cmp_gt_u32 vcc, {XPF}, v{tid}")
            I(f"v_add_lshl_u32 v{dm}, v{tid}, s10, 7")
            I("s_and_b64 exec, exec, vcc")
            I("s_cbranch_execz K2_NOXPF")
            I(f"buffer_load_dword v{dm}, v{dm}, s[{sX}:{sX+3}], 0 offen")
            L("K2_NOXPF")
            I("s_mov_b64 exec, -1")
        while fill: I(fill.pop(0))
        I(f"s_mov_b32 s10, {(SOFF + opt('et', T0)) << 16:#x}")
        for s in range(12):
            m = sM + 2*s
            I(f"s_mov_b64 exec, s[{m}:{m+1}]")
            I(f"v_cmpx_gt_u32 vcc, s10, v{vC+4*(s//3)+s%3}")
            I(f"buffer_load_dword v{dm}, v{vEO+s}, s[{sEP}:{sEP+3}], 0 offen")
        I("s_mov_b64 exec, -1")
    if EPF == 1: epref(fill)
    MT, MTP = opt("mt", 0), opt("mtp", 0)
    def mtouch():
        dm = vT1 + 6
        I(f"s_mul_i32 s10, s{sB}, {CH*32}")
        for k in range((MT + 511) // 512):
            n = min(512, MT - 512*k)
            I(f"v_min_u32 v{dm+1}, {n - 1}, v{tid}")
            I(f"v_lshlrev_b32 v{dm+1}, {opt('mts', 7)}, v{dm+1}")
            if n < 512:
                I(f"s_cmp_ge_u32 s7, {(n + 63) // 64}")
                I(f"s_cbranch_scc1 K2_NOMT{k}")
            I(f"buffer_load_dword v{dm}, v{dm+1}, s[{sEP}:{sEP+3}], s10 offen")
            if n < 512: L(f"K2_NOMT{k}")
            I(f"s_add_u32 s10, s10, 65536")
    if MT and MTP == 0: mtouch()
    stamp('s')
    I("s_waitcnt lgkmcnt(0)")
    I("s_barrier")
    stamp(2)
    c, p, tot, sc = u(0), u(4), u(8), u(9)
    own, ownn, owna = u(10), u(11), u(12)
    SD = "dst_sel:DWORD dst_unused:UNUSED_PAD src0_sel:WORD_0 src1_sel:WORD_0"
    for i in range(4):
        I(f"ds_read_b128 {rr(hh+4*i,4)}, v{l16} offset:{HIST + 1024*i}")
    I(f"ds_read_b64 v[{u(6)}:{u(7)}], v{owna} offset:{HIST}")
    if EPF == 2: epref(fill)
    if MT and MTP == 1: mtouch()
    for k in range(8):
        if fill: I(fill.pop(0))
    for i in range(4):
        I(f"s_waitcnt lgkmcnt({4 - i})")
        I(f"v_add_u32_sdwa v{c+i}, v{hh+4*i}, v{hh+4*i+1} {SD}")
        I(f"v_add_u32_sdwa v{hh+4*i}, v{hh+4*i+2}, v{hh+4*i+3} {SD}")
        I(f"v_add_u32 v{c+i}, v{c+i}, v{hh+4*i}")
    I(f"v_lshl_or_b32 v{p}, v{c+1}, 16, v{c}")
    I(f"v_lshl_or_b32 v{p+1}, v{c+3}, 16, v{c+2}")
    I("s_waitcnt lgkmcnt(0)")
    I(f"v_perm_b32 v{own}, v{u(7)}, v{u(6)}, s{sSEL+3}")
    for dp in ["row_shr:%d row_mask:0xf bank_mask:0xf bound_ctrl:0" % sh for sh in (1, 2, 4, 8)] + \
              ["row_bcast:15 row_mask:0xa bank_mask:0xf", "row_bcast:31 row_mask:0xc bank_mask:0xf"]:
        I(f"v_add_u32_dpp v{p}, v{p}, v{p} {dp}")
        I(f"v_add_u32_dpp v{p+1}, v{p+1}, v{p+1} {dp}")
        I(fill.pop(0) if fill else "s_nop 0")
    I(f"v_readlane_b32 s10, v{p}, 63")
    I(f"v_readlane_b32 s11, v{p+1}, 63")
    for i in range(4):
        I(f"v_lshlrev_b32_sdwa v{hh+i}, v{ecb}, v{p+(i>>1)} dst_sel:DWORD dst_unused:UNUSED_PAD src0_sel:DWORD src1_sel:WORD_{i&1}")
        I(f"v_sub_u32 v{c+i}, v{hh+i}, v{c+i}")
    b1, b2, b3 = 4, 5, 6
    I(f"s_and_b32 s{b1}, s10, 0xffff")
    I("s_lshr_b32 s10, s10, 16")
    I(f"s_add_u32 s{b2}, s{b1}, s10")
    I("s_and_b32 s10, s11, 0xffff")
    I(f"s_add_u32 s{b3}, s{b2}, s10")
    I("s_lshr_b32 s11, s11, 16")
    I(f"s_add_u32 s10, s{b3}, s11")
    for i, b in ((1, b1), (2, b2), (3, b3)):
        I(f"v_lshl_add_u32 v{c+i}, s{b}, 1, v{c+i}")
    KV = opt("kv", "")
    if KV:
        klo, khi, kref, ksh = [int(x) for x in KV.split("_")]
        I(f"s_sub_i32 s{sSB}, {4*kref}, s10")
        I(f"s_ashr_i32 s{sSB}, s{sSB}, {ksh + 2}")
        I(f"s_max_i32 s{sSB}, s{sSB}, {klo}")
        I(f"s_min_i32 s{sSB}, s{sSB}, {khi}")
    I("s_lshr_b32 s11, s10, 5")
    I(f"s_add_u32 s11, s11, {ASYM}")
    I("s_and_b32 s11, s11, -32")
    I(f"s_sub_i32 s11, s11, {ASYM + 32*opt('sh', 0)}")
    I("s_lshl_b32 s11, s11, 3")
    I("s_lshr_b32 s10, s10, 1")
    I(f"s_lshr_b32 s{sF0}, s{sW}, 1")
    I(f"s_mul_i32 s{sF0}, s{sF0}, s10")
    I(f"s_add_i32 s11, s11, s{sF0}")
    I(f"s_add_i32 s10, s10, s{sF0}")
    I(f"s_bitcmp1_b32 s{sW}, 0")
    I(f"s_cselect_b32 s{sEND}, s11, s{sF0}")
    I("s_cselect_b32 s10, s10, s11")
    I(f"s_mov_b32 s{sF0}, 0")
    I(f"s_mov_b32 s{sF1}, 0")
    for i in range(4):
        I(f"v_cmp_gt_i32 vcc, s{sEND}, v{c+i}")
        I(f"v_cmp_gt_i32 s[{sTMP}:{sTMP+1}], s10, v{c+i}")
        I("s_bcnt1_i32_b64 s11, vcc")
        I(f"s_add_u32 s{sF0}, s{sF0}, s11")
        I(f"s_bcnt1_i32_b64 s11, s[{sTMP}:{sTMP+1}]")
        I(f"s_add_u32 s{sF1}, s{sF1}, s11")
    I(f"s_max_i32 s{sF0}, s{sF0}, s{lo0}")
    I(f"s_min_i32 s{sF0}, s{sF0}, s{hi0}")
    I(f"s_max_i32 s{sF1}, s{sF1}, s{lo1}")
    I(f"s_min_i32 s{sF1}, s{sF1}, s{hi1}")
    I(f"v_cmp_le_u32 vcc, s{sF0}, v{ownn}")
    I(f"v_cmp_gt_u32 s[10:11], s{sF1}, v{ownn}")
    I(f"s_mov_b32 s{sMORE}, 2")
    I("s_and_b64 vcc, vcc, s[10:11]")
    I(f"v_cndmask_b32 v{own}, 0, v{own}, vcc")
    I(f"v_mov_b32 v{tot}, v{own}")
    wave_scan(tot, fill, half=True)
    for x_ in fill: I(x_)
    I(f"s_sub_u32 s{sTMP}, s{sL}, {R0}")
    I(f"v_readlane_b32 s10, v{tot}, 31")
    I(f"v_readlane_b32 s11, v{tot}, 63")
    I(f"v_sub_u32 v{tot}, v{tot}, v{own}")
    I(f"v_mov_b32 v{vOWN}, v{u(14)}")
    I(f"s_and_b32 s{sTH}, s10, 0xffff")
    I("s_lshr_b32 s10, s10, 16")
    I(f"s_add_u32 s{sTH+1}, s{sTH}, s10")
    I("s_and_b32 s10, s11, 0xffff")
    I(f"s_add_u32 s{sTH+2}, s{sTH+1}, s10")
    I("s_lshr_b32 s11, s11, 16")
    I(f"s_add_u32 s{sEND}, s{sTH+2}, s11")
    I(f"s_lshl_b32 s10, s{sTH}, 16")
    I(f"s_pack_ll_b32_b16 s11, s{sTH+1}, s{sTH+2}")
    I(f"s_pack_ll_b32_b16 s{sTMP}, s{sTMP}, s{sTMP}")
    I(f"s_add_u32 s10, s10, s{sTMP}")
    I(f"s_add_u32 s11, s11, s{sTMP}")
    I("s_mov_b32 exec_lo, vcc_lo")
    I("s_mov_b32 exec_hi, 0")
    I(f"v_add_u32 v{tot}, s10, v{tot}")
    I("s_mov_b32 exec_lo, 0")
    I("s_mov_b32 exec_hi, vcc_hi")
    I(f"v_add_u32 v{tot}, s11, v{tot}")
    I("s_mov_b64 exec, vcc")
    I(f"ds_write_b16 v{owna}, v{tot} offset:{HIST + 2}")
    I(f"ds_write_b16_d16_hi v{owna}, v{tot} offset:{HIST + 6}")
    I(f"ds_write_b32 v{vMIN+1}, v{vMIN} offset:{MAP}")
    I("s_mov_b64 exec, -1")
    I(f"v_mov_b32 v{sc}, {FLAG}")
    I(f"s_cmp_le_u32 s{sEND}, {LMAX*4}")
    I("s_cbranch_scc1 K2_LFIT")
    I(f"ds_write_b32 v{sc}, v{one}")
    I(f"s_mov_b32 s{sEND}, 0")
    L("K2_LFIT")
    I(f"s_add_u32 s{sEND}, s{sEND}, s{sL}")
    for k in range(3):
        I(f"s_add_i32 s{sTH+k}, s{sTH+k}, {opt('tho', 64)}")
        I(f"s_lshr_b32 s{sTH+k}, s{sTH+k}, 7")
    I("s_waitcnt lgkmcnt(0)")
    stamp('a')
    I("s_barrier")
    stamp('b')
    I(f"ds_read_b64 v[{u(6)}:{u(7)}], v{sc}")
    RM = opt("rm", 1)
    for s in range(12):
        m = sM + 2*s
        if RM: I(f"s_mov_b64 exec, s[{m}:{m+1}]")
        I(f"ds_read_u16 v{vA+s}, v{vA+s} offset:{HIST + 2}")
    if RM: I("s_mov_b64 exec, -1")
    pads(lane, u(0), u(1), u(2))
    I(f"s_waitcnt lgkmcnt({0 if RM else 7})")
    I(f"v_cmp_ne_u32 vcc, 0, v{u(6)}")
    I(f"v_readfirstlane_b32 s{sCUR}, v{u(7)}")
    for s in range(12):
        if s == 6: I(f"s_waitcnt lgkmcnt(1)")
        I(f"v_add_u32 v{vA+s}, v{vA+s}, v{vRK+s}")
    I("s_cbranch_vccnz K2_OVF")
    for s in range(12):
        m = sM + 2*s
        I(f"s_mov_b64 exec, s[{m}:{m+1}]")
        I(f"ds_write2st64_b32 v{vA+s}, v{vC+4*(s//3)+s%3}, v{vEO+s} offset0:{R0//256} offset1:{R1//256}")
    I("s_mov_b64 exec, -1")
    I(f"s_cmp_lg_u32 s{sXT}, 0")
    I("s_cbranch_scc1 K2_XT2")
    L("K2_PADS0")
    I("s_waitcnt lgkmcnt(0)")
    stamp('c')
    I("s_barrier")
    L("K2_GO")
    stamp(3)
    STAG = opt("stag", 1)
    I(f"ds_read_b128 {rr(vQD,4)}, v{vARX}")
    I(f"ds_read_b32 v{vR1}, v{vARE}")
    I(f"ds_read_u8 v{vL1}, v{vARP}")
    I("s_waitcnt lgkmcnt(1)")
    EM = opt("em", 0xAA)
    if STAG == 1:
        I(f"s_movk_i32 s10, {EM}")
        I(f"s_bitcmp1_b32 s10, s{sW}")
        I("s_cbranch_scc0 K2_LATE0")
    for s in dma_tile(0): I(s)
    if STAG == 2:
        I(f"s_bitcmp1_b32 s{sW}, 0")
        I("s_cbranch_scc1 K2_LATE0")
        I("s_waitcnt vmcnt(0)")
    L("K2_LATE0")
    I(f"s_cmp_lg_u32 s{sMORE}, 2")
    I("s_cbranch_scc1 K2_BUILT")
    I("s_waitcnt lgkmcnt(0)")
    I(mfma(NUM(0), vT2, vT2))
    I(mfma(NUM(1), vT2, vT2))
    I(f"s_mov_b32 s10, {f2u(1e-6):#x}")
    I(f"s_mov_b32 s11, s10")
    for ft in range(2):
        for i in range(8):
            I(f"v_mov_b64 v[{DEN(ft)+2*i}:{DEN(ft)+2*i+1}], s[10:11]")
    if SBK and not KV: I(f"s_mov_b32 s{sSB}, {SBK}")
    I(f"s_mov_b32 s{sCI}, -1")
    I(f"s_mov_b64 s[{sMSK}:{sMSK+1}], 0")
    I(f"s_mov_b32 s{sR0}, 0")
    I(f"s_mov_b32 s{sCNT}, 0")
    I(f"s_cmp_lg_u32 s{sCUR}, 0")
    I(f"s_cselect_b32 s{sMORE}, 1, 0")
    L("K2_BUILT")
    I("s_waitcnt lgkmcnt(0)")
    I(f"v_lshl_add_u32 v{vL1}, v{vL1}, 6, v{vC1}")
    if STAG == 1:
        I(f"s_movk_i32 s10, {EM}")
        I(f"s_bitcmp1_b32 s10, s{sW}")
        I("s_cbranch_scc1 K2_HAD0")
        if SBK and opt("sbl", 0):
            I(f"s_cmp_lt_i32 s{sSB}, 0")
            I("s_cbranch_scc1 K2_SBY")
            I("s_barrier")
            I(f"s_mov_b32 s{sSB}, -1")
            L("K2_SBY")
        if opt("ys", 0): I(f"s_sleep {opt('ys', 0)}")
        for s in dma_tile(0): I(s)
        L("K2_HAD0")
    I(f"ds_read_b128 {rr(vQD,4)}, v{vARX} offset:128")
    I(f"ds_read_b32 v{vR1}, v{vARE} offset:128")
    for s in t1_reads(): I(s)
    I(mfma(vQ, vT2, vT2))
    I(mfma(vR, vT2, vT2))
    stamp(4)
    I("s_waitcnt vmcnt(0)")
    stamp(5)
    I(f"ds_read_b128 {rr(vE,4)}, v{vAE}")
    for q in range(4):
        I(f"ds_read_b128 {rr(vX+4*q,4)}, v{vAX} offset:{16*q}")
    I("s_waitcnt lgkmcnt(0)")
    I(f"s_cmp_eq_u32 s{sN}, 0")
    I("s_cbranch_scc1 K2_DONE")
    YC = opt("yc", 0) or (SBK and not opt("sbl", 0))
    if YC:
        for x_ in dma_tile(0): I(x_)
        I(f"s_movk_i32 s10, {EM}")
        I(f"s_bitcmp1_b32 s10, s{sW}")
        I("s_cbranch_scc1 K2_NOYC")
        if not SBK: I(f"s_sleep {YC}")
        else:
            I(f"s_cmp_lt_i32 s{sSB}, 0")
            I("s_cbranch_scc1 K2_SBY")
            I("s_barrier")
            I(f"s_mov_b32 s{sSB}, -1")
            L("K2_SBY")
        L("K2_NOYC")
    for s in g_mfmas(vP, 0):
        if s.startswith("v_smfmac"):
            if YC: I("s_nop 9")
            else:
                for x_ in dma_tile(0): I(x_)
        I(s)
    I(f"s_mov_b32 s{sT}, 0")
    def prio_code(uid):
        r = []
        if SBK: r += [f"s_cmp_lg_u32 s{sT}, s{sSB}", f"s_cbranch_scc1 K2_SB{uid}", "s_barrier", f"s_mov_b32 s{sSB}, -1", f"K2_SB{uid}:"]
        for k in range(3):
            r += [f"s_cmp_lg_u32 s{sT}, s{sTH+k}", f"s_cbranch_scc1 K2_PR{uid}_{k}", f"s_setprio {2-k}", f"K2_PR{uid}_{k}:"]
        return r
    YK = opt("yk", 2)
    if YK:
        I(f"s_sub_u32 s10, s{sN}, {YK - 1 if YK < 10 else 0}")
        I(f"s_bitcmp1_b32 s{sW}, 0")
        I(f"s_cselect_b32 s{sTH+2}, s{sTH+2}, s10")
    I("s_setprio 3")
    I("s_nop 8")
    tst = ["s_memrealtime s[98:99]", "s_waitcnt lgkmcnt(0)", "s_mov_b32 m0, s72", "s_nop 0", "v_writelane_b32 v255, s98, m0", "s_memtime s[98:99]", "s_waitcnt lgkmcnt(0)", "s_add_u32 m0, s72, 32", "s_nop 0", "v_writelane_b32 v255, s98, m0"] if TS == 4 else []
    body = tst + phaseA(0) + phaseB(0)
    body += [f"s_cmp_ge_u32 s{sT}, s{sN}", f"s_cbranch_scc1 K2_TAIL"] + prio_code(0)
    body += tst + phaseA(1) + phaseB(1)
    body += [f"v_add_u32 v{r}, 0x100, v{r}" for r in (vARX, vARP, vARE, vART)]
    body += prio_code(1)
    body += [f"s_cmp_lt_u32 s{sT}, s{sN}", f"s_cbranch_scc1 K2_LOOP"]
    check_body(body)
    DBG = opt("dbg", "")
    if "ell" in DBG:
        nb = []
        for b in body:
            if b.startswith("v_smfmac") and b.endswith(f"v{vIX}"): continue
            if b.startswith("v_smfmac") and "noA" in DBG: continue
            if b.startswith("ds_read_b64_tr") or b.startswith("ds_read_u8 v23") or b.startswith("v_lshl_add_u32 v23"): continue
            m = re.fullmatch(r"v_mul_f32 v(\d+), v(\d+), v\d+", b)
            if m:
                h, g = int(m.group(1)), int(m.group(2)); ft = 0 if g < vQ else 1; i = h - vQ
                nb.append(f"v_fmac_f32 v{NUM(ft)+i}, v{g}, v{h}")
                nb.append(f"v_add_f32 v{DEN(ft)+i}, v{DEN(ft)+i}, v{g}")
                continue
            nb.append(b)
        body = nb
    if "half" in DBG:
        body = [b for b in body if not (b.startswith("v_smfmac") and b.endswith(f"v{vIX}") and f"v[{vT2+4}:" in b)]
    if "nodma" in DBG: body = [b for b in body if not b.startswith("buffer_load")]
    emit(".p2align 6")
    L("K2_LOOP")
    for s in body:
        if s.endswith(":"): L(s[:-1])
        else: I(s)
    L("K2_TAIL")
    for s in s_mfmas(DEN(1), vR) + s_mfmas(NUM(1), vQ): I(s)
    L("K2_DONE")
    if SBK:
        I(f"s_cmp_lt_i32 s{sSB}, 0")
        I("s_cbranch_scc1 K2_SBD")
        I("s_barrier")
        I(f"s_mov_b32 s{sSB}, -1")
        L("K2_SBD")
    I(f"s_cmp_lg_u32 s{sMORE}, 0")
    I("s_cbranch_scc1 K2_SLOW")
    L("K2_EPI")
    stamp(6)
    I(f"v_lshlrev_b32 v{vT}, 4, v{lane}")
    for q in range(4):
        I(f"ds_read_b128 {rr(vX+4*q,4)}, v{vOWN} offset:{XO + 16*q}")
    for k in range(8):
        I(f"ds_read_b128 {rr(vWB+4*k,4)}, v{vT} offset:{WU + 1024*k}")
    I(f"v_and_b32 v{vQD+1}, 31, v{lane}")
    I(f"v_and_b32 v{vC1}, 32, v{lane}")
    I(f"v_mul_u32_u24 v{vC2}, 144, v{vQD+1}")
    I(f"v_lshrrev_b32 v{vQD+2}, 2, v{vC1}")
    I(f"v_lshl_add_u32 v{vQD+1}, v{vQD+1}, 6, v{vQD+2}")
    for s_ in range(2):
        I(f"ds_read2_b64 {rr(vT2+4*s_,4)}, v{vQD+1} offset0:{4*s_} offset1:{4*s_+2}")
    I("s_waitcnt lgkmcnt(10)")
    for i in range(16):
        I(f"v_lshlrev_b32 v{vWV+2*i}, 16, v{vX+i}")
        I(f"v_and_b32 v{vWV+2*i+1}, 0xffff0000, v{vX+i}")
    I(f"v_lshl_add_u32 v{vT+1}, v{vC1}, 1, v{vC2}")
    I(f"v_add_u32 v{vT+1}, s{sSTG}, v{vT+1}")
    I(f"s_sub_u32 s10, s{sF0}, s{sWIN}")
    I("s_mul_i32 s10, s10, 144")
    I(f"s_add_u32 s10, s10, s{sSTG}")
    I(f"v_lshrrev_b32 v{vQD}, 3, v{lane}")
    I(f"v_lshl_add_u32 v{vQD}, v{vQD}, 4, v{vT}")
    I(f"v_add_u32 v{vQD}, s10, v{vQD}")
    I(f"s_mul_i32 s10, s{sB}, {BN}")
    I(f"s_add_u32 s11, s10, s{sF1}")
    I(f"s_add_u32 s10, s10, s{sF0}")
    I(f"s_min_u32 s11, s11, {N}")
    I(f"s_min_u32 s10, s10, {N}")
    I("s_sub_u32 s11, s11, s10")
    I("s_lshl_b32 s10, s10, 7")
    I(f"s_add_u32 s{sOUT}, s{sOUT}, s10")
    I(f"s_addc_u32 s{sOUT+1}, s{sOUT+1}, 0")
    I(f"s_lshl_b32 s{sOUT+2}, s11, 7")
    for ft, D in ((0, vP), (1, vQ)):
        for q in range(4):
            I(f"s_waitcnt lgkmcnt({9 - 4*ft - q})")
            I(mfma(D, vWB+16*ft+4*q, vX+4*q, vWV+16*ft if q == 0 else D))
            for i in range(4):
                r = DEN(ft) + 4*q + i
                I(f"v_rcp_f32 v{r}, v{r}")
    I("s_waitcnt lgkmcnt(0)")
    for ft, D in ((0, vP), (1, vQ)):
        for i in range(16):
            I(f"v_mul_f32 v{NUM(ft)+i}, v{NUM(ft)+i}, v{DEN(ft)+i}")
        for i in range(8):
            I(f"v_cvt_pk_bf16_f32 v{DEN(ft)+i}, v{NUM(ft)+2*i}, v{NUM(ft)+2*i+1}")
        I(mfma(D, DEN(ft), vT2, D))
        I("s_nop 0")
        I(mfma(D, DEN(ft)+4, vT2+4, D))
    for q in range(4):
        for i in range(8*q, 8*q+8):
            I(f"v_max_f32 v{vP+i}, v{vP+i}, v{vWV+i}")
        for d in range(4):
            i = 4*q + d
            I(f"v_cvt_pk_bf16_f32 v{vR+i}, v{vP+2*i}, v{vP+2*i+1}")
        I(f"ds_write_b128 v{vT+1}, {rr(vR+4*q,4)} offset:{16*q}")
    for q in range(4):
        I(f"ds_read_b128 {rr(vX+4*q,4)}, v{vQD} offset:{8*144*q}")
    for q in range(4):
        I(f"s_waitcnt lgkmcnt({3-q})")
        I(f"buffer_store_dwordx4 {rr(vX+4*q,4)}, v{vT}, s[{sOUT}:{sOUT+3}], 0 offen offset:{1024*q}{pol(K2_OP)}")
    I(f"s_add_u32 s10, s2, s7")
    I("s_cmp_lg_u32 s10, 0")
    I("s_cbranch_scc1 K2_NOEP")
    I(f"v_mov_b32 v{vP}, {WS_EPOCH}")
    I(f"v_mov_b32 v{vP+1}, s{sEPN}")
    I(f"buffer_store_dword v{vP+1}, v{vP}, s[{sWS}:{sWS+3}], 0 offen sc1")
    L("K2_NOEP")
    if TS == 2 or opt("tsn", 0): I(f"s_mov_b32 s89, s{sN}")
    if TS == 8:
        I(f"s_sub_u32 s94, {opt('spin', 200000)}, s{sSPIN}")
        I(f"s_mul_i32 s94, s94, 100")
        I(f"s_add_u32 s94, s94, s88")
    if TS: I(f"s_mov_b32 s{sW}, s7")
    if TS == 4:
        I("s_mov_b64 exec, -1")
        I(f"s_lshl_b32 s87, s2, 11")
        I(f"s_add_u32 s87, s87, {WS_TS + 0x180000}")
        I(f"s_lshl_b32 s86, s{sW}, 8")
        I("s_add_u32 s87, s87, s86")
        I(f"v_lshl_add_u32 v{vP}, v{lane}, 2, s87")
        I(f"global_store_dword v{vP}, v255, s[8:9]")
    stamp_out(8, 8, sW, 8, 0x100000, vP)
    L("K2_END")
    I("s_endpgm")
    def spin():
        if opt("slp", 1): I(f"s_sleep {opt('slp', 1)}")
        I(f"s_sub_u32 s{sSPIN}, s{sSPIN}, 1")
        I("s_cbranch_scc1 K2_END")
    for i in range(4):
        L(f"K2_RETRY{i}")
        spin()
        for j in range(i, 4): cload(j)
        I(f"s_branch K2_CHK{i}")
    L("K1_EXT")
    I(f"s_mov_b32 s14, 0x0f0f0f0f")
    I(f"s_mov_b32 s15, s14")
    for i in range(4):
        I(f"ds_read_b32 v{oE+i}, v6 offset:{16*LROW*i + 32}")
        I(f"ds_read_b128 {rr(pD+8*i,4)}, v3 offset:{64*LROW*i + 128}")
    I("s_waitcnt lgkmcnt(0)")
    for i in range(4):
        I(f"v_cmp_le_u32 vcc, {33 << 24}, v{oH+i}")
        I(f"v_and_or_b32 v{pD+8*i+3}, v{oE+i}, v15, v{oH+i}")
        I("s_and_b64 exec, vcc, s[14:15]")
        I(f"s_cbranch_execz K1_EX{i}")
        I(f"buffer_store_dwordx4 {rr(pD+8*i,4)}, v4, s[{sST_}:{sST_+3}], s10 offen sc1")
        L(f"K1_EX{i}")
        I("s_mov_b64 exec, -1")
        I(f"s_add_u32 s10, s10, {64*RS}")
    I("s_branch K1_EXTR")
    L("K1_OVF")
    t = vAT
    for i in range(4):
        I(f"v_lshrrev_b32 v{t+i}, 16, v{oA+i}")
        I(f"v_lshrrev_b32 v{t+4}, 18, v{oA+i}")
        I(f"v_sub_u32 v{t+i}, v{t+i}, v{t+4}")
    I(f"v_add_u32 v{t+5}, v{t}, v{t+1}")
    I(f"v_add_u32 v{t+6}, v{t+5}, v{t+2}")
    I(f"v_add_u32 v{t+7}, v{t+6}, v{t+3}")
    I(f"v_mov_b32 v1, v{t+7}")
    wave_scan(1)
    I("s_nop 0")
    I(f"v_sub_u32 v{t+4}, v1, v{t+7}")
    I(f"v_add_u32 v{t+7}, v{t+4}, v{t+6}")
    I(f"v_add_u32 v{t+6}, v{t+4}, v{t+5}")
    I(f"v_add_u32 v{t+5}, v{t+4}, v{t}")
    for i in range(4):
        I(f"v_lshl_or_b32 v{t+4+i}, v{t+i}, 16, v{t+4+i}")
    I("s_waitcnt lgkmcnt(0)")
    I(f"ds_write_b128 v{l16}, {rr(t+4,4)} offset:{P_HDR}")
    for i in range(4): I(f"v_min_u32 v{oH+i}, 255, v{oH+i}")
    I(f"s_lshl_b32 s15, s{sB}, 2")
    I(f"s_add_u32 s15, s15, {WS_HDR}")
    srd(q0, 8, 9, NB*NCH*4, "s15")
    I(f"v_lshlrev_b32 v1, 12, v{lane}")
    for i in range(4):
        I(f"buffer_store_dword v{t+4+i}, v1, s[{q0}:{q0+3}], 0 offen offset:{1024*i} sc1")
    I(f"s_add_u32 s15, s13, {WS_RECS}")
    srd(q0, 8, 9, CH*4, "s15")
    I("s_lshr_b32 s15, s13, 2")
    I(f"s_add_u32 s15, s15, {WS_XB}")
    srd(q1, 8, 9, CH, "s15")
    I(f"v_cndmask_b32 v{pH+6}, v{pH}, v{pH+6}, s[{pm}:{pm+1}]")
    I(f"v_cndmask_b32 v{pK+6}, 0, v{pK+6}, s[{pm}:{pm+1}]")
    for i in range(7):
        I(f"ds_read_u16 v{pA+i}, v{pH+i} offset:{P_HDR - H0}")
    I("s_waitcnt lgkmcnt(0)")
    for i in range(7):
        I(f"v_lshrrev_b32 v1, 2, v{pK+i}")
        I(f"v_sub_u32 v1, v{pK+i}, v1")
        I(f"v_add_u32 v{pA+i}, v{pA+i}, v1")
        I(f"v_cmp_le_u32 vcc, {QCAP}, v{pK+i}")
        I(f"v_lshlrev_b32 v{pB+i}, 2, v{pA+i}")
        I("s_and_saveexec_b64 s[14:15], vcc")
        I(f"s_cbranch_execz K1_OV3_{i}")
        I(f"buffer_store_byte v{xb(i)}, v{pA+i}, s[{q1}:{q1+3}], 0 offen sc1")
        I(f"buffer_store_dword v{pS+i}, v{pB+i}, s[{q0}:{q0+3}], 0 offen sc1")
        L(f"K1_OV3_{i}")
        I("s_mov_b64 exec, -1")
    I("s_waitcnt vmcnt(0)")
    I("s_barrier")
    I("s_branch K1_OUT")
    L("K2_OVF")
    I(f"s_mov_b32 s{sCUR}, 1")
    I(f"s_mov_b32 s{sSKIP}, 0")
    I(f"s_mov_b32 s{sEND}, s{sL}")
    pads(lane, vP, vP+1, vP+2)
    I("s_branch K2_PADS0")
    xd, xa, xk, xrem, xeb, xad, xt = vACC + 44, vACC + 52, vACC + 58, vQ, vQ + 2, vX + 12, vX + 14
    L("K2_XT1")
    I(f"s_mov_b32 s{sXT}, 1")
    I(f"v_cmp_le_u32 vcc, {(QCAP + 1) << 24}, v{u(0)}")
    I(f"v_mov_b32 v{xt}, {FLAG + 4}")
    I("s_cbranch_vccz K2_XT1A")
    I(f"ds_write_b32 v{xt}, v{one}")
    L("K2_XT1A")
    I("s_mov_b32 s10, 0xf0f0f0f0")
    I("s_mov_b32 s11, s10")
    I(f"v_and_b32 v{xt}, 12, v{k4}")
    I(f"v_add_u32 v{xt}, 32, v{xt}")
    I(f"v_and_b32 v{xad}, 64, v{u(1)}")
    I(f"v_mul_u32_u24 v{xad}, 127, v{xad}")
    I(f"v_add_u32 v{xad}, v{xad}, v{u(1)}")
    I(f"v_add_u32 v{xad+1}, 16384, v{xad}")
    I(f"v_mov_b32 v{xt+1}, 0x7ffffff0")
    for g in range(2):
        I(f"v_cndmask_b32 v{xrem+g}, v{vC+8*g+3}, v{vC+8*g+7}, s[10:11]")
        I(f"v_cndmask_b32 v{xeb+g}, v{vEB+2*g}, v{vEB+2*g+1}, s[10:11]")
        remain(xrem + g, xrem + g, xt)
        I(f"v_cmp_lt_i32 vcc, 0, v{xrem+g}")
        I("s_nop 1")
        I(f"v_cndmask_b32 v{xad+g}, v{xt+1}, v{xad+g}, vcc")
    I(f"s_add_u32 s{sCEL}, s{sCEL}, {WS_EXT}")
    I(f"s_addc_u32 s{sCEL+1}, s{sCEL+1}, 0")
    L("K2_XT1L")
    for g in range(2):
        I(f"buffer_load_dwordx4 {rr(xd+4*g,4)}, v{xad+g}, s[{sCEL}:{sCEL+3}], 0 offen sc1")
    I("s_waitcnt vmcnt(0)")
    for g in range(2):
        I(f"v_bitop3_b32 v{xt}, v{xd+4*g+3}, s{sTAG}, v{vTM} bitop3:0x28")
        I(f"v_cmp_lt_i32 s[10:11], 0, v{xrem+g}")
        I(f"v_cmp_ne_u32 vcc, 0, v{xt}")
        I("s_and_b64 vcc, vcc, s[10:11]")
        I("s_cbranch_scc1 K2_XT1S")
    for g in range(2):
        for j in range(3):
            for x_ in haddr(xa+3*g+j, xd+4*g+j): I(x_)
            I(f"v_cmp_lt_i32 vcc, {j}, v{xrem+g}")
            I("s_mov_b64 exec, vcc")
            I(f"ds_add_rtn_u32 v{xk+3*g+j}, v{xa+3*g+j}, v{one} offset:{HIST}")
            I("s_mov_b64 exec, -1")
    I("s_branch K2_XT1R")
    L("K2_XT1S")
    spin()
    I("s_branch K2_XT1L")
    L("K2_XT2")
    for i in range(6):
        I(f"ds_read_u16 v{xa+i}, v{xa+i} offset:{HIST + 2}")
    for g in range(2): I(f"v_and_b32 v{xd+4*g+3}, 0x0f0f0f, v{xd+4*g+3}")
    I("s_waitcnt lgkmcnt(0)")
    for g in range(2):
        for j in range(3):
            i = 3*g + j
            I(f"v_add_u32 v{xa+i}, v{xa+i}, v{xk+i}")
            I(f"v_perm_b32 v{xk+i}, v{xd+4*g+3}, v{xd+4*g+j}, s{sSEL+j}")
            I(f"v_cmp_lt_i32 vcc, {j}, v{xrem+g}")
            I(f"v_lshl_add_u32 v{xk+i}, v{xk+i}, 5, v{xeb+g}")
            I("s_mov_b64 exec, vcc")
            I(f"ds_write2st64_b32 v{xa+i}, v{xd+4*g+j}, v{xk+i} offset0:{R0//256} offset1:{R1//256}")
            I("s_mov_b64 exec, -1")
    I("s_branch K2_PADS0")
    SB = 448
    t0, t1, t2, t3, t4 = vP, vP+1, vP+2, vP+3, vP+4
    L("K2_SLOW")
    I(f"s_add_u32 s{sR0}, s{sR0}, {SB}")
    I(f"s_cmp_lt_u32 s{sR0}, s{sCNT}")
    I("s_cbranch_scc1 K2_BATCH")
    L("K2_FIND")
    I(f"s_cmp_lg_u64 s[{sMSK}:{sMSK+1}], 0")
    I("s_cbranch_scc1 K2_GOT")
    I(f"s_add_u32 s{sCI}, s{sCI}, 1")
    I(f"s_cmp_ge_u32 s{sCI}, 4")
    I("s_cbranch_scc1 K2_EPI")
    I(f"s_mul_i32 s10, s{sB}, {RS}")
    I(f"s_lshl_b32 s11, s{sCI}, 13")
    I("s_add_u32 s10, s10, s11")
    I(f"v_lshlrev_b32 v{vT}, 7, v{lane}")
    I(f"buffer_load_ubyte v{vT}, v{vT}, s[{sWS}:{sWS+3}], s10 offen offset:15 sc1")
    I("s_waitcnt vmcnt(0)")
    I(f"v_cmp_lt_u32 s[{sMSK}:{sMSK+1}], s{sSKIP}, v{vT}")
    I("s_nop 3")
    I("s_branch K2_FIND")
    L("K2_GOT")
    I(f"s_ff1_i32_b64 s10, s[{sMSK}:{sMSK+1}]")
    I(f"s_bitset0_b64 s[{sMSK}:{sMSK+1}], s10")
    I(f"s_lshl_b32 s11, s{sCI}, 6")
    I(f"s_add_u32 s{sCUR}, s10, s11")
    I(f"s_mul_i32 s10, s{sB}, {RS}")
    I(f"s_lshl_b32 s11, s{sCUR}, 7")
    I("s_add_u32 s10, s10, s11")
    I(f"s_lshl_b32 s11, s{sB}, 8")
    I(f"s_add_u32 s11, s11, s{sCUR}")
    I(f"s_lshl_b32 s11, s11, 2")
    I(f"s_add_u32 s11, s11, {WS_HDR}")
    I(f"v_mov_b32 v{t0}, 0")
    I(f"buffer_load_ubyte v{t1}, v{t0}, s[{sWS}:{sWS+3}], s10 offen offset:15 sc1")
    I(f"buffer_load_dword v{t2}, v{t0}, s[{sWS}:{sWS+3}], s11 offen sc1")
    I("s_waitcnt vmcnt(0)")
    I(f"v_readfirstlane_b32 s10, v{t1}")
    I(f"v_readfirstlane_b32 s11, v{t2}")
    I("s_nop 3")
    I(f"s_and_b32 s{sST}, s11, 0xffff")
    I("s_lshr_b32 s11, s11, 16")
    I(f"s_lshr_b32 s{sCNT}, s10, 2")
    I(f"s_sub_u32 s{sCNT}, s10, s{sCNT}")
    I(f"s_cmp_gt_u32 s10, {QCAP}")
    I(f"s_cselect_b32 s{sCNT}, s11, s{sCNT}")
    I(f"s_lshr_b32 s10, s{sSKIP}, 2")
    I(f"s_sub_u32 s{sR0}, s{sSKIP}, s10")
    L("K2_BATCH")
    I("s_barrier")
    I(f"v_and_b32 v{t0}, 7, v{lane}")
    I(f"v_mul_u32_u24 v{t1}, {LCAP*4}, v{t0}")
    I(f"v_add_u32 v{t1}, {R0}, v{t1}")
    I(f"v_lshlrev_b32 v{t0}, 2, v{t0}")
    I(f"ds_write_b32 v{t0}, v{t1} offset:{CNT}")
    I(f"v_add_u32 v{t0}, s{sR0}, v{tid}")
    I(f"s_mul_i32 s10, s{sB}, {RS}")
    I(f"s_lshl_b32 s11, s{sCUR}, 7")
    I("s_add_u32 s10, s10, s11")
    I(f"v_mul_u32_u24 v{t2}, {KQ}, v{t0}")
    I(f"v_lshrrev_b32 v{t2}, 16, v{t2}")
    I(f"v_lshl_add_u32 v{t1}, v{t2}, 2, s10")
    I(f"v_add_u32 v{t3}, {WS_EXT - 128}, v{t1}")
    I(f"v_cmp_lt_u32 vcc, 31, v{t2}")
    I(f"s_mul_i32 s11, s{sCUR}, {CH}")
    I(f"s_add_u32 s11, s11, s{sST}")
    I(f"v_cndmask_b32 v{t1}, v{t1}, v{t3}, vcc")
    I(f"v_or_b32 v{t3}, 12, v{t1}")
    I(f"v_and_b32 v{t4}, 3, v{t2}")
    I(f"v_add_u32 v{t3}, v{t3}, v{t4}")
    I(f"v_cmp_le_u32 vcc, {QCAP}, v{t2}")
    I(f"v_add_u32 v{t2}, s11, v{t0}")
    I(f"v_add_u32 v{t4}, {WS_XB}, v{t2}")
    I(f"v_cndmask_b32 v{t3}, v{t3}, v{t4}, vcc")
    I(f"v_lshlrev_b32 v{t2}, 2, v{t2}")
    I(f"v_add_u32 v{t2}, {WS_RECS}, v{t2}")
    I(f"v_cndmask_b32 v{t1}, v{t1}, v{t2}, vcc")
    I(f"s_add_u32 s10, s{sR0}, {SB}")
    I(f"s_min_u32 s10, s10, s{sCNT}")
    I(f"v_cmp_gt_u32 vcc, s10, v{t0}")
    I(f"v_mov_b32 v{t2}, 0x7ffffff0")
    I(f"s_mul_i32 s{sTMP}, s{sCUR}, {CH*32}")
    I(f"v_cndmask_b32 v{t1}, v{t2}, v{t1}, vcc")
    I(f"v_cndmask_b32 v{t3}, v{t2}, v{t3}, vcc")
    I(f"buffer_load_dword v{t1}, v{t1}, s[{sWS}:{sWS+3}], 0 offen sc1")
    I(f"buffer_load_ubyte v{t3}, v{t3}, s[{sWS}:{sWS+3}], 0 offen sc1")
    I("s_waitcnt lgkmcnt(0)")
    I("s_barrier")
    I("s_and_saveexec_b64 s[10:11], vcc")
    I("s_waitcnt vmcnt(0)")
    I(f"v_and_b32 v{t0}, 255, v{t1}")
    I(f"v_lshlrev_b32 v{t0}, 2, v{t0}")
    I(f"ds_read_b32 v{t0}, v{t0} offset:{MAP}")
    I(f"v_bfe_u32 v{t2}, v{t1}, 8, 8")
    I(f"v_and_b32 v{t3}, 15, v{t3}")
    I(f"v_lshl_or_b32 v{t3}, v{t3}, 8, v{t2}")
    I(f"v_mov_b32 v{t2}, 4")
    I(f"v_lshl_add_u32 v{t3}, v{t3}, 5, s{sTMP}")
    I("s_waitcnt lgkmcnt(0)")
    I(f"ds_add_rtn_u32 v{t0}, v{t0}, v{t2} offset:{CNT}")
    I("s_waitcnt lgkmcnt(0)")
    I(f"ds_write2st64_b32 v{t0}, v{t1}, v{t3} offset0:0 offset1:{(R1-R0)//256}")
    I("s_mov_b64 exec, -1")
    I("s_waitcnt lgkmcnt(0)")
    I("s_barrier")
    I(f"s_lshl_b32 s10, s{sW}, 2")
    I(f"v_mov_b32 v{t0}, s10")
    I(f"ds_read_b32 v{t0}, v{t0} offset:{CNT}")
    for i in range(8): I(f"v_mov_b32 v{vT2+i}, 0")
    listaddr(lane, t1, t2)
    I("s_waitcnt lgkmcnt(0)")
    I(f"v_readfirstlane_b32 s{sEND}, v{t0}")
    I("s_nop 3")
    pads(lane, t0, t1, t2)
    L("K2_LAST")
    I("s_branch K2_GO")

def regs_of(tok):
    tok = tok.strip()
    m = re.fullmatch(r"v\[(\d+):(\d+)\]", tok)
    if m: return list(range(int(m.group(1)), int(m.group(2)) + 1))
    m = re.fullmatch(r"v(\d+)", tok)
    if m: return [int(m.group(1))]
    return []
def parse(ins):
    op, _, rest = ins.partition(" ")
    ops = [o.strip().split(" ")[0] for o in rest.split(",")] if rest else []
    if op.startswith("v_mfma"):
        return "mfma", regs_of(ops[0]), regs_of(ops[1]) + regs_of(ops[2]), regs_of(ops[3])
    if op.startswith("v_smfmac"):
        return "mfma", regs_of(ops[0]), regs_of(ops[1]) + regs_of(ops[2]) + regs_of(ops[3]), regs_of(ops[0])
    if op.startswith("v_"):
        k = "trans" if op in ("v_exp_f32", "v_rcp_f32") else "valu"
        return k, regs_of(ops[0]), sum((regs_of(o) for o in ops[1:]), []), []
    if op.startswith("ds_read"):
        return "ds", regs_of(ops[0]), regs_of(ops[1]), []
    if op.startswith("buffer_load"):
        return "vm", [], regs_of(ops[0]) + regs_of(ops[1]), []
    return "other", [], [], []
def check_body(body):
    seq = [b for b in body if not b.endswith(":")]
    for skip_dma in (False, True):
        s2 = []
        sk = False
        for b in body:
            if skip_dma and b.startswith("s_cbranch_scc0 K2_ND"):
                s2.append(b); sk = True; continue
            if b.startswith("K2_ND"): sk = False
            if b.endswith(":") or sk: continue
            s2.append(b)
        seq = s2 * 3
        last = {}
        lastc = {}
        pend = []
        for i, ins in enumerate(seq):
            k, d, s, c = parse(ins)
            m = re.search(r"lgkmcnt\((\d+)\)", ins)
            if m:
                n = int(m.group(1))
                while len(pend) > n: pend.pop(0)
            pr = set(sum(pend, []))
            for r in d + s + c:
                assert r not in pr or i < len(s2), f"pending LDS reg v{r} used by {ins} @{i}"
            for r in s + c + d:
                if r not in last: continue
                pk, pi = last[r]; dist = i - pi - 1
                if pk == "mfma":
                    if k == "mfma" and r in c and r not in s: need = 0
                    elif k == "mfma" and r in d and r not in s: need = 0
                    else: need = 12
                elif pk in ("valu", "trans") and k == "mfma" and r in s + c: need = 2
                elif pk == "trans" and k in ("valu", "mfma", "ds", "vm") and r in s: need = 1
                else: need = 0
                assert dist >= need, f"hazard {pk}->{k} v{r} dist {dist} need {need}: {ins} @{i}"
            if k in ("valu", "trans"):
                for r in d:
                    if r in lastc: assert i - lastc[r] - 1 >= 7, f"srcC WAR {ins}"
            for r in c: lastc[r] = i
            for r in d: last[r] = (k, i)
            if k == "ds":
                pend.append(d); assert len(pend) <= 15

hdr = open("/code/" + NAME + ".s.ref").read().split("\n")
for l in hdr:
    if l.startswith("; Override"): break
    out.append(l)
LEAK = opt("leak", "")
if LEAK:
    out.append(f"; @launch kernel={KN} grid=(256,1,1) block=(512,1,1) lds={K2_LDS}")
    out.append("; @launch kernel=spin_kernel grid=(1,1,1) block=(64,1,1) lds=0")
else: out.append(f"; @launch grid=(256,1,1) block=(512,1,1) lds={K2_LDS}")
emit('.amdgcn_target "amdgcn-amd-amdhsa--gfx950"\n.text')
k2()
KL = [(KN, 256, 102)]
if LEAK:
    kind, k = LEAK[:3], int(LEAK[3:])
    emit(".globl spin_kernel\n.p2align 8\n.type spin_kernel,@function\nspin_kernel:")
    I("s_memrealtime s[12:13]")
    I("s_cmp_lg_u32 s2, 0")
    I("s_cbranch_scc1 SP_END")
    I("s_load_dwordx2 s[4:5], s[0:1], 88")
    I("s_waitcnt lgkmcnt(0)")
    I(f"s_add_u32 s4, s4, {WS_TS + 0x100000}")
    I("s_addc_u32 s5, s5, 0")
    I("v_lshlrev_b32 v1, 5, v0")
    for j in range(31):
        I(f"global_load_dword v{2+j}, v1, s[4:5]")
        I(f"global_load_dword v{34+j}, v1, s[4:5] offset:{4*(k%8)}")
        I("v_add_u32 v1, 2048, v1")
    I("s_waitcnt vmcnt(0)")
    I("v_readfirstlane_b32 s6, v2")
    I("s_nop 1")
    I("s_sub_u32 s6, s6, 1000")
    for j in range(31):
        I(f"v_subrev_u32 v{2+j}, s6, v{2+j}")
        I(f"v_subrev_u32 v{34+j}, s6, v{34+j}")
    op = {"max": "max_u32", "min": "min_u32", "avg": "add_u32", "now": "max_u32"}[kind]
    for j in range(1, 31):
        I(f"v_min_u32 v2, v2, v{2+j}")
        I(f"v_{op} v34, v34, v{34+j}")
    I("s_nop 1")
    I("v_readlane_b32 s8, v2, 0")
    I("v_readlane_b32 s9, v34, 0")
    for l in range(1, 64):
        I(f"v_readlane_b32 s10, v2, {l}")
        I(f"v_readlane_b32 s11, v34, {l}")
        I("s_min_u32 s8, s8, s10")
        I(f"s_{op} s9, s9, s11")
    if kind == "avg":
        I(f"s_mul_hi_u32 s9, s9, {(1 << 32) // (31*64)}")
    if kind == "now":
        I("s_sub_u32 s8, s12, s6")
        I("s_sub_u32 s6, s8, s9")
    else: I("s_sub_u32 s6, s9, s8")
    I("s_lshl_b32 s6, s6, 2")
    I("s_min_u32 s6, s6, 30000")
    I("s_memrealtime s[8:9]")
    I("s_waitcnt lgkmcnt(0)")
    L("SP_L")
    I("s_memrealtime s[10:11]")
    I("s_waitcnt lgkmcnt(0)")
    I("s_sub_u32 s7, s10, s8")
    I("s_cmp_lt_u32 s7, s6")
    I("s_cbranch_scc1 SP_L")
    L("SP_END")
    I("s_endpgm")
    KL.append(("spin_kernel", 72, 16))
emit('.section .rodata,"a"')
for name, vg, sg in KL:
    emit(f""".p2align 6
.amdhsa_kernel {name}
  .amdhsa_next_free_vgpr {vg}
  .amdhsa_next_free_sgpr {sg}
  .amdhsa_accum_offset {vg}
  .amdhsa_group_segment_fixed_size 0
  .amdhsa_kernarg_size 96
  .amdhsa_user_sgpr_count 2
  .amdhsa_user_sgpr_kernarg_segment_ptr 1
  .amdhsa_system_sgpr_workgroup_id_x 1
.end_amdhsa_kernel""")
path = sys.argv[1] if len(sys.argv) > 1 else "/code/" + NAME + ".s"
open(path, "w").write("\n".join(out) + "\n")
print("wrote", path, len(out), "lines; lds", K2_LDS)
```

```python
import sys, re, math

NAME = "standalone__edge_featured_mpnn_gatedgcn__graph"
OPT = dict(kv.split("=") for kv in sys.argv[2:])
def opt(k, d):
    v = OPT.get(k)
    if v is None: return d
    return type(d)(v)

N, E = 50000, 800000
NCH, CH = 256, 3125
NB, BN = 256, 196
CELLB = 128
RS = 257 * CELLB
WS_EXT = NB * RS
QCAP = 48
KQ = 87382
LROW = 4 * (QCAP + 4)
WS_RECS = 0x1100000
WS_XB = 0x1500000
WS_HDR = 0x1600000
WS_EPOCH = 0x1700000
WS_USED = WS_EPOCH + 128
WI_U, WI_B, WI_V, WI_A, WI_C = 0, 8192, 16384, 24576, 32768
TMASK = 0x00f0f0f0
T0 = opt("t0", 12500)
LPH = (N - T0 + 2) // 3
SOFF = LPH - T0
PHM = (1 << 30) // LPH
assert 0 <= SOFF and N + SOFF <= 65536 and ((N - 1 + SOFF) * PHM) >> 30 <= 3
LOG2E = 1.4426950408889634
import struct
def f2u(f): return struct.unpack("<I", struct.pack("<f", f))[0]

out = []
def emit(s=""):
    for l in s.strip("\n").split("\n"):
        out.append(l.rstrip())
def I(s): out.append("    " + s)
def L(s): out.append(s + ":")
def C(s): out.append("    ; " + s)

def srd(d, lo, hi, size, add=None):
    if add is None:
        I(f"s_mov_b32 s{d}, s{lo}")
        I(f"s_mov_b32 s{d+1}, s{hi}")
    else:
        I(f"s_add_u32 s{d}, s{lo}, {add}")
        I(f"s_addc_u32 s{d+1}, s{hi}, 0")
    I(f"s_mov_b32 s{d+2}, {size}")
    I(f"s_mov_b32 s{d+3}, 0x20000")

def wave_scan(v, fill=None, half=False):
    def gap():
        if fill and len(fill) >= 2:
            I(fill.pop(0)); I(fill.pop(0))
        else: I("s_nop 1")
    for sh in (1, 2, 4, 8):
        gap()
        I(f"v_add_u32_dpp v{v}, v{v}, v{v} row_shr:{sh} row_mask:0xf bank_mask:0xf bound_ctrl:0")
    gap()
    I(f"v_add_u32_dpp v{v}, v{v}, v{v} row_bcast:15 row_mask:0xa bank_mask:0xf")
    if half: return
    gap()
    I(f"v_add_u32_dpp v{v}, v{v}, v{v} row_bcast:31 row_mask:0xc bank_mask:0xf")

TS = opt("ts", 0)
WS_TS = 0x3000000
SMAP = {1: {0: 0, 'd': 1, 'i': 2, 'w': 3, 2: 4, 5: 5, 6: 6, 7: 7},
        5: {0: 0, 'w': 1, 2: 2, 'a': 3, 'b': 4, 'c': 5, 3: 6, 7: 7},
        6: {0: 0, 'p': 1, 'q': 2, 'd': 3, 'i': 4, 'o': 5, 'k': 6, 7: 7},
        8: {0: 0, 'i': 1, 'w': 2, 1: 3, 2: 4, 3: 5, 7: 7},
        10: {0: 0, 'd': 1, 'i': 2, 'o': 3, 'A': 4, 'w': 5, 2: 6, 7: 7},
        9: {0: 0, 'q': 1, 'd': 2, 'i': 3, 'w': 4, 2: 5, 3: 6, 7: 7},
        7: {0: 0, 'k': 1, 'w': 2, 1: 3, 's': 4, 2: 5, 3: 6, 7: 7}}
def stamp(i):
    if TS in SMAP:
        i = SMAP[TS].get(i)
        if i is None: return
    elif isinstance(i, str): return
    if TS == 3:
        if i not in (0, 5, 6, 7): return
        I("s_memtime s[98:99]")
        I("s_waitcnt lgkmcnt(0)")
        I(f"s_mov_b32 s{88+{5:1,6:2,0:3,7:4}[i]}, s98")
    if TS:
        I("s_memrealtime s[98:99]" if TS != 2 else "s_memtime s[98:99]")
        I("s_waitcnt lgkmcnt(0)")
        I(f"s_mov_b32 s{88+i}, s98")
def stamp_out(n, wslo, swave, nw, off, v):
    if not TS: return
    I("s_waitcnt vmcnt(0)")
    stamp(7)
    I("s_mov_b64 exec, 1")
    I(f"s_mul_i32 s87, s2, {nw}")
    I(f"s_add_u32 s87, s87, s{swave}")
    I("s_lshl_b32 s87, s87, 5")
    I(f"s_add_u32 s87, s87, {WS_TS + off}")
    I(f"v_mov_b32 v{v}, s87")
    for i in range(n):
        I(f"v_mov_b32 v{v+1}, s{88+i}")
        I(f"global_store_dword v{v}, v{v+1}, s[{wslo}:{wslo+1}] offset:{4*i}")
K1_LD = opt("k1ld", "nt")
def pol(p): return (" " + p.replace("_", " ")) if p else ""

SM1 = opt("sm1", 1)
TAB, ZROW, CNT, FLAG, HIST, MAP = 0, 2048, 2112, 2176, 2304, 6400
T1B = 7424
LCAP = 672
XMAX = 64
LMAX = LCAP - 128
R0 = T1B + 2304
R1 = R0 + 8 * LCAP * 4
assert R1 % 256 == 0 and R0 % 256 == 0
WL = R0
WU = R1 + 8 * LCAP * 4
WA = WU + 8192
XO = WA + 8192
STG = XO + 26112
SLOT = 5184
WST = SLOT
K2_LDS = STG - 4096 + 320 * LROW
assert K2_LDS <= 163840, K2_LDS

vWB, vWV, vWC, vAT = 0, 32, 64, 72
vACC = 88
vX, vE, vT1, vT2 = 152, 168, 172, 180
vP, vQ, vR = 188, 204, 220
vQD = 236
vR1 = 240
vCP, vCH, vAX, vAE, vC1, vC2, vARX, vART, vARP = 241, 242, 243, 244, 245, 246, 247, 248, 249
vL1 = 250
vARE = 251
vT = 252
DEN = lambda ft: vACC + 32 * ft
NUM = lambda ft: vACC + 32 * ft + 16
def rr(a, n): return f"v[{a}:{a+n-1}]"
def mfma(d, a, b, c=None):
    return f"v_mfma_f32_32x32x16_bf16 {rr(d,16)}, {rr(a,4)}, {rr(b,4)}, " + ("0" if c is None else rr(c, 16))

K2_XP = opt("k2x", "")
K2_EP = opt("k2e", "")
K2_CP = opt("k2c", "")
K2_OP = opt("k2o", "sc1")

sW, sB = 3, 12
sX, sEP, sWS, sOUT = 16, 20, 24, 28
sCEL, sWI = 32, 36
sM = 40
sT, sN, sSTG, s128, sL, sSKIP, sMORE = 72, 73, 74, 75, 76, 77, 78
sCI, sCUR, sR0, sCNT, sST, sMSK = 79, 80, 81, 82, 83, 84
sTMP = 86
sWIN = 96

def dma_tile(par):
    r = []
    for i in range(4):
        r.append(f"s_add_u32 m0, s{sSTG}, {par*SLOT + i*1040}")
        r.append(f"v_mad_u32_u16 v{vQD+i}, v{vQD+i}, s{s128}, v{vCP} op_sel:[1,0,0,0]")
        r.append(f"buffer_load_dwordx4 v{vQD+i}, s[{sX}:{sX+3}], 0 offen{pol(K2_XP)} lds")
    r.append(f"s_add_u32 m0, s{sSTG}, {par*SLOT + 4160}")
    r.append(f"v_add_u32 v{vR1}, v{vR1}, v{vCH}")
    r.append(f"buffer_load_dwordx4 v{vR1}, s[{sEP}:{sEP+3}], 0 offen{pol(K2_EP)} lds")
    return r

def valu_stream(G, H):
    s = []
    ex = [(f"v_exp_f32 v{G+i}, v{G+i}", 8) for i in range(16)]
    ad = [(f"v_add_f32 v{G+i}, 1.0, v{G+i}", 4) for i in range(16)]
    rc = [(f"v_rcp_f32 v{G+i}, v{G+i}", 8) for i in range(16)]
    mu = [(f"v_mul_f32 v{H+i}, v{G+i}, v{H+i}", 4) for i in range(16)]
    ce = [(f"v_cvt_pk_bf16_f32 v{G+i}, v{G+2*i}, v{G+2*i+1}", 4) for i in range(8)]
    cm = [(f"v_cvt_pk_bf16_f32 v{H+i}, v{H+2*i}, v{H+2*i+1}", 4) for i in range(8)]
    PK = opt("pk", 0)
    pa = [(f"v_pk_add_f32 v[{G+2*i}:{G+2*i+1}], v[{G+2*i}:{G+2*i+1}], 1.0 op_sel_hi:[1,0]", 4) for i in range(8)]
    pm = [(f"v_pk_mul_f32 v[{H+2*i}:{H+2*i+1}], v[{G+2*i}:{G+2*i+1}], v[{H+2*i}:{H+2*i+1}]", 4) for i in range(8)]
    if PK & 2:
        s += ex[:8] + ex[8:10] + pa[:4] + ex[10:] + rc[:2] + pa[4:] + rc[2:]
    elif PK & 4:
        s += ex + [("s_nop 0", 0)] + pa + rc
    else:
        for i in range(16 + 4):
            if i < 16: s.append(ex[i])
            if 0 <= i - 2 < 16: s.append(ad[i-2])
            if 0 <= i - 4 < 16: s.append(rc[i-4])
    s += pm if PK & 1 else mu
    return s

def interleave(valu, mf, extra, pos, spacing=opt('sp', 28)):
    res = []
    cum = 0; k = 0
    for ins, c in valu:
        while k < len(mf) and cum >= pos[k] * spacing:
            res.extend(extra.get(('b', k), []))
            res.append(mf[k])
            res.extend(extra.get(('a', k), []))
            k += 1
        res.append(ins); cum += c
    assert k == len(mf)
    return res

def g_mfmas(D, ft):
    m = [mfma(D, vE, vWC + 4*ft)]
    if SM1:
        m += [mfma(D, vX + 4*q, vWB + 16*ft + 4*q, D) for q in range(4)]
        m += [f"v_smfmac_f32_32x32x32_bf16 {rr(D,16)}, {rr(vT1,4)}, {rr(vAT+8*ft,8)}, v{vT1+4}"]
        return m
    m += [mfma(D, vT1 + 4*s, vAT + 8*ft + 4*s, D) for s in range(2)]
    m += [mfma(D, vX + 4*q, vWB + 16*ft + 4*q, D) for q in range(4)]
    return m
def h_mfmas(D, ft):
    return [mfma(D, vX + 4*q, vWV + 16*ft + 4*q, None if q == 0 else D) for q in range(4)]
vIX = vT1 + 5
def s_mfmas(acc, src):
    return [f"v_smfmac_f32_32x32x32_bf16 {rr(acc,16)}, {rr(vT2+4*s,4)}, {rr(src+8*s,8)}, v{vIX}" for s in range(2)]
def t1_reads():
    return [f"ds_read_b128 {rr(vT1,4)}, v{vL1} offset:{T1B}", f"ds_read_b32 v{vT1+4}, v{vL1} offset:{T1B+16}"]

ORD = opt("ord", "n0 n1 e h0 h1 a h2 h3 x0 x1 x2 x3 d0 d1").replace("_", " ").split()
POS = [float(x) / 28 for x in opt("pos", "0_27_54_81_108_135_162_189_216_243_270_297_328_356").split("_")]
def phase_ops(G, Gn, ft):
    n = s_mfmas(NUM(1-ft), vQ); d = s_mfmas(DEN(ft), G); h = h_mfmas(vQ, ft); g = g_mfmas(Gn, 1-ft)
    m = {"n0": n[0], "n1": n[1], "d0": d[0], "d1": d[1], "e": g[0], "a": g[5]}
    for q in range(4): m[f"h{q}"] = h[q]; m[f"x{q}"] = g[1+q]
    return [m[k] for k in ORD]
K = lambda k: ORD.index(k)
def phaseA(par):
    o = par * 128
    ex = {}
    ex[('a', K("n0"))] = [f"ds_read_u8 v{vQD+u}, v{vART} offset:{o + 16*(u>>1) + 4*(u&1)}" for u in range(4)] + \
                         [f"ds_read_u8 v{vL1}, v{vARP} offset:{o + 128}"]
    ex[('a', K("h1"))] = ["s_waitcnt lgkmcnt(0)"] + [f"v_lshl_add_u32 v{vQD+u}, v{vQD+u}, 6, v{vC2}" for u in range(4)] + \
                         [f"v_lshl_add_u32 v{vL1}, v{vL1}, 6, v{vC1}"]
    ex[('a', K("a"))] = [f"ds_read_b64_tr_b16 v[{vT2+2*u}:{vT2+2*u+1}], v{vQD+u}" for u in range(4)] + t1_reads()
    ex[('a', K("x0"))] = [f"ds_read_b128 {rr(vQD,4)}, v{vARX} offset:{o + 2*128}",
                          f"ds_read_b32 v{vR1}, v{vARE} offset:{o + 2*128}",
                          f"s_add_u32 s{sT}, s{sT}, 1"]
    ex[('b', K("d0"))] = ["s_waitcnt lgkmcnt(0)"]
    return interleave(valu_stream(vP, vQ), phase_ops(vP, vR, 0), ex, POS)

def phaseB(par):
    ex = {}
    ex[('a', K("n0"))] = ["s_waitcnt vmcnt(0)", f"ds_read_b128 {rr(vE,4)}, v{vAE}"]
    if TS == 4:
        ex[('a', K("n0"))] = ["s_memtime s[94:95]", "s_waitcnt vmcnt(0) lgkmcnt(0)", "s_memtime s[98:99]", "s_waitcnt lgkmcnt(0)", "s_sub_u32 s98, s98, s94",
                              "s_add_u32 m0, s72, 15", "s_nop 0", "v_writelane_b32 v255, s98, m0", f"ds_read_b128 {rr(vE,4)}, v{vAE}"]
    for q in range(4):
        ex[('a', K(f"h{q}"))] = [f"ds_read_b128 {rr(vX+4*q,4)}, v{vAX} offset:{16*q}"]
    ex[('b', K("e"))] = [f"s_waitcnt lgkmcnt({sum(K(f'h{q}') < K('e') for q in range(4))})"]
    for q in range(4): ex[('b', K(f"x{q}"))] = [f"s_waitcnt lgkmcnt({sum(K(f'h{p}') < K(f'x{q}') for p in range(q+1, 4))})"]
    dk = opt("dk", "x3")
    ex[('a', K(dk))] = ([] if dk == "x3" or K(dk) > K("x3") else ["s_waitcnt lgkmcnt(0)"]) + \
                       [f"s_cmp_lt_i32 s{sT}, s{sN1}", f"s_cbranch_scc0 K2_ND_{par}"] + dma_tile(0) + [f"K2_ND_{par}:"]
    return interleave(valu_stream(vR, vQ), phase_ops(vR, vP, 1), ex, POS)

sF0, sF1, sEND = 13, 14, 15
sXT = 97
sN1 = 38
sSB = 37
SBK = opt('sbk', 2)
sNUL = 39
sTH = 4
PRIO = opt("prio", 1)

def listaddr(lane, t0, t3):
    I(f"v_bfe_u32 v{t0}, v{lane}, 3, 2")
    I(f"v_lshl_add_u32 v{vARX}, v{t0}, 5, s{sL}")
    I(f"v_lshrrev_b32 v{t0}, 5, v{lane}")
    I(f"v_lshl_add_u32 v{vARX}, v{t0}, 4, v{vARX}")
    I(f"v_and_b32 v{t0}, 3, v{lane}")
    I(f"v_and_b32 v{t3}, 28, v{lane}")
    I(f"v_lshl_add_u32 v{t0}, v{t0}, 5, v{t3}")
    I(f"v_add_u32 v{vARP}, s{sL}, v{t0}")
    I(f"v_lshrrev_b32 v{t3}, 1, v{lane}")
    I(f"v_lshl_add_u32 v{vARE}, v{t3}, 2, s{sL}")
    I(f"v_add_u32 v{vARE}, {R1-R0}, v{vARE}")
    I(f"v_bfe_u32 v{t0}, v{lane}, 2, 2")
    I(f"v_lshl_add_u32 v{vART}, v{t0}, 5, s{sL}")
    I(f"v_lshrrev_b32 v{t0}, 5, v{lane}")
    I(f"v_lshl_add_u32 v{vART}, v{t0}, 3, v{vART}")

vOWN = vT + 1
def pads(lane, t0, t1, t2):
    W2 = f"offset0:0 offset1:{(R1-R0)//256}"
    I(f"v_mov_b32 v{t2}, 0xffff0000")
    I(f"v_or_b32 v{t1}, s{sNUL}, v{t2}")
    I(f"v_mov_b32 v{t2}, 0x7fffff00")
    I(f"v_lshl_add_u32 v{t0}, v{lane}, 2, s{sEND}")
    I(f"s_sub_u32 s{sN}, s{sEND}, s{sL}")
    I(f"ds_write2st64_b32 v{t0}, v{t1}, v{t2} {W2}")
    I(f"ds_write2st64_b32 v{t0}, v{t1}, v{t2} offset0:1 offset1:{(R1-R0)//256 + 1}")
    ntiles(False)
def ntiles(sub=True):
    if sub: I(f"s_sub_u32 s{sN}, s{sEND}, s{sL}")
    I(f"s_add_u32 s{sN}, s{sN}, 127")
    I(f"s_lshr_b32 s{sN}, s{sN}, 7")
    I(f"s_sub_i32 s{sN1}, s{sN}, 1")

KN = NAME + "_kernel"
P_HIST, P_HDR = MAP, WU
H0 = 2000
IMG = STG - 4096
P_EIMG = IMG
P_CIMG = P_EIMG + 64 * LROW
assert P_CIMG + 256 * LROW <= K2_LDS
sTAG, sEPN, sSPIN = 36, 100, 101
def k2():
    emit(f"""
.globl {KN}
.p2align 8
.type {KN},@function
{KN}:""")
    I("s_cmp_ge_u32 s2, 256")
    I("s_cbranch_scc1 K2_END")
    stamp(0)
    KA = sM
    I(f"s_load_dwordx4 s[{KA+4}:{KA+7}], s[0:1], 16")
    I(f"s_load_dwordx2 s[8:9], s[0:1], 88")
    I(f"s_load_dwordx4 s[{KA}:{KA+3}], s[0:1], 0")
    I(f"s_load_dwordx8 s[{KA+8}:{KA+15}], s[0:1], 32")
    I(f"s_load_dwordx4 s[{KA+16}:{KA+19}], s[0:1], 64")
    tid, lane = 255, 254
    CPF = opt("cpf", 192)
    if CPF:
        I(f"s_getpc_b64 s[{sTMP}:{sTMP+1}]")
        L("K2_PC")
        I(f"v_lshlrev_b32 v{vT}, 7, v0")
        I(f"v_min_u32 v{vT}, K2_LAST-K2_PC, v{vT}")
        I(f"v_cmp_gt_u32 vcc, {CPF}, v0")
        I("s_cbranch_vccz K2_NOCPF")
        I(f"global_load_dword v{vT+1}, v{vT}, s[{sTMP}:{sTMP+1}]")
        L("K2_NOCPF")
    vC = vACC
    vA = vACC + 16
    hh = vACC + 28
    vRK = vR
    vMIN = vQ + 8
    vTM = vQ + 10
    u = lambda i: vP + i
    k4, ecb, hda, one, l16 = vE, vE + 1, vE + 2, vE + 3, vT1
    pD, pS, pH, pK, pA, pB, pI, pW = 8, 16, 24, 32, 40, 48, 56, 64
    I(f"v_mov_b32 v{tid}, v0")
    I(f"v_lshrrev_b32 v{u(0)}, 6, v0")
    I(f"v_and_b32 v{lane}, 63, v0")
    I(f"v_readfirstlane_b32 s7, v{u(0)}")
    I("s_and_b32 s10, s2, 7")
    I("s_lshr_b32 s11, s2, 3")
    I("s_lshl_b32 s10, s10, 5")
    I(f"s_add_u32 s{sB}, s10, s11")
    I(f"s_mul_i32 s13, s{sB}, {CH*4}")
    I(f"v_lshlrev_b32 v{u(1)}, 4, v0")
    I(f"v_lshlrev_b32 v1, 3, v0")
    I(f"v_lshlrev_b32 v2, 2, v0")
    I(f"v_mov_b32 v3, 0")
    I(f"v_and_b32 v4, 0x3fc, v2")
    I(f"ds_write_b32 v4, v3 offset:{P_HIST}")
    ASYM = opt("asym", 10)
    I(f"s_and_b32 s10, s7, 3")
    I(f"s_lshr_b32 s{sW}, s7, 2")
    I(f"s_lshl1_add_u32 s{sW}, s10, s{sW}")
    I(f"s_xor_b32 s{sW}, s{sW}, 1")
    I(f"s_movk_i32 s14, 8192")
    I(f"s_movk_i32 s15, 12288")
    I("s_waitcnt lgkmcnt(0)")
    stamp('p')
    vq = []
    def younger(tag): return len(vq) - 1 - max(i for i, t in enumerate(vq) if t == tag)
    q0, q1 = 64, 68
    srd(q0, KA+6, KA+7, CH*4, "s13")
    srd(q1, KA+4, KA+5, CH*4, "s13")
    for r_, q_ in ((pD, q0), (pS, q1)):
        I(f"buffer_load_dwordx4 {rr(r_,4)}, v{u(1)}, s[{q_}:{q_+3}], 0 offen{pol(K1_LD)}")
        I(f"buffer_load_dwordx2 {rr(r_+4,2)}, v1, s[{q_}:{q_+3}], s14 offen{pol(K1_LD)}")
        I(f"buffer_load_dword v{r_+6}, v2, s[{q_}:{q_+3}], s15 offen{pol(K1_LD)}")
        vq += ["D" if r_ == pD else "S"] * 3
        if r_ == pD and opt("db", 1): I("s_barrier")
    I(f"s_add_u32 s10, s8, {WS_EPOCH}")
    I("s_addc_u32 s11, s9, 0")
    I(f"s_load_dword s{sEPN}, s[10:11], 0")
    if not opt("db", 1): I("s_barrier")
    I(f"v_lshrrev_b32 v1, 3, v0")
    I(f"v_lshlrev_b32 v{hda}, 2, v1")
    I(f"v_and_b32 v{u(9)}, 7, v0")
    I(f"v_and_b32 v5, 16, v0")
    I(f"v_lshlrev_b32 v5, 1, v5")
    I(f"v_xor_b32 v5, v5, v{u(1)}")
    I(f"v_lshlrev_b32 v{l16}, 4, v{lane}")
    I(f"v_and_b32 v{vCP}, 16, v{lane}")
    I(f"v_lshlrev_b32 v{vCP}, 2, v{vCP}")
    vXS, vXA = vR + 14, vR + 15
    I(f"v_xor_b32 v{vXS}, v{vCP}, v{l16}")
    I(f"v_and_b32 v{vCP}, 0x70, v{vXS}")
    if SOFF: I(f"v_subrev_u32 v{vCP}, {SOFF * 128}, v{vCP}")
    srd(sX, KA, KA+1, N*128)
    WLPOS = len(out)
    mark = len(out)
    OFF = opt("off", 20)
    lo0, hi0, lo1, hi1 = sT, sN, sMSK, sMSK + 1
    I(f"s_lshr_b32 s10, s{sW}, 1")
    I(f"s_mul_i32 s10, s10, 49")
    I(f"s_bitcmp1_b32 s{sW}, 0")
    I(f"s_cselect_b32 s{lo0}, {OFF}, -4")
    I(f"s_cselect_b32 s{hi0}, 28, {OFF - 17}")
    I(f"s_cselect_b32 s{lo1}, 45, {OFF}")
    I(f"s_add_i32 s{lo0}, s{lo0}, s10")
    I(f"s_add_i32 s{hi0}, s{hi0}, s10")
    I(f"s_add_i32 s{lo1}, s{lo1}, s10")
    I(f"s_add_i32 s{hi1}, s{lo0}, 32")
    I(f"s_max_i32 s{sWIN}, s{lo0}, 0")
    I(f"s_cmp_eq_u32 s{sW}, 7")
    I(f"s_cselect_b32 s{lo1}, {BN}, s{lo1}")
    I(f"s_cselect_b32 s{hi1}, {BN}, s{hi1}")
    I(f"v_lshrrev_b32 v{u(5)}, 5, v{lane}")
    def wloads():
        srd(q0, KA+10, KA+11, 8192)
        I(f"buffer_load_dwordx4 {rr(pW,4)}, v5, s[{q0}:{q0+3}], 0 offen"); vq.append("B")
        srd(q1, KA+12, KA+13, 2048)
        I(f"buffer_load_dwordx4 {rr(pW+4,4)}, v5, s[{q1}:{q1+3}], 0 offen"); vq.append("B")
        I(f"s_lshl_b32 s10, s7, 10")
        for kp, off in ((KA+8, WI_A), (KA+16, WI_V), (KA+14, WI_U)):
            I(f"s_mov_b32 s{q0}, s{kp}")
            I(f"s_mov_b32 s{q0+1}, s{kp+1}")
            I(f"s_add_u32 m0, s10, {WL + off}")
            I("s_nop 0")
            I(f"buffer_load_dwordx4 v5, s[{q0}:{q0+3}], 0 offen lds"); vq.append("W")
    def xloads():
        I(f"s_mul_i32 s10, s{sB}, {BN*128}")
        I(f"s_lshl_b32 s11, s7, 10")
        I(f"s_add_u32 s10, s10, s11")
        I(f"s_mul_i32 s11, s7, 1040")
        I(f"s_cmp_lg_u32 s7, 0")
        I(f"s_cbranch_scc1 K2_NOX3")
        for i in (3, 0, 1, 2):
            I(f"s_add_u32 m0, s11, {XO + i*8320}")
            I(f"s_add_u32 s14, s10, {i*8192}")
            I(f"buffer_load_dwordx4 v{vXS}, s[{sX}:{sX+3}], s14 offen lds")
            if i == 3: L("K2_NOX3")
            else: vq.append("X")
    srd(sEP, KA+2, KA+3, E*32)
    srd(sOUT, KA+18, KA+19, N*128)
    srd(sWS, 8, 9, WS_USED)
    I(f"v_lshrrev_b32 v{u(6)}, 5, v{tid}")
    I(f"v_and_b32 v{u(7)}, 15, v{tid}")
    I(f"v_cmp_eq_u32 vcc, v{u(6)}, v{u(7)}")
    I(f"v_and_b32 v{u(6)}, 16, v{tid}")
    I(f"v_mov_b32 v{u(7)}, 0x3f80")
    I(f"v_lshlrev_b32 v{u(7)}, v{u(6)}, v{u(7)}")
    I(f"v_cndmask_b32 v{u(7)}, 0, v{u(7)}, vcc")
    I(f"v_lshlrev_b32 v{u(6)}, 2, v{tid}")
    I(f"v_mov_b32 v{u(8)}, 0")
    I(f"ds_write_b32 v{u(6)}, v{u(7)}")
    if SM1:
        I(f"v_bfe_u32 v{u(7)}, v{tid}, 3, 1")
        I(f"v_and_b32 v{u(13)}, 7, v{tid}")
        I(f"v_lshl_add_u32 v{u(7)}, v{u(7)}, 2, v{u(13)}")
        I(f"v_lshrrev_b32 v{u(12)}, 6, v{tid}")
        I(f"v_cmp_eq_u32 vcc, v{u(7)}, v{u(12)}")
        I(f"v_bfe_u32 v{u(12)}, v{tid}, 4, 2")
        I(f"v_mov_b32 v{u(7)}, 0x3f80")
        I(f"v_cndmask_b32 v{u(7)}, 0, v{u(7)}, vcc")
        I(f"v_cmp_lt_u32 vcc, 3, v{u(13)}")
        I(f"v_mul_u32_u24 v{u(12)}, 0x5555, v{u(12)}")
        I(f"v_and_b32 v{u(13)}, 60, v{u(6)}")
        I(f"v_cndmask_b32 v{u(7)}, v{u(7)}, v{u(12)}, vcc")
        I(f"ds_write_b32 v{u(6)}, v{u(7)} offset:{T1B}")
        I(f"ds_write_b32 v{u(13)}, v{u(8)} offset:{T1B + 2048}")
    I(f"ds_write_b32 v{u(6)}, v{u(8)} offset:{ZROW}")
    I(f"ds_write2st64_b32 v{u(6)}, v{u(8)}, v{u(8)} offset0:{HIST//256} offset1:{HIST//256 + 8}")
    I(f"s_movk_i32 s{s128}, 128")
    I(f"s_mul_i32 s{sSTG}, s{sW}, {WST}")
    I(f"s_add_u32 s{sSTG}, s{sSTG}, {STG}")
    I(f"s_movk_i32 s{sSKIP}, {QCAP}")
    I(f"s_add_u32 s{sNUL}, s{sWIN}, 32")
    I(f"s_lshl_b32 s11, s{sWIN}, 6")
    I(f"s_mov_b32 s{sXT}, 0")
    I(f"v_bfe_u32 v{u(6)}, v{lane}, 4, 1")
    I(f"v_and_b32 v{vCH}, 1, v{lane}")
    I(f"v_lshlrev_b32 v{vCH}, 4, v{vCH}")
    I(f"v_lshlrev_b32 v{vC1}, 5, v{u(5)}")
    I(f"v_subrev_u32 v{vC1}, s11, v{vC1}")
    I(f"v_and_b32 v{u(7)}, 3, v{lane}")
    I(f"v_lshlrev_b32 v{u(7)}, 3, v{u(7)}")
    I(f"v_lshl_add_u32 v{vC2}, v{u(6)}, 5, v{u(7)}")
    I(f"v_subrev_u32 v{vC2}, s11, v{vC2}")
    I(f"v_bfe_u32 v{u(8)}, v{lane}, 2, 2")
    I(f"v_mul_u32_u24 v{u(8)}, 1040, v{u(8)}")
    I(f"v_lshl_add_u32 v{u(8)}, v{u(6)}, 9, v{u(8)}")
    I(f"v_lshl_add_u32 v{u(8)}, v{u(7)}, 4, v{u(8)}")
    I(f"v_bfe_u32 v{u(6)}, v{lane}, 1, 1")
    I(f"v_xor_b32 v{u(6)}, v{u(6)}, v{u(5)}")
    I(f"v_lshl_add_u32 v{u(8)}, v{u(6)}, 6, v{u(8)}")
    I(f"v_add_u32 v{vAX}, s{sSTG}, v{u(8)}")
    I(f"v_bfe_u32 v{u(6)}, v{lane}, 2, 3")
    I(f"v_add_u32 v{u(6)}, v{u(6)}, v{u(7)}")
    I(f"v_lshl_add_u32 v{u(6)}, v{u(6)}, 1, v{u(5)}")
    I(f"v_lshl_add_u32 v{vAE}, v{u(6)}, 4, s{sSTG}")
    I(f"v_add_u32 v{vAE}, 4160, v{vAE}")
    I(f"s_mul_i32 s{sL}, s{sW}, {LCAP*4}")
    I(f"s_add_u32 s{sL}, s{sL}, {R0}")
    listaddr(lane, u(6), u(7))
    def ownaddr(d, lab, t):
        I(f"v_and_b32 v{d}, 31, v{lab}")
        I(f"v_add_u32 v{d}, s{sWIN}, v{d}")
        I(f"v_bfe_u32 v{t}, v{d}, 1, 1")
        I(f"v_xor_b32 v{t}, v{t}, v{u(5)}")
        I(f"v_lshlrev_b32 v{t}, 6, v{t}")
        I(f"v_lshl_add_u32 v{t}, v{d}, 7, v{t}")
        I(f"v_lshrrev_b32 v{d}, 3, v{d}")
        I(f"v_lshl_add_u32 v{d}, v{d}, 4, v{t}")
        I(f"v_add_u32 v{d}, {XO}, v{d}")
    ownaddr(u(14), lane, u(6))
    I(f"v_lshrrev_b32 v{u(6)}, 1, v{lane}")
    I(f"v_xor_b32 v{u(6)}, v{u(6)}, v{lane}")
    I(f"v_and_b32 v{u(6)}, 4, v{u(6)}")
    I(f"v_mul_u32_u24 v{u(6)}, 3, v{u(6)}")
    I(f"v_xor_b32 v{u(6)}, v{u(6)}, v{lane}")
    ownaddr(vXA, u(6), u(7))
    I(f"v_mov_b32 v{vIX}, 0xdddd")
    I(f"v_lshlrev_b32 v{k4}, 2, v{u(9)}")
    vEB = vQ + 4
    I(f"v_mul_u32_u24 v{vEB}, {CH*8}, v{hda}")
    for i in range(1, 4):
        I(f"v_add_u32 v{vEB+i}, {64*i*CH*32}, v{vEB}")
    I(f"v_mov_b32 v{one}, 4")
    I(f"v_mov_b32 v{ecb}, 1")
    I(f"v_and_b32 v{u(11)}, 31, v{lane}")
    I(f"v_add_u32 v{u(11)}, s{sWIN}, v{u(11)}")
    I(f"v_lshlrev_b32 v{u(12)}, 4, v{u(11)}")
    I(f"v_lshl_add_u32 v{u(12)}, v{u(5)}, 3, v{u(12)}")
    for i in range(4): I(f"v_mov_b64 v[{vT2+2*i}:{vT2+2*i+1}], 0")
    I(f"s_lshl_b32 s{sEND}, s{sW}, 2")
    I(f"v_mov_b32 v{vMIN}, s{sEND}")
    I(f"v_lshlrev_b32 v{vMIN+1}, 2, v{u(11)}")
    static = out[mark:]; del out[mark:]
    WLP = opt("wl", 2)
    if WLP == 0: wloads()
    XP_ = opt("xp", 6)
    if XP_ == 0: xloads()
    SP = opt("sp0", 0)
    SPN = opt("spn", 1000)
    if SP:
        out.extend(static[:SPN]); static = static[SPN:]
    c1, c2, c3 = 60, 61, 62
    pm = 78
    pX = 23
    xb = lambda i: (23, 23, 23, 23, 31, 31, 39)[i]
    I(f"s_mov_b32 s{c1}, 85599")
    I(f"s_mov_b32 s{c2}, {-BN & 0xffffffff}")
    I(f"s_movk_i32 s{c3}, {H0}")
    I(f"v_mov_b32 v7, {KQ}")
    I(f"s_mov_b32 s10, {SOFF << 16}")
    I(f"v_lshl_add_u32 v{pI}, v{lane}, 10, s10")
    for i in range(1, 4): I(f"v_add_u32 v{pI+i}, {i << 8}, v{pI}")
    I(f"v_and_b32 v{pI+4}, 127, v{tid}")
    I(f"v_lshl_add_u32 v{pI+4}, v{pI+4}, 9, s10")
    I(f"v_add_u32 v{pI+5}, 256, v{pI+4}")
    I(f"v_lshl_add_u32 v{pI+6}, v{lane}, 8, s10")
    I(f"v_lshrrev_b32 v23, 6, v{tid}")
    I(f"v_lshrrev_b32 v31, 7, v{tid}")
    I(f"v_add_u32 v31, 8, v31")
    I(f"v_mov_b32 v39, 12")
    I(f"v_cmp_gt_u32 s[{pm}:{pm+1}], {CH - 3072}, v{tid}")
    I(f"s_mov_b32 s11, {RS}")
    I(f"v_lshlrev_b32 v3, 4, v{u(9)}")
    I(f"v_mad_u32_u24 v4, v1, s11, v3")
    I(f"v_mul_u32_u24 v6, {LROW // 4}, v1")
    I(f"v_lshl_add_u32 v6, v{u(9)}, 2, v6")
    I(f"v_lshlrev_b32 v3, 2, v6")
    I(f"v_add_u32 v3, {P_CIMG}, v3")
    I(f"v_add_u32 v6, {P_EIMG}, v6")
    I(f"v_mov_b32 v{vTM}, {TMASK:#x}")
    I(f"v_mov_b32 v15, 0x0f0f0f")
    X0 = (LROW // 16) * H0
    sSO = sCI
    def cload(i):
        so = "0" if i == 0 else f"s{sSO+i-1}"
        I(f"buffer_load_dwordx4 {rr(vC+4*i,4)}, v{u(1)}, s[{sCEL}:{sCEL+3}], {so} offen sc1")
    def cloads():
        if opt("dly", 0): I(f"s_sleep {opt('dly', 0)}")
        stamp('w')
        for i in range(4): cload(i); vq.append("C")
    def prod(idx):
        n = len(idx)
        for i in idx: I(f"v_mul_u32_u24 v{pB+i}, s{c1}, v{pD+i}")
        for i in idx: I(f"v_lshrrev_b32 v{pB+i}, 24, v{pB+i}")
        for i in idx:
            I(f"v_lshl_add_u32 v{pH+i}, v{pB+i}, 2, s{c3}")
            I(f"ds_add_rtn_u32 v{pK+i}, v{pH+i}, v7 offset:{P_HIST - H0}")
        for i in idx:
            I(f"v_mad_i32_i24 v{pD+i}, v{pB+i}, s{c2}, v{pD+i}")
            I(f"v_or_b32 v{pD+i}, v{pD+i}, v{pI+i}")
        for j, i in enumerate(idx):
            I(f"s_waitcnt lgkmcnt({n - 1})")
            I(f"v_lshrrev_b32 v{pK+i}, 16, v{pK+i}")
            I(f"v_min_u32 v{pA+i}, {QCAP}, v{pK+i}")
            I(f"v_mad_u32_u24 v{pA+i}, v{pH+i}, {LROW // 16}, v{pA+i}")
            I(f"v_lshlrev_b32 v{pB+i}, 2, v{pA+i}")
            I(f"ds_write_b8 v{pA+i}, v{xb(i)} offset:{P_EIMG - X0}")
    def prod2(idx):
        for i in idx:
            I(f"v_lshl_add_u32 v{pS+i}, v{pS+i}, 16, v{pD+i}")
            I(f"ds_write_b32 v{pB+i}, v{pS+i} offset:{P_CIMG - 4*X0}")
    if WLP == 1: wloads()
    stamp('q')
    I(f"s_waitcnt vmcnt({younger('D')})")
    stamp('d')
    prod(range(6))
    I(f"s_cmp_lg_u32 s7, 0")
    I("s_cbranch_scc1 K1_NO7")
    I(f"s_mov_b64 exec, s[{pm}:{pm+1}]")
    I("s_waitcnt lgkmcnt(0)")
    prod([6])
    I(f"s_waitcnt vmcnt({younger('S')})")
    prod2([6])
    I("s_mov_b64 exec, -1")
    L("K1_NO7")
    if WLP == 2: wloads()
    I(f"s_waitcnt vmcnt({younger('S')})")
    prod2(range(6))
    if XP_ == 4: xloads()
    I(f"s_lshl_b32 s15, s{sB}, 7")
    sST_ = sCEL
    srd(sST_, 8, 9, 511*RS + CELLB, "s15")
    I("s_waitcnt lgkmcnt(0)")
    I(f"s_add_u32 s{sEPN}, s{sEPN}, 1")
    I(f"s_and_b32 s10, s{sEPN}, 15")
    I(f"s_and_b32 s11, s{sEPN}, 0xf0")
    I(f"s_mul_i32 s{sTAG}, s10, 0x1010")
    I(f"s_lshl_b32 s11, s11, 16")
    I(f"s_xor_b32 s{sTAG}, s{sTAG}, 0xf000")
    I(f"s_or_b32 s{sTAG}, s{sTAG}, s11")
    I(f"s_mov_b32 s{sSPIN}, {opt('spin', 200000)}")
    I("s_barrier")
    stamp('i')
    oC, oE, oH, oA = vACC, vACC + 16, vACC + 20, vACC + 24
    I(f"ds_read_b128 {rr(oA,4)}, v{l16} offset:{P_HIST}")
    for i in range(4):
        I(f"ds_read_u16 v{oH+i}, v{hda} offset:{P_HIST + 256*i + 2}")
        I(f"ds_read_b32 v{oE+i}, v6 offset:{16*LROW*i}")
        I(f"ds_read_b128 {rr(oC+4*i,4)}, v3 offset:{64*LROW*i}")
    I("s_waitcnt lgkmcnt(12)")
    I(f"v_max3_u32 v1, v{oA}, v{oA+1}, v{oA+2}")
    I(f"v_max_u32 v1, v1, v{oA+3}")
    I(f"v_cmp_le_u32 vcc, {(QCAP + 1) << 16}, v1")
    I("s_mov_b32 s10, 0")
    I("s_cbranch_vccnz K1_OVF")
    L("K1_OUT")
    for i in range(4):
        r = oC + 4*i
        I(f"s_waitcnt lgkmcnt({9 - 3*i})")
        I(f"v_lshl_or_b32 v{oH+i}, v{oH+i}, 24, s{sTAG}")
        I(f"v_and_or_b32 v{r+3}, v{oE+i}, v15, v{oH+i}")
        I(f"buffer_store_dwordx4 {rr(r,4)}, v4, s[{sST_}:{sST_+3}], s10 offen sc1"); vq.append("O")
        I(f"s_add_u32 s10, s10, {64*RS}")
    I(f"v_max3_u32 v1, v{oH}, v{oH+1}, v{oH+2}")
    I(f"v_max_u32 v1, v1, v{oH+3}")
    I(f"v_cmp_le_u32 vcc, {33 << 24}, v1")
    I("s_cbranch_vccnz K1_EXT")
    L("K1_EXTR")
    stamp('o')
    if TS == 10:
        I("s_waitcnt vmcnt(0)")
        stamp('A')
    if opt("bar", 0): I("s_barrier")
    out.extend(static)
    I(f"s_mul_i32 s10, s{sB}, {RS}")
    srd(sCEL, 8, 9, NCH*CELLB, "s10")
    for k in (1, 2, 3):
        I(f"s_movk_i32 s{sSO+k-1}, {64*CELLB*k}")
    CP = opt("cp", 2)
    if CP == 0: cloads()
    I(f"s_mov_b32 s10, {f2u(-LOG2E):#x}")
    I(f"s_waitcnt vmcnt({younger('B')})")
    for i in range(8):
        I(f"v_lshlrev_b32 v{vAT+2*i}, 16, v{pW+i}")
        I(f"v_and_b32 v{vAT+2*i+1}, 0xffff0000, v{pW+i}")
    for i in range(16): I(f"v_mul_f32 v{vAT+i}, s10, v{vAT+i}")
    for i in range(8): I(f"v_cvt_pk_bf16_f32 v{pW+i}, v{vAT+2*i}, v{vAT+2*i+1}")
    I(f"ds_write_b128 v{u(1)}, {rr(pW,4)} offset:{WL + WI_B}")
    I(f"s_cmp_ge_u32 s7, 2")
    I("s_cbranch_scc1 K1_NOWC")
    I(f"ds_write_b128 v{u(1)}, {rr(pW+4,4)} offset:{WL + WI_C}")
    L("K1_NOWC")
    w0, w1, wc0, wc1, xa_ = vT1 + 1, vT1 + 2, vT1 + 3, vT1 + 4, vT
    I(f"v_bfe_u32 v{w0}, v{lane}, 2, 2")
    I(f"v_lshlrev_b32 v{w0}, 7, v{w0}")
    I(f"v_lshl_add_u32 v{w0}, v{vCH}, 2, v{w0}")
    I(f"v_and_b32 v{w1}, 16, v{lane}")
    I(f"v_and_b32 v{wc0}, 2, v{lane}")
    I(f"v_lshl_add_u32 v{w1}, v{wc0}, 2, v{w1}")
    I(f"v_and_b32 v{wc0}, 8, v{lane}")
    I(f"v_lshl_add_u32 v{w1}, v{wc0}, 2, v{w1}")
    I(f"v_add_u32 v{w0}, v{w0}, v{w1}")
    I(f"v_lshl_add_u32 v{wc0}, v{u(5)}, 10, v{w0}")
    I(f"v_lshl_add_u32 v{w0}, v{u(5)}, 12, v{w0}")
    I(f"v_xor_b32 v{w1}, 32, v{w0}")
    I(f"v_xor_b32 v{wc1}, 32, v{wc0}")
    def wtr(reg, img, ft, s_, c=False):
        ad = (wc0, wc1)[ft] if c else (w0, w1)[ft]
        return [f"ds_read_b64_tr_b16 {rr(reg+2*h_,2)}, v{ad} offset:{WL + img + 1024*s_ + 512*h_}" for h_ in range(2)]
    I(f"s_lshl_b32 s10, s7, 10")
    I(f"s_and_b32 s11, s7, 4")
    I(f"s_mul_i32 s11, s11, {8 - 1024}")
    I(f"s_add_u32 s11, s11, s10")
    I(f"v_xor_b32 v{xa_}, s11, v{w0}")
    I(f"s_waitcnt vmcnt({0 if opt('ack', 1) else younger('W')}) lgkmcnt(0)")
    I("s_barrier")
    if CP == 1: cloads()
    for h_ in range(2):
        I(f"ds_read_b64_tr_b16 {rr(vAT+2*h_,2)}, v{xa_} offset:{WL + WI_U + 512*h_}")
        I(f"ds_read_b64_tr_b16 {rr(vAT+4+2*h_,2)}, v{xa_} offset:{WL + WI_A + 512*h_}")
    I(f"v_add_u32 v{xa_}, s10, v{l16}")
    rest = []
    for reg, img in ((vWB, WI_B), (vWC, WI_C), (vWV, WI_V)):
        for ft in range(2):
            if img == WI_C: rest += wtr(vWC + 4*ft, WI_C, ft, 0, True)
            else:
                for s_ in range(4): rest += wtr(reg + 16*ft + 4*s_, img, ft, s_)
    for x_ in rest[:8]: I(x_)
    rest = rest[8:]
    I("s_waitcnt lgkmcnt(8)")
    I(f"ds_write_b128 v{xa_}, {rr(vAT,4)} offset:{WU}")
    I(f"ds_write_b128 v{xa_}, {rr(vAT+4,4)} offset:{WA}")
    while rest:
        I("s_waitcnt lgkmcnt(8)")
        for x_ in rest[:6]: I(x_)
        rest = rest[6:]
    stamp('k')
    sPH = 5
    I(f"s_mov_b32 s{sPH}, {PHM}")
    if CP == 2: cloads()
    SW1 = "dst_sel:DWORD dst_unused:UNUSED_PAD src0_sel:DWORD src1_sel:WORD_1"
    def haddr(d, r):
        return [f"v_mul_u32_u24_sdwa v{d}, s{sPH}, v{r} {SW1}", f"v_alignbit_b32 v{d}, v{r}, v{d}, 28", f"v_and_b32 v{d}, 0xffc, v{d}"]
    def remain(d, r, k):
        I(f"v_sub_u32_sdwa v{d}, v{r}, v{k} dst_sel:DWORD dst_unused:UNUSED_PAD src0_sel:BYTE_3 src1_sel:DWORD")
    for i in range(4):
        L(f"K2_CHK{i}")
        I(f"s_waitcnt vmcnt({3 - i})")
        r = vC + 4*i
        I(f"v_bitop3_b32 v{u(0)}, v{r+3}, s{sTAG}, v{vTM} bitop3:0x28")
        I(f"v_cmp_ne_u32 vcc, 0, v{u(0)}")
        remain(u(0), r + 3, k4)
        hs = [haddr(vA+3*i+j, r+j) for j in range(3)]
        for j in range(3): I(hs[j][0])
        I(f"s_cbranch_vccnz K2_RETRY{i}")
        if i == 0: stamp(1)
        for j in range(3):
            m = sM + 2*(3*i+j)
            I(f"v_cmp_lt_i32 s[{m}:{m+1}], {j}, v{u(0)}")
        for st in (1, 2):
            for j in range(3): I(hs[j][st])
        for j in range(3):
            m = sM + 2*(3*i+j)
            I(f"s_mov_b64 exec, s[{m}:{m+1}]")
            I(f"ds_add_rtn_u32 v{vRK+3*i+j}, v{vA+3*i+j}, v{one} offset:{HIST}")
        I("s_mov_b64 exec, -1")
    I(f"v_max3_u32 v{u(0)}, v{vC+3}, v{vC+7}, v{vC+11}")
    I(f"v_max_u32 v{u(0)}, v{u(0)}, v{vC+15}")
    I(f"v_cmp_le_u32 vcc, {33 << 24}, v{u(0)}")
    sSEL = sM + 24
    for j in range(3): I(f"s_mov_b32 s{sSEL+j}, {0x0c0c0001 | (4 + j) << 8:#x}")
    I(f"s_mov_b32 s{sSEL+3}, 0x05040100")
    I("s_cbranch_vccnz K2_XT1")
    L("K2_XT1R")
    vEO = vX
    fill = []
    for i in range(4):
        fill.append(f"v_and_b32 v{vC+4*i+3}, 0x0f0f0f, v{vC+4*i+3}")
    for i in range(4):
        for j in range(3): fill.append(f"v_perm_b32 v{vEO+3*i+j}, v{vC+4*i+3}, v{vC+4*i+j}, s{sSEL+j}")
    for i in range(4):
        for j in range(3): fill.append(f"v_lshl_add_u32 v{vEO+3*i+j}, v{vEO+3*i+j}, 5, v{vEB+i}")
    EPF, XPF = opt("epf", 0), opt("xpf", 0)
    def epref(fill):
        dm = vT1 + 6
        if XPF:
            I(f"s_lshr_b32 s10, s2, 3")
            I(f"s_mul_i32 s10, s10, {XPF}")
            I(f"v_cmp_gt_u32 vcc, {XPF}, v{tid}")
            I(f"v_add_lshl_u32 v{dm}, v{tid}, s10, 7")
            I("s_and_b64 exec, exec, vcc")
            I("s_cbranch_execz K2_NOXPF")
            I(f"buffer_load_dword v{dm}, v{dm}, s[{sX}:{sX+3}], 0 offen")
            L("K2_NOXPF")
            I("s_mov_b64 exec, -1")
        while fill: I(fill.pop(0))
        I(f"s_mov_b32 s10, {(SOFF + opt('et', T0)) << 16:#x}")
        for s in range(12):
            m = sM + 2*s
            I(f"s_mov_b64 exec, s[{m}:{m+1}]")
            I(f"v_cmpx_gt_u32 vcc, s10, v{vC+4*(s//3)+s%3}")
            I(f"buffer_load_dword v{dm}, v{vEO+s}, s[{sEP}:{sEP+3}], 0 offen")
        I("s_mov_b64 exec, -1")
    if XP_ == 5: xloads()
    if EPF == 1: epref(fill)
    MT, MTP = opt("mt", 0), opt("mtp", 0)
    def mtouch():
        dm = vT1 + 6
        I(f"s_mul_i32 s10, s{sB}, {CH*32}")
        for k in range((MT + 511) // 512):
            n = min(512, MT - 512*k)
            I(f"v_min_u32 v{dm+1}, {n - 1}, v{tid}")
            I(f"v_lshlrev_b32 v{dm+1}, {opt('mts', 7)}, v{dm+1}")
            if n < 512:
                I(f"s_cmp_ge_u32 s7, {(n + 63) // 64}")
                I(f"s_cbranch_scc1 K2_NOMT{k}")
            I(f"buffer_load_dword v{dm}, v{dm+1}, s[{sEP}:{sEP+3}], s10 offen")
            if n < 512: L(f"K2_NOMT{k}")
            I(f"s_add_u32 s10, s10, 65536")
    if MT and MTP == 0: mtouch()
    stamp('s')
    I("s_waitcnt lgkmcnt(0)")
    I("s_barrier")
    stamp(2)
    c, p, tot, sc = u(0), u(4), u(8), u(9)
    own, ownn, owna = u(10), u(11), u(12)
    SD = "dst_sel:DWORD dst_unused:UNUSED_PAD src0_sel:WORD_0 src1_sel:WORD_0"
    for i in range(4):
        I(f"ds_read_b128 {rr(hh+4*i,4)}, v{l16} offset:{HIST + 1024*i}")
    I(f"ds_read_b64 v[{u(6)}:{u(7)}], v{owna} offset:{HIST}")
    if XP_ == 6: xloads()
    if EPF == 2: epref(fill)
    if MT and MTP == 1: mtouch()
    for k in range(8):
        if fill: I(fill.pop(0))
    for i in range(4):
        I(f"s_waitcnt lgkmcnt({4 - i})")
        I(f"v_add_u32_sdwa v{c+i}, v{hh+4*i}, v{hh+4*i+1} {SD}")
        I(f"v_add_u32_sdwa v{hh+4*i}, v{hh+4*i+2}, v{hh+4*i+3} {SD}")
        I(f"v_add_u32 v{c+i}, v{c+i}, v{hh+4*i}")
    I(f"v_lshl_or_b32 v{p}, v{c+1}, 16, v{c}")
    I(f"v_lshl_or_b32 v{p+1}, v{c+3}, 16, v{c+2}")
    I("s_waitcnt lgkmcnt(0)")
    I(f"v_perm_b32 v{own}, v{u(7)}, v{u(6)}, s{sSEL+3}")
    for dp in ["row_shr:%d row_mask:0xf bank_mask:0xf bound_ctrl:0" % sh for sh in (1, 2, 4, 8)] + \
              ["row_bcast:15 row_mask:0xa bank_mask:0xf", "row_bcast:31 row_mask:0xc bank_mask:0xf"]:
        I(f"v_add_u32_dpp v{p}, v{p}, v{p} {dp}")
        I(f"v_add_u32_dpp v{p+1}, v{p+1}, v{p+1} {dp}")
        I(fill.pop(0) if fill else "s_nop 0")
    I(f"v_readlane_b32 s10, v{p}, 63")
    I(f"v_readlane_b32 s11, v{p+1}, 63")
    for i in range(4):
        I(f"v_lshlrev_b32_sdwa v{hh+i}, v{ecb}, v{p+(i>>1)} dst_sel:DWORD dst_unused:UNUSED_PAD src0_sel:DWORD src1_sel:WORD_{i&1}")
        I(f"v_sub_u32 v{c+i}, v{hh+i}, v{c+i}")
    b1, b2, b3 = 4, 5, 6
    I(f"s_and_b32 s{b1}, s10, 0xffff")
    I("s_lshr_b32 s10, s10, 16")
    I(f"s_add_u32 s{b2}, s{b1}, s10")
    I("s_and_b32 s10, s11, 0xffff")
    I(f"s_add_u32 s{b3}, s{b2}, s10")
    I("s_lshr_b32 s11, s11, 16")
    I(f"s_add_u32 s10, s{b3}, s11")
    for i, b in ((1, b1), (2, b2), (3, b3)):
        I(f"v_lshl_add_u32 v{c+i}, s{b}, 1, v{c+i}")
    KV = opt("kv", "1_4_3232_5") if SBK else ""
    if KV:
        klo, khi, kref, ksh = [int(x) for x in KV.split("_")]
        I(f"s_sub_i32 s{sSB}, {4*kref}, s10")
        I(f"s_ashr_i32 s{sSB}, s{sSB}, {ksh + 2}")
        I(f"s_max_i32 s{sSB}, s{sSB}, {klo}")
        I(f"s_min_i32 s{sSB}, s{sSB}, {khi}")
    I("s_lshr_b32 s11, s10, 5")
    I(f"s_add_u32 s11, s11, 16")
    I("s_and_b32 s11, s11, -32")
    if KV:
        I(f"s_cmp_ge_i32 s{sSB}, {opt('shk', 1)}")
        I(f"s_cselect_b32 s{sF0}, {ASYM + 32}, {ASYM}")
        I(f"s_sub_i32 s11, s11, s{sF0}")
        I(f"s_cmp_lt_i32 s{sSB}, 1")
        I(f"s_cselect_b32 s{sSB}, -1, s{sSB}")
    else: I(f"s_sub_i32 s11, s11, {ASYM + 32*opt('sh', 1)}")
    I("s_lshl_b32 s11, s11, 3")
    I("s_lshr_b32 s10, s10, 1")
    I(f"s_lshr_b32 s{sF0}, s{sW}, 1")
    I(f"s_mul_i32 s{sF0}, s{sF0}, s10")
    I(f"s_add_i32 s11, s11, s{sF0}")
    I(f"s_add_i32 s10, s10, s{sF0}")
    I(f"s_bitcmp1_b32 s{sW}, 0")
    I(f"s_cselect_b32 s{sEND}, s11, s{sF0}")
    I("s_cselect_b32 s10, s10, s11")
    I(f"s_mov_b32 s{sF0}, 0")
    I(f"s_mov_b32 s{sF1}, 0")
    for i in range(4):
        I(f"v_cmp_gt_i32 vcc, s{sEND}, v{c+i}")
        I(f"v_cmp_gt_i32 s[{sTMP}:{sTMP+1}], s10, v{c+i}")
        I("s_bcnt1_i32_b64 s11, vcc")
        I(f"s_add_u32 s{sF0}, s{sF0}, s11")
        I(f"s_bcnt1_i32_b64 s11, s[{sTMP}:{sTMP+1}]")
        I(f"s_add_u32 s{sF1}, s{sF1}, s11")
    I(f"s_max_i32 s{sF0}, s{sF0}, s{lo0}")
    I(f"s_min_i32 s{sF0}, s{sF0}, s{hi0}")
    I(f"s_max_i32 s{sF1}, s{sF1}, s{lo1}")
    I(f"s_min_i32 s{sF1}, s{sF1}, s{hi1}")
    I(f"v_cmp_le_u32 vcc, s{sF0}, v{ownn}")
    I(f"v_cmp_gt_u32 s[10:11], s{sF1}, v{ownn}")
    I(f"s_mov_b32 s{sMORE}, 2")
    I("s_and_b64 vcc, vcc, s[10:11]")
    I(f"v_cndmask_b32 v{own}, 0, v{own}, vcc")
    I(f"v_mov_b32 v{tot}, v{own}")
    wave_scan(tot, fill, half=True)
    for x_ in fill: I(x_)
    I(f"s_sub_u32 s{sTMP}, s{sL}, {R0}")
    I(f"v_readlane_b32 s10, v{tot}, 31")
    I(f"v_readlane_b32 s11, v{tot}, 63")
    I(f"v_sub_u32 v{tot}, v{tot}, v{own}")
    I(f"v_mov_b32 v{vOWN}, v{u(14)}")
    I(f"s_and_b32 s{sTH}, s10, 0xffff")
    I("s_lshr_b32 s10, s10, 16")
    I(f"s_add_u32 s{sTH+1}, s{sTH}, s10")
    I("s_and_b32 s10, s11, 0xffff")
    I(f"s_add_u32 s{sTH+2}, s{sTH+1}, s10")
    I("s_lshr_b32 s11, s11, 16")
    I(f"s_add_u32 s{sEND}, s{sTH+2}, s11")
    I(f"s_lshl_b32 s10, s{sTH}, 16")
    I(f"s_pack_ll_b32_b16 s11, s{sTH+1}, s{sTH+2}")
    I(f"s_pack_ll_b32_b16 s{sTMP}, s{sTMP}, s{sTMP}")
    I(f"s_add_u32 s10, s10, s{sTMP}")
    I(f"s_add_u32 s11, s11, s{sTMP}")
    I("s_mov_b32 exec_lo, vcc_lo")
    I("s_mov_b32 exec_hi, 0")
    I(f"v_add_u32 v{tot}, s10, v{tot}")
    I("s_mov_b32 exec_lo, 0")
    I("s_mov_b32 exec_hi, vcc_hi")
    I(f"v_add_u32 v{tot}, s11, v{tot}")
    I("s_mov_b64 exec, vcc")
    I(f"ds_write_b16 v{owna}, v{tot} offset:{HIST + 2}")
    I(f"ds_write_b16_d16_hi v{owna}, v{tot} offset:{HIST + 6}")
    I(f"ds_write_b32 v{vMIN+1}, v{vMIN} offset:{MAP}")
    I("s_mov_b64 exec, -1")
    I(f"v_mov_b32 v{sc}, {FLAG}")
    I(f"s_cmp_le_u32 s{sEND}, {LMAX*4}")
    I("s_cbranch_scc1 K2_LFIT")
    I(f"ds_write_b32 v{sc}, v{sc}")
    I(f"s_mov_b32 s{sEND}, 0")
    L("K2_LFIT")
    I(f"s_add_u32 s{sEND}, s{sEND}, s{sL}")
    for k in range(3):
        I(f"s_add_i32 s{sTH+k}, s{sTH+k}, {opt('tho', 64)}")
        I(f"s_lshr_b32 s{sTH+k}, s{sTH+k}, 7")
    pads(lane, u(0), u(1), u(2))
    I(f"v_mov_b32 v{u(0)}, s{sEND}")
    I(f"ds_write_b32 v{vMIN}, v{u(0)} offset:{CNT}")
    I("s_waitcnt lgkmcnt(0)")
    stamp('a')
    I("s_barrier")
    stamp('b')
    I(f"ds_read_b64 v[{u(6)}:{u(7)}], v{sc}")
    for s in range(12):
        m = sM + 2*s
        I(f"s_mov_b64 exec, s[{m}:{m+1}]")
        I(f"ds_read_u16 v{vA+s}, v{vA+s} offset:{HIST + 2}")
    I("s_mov_b64 exec, -1")
    I(f"s_waitcnt lgkmcnt(0)")
    I(f"v_readfirstlane_b32 s{sST}, v{u(6)}")
    I(f"v_readfirstlane_b32 s{sCUR}, v{u(7)}")
    for s in range(12): I(f"v_add_u32 v{vA+s}, v{vA+s}, v{vRK+s}")
    I(f"s_cmp_gt_u32 s{sST}, {XMAX}")
    I("s_cbranch_scc1 K2_OVF")
    for s in range(12):
        m = sM + 2*s
        I(f"s_mov_b64 exec, s[{m}:{m+1}]")
        I(f"ds_write2st64_b32 v{vA+s}, v{vC+4*(s//3)+s%3}, v{vEO+s} offset0:{R0//256} offset1:{R1//256}")
    I("s_mov_b64 exec, -1")
    I(f"s_cmp_lg_u32 s{sXT}, 0")
    I("s_cbranch_scc1 K2_XT2")
    L("K2_PADS0")
    I("s_waitcnt vmcnt(0)")
    I("s_waitcnt lgkmcnt(0)")
    stamp('c')
    I("s_barrier")
    I(f"s_cmp_lg_u32 s{sST}, 0")
    I("s_cbranch_scc1 K2_XT3")
    L("K2_GO")
    stamp(3)
    STAG = opt("stag", 1)
    I(f"ds_read_b128 {rr(vQD,4)}, v{vARX}")
    I(f"ds_read_b32 v{vR1}, v{vARE}")
    I(f"ds_read_u8 v{vL1}, v{vARP}")
    I("s_waitcnt lgkmcnt(1)")
    EM = opt("em", 0xAA)
    if STAG == 1:
        I(f"s_movk_i32 s10, {EM}")
        I(f"s_bitcmp1_b32 s10, s{sW}")
        I("s_cbranch_scc0 K2_LATE0")
    for s in dma_tile(0): I(s)
    if STAG == 2:
        I(f"s_bitcmp1_b32 s{sW}, 0")
        I("s_cbranch_scc1 K2_LATE0")
        I("s_waitcnt vmcnt(0)")
    L("K2_LATE0")
    I(f"s_cmp_lg_u32 s{sMORE}, 2")
    I("s_cbranch_scc1 K2_BUILT")
    vWA = vACC
    for q in range(4): I(f"ds_read_b128 {rr(vX+4*q,4)}, v{vXA} offset:{16*q}")
    I(f"v_add_u32 v{l16}, 8192, v{l16}")
    for k in range(8): I(f"ds_read_b128 {rr(vWA+4*k,4)}, v{l16} offset:{WA - 8192 + 1024*k}")
    I(f"s_mov_b32 s10, {f2u(1e-6):#x}")
    I(f"s_mov_b32 s11, s10")
    I(mfma(NUM(1), vT2, vT2))
    for i in range(8): I(f"v_mov_b64 v[{DEN(1)+2*i}:{DEN(1)+2*i+1}], s[10:11]")
    for k in range(8):
        D = (vP, vQ)[k >> 2]
        I(f"s_waitcnt lgkmcnt({7 - k})")
        I(mfma(D, vX + 4*(k & 3), vWA + 4*k, None if k & 3 == 0 else D))
    I(mfma(NUM(0), vT2, vT2))
    for i in range(8): I(f"v_mov_b64 v[{DEN(0)+2*i}:{DEN(0)+2*i+1}], s[10:11]")
    I(f"s_mov_b32 s10, {f2u(-LOG2E):#x}")
    for i in range(32): I(f"v_mul_f32 v{vP+i}, s10, v{vP+i}")
    for i in range(16): I(f"v_cvt_pk_bf16_f32 v{vAT+i}, v{vP+2*i}, v{vP+2*i+1}")

    if SBK and not KV: I(f"s_mov_b32 s{sSB}, {SBK}")
    I(f"s_mov_b32 s{sCI}, -1")
    I(f"s_mov_b64 s[{sMSK}:{sMSK+1}], 0")
    I(f"s_mov_b32 s{sR0}, 0")
    I(f"s_mov_b32 s{sCNT}, 0")
    I(f"s_cmp_lg_u32 s{sCUR}, 0")
    I(f"s_cselect_b32 s{sMORE}, 1, 0")
    L("K2_BUILT")
    I("s_waitcnt lgkmcnt(0)")
    I(f"v_lshl_add_u32 v{vL1}, v{vL1}, 6, v{vC1}")
    if STAG == 1:
        I(f"s_movk_i32 s10, {EM}")
        I(f"s_bitcmp1_b32 s10, s{sW}")
        I("s_cbranch_scc1 K2_HAD0")
        YP = opt("yp", "")
        if YP:
            I(f"s_cmp_lt_i32 s{sSB}, 0")
            I("s_cbranch_scc1 K2_NOYP")
            I(f"v_lshl_add_u32 v{vR}, v{lane}, 2, s{sL}")
            its = YP.split("_")
            for k, it in enumerate(its):
                off = int(it[1:]) * 256 + (LCAP*4 if it[0].isupper() else 0) + (R1 - R0 if it[0] in "eE" else 0)
                I(f"ds_read_b32 v{vR+1+k}, v{vR} offset:{off}")
            for k, it in enumerate(its):
                I(f"s_waitcnt lgkmcnt({len(its) - 1 - k})")
                if it[0] in "xX":
                    I(f"v_mad_u32_u16 v{vR+1+k}, v{vR+1+k}, s{s128}, v{vCP} op_sel:[1,0,0,0]")
                sr = sEP if it[0] in "eE" else sX
                I(f"buffer_load_dword v{vT1+6}, v{vR+1+k}, s[{sr}:{sr+3}], 0 offen")
            L("K2_NOYP")
        if SBK and opt("sbl", 1):
            I(f"s_cmp_lt_i32 s{sSB}, 0")
            I("s_cbranch_scc1 K2_SBY")
            I("s_barrier")
            I(f"s_mov_b32 s{sSB}, -1")
            L("K2_SBY")
        if opt("ys", 0): I(f"s_sleep {opt('ys', 0)}")
        for s in dma_tile(0): I(s)
        L("K2_HAD0")
    I(f"ds_read_b128 {rr(vQD,4)}, v{vARX} offset:128")
    I(f"ds_read_b32 v{vR1}, v{vARE} offset:128")
    for s in t1_reads(): I(s)
    I(mfma(vQ, vT2, vT2))
    stamp(4)
    I("s_waitcnt vmcnt(0)")
    stamp(5)
    I(f"ds_read_b128 {rr(vE,4)}, v{vAE}")
    for q in range(4):
        I(f"ds_read_b128 {rr(vX+4*q,4)}, v{vAX} offset:{16*q}")
    I("s_waitcnt lgkmcnt(0)")
    I(f"s_cmp_eq_u32 s{sN}, 0")
    I("s_cbranch_scc1 K2_DONE")
    YC = opt("yc", 0) or (SBK and not opt("sbl", 1))
    if YC:
        for x_ in dma_tile(0): I(x_)
        I(f"s_movk_i32 s10, {EM}")
        I(f"s_bitcmp1_b32 s10, s{sW}")
        I("s_cbranch_scc1 K2_NOYC")
        if not SBK: I(f"s_sleep {YC}")
        else:
            I(f"s_cmp_lt_i32 s{sSB}, 0")
            I("s_cbranch_scc1 K2_SBY")
            I("s_barrier")
            I(f"s_mov_b32 s{sSB}, -1")
            L("K2_SBY")
        L("K2_NOYC")
    for s in g_mfmas(vP, 0):
        if s.startswith("v_smfmac"):
            if YC: I("s_nop 9")
            else:
                for x_ in dma_tile(0): I(x_)
        I(s)
    I(f"s_mov_b32 s{sT}, 0")
    sEV = 87
    def prio_code(uid):
        return [f"s_cmp_ge_u32 s{sT}, s{sEV}", f"s_cbranch_scc1 K2_EV{uid}", f"K2_EVR{uid}:"]
    def next_event():
        I(f"s_mov_b32 s{sEV}, s{sN}")
        for r in [sTH, sTH+1, sTH+2] + ([sSB] if SBK else []):
            I(f"s_cmp_gt_i32 s{r}, s{sT}")
            I(f"s_cselect_b32 s10, s{r}, s{sEV}")
            I(f"s_min_u32 s{sEV}, s{sEV}, s10")
    YK = opt("yk", 2)
    if YK:
        I(f"s_sub_u32 s10, s{sN}, {YK - 1 if YK < 10 else 0}")
        I(f"s_bitcmp1_b32 s{sW}, 0")
        I(f"s_cselect_b32 s{sTH+2}, s{sTH+2}, s10")
    I("s_setprio 3")
    next_event()
    tst = ["s_memrealtime s[98:99]", "s_waitcnt lgkmcnt(0)", "s_mov_b32 m0, s72", "s_nop 0", "v_writelane_b32 v255, s98, m0", "s_memtime s[98:99]", "s_waitcnt lgkmcnt(0)", "s_add_u32 m0, s72, 32", "s_nop 0", "v_writelane_b32 v255, s98, m0"] if TS == 4 else []
    body = tst + phaseA(0) + phaseB(0)
    body += prio_code(0)
    body += tst + phaseA(1) + phaseB(1)
    body += [f"v_add_u32 v{r}, 0x100, v{r}" for r in (vARX, vARP, vARE, vART)]
    body += [f"s_cmp_lt_u32 s{sT}, s{sEV}", f"s_cbranch_scc1 K2_LOOP"]
    check_body(body)
    DBG = opt("dbg", "")
    if "ell" in DBG:
        nb = []
        for b in body:
            if b.startswith("v_smfmac") and b.endswith(f"v{vIX}"): continue
            if b.startswith("v_smfmac") and "noA" in DBG: continue
            if b.startswith("ds_read_b64_tr") or b.startswith("ds_read_u8 v23") or b.startswith("v_lshl_add_u32 v23"): continue
            m = re.fullmatch(r"v_mul_f32 v(\d+), v(\d+), v\d+", b)
            if m:
                h, g = int(m.group(1)), int(m.group(2)); ft = 0 if g < vQ else 1; i = h - vQ
                nb.append(f"v_fmac_f32 v{NUM(ft)+i}, v{g}, v{h}")
                nb.append(f"v_add_f32 v{DEN(ft)+i}, v{DEN(ft)+i}, v{g}")
                continue
            nb.append(b)
        body = nb
    if "half" in DBG:
        body = [b for b in body if not (b.startswith("v_smfmac") and b.endswith(f"v{vIX}") and f"v[{vT2+4}:" in b)]
    if "nodma" in DBG: body = [b for b in body if not b.startswith("buffer_load")]
    emit(".p2align 6")
    L("K2_LOOP")
    for s in body:
        if s.endswith(":"): L(s[:-1])
        else: I(s)
    for uid in (1, 0):
        if uid == 0: L("K2_EV0")
        I(f"s_cmp_ge_u32 s{sT}, s{sN}")
        I("s_cbranch_scc1 K2_TAIL")
        if SBK:
            I(f"s_cmp_lg_u32 s{sT}, s{sSB}")
            I(f"s_cbranch_scc1 K2_SB{uid}")
            I("s_barrier")
            I(f"s_mov_b32 s{sSB}, -1")
            L(f"K2_SB{uid}")
        for k in range(3):
            I(f"s_cmp_lg_u32 s{sT}, s{sTH+k}")
            I(f"s_cbranch_scc1 K2_PR{uid}_{k}")
            I(f"s_setprio {2-k}")
            L(f"K2_PR{uid}_{k}")
        next_event()
        I("s_branch K2_LOOP" if uid else "s_branch K2_EVR0")
    L("K2_TAIL")
    for s in s_mfmas(NUM(1), vQ): I(s)
    L("K2_DONE")
    if SBK:
        I(f"s_cmp_lt_i32 s{sSB}, 0")
        I("s_cbranch_scc1 K2_SBD")
        I("s_barrier")
        I(f"s_mov_b32 s{sSB}, -1")
        L("K2_SBD")
    I(f"s_cmp_lg_u32 s{sMORE}, 0")
    I("s_cbranch_scc1 K2_SLOW")
    L("K2_EPI")
    stamp(6)
    I(f"v_lshlrev_b32 v{vT}, 4, v{lane}")
    for q in range(4):
        I(f"ds_read_b128 {rr(vX+4*q,4)}, v{vOWN} offset:{16*q}")
    for k in range(8):
        I(f"ds_read_b128 {rr(vWB+4*k,4)}, v{vT} offset:{WU + 1024*k}")
    I(f"v_and_b32 v{vQD+1}, 31, v{lane}")
    I(f"v_and_b32 v{vC1}, 32, v{lane}")
    I(f"v_mul_u32_u24 v{vC2}, 144, v{vQD+1}")
    I(f"v_lshrrev_b32 v{vQD+2}, 2, v{vC1}")
    I(f"v_lshl_add_u32 v{vQD+1}, v{vQD+1}, 6, v{vQD+2}")
    for s_ in range(2):
        I(f"ds_read2_b64 {rr(vT2+4*s_,4)}, v{vQD+1} offset0:{4*s_} offset1:{4*s_+2}")
    I("s_waitcnt lgkmcnt(10)")
    for i in range(16):
        I(f"v_lshlrev_b32 v{vWV+2*i}, 16, v{vX+i}")
        I(f"v_and_b32 v{vWV+2*i+1}, 0xffff0000, v{vX+i}")
    I(f"v_lshl_add_u32 v{vT+1}, v{vC1}, 1, v{vC2}")
    I(f"v_add_u32 v{vT+1}, s{sSTG}, v{vT+1}")
    I(f"s_sub_u32 s10, s{sF0}, s{sWIN}")
    I("s_mul_i32 s10, s10, 144")
    I(f"s_add_u32 s10, s10, s{sSTG}")
    I(f"v_lshrrev_b32 v{vQD}, 3, v{lane}")
    I(f"v_lshl_add_u32 v{vQD}, v{vQD}, 4, v{vT}")
    I(f"v_add_u32 v{vQD}, s10, v{vQD}")
    I(f"s_mul_i32 s10, s{sB}, {BN}")
    I(f"s_add_u32 s11, s10, s{sF1}")
    I(f"s_add_u32 s10, s10, s{sF0}")
    I(f"s_min_u32 s11, s11, {N}")
    I(f"s_min_u32 s10, s10, {N}")
    I("s_sub_u32 s11, s11, s10")
    I("s_lshl_b32 s10, s10, 7")
    I(f"s_add_u32 s{sOUT}, s{sOUT}, s10")
    I(f"s_addc_u32 s{sOUT+1}, s{sOUT+1}, 0")
    I(f"s_lshl_b32 s{sOUT+2}, s11, 7")
    for ft, D in ((0, vP), (1, vQ)):
        for q in range(4):
            I(f"s_waitcnt lgkmcnt({9 - 4*ft - q})")
            I(mfma(D, vWB+16*ft+4*q, vX+4*q, vWV+16*ft if q == 0 else D))
            for i in range(4):
                r = DEN(ft) + 4*q + i
                I(f"v_rcp_f32 v{r}, v{r}")
    I("s_waitcnt lgkmcnt(0)")
    for ft, D in ((0, vP), (1, vQ)):
        for i in range(16):
            I(f"v_mul_f32 v{NUM(ft)+i}, v{NUM(ft)+i}, v{DEN(ft)+i}")
        for i in range(8):
            I(f"v_cvt_pk_bf16_f32 v{DEN(ft)+i}, v{NUM(ft)+2*i}, v{NUM(ft)+2*i+1}")
        I(mfma(D, DEN(ft), vT2, D))
        I("s_nop 0")
        I(mfma(D, DEN(ft)+4, vT2+4, D))
    for q in range(4):
        for i in range(8*q, 8*q+8):
            I(f"v_max_f32 v{vP+i}, v{vP+i}, v{vWV+i}")
        for d in range(4):
            i = 4*q + d
            I(f"v_cvt_pk_bf16_f32 v{vR+i}, v{vP+2*i}, v{vP+2*i+1}")
        I(f"ds_write_b128 v{vT+1}, {rr(vR+4*q,4)} offset:{16*q}")
    for q in range(4):
        I(f"ds_read_b128 {rr(vX+4*q,4)}, v{vQD} offset:{8*144*q}")
    for q in range(4):
        I(f"s_waitcnt lgkmcnt({3-q})")
        I(f"buffer_store_dwordx4 {rr(vX+4*q,4)}, v{vT}, s[{sOUT}:{sOUT+3}], 0 offen offset:{1024*q}{pol(K2_OP)}")
    I(f"s_add_u32 s10, s2, s7")
    I("s_cmp_lg_u32 s10, 0")
    I("s_cbranch_scc1 K2_NOEP")
    I(f"v_mov_b32 v{vP}, {WS_EPOCH}")
    I(f"v_mov_b32 v{vP+1}, s{sEPN}")
    I(f"buffer_store_dword v{vP+1}, v{vP}, s[{sWS}:{sWS+3}], 0 offen sc1")
    L("K2_NOEP")
    if TS == 2 or opt("tsn", 0): I(f"s_mov_b32 s89, s{sN}")
    if TS == 8:
        I(f"s_sub_u32 s94, {opt('spin', 200000)}, s{sSPIN}")
        I(f"s_mul_i32 s94, s94, 100")
        I(f"s_add_u32 s94, s94, s88")
    if TS: I(f"s_mov_b32 s{sW}, s7")
    if TS == 4:
        I("s_mov_b64 exec, -1")
        I(f"s_lshl_b32 s87, s2, 11")
        I(f"s_add_u32 s87, s87, {WS_TS + 0x180000}")
        I(f"s_lshl_b32 s86, s{sW}, 8")
        I("s_add_u32 s87, s87, s86")
        I(f"v_lshl_add_u32 v{vP}, v{lane}, 2, s87")
        I(f"global_store_dword v{vP}, v255, s[8:9]")
    stamp_out(8, 8, sW, 8, 0x100000, vP)
    L("K2_END")
    I("s_endpgm")
    def spin():
        if opt("slp", 1): I(f"s_sleep {opt('slp', 1)}")
        I(f"s_sub_u32 s{sSPIN}, s{sSPIN}, 1")
        I("s_cbranch_scc1 K2_END")
    for i in range(4):
        L(f"K2_RETRY{i}")
        spin()
        I("s_waitcnt vmcnt(0)")
        for j in range(i, 4):
            I(f"v_bitop3_b32 v{u(0)}, v{vC+4*j+3}, s{sTAG}, v{vTM} bitop3:0x28")
            for dp in ("quad_perm:[1,0,3,2]", "quad_perm:[2,3,0,1]", "row_half_mirror"):
                I("s_nop 1")
                I(f"v_or_b32_dpp v{u(0)}, v{u(0)}, v{u(0)} {dp} row_mask:0xf bank_mask:0xf")
            I(f"v_cmp_ne_u32 vcc, 0, v{u(0)}")
            I("s_and_b64 exec, exec, vcc")
            I(f"s_cbranch_execz K2_RT{i}{j}")
            cload(j)
            L(f"K2_RT{i}{j}")
            I("s_mov_b64 exec, -1")
        I("s_waitcnt vmcnt(0)")
        I(f"s_branch K2_CHK{i}")
    L("K1_EXT")
    I(f"s_mov_b32 s14, 0x0f0f0f0f")
    I(f"s_mov_b32 s15, s14")
    for i in range(4):
        I(f"ds_read_b32 v{oE+i}, v6 offset:{16*LROW*i + 32}")
        I(f"ds_read_b128 {rr(pD+8*i,4)}, v3 offset:{64*LROW*i + 128}")
    I("s_waitcnt lgkmcnt(0)")
    for i in range(4):
        I(f"v_cmp_le_u32 vcc, {33 << 24}, v{oH+i}")
        I(f"v_and_or_b32 v{pD+8*i+3}, v{oE+i}, v15, v{oH+i}")
        I("s_and_b64 exec, vcc, s[14:15]")
        I(f"s_cbranch_execz K1_EX{i}")
        I(f"buffer_store_dwordx4 {rr(pD+8*i,4)}, v4, s[{sST_}:{sST_+3}], s10 offen sc1")
        L(f"K1_EX{i}")
        I("s_mov_b64 exec, -1")
        I(f"s_add_u32 s10, s10, {64*RS}")
    I("s_branch K1_EXTR")
    L("K1_OVF")
    t = vAT
    for i in range(4):
        I(f"v_lshrrev_b32 v{t+i}, 16, v{oA+i}")
        I(f"v_lshrrev_b32 v{t+4}, 18, v{oA+i}")
        I(f"v_sub_u32 v{t+i}, v{t+i}, v{t+4}")
    I(f"v_add_u32 v{t+5}, v{t}, v{t+1}")
    I(f"v_add_u32 v{t+6}, v{t+5}, v{t+2}")
    I(f"v_add_u32 v{t+7}, v{t+6}, v{t+3}")
    I(f"v_mov_b32 v1, v{t+7}")
    wave_scan(1)
    I("s_nop 0")
    I(f"v_sub_u32 v{t+4}, v1, v{t+7}")
    I(f"v_add_u32 v{t+7}, v{t+4}, v{t+6}")
    I(f"v_add_u32 v{t+6}, v{t+4}, v{t+5}")
    I(f"v_add_u32 v{t+5}, v{t+4}, v{t}")
    for i in range(4):
        I(f"v_lshl_or_b32 v{t+4+i}, v{t+i}, 16, v{t+4+i}")
    I("s_waitcnt lgkmcnt(0)")
    I(f"ds_write_b128 v{l16}, {rr(t+4,4)} offset:{P_HDR}")
    for i in range(4): I(f"v_min_u32 v{oH+i}, 255, v{oH+i}")
    I(f"s_lshl_b32 s15, s{sB}, 2")
    I(f"s_add_u32 s15, s15, {WS_HDR}")
    srd(q0, 8, 9, NB*NCH*4, "s15")
    I(f"v_lshlrev_b32 v1, 12, v{lane}")
    for i in range(4):
        I(f"buffer_store_dword v{t+4+i}, v1, s[{q0}:{q0+3}], 0 offen offset:{1024*i} sc1")
    I(f"s_add_u32 s15, s13, {WS_RECS}")
    srd(q0, 8, 9, CH*4, "s15")
    I("s_lshr_b32 s15, s13, 2")
    I(f"s_add_u32 s15, s15, {WS_XB}")
    srd(q1, 8, 9, CH, "s15")
    I(f"v_cndmask_b32 v{pH+6}, v{pH}, v{pH+6}, s[{pm}:{pm+1}]")
    I(f"v_cndmask_b32 v{pK+6}, 0, v{pK+6}, s[{pm}:{pm+1}]")
    for i in range(7):
        I(f"ds_read_u16 v{pA+i}, v{pH+i} offset:{P_HDR - H0}")
    I("s_waitcnt lgkmcnt(0)")
    for i in range(7):
        I(f"v_lshrrev_b32 v1, 2, v{pK+i}")
        I(f"v_sub_u32 v1, v{pK+i}, v1")
        I(f"v_add_u32 v{pA+i}, v{pA+i}, v1")
        I(f"v_cmp_le_u32 vcc, {QCAP}, v{pK+i}")
        I(f"v_lshlrev_b32 v{pB+i}, 2, v{pA+i}")
        I("s_and_saveexec_b64 s[14:15], vcc")
        I(f"s_cbranch_execz K1_OV3_{i}")
        I(f"buffer_store_byte v{xb(i)}, v{pA+i}, s[{q1}:{q1+3}], 0 offen sc1")
        I(f"buffer_store_dword v{pS+i}, v{pB+i}, s[{q0}:{q0+3}], 0 offen sc1")
        L(f"K1_OV3_{i}")
        I("s_mov_b64 exec, -1")
    I("s_waitcnt vmcnt(0)")
    I("s_barrier")
    I("s_branch K1_OUT")
    xd, xa, xk, xrem, xeb, xad, xt = vACC + 44, vACC + 52, vACC + 58, vQ, vQ + 2, vX + 12, vX + 14
    L("K2_XT1")
    I(f"s_mov_b32 s{sXT}, 1")
    I(f"v_cmp_le_u32 vcc, {(QCAP + 1) << 24}, v{u(0)}")
    I(f"v_mov_b32 v{xt}, {FLAG + 4}")
    I("s_cbranch_vccz K2_XT1A")
    I(f"ds_write_b32 v{xt}, v{one}")
    L("K2_XT1A")
    I("s_mov_b32 s10, 0xf0f0f0f0")
    I("s_mov_b32 s11, s10")
    I(f"v_and_b32 v{xt}, 12, v{k4}")
    I(f"v_add_u32 v{xt}, 32, v{xt}")
    I(f"v_and_b32 v{xad}, 64, v{u(1)}")
    I(f"v_mul_u32_u24 v{xad}, 127, v{xad}")
    I(f"v_add_u32 v{xad}, v{xad}, v{u(1)}")
    I(f"v_add_u32 v{xad+1}, 16384, v{xad}")
    I(f"v_mov_b32 v{xt+1}, 0x7ffffff0")
    for g in range(2):
        I(f"v_cndmask_b32 v{xrem+g}, v{vC+8*g+3}, v{vC+8*g+7}, s[10:11]")
        I(f"v_cndmask_b32 v{xeb+g}, v{vEB+2*g}, v{vEB+2*g+1}, s[10:11]")
        I(f"v_cmp_le_u32 vcc, {33 << 24}, v{xrem+g}")
        remain(xrem + g, xrem + g, xt)
        I("s_nop 0")
        I(f"v_cndmask_b32 v{xad+g}, v{xt+1}, v{xad+g}, vcc")
    I(f"s_add_u32 s{sCEL}, s{sCEL}, {WS_EXT}")
    I(f"s_addc_u32 s{sCEL+1}, s{sCEL+1}, 0")
    def xloads2():
        for g in range(2):
            I(f"buffer_load_dwordx4 {rr(xd+4*g,4)}, v{xad+g}, s[{sCEL}:{sCEL+3}], 0 offen sc1")
    xloads2()
    I(f"v_med3_i32 v{xt}, v{xrem}, 0, 3")
    I(f"v_med3_i32 v{xt+1}, v{xrem+1}, 0, 3")
    I(f"v_add_u32 v{xt}, v{xt}, v{xt+1}")
    I(f"v_mov_b32 v{xt+1}, {FLAG}")
    I(f"v_cmpx_lt_u32 vcc, 0, v{xt}")
    I(f"ds_add_u32 v{xt+1}, v{xt}")
    I("s_mov_b64 exec, -1")
    I("s_branch K2_XT1R")
    def xvalid(tag):
        L(f"K2_XV{tag}")
        I("s_waitcnt vmcnt(0)")
        I("s_mov_b64 s[10:11], 0")
        for g in range(2):
            I(f"v_bitop3_b32 v{xt}, v{xd+4*g+3}, s{sTAG}, v{vTM} bitop3:0x28")
            I(f"v_cmp_ne_u32 s[{sTMP}:{sTMP+1}], 0, v{xt}")
            I(f"v_cmp_gt_u32 vcc, 0x7ffffff0, v{xad+g}")
            I(f"s_and_b64 vcc, vcc, s[{sTMP}:{sTMP+1}]")
            I("s_or_b64 s[10:11], s[10:11], vcc")
        I(f"s_cbranch_scc0 K2_XW{tag}")
        spin()
        xloads2()
        I(f"s_branch K2_XV{tag}")
        L(f"K2_XW{tag}")
    L("K2_XT2")
    xvalid("a")
    for g in range(2):
        for j in range(3):
            I(f"v_and_b32 v{xa+3*g+j}, 255, v{xd+4*g+j}")
            I(f"v_lshlrev_b32 v{xa+3*g+j}, 2, v{xa+3*g+j}")
            I(f"ds_read_b32 v{xa+3*g+j}, v{xa+3*g+j} offset:{MAP}")
        I(f"v_and_b32 v{xd+4*g+3}, 0x0f0f0f, v{xd+4*g+3}")
    I("s_waitcnt lgkmcnt(0)")
    for g in range(2):
        for j in range(3):
            i = 3*g + j
            I(f"v_perm_b32 v{xk+i}, v{xd+4*g+3}, v{xd+4*g+j}, s{sSEL+j}")
            I(f"v_lshl_add_u32 v{xk+i}, v{xk+i}, 5, v{xeb+g}")
            I(f"v_cmpx_lt_i32 vcc, {j}, v{xrem+g}")
            I(f"ds_add_rtn_u32 v{xa+i}, v{xa+i}, v{one} offset:{CNT}")
            I("s_mov_b64 exec, -1")
    I("s_waitcnt lgkmcnt(0)")
    for g in range(2):
        for j in range(3):
            i = 3*g + j
            I(f"v_cmpx_lt_i32 vcc, {j}, v{xrem+g}")
            I(f"ds_write2st64_b32 v{xa+i}, v{xd+4*g+j}, v{xk+i} offset0:0 offset1:{(R1-R0)//256}")
            I("s_mov_b64 exec, -1")
    I("s_branch K2_PADS0")
    L("K2_XT3")
    I(f"ds_read_b32 v{xt}, v{vMIN} offset:{CNT}")
    I("s_waitcnt lgkmcnt(0)")
    I(f"v_readfirstlane_b32 s{sEND}, v{xt}")
    I("s_nop 3")
    ntiles()
    I("s_branch K2_GO")
    L("K2_OVF")
    I(f"s_mov_b32 s{sCUR}, 1")
    I(f"s_mov_b32 s{sST}, 0")
    I(f"s_mov_b32 s{sSKIP}, 0")
    I(f"s_mov_b32 s{sEND}, s{sL}")
    pads(lane, vP, vP+1, vP+2)
    I(f"s_cmp_eq_u32 s{sXT}, 0")
    I("s_cbranch_scc1 K2_PADS0")
    xvalid("b")
    I("s_branch K2_PADS0")
    SB = 448
    t0, t1, t2, t3, t4 = vP, vP+1, vP+2, vP+3, vP+4
    L("K2_SLOW")
    I(f"s_add_u32 s{sR0}, s{sR0}, {SB}")
    I(f"s_cmp_lt_u32 s{sR0}, s{sCNT}")
    I("s_cbranch_scc1 K2_BATCH")
    L("K2_FIND")
    I(f"s_cmp_lg_u64 s[{sMSK}:{sMSK+1}], 0")
    I("s_cbranch_scc1 K2_GOT")
    I(f"s_add_u32 s{sCI}, s{sCI}, 1")
    I(f"s_cmp_ge_u32 s{sCI}, 4")
    I("s_cbranch_scc1 K2_EPI")
    I(f"s_mul_i32 s10, s{sB}, {RS}")
    I(f"s_lshl_b32 s11, s{sCI}, 13")
    I("s_add_u32 s10, s10, s11")
    I(f"v_lshlrev_b32 v{vT}, 7, v{lane}")
    I(f"buffer_load_ubyte v{vT}, v{vT}, s[{sWS}:{sWS+3}], s10 offen offset:15 sc1")
    I("s_waitcnt vmcnt(0)")
    I(f"v_cmp_lt_u32 s[{sMSK}:{sMSK+1}], s{sSKIP}, v{vT}")
    I("s_nop 3")
    I("s_branch K2_FIND")
    L("K2_GOT")
    I(f"s_ff1_i32_b64 s10, s[{sMSK}:{sMSK+1}]")
    I(f"s_bitset0_b64 s[{sMSK}:{sMSK+1}], s10")
    I(f"s_lshl_b32 s11, s{sCI}, 6")
    I(f"s_add_u32 s{sCUR}, s10, s11")
    I(f"s_mul_i32 s10, s{sB}, {RS}")
    I(f"s_lshl_b32 s11, s{sCUR}, 7")
    I("s_add_u32 s10, s10, s11")
    I(f"s_lshl_b32 s11, s{sB}, 8")
    I(f"s_add_u32 s11, s11, s{sCUR}")
    I(f"s_lshl_b32 s11, s11, 2")
    I(f"s_add_u32 s11, s11, {WS_HDR}")
    I(f"v_mov_b32 v{t0}, 0")
    I(f"buffer_load_ubyte v{t1}, v{t0}, s[{sWS}:{sWS+3}], s10 offen offset:15 sc1")
    I(f"buffer_load_dword v{t2}, v{t0}, s[{sWS}:{sWS+3}], s11 offen sc1")
    I("s_waitcnt vmcnt(0)")
    I(f"v_readfirstlane_b32 s10, v{t1}")
    I(f"v_readfirstlane_b32 s11, v{t2}")
    I("s_nop 3")
    I(f"s_and_b32 s{sST}, s11, 0xffff")
    I("s_lshr_b32 s11, s11, 16")
    I(f"s_lshr_b32 s{sCNT}, s10, 2")
    I(f"s_sub_u32 s{sCNT}, s10, s{sCNT}")
    I(f"s_cmp_gt_u32 s10, {QCAP}")
    I(f"s_cselect_b32 s{sCNT}, s11, s{sCNT}")
    I(f"s_lshr_b32 s10, s{sSKIP}, 2")
    I(f"s_sub_u32 s{sR0}, s{sSKIP}, s10")
    L("K2_BATCH")
    I("s_barrier")
    I(f"v_and_b32 v{t0}, 7, v{lane}")
    I(f"v_mul_u32_u24 v{t1}, {LCAP*4}, v{t0}")
    I(f"v_add_u32 v{t1}, {R0}, v{t1}")
    I(f"v_lshlrev_b32 v{t0}, 2, v{t0}")
    I(f"ds_write_b32 v{t0}, v{t1} offset:{CNT}")
    I(f"v_add_u32 v{t0}, s{sR0}, v{tid}")
    I(f"s_mul_i32 s10, s{sB}, {RS}")
    I(f"s_lshl_b32 s11, s{sCUR}, 7")
    I("s_add_u32 s10, s10, s11")
    I(f"v_mul_u32_u24 v{t2}, {KQ}, v{t0}")
    I(f"v_lshrrev_b32 v{t2}, 16, v{t2}")
    I(f"v_lshl_add_u32 v{t1}, v{t2}, 2, s10")
    I(f"v_add_u32 v{t3}, {WS_EXT - 128}, v{t1}")
    I(f"v_cmp_lt_u32 vcc, 31, v{t2}")
    I(f"s_mul_i32 s11, s{sCUR}, {CH}")
    I(f"s_add_u32 s11, s11, s{sST}")
    I(f"v_cndmask_b32 v{t1}, v{t1}, v{t3}, vcc")
    I(f"v_or_b32 v{t3}, 12, v{t1}")
    I(f"v_and_b32 v{t4}, 3, v{t2}")
    I(f"v_add_u32 v{t3}, v{t3}, v{t4}")
    I(f"v_cmp_le_u32 vcc, {QCAP}, v{t2}")
    I(f"v_add_u32 v{t2}, s11, v{t0}")
    I(f"v_add_u32 v{t4}, {WS_XB}, v{t2}")
    I(f"v_cndmask_b32 v{t3}, v{t3}, v{t4}, vcc")
    I(f"v_lshlrev_b32 v{t2}, 2, v{t2}")
    I(f"v_add_u32 v{t2}, {WS_RECS}, v{t2}")
    I(f"v_cndmask_b32 v{t1}, v{t1}, v{t2}, vcc")
    I(f"s_add_u32 s10, s{sR0}, {SB}")
    I(f"s_min_u32 s10, s10, s{sCNT}")
    I(f"v_cmp_gt_u32 vcc, s10, v{t0}")
    I(f"v_mov_b32 v{t2}, 0x7ffffff0")
    I(f"s_mul_i32 s{sTMP}, s{sCUR}, {CH*32}")
    I(f"v_cndmask_b32 v{t1}, v{t2}, v{t1}, vcc")
    I(f"v_cndmask_b32 v{t3}, v{t2}, v{t3}, vcc")
    I(f"buffer_load_dword v{t1}, v{t1}, s[{sWS}:{sWS+3}], 0 offen sc1")
    I(f"buffer_load_ubyte v{t3}, v{t3}, s[{sWS}:{sWS+3}], 0 offen sc1")
    I("s_waitcnt lgkmcnt(0)")
    I("s_barrier")
    I("s_and_saveexec_b64 s[10:11], vcc")
    I("s_waitcnt vmcnt(0)")
    I(f"v_and_b32 v{t0}, 255, v{t1}")
    I(f"v_lshlrev_b32 v{t0}, 2, v{t0}")
    I(f"ds_read_b32 v{t0}, v{t0} offset:{MAP}")
    I(f"v_bfe_u32 v{t2}, v{t1}, 8, 8")
    I(f"v_and_b32 v{t3}, 15, v{t3}")
    I(f"v_lshl_or_b32 v{t3}, v{t3}, 8, v{t2}")
    I(f"v_mov_b32 v{t2}, 4")
    I(f"v_lshl_add_u32 v{t3}, v{t3}, 5, s{sTMP}")
    I("s_waitcnt lgkmcnt(0)")
    I(f"ds_add_rtn_u32 v{t0}, v{t0}, v{t2} offset:{CNT}")
    I("s_waitcnt lgkmcnt(0)")
    I(f"ds_write2st64_b32 v{t0}, v{t1}, v{t3} offset0:0 offset1:{(R1-R0)//256}")
    I("s_mov_b64 exec, -1")
    I("s_waitcnt lgkmcnt(0)")
    I("s_barrier")
    I(f"s_lshl_b32 s10, s{sW}, 2")
    I(f"v_mov_b32 v{t0}, s10")
    I(f"ds_read_b32 v{t0}, v{t0} offset:{CNT}")
    for i in range(8): I(f"v_mov_b32 v{vT2+i}, 0")
    listaddr(lane, t1, t2)
    I("s_waitcnt lgkmcnt(0)")
    I(f"v_readfirstlane_b32 s{sEND}, v{t0}")
    I("s_nop 3")
    pads(lane, t0, t1, t2)
    L("K2_LAST")
    I("s_branch K2_GO")

def regs_of(tok):
    tok = tok.strip()
    m = re.fullmatch(r"v\[(\d+):(\d+)\]", tok)
    if m: return list(range(int(m.group(1)), int(m.group(2)) + 1))
    m = re.fullmatch(r"v(\d+)", tok)
    if m: return [int(m.group(1))]
    return []
def parse(ins):
    op, _, rest = ins.partition(" ")
    ops = [o.strip().split(" ")[0] for o in rest.split(",")] if rest else []
    if op.startswith("v_mfma"):
        return "mfma", regs_of(ops[0]), regs_of(ops[1]) + regs_of(ops[2]), regs_of(ops[3])
    if op.startswith("v_smfmac"):
        return "mfma", regs_of(ops[0]), regs_of(ops[1]) + regs_of(ops[2]) + regs_of(ops[3]), regs_of(ops[0])
    if op.startswith("v_"):
        k = "trans" if op in ("v_exp_f32", "v_rcp_f32") else "valu"
        return k, regs_of(ops[0]), sum((regs_of(o) for o in ops[1:]), []), []
    if op.startswith("ds_read"):
        return "ds", regs_of(ops[0]), regs_of(ops[1]), []
    if op.startswith("buffer_load"):
        return "vm", [], regs_of(ops[0]) + regs_of(ops[1]), []
    return "other", [], [], []
def check_body(body):
    seq = [b for b in body if not b.endswith(":")]
    for skip_dma in (False, True):
        s2 = []
        sk = False
        for b in body:
            if skip_dma and b.startswith("s_cbranch_scc0 K2_ND"):
                s2.append(b); sk = True; continue
            if b.startswith("K2_ND"): sk = False
            if b.endswith(":") or sk: continue
            s2.append(b)
        seq = s2 * 3
        last = {}
        lastc = {}
        pend = []
        for i, ins in enumerate(seq):
            k, d, s, c = parse(ins)
            m = re.search(r"lgkmcnt\((\d+)\)", ins)
            if m:
                n = int(m.group(1))
                while len(pend) > n: pend.pop(0)
            pr = set(sum(pend, []))
            for r in d + s + c:
                assert r not in pr or i < len(s2), f"pending LDS reg v{r} used by {ins} @{i}"
            for r in s + c + d:
                if r not in last: continue
                pk, pi = last[r]; dist = i - pi - 1
                if pk == "mfma":
                    if k == "mfma" and r in c and r not in s: need = 0
                    elif k == "mfma" and r in d and r not in s: need = 0
                    else: need = 12
                elif pk in ("valu", "trans") and k == "mfma" and r in s + c: need = 2
                elif pk == "trans" and k in ("valu", "mfma", "ds", "vm") and r in s: need = 1
                else: need = 0
                assert dist >= need, f"hazard {pk}->{k} v{r} dist {dist} need {need}: {ins} @{i}"
            if k in ("valu", "trans"):
                for r in d:
                    if r in lastc: assert i - lastc[r] - 1 >= 7, f"srcC WAR {ins}"
            for r in c: lastc[r] = i
            for r in d: last[r] = (k, i)
            if k == "ds":
                pend.append(d); assert len(pend) <= 15

hdr = open("/code/" + NAME + ".s.ref").read().split("\n")
for l in hdr:
    if l.startswith("; Override"): break
    out.append(l)
LEAK = opt("leak", "")
if LEAK:
    out.append(f"; @launch kernel={KN} grid=(256,1,1) block=(512,1,1) lds={K2_LDS}")
    out.append("; @launch kernel=spin_kernel grid=(1,1,1) block=(64,1,1) lds=0")
else: out.append(f"; @launch grid=(256,1,1) block=(512,1,1) lds={K2_LDS}")
emit('.amdgcn_target "amdgcn-amd-amdhsa--gfx950"\n.text')
k2()
KL = [(KN, 256, 102)]
if LEAK:
    kind, k = LEAK[:3], int(LEAK[3:])
    emit(".globl spin_kernel\n.p2align 8\n.type spin_kernel,@function\nspin_kernel:")
    I("s_memrealtime s[12:13]")
    I("s_cmp_lg_u32 s2, 0")
    I("s_cbranch_scc1 SP_END")
    I("s_load_dwordx2 s[4:5], s[0:1], 88")
    I("s_waitcnt lgkmcnt(0)")
    I(f"s_add_u32 s4, s4, {WS_TS + 0x100000}")
    I("s_addc_u32 s5, s5, 0")
    I("v_lshlrev_b32 v1, 5, v0")
    for j in range(31):
        I(f"global_load_dword v{2+j}, v1, s[4:5]")
        I(f"global_load_dword v{34+j}, v1, s[4:5] offset:{4*(k%8)}")
        I("v_add_u32 v1, 2048, v1")
    I("s_waitcnt vmcnt(0)")
    I("v_readfirstlane_b32 s6, v2")
    I("s_nop 1")
    I("s_sub_u32 s6, s6, 1000")
    for j in range(31):
        I(f"v_subrev_u32 v{2+j}, s6, v{2+j}")
        I(f"v_subrev_u32 v{34+j}, s6, v{34+j}")
    op = {"max": "max_u32", "min": "min_u32", "avg": "add_u32", "now": "max_u32"}[kind]
    for j in range(1, 31):
        I(f"v_min_u32 v2, v2, v{2+j}")
        I(f"v_{op} v34, v34, v{34+j}")
    I("s_nop 1")
    I("v_readlane_b32 s8, v2, 0")
    I("v_readlane_b32 s9, v34, 0")
    for l in range(1, 64):
        I(f"v_readlane_b32 s10, v2, {l}")
        I(f"v_readlane_b32 s11, v34, {l}")
        I("s_min_u32 s8, s8, s10")
        I(f"s_{op} s9, s9, s11")
    if kind == "avg":
        I(f"s_mul_hi_u32 s9, s9, {(1 << 32) // (31*64)}")
    if kind == "now":
        I("s_sub_u32 s8, s12, s6")
        I("s_sub_u32 s6, s8, s9")
    else: I("s_sub_u32 s6, s9, s8")
    I("s_lshl_b32 s6, s6, 2")
    I("s_min_u32 s6, s6, 30000")
    I("s_memrealtime s[8:9]")
    I("s_waitcnt lgkmcnt(0)")
    L("SP_L")
    I("s_memrealtime s[10:11]")
    I("s_waitcnt lgkmcnt(0)")
    I("s_sub_u32 s7, s10, s8")
    I("s_cmp_lt_u32 s7, s6")
    I("s_cbranch_scc1 SP_L")
    L("SP_END")
    I("s_endpgm")
    KL.append(("spin_kernel", 72, 16))
emit('.section .rodata,"a"')
for name, vg, sg in KL:
    emit(f""".p2align 6
.amdhsa_kernel {name}
  .amdhsa_next_free_vgpr {vg}
  .amdhsa_next_free_sgpr {sg}
  .amdhsa_accum_offset {vg}
  .amdhsa_group_segment_fixed_size 0
  .amdhsa_kernarg_size 96
  .amdhsa_user_sgpr_count 2
  .amdhsa_user_sgpr_kernarg_segment_ptr 1
  .amdhsa_system_sgpr_workgroup_id_x 1
.end_amdhsa_kernel""")
path = sys.argv[1] if len(sys.argv) > 1 else "/code/" + NAME + ".s"
open(path, "w").write("\n".join(out) + "\n")
print("wrote", path, len(out), "lines; lds", K2_LDS)
```

```python
import sys, re, math

NAME = "standalone__edge_featured_mpnn_gatedgcn__graph"
OPT = dict(kv.split("=") for kv in sys.argv[2:])
def opt(k, d):
    v = OPT.get(k)
    if v is None: return d
    return type(d)(v)

N, E = 50000, 800000
NCH, CH = 256, 3125
NB, BN = 256, 196
CELLB = 128
RS = 257 * CELLB
WS_EXT = NB * RS
QCAP = 48
KQ = 87382
LROW = 4 * (QCAP + 4)
WS_RECS = 0x1100000
WS_XB = 0x1500000
WS_HDR = 0x1600000
WS_EPOCH = 0x1700000
WS_USED = WS_EPOCH + 128
WI_U, WI_B, WI_V, WI_A, WI_C = 0, 8192, 16384, 24576, 32768
TMASK = 0x00f0f0f0
T0 = opt("t0", 12500)
LPH = (N - T0 + 2) // 3
SOFF = LPH - T0
PHM = (1 << 30) // LPH
assert 0 <= SOFF and N + SOFF <= 65536 and ((N - 1 + SOFF) * PHM) >> 30 <= 3
LOG2E = 1.4426950408889634
import struct
def f2u(f): return struct.unpack("<I", struct.pack("<f", f))[0]

out = []
def emit(s=""):
    for l in s.strip("\n").split("\n"):
        out.append(l.rstrip())
def I(s): out.append("    " + s)
def L(s): out.append(s + ":")
def C(s): out.append("    ; " + s)

def srd(d, lo, hi, size, add=None):
    if add is None:
        I(f"s_mov_b32 s{d}, s{lo}")
        I(f"s_mov_b32 s{d+1}, s{hi}")
    else:
        I(f"s_add_u32 s{d}, s{lo}, {add}")
        I(f"s_addc_u32 s{d+1}, s{hi}, 0")
    I(f"s_mov_b32 s{d+2}, {size}")
    I(f"s_mov_b32 s{d+3}, 0x20000")

def wave_scan(v, fill=None, half=False):
    def gap():
        if fill and len(fill) >= 2:
            I(fill.pop(0)); I(fill.pop(0))
        else: I("s_nop 1")
    for sh in (1, 2, 4, 8):
        gap()
        I(f"v_add_u32_dpp v{v}, v{v}, v{v} row_shr:{sh} row_mask:0xf bank_mask:0xf bound_ctrl:0")
    gap()
    I(f"v_add_u32_dpp v{v}, v{v}, v{v} row_bcast:15 row_mask:0xa bank_mask:0xf")
    if half: return
    gap()
    I(f"v_add_u32_dpp v{v}, v{v}, v{v} row_bcast:31 row_mask:0xc bank_mask:0xf")

TS = opt("ts", 0)
WS_TS = 0x3000000
SMAP = {1: {0: 0, 'd': 1, 'i': 2, 'w': 3, 2: 4, 5: 5, 6: 6, 7: 7},
        5: {0: 0, 'w': 1, 2: 2, 'a': 3, 'b': 4, 'c': 5, 3: 6, 7: 7},
        6: {0: 0, 'p': 1, 'q': 2, 'd': 3, 'i': 4, 'o': 5, 'k': 6, 7: 7},
        8: {0: 0, 'i': 1, 'w': 2, 1: 3, 2: 4, 3: 5, 7: 7},
        10: {0: 0, 'd': 1, 'i': 2, 'o': 3, 'A': 4, 'w': 5, 2: 6, 7: 7},
        9: {0: 0, 'q': 1, 'd': 2, 'i': 3, 'w': 4, 2: 5, 3: 6, 7: 7},
        7: {0: 0, 'k': 1, 'w': 2, 1: 3, 's': 4, 2: 5, 3: 6, 7: 7}}
def stamp(i):
    if TS in SMAP:
        i = SMAP[TS].get(i)
        if i is None: return
    elif isinstance(i, str): return
    if TS == 3:
        if i not in (0, 5, 6, 7): return
        I("s_memtime s[98:99]")
        I("s_waitcnt lgkmcnt(0)")
        I(f"s_mov_b32 s{88+{5:1,6:2,0:3,7:4}[i]}, s98")
    if TS:
        I("s_memrealtime s[98:99]" if TS != 2 else "s_memtime s[98:99]")
        I("s_waitcnt lgkmcnt(0)")
        I(f"s_mov_b32 s{88+i}, s98")
def stamp_out(n, wslo, swave, nw, off, v):
    if not TS: return
    I("s_waitcnt vmcnt(0)")
    stamp(7)
    I("s_mov_b64 exec, 1")
    I(f"s_mul_i32 s87, s2, {nw}")
    I(f"s_add_u32 s87, s87, s{swave}")
    I("s_lshl_b32 s87, s87, 5")
    I(f"s_add_u32 s87, s87, {WS_TS + off}")
    I(f"v_mov_b32 v{v}, s87")
    for i in range(n):
        I(f"v_mov_b32 v{v+1}, s{88+i}")
        I(f"global_store_dword v{v}, v{v+1}, s[{wslo}:{wslo+1}] offset:{4*i}")
K1_LD = opt("k1ld", "nt")
def pol(p): return (" " + p.replace("_", " ")) if p else ""

SM1 = opt("sm1", 1)
TAB, ZROW, CNT, FLAG, HIST, MAP = 0, 2048, 2112, 2176, 2304, 6400
T1B = 7424
LCAP = 672
XMAX = 64
LMAX = LCAP - 128
R0 = T1B + 2304
R1 = R0 + 8 * LCAP * 4
assert R1 % 256 == 0 and R0 % 256 == 0
WL = R0
WU = R1 + 8 * LCAP * 4
WA = WU + 8192
XO = WA + 8192
STG = XO + 8 * 4160
SLOT = 5184
WST = SLOT
IMG = 91136
assert IMG >= XO and STG + 8 * WST <= IMG + 320 * LROW
K2_LDS = IMG + 320 * LROW
assert K2_LDS <= 163840, K2_LDS

vWB, vWV, vWC, vAT = 0, 32, 64, 72
vACC = 88
vX, vE, vT1, vT2 = 152, 168, 172, 180
vP, vQ, vR = 188, 204, 220
vQD = 236
vR1 = 240
vCP, vCH, vAX, vAE, vC1, vC2, vARX, vART, vARP = 241, 242, 243, 244, 245, 246, 247, 248, 249
vL1 = 250
vARE = 251
vT = 252
DEN = lambda ft: vACC + 32 * ft
NUM = lambda ft: vACC + 32 * ft + 16
def rr(a, n): return f"v[{a}:{a+n-1}]"
def mfma(d, a, b, c=None):
    return f"v_mfma_f32_32x32x16_bf16 {rr(d,16)}, {rr(a,4)}, {rr(b,4)}, " + ("0" if c is None else rr(c, 16))

K2_XP = opt("k2x", "")
K2_EP = opt("k2e", "")
K2_CP = opt("k2c", "")
K2_OP = opt("k2o", "sc1")

sW, sB = 3, 12
sX, sEP, sWS, sOUT = 16, 20, 24, 28
sCEL, sWI = 32, 36
sM = 40
sT, sN, sSTG, s128, sL, sSKIP, sMORE = 72, 73, 74, 75, 76, 77, 78
sCI, sCUR, sR0, sCNT, sST, sMSK = 79, 80, 81, 82, 83, 84
sTMP = 86
sWIN = 96

def dma_tile(par):
    r = []
    for i in range(4):
        r.append(f"s_add_u32 m0, s{sSTG}, {par*SLOT + i*1040}")
        r.append(f"v_mad_u32_u16 v{vQD+i}, v{vQD+i}, s{s128}, v{vCP} op_sel:[1,0,0,0]")
        r.append(f"buffer_load_dwordx4 v{vQD+i}, s[{sX}:{sX+3}], 0 offen{pol(K2_XP)} lds")
    r.append(f"s_add_u32 m0, s{sSTG}, {par*SLOT + 4160}")
    r.append(f"v_add_u32 v{vR1}, v{vR1}, v{vCH}")
    r.append(f"buffer_load_dwordx4 v{vR1}, s[{sEP}:{sEP+3}], 0 offen{pol(K2_EP)} lds")
    return r

def valu_stream(G, H, n=16):
    s = []
    ex = [(f"v_exp_f32 v{G+i}, v{G+i}", 8) for i in range(n)]
    ad = [(f"v_add_f32 v{G+i}, 1.0, v{G+i}", 4) for i in range(n)]
    rc = [(f"v_rcp_f32 v{G+i}, v{G+i}", 8) for i in range(n)]
    mu = [(f"v_mul_f32 v{H+i}, v{G+i}, v{H+i}", 4) for i in range(n)]
    for i in range(n + 4):
        if i < n: s.append(ex[i])
        if 0 <= i - 2 < n: s.append(ad[i-2])
        if 0 <= i - 4 < n: s.append(rc[i-4])
    return s + mu

def interleave(valu, mf, extra, pos, spacing=opt('sp', 28)):
    res = []
    cum = 0; k = 0
    for ins, c in valu:
        while k < len(mf) and cum >= pos[k] * spacing:
            res.extend(extra.get(('b', k), []))
            res.append(mf[k])
            res.extend(extra.get(('a', k), []))
            k += 1
        res.append(ins); cum += c
    assert k == len(mf)
    return res

def g_mfmas(D, ft):
    m = [mfma(D, vE, vWC + 4*ft)]
    if SM1:
        m += [mfma(D, vX + 4*q, vWB + 16*ft + 4*q, D) for q in range(4)]
        m += [f"v_smfmac_f32_32x32x32_bf16 {rr(D,16)}, {rr(vT1,4)}, {rr(vAT+8*ft,8)}, v{vT1+4}"]
        return m
    m += [mfma(D, vT1 + 4*s, vAT + 8*ft + 4*s, D) for s in range(2)]
    m += [mfma(D, vX + 4*q, vWB + 16*ft + 4*q, D) for q in range(4)]
    return m
def h_mfmas(D, ft):
    return [mfma(D, vX + 4*q, vWV + 16*ft + 4*q, None if q == 0 else D) for q in range(4)]
vIX = vT1 + 5
def s_mfmas(acc, src):
    return [f"v_smfmac_f32_32x32x32_bf16 {rr(acc,16)}, {rr(vT2+4*s,4)}, {rr(src+8*s,8)}, v{vIX}" for s in range(2)]
def t1_reads():
    return [f"ds_read_b128 {rr(vT1,4)}, v{vL1} offset:{T1B}", f"ds_read_b32 v{vT1+4}, v{vL1} offset:{T1B+16}"]

ORD = opt("ord", "n0 n1 e h0 h1 a h2 h3 x0 x1 x2 x3 d0 d1").replace("_", " ").split()
POS = [float(x) / 28 for x in opt("pos", "0_27_54_81_108_135_162_189_216_243_270_297_328_356").split("_")]
def phase_ops(G, Gn, ft):
    n = s_mfmas(NUM(1-ft), vQ); d = s_mfmas(DEN(ft), G); h = h_mfmas(vQ, ft); g = g_mfmas(Gn, 1-ft)
    m = {"n0": n[0], "n1": n[1], "d0": d[0], "d1": d[1], "e": g[0], "a": g[5]}
    for q in range(4): m[f"h{q}"] = h[q]; m[f"x{q}"] = g[1+q]
    return [m[k] for k in ORD]
K = lambda k: ORD.index(k)
def phaseA(par):
    o = par * 128
    ex = {}
    ex[('a', K("n0"))] = [f"ds_read_u8 v{vQD+u}, v{vART} offset:{o + 64*(u>>1) + 16*(u&1)}" for u in range(4)] + \
                         [f"ds_read_u8 v{vL1}, v{vARP} offset:{o + 128}"]
    ex[('a', K("h1"))] = ["s_waitcnt lgkmcnt(0)"] + [f"v_lshl_add_u32 v{vQD+u}, v{vQD+u}, 6, v{vC2}" for u in range(4)] + \
                         [f"v_lshl_add_u32 v{vL1}, v{vL1}, 6, v{vC1}"]
    ex[('a', K("a"))] = [f"ds_read_b64_tr_b16 v[{vT2+2*u}:{vT2+2*u+1}], v{vQD+u}" for u in range(4)] + t1_reads()
    ex[('a', K("x0"))] = [f"ds_read_b128 {rr(vQD,4)}, v{vARX} offset:{o + 2*128}",
                          f"ds_read_b32 v{vR1}, v{vARE} offset:{o + 2*128}",
                          f"s_add_u32 s{sT}, s{sT}, 1"]
    ex[('b', K("d0"))] = ["s_waitcnt lgkmcnt(0)"]
    return interleave(valu_stream(vP, vQ), phase_ops(vP, vR, 0), ex, POS)

def phaseB(par):
    ex = {}
    ex[('a', K("n0"))] = ["s_waitcnt vmcnt(0)", f"ds_read_b128 {rr(vE,4)}, v{vAE}"]
    if TS == 4:
        ex[('a', K("n0"))] = ["s_memtime s[94:95]", "s_waitcnt vmcnt(0) lgkmcnt(0)", "s_memtime s[98:99]", "s_waitcnt lgkmcnt(0)", "s_sub_u32 s98, s98, s94",
                              "s_add_u32 m0, s72, 15", "s_nop 0", "v_writelane_b32 v255, s98, m0", f"ds_read_b128 {rr(vE,4)}, v{vAE}"]
    for q in range(4):
        ex[('a', K(f"h{q}"))] = [f"ds_read_b128 {rr(vX+4*q,4)}, v{vAX} offset:{16*q}"]
    ex[('b', K("e"))] = [f"s_waitcnt lgkmcnt({sum(K(f'h{q}') < K('e') for q in range(4))})"]
    for q in range(4): ex[('b', K(f"x{q}"))] = [f"s_waitcnt lgkmcnt({sum(K(f'h{p}') < K(f'x{q}') for p in range(q+1, 4))})"]
    dk = opt("dk", "x3")
    ex[('a', K(dk))] = ([] if dk == "x3" or K(dk) > K("x3") else ["s_waitcnt lgkmcnt(0)"]) + \
                       [f"s_cmp_lt_i32 s{sT}, s{sN1}", f"s_cbranch_scc0 K2_ND_{par}"] + dma_tile(0) + [f"K2_ND_{par}:"]
    return interleave(valu_stream(vR, vQ), phase_ops(vR, vP, 1), ex, POS)

def fixnops(seq):
    res = []; last = {}; pos = 0
    for ins in seq:
        k, d, s_, c = parse(ins)
        need = 0
        for r in s_ + c + d:
            if r not in last: continue
            pk, pi, pop = last[r]
            if pk == "mfma":
                if k == "mfma" and r not in s_: w = 0 if pop == ins.split()[0] or r not in c else 10
                else: w = 12
            elif pk in ("valu", "trans") and k == "mfma" and r in s_ + c: w = 2
            elif pk == "trans" and k != "trans" and r in s_: w = 1
            else: w = 0
            need = max(need, w - (pos - pi - 1))
        if need > 0:
            res.append(f"s_nop {need - 1}"); pos += need
        for r in d: last[r] = (k, pos, ins.split()[0])
        res.append(ins); pos += 1
    return res
def last_tile(ng):
    n = 4 * ng
    keep = lambda ks: [k for k in ks if ng > 2 or k not in ("N1", "d1")]
    ops = dict(zip(ORD, phase_ops(vP, vR, 0)))
    oa = keep(ORD)
    ex = {}
    ex[('a', 0)] = [f"ds_read_u8 v{vQD+u}, v{vART} offset:{64*(u>>1) + 16*(u&1)}" for u in range(4)]
    ex[('a', oa.index("h1"))] = ["s_waitcnt lgkmcnt(0)"] + [f"v_lshl_add_u32 v{vQD+u}, v{vQD+u}, 6, v{vC2}" for u in range(4)]
    ex[('a', oa.index("a"))] = [f"ds_read_b64_tr_b16 v[{vT2+2*u}:{vT2+2*u+1}], v{vQD+u}" for u in range(4)]
    ex[('b', oa.index("d0"))] = ["s_waitcnt lgkmcnt(0)"]
    pa = [POS[ORD.index(k)] * ng / 4 * (1 if k[0] != "d" or ng > 2 else 1.04) for k in oa]
    a = interleave(valu_stream(vP, vQ, n), [ops[k] for k in oa], ex, pa)
    ops = dict(zip(ORD, phase_ops(vR, vP, 1)))
    ob = ["n0"] + (["n1"] if ng > 2 else []) + ["h0", "h1", "h2", "h3", "d0"] + (["d1"] if ng > 2 else [])
    pb = [x * ng / 4 / 28 for x in ([0, 36, 72, 108, 144, 180, 328, 356] if ng > 2 else [0, 40, 80, 120, 160, 340])]
    b = interleave(valu_stream(vR, vQ, n), [ops[k] for k in ob], {}, pb)
    return fixnops(a + b + s_mfmas(NUM(1), vQ)[:2 if ng > 2 else 1])

sF0, sF1, sEND = 13, 14, 15
sXT = 97
sN1 = 38
sSB = 37
SBK = opt('sbk', 2)
sNUL = 39
sTH = 4
PRIO = opt("prio", 1)

def listaddr(lane, t0, t3):
    I(f"v_lshrrev_b32 v{t0}, 3, v{lane}")
    I(f"v_lshl_add_u32 v{vARX}, v{t0}, 4, s{sL}")
    I(f"v_and_b32 v{t0}, 31, v{lane}")
    I(f"v_lshl_add_u32 v{vARP}, v{t0}, 2, s{sL}")
    I(f"v_lshrrev_b32 v{t3}, 1, v{lane}")
    I(f"v_lshl_add_u32 v{vARE}, v{t3}, 2, s{sL}")
    I(f"v_add_u32 v{vARE}, {R1-R0}, v{vARE}")
    I(f"v_and_b32 v{t0}, 44, v{lane}")
    I(f"v_add_u32 v{vART}, s{sL}, v{t0}")

vOWN = vT + 1
def pads(lane, t0, t1, t2):
    W2 = f"offset0:0 offset1:{(R1-R0)//256}"
    I(f"v_mov_b32 v{t2}, 0xffff0000")
    I(f"v_or_b32 v{t1}, s{sNUL}, v{t2}")
    I(f"v_mov_b32 v{t2}, 0x7fffff00")
    I(f"v_lshl_add_u32 v{t0}, v{lane}, 2, s{sEND}")
    I(f"s_sub_u32 s{sN}, s{sEND}, s{sL}")
    I(f"ds_write2st64_b32 v{t0}, v{t1}, v{t2} {W2}")
    I(f"ds_write2st64_b32 v{t0}, v{t1}, v{t2} offset0:1 offset1:{(R1-R0)//256 + 1}")
    ntiles(False)
def ntiles(sub=True):
    if sub: I(f"s_sub_u32 s{sN}, s{sEND}, s{sL}")
    I(f"s_add_u32 s{sN}, s{sN}, 127")
    I(f"s_lshr_b32 s{sN}, s{sN}, 7")
    I(f"s_sub_i32 s{sN1}, s{sN}, 1")

KN = NAME + "_kernel"
P_HIST, P_HDR = MAP, WU
H0 = 2000
P_EIMG = IMG
P_CIMG = P_EIMG + 64 * LROW
assert P_CIMG + 256 * LROW <= K2_LDS
sTAG, sEPN, sSPIN = 36, 100, 101
def k2():
    emit(f"""
.globl {KN}
.p2align 8
.type {KN},@function
{KN}:""")
    I("s_cmp_ge_u32 s2, 256")
    I("s_cbranch_scc1 K2_END")
    stamp(0)
    KA = sM
    I(f"s_load_dwordx4 s[{KA+4}:{KA+7}], s[0:1], 16")
    I(f"s_load_dwordx2 s[8:9], s[0:1], 88")
    I(f"s_load_dwordx4 s[{KA}:{KA+3}], s[0:1], 0")
    I(f"s_load_dwordx8 s[{KA+8}:{KA+15}], s[0:1], 32")
    I(f"s_load_dwordx4 s[{KA+16}:{KA+19}], s[0:1], 64")
    tid, lane = 255, 254
    CPF = opt("cpf", 192)
    if CPF:
        I(f"s_getpc_b64 s[{sTMP}:{sTMP+1}]")
        L("K2_PC")
        I(f"v_lshlrev_b32 v{vT}, 7, v0")
        I(f"v_min_u32 v{vT}, K2_LAST-K2_PC, v{vT}")
        I(f"v_cmp_gt_u32 vcc, {CPF}, v0")
        I("s_cbranch_vccz K2_NOCPF")
        I(f"global_load_dword v{vT+1}, v{vT}, s[{sTMP}:{sTMP+1}]")
        L("K2_NOCPF")
    vC = vACC
    vA = vACC + 16
    hh = vACC + 28
    vRK = vR
    vMIN = vQ + 8
    vTM = vQ + 10
    u = lambda i: vP + i
    k4, ecb, hda, one, l16 = vE, vE + 1, vE + 2, vE + 3, vT1
    pD, pS, pH, pK, pA, pB, pI, pW = 8, 16, 24, 32, 40, 48, 56, 64
    I(f"v_mov_b32 v{tid}, v0")
    I(f"v_lshrrev_b32 v{u(0)}, 6, v0")
    I(f"v_and_b32 v{lane}, 63, v0")
    I(f"v_readfirstlane_b32 s7, v{u(0)}")
    I("s_and_b32 s10, s2, 7")
    I("s_lshr_b32 s11, s2, 3")
    I("s_lshl_b32 s10, s10, 5")
    I(f"s_add_u32 s{sB}, s10, s11")
    I(f"s_mul_i32 s13, s{sB}, {CH*4}")
    I(f"v_lshlrev_b32 v{u(1)}, 4, v0")
    I(f"v_lshlrev_b32 v1, 3, v0")
    I(f"v_lshlrev_b32 v2, 2, v0")
    I(f"v_mov_b32 v3, 0")
    I(f"v_and_b32 v4, 0x3fc, v2")
    I(f"ds_write_b32 v4, v3 offset:{P_HIST}")
    ASYM = opt("asym", 10)
    I(f"s_and_b32 s10, s7, 3")
    I(f"s_lshr_b32 s{sW}, s7, 2")
    I(f"s_lshl1_add_u32 s{sW}, s10, s{sW}")
    I(f"s_xor_b32 s{sW}, s{sW}, 1")
    I(f"s_movk_i32 s14, 8192")
    I(f"s_movk_i32 s15, 12288")
    I("s_waitcnt lgkmcnt(0)")
    stamp('p')
    vq = []
    def younger(tag): return len(vq) - 1 - max(i for i, t in enumerate(vq) if t == tag)
    q0, q1 = 64, 68
    srd(q0, KA+6, KA+7, CH*4, "s13")
    srd(q1, KA+4, KA+5, CH*4, "s13")
    for r_, q_ in ((pD, q0), (pS, q1)):
        I(f"buffer_load_dwordx4 {rr(r_,4)}, v{u(1)}, s[{q_}:{q_+3}], 0 offen{pol(K1_LD)}")
        I(f"buffer_load_dwordx2 {rr(r_+4,2)}, v1, s[{q_}:{q_+3}], s14 offen{pol(K1_LD)}")
        I(f"buffer_load_dword v{r_+6}, v2, s[{q_}:{q_+3}], s15 offen{pol(K1_LD)}")
        vq += ["D" if r_ == pD else "S"] * 3
        if r_ == pD and opt("db", 1): I("s_barrier")
    I(f"s_add_u32 s10, s8, {WS_EPOCH}")
    I("s_addc_u32 s11, s9, 0")
    I(f"s_load_dword s{sEPN}, s[10:11], 0")
    if not opt("db", 1): I("s_barrier")
    I(f"v_lshrrev_b32 v1, 3, v0")
    I(f"v_lshlrev_b32 v{hda}, 2, v1")
    I(f"v_and_b32 v{u(9)}, 7, v0")
    I(f"v_and_b32 v5, 16, v0")
    I(f"v_lshlrev_b32 v5, 1, v5")
    I(f"v_xor_b32 v5, v5, v{u(1)}")
    I(f"v_lshlrev_b32 v{l16}, 4, v{lane}")
    I(f"v_and_b32 v{vCP}, 16, v{lane}")
    I(f"v_lshlrev_b32 v{vCP}, 2, v{vCP}")
    vXS, vXA = vR + 14, vR + 15
    I(f"v_xor_b32 v{vXS}, v{vCP}, v{l16}")
    I(f"v_and_b32 v{vCP}, 0x70, v{vXS}")
    if SOFF: I(f"v_subrev_u32 v{vCP}, {SOFF * 128}, v{vCP}")
    srd(sX, KA, KA+1, N*128)
    WLPOS = len(out)
    mark = len(out)
    OFF = opt("off", 20)
    lo0, hi0, lo1, hi1 = sT, sN, sMSK, sMSK + 1
    I(f"s_lshr_b32 s10, s{sW}, 1")
    I(f"s_mul_i32 s10, s10, 49")
    I(f"s_bitcmp1_b32 s{sW}, 0")
    I(f"s_cselect_b32 s{lo0}, {OFF}, -4")
    I(f"s_cselect_b32 s{hi0}, 28, {OFF - 17}")
    I(f"s_cselect_b32 s{lo1}, 45, {OFF}")
    I(f"s_add_i32 s{lo0}, s{lo0}, s10")
    I(f"s_add_i32 s{hi0}, s{hi0}, s10")
    I(f"s_add_i32 s{lo1}, s{lo1}, s10")
    I(f"s_add_i32 s{hi1}, s{lo0}, 32")
    I(f"s_max_i32 s{sWIN}, s{lo0}, 0")
    I(f"s_cmp_eq_u32 s{sW}, 7")
    I(f"s_cselect_b32 s{lo1}, {BN}, s{lo1}")
    I(f"s_cselect_b32 s{hi1}, {BN}, s{hi1}")
    I(f"v_lshrrev_b32 v{u(5)}, 5, v{lane}")
    def wloads():
        srd(q0, KA+10, KA+11, 8192)
        I(f"buffer_load_dwordx4 {rr(pW,4)}, v5, s[{q0}:{q0+3}], 0 offen"); vq.append("B")
        srd(q1, KA+12, KA+13, 2048)
        I(f"buffer_load_dwordx4 {rr(pW+4,4)}, v5, s[{q1}:{q1+3}], 0 offen"); vq.append("B")
        I(f"s_lshl_b32 s10, s7, 10")
        for kp, off in ((KA+8, WI_A), (KA+16, WI_V), (KA+14, WI_U)):
            I(f"s_mov_b32 s{q0}, s{kp}")
            I(f"s_mov_b32 s{q0+1}, s{kp+1}")
            I(f"s_add_u32 m0, s10, {WL + off}")
            I("s_nop 0")
            I(f"buffer_load_dwordx4 v5, s[{q0}:{q0+3}], 0 offen lds"); vq.append("W")
    def xloads():
        I(f"s_mul_i32 s10, s{sB}, {BN}")
        I(f"s_add_u32 s10, s10, s{sWIN}")
        I(f"s_lshl_b32 s10, s10, 7")
        I(f"s_mul_i32 s11, s7, 4160")
        for i in range(4):
            I(f"s_add_u32 m0, s11, {XO + i*1040}")
            I(f"s_add_u32 s{sTMP}, s10, {i*1024}")
            I(f"buffer_load_dwordx4 v{vXS}, s[{sX}:{sX+3}], s{sTMP} offen{pol(opt('xo', ''))} lds")
    srd(sEP, KA+2, KA+3, E*32)
    srd(sOUT, KA+18, KA+19, N*128)
    srd(sWS, 8, 9, WS_USED)
    I(f"v_lshrrev_b32 v{u(6)}, 5, v{tid}")
    I(f"v_and_b32 v{u(7)}, 15, v{tid}")
    I(f"v_cmp_eq_u32 vcc, v{u(6)}, v{u(7)}")
    I(f"v_and_b32 v{u(6)}, 16, v{tid}")
    I(f"v_mov_b32 v{u(7)}, 0x3f80")
    I(f"v_lshlrev_b32 v{u(7)}, v{u(6)}, v{u(7)}")
    I(f"v_cndmask_b32 v{u(7)}, 0, v{u(7)}, vcc")
    I(f"v_lshlrev_b32 v{u(6)}, 2, v{tid}")
    I(f"v_mov_b32 v{u(8)}, 0")
    I(f"ds_write_b32 v{u(6)}, v{u(7)}")
    if SM1:
        I(f"v_bfe_u32 v{u(7)}, v{tid}, 3, 1")
        I(f"v_and_b32 v{u(13)}, 7, v{tid}")
        I(f"v_lshl_add_u32 v{u(7)}, v{u(7)}, 2, v{u(13)}")
        I(f"v_lshrrev_b32 v{u(12)}, 6, v{tid}")
        I(f"v_cmp_eq_u32 vcc, v{u(7)}, v{u(12)}")
        I(f"v_bfe_u32 v{u(12)}, v{tid}, 4, 2")
        I(f"v_mov_b32 v{u(7)}, 0x3f80")
        I(f"v_cndmask_b32 v{u(7)}, 0, v{u(7)}, vcc")
        I(f"v_cmp_lt_u32 vcc, 3, v{u(13)}")
        I(f"v_mul_u32_u24 v{u(12)}, 0x5555, v{u(12)}")
        I(f"v_and_b32 v{u(13)}, 60, v{u(6)}")
        I(f"v_cndmask_b32 v{u(7)}, v{u(7)}, v{u(12)}, vcc")
        I(f"ds_write_b32 v{u(6)}, v{u(7)} offset:{T1B}")
        I(f"ds_write_b32 v{u(13)}, v{u(8)} offset:{T1B + 2048}")
    I(f"ds_write_b32 v{u(6)}, v{u(8)} offset:{ZROW}")
    I(f"ds_write2st64_b32 v{u(6)}, v{u(8)}, v{u(8)} offset0:{HIST//256} offset1:{HIST//256 + 8}")
    I(f"s_movk_i32 s{s128}, 128")
    I(f"s_mul_i32 s{sSTG}, s{sW}, {WST}")
    I(f"s_add_u32 s{sSTG}, s{sSTG}, {STG}")
    I(f"s_movk_i32 s{sSKIP}, {QCAP}")
    I(f"s_add_u32 s{sNUL}, s{sWIN}, 32")
    I(f"s_lshl_b32 s11, s{sWIN}, 6")
    I(f"s_mov_b32 s{sXT}, 0")
    I(f"v_bfe_u32 v{u(6)}, v{lane}, 4, 1")
    I(f"v_and_b32 v{vCH}, 1, v{lane}")
    I(f"v_lshlrev_b32 v{vCH}, 4, v{vCH}")
    I(f"v_lshlrev_b32 v{vC1}, 5, v{u(5)}")
    I(f"v_subrev_u32 v{vC1}, s11, v{vC1}")
    I(f"v_and_b32 v{u(7)}, 3, v{lane}")
    I(f"v_lshlrev_b32 v{u(7)}, 3, v{u(7)}")
    I(f"v_lshl_add_u32 v{vC2}, v{u(6)}, 5, v{u(7)}")
    I(f"v_subrev_u32 v{vC2}, s11, v{vC2}")
    I(f"v_mul_u32_u24 v{u(8)}, 130, v{u(7)}")
    I(f"v_and_b32 v{u(6)}, 28, v{lane}")
    I(f"v_lshl_add_u32 v{u(8)}, v{u(6)}, 5, v{u(8)}")
    I(f"v_bfe_u32 v{u(6)}, v{lane}, 3, 1")
    I(f"v_xor_b32 v{u(6)}, v{u(6)}, v{u(5)}")
    I(f"v_lshl_add_u32 v{u(8)}, v{u(6)}, 6, v{u(8)}")
    I(f"v_add_u32 v{vAX}, s{sSTG}, v{u(8)}")
    I(f"v_and_b32 v{u(6)}, 31, v{lane}")
    I(f"v_lshl_add_u32 v{u(6)}, v{u(6)}, 1, v{u(5)}")
    I(f"v_lshl_add_u32 v{vAE}, v{u(6)}, 4, s{sSTG}")
    I(f"v_add_u32 v{vAE}, 4160, v{vAE}")
    I(f"s_mul_i32 s{sL}, s{sW}, {LCAP*4}")
    I(f"s_add_u32 s{sL}, s{sL}, {R0}")
    listaddr(lane, u(6), u(7))
    def ownaddr(d, lab, t):
        I(f"v_and_b32 v{d}, 31, v{lab}")
        I(f"v_bfe_u32 v{t}, v{d}, 1, 1")
        I(f"v_xor_b32 v{t}, v{t}, v{u(5)}")
        I(f"v_lshlrev_b32 v{t}, 6, v{t}")
        I(f"v_lshl_add_u32 v{t}, v{d}, 7, v{t}")
        I(f"v_lshrrev_b32 v{d}, 3, v{d}")
        I(f"v_lshl_add_u32 v{d}, v{d}, 4, v{t}")
        I(f"v_add_u32 v{d}, s10, v{d}")
    I(f"s_mul_i32 s10, s7, 4160")
    I(f"s_add_u32 s10, s10, {XO}")
    ownaddr(u(14), lane, u(6))
    I(f"v_lshrrev_b32 v{u(6)}, 1, v{lane}")
    I(f"v_xor_b32 v{u(6)}, v{u(6)}, v{lane}")
    I(f"v_and_b32 v{u(6)}, 4, v{u(6)}")
    I(f"v_mul_u32_u24 v{u(6)}, 3, v{u(6)}")
    I(f"v_xor_b32 v{u(6)}, v{u(6)}, v{lane}")
    ownaddr(vXA, u(6), u(7))
    I(f"v_mov_b32 v{vIX}, 0xdddd")
    I(f"v_lshlrev_b32 v{k4}, 2, v{u(9)}")
    vEB = vQ + 4
    I(f"v_mul_u32_u24 v{vEB}, {CH*8}, v{hda}")
    for i in range(1, 4):
        I(f"v_add_u32 v{vEB+i}, {64*i*CH*32}, v{vEB}")
    I(f"v_mov_b32 v{one}, 4")
    I(f"v_mov_b32 v{ecb}, 1")
    I(f"v_and_b32 v{u(11)}, 31, v{lane}")
    I(f"v_add_u32 v{u(11)}, s{sWIN}, v{u(11)}")
    I(f"v_lshlrev_b32 v{u(12)}, 4, v{u(11)}")
    I(f"v_lshl_add_u32 v{u(12)}, v{u(5)}, 3, v{u(12)}")
    for i in range(4): I(f"v_mov_b64 v[{vT2+2*i}:{vT2+2*i+1}], 0")
    I(f"s_lshl_b32 s{sEND}, s{sW}, 2")
    I(f"v_mov_b32 v{vMIN}, s{sEND}")
    I(f"v_lshlrev_b32 v{vMIN+1}, 2, v{u(11)}")
    static = out[mark:]; del out[mark:]
    WLP = opt("wl", 2)
    if WLP == 0: wloads()
    XP_ = opt("xp", 6)
    SP = opt("sp0", 0)
    SPN = opt("spn", 1000)
    if SP:
        out.extend(static[:SPN]); static = static[SPN:]
    c1, c2, c3 = 60, 61, 62
    pm = 78
    pX = 23
    xb = lambda i: (23, 23, 23, 23, 31, 31, 39)[i]
    I(f"s_mov_b32 s{c1}, 85599")
    I(f"s_mov_b32 s{c2}, {-BN & 0xffffffff}")
    I(f"s_movk_i32 s{c3}, {H0}")
    I(f"v_mov_b32 v7, {KQ}")
    I(f"s_mov_b32 s10, {SOFF << 16}")
    I(f"v_lshl_add_u32 v{pI}, v{lane}, 10, s10")
    for i in range(1, 4): I(f"v_add_u32 v{pI+i}, {i << 8}, v{pI}")
    I(f"v_and_b32 v{pI+4}, 127, v{tid}")
    I(f"v_lshl_add_u32 v{pI+4}, v{pI+4}, 9, s10")
    I(f"v_add_u32 v{pI+5}, 256, v{pI+4}")
    I(f"v_lshl_add_u32 v{pI+6}, v{lane}, 8, s10")
    I(f"v_lshrrev_b32 v23, 6, v{tid}")
    I(f"v_lshrrev_b32 v31, 7, v{tid}")
    I(f"v_add_u32 v31, 8, v31")
    I(f"v_mov_b32 v39, 12")
    I(f"v_cmp_gt_u32 s[{pm}:{pm+1}], {CH - 3072}, v{tid}")
    I(f"s_mov_b32 s11, {RS}")
    I(f"v_lshlrev_b32 v3, 4, v{u(9)}")
    I(f"v_mad_u32_u24 v4, v1, s11, v3")
    I(f"v_mul_u32_u24 v6, {LROW // 4}, v1")
    I(f"v_lshl_add_u32 v6, v{u(9)}, 2, v6")
    I(f"v_lshlrev_b32 v3, 2, v6")
    I(f"v_add_u32 v3, {P_CIMG}, v3")
    I(f"v_add_u32 v6, {P_EIMG}, v6")
    I(f"v_mov_b32 v{vTM}, {TMASK:#x}")
    I(f"v_mov_b32 v15, 0x0f0f0f")
    X0 = (LROW // 16) * H0
    sSO = sCI
    def cload(i):
        so = "0" if i == 0 else f"s{sSO+i-1}"
        I(f"buffer_load_dwordx4 {rr(vC+4*i,4)}, v{u(1)}, s[{sCEL}:{sCEL+3}], {so} offen sc1")
    def cloads():
        if opt("dly", 0): I(f"s_sleep {opt('dly', 0)}")
        stamp('w')
        for i in range(4): cload(i); vq.append("C")
    def prod(idx):
        n = len(idx)
        for i in idx: I(f"v_mul_u32_u24 v{pB+i}, s{c1}, v{pD+i}")
        for i in idx: I(f"v_lshrrev_b32 v{pB+i}, 24, v{pB+i}")
        for i in idx:
            I(f"v_lshl_add_u32 v{pH+i}, v{pB+i}, 2, s{c3}")
            I(f"ds_add_rtn_u32 v{pK+i}, v{pH+i}, v7 offset:{P_HIST - H0}")
        for i in idx:
            I(f"v_mad_i32_i24 v{pD+i}, v{pB+i}, s{c2}, v{pD+i}")
            I(f"v_or_b32 v{pD+i}, v{pD+i}, v{pI+i}")
        for j, i in enumerate(idx):
            I(f"s_waitcnt lgkmcnt({n - 1})")
            I(f"v_lshrrev_b32 v{pK+i}, 16, v{pK+i}")
            I(f"v_min_u32 v{pA+i}, {QCAP}, v{pK+i}")
            I(f"v_mad_u32_u24 v{pA+i}, v{pH+i}, {LROW // 16}, v{pA+i}")
            I(f"v_lshlrev_b32 v{pB+i}, 2, v{pA+i}")
            I(f"ds_write_b8 v{pA+i}, v{xb(i)} offset:{P_EIMG - X0}")
    def prod2(idx):
        for i in idx:
            I(f"v_lshl_add_u32 v{pS+i}, v{pS+i}, 16, v{pD+i}")
            I(f"ds_write_b32 v{pB+i}, v{pS+i} offset:{P_CIMG - 4*X0}")
    if WLP == 1: wloads()
    stamp('q')
    I(f"s_waitcnt vmcnt({younger('D')})")
    stamp('d')
    prod(range(6))
    I(f"s_cmp_lg_u32 s7, 0")
    I("s_cbranch_scc1 K1_NO7")
    I(f"s_mov_b64 exec, s[{pm}:{pm+1}]")
    I("s_waitcnt lgkmcnt(0)")
    prod([6])
    I(f"s_waitcnt vmcnt({younger('S')})")
    prod2([6])
    I("s_mov_b64 exec, -1")
    L("K1_NO7")
    if WLP == 2: wloads()
    I(f"s_waitcnt vmcnt({younger('S')})")
    prod2(range(6))
    I(f"s_lshl_b32 s15, s{sB}, 7")
    sST_ = sCEL
    srd(sST_, 8, 9, 511*RS + CELLB, "s15")
    I("s_waitcnt lgkmcnt(0)")
    I(f"s_add_u32 s{sEPN}, s{sEPN}, 1")
    I(f"s_and_b32 s10, s{sEPN}, 15")
    I(f"s_and_b32 s11, s{sEPN}, 0xf0")
    I(f"s_mul_i32 s{sTAG}, s10, 0x1010")
    I(f"s_lshl_b32 s11, s11, 16")
    I(f"s_xor_b32 s{sTAG}, s{sTAG}, 0xf000")
    I(f"s_or_b32 s{sTAG}, s{sTAG}, s11")
    I(f"s_mov_b32 s{sSPIN}, {opt('spin', 200000)}")
    I("s_barrier")
    stamp('i')
    oC, oE, oH, oA = vACC, vACC + 16, vACC + 20, vACC + 24
    I(f"ds_read_b128 {rr(oA,4)}, v{l16} offset:{P_HIST}")
    for i in range(4):
        I(f"ds_read_u16 v{oH+i}, v{hda} offset:{P_HIST + 256*i + 2}")
        I(f"ds_read_b32 v{oE+i}, v6 offset:{16*LROW*i}")
        I(f"ds_read_b128 {rr(oC+4*i,4)}, v3 offset:{64*LROW*i}")
    I("s_waitcnt lgkmcnt(12)")
    I(f"v_max3_u32 v1, v{oA}, v{oA+1}, v{oA+2}")
    I(f"v_max_u32 v1, v1, v{oA+3}")
    I(f"v_cmp_le_u32 vcc, {(QCAP + 1) << 16}, v1")
    I("s_mov_b32 s10, 0")
    I("s_cbranch_vccnz K1_OVF")
    L("K1_OUT")
    for i in range(4):
        r = oC + 4*i
        I(f"s_waitcnt lgkmcnt({9 - 3*i})")
        I(f"v_lshl_or_b32 v{oH+i}, v{oH+i}, 24, s{sTAG}")
        I(f"v_and_or_b32 v{r+3}, v{oE+i}, v15, v{oH+i}")
        I(f"buffer_store_dwordx4 {rr(r,4)}, v4, s[{sST_}:{sST_+3}], s10 offen sc1"); vq.append("O")
        I(f"s_add_u32 s10, s10, {64*RS}")
    I(f"v_max3_u32 v1, v{oH}, v{oH+1}, v{oH+2}")
    I(f"v_max_u32 v1, v1, v{oH+3}")
    I(f"v_cmp_le_u32 vcc, {33 << 24}, v1")
    I("s_cbranch_vccnz K1_EXT")
    L("K1_EXTR")
    stamp('o')
    if TS == 10:
        I("s_waitcnt vmcnt(0)")
        stamp('A')
    if opt("bar", 0): I("s_barrier")
    out.extend(static)
    I(f"s_mul_i32 s10, s{sB}, {RS}")
    srd(sCEL, 8, 9, NCH*CELLB, "s10")
    for k in (1, 2, 3):
        I(f"s_movk_i32 s{sSO+k-1}, {64*CELLB*k}")
    CP = opt("cp", 2)
    if CP == 0: cloads()
    I(f"s_mov_b32 s10, {f2u(-LOG2E):#x}")
    I(f"s_waitcnt vmcnt({younger('B')})")
    for i in range(8):
        I(f"v_lshlrev_b32 v{vAT+2*i}, 16, v{pW+i}")
        I(f"v_and_b32 v{vAT+2*i+1}, 0xffff0000, v{pW+i}")
    for i in range(16): I(f"v_mul_f32 v{vAT+i}, s10, v{vAT+i}")
    for i in range(8): I(f"v_cvt_pk_bf16_f32 v{pW+i}, v{vAT+2*i}, v{vAT+2*i+1}")
    I(f"ds_write_b128 v{u(1)}, {rr(pW,4)} offset:{WL + WI_B}")
    I(f"s_cmp_ge_u32 s7, 2")
    I("s_cbranch_scc1 K1_NOWC")
    I(f"ds_write_b128 v{u(1)}, {rr(pW+4,4)} offset:{WL + WI_C}")
    L("K1_NOWC")
    w0, w1, wc0, wc1, xa_ = vT1 + 1, vT1 + 2, vT1 + 3, vT1 + 4, vT
    I(f"v_bfe_u32 v{w0}, v{lane}, 2, 2")
    I(f"v_lshlrev_b32 v{w0}, 7, v{w0}")
    I(f"v_lshl_add_u32 v{w0}, v{vCH}, 2, v{w0}")
    I(f"v_and_b32 v{w1}, 16, v{lane}")
    I(f"v_and_b32 v{wc0}, 2, v{lane}")
    I(f"v_lshl_add_u32 v{w1}, v{wc0}, 2, v{w1}")
    I(f"v_and_b32 v{wc0}, 8, v{lane}")
    I(f"v_lshl_add_u32 v{w1}, v{wc0}, 2, v{w1}")
    I(f"v_add_u32 v{w0}, v{w0}, v{w1}")
    I(f"v_lshl_add_u32 v{wc0}, v{u(5)}, 10, v{w0}")
    I(f"v_lshl_add_u32 v{w0}, v{u(5)}, 12, v{w0}")
    I(f"v_xor_b32 v{w1}, 32, v{w0}")
    I(f"v_xor_b32 v{wc1}, 32, v{wc0}")
    def wtr(reg, img, ft, s_, c=False):
        ad = (wc0, wc1)[ft] if c else (w0, w1)[ft]
        return [f"ds_read_b64_tr_b16 {rr(reg+2*h_,2)}, v{ad} offset:{WL + img + 1024*s_ + 512*h_}" for h_ in range(2)]
    I(f"s_lshl_b32 s10, s7, 10")
    I(f"s_and_b32 s11, s7, 4")
    I(f"s_mul_i32 s11, s11, {8 - 1024}")
    I(f"s_add_u32 s11, s11, s10")
    I(f"v_xor_b32 v{xa_}, s11, v{w0}")
    I(f"s_waitcnt vmcnt({0 if opt('ack', 1) else younger('W')}) lgkmcnt(0)")
    I("s_barrier")
    if CP == 1: cloads()
    for h_ in range(2):
        I(f"ds_read_b64_tr_b16 {rr(vAT+2*h_,2)}, v{xa_} offset:{WL + WI_U + 512*h_}")
        I(f"ds_read_b64_tr_b16 {rr(vAT+4+2*h_,2)}, v{xa_} offset:{WL + WI_A + 512*h_}")
    I(f"v_add_u32 v{xa_}, s10, v{l16}")
    rest = []
    for reg, img in ((vWB, WI_B), (vWC, WI_C), (vWV, WI_V)):
        for ft in range(2):
            if img == WI_C: rest += wtr(vWC + 4*ft, WI_C, ft, 0, True)
            else:
                for s_ in range(4): rest += wtr(reg + 16*ft + 4*s_, img, ft, s_)
    for x_ in rest[:8]: I(x_)
    rest = rest[8:]
    I("s_waitcnt lgkmcnt(8)")
    I(f"ds_write_b128 v{xa_}, {rr(vAT,4)} offset:{WU}")
    I(f"ds_write_b128 v{xa_}, {rr(vAT+4,4)} offset:{WA}")
    while rest:
        I("s_waitcnt lgkmcnt(8)")
        for x_ in rest[:6]: I(x_)
        rest = rest[6:]
    stamp('k')
    sPH = 5
    I(f"s_mov_b32 s{sPH}, {PHM}")
    if CP == 2: cloads()
    SW1 = "dst_sel:DWORD dst_unused:UNUSED_PAD src0_sel:DWORD src1_sel:WORD_1"
    def haddr(d, r):
        return [f"v_mul_u32_u24_sdwa v{d}, s{sPH}, v{r} {SW1}", f"v_alignbit_b32 v{d}, v{r}, v{d}, 28", f"v_and_b32 v{d}, 0xffc, v{d}"]
    def remain(d, r, k):
        I(f"v_sub_u32_sdwa v{d}, v{r}, v{k} dst_sel:DWORD dst_unused:UNUSED_PAD src0_sel:BYTE_3 src1_sel:DWORD")
    for i in range(4):
        L(f"K2_CHK{i}")
        I(f"s_waitcnt vmcnt({3 - i})")
        r = vC + 4*i
        I(f"v_bitop3_b32 v{u(0)}, v{r+3}, s{sTAG}, v{vTM} bitop3:0x28")
        I(f"v_cmp_ne_u32 vcc, 0, v{u(0)}")
        remain(u(0), r + 3, k4)
        hs = [haddr(vA+3*i+j, r+j) for j in range(3)]
        for j in range(3): I(hs[j][0])
        I(f"s_cbranch_vccnz K2_RETRY{i}")
        if i == 0: stamp(1)
        for j in range(3):
            m = sM + 2*(3*i+j)
            I(f"v_cmp_lt_i32 s[{m}:{m+1}], {j}, v{u(0)}")
        for st in (1, 2):
            for j in range(3): I(hs[j][st])
        for j in range(3):
            m = sM + 2*(3*i+j)
            I(f"s_mov_b64 exec, s[{m}:{m+1}]")
            I(f"ds_add_rtn_u32 v{vRK+3*i+j}, v{vA+3*i+j}, v{one} offset:{HIST}")
        I("s_mov_b64 exec, -1")
    I(f"v_max3_u32 v{u(0)}, v{vC+3}, v{vC+7}, v{vC+11}")
    I(f"v_max_u32 v{u(0)}, v{u(0)}, v{vC+15}")
    I(f"v_cmp_le_u32 vcc, {33 << 24}, v{u(0)}")
    sSEL = sM + 24
    for j in range(3): I(f"s_mov_b32 s{sSEL+j}, {0x0c0c0001 | (4 + j) << 8:#x}")
    I(f"s_mov_b32 s{sSEL+3}, 0x05040100")
    I("s_cbranch_vccnz K2_XT1")
    L("K2_XT1R")
    vEO = vX
    fill = []
    for i in range(4):
        fill.append(f"v_and_b32 v{vC+4*i+3}, 0x0f0f0f, v{vC+4*i+3}")
    for i in range(4):
        for j in range(3): fill.append(f"v_perm_b32 v{vEO+3*i+j}, v{vC+4*i+3}, v{vC+4*i+j}, s{sSEL+j}")
    for i in range(4):
        for j in range(3): fill.append(f"v_lshl_add_u32 v{vEO+3*i+j}, v{vEO+3*i+j}, 5, v{vEB+i}")
    EPF, XPF = opt("epf", 0), opt("xpf", 0)
    def epref(fill):
        dm = vT1 + 6
        if XPF:
            I(f"s_lshr_b32 s10, s2, 3")
            I(f"s_mul_i32 s10, s10, {XPF}")
            I(f"v_cmp_gt_u32 vcc, {XPF}, v{tid}")
            I(f"v_add_lshl_u32 v{dm}, v{tid}, s10, 7")
            I("s_and_b64 exec, exec, vcc")
            I("s_cbranch_execz K2_NOXPF")
            I(f"buffer_load_dword v{dm}, v{dm}, s[{sX}:{sX+3}], 0 offen")
            L("K2_NOXPF")
            I("s_mov_b64 exec, -1")
        while fill: I(fill.pop(0))
        I(f"s_mov_b32 s10, {(SOFF + opt('et', T0)) << 16:#x}")
        for s in range(12):
            m = sM + 2*s
            I(f"s_mov_b64 exec, s[{m}:{m+1}]")
            I(f"v_cmpx_gt_u32 vcc, s10, v{vC+4*(s//3)+s%3}")
            I(f"buffer_load_dword v{dm}, v{vEO+s}, s[{sEP}:{sEP+3}], 0 offen")
        I("s_mov_b64 exec, -1")
    if EPF == 1: epref(fill)
    MT, MTP = opt("mt", 0), opt("mtp", 0)
    def mtouch():
        dm = vT1 + 6
        I(f"s_mul_i32 s10, s{sB}, {CH*32}")
        for k in range((MT + 511) // 512):
            n = min(512, MT - 512*k)
            I(f"v_min_u32 v{dm+1}, {n - 1}, v{tid}")
            I(f"v_lshlrev_b32 v{dm+1}, {opt('mts', 7)}, v{dm+1}")
            if n < 512:
                I(f"s_cmp_ge_u32 s7, {(n + 63) // 64}")
                I(f"s_cbranch_scc1 K2_NOMT{k}")
            I(f"buffer_load_dword v{dm}, v{dm+1}, s[{sEP}:{sEP+3}], s10 offen")
            if n < 512: L(f"K2_NOMT{k}")
            I(f"s_add_u32 s10, s10, 65536")
    if MT and MTP == 0: mtouch()
    stamp('s')
    I("s_waitcnt lgkmcnt(0)")
    I("s_barrier")
    stamp(2)
    c, p, tot, sc = u(0), u(4), u(8), u(9)
    own, ownn, owna = u(10), u(11), u(12)
    SD = "dst_sel:DWORD dst_unused:UNUSED_PAD src0_sel:WORD_0 src1_sel:WORD_0"
    for i in range(4):
        I(f"ds_read_b128 {rr(hh+4*i,4)}, v{l16} offset:{HIST + 1024*i}")
    I(f"ds_read_b64 v[{u(6)}:{u(7)}], v{owna} offset:{HIST}")
    def xearly():
        if opt("xy", 0):
            I(f"s_bitcmp1_b32 s{sW}, 0")
            I("s_cbranch_scc0 K2_NOXE")
        xloads()
        L("K2_NOXE")
    if XP_ == 6: xearly()
    if EPF == 2: epref(fill)
    if MT and MTP == 1: mtouch()
    for k in range(8):
        if fill: I(fill.pop(0))
    for i in range(4):
        I(f"s_waitcnt lgkmcnt({4 - i})")
        I(f"v_add_u32_sdwa v{c+i}, v{hh+4*i}, v{hh+4*i+1} {SD}")
        I(f"v_add_u32_sdwa v{hh+4*i}, v{hh+4*i+2}, v{hh+4*i+3} {SD}")
        I(f"v_add_u32 v{c+i}, v{c+i}, v{hh+4*i}")
    I(f"v_lshl_or_b32 v{p}, v{c+1}, 16, v{c}")
    I(f"v_lshl_or_b32 v{p+1}, v{c+3}, 16, v{c+2}")
    I("s_waitcnt lgkmcnt(0)")
    I(f"v_perm_b32 v{own}, v{u(7)}, v{u(6)}, s{sSEL+3}")
    for dp in ["row_shr:%d row_mask:0xf bank_mask:0xf bound_ctrl:0" % sh for sh in (1, 2, 4, 8)] + \
              ["row_bcast:15 row_mask:0xa bank_mask:0xf", "row_bcast:31 row_mask:0xc bank_mask:0xf"]:
        I(f"v_add_u32_dpp v{p}, v{p}, v{p} {dp}")
        I(f"v_add_u32_dpp v{p+1}, v{p+1}, v{p+1} {dp}")
        I(fill.pop(0) if fill else "s_nop 0")
    I(f"v_readlane_b32 s10, v{p}, 63")
    I(f"v_readlane_b32 s11, v{p+1}, 63")
    for i in range(4):
        I(f"v_lshlrev_b32_sdwa v{hh+i}, v{ecb}, v{p+(i>>1)} dst_sel:DWORD dst_unused:UNUSED_PAD src0_sel:DWORD src1_sel:WORD_{i&1}")
        I(f"v_sub_u32 v{c+i}, v{hh+i}, v{c+i}")
    b1, b2, b3 = 4, 5, 6
    I(f"s_and_b32 s{b1}, s10, 0xffff")
    I("s_lshr_b32 s10, s10, 16")
    I(f"s_add_u32 s{b2}, s{b1}, s10")
    I("s_and_b32 s10, s11, 0xffff")
    I(f"s_add_u32 s{b3}, s{b2}, s10")
    I("s_lshr_b32 s11, s11, 16")
    I(f"s_add_u32 s10, s{b3}, s11")
    for i, b in ((1, b1), (2, b2), (3, b3)):
        I(f"v_lshl_add_u32 v{c+i}, s{b}, 1, v{c+i}")
    KV = opt("kv", "1_4_3232_5") if SBK else ""
    if KV:
        klo, khi, kref, ksh = [int(x) for x in KV.split("_")]
        I(f"s_sub_i32 s{sSB}, {4*kref}, s10")
        I(f"s_ashr_i32 s{sSB}, s{sSB}, {ksh + 2}")
        I(f"s_max_i32 s{sSB}, s{sSB}, {klo}")
        I(f"s_min_i32 s{sSB}, s{sSB}, {khi}")
    I("s_lshr_b32 s11, s10, 5")
    I(f"s_add_u32 s11, s11, 16")
    I("s_and_b32 s11, s11, -32")
    if KV:
        I(f"s_cmp_ge_i32 s{sSB}, {opt('shk', 1)}")
        I(f"s_cselect_b32 s{sF0}, {ASYM + 32}, {ASYM}")
        I(f"s_sub_i32 s11, s11, s{sF0}")
        I(f"s_cmp_lt_i32 s{sSB}, 1")
        I(f"s_cselect_b32 s{sSB}, -1, s{sSB}")
    else: I(f"s_sub_i32 s11, s11, {ASYM + 32*opt('sh', 1)}")
    I("s_lshl_b32 s11, s11, 3")
    I("s_lshr_b32 s10, s10, 1")
    I(f"s_lshr_b32 s{sF0}, s{sW}, 1")
    I(f"s_mul_i32 s{sF0}, s{sF0}, s10")
    I(f"s_add_i32 s11, s11, s{sF0}")
    I(f"s_add_i32 s10, s10, s{sF0}")
    I(f"s_bitcmp1_b32 s{sW}, 0")
    I(f"s_cselect_b32 s{sEND}, s11, s{sF0}")
    I("s_cselect_b32 s10, s10, s11")
    I(f"s_mov_b32 s{sF0}, 0")
    I(f"s_mov_b32 s{sF1}, 0")
    for i in range(4):
        I(f"v_cmp_gt_i32 vcc, s{sEND}, v{c+i}")
        I(f"v_cmp_gt_i32 s[{sTMP}:{sTMP+1}], s10, v{c+i}")
        I("s_bcnt1_i32_b64 s11, vcc")
        I(f"s_add_u32 s{sF0}, s{sF0}, s11")
        I(f"s_bcnt1_i32_b64 s11, s[{sTMP}:{sTMP+1}]")
        I(f"s_add_u32 s{sF1}, s{sF1}, s11")
    I(f"s_max_i32 s{sF0}, s{sF0}, s{lo0}")
    I(f"s_min_i32 s{sF0}, s{sF0}, s{hi0}")
    I(f"s_max_i32 s{sF1}, s{sF1}, s{lo1}")
    I(f"s_min_i32 s{sF1}, s{sF1}, s{hi1}")
    I(f"v_cmp_le_u32 vcc, s{sF0}, v{ownn}")
    I(f"v_cmp_gt_u32 s[10:11], s{sF1}, v{ownn}")
    I(f"s_mov_b32 s{sMORE}, 2")
    I("s_and_b64 vcc, vcc, s[10:11]")
    I(f"v_cndmask_b32 v{own}, 0, v{own}, vcc")
    I(f"v_mov_b32 v{tot}, v{own}")
    wave_scan(tot, fill, half=True)
    for x_ in fill: I(x_)
    I(f"s_sub_u32 s{sTMP}, s{sL}, {R0}")
    I(f"v_readlane_b32 s10, v{tot}, 31")
    I(f"v_readlane_b32 s11, v{tot}, 63")
    I(f"v_sub_u32 v{tot}, v{tot}, v{own}")
    I(f"v_mov_b32 v{vOWN}, v{u(14)}")
    I(f"s_and_b32 s{sTH}, s10, 0xffff")
    I("s_lshr_b32 s10, s10, 16")
    I(f"s_add_u32 s{sTH+1}, s{sTH}, s10")
    I("s_and_b32 s10, s11, 0xffff")
    I(f"s_add_u32 s{sTH+2}, s{sTH+1}, s10")
    I("s_lshr_b32 s11, s11, 16")
    I(f"s_add_u32 s{sEND}, s{sTH+2}, s11")
    I(f"s_lshl_b32 s10, s{sTH}, 16")
    I(f"s_pack_ll_b32_b16 s11, s{sTH+1}, s{sTH+2}")
    I(f"s_pack_ll_b32_b16 s{sTMP}, s{sTMP}, s{sTMP}")
    I(f"s_add_u32 s10, s10, s{sTMP}")
    I(f"s_add_u32 s11, s11, s{sTMP}")
    I("s_mov_b32 exec_lo, vcc_lo")
    I("s_mov_b32 exec_hi, 0")
    I(f"v_add_u32 v{tot}, s10, v{tot}")
    I("s_mov_b32 exec_lo, 0")
    I("s_mov_b32 exec_hi, vcc_hi")
    I(f"v_add_u32 v{tot}, s11, v{tot}")
    I("s_mov_b64 exec, vcc")
    I(f"ds_write_b16 v{owna}, v{tot} offset:{HIST + 2}")
    I(f"ds_write_b16_d16_hi v{owna}, v{tot} offset:{HIST + 6}")
    I(f"ds_write_b32 v{vMIN+1}, v{vMIN} offset:{MAP}")
    I("s_mov_b64 exec, -1")
    I(f"v_mov_b32 v{sc}, {FLAG}")
    I(f"s_cmp_le_u32 s{sEND}, {LMAX*4}")
    I("s_cbranch_scc1 K2_LFIT")
    I(f"ds_write_b32 v{sc}, v{sc}")
    I(f"s_mov_b32 s{sEND}, 0")
    L("K2_LFIT")
    I(f"s_add_u32 s{sEND}, s{sEND}, s{sL}")
    for k in range(3):
        I(f"s_add_i32 s{sTH+k}, s{sTH+k}, {opt('tho', 64)}")
        I(f"s_lshr_b32 s{sTH+k}, s{sTH+k}, 7")
    if XP_ == 7: xearly()
    pads(lane, u(0), u(1), u(2))
    I(f"v_mov_b32 v{u(0)}, s{sEND}")
    I(f"ds_write_b32 v{vMIN}, v{u(0)} offset:{CNT}")
    I("s_waitcnt lgkmcnt(0)")
    stamp('a')
    I("s_barrier")
    stamp('b')
    I(f"ds_read_b64 v[{u(6)}:{u(7)}], v{sc}")
    for s in range(12):
        m = sM + 2*s
        I(f"s_mov_b64 exec, s[{m}:{m+1}]")
        I(f"ds_read_u16 v{vA+s}, v{vA+s} offset:{HIST + 2}")
    I("s_mov_b64 exec, -1")
    I(f"s_waitcnt lgkmcnt(0)")
    I(f"v_readfirstlane_b32 s{sST}, v{u(6)}")
    I(f"v_readfirstlane_b32 s{sCUR}, v{u(7)}")
    for s in range(12): I(f"v_add_u32 v{vA+s}, v{vA+s}, v{vRK+s}")
    I(f"s_cmp_gt_u32 s{sST}, {XMAX}")
    I("s_cbranch_scc1 K2_OVF")
    for s in range(12):
        m = sM + 2*s
        I(f"s_mov_b64 exec, s[{m}:{m+1}]")
        I(f"ds_write2st64_b32 v{vA+s}, v{vC+4*(s//3)+s%3}, v{vEO+s} offset0:{R0//256} offset1:{R1//256}")
    I("s_mov_b64 exec, -1")
    I(f"s_cmp_lg_u32 s{sXT}, 0")
    I("s_cbranch_scc1 K2_XT2")
    L("K2_PADS0")
    I("s_waitcnt lgkmcnt(0)")
    stamp('c')
    I("s_barrier")
    I(f"s_cmp_lg_u32 s{sST}, 0")
    I("s_cbranch_scc1 K2_XT3")
    L("K2_GO")
    stamp(3)
    STAG = opt("stag", 1)
    I(f"ds_read_b128 {rr(vQD,4)}, v{vARX}")
    I(f"ds_read_b32 v{vR1}, v{vARE}")
    I(f"ds_read_u8 v{vL1}, v{vARP}")
    I("s_waitcnt lgkmcnt(1)")
    EM = opt("em", 0xAA)
    if STAG == 1:
        I(f"s_movk_i32 s10, {EM}")
        I(f"s_bitcmp1_b32 s10, s{sW}")
        I("s_cbranch_scc0 K2_LATE0")
    for s in dma_tile(0): I(s)
    if STAG == 2:
        I(f"s_bitcmp1_b32 s{sW}, 0")
        I("s_cbranch_scc1 K2_LATE0")
        I("s_waitcnt vmcnt(0)")
    L("K2_LATE0")
    I(f"s_cmp_lg_u32 s{sMORE}, 2")
    I("s_cbranch_scc1 K2_BUILT")
    vWA = vACC
    I(f"s_bitcmp1_b32 s{sW}, 0")
    I("s_cbranch_scc1 K2_XOLD")
    if opt("xy", 0): xloads()
    I("s_waitcnt vmcnt(0)")
    L("K2_XOLD")
    I("s_waitcnt vmcnt(5)")
    for q in range(4): I(f"ds_read_b128 {rr(vX+4*q,4)}, v{vXA} offset:{16*q}")
    I(f"v_add_u32 v{l16}, 8192, v{l16}")
    for k in range(8): I(f"ds_read_b128 {rr(vWA+4*k,4)}, v{l16} offset:{WA - 8192 + 1024*k}")
    I(f"s_mov_b32 s10, {f2u(1e-6):#x}")
    I(f"s_mov_b32 s11, s10")
    I(mfma(NUM(1), vT2, vT2))
    for i in range(8): I(f"v_mov_b64 v[{DEN(1)+2*i}:{DEN(1)+2*i+1}], s[10:11]")
    for k in range(8):
        D = (vP, vQ)[k >> 2]
        I(f"s_waitcnt lgkmcnt({7 - k})")
        I(mfma(D, vX + 4*(k & 3), vWA + 4*k, None if k & 3 == 0 else D))
    I(mfma(NUM(0), vT2, vT2))
    for i in range(8): I(f"v_mov_b64 v[{DEN(0)+2*i}:{DEN(0)+2*i+1}], s[10:11]")
    I(f"s_mov_b32 s10, {f2u(-LOG2E):#x}")
    for i in range(32): I(f"v_mul_f32 v{vP+i}, s10, v{vP+i}")
    for i in range(16): I(f"v_cvt_pk_bf16_f32 v{vAT+i}, v{vP+2*i}, v{vP+2*i+1}")

    if SBK and not KV: I(f"s_mov_b32 s{sSB}, {SBK}")
    I(f"s_mov_b32 s{sCI}, -1")
    I(f"s_mov_b64 s[{sMSK}:{sMSK+1}], 0")
    I(f"s_mov_b32 s{sR0}, 0")
    I(f"s_mov_b32 s{sCNT}, 0")
    I(f"s_cmp_lg_u32 s{sCUR}, 0")
    I(f"s_cselect_b32 s{sMORE}, 1, 0")
    L("K2_BUILT")
    I("s_waitcnt lgkmcnt(0)")
    I(f"v_lshl_add_u32 v{vL1}, v{vL1}, 6, v{vC1}")
    if STAG == 1:
        I(f"s_movk_i32 s10, {EM}")
        I(f"s_bitcmp1_b32 s10, s{sW}")
        I("s_cbranch_scc1 K2_HAD0")
        YP = opt("yp", "")
        if YP:
            I(f"s_cmp_lt_i32 s{sSB}, 0")
            I("s_cbranch_scc1 K2_NOYP")
            I(f"v_lshl_add_u32 v{vR}, v{lane}, 2, s{sL}")
            its = YP.split("_")
            for k, it in enumerate(its):
                off = int(it[1:]) * 256 + (LCAP*4 if it[0].isupper() else 0) + (R1 - R0 if it[0] in "eE" else 0)
                I(f"ds_read_b32 v{vR+1+k}, v{vR} offset:{off}")
            for k, it in enumerate(its):
                I(f"s_waitcnt lgkmcnt({len(its) - 1 - k})")
                if it[0] in "xX":
                    I(f"v_mad_u32_u16 v{vR+1+k}, v{vR+1+k}, s{s128}, v{vCP} op_sel:[1,0,0,0]")
                sr = sEP if it[0] in "eE" else sX
                I(f"buffer_load_dword v{vT1+6}, v{vR+1+k}, s[{sr}:{sr+3}], 0 offen")
            L("K2_NOYP")
        if SBK and opt("sbl", 1):
            I(f"s_cmp_lt_i32 s{sSB}, 0")
            I("s_cbranch_scc1 K2_SBY")
            I("s_barrier")
            I(f"s_mov_b32 s{sSB}, -1")
            L("K2_SBY")
        if opt("ys", 0): I(f"s_sleep {opt('ys', 0)}")
        for s in dma_tile(0): I(s)
        L("K2_HAD0")
    I(f"ds_read_b128 {rr(vQD,4)}, v{vARX} offset:128")
    I(f"ds_read_b32 v{vR1}, v{vARE} offset:128")
    for s in t1_reads(): I(s)
    I(mfma(vQ, vT2, vT2))
    stamp(4)
    I("s_waitcnt vmcnt(0)")
    stamp(5)
    I(f"ds_read_b128 {rr(vE,4)}, v{vAE}")
    for q in range(4):
        I(f"ds_read_b128 {rr(vX+4*q,4)}, v{vAX} offset:{16*q}")
    I("s_waitcnt lgkmcnt(0)")
    I(f"s_cmp_eq_u32 s{sN}, 0")
    I("s_cbranch_scc1 K2_DONE")
    YC = opt("yc", 0) or (SBK and not opt("sbl", 1))
    if YC:
        for x_ in dma_tile(0): I(x_)
        I(f"s_movk_i32 s10, {EM}")
        I(f"s_bitcmp1_b32 s10, s{sW}")
        I("s_cbranch_scc1 K2_NOYC")
        if not SBK: I(f"s_sleep {YC}")
        else:
            I(f"s_cmp_lt_i32 s{sSB}, 0")
            I("s_cbranch_scc1 K2_SBY")
            I("s_barrier")
            I(f"s_mov_b32 s{sSB}, -1")
            L("K2_SBY")
        L("K2_NOYC")
    for s in g_mfmas(vP, 0):
        if s.startswith("v_smfmac"):
            if YC: I("s_nop 9")
            else:
                for x_ in dma_tile(0): I(x_)
        I(s)
    I(f"s_mov_b32 s{sT}, 0")
    sEV = 87
    LT = [int(x) for x in opt("lt", "1234")] if opt("lt", "1234") != "0" else []
    def prio_code(uid):
        return [f"s_cmp_ge_u32 s{sT}, s{sEV}", f"s_cbranch_scc1 K2_EV{uid}", f"K2_EVR{uid}:"]
    def next_event():
        I(f"s_mov_b32 s{sEV}, s{sN}")
        for r in [sTH, sTH+1, sTH+2] + ([sSB] if SBK else []) + ([sN1] if LT else []):
            I(f"s_cmp_gt_i32 s{r}, s{sT}")
            I(f"s_cselect_b32 s10, s{r}, s{sEV}")
            I(f"s_min_u32 s{sEV}, s{sEV}, s10")
    YK = opt("yk", 2)
    if YK:
        I(f"s_sub_u32 s10, s{sN}, {YK - 1 if YK < 10 else 0}")
        I(f"s_bitcmp1_b32 s{sW}, 0")
        I(f"s_cselect_b32 s{sTH+2}, s{sTH+2}, s10")
    I("s_setprio 3")
    next_event()
    tst = ["s_memrealtime s[98:99]", "s_waitcnt lgkmcnt(0)", "s_mov_b32 m0, s72", "s_nop 0", "v_writelane_b32 v255, s98, m0", "s_memtime s[98:99]", "s_waitcnt lgkmcnt(0)", "s_add_u32 m0, s72, 32", "s_nop 0", "v_writelane_b32 v255, s98, m0"] if TS == 4 else []
    body = tst + phaseA(0) + phaseB(0)
    body += prio_code(0)
    body += tst + phaseA(1) + phaseB(1)
    body += [f"v_add_u32 v{r}, 0x100, v{r}" for r in (vARX, vARP, vARE, vART)]
    body += [f"s_cmp_lt_u32 s{sT}, s{sEV}", f"s_cbranch_scc1 K2_LOOP"]
    check_body(body)
    DBG = opt("dbg", "")
    if "ell" in DBG:
        nb = []
        for b in body:
            if b.startswith("v_smfmac") and b.endswith(f"v{vIX}"): continue
            if b.startswith("v_smfmac") and "noA" in DBG: continue
            if b.startswith("ds_read_b64_tr") or b.startswith("ds_read_u8 v23") or b.startswith("v_lshl_add_u32 v23"): continue
            m = re.fullmatch(r"v_mul_f32 v(\d+), v(\d+), v\d+", b)
            if m:
                h, g = int(m.group(1)), int(m.group(2)); ft = 0 if g < vQ else 1; i = h - vQ
                nb.append(f"v_fmac_f32 v{NUM(ft)+i}, v{g}, v{h}")
                nb.append(f"v_add_f32 v{DEN(ft)+i}, v{DEN(ft)+i}, v{g}")
                continue
            nb.append(b)
        body = nb
    if "fl" in DBG:
        nb = []; cnt = 0
        for b in body:
            if b.startswith("ds_read_b128 v[172") or b.startswith("ds_read_b32 v176") or b.startswith("ds_read_u8 v250") or b.startswith("v_lshl_add_u32 v250"): continue
            m = re.fullmatch(r"v_add_f32 v(\d+), v(\d+), v(\d+)", b)
            if m:
                cnt += 1
                if cnt % 4 == 0:
                    k = (cnt // 4) % 4
                    nb.append(f"v_cvt_pk_bf16_f32 v{vT2+k}, v{m.group(1)}, v{int(m.group(1))+16}")
                    nb.append(f"ds_pk_add_bf16 v{vT1+7}, v{vT2+k} offset:{256*(cnt%64)//4}")
                    nb.append(f"ds_read_u16_d16_hi v{vAT+k}, v{vC1} offset:{16384 + 128*k}")
                    if k % 2: nb.append(f"v_add_u32 v{vT2+4}, v{vT2+5}, v{vC1}")
                    continue
            if b.startswith("s_waitcnt lgkmcnt"): b = "s_waitcnt lgkmcnt(0)" if "(0)" in b else b
            nb.append(b)
        body = [f"v_lshl_add_u32 v{vT1+7}, v{lane}, 2, s{sSTG}", f"v_subrev_u32 v{vT1+7}, 33280, v{vT1+7}", f"v_lshlrev_b32 v{vC1}, 1, v{lane}"] + nb
    if "half" in DBG:
        body = [b for b in body if not (b.startswith("v_smfmac") and b.endswith(f"v{vIX}") and f"v[{vT2+4}:" in b)]
    if "nodma" in DBG: body = [b for b in body if not b.startswith("buffer_load")]
    emit(".p2align 6")
    L("K2_LOOP")
    for s in body:
        if s.endswith(":"): L(s[:-1])
        else: I(s)
    for uid in (1, 0):
        if uid == 0: L("K2_EV0")
        I(f"s_cmp_ge_u32 s{sT}, s{sN}")
        I("s_cbranch_scc1 K2_TAIL")
        if SBK:
            I(f"s_cmp_lg_u32 s{sT}, s{sSB}")
            I(f"s_cbranch_scc1 K2_SB{uid}")
            I("s_barrier")
            I(f"s_mov_b32 s{sSB}, -1")
            L(f"K2_SB{uid}")
        for k in range(3):
            I(f"s_cmp_lg_u32 s{sT}, s{sTH+k}")
            I(f"s_cbranch_scc1 K2_PR{uid}_{k}")
            I(f"s_setprio {2-k}")
            L(f"K2_PR{uid}_{k}")
        if LT:
            I(f"s_cmp_eq_u32 s{sT}, s{sN1}")
            I(f"s_cbranch_scc1 K2_LT{uid}")
        next_event()
        I("s_branch K2_LOOP" if uid else "s_branch K2_EVR0")
    if LT:
        L("K2_LT0")
        I(f"v_add_u32 v{vART}, 128, v{vART}")
        L("K2_LT1")
        I(f"s_sub_u32 s10, s{sEND}, s{sL}")
        I(f"s_sub_u32 s10, s10, 4")
        I(f"s_and_b32 s10, s10, 127")
        for ng in LT[:-1]:
            I(f"s_cmp_lt_u32 s10, {32*ng}")
            I(f"s_cbranch_scc1 K2_LG{ng}")
        for ng in reversed(LT):
            if ng != LT[-1]: L(f"K2_LG{ng}")
            for x_ in last_tile(ng): I(x_)
            I("s_branch K2_DONE")
    L("K2_TAIL")
    for s in s_mfmas(NUM(1), vQ): I(s)
    L("K2_DONE")
    if SBK:
        I(f"s_cmp_lt_i32 s{sSB}, 0")
        I("s_cbranch_scc1 K2_SBD")
        I("s_barrier")
        I(f"s_mov_b32 s{sSB}, -1")
        L("K2_SBD")
    I(f"s_cmp_lg_u32 s{sMORE}, 0")
    I("s_cbranch_scc1 K2_SLOW")
    L("K2_EPI")
    stamp(6)
    I(f"v_lshlrev_b32 v{vT}, 4, v{lane}")
    for q in range(4):
        I(f"ds_read_b128 {rr(vX+4*q,4)}, v{vOWN} offset:{16*q}")
    for k in range(8):
        I(f"ds_read_b128 {rr(vWB+4*k,4)}, v{vT} offset:{WU + 1024*k}")
    I(f"v_and_b32 v{vQD+1}, 31, v{lane}")
    I(f"v_and_b32 v{vC1}, 32, v{lane}")
    I(f"v_mul_u32_u24 v{vC2}, 144, v{vQD+1}")
    I(f"v_lshrrev_b32 v{vQD+2}, 2, v{vC1}")
    I(f"v_lshl_add_u32 v{vQD+1}, v{vQD+1}, 6, v{vQD+2}")
    for s_ in range(2):
        I(f"ds_read2_b64 {rr(vT2+4*s_,4)}, v{vQD+1} offset0:{4*s_} offset1:{4*s_+2}")
    I("s_waitcnt lgkmcnt(10)")
    for i in range(16):
        I(f"v_lshlrev_b32 v{vWV+2*i}, 16, v{vX+i}")
        I(f"v_and_b32 v{vWV+2*i+1}, 0xffff0000, v{vX+i}")
    I(f"v_lshl_add_u32 v{vT+1}, v{vC1}, 1, v{vC2}")
    I(f"v_add_u32 v{vT+1}, s{sSTG}, v{vT+1}")
    I(f"s_sub_u32 s10, s{sF0}, s{sWIN}")
    I("s_mul_i32 s10, s10, 144")
    I(f"s_add_u32 s10, s10, s{sSTG}")
    I(f"v_lshrrev_b32 v{vQD}, 3, v{lane}")
    I(f"v_lshl_add_u32 v{vQD}, v{vQD}, 4, v{vT}")
    I(f"v_add_u32 v{vQD}, s10, v{vQD}")
    I(f"s_mul_i32 s10, s{sB}, {BN}")
    I(f"s_add_u32 s11, s10, s{sF1}")
    I(f"s_add_u32 s10, s10, s{sF0}")
    I(f"s_min_u32 s11, s11, {N}")
    I(f"s_min_u32 s10, s10, {N}")
    I("s_sub_u32 s11, s11, s10")
    I("s_lshl_b32 s10, s10, 7")
    I(f"s_add_u32 s{sOUT}, s{sOUT}, s10")
    I(f"s_addc_u32 s{sOUT+1}, s{sOUT+1}, 0")
    I(f"s_lshl_b32 s{sOUT+2}, s11, 7")
    for ft, D in ((0, vP), (1, vQ)):
        for q in range(4):
            I(f"s_waitcnt lgkmcnt({9 - 4*ft - q})")
            I(mfma(D, vWB+16*ft+4*q, vX+4*q, vWV+16*ft if q == 0 else D))
            for i in range(4):
                r = DEN(ft) + 4*q + i
                I(f"v_rcp_f32 v{r}, v{r}")
    I("s_waitcnt lgkmcnt(0)")
    for ft, D in ((0, vP), (1, vQ)):
        for i in range(16):
            I(f"v_mul_f32 v{NUM(ft)+i}, v{NUM(ft)+i}, v{DEN(ft)+i}")
        for i in range(8):
            I(f"v_cvt_pk_bf16_f32 v{DEN(ft)+i}, v{NUM(ft)+2*i}, v{NUM(ft)+2*i+1}")
        I(mfma(D, DEN(ft), vT2, D))
        I("s_nop 0")
        I(mfma(D, DEN(ft)+4, vT2+4, D))
    for q in range(4):
        for i in range(8*q, 8*q+8):
            I(f"v_max_f32 v{vP+i}, v{vP+i}, v{vWV+i}")
        for d in range(4):
            i = 4*q + d
            I(f"v_cvt_pk_bf16_f32 v{vR+i}, v{vP+2*i}, v{vP+2*i+1}")
        I(f"ds_write_b128 v{vT+1}, {rr(vR+4*q,4)} offset:{16*q}")
    for q in range(4):
        I(f"ds_read_b128 {rr(vX+4*q,4)}, v{vQD} offset:{8*144*q}")
    for q in range(4):
        I(f"s_waitcnt lgkmcnt({3-q})")
        I(f"buffer_store_dwordx4 {rr(vX+4*q,4)}, v{vT}, s[{sOUT}:{sOUT+3}], 0 offen offset:{1024*q}{pol(K2_OP)}")
    I(f"s_add_u32 s10, s2, s7")
    I("s_cmp_lg_u32 s10, 0")
    I("s_cbranch_scc1 K2_NOEP")
    I(f"v_mov_b32 v{vP}, {WS_EPOCH}")
    I(f"v_mov_b32 v{vP+1}, s{sEPN}")
    I(f"buffer_store_dword v{vP+1}, v{vP}, s[{sWS}:{sWS+3}], 0 offen sc1")
    L("K2_NOEP")
    if TS == 2 or opt("tsn", 0): I(f"s_mov_b32 s89, s{sN}")
    if TS == 8:
        I(f"s_sub_u32 s94, {opt('spin', 200000)}, s{sSPIN}")
        I(f"s_mul_i32 s94, s94, 100")
        I(f"s_add_u32 s94, s94, s88")
    if TS: I(f"s_mov_b32 s{sW}, s7")
    if TS == 4:
        I("s_mov_b64 exec, -1")
        I(f"s_lshl_b32 s87, s2, 11")
        I(f"s_add_u32 s87, s87, {WS_TS + 0x180000}")
        I(f"s_lshl_b32 s86, s{sW}, 8")
        I("s_add_u32 s87, s87, s86")
        I(f"v_lshl_add_u32 v{vP}, v{lane}, 2, s87")
        I(f"global_store_dword v{vP}, v255, s[8:9]")
    stamp_out(8, 8, sW, 8, 0x100000, vP)
    L("K2_END")
    I("s_endpgm")
    def spin():
        if opt("slp", 1): I(f"s_sleep {opt('slp', 1)}")
        I(f"s_sub_u32 s{sSPIN}, s{sSPIN}, 1")
        I("s_cbranch_scc1 K2_END")
    for i in range(4):
        L(f"K2_RETRY{i}")
        spin()
        I("s_waitcnt vmcnt(0)")
        for j in range(i, 4):
            I(f"v_bitop3_b32 v{u(0)}, v{vC+4*j+3}, s{sTAG}, v{vTM} bitop3:0x28")
            for dp in ("quad_perm:[1,0,3,2]", "quad_perm:[2,3,0,1]", "row_half_mirror"):
                I("s_nop 1")
                I(f"v_or_b32_dpp v{u(0)}, v{u(0)}, v{u(0)} {dp} row_mask:0xf bank_mask:0xf")
            I(f"v_cmp_ne_u32 vcc, 0, v{u(0)}")
            I("s_and_b64 exec, exec, vcc")
            I(f"s_cbranch_execz K2_RT{i}{j}")
            cload(j)
            L(f"K2_RT{i}{j}")
            I("s_mov_b64 exec, -1")
        I("s_waitcnt vmcnt(0)")
        I(f"s_branch K2_CHK{i}")
    L("K1_EXT")
    I(f"s_mov_b32 s14, 0x0f0f0f0f")
    I(f"s_mov_b32 s15, s14")
    for i in range(4):
        I(f"ds_read_b32 v{oE+i}, v6 offset:{16*LROW*i + 32}")
        I(f"ds_read_b128 {rr(pD+8*i,4)}, v3 offset:{64*LROW*i + 128}")
    I("s_waitcnt lgkmcnt(0)")
    for i in range(4):
        I(f"v_cmp_le_u32 vcc, {33 << 24}, v{oH+i}")
        I(f"v_and_or_b32 v{pD+8*i+3}, v{oE+i}, v15, v{oH+i}")
        I("s_and_b64 exec, vcc, s[14:15]")
        I(f"s_cbranch_execz K1_EX{i}")
        I(f"buffer_store_dwordx4 {rr(pD+8*i,4)}, v4, s[{sST_}:{sST_+3}], s10 offen sc1")
        L(f"K1_EX{i}")
        I("s_mov_b64 exec, -1")
        I(f"s_add_u32 s10, s10, {64*RS}")
    I("s_branch K1_EXTR")
    L("K1_OVF")
    t = vAT
    for i in range(4):
        I(f"v_lshrrev_b32 v{t+i}, 16, v{oA+i}")
        I(f"v_lshrrev_b32 v{t+4}, 18, v{oA+i}")
        I(f"v_sub_u32 v{t+i}, v{t+i}, v{t+4}")
    I(f"v_add_u32 v{t+5}, v{t}, v{t+1}")
    I(f"v_add_u32 v{t+6}, v{t+5}, v{t+2}")
    I(f"v_add_u32 v{t+7}, v{t+6}, v{t+3}")
    I(f"v_mov_b32 v1, v{t+7}")
    wave_scan(1)
    I("s_nop 0")
    I(f"v_sub_u32 v{t+4}, v1, v{t+7}")
    I(f"v_add_u32 v{t+7}, v{t+4}, v{t+6}")
    I(f"v_add_u32 v{t+6}, v{t+4}, v{t+5}")
    I(f"v_add_u32 v{t+5}, v{t+4}, v{t}")
    for i in range(4):
        I(f"v_lshl_or_b32 v{t+4+i}, v{t+i}, 16, v{t+4+i}")
    I("s_waitcnt lgkmcnt(0)")
    I(f"ds_write_b128 v{l16}, {rr(t+4,4)} offset:{P_HDR}")
    for i in range(4): I(f"v_min_u32 v{oH+i}, 255, v{oH+i}")
    I(f"s_lshl_b32 s15, s{sB}, 2")
    I(f"s_add_u32 s15, s15, {WS_HDR}")
    srd(q0, 8, 9, NB*NCH*4, "s15")
    I(f"v_lshlrev_b32 v1, 12, v{lane}")
    for i in range(4):
        I(f"buffer_store_dword v{t+4+i}, v1, s[{q0}:{q0+3}], 0 offen offset:{1024*i} sc1")
    I(f"s_add_u32 s15, s13, {WS_RECS}")
    srd(q0, 8, 9, CH*4, "s15")
    I("s_lshr_b32 s15, s13, 2")
    I(f"s_add_u32 s15, s15, {WS_XB}")
    srd(q1, 8, 9, CH, "s15")
    I(f"v_cndmask_b32 v{pH+6}, v{pH}, v{pH+6}, s[{pm}:{pm+1}]")
    I(f"v_cndmask_b32 v{pK+6}, 0, v{pK+6}, s[{pm}:{pm+1}]")
    for i in range(7):
        I(f"ds_read_u16 v{pA+i}, v{pH+i} offset:{P_HDR - H0}")
    I("s_waitcnt lgkmcnt(0)")
    for i in range(7):
        I(f"v_lshrrev_b32 v1, 2, v{pK+i}")
        I(f"v_sub_u32 v1, v{pK+i}, v1")
        I(f"v_add_u32 v{pA+i}, v{pA+i}, v1")
        I(f"v_cmp_le_u32 vcc, {QCAP}, v{pK+i}")
        I(f"v_lshlrev_b32 v{pB+i}, 2, v{pA+i}")
        I("s_and_saveexec_b64 s[14:15], vcc")
        I(f"s_cbranch_execz K1_OV3_{i}")
        I(f"buffer_store_byte v{xb(i)}, v{pA+i}, s[{q1}:{q1+3}], 0 offen sc1")
        I(f"buffer_store_dword v{pS+i}, v{pB+i}, s[{q0}:{q0+3}], 0 offen sc1")
        L(f"K1_OV3_{i}")
        I("s_mov_b64 exec, -1")
    I("s_waitcnt vmcnt(0)")
    I("s_barrier")
    I("s_branch K1_OUT")
    xd, xa, xk, xrem, xeb, xad, xt = vACC + 44, vACC + 52, vACC + 58, vQ, vQ + 2, vX + 12, vX + 14
    L("K2_XT1")
    I(f"s_mov_b32 s{sXT}, 1")
    I(f"v_cmp_le_u32 vcc, {(QCAP + 1) << 24}, v{u(0)}")
    I(f"v_mov_b32 v{xt}, {FLAG + 4}")
    I("s_cbranch_vccz K2_XT1A")
    I(f"ds_write_b32 v{xt}, v{one}")
    L("K2_XT1A")
    I("s_mov_b32 s10, 0xf0f0f0f0")
    I("s_mov_b32 s11, s10")
    I(f"v_and_b32 v{xt}, 12, v{k4}")
    I(f"v_add_u32 v{xt}, 32, v{xt}")
    I(f"v_and_b32 v{xad}, 64, v{u(1)}")
    I(f"v_mul_u32_u24 v{xad}, 127, v{xad}")
    I(f"v_add_u32 v{xad}, v{xad}, v{u(1)}")
    I(f"v_add_u32 v{xad+1}, 16384, v{xad}")
    I(f"v_mov_b32 v{xt+1}, 0x7ffffff0")
    for g in range(2):
        I(f"v_cndmask_b32 v{xrem+g}, v{vC+8*g+3}, v{vC+8*g+7}, s[10:11]")
        I(f"v_cndmask_b32 v{xeb+g}, v{vEB+2*g}, v{vEB+2*g+1}, s[10:11]")
        I(f"v_cmp_le_u32 vcc, {33 << 24}, v{xrem+g}")
        remain(xrem + g, xrem + g, xt)
        I("s_nop 0")
        I(f"v_cndmask_b32 v{xad+g}, v{xt+1}, v{xad+g}, vcc")
    I(f"s_add_u32 s{sCEL}, s{sCEL}, {WS_EXT}")
    I(f"s_addc_u32 s{sCEL+1}, s{sCEL+1}, 0")
    def xloads2():
        for g in range(2):
            I(f"buffer_load_dwordx4 {rr(xd+4*g,4)}, v{xad+g}, s[{sCEL}:{sCEL+3}], 0 offen sc1")
    xloads2()
    I(f"v_med3_i32 v{xt}, v{xrem}, 0, 3")
    I(f"v_med3_i32 v{xt+1}, v{xrem+1}, 0, 3")
    I(f"v_add_u32 v{xt}, v{xt}, v{xt+1}")
    I(f"v_mov_b32 v{xt+1}, {FLAG}")
    I(f"v_cmpx_lt_u32 vcc, 0, v{xt}")
    I(f"ds_add_u32 v{xt+1}, v{xt}")
    I("s_mov_b64 exec, -1")
    I("s_branch K2_XT1R")
    def xvalid(tag):
        L(f"K2_XV{tag}")
        I("s_waitcnt vmcnt(0)")
        I("s_mov_b64 s[10:11], 0")
        for g in range(2):
            I(f"v_bitop3_b32 v{xt}, v{xd+4*g+3}, s{sTAG}, v{vTM} bitop3:0x28")
            I(f"v_cmp_ne_u32 s[{sTMP}:{sTMP+1}], 0, v{xt}")
            I(f"v_cmp_gt_u32 vcc, 0x7ffffff0, v{xad+g}")
            I(f"s_and_b64 vcc, vcc, s[{sTMP}:{sTMP+1}]")
            I("s_or_b64 s[10:11], s[10:11], vcc")
        I(f"s_cbranch_scc0 K2_XW{tag}")
        spin()
        xloads2()
        I(f"s_branch K2_XV{tag}")
        L(f"K2_XW{tag}")
    L("K2_XT2")
    xvalid("a")
    for g in range(2):
        for j in range(3):
            I(f"v_and_b32 v{xa+3*g+j}, 255, v{xd+4*g+j}")
            I(f"v_lshlrev_b32 v{xa+3*g+j}, 2, v{xa+3*g+j}")
            I(f"ds_read_b32 v{xa+3*g+j}, v{xa+3*g+j} offset:{MAP}")
        I(f"v_and_b32 v{xd+4*g+3}, 0x0f0f0f, v{xd+4*g+3}")
    I("s_waitcnt lgkmcnt(0)")
    for g in range(2):
        for j in range(3):
            i = 3*g + j
            I(f"v_perm_b32 v{xk+i}, v{xd+4*g+3}, v{xd+4*g+j}, s{sSEL+j}")
            I(f"v_lshl_add_u32 v{xk+i}, v{xk+i}, 5, v{xeb+g}")
            I(f"v_cmpx_lt_i32 vcc, {j}, v{xrem+g}")
            I(f"ds_add_rtn_u32 v{xa+i}, v{xa+i}, v{one} offset:{CNT}")
            I("s_mov_b64 exec, -1")
    I("s_waitcnt lgkmcnt(0)")
    for g in range(2):
        for j in range(3):
            i = 3*g + j
            I(f"v_cmpx_lt_i32 vcc, {j}, v{xrem+g}")
            I(f"ds_write2st64_b32 v{xa+i}, v{xd+4*g+j}, v{xk+i} offset0:0 offset1:{(R1-R0)//256}")
            I("s_mov_b64 exec, -1")
    I("s_branch K2_PADS0")
    L("K2_XT3")
    I(f"ds_read_b32 v{xt}, v{vMIN} offset:{CNT}")
    I("s_waitcnt lgkmcnt(0)")
    I(f"v_readfirstlane_b32 s{sEND}, v{xt}")
    I("s_nop 3")
    ntiles()
    I("s_branch K2_GO")
    L("K2_OVF")
    I(f"s_mov_b32 s{sCUR}, 1")
    I(f"s_mov_b32 s{sST}, 0")
    I(f"s_mov_b32 s{sSKIP}, 0")
    I(f"s_mov_b32 s{sEND}, s{sL}")
    pads(lane, vP, vP+1, vP+2)
    I(f"s_cmp_eq_u32 s{sXT}, 0")
    I("s_cbranch_scc1 K2_PADS0")
    xvalid("b")
    I("s_branch K2_PADS0")
    SB = 448
    t0, t1, t2, t3, t4 = vP, vP+1, vP+2, vP+3, vP+4
    L("K2_SLOW")
    I(f"s_add_u32 s{sR0}, s{sR0}, {SB}")
    I(f"s_cmp_lt_u32 s{sR0}, s{sCNT}")
    I("s_cbranch_scc1 K2_BATCH")
    L("K2_FIND")
    I(f"s_cmp_lg_u64 s[{sMSK}:{sMSK+1}], 0")
    I("s_cbranch_scc1 K2_GOT")
    I(f"s_add_u32 s{sCI}, s{sCI}, 1")
    I(f"s_cmp_ge_u32 s{sCI}, 4")
    I("s_cbranch_scc1 K2_EPI")
    I(f"s_mul_i32 s10, s{sB}, {RS}")
    I(f"s_lshl_b32 s11, s{sCI}, 13")
    I("s_add_u32 s10, s10, s11")
    I(f"v_lshlrev_b32 v{vT}, 7, v{lane}")
    I(f"buffer_load_ubyte v{vT}, v{vT}, s[{sWS}:{sWS+3}], s10 offen offset:15 sc1")
    I("s_waitcnt vmcnt(0)")
    I(f"v_cmp_lt_u32 s[{sMSK}:{sMSK+1}], s{sSKIP}, v{vT}")
    I("s_nop 3")
    I("s_branch K2_FIND")
    L("K2_GOT")
    I(f"s_ff1_i32_b64 s10, s[{sMSK}:{sMSK+1}]")
    I(f"s_bitset0_b64 s[{sMSK}:{sMSK+1}], s10")
    I(f"s_lshl_b32 s11, s{sCI}, 6")
    I(f"s_add_u32 s{sCUR}, s10, s11")
    I(f"s_mul_i32 s10, s{sB}, {RS}")
    I(f"s_lshl_b32 s11, s{sCUR}, 7")
    I("s_add_u32 s10, s10, s11")
    I(f"s_lshl_b32 s11, s{sB}, 8")
    I(f"s_add_u32 s11, s11, s{sCUR}")
    I(f"s_lshl_b32 s11, s11, 2")
    I(f"s_add_u32 s11, s11, {WS_HDR}")
    I(f"v_mov_b32 v{t0}, 0")
    I(f"buffer_load_ubyte v{t1}, v{t0}, s[{sWS}:{sWS+3}], s10 offen offset:15 sc1")
    I(f"buffer_load_dword v{t2}, v{t0}, s[{sWS}:{sWS+3}], s11 offen sc1")
    I("s_waitcnt vmcnt(0)")
    I(f"v_readfirstlane_b32 s10, v{t1}")
    I(f"v_readfirstlane_b32 s11, v{t2}")
    I("s_nop 3")
    I(f"s_and_b32 s{sST}, s11, 0xffff")
    I("s_lshr_b32 s11, s11, 16")
    I(f"s_lshr_b32 s{sCNT}, s10, 2")
    I(f"s_sub_u32 s{sCNT}, s10, s{sCNT}")
    I(f"s_cmp_gt_u32 s10, {QCAP}")
    I(f"s_cselect_b32 s{sCNT}, s11, s{sCNT}")
    I(f"s_lshr_b32 s10, s{sSKIP}, 2")
    I(f"s_sub_u32 s{sR0}, s{sSKIP}, s10")
    L("K2_BATCH")
    I("s_barrier")
    I(f"v_and_b32 v{t0}, 7, v{lane}")
    I(f"v_mul_u32_u24 v{t1}, {LCAP*4}, v{t0}")
    I(f"v_add_u32 v{t1}, {R0}, v{t1}")
    I(f"v_lshlrev_b32 v{t0}, 2, v{t0}")
    I(f"ds_write_b32 v{t0}, v{t1} offset:{CNT}")
    I(f"v_add_u32 v{t0}, s{sR0}, v{tid}")
    I(f"s_mul_i32 s10, s{sB}, {RS}")
    I(f"s_lshl_b32 s11, s{sCUR}, 7")
    I("s_add_u32 s10, s10, s11")
    I(f"v_mul_u32_u24 v{t2}, {KQ}, v{t0}")
    I(f"v_lshrrev_b32 v{t2}, 16, v{t2}")
    I(f"v_lshl_add_u32 v{t1}, v{t2}, 2, s10")
    I(f"v_add_u32 v{t3}, {WS_EXT - 128}, v{t1}")
    I(f"v_cmp_lt_u32 vcc, 31, v{t2}")
    I(f"s_mul_i32 s11, s{sCUR}, {CH}")
    I(f"s_add_u32 s11, s11, s{sST}")
    I(f"v_cndmask_b32 v{t1}, v{t1}, v{t3}, vcc")
    I(f"v_or_b32 v{t3}, 12, v{t1}")
    I(f"v_and_b32 v{t4}, 3, v{t2}")
    I(f"v_add_u32 v{t3}, v{t3}, v{t4}")
    I(f"v_cmp_le_u32 vcc, {QCAP}, v{t2}")
    I(f"v_add_u32 v{t2}, s11, v{t0}")
    I(f"v_add_u32 v{t4}, {WS_XB}, v{t2}")
    I(f"v_cndmask_b32 v{t3}, v{t3}, v{t4}, vcc")
    I(f"v_lshlrev_b32 v{t2}, 2, v{t2}")
    I(f"v_add_u32 v{t2}, {WS_RECS}, v{t2}")
    I(f"v_cndmask_b32 v{t1}, v{t1}, v{t2}, vcc")
    I(f"s_add_u32 s10, s{sR0}, {SB}")
    I(f"s_min_u32 s10, s10, s{sCNT}")
    I(f"v_cmp_gt_u32 vcc, s10, v{t0}")
    I(f"v_mov_b32 v{t2}, 0x7ffffff0")
    I(f"s_mul_i32 s{sTMP}, s{sCUR}, {CH*32}")
    I(f"v_cndmask_b32 v{t1}, v{t2}, v{t1}, vcc")
    I(f"v_cndmask_b32 v{t3}, v{t2}, v{t3}, vcc")
    I(f"buffer_load_dword v{t1}, v{t1}, s[{sWS}:{sWS+3}], 0 offen sc1")
    I(f"buffer_load_ubyte v{t3}, v{t3}, s[{sWS}:{sWS+3}], 0 offen sc1")
    I("s_waitcnt lgkmcnt(0)")
    I("s_barrier")
    I("s_and_saveexec_b64 s[10:11], vcc")
    I("s_waitcnt vmcnt(0)")
    I(f"v_and_b32 v{t0}, 255, v{t1}")
    I(f"v_lshlrev_b32 v{t0}, 2, v{t0}")
    I(f"ds_read_b32 v{t0}, v{t0} offset:{MAP}")
    I(f"v_bfe_u32 v{t2}, v{t1}, 8, 8")
    I(f"v_and_b32 v{t3}, 15, v{t3}")
    I(f"v_lshl_or_b32 v{t3}, v{t3}, 8, v{t2}")
    I(f"v_mov_b32 v{t2}, 4")
    I(f"v_lshl_add_u32 v{t3}, v{t3}, 5, s{sTMP}")
    I("s_waitcnt lgkmcnt(0)")
    I(f"ds_add_rtn_u32 v{t0}, v{t0}, v{t2} offset:{CNT}")
    I("s_waitcnt lgkmcnt(0)")
    I(f"ds_write2st64_b32 v{t0}, v{t1}, v{t3} offset0:0 offset1:{(R1-R0)//256}")
    I("s_mov_b64 exec, -1")
    I("s_waitcnt lgkmcnt(0)")
    I("s_barrier")
    I(f"s_lshl_b32 s10, s{sW}, 2")
    I(f"v_mov_b32 v{t0}, s10")
    I(f"ds_read_b32 v{t0}, v{t0} offset:{CNT}")
    for i in range(8): I(f"v_mov_b32 v{vT2+i}, 0")
    listaddr(lane, t1, t2)
    I("s_waitcnt lgkmcnt(0)")
    I(f"v_readfirstlane_b32 s{sEND}, v{t0}")
    I("s_nop 3")
    pads(lane, t0, t1, t2)
    L("K2_LAST")
    I("s_branch K2_GO")

def regs_of(tok):
    tok = tok.strip()
    m = re.fullmatch(r"v\[(\d+):(\d+)\]", tok)
    if m: return list(range(int(m.group(1)), int(m.group(2)) + 1))
    m = re.fullmatch(r"v(\d+)", tok)
    if m: return [int(m.group(1))]
    return []
def parse(ins):
    op, _, rest = ins.partition(" ")
    ops = [o.strip().split(" ")[0] for o in rest.split(",")] if rest else []
    if op.startswith("v_mfma"):
        return "mfma", regs_of(ops[0]), regs_of(ops[1]) + regs_of(ops[2]), regs_of(ops[3])
    if op.startswith("v_smfmac"):
        return "mfma", regs_of(ops[0]), regs_of(ops[1]) + regs_of(ops[2]) + regs_of(ops[3]), regs_of(ops[0])
    if op.startswith("v_"):
        k = "trans" if op in ("v_exp_f32", "v_rcp_f32") else "valu"
        return k, regs_of(ops[0]), sum((regs_of(o) for o in ops[1:]), []), []
    if op.startswith("ds_read"):
        return "ds", regs_of(ops[0]), regs_of(ops[1]), []
    if op.startswith("buffer_load"):
        return "vm", [], regs_of(ops[0]) + regs_of(ops[1]), []
    return "other", [], [], []
def check_body(body):
    seq = [b for b in body if not b.endswith(":")]
    for skip_dma in (False, True):
        s2 = []
        sk = False
        for b in body:
            if skip_dma and b.startswith("s_cbranch_scc0 K2_ND"):
                s2.append(b); sk = True; continue
            if b.startswith("K2_ND"): sk = False
            if b.endswith(":") or sk: continue
            s2.append(b)
        seq = s2 * 3
        last = {}
        lastc = {}
        pend = []
        for i, ins in enumerate(seq):
            k, d, s, c = parse(ins)
            m = re.search(r"lgkmcnt\((\d+)\)", ins)
            if m:
                n = int(m.group(1))
                while len(pend) > n: pend.pop(0)
            pr = set(sum(pend, []))
            for r in d + s + c:
                assert r not in pr or i < len(s2), f"pending LDS reg v{r} used by {ins} @{i}"
            for r in s + c + d:
                if r not in last: continue
                pk, pi = last[r]; dist = i - pi - 1
                if pk == "mfma":
                    if k == "mfma" and r in c and r not in s: need = 0
                    elif k == "mfma" and r in d and r not in s: need = 0
                    else: need = 12
                elif pk in ("valu", "trans") and k == "mfma" and r in s + c: need = 2
                elif pk == "trans" and k in ("valu", "mfma", "ds", "vm") and r in s: need = 1
                else: need = 0
                assert dist >= need, f"hazard {pk}->{k} v{r} dist {dist} need {need}: {ins} @{i}"
            if k in ("valu", "trans"):
                for r in d:
                    if r in lastc: assert i - lastc[r] - 1 >= 7, f"srcC WAR {ins}"
            for r in c: lastc[r] = i
            for r in d: last[r] = (k, i)
            if k == "ds":
                pend.append(d); assert len(pend) <= 15

hdr = open("/code/" + NAME + ".s.ref").read().split("\n")
for l in hdr:
    if l.startswith("; Override"): break
    out.append(l)
LEAK = opt("leak", "")
if LEAK:
    out.append(f"; @launch kernel={KN} grid=(256,1,1) block=(512,1,1) lds={K2_LDS}")
    out.append("; @launch kernel=spin_kernel grid=(1,1,1) block=(64,1,1) lds=0")
else: out.append(f"; @launch grid=(256,1,1) block=(512,1,1) lds={K2_LDS}")
emit('.amdgcn_target "amdgcn-amd-amdhsa--gfx950"\n.text')
k2()
KL = [(KN, 256, 102)]
if LEAK:
    kind, k = LEAK[:3], int(LEAK[3:])
    emit(".globl spin_kernel\n.p2align 8\n.type spin_kernel,@function\nspin_kernel:")
    I("s_memrealtime s[12:13]")
    I("s_cmp_lg_u32 s2, 0")
    I("s_cbranch_scc1 SP_END")
    I("s_load_dwordx2 s[4:5], s[0:1], 88")
    I("s_waitcnt lgkmcnt(0)")
    I(f"s_add_u32 s4, s4, {WS_TS + 0x100000}")
    I("s_addc_u32 s5, s5, 0")
    I("v_lshlrev_b32 v1, 5, v0")
    for j in range(31):
        I(f"global_load_dword v{2+j}, v1, s[4:5]")
        I(f"global_load_dword v{34+j}, v1, s[4:5] offset:{4*(k%8)}")
        I("v_add_u32 v1, 2048, v1")
    I("s_waitcnt vmcnt(0)")
    I("v_readfirstlane_b32 s6, v2")
    I("s_nop 1")
    I("s_sub_u32 s6, s6, 1000")
    for j in range(31):
        I(f"v_subrev_u32 v{2+j}, s6, v{2+j}")
        I(f"v_subrev_u32 v{34+j}, s6, v{34+j}")
    op = {"max": "max_u32", "min": "min_u32", "avg": "add_u32", "now": "max_u32"}[kind]
    for j in range(1, 31):
        I(f"v_min_u32 v2, v2, v{2+j}")
        I(f"v_{op} v34, v34, v{34+j}")
    I("s_nop 1")
    I("v_readlane_b32 s8, v2, 0")
    I("v_readlane_b32 s9, v34, 0")
    for l in range(1, 64):
        I(f"v_readlane_b32 s10, v2, {l}")
        I(f"v_readlane_b32 s11, v34, {l}")
        I("s_min_u32 s8, s8, s10")
        I(f"s_{op} s9, s9, s11")
    if kind == "avg":
        I(f"s_mul_hi_u32 s9, s9, {(1 << 32) // (31*64)}")
    if kind == "now":
        I("s_sub_u32 s8, s12, s6")
        I("s_sub_u32 s6, s8, s9")
    else: I("s_sub_u32 s6, s9, s8")
    I("s_lshl_b32 s6, s6, 2")
    I("s_min_u32 s6, s6, 30000")
    I("s_memrealtime s[8:9]")
    I("s_waitcnt lgkmcnt(0)")
    L("SP_L")
    I("s_memrealtime s[10:11]")
    I("s_waitcnt lgkmcnt(0)")
    I("s_sub_u32 s7, s10, s8")
    I("s_cmp_lt_u32 s7, s6")
    I("s_cbranch_scc1 SP_L")
    L("SP_END")
    I("s_endpgm")
    KL.append(("spin_kernel", 72, 16))
emit('.section .rodata,"a"')
for name, vg, sg in KL:
    emit(f""".p2align 6
.amdhsa_kernel {name}
  .amdhsa_next_free_vgpr {vg}
  .amdhsa_next_free_sgpr {sg}
  .amdhsa_accum_offset {vg}
  .amdhsa_group_segment_fixed_size 0
  .amdhsa_kernarg_size 96
  .amdhsa_user_sgpr_count 2
  .amdhsa_user_sgpr_kernarg_segment_ptr 1
  .amdhsa_system_sgpr_workgroup_id_x 1
.end_amdhsa_kernel""")
path = sys.argv[1] if len(sys.argv) > 1 else "/code/" + NAME + ".s"
open(path, "w").write("\n".join(out) + "\n")
print("wrote", path, len(out), "lines; lds", K2_LDS)
```

```python
import sys, re, math

NAME = "standalone__edge_featured_mpnn_gatedgcn__graph"
OPT = dict(kv.split("=") for kv in sys.argv[2:])
def opt(k, d):
    v = OPT.get(k)
    if v is None: return d
    return type(d)(v)

N, E = 50000, 800000
NCH, CH = 256, 3125
NB, BN = 256, 196
CELLB = 128
RS = 257 * CELLB
WS_EXT = NB * RS
QCAP = 48
KQ = 87382
LROW = 4 * (QCAP + 4)
WS_RECS = 0x1100000
WS_XB = 0x1500000
WS_HDR = 0x1600000
WS_EPOCH = 0x1700000
WS_USED = WS_EPOCH + 128
WI_U, WI_B, WI_V, WI_A, WI_C = 0, 8192, 16384, 24576, 32768
TMASK = 0x00f0f0f0
T0 = opt("t0", 12500)
LPH = (N - T0 + 2) // 3
SOFF = LPH - T0
PHM = (1 << 30) // LPH
assert 0 <= SOFF and N + SOFF <= 65536 and ((N - 1 + SOFF) * PHM) >> 30 <= 3
LOG2E = 1.4426950408889634
import struct
def f2u(f): return struct.unpack("<I", struct.pack("<f", f))[0]

out = []
def emit(s=""):
    for l in s.strip("\n").split("\n"):
        out.append(l.rstrip())
def I(s): out.append("    " + s)
def L(s): out.append(s + ":")
def C(s): out.append("    ; " + s)

def srd(d, lo, hi, size, add=None):
    if add is None:
        I(f"s_mov_b32 s{d}, s{lo}")
        I(f"s_mov_b32 s{d+1}, s{hi}")
    else:
        I(f"s_add_u32 s{d}, s{lo}, {add}")
        I(f"s_addc_u32 s{d+1}, s{hi}, 0")
    I(f"s_mov_b32 s{d+2}, {size}")
    I(f"s_mov_b32 s{d+3}, 0x20000")

def wave_scan(v, fill=None, half=False):
    def gap():
        if fill and len(fill) >= 2:
            I(fill.pop(0)); I(fill.pop(0))
        else: I("s_nop 1")
    for sh in (1, 2, 4, 8):
        gap()
        I(f"v_add_u32_dpp v{v}, v{v}, v{v} row_shr:{sh} row_mask:0xf bank_mask:0xf bound_ctrl:0")
    gap()
    I(f"v_add_u32_dpp v{v}, v{v}, v{v} row_bcast:15 row_mask:0xa bank_mask:0xf")
    if half: return
    gap()
    I(f"v_add_u32_dpp v{v}, v{v}, v{v} row_bcast:31 row_mask:0xc bank_mask:0xf")

TS = opt("ts", 0)
WS_TS = 0x3000000
SMAP = {1: {0: 0, 'd': 1, 'i': 2, 'w': 3, 2: 4, 5: 5, 6: 6, 7: 7},
        5: {0: 0, 'w': 1, 2: 2, 'a': 3, 'b': 4, 'c': 5, 3: 6, 7: 7},
        6: {0: 0, 'p': 1, 'q': 2, 'd': 3, 'i': 4, 'o': 5, 'k': 6, 7: 7},
        8: {0: 0, 'i': 1, 'w': 2, 1: 3, 2: 4, 3: 5, 7: 7},
        10: {0: 0, 'd': 1, 'i': 2, 'o': 3, 'A': 4, 'w': 5, 2: 6, 7: 7},
        9: {0: 0, 'q': 1, 'd': 2, 'i': 3, 'w': 4, 2: 5, 3: 6, 7: 7},
        7: {0: 0, 'k': 1, 'w': 2, 1: 3, 's': 4, 2: 5, 3: 6, 7: 7}}
def stamp(i):
    if TS in SMAP:
        i = SMAP[TS].get(i)
        if i is None: return
    elif isinstance(i, str): return
    if TS == 3:
        if i not in (0, 5, 6, 7): return
        I("s_memtime s[98:99]")
        I("s_waitcnt lgkmcnt(0)")
        I(f"s_mov_b32 s{88+{5:1,6:2,0:3,7:4}[i]}, s98")
    if TS:
        I("s_memrealtime s[98:99]" if TS != 2 else "s_memtime s[98:99]")
        I("s_waitcnt lgkmcnt(0)")
        I(f"s_mov_b32 s{88+i}, s98")
def stamp_out(n, wslo, swave, nw, off, v):
    if not TS: return
    I("s_waitcnt vmcnt(0)")
    stamp(7)
    I("s_mov_b64 exec, 1")
    I(f"s_mul_i32 s87, s2, {nw}")
    I(f"s_add_u32 s87, s87, s{swave}")
    I("s_lshl_b32 s87, s87, 5")
    I(f"s_add_u32 s87, s87, {WS_TS + off}")
    I(f"v_mov_b32 v{v}, s87")
    for i in range(n):
        I(f"v_mov_b32 v{v+1}, s{88+i}")
        I(f"global_store_dword v{v}, v{v+1}, s[{wslo}:{wslo+1}] offset:{4*i}")
K1_LD = opt("k1ld", "nt")
def pol(p): return (" " + p.replace("_", " ")) if p else ""

SM1 = opt("sm1", 1)
TAB, ZROW, CNT, FLAG, HIST, MAP = 0, 2048, 2112, 2176, 2304, 6400
T1B = 7424
LCAP = 672
XMAX = 64
LMAX = LCAP - 128
R0 = T1B + 2304
R1 = R0 + 8 * LCAP * 4
assert R1 % 256 == 0 and R0 % 256 == 0
WL = R0
WU = R1 + 8 * LCAP * 4
WA = WU + 8192
XO = WA + 8192
STG = XO + 8 * 4160
SLOT = 5184
WST = SLOT
IMG = 91136
assert IMG >= XO and STG + 8 * WST <= IMG + 320 * LROW
K2_LDS = IMG + 320 * LROW
assert K2_LDS <= 163840, K2_LDS

vWB, vWV, vWC, vAT = 0, 32, 64, 72
vACC = 88
vX, vE, vT1, vT2 = 152, 168, 172, 180
vP, vQ, vR = 188, 204, 220
vQD = 236
vR1 = 240
vCP, vCH, vAX, vAE, vC1, vC2, vARX, vART, vARP = 241, 242, 243, 244, 245, 246, 247, 248, 249
vL1 = 250
vARE = 251
vT = 252
DEN = lambda ft: vACC + 32 * ft
NUM = lambda ft: vACC + 32 * ft + 16
def rr(a, n): return f"v[{a}:{a+n-1}]"
def mfma(d, a, b, c=None):
    return f"v_mfma_f32_32x32x16_bf16 {rr(d,16)}, {rr(a,4)}, {rr(b,4)}, " + ("0" if c is None else rr(c, 16))

K2_XP = opt("k2x", "")
K2_EP = opt("k2e", "")
K2_CP = opt("k2c", "")
K2_OP = opt("k2o", "sc1")

sW, sB = 3, 12
sX, sEP, sWS, sOUT = 16, 20, 24, 28
sCEL, sWI = 32, 36
sM = 40
sT, sN, sSTG, s128, sL, sSKIP, sMORE = 72, 73, 74, 75, 76, 77, 78
sCI, sCUR, sR0, sCNT, sST, sMSK = 79, 80, 81, 82, 83, 84
sTMP = 86
sWIN = 96

def dma_tile(par):
    r = []
    for i in range(4):
        r.append(f"s_add_u32 m0, s{sSTG}, {par*SLOT + i*1040}")
        r.append(f"v_mad_u32_u16 v{vQD+i}, v{vQD+i}, s{s128}, v{vCP} op_sel:[1,0,0,0]")
        r.append(f"buffer_load_dwordx4 v{vQD+i}, s[{sX}:{sX+3}], 0 offen{pol(K2_XP)} lds")
    r.append(f"s_add_u32 m0, s{sSTG}, {par*SLOT + 4160}")
    r.append(f"v_add_u32 v{vR1}, v{vR1}, v{vCH}")
    r.append(f"buffer_load_dwordx4 v{vR1}, s[{sEP}:{sEP+3}], 0 offen{pol(K2_EP)} lds")
    return r

def valu_stream(G, H):
    s = []
    ex = [(f"v_exp_f32 v{G+i}, v{G+i}", 8) for i in range(16)]
    ad = [(f"v_add_f32 v{G+i}, 1.0, v{G+i}", 4) for i in range(16)]
    rc = [(f"v_rcp_f32 v{G+i}, v{G+i}", 8) for i in range(16)]
    mu = [(f"v_mul_f32 v{H+i}, v{G+i}, v{H+i}", 4) for i in range(16)]
    ce = [(f"v_cvt_pk_bf16_f32 v{G+i}, v{G+2*i}, v{G+2*i+1}", 4) for i in range(8)]
    cm = [(f"v_cvt_pk_bf16_f32 v{H+i}, v{H+2*i}, v{H+2*i+1}", 4) for i in range(8)]
    PK = opt("pk", 0)
    pa = [(f"v_pk_add_f32 v[{G+2*i}:{G+2*i+1}], v[{G+2*i}:{G+2*i+1}], 1.0 op_sel_hi:[1,0]", 4) for i in range(8)]
    pm = [(f"v_pk_mul_f32 v[{H+2*i}:{H+2*i+1}], v[{G+2*i}:{G+2*i+1}], v[{H+2*i}:{H+2*i+1}]", 4) for i in range(8)]
    if PK & 2:
        s += ex[:8] + ex[8:10] + pa[:4] + ex[10:] + rc[:2] + pa[4:] + rc[2:]
    elif PK & 4:
        s += ex + [("s_nop 0", 0)] + pa + rc
    else:
        for i in range(16 + 4):
            if i < 16: s.append(ex[i])
            if 0 <= i - 2 < 16: s.append(ad[i-2])
            if 0 <= i - 4 < 16: s.append(rc[i-4])
    s += pm if PK & 1 else mu
    return s

def interleave(valu, mf, extra, pos, spacing=opt('sp', 28)):
    res = []
    cum = 0; k = 0
    for ins, c in valu:
        while k < len(mf) and cum >= pos[k] * spacing:
            res.extend(extra.get(('b', k), []))
            res.append(mf[k])
            res.extend(extra.get(('a', k), []))
            k += 1
        res.append(ins); cum += c
    assert k == len(mf)
    return res

def g_mfmas(D, ft):
    m = [mfma(D, vE, vWC + 4*ft)]
    if SM1:
        m += [mfma(D, vX + 4*q, vWB + 16*ft + 4*q, D) for q in range(4)]
        m += [f"v_smfmac_f32_32x32x32_bf16 {rr(D,16)}, {rr(vT1,4)}, {rr(vAT+8*ft,8)}, v{vT1+4}"]
        return m
    m += [mfma(D, vT1 + 4*s, vAT + 8*ft + 4*s, D) for s in range(2)]
    m += [mfma(D, vX + 4*q, vWB + 16*ft + 4*q, D) for q in range(4)]
    return m
def h_mfmas(D, ft):
    return [mfma(D, vX + 4*q, vWV + 16*ft + 4*q, None if q == 0 else D) for q in range(4)]
vIX = vT1 + 5
def s_mfmas(acc, src):
    return [f"v_smfmac_f32_32x32x32_bf16 {rr(acc,16)}, {rr(vT2+4*s,4)}, {rr(src+8*s,8)}, v{vIX}" for s in range(2)]
def t1_reads():
    return [f"ds_read_b128 {rr(vT1,4)}, v{vL1} offset:{T1B}", f"ds_read_b32 v{vT1+4}, v{vL1} offset:{T1B+16}"]

ORD = opt("ord", "n0 n1 e h0 h1 a h2 h3 x0 x1 x2 x3 d0 d1").replace("_", " ").split()
POS = [float(x) / 28 for x in opt("pos", "0_27_54_81_108_135_162_189_216_243_270_297_328_356").split("_")]
def phase_ops(G, Gn, ft):
    n = s_mfmas(NUM(1-ft), vQ); d = s_mfmas(DEN(ft), G); h = h_mfmas(vQ, ft); g = g_mfmas(Gn, 1-ft)
    m = {"n0": n[0], "n1": n[1], "d0": d[0], "d1": d[1], "e": g[0], "a": g[5]}
    for q in range(4): m[f"h{q}"] = h[q]; m[f"x{q}"] = g[1+q]
    return [m[k] for k in ORD]
K = lambda k: ORD.index(k)
def phaseA(par):
    o = par * 128
    ex = {}
    ex[('a', K("n0"))] = [f"ds_read_u8 v{vQD+u}, v{vART} offset:{o + 16*(u>>1) + 4*(u&1)}" for u in range(4)] + \
                         [f"ds_read_u8 v{vL1}, v{vARP} offset:{o + 128}"]
    ex[('a', K("h1"))] = ["s_waitcnt lgkmcnt(0)"] + [f"v_lshl_add_u32 v{vQD+u}, v{vQD+u}, 6, v{vC2}" for u in range(4)] + \
                         [f"v_lshl_add_u32 v{vL1}, v{vL1}, 6, v{vC1}"]
    ex[('a', K("a"))] = [f"ds_read_b64_tr_b16 v[{vT2+2*u}:{vT2+2*u+1}], v{vQD+u}" for u in range(4)] + t1_reads()
    ex[('a', K("x0"))] = [f"ds_read_b128 {rr(vQD,4)}, v{vARX} offset:{o + 2*128}",
                          f"ds_read_b32 v{vR1}, v{vARE} offset:{o + 2*128}",
                          f"s_add_u32 s{sT}, s{sT}, 1"]
    ex[('b', K("d0"))] = ["s_waitcnt lgkmcnt(0)"]
    return interleave(valu_stream(vP, vQ), phase_ops(vP, vR, 0), ex, POS)

def phaseB(par):
    ex = {}
    ex[('a', K("n0"))] = ["s_waitcnt vmcnt(0)", f"ds_read_b128 {rr(vE,4)}, v{vAE}"]
    if TS == 4:
        ex[('a', K("n0"))] = ["s_memtime s[94:95]", "s_waitcnt vmcnt(0) lgkmcnt(0)", "s_memtime s[98:99]", "s_waitcnt lgkmcnt(0)", "s_sub_u32 s98, s98, s94",
                              "s_add_u32 m0, s72, 15", "s_nop 0", "v_writelane_b32 v255, s98, m0", f"ds_read_b128 {rr(vE,4)}, v{vAE}"]
    for q in range(4):
        ex[('a', K(f"h{q}"))] = [f"ds_read_b128 {rr(vX+4*q,4)}, v{vAX} offset:{16*q}"]
    ex[('b', K("e"))] = [f"s_waitcnt lgkmcnt({sum(K(f'h{q}') < K('e') for q in range(4))})"]
    for q in range(4): ex[('b', K(f"x{q}"))] = [f"s_waitcnt lgkmcnt({sum(K(f'h{p}') < K(f'x{q}') for p in range(q+1, 4))})"]
    dk = opt("dk", "x3")
    ex[('a', K(dk))] = ([] if dk == "x3" or K(dk) > K("x3") else ["s_waitcnt lgkmcnt(0)"]) + \
                       [f"s_cmp_lt_i32 s{sT}, s{sN1}", f"s_cbranch_scc0 K2_ND_{par}"] + dma_tile(0) + [f"K2_ND_{par}:"]
    return interleave(valu_stream(vR, vQ), phase_ops(vR, vP, 1), ex, POS)

sF0, sF1, sEND = 13, 14, 15
sXT = 97
sN1 = 38
sSB = 37
SBK = opt('sbk', 2)
sNUL = 39
sTH = 4
PRIO = opt("prio", 1)

def listaddr(lane, t0, t3):
    I(f"v_bfe_u32 v{t0}, v{lane}, 3, 2")
    I(f"v_lshl_add_u32 v{vARX}, v{t0}, 5, s{sL}")
    I(f"v_lshrrev_b32 v{t0}, 5, v{lane}")
    I(f"v_lshl_add_u32 v{vARX}, v{t0}, 4, v{vARX}")
    I(f"v_and_b32 v{t0}, 3, v{lane}")
    I(f"v_and_b32 v{t3}, 28, v{lane}")
    I(f"v_lshl_add_u32 v{t0}, v{t0}, 5, v{t3}")
    I(f"v_add_u32 v{vARP}, s{sL}, v{t0}")
    I(f"v_lshrrev_b32 v{t3}, 1, v{lane}")
    I(f"v_lshl_add_u32 v{vARE}, v{t3}, 2, s{sL}")
    I(f"v_add_u32 v{vARE}, {R1-R0}, v{vARE}")
    I(f"v_bfe_u32 v{t0}, v{lane}, 2, 2")
    I(f"v_lshl_add_u32 v{vART}, v{t0}, 5, s{sL}")
    I(f"v_lshrrev_b32 v{t0}, 5, v{lane}")
    I(f"v_lshl_add_u32 v{vART}, v{t0}, 3, v{vART}")

vOWN = vT + 1
def pads(lane, t0, t1, t2):
    W2 = f"offset0:0 offset1:{(R1-R0)//256}"
    I(f"v_mov_b32 v{t2}, 0xffff0000")
    I(f"v_or_b32 v{t1}, s{sNUL}, v{t2}")
    I(f"v_mov_b32 v{t2}, 0x7fffff00")
    I(f"v_lshl_add_u32 v{t0}, v{lane}, 2, s{sEND}")
    I(f"s_sub_u32 s{sN}, s{sEND}, s{sL}")
    I(f"ds_write2st64_b32 v{t0}, v{t1}, v{t2} {W2}")
    I(f"ds_write2st64_b32 v{t0}, v{t1}, v{t2} offset0:1 offset1:{(R1-R0)//256 + 1}")
    ntiles(False)
def ntiles(sub=True):
    if sub: I(f"s_sub_u32 s{sN}, s{sEND}, s{sL}")
    I(f"s_add_u32 s{sN}, s{sN}, 127")
    I(f"s_lshr_b32 s{sN}, s{sN}, 7")
    I(f"s_sub_i32 s{sN1}, s{sN}, 1")

KN = NAME + "_kernel"
P_HIST, P_HDR = MAP, WU
H0 = 2000
P_EIMG = IMG
P_CIMG = P_EIMG + 64 * LROW
assert P_CIMG + 256 * LROW <= K2_LDS
sTAG, sEPN, sSPIN = 36, 100, 101
def k2():
    emit(f"""
.globl {KN}
.p2align 8
.type {KN},@function
{KN}:""")
    I("s_cmp_ge_u32 s2, 256")
    I("s_cbranch_scc1 K2_END")
    stamp(0)
    KA = sM
    I(f"s_load_dwordx4 s[{KA+4}:{KA+7}], s[0:1], 16")
    I(f"s_load_dwordx2 s[8:9], s[0:1], 88")
    I(f"s_load_dwordx4 s[{KA}:{KA+3}], s[0:1], 0")
    I(f"s_load_dwordx8 s[{KA+8}:{KA+15}], s[0:1], 32")
    I(f"s_load_dwordx4 s[{KA+16}:{KA+19}], s[0:1], 64")
    tid, lane = 255, 254
    CPF = opt("cpf", 192)
    if CPF:
        I(f"s_getpc_b64 s[{sTMP}:{sTMP+1}]")
        L("K2_PC")
        I(f"v_lshlrev_b32 v{vT}, 7, v0")
        I(f"v_min_u32 v{vT}, K2_LAST-K2_PC, v{vT}")
        I(f"v_cmp_gt_u32 vcc, {CPF}, v0")
        I("s_cbranch_vccz K2_NOCPF")
        I(f"global_load_dword v{vT+1}, v{vT}, s[{sTMP}:{sTMP+1}]")
        L("K2_NOCPF")
    vC = vACC
    vA = vACC + 16
    hh = vACC + 28
    vRK = vR
    vMIN = vQ + 8
    vTM = vQ + 10
    u = lambda i: vP + i
    k4, ecb, hda, one, l16 = vE, vE + 1, vE + 2, vE + 3, vT1
    pD, pS, pH, pK, pA, pB, pI, pW = 8, 16, 24, 32, 40, 48, 56, 64
    I(f"v_mov_b32 v{tid}, v0")
    I(f"v_lshrrev_b32 v{u(0)}, 6, v0")
    I(f"v_and_b32 v{lane}, 63, v0")
    I(f"v_readfirstlane_b32 s7, v{u(0)}")
    I("s_and_b32 s10, s2, 7")
    I("s_lshr_b32 s11, s2, 3")
    I("s_lshl_b32 s10, s10, 5")
    I(f"s_add_u32 s{sB}, s10, s11")
    I(f"s_mul_i32 s13, s{sB}, {CH*4}")
    I(f"v_lshlrev_b32 v{u(1)}, 4, v0")
    I(f"v_lshlrev_b32 v1, 3, v0")
    I(f"v_lshlrev_b32 v2, 2, v0")
    I(f"v_mov_b32 v3, 0")
    I(f"v_and_b32 v4, 0x3fc, v2")
    I(f"ds_write_b32 v4, v3 offset:{P_HIST}")
    ASYM = opt("asym", 10)
    I(f"s_and_b32 s10, s7, 3")
    I(f"s_lshr_b32 s{sW}, s7, 2")
    I(f"s_lshl1_add_u32 s{sW}, s10, s{sW}")
    I(f"s_xor_b32 s{sW}, s{sW}, 1")
    I(f"s_movk_i32 s14, 8192")
    I(f"s_movk_i32 s15, 12288")
    I("s_waitcnt lgkmcnt(0)")
    stamp('p')
    vq = []
    def younger(tag): return len(vq) - 1 - max(i for i, t in enumerate(vq) if t == tag)
    q0, q1 = 64, 68
    srd(q0, KA+6, KA+7, CH*4, "s13")
    srd(q1, KA+4, KA+5, CH*4, "s13")
    for r_, q_ in ((pD, q0), (pS, q1)):
        I(f"buffer_load_dwordx4 {rr(r_,4)}, v{u(1)}, s[{q_}:{q_+3}], 0 offen{pol(K1_LD)}")
        I(f"buffer_load_dwordx2 {rr(r_+4,2)}, v1, s[{q_}:{q_+3}], s14 offen{pol(K1_LD)}")
        I(f"buffer_load_dword v{r_+6}, v2, s[{q_}:{q_+3}], s15 offen{pol(K1_LD)}")
        vq += ["D" if r_ == pD else "S"] * 3
        if r_ == pD and opt("db", 1): I("s_barrier")
    I(f"s_add_u32 s10, s8, {WS_EPOCH}")
    I("s_addc_u32 s11, s9, 0")
    I(f"s_load_dword s{sEPN}, s[10:11], 0")
    if not opt("db", 1): I("s_barrier")
    I(f"v_lshrrev_b32 v1, 3, v0")
    I(f"v_lshlrev_b32 v{hda}, 2, v1")
    I(f"v_and_b32 v{u(9)}, 7, v0")
    I(f"v_and_b32 v5, 16, v0")
    I(f"v_lshlrev_b32 v5, 1, v5")
    I(f"v_xor_b32 v5, v5, v{u(1)}")
    I(f"v_lshlrev_b32 v{l16}, 4, v{lane}")
    I(f"v_and_b32 v{vCP}, 16, v{lane}")
    I(f"v_lshlrev_b32 v{vCP}, 2, v{vCP}")
    vXS, vXA = vR + 14, vR + 15
    I(f"v_xor_b32 v{vXS}, v{vCP}, v{l16}")
    I(f"v_and_b32 v{vCP}, 0x70, v{vXS}")
    if SOFF: I(f"v_subrev_u32 v{vCP}, {SOFF * 128}, v{vCP}")
    srd(sX, KA, KA+1, N*128)
    WLPOS = len(out)
    mark = len(out)
    OFF = opt("off", 20)
    lo0, hi0, lo1, hi1 = sT, sN, sMSK, sMSK + 1
    I(f"s_lshr_b32 s10, s{sW}, 1")
    I(f"s_mul_i32 s10, s10, 49")
    I(f"s_bitcmp1_b32 s{sW}, 0")
    I(f"s_cselect_b32 s{lo0}, {OFF}, -4")
    I(f"s_cselect_b32 s{hi0}, 28, {OFF - 17}")
    I(f"s_cselect_b32 s{lo1}, 45, {OFF}")
    I(f"s_add_i32 s{lo0}, s{lo0}, s10")
    I(f"s_add_i32 s{hi0}, s{hi0}, s10")
    I(f"s_add_i32 s{lo1}, s{lo1}, s10")
    I(f"s_add_i32 s{hi1}, s{lo0}, 32")
    I(f"s_max_i32 s{sWIN}, s{lo0}, 0")
    I(f"s_cmp_eq_u32 s{sW}, 7")
    I(f"s_cselect_b32 s{lo1}, {BN}, s{lo1}")
    I(f"s_cselect_b32 s{hi1}, {BN}, s{hi1}")
    I(f"v_lshrrev_b32 v{u(5)}, 5, v{lane}")
    def wloads():
        srd(q0, KA+10, KA+11, 8192)
        I(f"buffer_load_dwordx4 {rr(pW,4)}, v5, s[{q0}:{q0+3}], 0 offen"); vq.append("B")
        srd(q1, KA+12, KA+13, 2048)
        I(f"buffer_load_dwordx4 {rr(pW+4,4)}, v5, s[{q1}:{q1+3}], 0 offen"); vq.append("B")
        I(f"s_lshl_b32 s10, s7, 10")
        for kp, off in ((KA+8, WI_A), (KA+16, WI_V), (KA+14, WI_U)):
            I(f"s_mov_b32 s{q0}, s{kp}")
            I(f"s_mov_b32 s{q0+1}, s{kp+1}")
            I(f"s_add_u32 m0, s10, {WL + off}")
            I("s_nop 0")
            I(f"buffer_load_dwordx4 v5, s[{q0}:{q0+3}], 0 offen lds"); vq.append("W")
    def xloads():
        I(f"s_mul_i32 s10, s{sB}, {BN}")
        I(f"s_add_u32 s10, s10, s{sWIN}")
        I(f"s_lshl_b32 s10, s10, 7")
        I(f"s_mul_i32 s11, s7, 4160")
        for i in range(4):
            I(f"s_add_u32 m0, s11, {XO + i*1040}")
            I(f"s_add_u32 s{sTMP}, s10, {i*1024}")
            I(f"buffer_load_dwordx4 v{vXS}, s[{sX}:{sX+3}], s{sTMP} offen{pol(opt('xo', ''))} lds")
    srd(sEP, KA+2, KA+3, E*32)
    srd(sOUT, KA+18, KA+19, N*128)
    srd(sWS, 8, 9, WS_USED)
    I(f"v_lshrrev_b32 v{u(6)}, 5, v{tid}")
    I(f"v_and_b32 v{u(7)}, 15, v{tid}")
    I(f"v_cmp_eq_u32 vcc, v{u(6)}, v{u(7)}")
    I(f"v_and_b32 v{u(6)}, 16, v{tid}")
    I(f"v_mov_b32 v{u(7)}, 0x3f80")
    I(f"v_lshlrev_b32 v{u(7)}, v{u(6)}, v{u(7)}")
    I(f"v_cndmask_b32 v{u(7)}, 0, v{u(7)}, vcc")
    I(f"v_lshlrev_b32 v{u(6)}, 2, v{tid}")
    I(f"v_mov_b32 v{u(8)}, 0")
    I(f"ds_write_b32 v{u(6)}, v{u(7)}")
    if SM1:
        I(f"v_bfe_u32 v{u(7)}, v{tid}, 3, 1")
        I(f"v_and_b32 v{u(13)}, 7, v{tid}")
        I(f"v_lshl_add_u32 v{u(7)}, v{u(7)}, 2, v{u(13)}")
        I(f"v_lshrrev_b32 v{u(12)}, 6, v{tid}")
        I(f"v_cmp_eq_u32 vcc, v{u(7)}, v{u(12)}")
        I(f"v_bfe_u32 v{u(12)}, v{tid}, 4, 2")
        I(f"v_mov_b32 v{u(7)}, 0x3f80")
        I(f"v_cndmask_b32 v{u(7)}, 0, v{u(7)}, vcc")
        I(f"v_cmp_lt_u32 vcc, 3, v{u(13)}")
        I(f"v_mul_u32_u24 v{u(12)}, 0x5555, v{u(12)}")
        I(f"v_and_b32 v{u(13)}, 60, v{u(6)}")
        I(f"v_cndmask_b32 v{u(7)}, v{u(7)}, v{u(12)}, vcc")
        I(f"ds_write_b32 v{u(6)}, v{u(7)} offset:{T1B}")
        I(f"ds_write_b32 v{u(13)}, v{u(8)} offset:{T1B + 2048}")
    I(f"ds_write_b32 v{u(6)}, v{u(8)} offset:{ZROW}")
    I(f"ds_write2st64_b32 v{u(6)}, v{u(8)}, v{u(8)} offset0:{HIST//256} offset1:{HIST//256 + 8}")
    I(f"s_movk_i32 s{s128}, 128")
    I(f"s_mul_i32 s{sSTG}, s{sW}, {WST}")
    I(f"s_add_u32 s{sSTG}, s{sSTG}, {STG}")
    I(f"s_movk_i32 s{sSKIP}, {QCAP}")
    I(f"s_add_u32 s{sNUL}, s{sWIN}, 32")
    I(f"s_lshl_b32 s11, s{sWIN}, 6")
    I(f"s_mov_b32 s{sXT}, 0")
    I(f"v_bfe_u32 v{u(6)}, v{lane}, 4, 1")
    I(f"v_and_b32 v{vCH}, 1, v{lane}")
    I(f"v_lshlrev_b32 v{vCH}, 4, v{vCH}")
    I(f"v_lshlrev_b32 v{vC1}, 5, v{u(5)}")
    I(f"v_subrev_u32 v{vC1}, s11, v{vC1}")
    I(f"v_and_b32 v{u(7)}, 3, v{lane}")
    I(f"v_lshlrev_b32 v{u(7)}, 3, v{u(7)}")
    I(f"v_lshl_add_u32 v{vC2}, v{u(6)}, 5, v{u(7)}")
    I(f"v_subrev_u32 v{vC2}, s11, v{vC2}")
    I(f"v_bfe_u32 v{u(8)}, v{lane}, 2, 2")
    I(f"v_mul_u32_u24 v{u(8)}, 1040, v{u(8)}")
    I(f"v_lshl_add_u32 v{u(8)}, v{u(6)}, 9, v{u(8)}")
    I(f"v_lshl_add_u32 v{u(8)}, v{u(7)}, 4, v{u(8)}")
    I(f"v_bfe_u32 v{u(6)}, v{lane}, 1, 1")
    I(f"v_xor_b32 v{u(6)}, v{u(6)}, v{u(5)}")
    I(f"v_lshl_add_u32 v{u(8)}, v{u(6)}, 6, v{u(8)}")
    I(f"v_add_u32 v{vAX}, s{sSTG}, v{u(8)}")
    I(f"v_bfe_u32 v{u(6)}, v{lane}, 2, 3")
    I(f"v_add_u32 v{u(6)}, v{u(6)}, v{u(7)}")
    I(f"v_lshl_add_u32 v{u(6)}, v{u(6)}, 1, v{u(5)}")
    I(f"v_lshl_add_u32 v{vAE}, v{u(6)}, 4, s{sSTG}")
    I(f"v_add_u32 v{vAE}, 4160, v{vAE}")
    I(f"s_mul_i32 s{sL}, s{sW}, {LCAP*4}")
    I(f"s_add_u32 s{sL}, s{sL}, {R0}")
    listaddr(lane, u(6), u(7))
    def ownaddr(d, lab, t):
        I(f"v_and_b32 v{d}, 31, v{lab}")
        I(f"v_bfe_u32 v{t}, v{d}, 1, 1")
        I(f"v_xor_b32 v{t}, v{t}, v{u(5)}")
        I(f"v_lshlrev_b32 v{t}, 6, v{t}")
        I(f"v_lshl_add_u32 v{t}, v{d}, 7, v{t}")
        I(f"v_lshrrev_b32 v{d}, 3, v{d}")
        I(f"v_lshl_add_u32 v{d}, v{d}, 4, v{t}")
        I(f"v_add_u32 v{d}, s10, v{d}")
    I(f"s_mul_i32 s10, s7, 4160")
    I(f"s_add_u32 s10, s10, {XO}")
    ownaddr(u(14), lane, u(6))
    I(f"v_lshrrev_b32 v{u(6)}, 1, v{lane}")
    I(f"v_xor_b32 v{u(6)}, v{u(6)}, v{lane}")
    I(f"v_and_b32 v{u(6)}, 4, v{u(6)}")
    I(f"v_mul_u32_u24 v{u(6)}, 3, v{u(6)}")
    I(f"v_xor_b32 v{u(6)}, v{u(6)}, v{lane}")
    ownaddr(vXA, u(6), u(7))
    I(f"v_mov_b32 v{vIX}, 0xdddd")
    I(f"v_lshlrev_b32 v{k4}, 2, v{u(9)}")
    vEB = vQ + 4
    I(f"v_mul_u32_u24 v{vEB}, {CH*8}, v{hda}")
    for i in range(1, 4):
        I(f"v_add_u32 v{vEB+i}, {64*i*CH*32}, v{vEB}")
    I(f"v_mov_b32 v{one}, 4")
    I(f"v_mov_b32 v{ecb}, 1")
    I(f"v_and_b32 v{u(11)}, 31, v{lane}")
    I(f"v_add_u32 v{u(11)}, s{sWIN}, v{u(11)}")
    I(f"v_lshlrev_b32 v{u(12)}, 4, v{u(11)}")
    I(f"v_lshl_add_u32 v{u(12)}, v{u(5)}, 3, v{u(12)}")
    for i in range(4): I(f"v_mov_b64 v[{vT2+2*i}:{vT2+2*i+1}], 0")
    I(f"s_lshl_b32 s{sEND}, s{sW}, 2")
    I(f"v_mov_b32 v{vMIN}, s{sEND}")
    I(f"v_lshlrev_b32 v{vMIN+1}, 2, v{u(11)}")
    static = out[mark:]; del out[mark:]
    WLP = opt("wl", 2)
    if WLP == 0: wloads()
    XP_ = opt("xp", 6)
    SP = opt("sp0", 0)
    SPN = opt("spn", 1000)
    if SP:
        out.extend(static[:SPN]); static = static[SPN:]
    c1, c2, c3 = 60, 61, 62
    pm = 78
    pX = 23
    xb = lambda i: (23, 23, 23, 23, 31, 31, 39)[i]
    I(f"s_mov_b32 s{c1}, 85599")
    I(f"s_mov_b32 s{c2}, {-BN & 0xffffffff}")
    I(f"s_movk_i32 s{c3}, {H0}")
    I(f"v_mov_b32 v7, {KQ}")
    I(f"s_mov_b32 s10, {SOFF << 16}")
    I(f"v_lshl_add_u32 v{pI}, v{lane}, 10, s10")
    for i in range(1, 4): I(f"v_add_u32 v{pI+i}, {i << 8}, v{pI}")
    I(f"v_and_b32 v{pI+4}, 127, v{tid}")
    I(f"v_lshl_add_u32 v{pI+4}, v{pI+4}, 9, s10")
    I(f"v_add_u32 v{pI+5}, 256, v{pI+4}")
    I(f"v_lshl_add_u32 v{pI+6}, v{lane}, 8, s10")
    I(f"v_lshrrev_b32 v23, 6, v{tid}")
    I(f"v_lshrrev_b32 v31, 7, v{tid}")
    I(f"v_add_u32 v31, 8, v31")
    I(f"v_mov_b32 v39, 12")
    I(f"v_cmp_gt_u32 s[{pm}:{pm+1}], {CH - 3072}, v{tid}")
    I(f"s_mov_b32 s11, {RS}")
    I(f"v_lshlrev_b32 v3, 4, v{u(9)}")
    I(f"v_mad_u32_u24 v4, v1, s11, v3")
    I(f"v_mul_u32_u24 v6, {LROW // 4}, v1")
    I(f"v_lshl_add_u32 v6, v{u(9)}, 2, v6")
    I(f"v_lshlrev_b32 v3, 2, v6")
    I(f"v_add_u32 v3, {P_CIMG}, v3")
    I(f"v_add_u32 v6, {P_EIMG}, v6")
    I(f"v_mov_b32 v{vTM}, {TMASK:#x}")
    I(f"v_mov_b32 v15, 0x0f0f0f")
    X0 = (LROW // 16) * H0
    sSO = sCI
    def cload(i):
        so = "0" if i == 0 else f"s{sSO+i-1}"
        I(f"buffer_load_dwordx4 {rr(vC+4*i,4)}, v{u(1)}, s[{sCEL}:{sCEL+3}], {so} offen sc1")
    def cloads():
        if opt("dly", 0): I(f"s_sleep {opt('dly', 0)}")
        stamp('w')
        for i in range(4): cload(i); vq.append("C")
    def prod(idx):
        n = len(idx)
        for i in idx: I(f"v_mul_u32_u24 v{pB+i}, s{c1}, v{pD+i}")
        for i in idx: I(f"v_lshrrev_b32 v{pB+i}, 24, v{pB+i}")
        for i in idx:
            I(f"v_lshl_add_u32 v{pH+i}, v{pB+i}, 2, s{c3}")
            I(f"ds_add_rtn_u32 v{pK+i}, v{pH+i}, v7 offset:{P_HIST - H0}")
        for i in idx:
            I(f"v_mad_i32_i24 v{pD+i}, v{pB+i}, s{c2}, v{pD+i}")
            I(f"v_or_b32 v{pD+i}, v{pD+i}, v{pI+i}")
        for j, i in enumerate(idx):
            I(f"s_waitcnt lgkmcnt({n - 1})")
            I(f"v_lshrrev_b32 v{pK+i}, 16, v{pK+i}")
            I(f"v_min_u32 v{pA+i}, {QCAP}, v{pK+i}")
            I(f"v_mad_u32_u24 v{pA+i}, v{pH+i}, {LROW // 16}, v{pA+i}")
            I(f"v_lshlrev_b32 v{pB+i}, 2, v{pA+i}")
            I(f"ds_write_b8 v{pA+i}, v{xb(i)} offset:{P_EIMG - X0}")
    def prod2(idx):
        for i in idx:
            I(f"v_lshl_add_u32 v{pS+i}, v{pS+i}, 16, v{pD+i}")
            I(f"ds_write_b32 v{pB+i}, v{pS+i} offset:{P_CIMG - 4*X0}")
    if WLP == 1: wloads()
    stamp('q')
    I(f"s_waitcnt vmcnt({younger('D')})")
    stamp('d')
    prod(range(6))
    I(f"s_cmp_lg_u32 s7, 0")
    I("s_cbranch_scc1 K1_NO7")
    I(f"s_mov_b64 exec, s[{pm}:{pm+1}]")
    I("s_waitcnt lgkmcnt(0)")
    prod([6])
    I(f"s_waitcnt vmcnt({younger('S')})")
    prod2([6])
    I("s_mov_b64 exec, -1")
    L("K1_NO7")
    if WLP == 2: wloads()
    I(f"s_waitcnt vmcnt({younger('S')})")
    prod2(range(6))
    I(f"s_lshl_b32 s15, s{sB}, 7")
    sST_ = sCEL
    srd(sST_, 8, 9, 511*RS + CELLB, "s15")
    I("s_waitcnt lgkmcnt(0)")
    I(f"s_add_u32 s{sEPN}, s{sEPN}, 1")
    I(f"s_and_b32 s10, s{sEPN}, 15")
    I(f"s_and_b32 s11, s{sEPN}, 0xf0")
    I(f"s_mul_i32 s{sTAG}, s10, 0x1010")
    I(f"s_lshl_b32 s11, s11, 16")
    I(f"s_xor_b32 s{sTAG}, s{sTAG}, 0xf000")
    I(f"s_or_b32 s{sTAG}, s{sTAG}, s11")
    I(f"s_mov_b32 s{sSPIN}, {opt('spin', 200000)}")
    I("s_barrier")
    stamp('i')
    oC, oE, oH, oA = vACC, vACC + 16, vACC + 20, vACC + 24
    I(f"ds_read_b128 {rr(oA,4)}, v{l16} offset:{P_HIST}")
    for i in range(4):
        I(f"ds_read_u16 v{oH+i}, v{hda} offset:{P_HIST + 256*i + 2}")
        I(f"ds_read_b32 v{oE+i}, v6 offset:{16*LROW*i}")
        I(f"ds_read_b128 {rr(oC+4*i,4)}, v3 offset:{64*LROW*i}")
    I("s_waitcnt lgkmcnt(12)")
    I(f"v_max3_u32 v1, v{oA}, v{oA+1}, v{oA+2}")
    I(f"v_max_u32 v1, v1, v{oA+3}")
    I(f"v_cmp_le_u32 vcc, {(QCAP + 1) << 16}, v1")
    I("s_mov_b32 s10, 0")
    I("s_cbranch_vccnz K1_OVF")
    L("K1_OUT")
    for i in range(4):
        r = oC + 4*i
        I(f"s_waitcnt lgkmcnt({9 - 3*i})")
        I(f"v_lshl_or_b32 v{oH+i}, v{oH+i}, 24, s{sTAG}")
        I(f"v_and_or_b32 v{r+3}, v{oE+i}, v15, v{oH+i}")
        I(f"buffer_store_dwordx4 {rr(r,4)}, v4, s[{sST_}:{sST_+3}], s10 offen sc1"); vq.append("O")
        I(f"s_add_u32 s10, s10, {64*RS}")
    I(f"v_max3_u32 v1, v{oH}, v{oH+1}, v{oH+2}")
    I(f"v_max_u32 v1, v1, v{oH+3}")
    I(f"v_cmp_le_u32 vcc, {33 << 24}, v1")
    I("s_cbranch_vccnz K1_EXT")
    L("K1_EXTR")
    stamp('o')
    if TS == 10:
        I("s_waitcnt vmcnt(0)")
        stamp('A')
    if opt("bar", 0): I("s_barrier")
    out.extend(static)
    I(f"s_mul_i32 s10, s{sB}, {RS}")
    srd(sCEL, 8, 9, NCH*CELLB, "s10")
    for k in (1, 2, 3):
        I(f"s_movk_i32 s{sSO+k-1}, {64*CELLB*k}")
    CP = opt("cp", 2)
    if CP == 0: cloads()
    I(f"s_mov_b32 s10, {f2u(-LOG2E):#x}")
    I(f"s_waitcnt vmcnt({younger('B')})")
    for i in range(8):
        I(f"v_lshlrev_b32 v{vAT+2*i}, 16, v{pW+i}")
        I(f"v_and_b32 v{vAT+2*i+1}, 0xffff0000, v{pW+i}")
    for i in range(16): I(f"v_mul_f32 v{vAT+i}, s10, v{vAT+i}")
    for i in range(8): I(f"v_cvt_pk_bf16_f32 v{pW+i}, v{vAT+2*i}, v{vAT+2*i+1}")
    I(f"ds_write_b128 v{u(1)}, {rr(pW,4)} offset:{WL + WI_B}")
    I(f"s_cmp_ge_u32 s7, 2")
    I("s_cbranch_scc1 K1_NOWC")
    I(f"ds_write_b128 v{u(1)}, {rr(pW+4,4)} offset:{WL + WI_C}")
    L("K1_NOWC")
    w0, w1, wc0, wc1, xa_ = vT1 + 1, vT1 + 2, vT1 + 3, vT1 + 4, vT
    I(f"v_bfe_u32 v{w0}, v{lane}, 2, 2")
    I(f"v_lshlrev_b32 v{w0}, 7, v{w0}")
    I(f"v_lshl_add_u32 v{w0}, v{vCH}, 2, v{w0}")
    I(f"v_and_b32 v{w1}, 16, v{lane}")
    I(f"v_and_b32 v{wc0}, 2, v{lane}")
    I(f"v_lshl_add_u32 v{w1}, v{wc0}, 2, v{w1}")
    I(f"v_and_b32 v{wc0}, 8, v{lane}")
    I(f"v_lshl_add_u32 v{w1}, v{wc0}, 2, v{w1}")
    I(f"v_add_u32 v{w0}, v{w0}, v{w1}")
    I(f"v_lshl_add_u32 v{wc0}, v{u(5)}, 10, v{w0}")
    I(f"v_lshl_add_u32 v{w0}, v{u(5)}, 12, v{w0}")
    I(f"v_xor_b32 v{w1}, 32, v{w0}")
    I(f"v_xor_b32 v{wc1}, 32, v{wc0}")
    def wtr(reg, img, ft, s_, c=False):
        ad = (wc0, wc1)[ft] if c else (w0, w1)[ft]
        return [f"ds_read_b64_tr_b16 {rr(reg+2*h_,2)}, v{ad} offset:{WL + img + 1024*s_ + 512*h_}" for h_ in range(2)]
    I(f"s_lshl_b32 s10, s7, 10")
    I(f"s_and_b32 s11, s7, 4")
    I(f"s_mul_i32 s11, s11, {8 - 1024}")
    I(f"s_add_u32 s11, s11, s10")
    I(f"v_xor_b32 v{xa_}, s11, v{w0}")
    I(f"s_waitcnt vmcnt({0 if opt('ack', 1) else younger('W')}) lgkmcnt(0)")
    I("s_barrier")
    if CP == 1: cloads()
    for h_ in range(2):
        I(f"ds_read_b64_tr_b16 {rr(vAT+2*h_,2)}, v{xa_} offset:{WL + WI_U + 512*h_}")
        I(f"ds_read_b64_tr_b16 {rr(vAT+4+2*h_,2)}, v{xa_} offset:{WL + WI_A + 512*h_}")
    I(f"v_add_u32 v{xa_}, s10, v{l16}")
    rest = []
    for reg, img in ((vWB, WI_B), (vWC, WI_C), (vWV, WI_V)):
        for ft in range(2):
            if img == WI_C: rest += wtr(vWC + 4*ft, WI_C, ft, 0, True)
            else:
                for s_ in range(4): rest += wtr(reg + 16*ft + 4*s_, img, ft, s_)
    for x_ in rest[:8]: I(x_)
    rest = rest[8:]
    I("s_waitcnt lgkmcnt(8)")
    I(f"ds_write_b128 v{xa_}, {rr(vAT,4)} offset:{WU}")
    I(f"ds_write_b128 v{xa_}, {rr(vAT+4,4)} offset:{WA}")
    while rest:
        I("s_waitcnt lgkmcnt(8)")
        for x_ in rest[:6]: I(x_)
        rest = rest[6:]
    stamp('k')
    sPH = 5
    I(f"s_mov_b32 s{sPH}, {PHM}")
    if CP == 2: cloads()
    SW1 = "dst_sel:DWORD dst_unused:UNUSED_PAD src0_sel:DWORD src1_sel:WORD_1"
    def haddr(d, r):
        return [f"v_mul_u32_u24_sdwa v{d}, s{sPH}, v{r} {SW1}", f"v_alignbit_b32 v{d}, v{r}, v{d}, 28", f"v_and_b32 v{d}, 0xffc, v{d}"]
    def remain(d, r, k):
        I(f"v_sub_u32_sdwa v{d}, v{r}, v{k} dst_sel:DWORD dst_unused:UNUSED_PAD src0_sel:BYTE_3 src1_sel:DWORD")
    for i in range(4):
        L(f"K2_CHK{i}")
        I(f"s_waitcnt vmcnt({3 - i})")
        r = vC + 4*i
        I(f"v_bitop3_b32 v{u(0)}, v{r+3}, s{sTAG}, v{vTM} bitop3:0x28")
        I(f"v_cmp_ne_u32 vcc, 0, v{u(0)}")
        remain(u(0), r + 3, k4)
        hs = [haddr(vA+3*i+j, r+j) for j in range(3)]
        for j in range(3): I(hs[j][0])
        I(f"s_cbranch_vccnz K2_RETRY{i}")
        if i == 0: stamp(1)
        for j in range(3):
            m = sM + 2*(3*i+j)
            I(f"v_cmp_lt_i32 s[{m}:{m+1}], {j}, v{u(0)}")
        for st in (1, 2):
            for j in range(3): I(hs[j][st])
        for j in range(3):
            m = sM + 2*(3*i+j)
            I(f"s_mov_b64 exec, s[{m}:{m+1}]")
            I(f"ds_add_rtn_u32 v{vRK+3*i+j}, v{vA+3*i+j}, v{one} offset:{HIST}")
        I("s_mov_b64 exec, -1")
    I(f"v_max3_u32 v{u(0)}, v{vC+3}, v{vC+7}, v{vC+11}")
    I(f"v_max_u32 v{u(0)}, v{u(0)}, v{vC+15}")
    I(f"v_cmp_le_u32 vcc, {33 << 24}, v{u(0)}")
    sSEL = sM + 24
    for j in range(3): I(f"s_mov_b32 s{sSEL+j}, {0x0c0c0001 | (4 + j) << 8:#x}")
    I(f"s_mov_b32 s{sSEL+3}, 0x05040100")
    I("s_cbranch_vccnz K2_XT1")
    L("K2_XT1R")
    vEO = vX
    fill = []
    for i in range(4):
        fill.append(f"v_and_b32 v{vC+4*i+3}, 0x0f0f0f, v{vC+4*i+3}")
    for i in range(4):
        for j in range(3): fill.append(f"v_perm_b32 v{vEO+3*i+j}, v{vC+4*i+3}, v{vC+4*i+j}, s{sSEL+j}")
    for i in range(4):
        for j in range(3): fill.append(f"v_lshl_add_u32 v{vEO+3*i+j}, v{vEO+3*i+j}, 5, v{vEB+i}")
    EPF, XPF = opt("epf", 0), opt("xpf", 0)
    def epref(fill):
        dm = vT1 + 6
        if XPF:
            I(f"s_lshr_b32 s10, s2, 3")
            I(f"s_mul_i32 s10, s10, {XPF}")
            I(f"v_cmp_gt_u32 vcc, {XPF}, v{tid}")
            I(f"v_add_lshl_u32 v{dm}, v{tid}, s10, 7")
            I("s_and_b64 exec, exec, vcc")
            I("s_cbranch_execz K2_NOXPF")
            I(f"buffer_load_dword v{dm}, v{dm}, s[{sX}:{sX+3}], 0 offen")
            L("K2_NOXPF")
            I("s_mov_b64 exec, -1")
        while fill: I(fill.pop(0))
        I(f"s_mov_b32 s10, {(SOFF + opt('et', T0)) << 16:#x}")
        for s in range(12):
            m = sM + 2*s
            I(f"s_mov_b64 exec, s[{m}:{m+1}]")
            I(f"v_cmpx_gt_u32 vcc, s10, v{vC+4*(s//3)+s%3}")
            I(f"buffer_load_dword v{dm}, v{vEO+s}, s[{sEP}:{sEP+3}], 0 offen")
        I("s_mov_b64 exec, -1")
    if EPF == 1: epref(fill)
    MT, MTP = opt("mt", 0), opt("mtp", 0)
    def mtouch():
        dm = vT1 + 6
        I(f"s_mul_i32 s10, s{sB}, {CH*32}")
        for k in range((MT + 511) // 512):
            n = min(512, MT - 512*k)
            I(f"v_min_u32 v{dm+1}, {n - 1}, v{tid}")
            I(f"v_lshlrev_b32 v{dm+1}, {opt('mts', 7)}, v{dm+1}")
            if n < 512:
                I(f"s_cmp_ge_u32 s7, {(n + 63) // 64}")
                I(f"s_cbranch_scc1 K2_NOMT{k}")
            I(f"buffer_load_dword v{dm}, v{dm+1}, s[{sEP}:{sEP+3}], s10 offen")
            if n < 512: L(f"K2_NOMT{k}")
            I(f"s_add_u32 s10, s10, 65536")
    if MT and MTP == 0: mtouch()
    stamp('s')
    I("s_waitcnt lgkmcnt(0)")
    I("s_barrier")
    stamp(2)
    c, p, tot, sc = u(0), u(4), u(8), u(9)
    own, ownn, owna = u(10), u(11), u(12)
    SD = "dst_sel:DWORD dst_unused:UNUSED_PAD src0_sel:WORD_0 src1_sel:WORD_0"
    for i in range(4):
        I(f"ds_read_b128 {rr(hh+4*i,4)}, v{l16} offset:{HIST + 1024*i}")
    I(f"ds_read_b64 v[{u(6)}:{u(7)}], v{owna} offset:{HIST}")
    def xearly():
        if opt("xy", 0):
            I(f"s_bitcmp1_b32 s{sW}, 0")
            I("s_cbranch_scc0 K2_NOXE")
        xloads()
        L("K2_NOXE")
    if XP_ == 6: xearly()
    if EPF == 2: epref(fill)
    if MT and MTP == 1: mtouch()
    for k in range(8):
        if fill: I(fill.pop(0))
    for i in range(4):
        I(f"s_waitcnt lgkmcnt({4 - i})")
        I(f"v_add_u32_sdwa v{c+i}, v{hh+4*i}, v{hh+4*i+1} {SD}")
        I(f"v_add_u32_sdwa v{hh+4*i}, v{hh+4*i+2}, v{hh+4*i+3} {SD}")
        I(f"v_add_u32 v{c+i}, v{c+i}, v{hh+4*i}")
    I(f"v_lshl_or_b32 v{p}, v{c+1}, 16, v{c}")
    I(f"v_lshl_or_b32 v{p+1}, v{c+3}, 16, v{c+2}")
    I("s_waitcnt lgkmcnt(0)")
    I(f"v_perm_b32 v{own}, v{u(7)}, v{u(6)}, s{sSEL+3}")
    for dp in ["row_shr:%d row_mask:0xf bank_mask:0xf bound_ctrl:0" % sh for sh in (1, 2, 4, 8)] + \
              ["row_bcast:15 row_mask:0xa bank_mask:0xf", "row_bcast:31 row_mask:0xc bank_mask:0xf"]:
        I(f"v_add_u32_dpp v{p}, v{p}, v{p} {dp}")
        I(f"v_add_u32_dpp v{p+1}, v{p+1}, v{p+1} {dp}")
        I(fill.pop(0) if fill else "s_nop 0")
    I(f"v_readlane_b32 s10, v{p}, 63")
    I(f"v_readlane_b32 s11, v{p+1}, 63")
    for i in range(4):
        I(f"v_lshlrev_b32_sdwa v{hh+i}, v{ecb}, v{p+(i>>1)} dst_sel:DWORD dst_unused:UNUSED_PAD src0_sel:DWORD src1_sel:WORD_{i&1}")
        I(f"v_sub_u32 v{c+i}, v{hh+i}, v{c+i}")
    b1, b2, b3 = 4, 5, 6
    I(f"s_and_b32 s{b1}, s10, 0xffff")
    I("s_lshr_b32 s10, s10, 16")
    I(f"s_add_u32 s{b2}, s{b1}, s10")
    I("s_and_b32 s10, s11, 0xffff")
    I(f"s_add_u32 s{b3}, s{b2}, s10")
    I("s_lshr_b32 s11, s11, 16")
    I(f"s_add_u32 s10, s{b3}, s11")
    for i, b in ((1, b1), (2, b2), (3, b3)):
        I(f"v_lshl_add_u32 v{c+i}, s{b}, 1, v{c+i}")
    KV = opt("kv", "1_4_3232_5") if SBK else ""
    if KV:
        klo, khi, kref, ksh = [int(x) for x in KV.split("_")]
        I(f"s_sub_i32 s{sSB}, {4*kref}, s10")
        I(f"s_ashr_i32 s{sSB}, s{sSB}, {ksh + 2}")
        I(f"s_max_i32 s{sSB}, s{sSB}, {klo}")
        I(f"s_min_i32 s{sSB}, s{sSB}, {khi}")
    I("s_lshr_b32 s11, s10, 5")
    I(f"s_add_u32 s11, s11, 16")
    I("s_and_b32 s11, s11, -32")
    if KV:
        I(f"s_cmp_ge_i32 s{sSB}, {opt('shk', 1)}")
        I(f"s_cselect_b32 s{sF0}, {ASYM + 32}, {ASYM}")
        I(f"s_sub_i32 s11, s11, s{sF0}")
        I(f"s_cmp_lt_i32 s{sSB}, 1")
        I(f"s_cselect_b32 s{sSB}, -1, s{sSB}")
    else: I(f"s_sub_i32 s11, s11, {ASYM + 32*opt('sh', 1)}")
    I("s_lshl_b32 s11, s11, 3")
    I("s_lshr_b32 s10, s10, 1")
    I(f"s_lshr_b32 s{sF0}, s{sW}, 1")
    I(f"s_mul_i32 s{sF0}, s{sF0}, s10")
    I(f"s_add_i32 s11, s11, s{sF0}")
    I(f"s_add_i32 s10, s10, s{sF0}")
    I(f"s_bitcmp1_b32 s{sW}, 0")
    I(f"s_cselect_b32 s{sEND}, s11, s{sF0}")
    I("s_cselect_b32 s10, s10, s11")
    I(f"s_mov_b32 s{sF0}, 0")
    I(f"s_mov_b32 s{sF1}, 0")
    for i in range(4):
        I(f"v_cmp_gt_i32 vcc, s{sEND}, v{c+i}")
        I(f"v_cmp_gt_i32 s[{sTMP}:{sTMP+1}], s10, v{c+i}")
        I("s_bcnt1_i32_b64 s11, vcc")
        I(f"s_add_u32 s{sF0}, s{sF0}, s11")
        I(f"s_bcnt1_i32_b64 s11, s[{sTMP}:{sTMP+1}]")
        I(f"s_add_u32 s{sF1}, s{sF1}, s11")
    I(f"s_max_i32 s{sF0}, s{sF0}, s{lo0}")
    I(f"s_min_i32 s{sF0}, s{sF0}, s{hi0}")
    I(f"s_max_i32 s{sF1}, s{sF1}, s{lo1}")
    I(f"s_min_i32 s{sF1}, s{sF1}, s{hi1}")
    I(f"v_cmp_le_u32 vcc, s{sF0}, v{ownn}")
    I(f"v_cmp_gt_u32 s[10:11], s{sF1}, v{ownn}")
    I(f"s_mov_b32 s{sMORE}, 2")
    I("s_and_b64 vcc, vcc, s[10:11]")
    I(f"v_cndmask_b32 v{own}, 0, v{own}, vcc")
    I(f"v_mov_b32 v{tot}, v{own}")
    wave_scan(tot, fill, half=True)
    for x_ in fill: I(x_)
    I(f"s_sub_u32 s{sTMP}, s{sL}, {R0}")
    I(f"v_readlane_b32 s10, v{tot}, 31")
    I(f"v_readlane_b32 s11, v{tot}, 63")
    I(f"v_sub_u32 v{tot}, v{tot}, v{own}")
    I(f"v_mov_b32 v{vOWN}, v{u(14)}")
    I(f"s_and_b32 s{sTH}, s10, 0xffff")
    I("s_lshr_b32 s10, s10, 16")
    I(f"s_add_u32 s{sTH+1}, s{sTH}, s10")
    I("s_and_b32 s10, s11, 0xffff")
    I(f"s_add_u32 s{sTH+2}, s{sTH+1}, s10")
    I("s_lshr_b32 s11, s11, 16")
    I(f"s_add_u32 s{sEND}, s{sTH+2}, s11")
    I(f"s_lshl_b32 s10, s{sTH}, 16")
    I(f"s_pack_ll_b32_b16 s11, s{sTH+1}, s{sTH+2}")
    I(f"s_pack_ll_b32_b16 s{sTMP}, s{sTMP}, s{sTMP}")
    I(f"s_add_u32 s10, s10, s{sTMP}")
    I(f"s_add_u32 s11, s11, s{sTMP}")
    I("s_mov_b32 exec_lo, vcc_lo")
    I("s_mov_b32 exec_hi, 0")
    I(f"v_add_u32 v{tot}, s10, v{tot}")
    I("s_mov_b32 exec_lo, 0")
    I("s_mov_b32 exec_hi, vcc_hi")
    I(f"v_add_u32 v{tot}, s11, v{tot}")
    I("s_mov_b64 exec, vcc")
    I(f"ds_write_b16 v{owna}, v{tot} offset:{HIST + 2}")
    I(f"ds_write_b16_d16_hi v{owna}, v{tot} offset:{HIST + 6}")
    I(f"ds_write_b32 v{vMIN+1}, v{vMIN} offset:{MAP}")
    I("s_mov_b64 exec, -1")
    I(f"v_mov_b32 v{sc}, {FLAG}")
    I(f"s_cmp_le_u32 s{sEND}, {LMAX*4}")
    I("s_cbranch_scc1 K2_LFIT")
    I(f"ds_write_b32 v{sc}, v{sc}")
    I(f"s_mov_b32 s{sEND}, 0")
    L("K2_LFIT")
    I(f"s_add_u32 s{sEND}, s{sEND}, s{sL}")
    for k in range(3):
        I(f"s_add_i32 s{sTH+k}, s{sTH+k}, {opt('tho', 64)}")
        I(f"s_lshr_b32 s{sTH+k}, s{sTH+k}, 7")
    if XP_ == 7: xearly()
    pads(lane, u(0), u(1), u(2))
    I(f"v_mov_b32 v{u(0)}, s{sEND}")
    I(f"ds_write_b32 v{vMIN}, v{u(0)} offset:{CNT}")
    I("s_waitcnt lgkmcnt(0)")
    stamp('a')
    I("s_barrier")
    stamp('b')
    I(f"ds_read_b64 v[{u(6)}:{u(7)}], v{sc}")
    for s in range(12):
        m = sM + 2*s
        I(f"s_mov_b64 exec, s[{m}:{m+1}]")
        I(f"ds_read_u16 v{vA+s}, v{vA+s} offset:{HIST + 2}")
    I("s_mov_b64 exec, -1")
    I(f"s_waitcnt lgkmcnt(0)")
    I(f"v_readfirstlane_b32 s{sST}, v{u(6)}")
    I(f"v_readfirstlane_b32 s{sCUR}, v{u(7)}")
    for s in range(12): I(f"v_add_u32 v{vA+s}, v{vA+s}, v{vRK+s}")
    I(f"s_cmp_gt_u32 s{sST}, {XMAX}")
    I("s_cbranch_scc1 K2_OVF")
    for s in range(12):
        m = sM + 2*s
        I(f"s_mov_b64 exec, s[{m}:{m+1}]")
        I(f"ds_write2st64_b32 v{vA+s}, v{vC+4*(s//3)+s%3}, v{vEO+s} offset0:{R0//256} offset1:{R1//256}")
    I("s_mov_b64 exec, -1")
    I(f"s_cmp_lg_u32 s{sXT}, 0")
    I("s_cbranch_scc1 K2_XT2")
    L("K2_PADS0")
    I("s_waitcnt lgkmcnt(0)")
    stamp('c')
    I("s_barrier")
    I(f"s_cmp_lg_u32 s{sST}, 0")
    I("s_cbranch_scc1 K2_XT3")
    L("K2_GO")
    stamp(3)
    STAG = opt("stag", 1)
    I(f"ds_read_b128 {rr(vQD,4)}, v{vARX}")
    I(f"ds_read_b32 v{vR1}, v{vARE}")
    I(f"ds_read_u8 v{vL1}, v{vARP}")
    I("s_waitcnt lgkmcnt(1)")
    EM = opt("em", 0xAA)
    if STAG == 1:
        I(f"s_movk_i32 s10, {EM}")
        I(f"s_bitcmp1_b32 s10, s{sW}")
        I("s_cbranch_scc0 K2_LATE0")
    for s in dma_tile(0): I(s)
    if STAG == 2:
        I(f"s_bitcmp1_b32 s{sW}, 0")
        I("s_cbranch_scc1 K2_LATE0")
        I("s_waitcnt vmcnt(0)")
    L("K2_LATE0")
    I(f"s_cmp_lg_u32 s{sMORE}, 2")
    I("s_cbranch_scc1 K2_BUILT")
    vWA = vACC
    I(f"s_bitcmp1_b32 s{sW}, 0")
    I("s_cbranch_scc1 K2_XOLD")
    if opt("xy", 0): xloads()
    I("s_waitcnt vmcnt(0)")
    L("K2_XOLD")
    I("s_waitcnt vmcnt(5)")
    for q in range(4): I(f"ds_read_b128 {rr(vX+4*q,4)}, v{vXA} offset:{16*q}")
    I(f"v_add_u32 v{l16}, 8192, v{l16}")
    for k in range(8): I(f"ds_read_b128 {rr(vWA+4*k,4)}, v{l16} offset:{WA - 8192 + 1024*k}")
    I(f"s_mov_b32 s10, {f2u(1e-6):#x}")
    I(f"s_mov_b32 s11, s10")
    I(mfma(NUM(1), vT2, vT2))
    for i in range(8): I(f"v_mov_b64 v[{DEN(1)+2*i}:{DEN(1)+2*i+1}], s[10:11]")
    for k in range(8):
        D = (vP, vQ)[k >> 2]
        I(f"s_waitcnt lgkmcnt({7 - k})")
        I(mfma(D, vX + 4*(k & 3), vWA + 4*k, None if k & 3 == 0 else D))
    I(mfma(NUM(0), vT2, vT2))
    for i in range(8): I(f"v_mov_b64 v[{DEN(0)+2*i}:{DEN(0)+2*i+1}], s[10:11]")
    I(f"s_mov_b32 s10, {f2u(-LOG2E):#x}")
    for i in range(32): I(f"v_mul_f32 v{vP+i}, s10, v{vP+i}")
    for i in range(16): I(f"v_cvt_pk_bf16_f32 v{vAT+i}, v{vP+2*i}, v{vP+2*i+1}")

    if SBK and not KV: I(f"s_mov_b32 s{sSB}, {SBK}")
    I(f"s_mov_b32 s{sCI}, -1")
    I(f"s_mov_b64 s[{sMSK}:{sMSK+1}], 0")
    I(f"s_mov_b32 s{sR0}, 0")
    I(f"s_mov_b32 s{sCNT}, 0")
    I(f"s_cmp_lg_u32 s{sCUR}, 0")
    I(f"s_cselect_b32 s{sMORE}, 1, 0")
    L("K2_BUILT")
    I("s_waitcnt lgkmcnt(0)")
    I(f"v_lshl_add_u32 v{vL1}, v{vL1}, 6, v{vC1}")
    if STAG == 1:
        I(f"s_movk_i32 s10, {EM}")
        I(f"s_bitcmp1_b32 s10, s{sW}")
        I("s_cbranch_scc1 K2_HAD0")
        YP = opt("yp", "")
        if YP:
            I(f"s_cmp_lt_i32 s{sSB}, 0")
            I("s_cbranch_scc1 K2_NOYP")
            I(f"v_lshl_add_u32 v{vR}, v{lane}, 2, s{sL}")
            its = YP.split("_")
            for k, it in enumerate(its):
                off = int(it[1:]) * 256 + (LCAP*4 if it[0].isupper() else 0) + (R1 - R0 if it[0] in "eE" else 0)
                I(f"ds_read_b32 v{vR+1+k}, v{vR} offset:{off}")
            for k, it in enumerate(its):
                I(f"s_waitcnt lgkmcnt({len(its) - 1 - k})")
                if it[0] in "xX":
                    I(f"v_mad_u32_u16 v{vR+1+k}, v{vR+1+k}, s{s128}, v{vCP} op_sel:[1,0,0,0]")
                sr = sEP if it[0] in "eE" else sX
                I(f"buffer_load_dword v{vT1+6}, v{vR+1+k}, s[{sr}:{sr+3}], 0 offen")
            L("K2_NOYP")
        if SBK and opt("sbl", 1):
            I(f"s_cmp_lt_i32 s{sSB}, 0")
            I("s_cbranch_scc1 K2_SBY")
            I("s_barrier")
            I(f"s_mov_b32 s{sSB}, -1")
            L("K2_SBY")
        if opt("ys", 0): I(f"s_sleep {opt('ys', 0)}")
        for s in dma_tile(0): I(s)
        L("K2_HAD0")
    I(f"ds_read_b128 {rr(vQD,4)}, v{vARX} offset:128")
    I(f"ds_read_b32 v{vR1}, v{vARE} offset:128")
    for s in t1_reads(): I(s)
    I(mfma(vQ, vT2, vT2))
    stamp(4)
    I("s_waitcnt vmcnt(0)")
    stamp(5)
    I(f"ds_read_b128 {rr(vE,4)}, v{vAE}")
    for q in range(4):
        I(f"ds_read_b128 {rr(vX+4*q,4)}, v{vAX} offset:{16*q}")
    I("s_waitcnt lgkmcnt(0)")
    I(f"s_cmp_eq_u32 s{sN}, 0")
    I("s_cbranch_scc1 K2_DONE")
    YC = opt("yc", 0) or (SBK and not opt("sbl", 1))
    if YC:
        for x_ in dma_tile(0): I(x_)
        I(f"s_movk_i32 s10, {EM}")
        I(f"s_bitcmp1_b32 s10, s{sW}")
        I("s_cbranch_scc1 K2_NOYC")
        if not SBK: I(f"s_sleep {YC}")
        else:
            I(f"s_cmp_lt_i32 s{sSB}, 0")
            I("s_cbranch_scc1 K2_SBY")
            I("s_barrier")
            I(f"s_mov_b32 s{sSB}, -1")
            L("K2_SBY")
        L("K2_NOYC")
    for s in g_mfmas(vP, 0):
        if s.startswith("v_smfmac"):
            if YC: I("s_nop 9")
            else:
                for x_ in dma_tile(0): I(x_)
        I(s)
    I(f"s_mov_b32 s{sT}, 0")
    sEV = 87
    def prio_code(uid):
        return [f"s_cmp_ge_u32 s{sT}, s{sEV}", f"s_cbranch_scc1 K2_EV{uid}", f"K2_EVR{uid}:"]
    def next_event():
        I(f"s_mov_b32 s{sEV}, s{sN}")
        for r in [sTH, sTH+1, sTH+2] + ([sSB] if SBK else []):
            I(f"s_cmp_gt_i32 s{r}, s{sT}")
            I(f"s_cselect_b32 s10, s{r}, s{sEV}")
            I(f"s_min_u32 s{sEV}, s{sEV}, s10")
    YK = opt("yk", 2)
    if YK:
        I(f"s_sub_u32 s10, s{sN}, {YK - 1 if YK < 10 else 0}")
        I(f"s_bitcmp1_b32 s{sW}, 0")
        I(f"s_cselect_b32 s{sTH+2}, s{sTH+2}, s10")
    I("s_setprio 3")
    next_event()
    tst = ["s_memrealtime s[98:99]", "s_waitcnt lgkmcnt(0)", "s_mov_b32 m0, s72", "s_nop 0", "v_writelane_b32 v255, s98, m0", "s_memtime s[98:99]", "s_waitcnt lgkmcnt(0)", "s_add_u32 m0, s72, 32", "s_nop 0", "v_writelane_b32 v255, s98, m0"] if TS == 4 else []
    body = tst + phaseA(0) + phaseB(0)
    body += prio_code(0)
    body += tst + phaseA(1) + phaseB(1)
    body += [f"v_add_u32 v{r}, 0x100, v{r}" for r in (vARX, vARP, vARE, vART)]
    body += [f"s_cmp_lt_u32 s{sT}, s{sEV}", f"s_cbranch_scc1 K2_LOOP"]
    check_body(body)
    DBG = opt("dbg", "")
    if "ell" in DBG:
        nb = []
        for b in body:
            if b.startswith("v_smfmac") and b.endswith(f"v{vIX}"): continue
            if b.startswith("v_smfmac") and "noA" in DBG: continue
            if b.startswith("ds_read_b64_tr") or b.startswith("ds_read_u8 v23") or b.startswith("v_lshl_add_u32 v23"): continue
            m = re.fullmatch(r"v_mul_f32 v(\d+), v(\d+), v\d+", b)
            if m:
                h, g = int(m.group(1)), int(m.group(2)); ft = 0 if g < vQ else 1; i = h - vQ
                nb.append(f"v_fmac_f32 v{NUM(ft)+i}, v{g}, v{h}")
                nb.append(f"v_add_f32 v{DEN(ft)+i}, v{DEN(ft)+i}, v{g}")
                continue
            nb.append(b)
        body = nb
    if "fl" in DBG:
        nb = []; cnt = 0
        for b in body:
            if b.startswith("ds_read_b128 v[172") or b.startswith("ds_read_b32 v176") or b.startswith("ds_read_u8 v250") or b.startswith("v_lshl_add_u32 v250"): continue
            m = re.fullmatch(r"v_add_f32 v(\d+), v(\d+), v(\d+)", b)
            if m:
                cnt += 1
                if cnt % 4 == 0:
                    k = (cnt // 4) % 4
                    nb.append(f"v_cvt_pk_bf16_f32 v{vT2+k}, v{m.group(1)}, v{int(m.group(1))+16}")
                    nb.append(f"ds_pk_add_bf16 v{vT1+7}, v{vT2+k} offset:{256*(cnt%64)//4}")
                    nb.append(f"ds_read_u16_d16_hi v{vAT+k}, v{vC1} offset:{16384 + 128*k}")
                    if k % 2: nb.append(f"v_add_u32 v{vT2+4}, v{vT2+5}, v{vC1}")
                    continue
            if b.startswith("s_waitcnt lgkmcnt"): b = "s_waitcnt lgkmcnt(0)" if "(0)" in b else b
            nb.append(b)
        body = [f"v_lshl_add_u32 v{vT1+7}, v{lane}, 2, s{sSTG}", f"v_subrev_u32 v{vT1+7}, 33280, v{vT1+7}", f"v_lshlrev_b32 v{vC1}, 1, v{lane}"] + nb
    if "half" in DBG:
        body = [b for b in body if not (b.startswith("v_smfmac") and b.endswith(f"v{vIX}") and f"v[{vT2+4}:" in b)]
    if "nodma" in DBG: body = [b for b in body if not b.startswith("buffer_load")]
    emit(".p2align 6")
    L("K2_LOOP")
    for s in body:
        if s.endswith(":"): L(s[:-1])
        else: I(s)
    for uid in (1, 0):
        if uid == 0: L("K2_EV0")
        I(f"s_cmp_ge_u32 s{sT}, s{sN}")
        I("s_cbranch_scc1 K2_TAIL")
        if SBK:
            I(f"s_cmp_lg_u32 s{sT}, s{sSB}")
            I(f"s_cbranch_scc1 K2_SB{uid}")
            I("s_barrier")
            I(f"s_mov_b32 s{sSB}, -1")
            L(f"K2_SB{uid}")
        for k in range(3):
            I(f"s_cmp_lg_u32 s{sT}, s{sTH+k}")
            I(f"s_cbranch_scc1 K2_PR{uid}_{k}")
            I(f"s_setprio {2-k}")
            L(f"K2_PR{uid}_{k}")
        next_event()
        I("s_branch K2_LOOP" if uid else "s_branch K2_EVR0")
    L("K2_TAIL")
    for s in s_mfmas(NUM(1), vQ): I(s)
    L("K2_DONE")
    if SBK:
        I(f"s_cmp_lt_i32 s{sSB}, 0")
        I("s_cbranch_scc1 K2_SBD")
        I("s_barrier")
        I(f"s_mov_b32 s{sSB}, -1")
        L("K2_SBD")
    I(f"s_cmp_lg_u32 s{sMORE}, 0")
    I("s_cbranch_scc1 K2_SLOW")
    L("K2_EPI")
    stamp(6)
    I(f"v_lshlrev_b32 v{vT}, 4, v{lane}")
    for q in range(4):
        I(f"ds_read_b128 {rr(vX+4*q,4)}, v{vOWN} offset:{16*q}")
    for k in range(8):
        I(f"ds_read_b128 {rr(vWB+4*k,4)}, v{vT} offset:{WU + 1024*k}")
    I(f"v_and_b32 v{vQD+1}, 31, v{lane}")
    I(f"v_and_b32 v{vC1}, 32, v{lane}")
    I(f"v_mul_u32_u24 v{vC2}, 144, v{vQD+1}")
    I(f"v_lshrrev_b32 v{vQD+2}, 2, v{vC1}")
    I(f"v_lshl_add_u32 v{vQD+1}, v{vQD+1}, 6, v{vQD+2}")
    for s_ in range(2):
        I(f"ds_read2_b64 {rr(vT2+4*s_,4)}, v{vQD+1} offset0:{4*s_} offset1:{4*s_+2}")
    I("s_waitcnt lgkmcnt(10)")
    for i in range(16):
        I(f"v_lshlrev_b32 v{vWV+2*i}, 16, v{vX+i}")
        I(f"v_and_b32 v{vWV+2*i+1}, 0xffff0000, v{vX+i}")
    I(f"v_lshl_add_u32 v{vT+1}, v{vC1}, 1, v{vC2}")
    I(f"v_add_u32 v{vT+1}, s{sSTG}, v{vT+1}")
    I(f"s_sub_u32 s10, s{sF0}, s{sWIN}")
    I("s_mul_i32 s10, s10, 144")
    I(f"s_add_u32 s10, s10, s{sSTG}")
    I(f"v_lshrrev_b32 v{vQD}, 3, v{lane}")
    I(f"v_lshl_add_u32 v{vQD}, v{vQD}, 4, v{vT}")
    I(f"v_add_u32 v{vQD}, s10, v{vQD}")
    I(f"s_mul_i32 s10, s{sB}, {BN}")
    I(f"s_add_u32 s11, s10, s{sF1}")
    I(f"s_add_u32 s10, s10, s{sF0}")
    I(f"s_min_u32 s11, s11, {N}")
    I(f"s_min_u32 s10, s10, {N}")
    I("s_sub_u32 s11, s11, s10")
    I("s_lshl_b32 s10, s10, 7")
    I(f"s_add_u32 s{sOUT}, s{sOUT}, s10")
    I(f"s_addc_u32 s{sOUT+1}, s{sOUT+1}, 0")
    I(f"s_lshl_b32 s{sOUT+2}, s11, 7")
    for ft, D in ((0, vP), (1, vQ)):
        for q in range(4):
            I(f"s_waitcnt lgkmcnt({9 - 4*ft - q})")
            I(mfma(D, vWB+16*ft+4*q, vX+4*q, vWV+16*ft if q == 0 else D))
            for i in range(4):
                r = DEN(ft) + 4*q + i
                I(f"v_rcp_f32 v{r}, v{r}")
    I("s_waitcnt lgkmcnt(0)")
    for ft, D in ((0, vP), (1, vQ)):
        for i in range(16):
            I(f"v_mul_f32 v{NUM(ft)+i}, v{NUM(ft)+i}, v{DEN(ft)+i}")
        for i in range(8):
            I(f"v_cvt_pk_bf16_f32 v{DEN(ft)+i}, v{NUM(ft)+2*i}, v{NUM(ft)+2*i+1}")
        I(mfma(D, DEN(ft), vT2, D))
        I("s_nop 0")
        I(mfma(D, DEN(ft)+4, vT2+4, D))
    for q in range(4):
        for i in range(8*q, 8*q+8):
            I(f"v_max_f32 v{vP+i}, v{vP+i}, v{vWV+i}")
        for d in range(4):
            i = 4*q + d
            I(f"v_cvt_pk_bf16_f32 v{vR+i}, v{vP+2*i}, v{vP+2*i+1}")
        I(f"ds_write_b128 v{vT+1}, {rr(vR+4*q,4)} offset:{16*q}")
    for q in range(4):
        I(f"ds_read_b128 {rr(vX+4*q,4)}, v{vQD} offset:{8*144*q}")
    for q in range(4):
        I(f"s_waitcnt lgkmcnt({3-q})")
        I(f"buffer_store_dwordx4 {rr(vX+4*q,4)}, v{vT}, s[{sOUT}:{sOUT+3}], 0 offen offset:{1024*q}{pol(K2_OP)}")
    I(f"s_add_u32 s10, s2, s7")
    I("s_cmp_lg_u32 s10, 0")
    I("s_cbranch_scc1 K2_NOEP")
    I(f"v_mov_b32 v{vP}, {WS_EPOCH}")
    I(f"v_mov_b32 v{vP+1}, s{sEPN}")
    I(f"buffer_store_dword v{vP+1}, v{vP}, s[{sWS}:{sWS+3}], 0 offen sc1")
    L("K2_NOEP")
    if TS == 2 or opt("tsn", 0): I(f"s_mov_b32 s89, s{sN}")
    if TS == 8:
        I(f"s_sub_u32 s94, {opt('spin', 200000)}, s{sSPIN}")
        I(f"s_mul_i32 s94, s94, 100")
        I(f"s_add_u32 s94, s94, s88")
    if TS: I(f"s_mov_b32 s{sW}, s7")
    if TS == 4:
        I("s_mov_b64 exec, -1")
        I(f"s_lshl_b32 s87, s2, 11")
        I(f"s_add_u32 s87, s87, {WS_TS + 0x180000}")
        I(f"s_lshl_b32 s86, s{sW}, 8")
        I("s_add_u32 s87, s87, s86")
        I(f"v_lshl_add_u32 v{vP}, v{lane}, 2, s87")
        I(f"global_store_dword v{vP}, v255, s[8:9]")
    stamp_out(8, 8, sW, 8, 0x100000, vP)
    L("K2_END")
    I("s_endpgm")
    def spin():
        if opt("slp", 1): I(f"s_sleep {opt('slp', 1)}")
        I(f"s_sub_u32 s{sSPIN}, s{sSPIN}, 1")
        I("s_cbranch_scc1 K2_END")
    for i in range(4):
        L(f"K2_RETRY{i}")
        spin()
        I("s_waitcnt vmcnt(0)")
        for j in range(i, 4):
            I(f"v_bitop3_b32 v{u(0)}, v{vC+4*j+3}, s{sTAG}, v{vTM} bitop3:0x28")
            for dp in ("quad_perm:[1,0,3,2]", "quad_perm:[2,3,0,1]", "row_half_mirror"):
                I("s_nop 1")
                I(f"v_or_b32_dpp v{u(0)}, v{u(0)}, v{u(0)} {dp} row_mask:0xf bank_mask:0xf")
            I(f"v_cmp_ne_u32 vcc, 0, v{u(0)}")
            I("s_and_b64 exec, exec, vcc")
            I(f"s_cbranch_execz K2_RT{i}{j}")
            cload(j)
            L(f"K2_RT{i}{j}")
            I("s_mov_b64 exec, -1")
        I("s_waitcnt vmcnt(0)")
        I(f"s_branch K2_CHK{i}")
    L("K1_EXT")
    I(f"s_mov_b32 s14, 0x0f0f0f0f")
    I(f"s_mov_b32 s15, s14")
    for i in range(4):
        I(f"ds_read_b32 v{oE+i}, v6 offset:{16*LROW*i + 32}")
        I(f"ds_read_b128 {rr(pD+8*i,4)}, v3 offset:{64*LROW*i + 128}")
    I("s_waitcnt lgkmcnt(0)")
    for i in range(4):
        I(f"v_cmp_le_u32 vcc, {33 << 24}, v{oH+i}")
        I(f"v_and_or_b32 v{pD+8*i+3}, v{oE+i}, v15, v{oH+i}")
        I("s_and_b64 exec, vcc, s[14:15]")
        I(f"s_cbranch_execz K1_EX{i}")
        I(f"buffer_store_dwordx4 {rr(pD+8*i,4)}, v4, s[{sST_}:{sST_+3}], s10 offen sc1")
        L(f"K1_EX{i}")
        I("s_mov_b64 exec, -1")
        I(f"s_add_u32 s10, s10, {64*RS}")
    I("s_branch K1_EXTR")
    L("K1_OVF")
    t = vAT
    for i in range(4):
        I(f"v_lshrrev_b32 v{t+i}, 16, v{oA+i}")
        I(f"v_lshrrev_b32 v{t+4}, 18, v{oA+i}")
        I(f"v_sub_u32 v{t+i}, v{t+i}, v{t+4}")
    I(f"v_add_u32 v{t+5}, v{t}, v{t+1}")
    I(f"v_add_u32 v{t+6}, v{t+5}, v{t+2}")
    I(f"v_add_u32 v{t+7}, v{t+6}, v{t+3}")
    I(f"v_mov_b32 v1, v{t+7}")
    wave_scan(1)
    I("s_nop 0")
    I(f"v_sub_u32 v{t+4}, v1, v{t+7}")
    I(f"v_add_u32 v{t+7}, v{t+4}, v{t+6}")
    I(f"v_add_u32 v{t+6}, v{t+4}, v{t+5}")
    I(f"v_add_u32 v{t+5}, v{t+4}, v{t}")
    for i in range(4):
        I(f"v_lshl_or_b32 v{t+4+i}, v{t+i}, 16, v{t+4+i}")
    I("s_waitcnt lgkmcnt(0)")
    I(f"ds_write_b128 v{l16}, {rr(t+4,4)} offset:{P_HDR}")
    for i in range(4): I(f"v_min_u32 v{oH+i}, 255, v{oH+i}")
    I(f"s_lshl_b32 s15, s{sB}, 2")
    I(f"s_add_u32 s15, s15, {WS_HDR}")
    srd(q0, 8, 9, NB*NCH*4, "s15")
    I(f"v_lshlrev_b32 v1, 12, v{lane}")
    for i in range(4):
        I(f"buffer_store_dword v{t+4+i}, v1, s[{q0}:{q0+3}], 0 offen offset:{1024*i} sc1")
    I(f"s_add_u32 s15, s13, {WS_RECS}")
    srd(q0, 8, 9, CH*4, "s15")
    I("s_lshr_b32 s15, s13, 2")
    I(f"s_add_u32 s15, s15, {WS_XB}")
    srd(q1, 8, 9, CH, "s15")
    I(f"v_cndmask_b32 v{pH+6}, v{pH}, v{pH+6}, s[{pm}:{pm+1}]")
    I(f"v_cndmask_b32 v{pK+6}, 0, v{pK+6}, s[{pm}:{pm+1}]")
    for i in range(7):
        I(f"ds_read_u16 v{pA+i}, v{pH+i} offset:{P_HDR - H0}")
    I("s_waitcnt lgkmcnt(0)")
    for i in range(7):
        I(f"v_lshrrev_b32 v1, 2, v{pK+i}")
        I(f"v_sub_u32 v1, v{pK+i}, v1")
        I(f"v_add_u32 v{pA+i}, v{pA+i}, v1")
        I(f"v_cmp_le_u32 vcc, {QCAP}, v{pK+i}")
        I(f"v_lshlrev_b32 v{pB+i}, 2, v{pA+i}")
        I("s_and_saveexec_b64 s[14:15], vcc")
        I(f"s_cbranch_execz K1_OV3_{i}")
        I(f"buffer_store_byte v{xb(i)}, v{pA+i}, s[{q1}:{q1+3}], 0 offen sc1")
        I(f"buffer_store_dword v{pS+i}, v{pB+i}, s[{q0}:{q0+3}], 0 offen sc1")
        L(f"K1_OV3_{i}")
        I("s_mov_b64 exec, -1")
    I("s_waitcnt vmcnt(0)")
    I("s_barrier")
    I("s_branch K1_OUT")
    xd, xa, xk, xrem, xeb, xad, xt = vACC + 44, vACC + 52, vACC + 58, vQ, vQ + 2, vX + 12, vX + 14
    L("K2_XT1")
    I(f"s_mov_b32 s{sXT}, 1")
    I(f"v_cmp_le_u32 vcc, {(QCAP + 1) << 24}, v{u(0)}")
    I(f"v_mov_b32 v{xt}, {FLAG + 4}")
    I("s_cbranch_vccz K2_XT1A")
    I(f"ds_write_b32 v{xt}, v{one}")
    L("K2_XT1A")
    I("s_mov_b32 s10, 0xf0f0f0f0")
    I("s_mov_b32 s11, s10")
    I(f"v_and_b32 v{xt}, 12, v{k4}")
    I(f"v_add_u32 v{xt}, 32, v{xt}")
    I(f"v_and_b32 v{xad}, 64, v{u(1)}")
    I(f"v_mul_u32_u24 v{xad}, 127, v{xad}")
    I(f"v_add_u32 v{xad}, v{xad}, v{u(1)}")
    I(f"v_add_u32 v{xad+1}, 16384, v{xad}")
    I(f"v_mov_b32 v{xt+1}, 0x7ffffff0")
    for g in range(2):
        I(f"v_cndmask_b32 v{xrem+g}, v{vC+8*g+3}, v{vC+8*g+7}, s[10:11]")
        I(f"v_cndmask_b32 v{xeb+g}, v{vEB+2*g}, v{vEB+2*g+1}, s[10:11]")
        I(f"v_cmp_le_u32 vcc, {33 << 24}, v{xrem+g}")
        remain(xrem + g, xrem + g, xt)
        I("s_nop 0")
        I(f"v_cndmask_b32 v{xad+g}, v{xt+1}, v{xad+g}, vcc")
    I(f"s_add_u32 s{sCEL}, s{sCEL}, {WS_EXT}")
    I(f"s_addc_u32 s{sCEL+1}, s{sCEL+1}, 0")
    def xloads2():
        for g in range(2):
            I(f"buffer_load_dwordx4 {rr(xd+4*g,4)}, v{xad+g}, s[{sCEL}:{sCEL+3}], 0 offen sc1")
    xloads2()
    I(f"v_med3_i32 v{xt}, v{xrem}, 0, 3")
    I(f"v_med3_i32 v{xt+1}, v{xrem+1}, 0, 3")
    I(f"v_add_u32 v{xt}, v{xt}, v{xt+1}")
    I(f"v_mov_b32 v{xt+1}, {FLAG}")
    I(f"v_cmpx_lt_u32 vcc, 0, v{xt}")
    I(f"ds_add_u32 v{xt+1}, v{xt}")
    I("s_mov_b64 exec, -1")
    I("s_branch K2_XT1R")
    def xvalid(tag):
        L(f"K2_XV{tag}")
        I("s_waitcnt vmcnt(0)")
        I("s_mov_b64 s[10:11], 0")
        for g in range(2):
            I(f"v_bitop3_b32 v{xt}, v{xd+4*g+3}, s{sTAG}, v{vTM} bitop3:0x28")
            I(f"v_cmp_ne_u32 s[{sTMP}:{sTMP+1}], 0, v{xt}")
            I(f"v_cmp_gt_u32 vcc, 0x7ffffff0, v{xad+g}")
            I(f"s_and_b64 vcc, vcc, s[{sTMP}:{sTMP+1}]")
            I("s_or_b64 s[10:11], s[10:11], vcc")
        I(f"s_cbranch_scc0 K2_XW{tag}")
        spin()
        xloads2()
        I(f"s_branch K2_XV{tag}")
        L(f"K2_XW{tag}")
    L("K2_XT2")
    xvalid("a")
    for g in range(2):
        for j in range(3):
            I(f"v_and_b32 v{xa+3*g+j}, 255, v{xd+4*g+j}")
            I(f"v_lshlrev_b32 v{xa+3*g+j}, 2, v{xa+3*g+j}")
            I(f"ds_read_b32 v{xa+3*g+j}, v{xa+3*g+j} offset:{MAP}")
        I(f"v_and_b32 v{xd+4*g+3}, 0x0f0f0f, v{xd+4*g+3}")
    I("s_waitcnt lgkmcnt(0)")
    for g in range(2):
        for j in range(3):
            i = 3*g + j
            I(f"v_perm_b32 v{xk+i}, v{xd+4*g+3}, v{xd+4*g+j}, s{sSEL+j}")
            I(f"v_lshl_add_u32 v{xk+i}, v{xk+i}, 5, v{xeb+g}")
            I(f"v_cmpx_lt_i32 vcc, {j}, v{xrem+g}")
            I(f"ds_add_rtn_u32 v{xa+i}, v{xa+i}, v{one} offset:{CNT}")
            I("s_mov_b64 exec, -1")
    I("s_waitcnt lgkmcnt(0)")
    for g in range(2):
        for j in range(3):
            i = 3*g + j
            I(f"v_cmpx_lt_i32 vcc, {j}, v{xrem+g}")
            I(f"ds_write2st64_b32 v{xa+i}, v{xd+4*g+j}, v{xk+i} offset0:0 offset1:{(R1-R0)//256}")
            I("s_mov_b64 exec, -1")
    I("s_branch K2_PADS0")
    L("K2_XT3")
    I(f"ds_read_b32 v{xt}, v{vMIN} offset:{CNT}")
    I("s_waitcnt lgkmcnt(0)")
    I(f"v_readfirstlane_b32 s{sEND}, v{xt}")
    I("s_nop 3")
    ntiles()
    I("s_branch K2_GO")
    L("K2_OVF")
    I(f"s_mov_b32 s{sCUR}, 1")
    I(f"s_mov_b32 s{sST}, 0")
    I(f"s_mov_b32 s{sSKIP}, 0")
    I(f"s_mov_b32 s{sEND}, s{sL}")
    pads(lane, vP, vP+1, vP+2)
    I(f"s_cmp_eq_u32 s{sXT}, 0")
    I("s_cbranch_scc1 K2_PADS0")
    xvalid("b")
    I("s_branch K2_PADS0")
    SB = 448
    t0, t1, t2, t3, t4 = vP, vP+1, vP+2, vP+3, vP+4
    L("K2_SLOW")
    I(f"s_add_u32 s{sR0}, s{sR0}, {SB}")
    I(f"s_cmp_lt_u32 s{sR0}, s{sCNT}")
    I("s_cbranch_scc1 K2_BATCH")
    L("K2_FIND")
    I(f"s_cmp_lg_u64 s[{sMSK}:{sMSK+1}], 0")
    I("s_cbranch_scc1 K2_GOT")
    I(f"s_add_u32 s{sCI}, s{sCI}, 1")
    I(f"s_cmp_ge_u32 s{sCI}, 4")
    I("s_cbranch_scc1 K2_EPI")
    I(f"s_mul_i32 s10, s{sB}, {RS}")
    I(f"s_lshl_b32 s11, s{sCI}, 13")
    I("s_add_u32 s10, s10, s11")
    I(f"v_lshlrev_b32 v{vT}, 7, v{lane}")
    I(f"buffer_load_ubyte v{vT}, v{vT}, s[{sWS}:{sWS+3}], s10 offen offset:15 sc1")
    I("s_waitcnt vmcnt(0)")
    I(f"v_cmp_lt_u32 s[{sMSK}:{sMSK+1}], s{sSKIP}, v{vT}")
    I("s_nop 3")
    I("s_branch K2_FIND")
    L("K2_GOT")
    I(f"s_ff1_i32_b64 s10, s[{sMSK}:{sMSK+1}]")
    I(f"s_bitset0_b64 s[{sMSK}:{sMSK+1}], s10")
    I(f"s_lshl_b32 s11, s{sCI}, 6")
    I(f"s_add_u32 s{sCUR}, s10, s11")
    I(f"s_mul_i32 s10, s{sB}, {RS}")
    I(f"s_lshl_b32 s11, s{sCUR}, 7")
    I("s_add_u32 s10, s10, s11")
    I(f"s_lshl_b32 s11, s{sB}, 8")
    I(f"s_add_u32 s11, s11, s{sCUR}")
    I(f"s_lshl_b32 s11, s11, 2")
    I(f"s_add_u32 s11, s11, {WS_HDR}")
    I(f"v_mov_b32 v{t0}, 0")
    I(f"buffer_load_ubyte v{t1}, v{t0}, s[{sWS}:{sWS+3}], s10 offen offset:15 sc1")
    I(f"buffer_load_dword v{t2}, v{t0}, s[{sWS}:{sWS+3}], s11 offen sc1")
    I("s_waitcnt vmcnt(0)")
    I(f"v_readfirstlane_b32 s10, v{t1}")
    I(f"v_readfirstlane_b32 s11, v{t2}")
    I("s_nop 3")
    I(f"s_and_b32 s{sST}, s11, 0xffff")
    I("s_lshr_b32 s11, s11, 16")
    I(f"s_lshr_b32 s{sCNT}, s10, 2")
    I(f"s_sub_u32 s{sCNT}, s10, s{sCNT}")
    I(f"s_cmp_gt_u32 s10, {QCAP}")
    I(f"s_cselect_b32 s{sCNT}, s11, s{sCNT}")
    I(f"s_lshr_b32 s10, s{sSKIP}, 2")
    I(f"s_sub_u32 s{sR0}, s{sSKIP}, s10")
    L("K2_BATCH")
    I("s_barrier")
    I(f"v_and_b32 v{t0}, 7, v{lane}")
    I(f"v_mul_u32_u24 v{t1}, {LCAP*4}, v{t0}")
    I(f"v_add_u32 v{t1}, {R0}, v{t1}")
    I(f"v_lshlrev_b32 v{t0}, 2, v{t0}")
    I(f"ds_write_b32 v{t0}, v{t1} offset:{CNT}")
    I(f"v_add_u32 v{t0}, s{sR0}, v{tid}")
    I(f"s_mul_i32 s10, s{sB}, {RS}")
    I(f"s_lshl_b32 s11, s{sCUR}, 7")
    I("s_add_u32 s10, s10, s11")
    I(f"v_mul_u32_u24 v{t2}, {KQ}, v{t0}")
    I(f"v_lshrrev_b32 v{t2}, 16, v{t2}")
    I(f"v_lshl_add_u32 v{t1}, v{t2}, 2, s10")
    I(f"v_add_u32 v{t3}, {WS_EXT - 128}, v{t1}")
    I(f"v_cmp_lt_u32 vcc, 31, v{t2}")
    I(f"s_mul_i32 s11, s{sCUR}, {CH}")
    I(f"s_add_u32 s11, s11, s{sST}")
    I(f"v_cndmask_b32 v{t1}, v{t1}, v{t3}, vcc")
    I(f"v_or_b32 v{t3}, 12, v{t1}")
    I(f"v_and_b32 v{t4}, 3, v{t2}")
    I(f"v_add_u32 v{t3}, v{t3}, v{t4}")
    I(f"v_cmp_le_u32 vcc, {QCAP}, v{t2}")
    I(f"v_add_u32 v{t2}, s11, v{t0}")
    I(f"v_add_u32 v{t4}, {WS_XB}, v{t2}")
    I(f"v_cndmask_b32 v{t3}, v{t3}, v{t4}, vcc")
    I(f"v_lshlrev_b32 v{t2}, 2, v{t2}")
    I(f"v_add_u32 v{t2}, {WS_RECS}, v{t2}")
    I(f"v_cndmask_b32 v{t1}, v{t1}, v{t2}, vcc")
    I(f"s_add_u32 s10, s{sR0}, {SB}")
    I(f"s_min_u32 s10, s10, s{sCNT}")
    I(f"v_cmp_gt_u32 vcc, s10, v{t0}")
    I(f"v_mov_b32 v{t2}, 0x7ffffff0")
    I(f"s_mul_i32 s{sTMP}, s{sCUR}, {CH*32}")
    I(f"v_cndmask_b32 v{t1}, v{t2}, v{t1}, vcc")
    I(f"v_cndmask_b32 v{t3}, v{t2}, v{t3}, vcc")
    I(f"buffer_load_dword v{t1}, v{t1}, s[{sWS}:{sWS+3}], 0 offen sc1")
    I(f"buffer_load_ubyte v{t3}, v{t3}, s[{sWS}:{sWS+3}], 0 offen sc1")
    I("s_waitcnt lgkmcnt(0)")
    I("s_barrier")
    I("s_and_saveexec_b64 s[10:11], vcc")
    I("s_waitcnt vmcnt(0)")
    I(f"v_and_b32 v{t0}, 255, v{t1}")
    I(f"v_lshlrev_b32 v{t0}, 2, v{t0}")
    I(f"ds_read_b32 v{t0}, v{t0} offset:{MAP}")
    I(f"v_bfe_u32 v{t2}, v{t1}, 8, 8")
    I(f"v_and_b32 v{t3}, 15, v{t3}")
    I(f"v_lshl_or_b32 v{t3}, v{t3}, 8, v{t2}")
    I(f"v_mov_b32 v{t2}, 4")
    I(f"v_lshl_add_u32 v{t3}, v{t3}, 5, s{sTMP}")
    I("s_waitcnt lgkmcnt(0)")
    I(f"ds_add_rtn_u32 v{t0}, v{t0}, v{t2} offset:{CNT}")
    I("s_waitcnt lgkmcnt(0)")
    I(f"ds_write2st64_b32 v{t0}, v{t1}, v{t3} offset0:0 offset1:{(R1-R0)//256}")
    I("s_mov_b64 exec, -1")
    I("s_waitcnt lgkmcnt(0)")
    I("s_barrier")
    I(f"s_lshl_b32 s10, s{sW}, 2")
    I(f"v_mov_b32 v{t0}, s10")
    I(f"ds_read_b32 v{t0}, v{t0} offset:{CNT}")
    for i in range(8): I(f"v_mov_b32 v{vT2+i}, 0")
    listaddr(lane, t1, t2)
    I("s_waitcnt lgkmcnt(0)")
    I(f"v_readfirstlane_b32 s{sEND}, v{t0}")
    I("s_nop 3")
    pads(lane, t0, t1, t2)
    L("K2_LAST")
    I("s_branch K2_GO")

def regs_of(tok):
    tok = tok.strip()
    m = re.fullmatch(r"v\[(\d+):(\d+)\]", tok)
    if m: return list(range(int(m.group(1)), int(m.group(2)) + 1))
    m = re.fullmatch(r"v(\d+)", tok)
    if m: return [int(m.group(1))]
    return []
def parse(ins):
    op, _, rest = ins.partition(" ")
    ops = [o.strip().split(" ")[0] for o in rest.split(",")] if rest else []
    if op.startswith("v_mfma"):
        return "mfma", regs_of(ops[0]), regs_of(ops[1]) + regs_of(ops[2]), regs_of(ops[3])
    if op.startswith("v_smfmac"):
        return "mfma", regs_of(ops[0]), regs_of(ops[1]) + regs_of(ops[2]) + regs_of(ops[3]), regs_of(ops[0])
    if op.startswith("v_"):
        k = "trans" if op in ("v_exp_f32", "v_rcp_f32") else "valu"
        return k, regs_of(ops[0]), sum((regs_of(o) for o in ops[1:]), []), []
    if op.startswith("ds_read"):
        return "ds", regs_of(ops[0]), regs_of(ops[1]), []
    if op.startswith("buffer_load"):
        return "vm", [], regs_of(ops[0]) + regs_of(ops[1]), []
    return "other", [], [], []
def check_body(body):
    seq = [b for b in body if not b.endswith(":")]
    for skip_dma in (False, True):
        s2 = []
        sk = False
        for b in body:
            if skip_dma and b.startswith("s_cbranch_scc0 K2_ND"):
                s2.append(b); sk = True; continue
            if b.startswith("K2_ND"): sk = False
            if b.endswith(":") or sk: continue
            s2.append(b)
        seq = s2 * 3
        last = {}
        lastc = {}
        pend = []
        for i, ins in enumerate(seq):
            k, d, s, c = parse(ins)
            m = re.search(r"lgkmcnt\((\d+)\)", ins)
            if m:
                n = int(m.group(1))
                while len(pend) > n: pend.pop(0)
            pr = set(sum(pend, []))
            for r in d + s + c:
                assert r not in pr or i < len(s2), f"pending LDS reg v{r} used by {ins} @{i}"
            for r in s + c + d:
                if r not in last: continue
                pk, pi = last[r]; dist = i - pi - 1
                if pk == "mfma":
                    if k == "mfma" and r in c and r not in s: need = 0
                    elif k == "mfma" and r in d and r not in s: need = 0
                    else: need = 12
                elif pk in ("valu", "trans") and k == "mfma" and r in s + c: need = 2
                elif pk == "trans" and k in ("valu", "mfma", "ds", "vm") and r in s: need = 1
                else: need = 0
                assert dist >= need, f"hazard {pk}->{k} v{r} dist {dist} need {need}: {ins} @{i}"
            if k in ("valu", "trans"):
                for r in d:
                    if r in lastc: assert i - lastc[r] - 1 >= 7, f"srcC WAR {ins}"
            for r in c: lastc[r] = i
            for r in d: last[r] = (k, i)
            if k == "ds":
                pend.append(d); assert len(pend) <= 15

hdr = open("/code/" + NAME + ".s.ref").read().split("\n")
for l in hdr:
    if l.startswith("; Override"): break
    out.append(l)
LEAK = opt("leak", "")
if LEAK:
    out.append(f"; @launch kernel={KN} grid=(256,1,1) block=(512,1,1) lds={K2_LDS}")
    out.append("; @launch kernel=spin_kernel grid=(1,1,1) block=(64,1,1) lds=0")
else: out.append(f"; @launch grid=(256,1,1) block=(512,1,1) lds={K2_LDS}")
emit('.amdgcn_target "amdgcn-amd-amdhsa--gfx950"\n.text')
k2()
KL = [(KN, 256, 102)]
if LEAK:
    kind, k = LEAK[:3], int(LEAK[3:])
    emit(".globl spin_kernel\n.p2align 8\n.type spin_kernel,@function\nspin_kernel:")
    I("s_memrealtime s[12:13]")
    I("s_cmp_lg_u32 s2, 0")
    I("s_cbranch_scc1 SP_END")
    I("s_load_dwordx2 s[4:5], s[0:1], 88")
    I("s_waitcnt lgkmcnt(0)")
    I(f"s_add_u32 s4, s4, {WS_TS + 0x100000}")
    I("s_addc_u32 s5, s5, 0")
    I("v_lshlrev_b32 v1, 5, v0")
    for j in range(31):
        I(f"global_load_dword v{2+j}, v1, s[4:5]")
        I(f"global_load_dword v{34+j}, v1, s[4:5] offset:{4*(k%8)}")
        I("v_add_u32 v1, 2048, v1")
    I("s_waitcnt vmcnt(0)")
    I("v_readfirstlane_b32 s6, v2")
    I("s_nop 1")
    I("s_sub_u32 s6, s6, 1000")
    for j in range(31):
        I(f"v_subrev_u32 v{2+j}, s6, v{2+j}")
        I(f"v_subrev_u32 v{34+j}, s6, v{34+j}")
    op = {"max": "max_u32", "min": "min_u32", "avg": "add_u32", "now": "max_u32"}[kind]
    for j in range(1, 31):
        I(f"v_min_u32 v2, v2, v{2+j}")
        I(f"v_{op} v34, v34, v{34+j}")
    I("s_nop 1")
    I("v_readlane_b32 s8, v2, 0")
    I("v_readlane_b32 s9, v34, 0")
    for l in range(1, 64):
        I(f"v_readlane_b32 s10, v2, {l}")
        I(f"v_readlane_b32 s11, v34, {l}")
        I("s_min_u32 s8, s8, s10")
        I(f"s_{op} s9, s9, s11")
    if kind == "avg":
        I(f"s_mul_hi_u32 s9, s9, {(1 << 32) // (31*64)}")
    if kind == "now":
        I("s_sub_u32 s8, s12, s6")
        I("s_sub_u32 s6, s8, s9")
    else: I("s_sub_u32 s6, s9, s8")
    I("s_lshl_b32 s6, s6, 2")
    I("s_min_u32 s6, s6, 30000")
    I("s_memrealtime s[8:9]")
    I("s_waitcnt lgkmcnt(0)")
    L("SP_L")
    I("s_memrealtime s[10:11]")
    I("s_waitcnt lgkmcnt(0)")
    I("s_sub_u32 s7, s10, s8")
    I("s_cmp_lt_u32 s7, s6")
    I("s_cbranch_scc1 SP_L")
    L("SP_END")
    I("s_endpgm")
    KL.append(("spin_kernel", 72, 16))
emit('.section .rodata,"a"')
for name, vg, sg in KL:
    emit(f""".p2align 6
.amdhsa_kernel {name}
  .amdhsa_next_free_vgpr {vg}
  .amdhsa_next_free_sgpr {sg}
  .amdhsa_accum_offset {vg}
  .amdhsa_group_segment_fixed_size 0
  .amdhsa_kernarg_size 96
  .amdhsa_user_sgpr_count 2
  .amdhsa_user_sgpr_kernarg_segment_ptr 1
  .amdhsa_system_sgpr_workgroup_id_x 1
.end_amdhsa_kernel""")
path = sys.argv[1] if len(sys.argv) > 1 else "/code/" + NAME + ".s"
open(path, "w").write("\n".join(out) + "\n")
print("wrote", path, len(out), "lines; lds", K2_LDS)
```

```python
import sys, re, math

NAME = "standalone__edge_featured_mpnn_gatedgcn__graph"
OPT = dict(kv.split("=") for kv in sys.argv[2:])
def opt(k, d):
    v = OPT.get(k)
    if v is None: return d
    return type(d)(v)

N, E = 50000, 800000
NCH, CH = 256, 3125
NB, BN = 256, 196
CELLB = 128
RS = 257 * CELLB
WS_EXT = NB * RS
QCAP = 48
KQ = 87382
LROW = 4 * (QCAP + 4)
WS_RECS = 0x1100000
WS_XB = 0x1500000
WS_HDR = 0x1600000
WS_EPOCH = 0x1700000
WS_USED = WS_EPOCH + 128
WI_U, WI_B, WI_V, WI_A, WI_C = 0, 8192, 16384, 24576, 32768
TMASK = 0x00f0f0f0
T0 = opt("t0", 12500)
LPH = (N - T0 + 2) // 3
SOFF = LPH - T0
PHM = (1 << 30) // LPH
assert 0 <= SOFF and N + SOFF <= 65536 and ((N - 1 + SOFF) * PHM) >> 30 <= 3
LOG2E = 1.4426950408889634
import struct
def f2u(f): return struct.unpack("<I", struct.pack("<f", f))[0]

out = []
def emit(s=""):
    for l in s.strip("\n").split("\n"):
        out.append(l.rstrip())
def I(s): out.append("    " + s)
def L(s): out.append(s + ":")
def C(s): out.append("    ; " + s)

def srd(d, lo, hi, size, add=None):
    if add is None:
        I(f"s_mov_b32 s{d}, s{lo}")
        I(f"s_mov_b32 s{d+1}, s{hi}")
    else:
        I(f"s_add_u32 s{d}, s{lo}, {add}")
        I(f"s_addc_u32 s{d+1}, s{hi}, 0")
    I(f"s_mov_b32 s{d+2}, {size}")
    I(f"s_mov_b32 s{d+3}, 0x20000")

def wave_scan(v, fill=None, half=False):
    def gap():
        if fill and len(fill) >= 2:
            I(fill.pop(0)); I(fill.pop(0))
        else: I("s_nop 1")
    for sh in (1, 2, 4, 8):
        gap()
        I(f"v_add_u32_dpp v{v}, v{v}, v{v} row_shr:{sh} row_mask:0xf bank_mask:0xf bound_ctrl:0")
    gap()
    I(f"v_add_u32_dpp v{v}, v{v}, v{v} row_bcast:15 row_mask:0xa bank_mask:0xf")
    if half: return
    gap()
    I(f"v_add_u32_dpp v{v}, v{v}, v{v} row_bcast:31 row_mask:0xc bank_mask:0xf")

TS = opt("ts", 0)
WS_TS = 0x3000000
SMAP = {1: {0: 0, 'd': 1, 'i': 2, 'w': 3, 2: 4, 5: 5, 6: 6, 7: 7},
        5: {0: 0, 'w': 1, 2: 2, 'a': 3, 'b': 4, 'c': 5, 3: 6, 7: 7},
        6: {0: 0, 'p': 1, 'q': 2, 'd': 3, 'i': 4, 'o': 5, 'k': 6, 7: 7},
        8: {0: 0, 'i': 1, 'w': 2, 1: 3, 2: 4, 3: 5, 7: 7},
        10: {0: 0, 'd': 1, 'i': 2, 'o': 3, 'A': 4, 'w': 5, 2: 6, 7: 7},
        9: {0: 0, 'q': 1, 'd': 2, 'i': 3, 'w': 4, 2: 5, 3: 6, 7: 7},
        7: {0: 0, 'k': 1, 'w': 2, 1: 3, 's': 4, 2: 5, 3: 6, 7: 7}}
def stamp(i):
    if TS in SMAP:
        i = SMAP[TS].get(i)
        if i is None: return
    elif isinstance(i, str): return
    if TS == 3:
        if i not in (0, 5, 6, 7): return
        I("s_memtime s[98:99]")
        I("s_waitcnt lgkmcnt(0)")
        I(f"s_mov_b32 s{88+{5:1,6:2,0:3,7:4}[i]}, s98")
    if TS:
        I("s_memrealtime s[98:99]" if TS != 2 else "s_memtime s[98:99]")
        I("s_waitcnt lgkmcnt(0)")
        I(f"s_mov_b32 s{88+i}, s98")
def stamp_out(n, wslo, swave, nw, off, v):
    if not TS: return
    I("s_waitcnt vmcnt(0)")
    stamp(7)
    I("s_mov_b64 exec, 1")
    I(f"s_mul_i32 s87, s2, {nw}")
    I(f"s_add_u32 s87, s87, s{swave}")
    I("s_lshl_b32 s87, s87, 5")
    I(f"s_add_u32 s87, s87, {WS_TS + off}")
    I(f"v_mov_b32 v{v}, s87")
    for i in range(n):
        I(f"v_mov_b32 v{v+1}, s{88+i}")
        I(f"global_store_dword v{v}, v{v+1}, s[{wslo}:{wslo+1}] offset:{4*i}")
K1_LD = opt("k1ld", "nt")
def pol(p): return (" " + p.replace("_", " ")) if p else ""

SM1 = opt("sm1", 1)
TAB, ZROW, CNT, FLAG, HIST, MAP = 0, 2048, 2112, 2176, 2304, 6400
T1B = 7424
LCAP = 672
XMAX = 64
LMAX = LCAP - 128
R0 = T1B + 2304
R1 = R0 + 8 * LCAP * 4
assert R1 % 256 == 0 and R0 % 256 == 0
WL = R0
WU = R1 + 8 * LCAP * 4
WA = WU + 8192
XO = WA + 8192
STG = XO + 8 * 4160
SLOT = 5184
WST = SLOT
IMG = 91136
assert IMG >= XO and STG + 8 * WST <= IMG + 320 * LROW
K2_LDS = IMG + 320 * LROW
assert K2_LDS <= 163840, K2_LDS

vWB, vWV, vWC, vAT = 0, 32, 64, 72
vACC = 88
vX, vE, vT1, vT2 = 152, 168, 172, 180
vP, vQ, vR = 188, 204, 220
vQD = 236
vR1 = 240
vCP, vCH, vAX, vAE, vC1, vC2, vARX, vART, vARP = 241, 242, 243, 244, 245, 246, 247, 248, 249
vL1 = 250
vARE = 251
vT = 252
DEN = lambda ft: vACC + 32 * ft
NUM = lambda ft: vACC + 32 * ft + 16
def rr(a, n): return f"v[{a}:{a+n-1}]"
def mfma(d, a, b, c=None):
    return f"v_mfma_f32_32x32x16_bf16 {rr(d,16)}, {rr(a,4)}, {rr(b,4)}, " + ("0" if c is None else rr(c, 16))

K2_XP = opt("k2x", "")
K2_EP = opt("k2e", "")
K2_CP = opt("k2c", "")
K2_OP = opt("k2o", "sc1")

sW, sB = 3, 12
sX, sEP, sWS, sOUT = 16, 20, 24, 28
sCEL, sWI = 32, 36
sM = 40
sT, sN, sSTG, s128, sL, sSKIP, sMORE = 72, 73, 74, 75, 76, 77, 78
sCI, sCUR, sR0, sCNT, sST, sMSK = 79, 80, 81, 82, 83, 84
sTMP = 86
sWIN = 96

def dma_tile(par):
    r = []
    for i in range(4):
        r.append(f"s_add_u32 m0, s{sSTG}, {par*SLOT + i*1040}")
        r.append(f"v_mad_u32_u16 v{vQD+i}, v{vQD+i}, s{s128}, v{vCP} op_sel:[1,0,0,0]")
        r.append(f"buffer_load_dwordx4 v{vQD+i}, s[{sX}:{sX+3}], 0 offen{pol(K2_XP)} lds")
    r.append(f"s_add_u32 m0, s{sSTG}, {par*SLOT + 4160}")
    r.append(f"v_add_u32 v{vR1}, v{vR1}, v{vCH}")
    r.append(f"buffer_load_dwordx4 v{vR1}, s[{sEP}:{sEP+3}], 0 offen{pol(K2_EP)} lds")
    return r

def valu_stream(G, H, n=16):
    s = []
    ex = [(f"v_exp_f32 v{G+i}, v{G+i}", 8) for i in range(n)]
    ad = [(f"v_add_f32 v{G+i}, 1.0, v{G+i}", 4) for i in range(n)]
    rc = [(f"v_rcp_f32 v{G+i}, v{G+i}", 8) for i in range(n)]
    mu = [(f"v_mul_f32 v{H+i}, v{G+i}, v{H+i}", 4) for i in range(n)]
    for i in range(n + 4):
        if i < n: s.append(ex[i])
        if 0 <= i - 2 < n: s.append(ad[i-2])
        if 0 <= i - 4 < n: s.append(rc[i-4])
    return s + mu

def interleave(valu, mf, extra, pos, spacing=opt('sp', 28)):
    res = []
    cum = 0; k = 0
    for ins, c in valu:
        while k < len(mf) and cum >= pos[k] * spacing:
            res.extend(extra.get(('b', k), []))
            res.append(mf[k])
            res.extend(extra.get(('a', k), []))
            k += 1
        res.append(ins); cum += c
    assert k == len(mf)
    return res

def g_mfmas(D, ft):
    m = [mfma(D, vE, vWC + 4*ft)]
    if SM1:
        m += [mfma(D, vX + 4*q, vWB + 16*ft + 4*q, D) for q in range(4)]
        m += [f"v_smfmac_f32_32x32x32_bf16 {rr(D,16)}, {rr(vT1,4)}, {rr(vAT+8*ft,8)}, v{vT1+4}"]
        return m
    m += [mfma(D, vT1 + 4*s, vAT + 8*ft + 4*s, D) for s in range(2)]
    m += [mfma(D, vX + 4*q, vWB + 16*ft + 4*q, D) for q in range(4)]
    return m
def h_mfmas(D, ft):
    return [mfma(D, vX + 4*q, vWV + 16*ft + 4*q, None if q == 0 else D) for q in range(4)]
vIX = vT1 + 5
def s_mfmas(acc, src):
    return [f"v_smfmac_f32_32x32x32_bf16 {rr(acc,16)}, {rr(vT2+4*s,4)}, {rr(src+8*s,8)}, v{vIX}" for s in range(2)]
def t1_reads():
    return [f"ds_read_b128 {rr(vT1,4)}, v{vL1} offset:{T1B}", f"ds_read_b32 v{vT1+4}, v{vL1} offset:{T1B+16}"]

ORD = opt("ord", "n0 n1 e h0 h1 a h2 h3 x0 x1 x2 x3 d0 d1").replace("_", " ").split()
POS = [float(x) / 28 for x in opt("pos", "0_27_54_81_108_135_162_189_216_243_270_297_328_356").split("_")]
def phase_ops(G, Gn, ft):
    n = s_mfmas(NUM(1-ft), vQ); d = s_mfmas(DEN(ft), G); h = h_mfmas(vQ, ft); g = g_mfmas(Gn, 1-ft)
    m = {"n0": n[0], "n1": n[1], "d0": d[0], "d1": d[1], "e": g[0], "a": g[5]}
    for q in range(4): m[f"h{q}"] = h[q]; m[f"x{q}"] = g[1+q]
    return [m[k] for k in ORD]
K = lambda k: ORD.index(k)
def phaseA(par):
    o = par * 128
    ex = {}
    ex[('a', K("n0"))] = [f"ds_read_u8 v{vQD+u}, v{vART} offset:{o + 64*(u>>1) + 16*(u&1)}" for u in range(4)] + \
                         [f"ds_read_u8 v{vL1}, v{vARP} offset:{o + 128}"]
    ex[('a', K("h1"))] = ["s_waitcnt lgkmcnt(0)"] + [f"v_lshl_add_u32 v{vQD+u}, v{vQD+u}, 6, v{vC2}" for u in range(4)] + \
                         [f"v_lshl_add_u32 v{vL1}, v{vL1}, 6, v{vC1}"]
    ex[('a', K("a"))] = [f"ds_read_b64_tr_b16 v[{vT2+2*u}:{vT2+2*u+1}], v{vQD+u}" for u in range(4)] + t1_reads()
    ex[('a', K("x0"))] = [f"ds_read_b128 {rr(vQD,4)}, v{vARX} offset:{o + 2*128}",
                          f"ds_read_b32 v{vR1}, v{vARE} offset:{o + 2*128}",
                          f"s_add_u32 s{sT}, s{sT}, 1"]
    ex[('b', K("d0"))] = ["s_waitcnt lgkmcnt(0)"]
    return interleave(valu_stream(vP, vQ), phase_ops(vP, vR, 0), ex, POS)

def phaseB(par):
    ex = {}
    ex[('a', K("n0"))] = ["s_waitcnt vmcnt(0)", f"ds_read_b128 {rr(vE,4)}, v{vAE}"]
    if TS == 4:
        ex[('a', K("n0"))] = ["s_memtime s[94:95]", "s_waitcnt vmcnt(0) lgkmcnt(0)", "s_memtime s[98:99]", "s_waitcnt lgkmcnt(0)", "s_sub_u32 s98, s98, s94",
                              "s_add_u32 m0, s72, 15", "s_nop 0", "v_writelane_b32 v255, s98, m0", f"ds_read_b128 {rr(vE,4)}, v{vAE}"]
    for q in range(4):
        ex[('a', K(f"h{q}"))] = [f"ds_read_b128 {rr(vX+4*q,4)}, v{vAX} offset:{16*q}"]
    ex[('b', K("e"))] = [f"s_waitcnt lgkmcnt({sum(K(f'h{q}') < K('e') for q in range(4))})"]
    for q in range(4): ex[('b', K(f"x{q}"))] = [f"s_waitcnt lgkmcnt({sum(K(f'h{p}') < K(f'x{q}') for p in range(q+1, 4))})"]
    dk = opt("dk", "x3")
    ex[('a', K(dk))] = ([] if dk == "x3" or K(dk) > K("x3") else ["s_waitcnt lgkmcnt(0)"]) + \
                       [f"s_cmp_lt_i32 s{sT}, s{sN1}", f"s_cbranch_scc0 K2_ND_{par}"] + dma_tile(0) + [f"K2_ND_{par}:"]
    return interleave(valu_stream(vR, vQ), phase_ops(vR, vP, 1), ex, POS)

def fixnops(seq):
    res = []; last = {}; pos = 0
    for ins in seq:
        k, d, s_, c = parse(ins)
        need = 0
        for r in s_ + c + d:
            if r not in last: continue
            pk, pi, pop = last[r]
            if pk == "mfma":
                if k == "mfma" and r not in s_: w = 0 if pop == ins.split()[0] or r not in c else 10
                else: w = 12
            elif pk in ("valu", "trans") and k == "mfma" and r in s_ + c: w = 2
            elif pk == "trans" and k != "trans" and r in s_: w = 1
            else: w = 0
            need = max(need, w - (pos - pi - 1))
        if need > 0:
            res.append(f"s_nop {need - 1}"); pos += need
        for r in d: last[r] = (k, pos, ins.split()[0])
        res.append(ins); pos += 1
    return res
def last_tile(ng):
    n = 4 * ng
    keep = lambda ks: [k for k in ks if ng > 2 or k not in ("N1", "d1")]
    ops = dict(zip(ORD, phase_ops(vP, vR, 0)))
    oa = keep(ORD)
    ex = {}
    ex[('a', 0)] = [f"ds_read_u8 v{vQD+u}, v{vART} offset:{64*(u>>1) + 16*(u&1)}" for u in range(4)]
    ex[('a', oa.index("h1"))] = ["s_waitcnt lgkmcnt(0)"] + [f"v_lshl_add_u32 v{vQD+u}, v{vQD+u}, 6, v{vC2}" for u in range(4)]
    ex[('a', oa.index("a"))] = [f"ds_read_b64_tr_b16 v[{vT2+2*u}:{vT2+2*u+1}], v{vQD+u}" for u in range(4)]
    ex[('b', oa.index("d0"))] = ["s_waitcnt lgkmcnt(0)"]
    pa = [POS[ORD.index(k)] * ng / 4 * (1 if k[0] != "d" or ng > 2 else 1.04) for k in oa]
    a = interleave(valu_stream(vP, vQ, n), [ops[k] for k in oa], ex, pa)
    ops = dict(zip(ORD, phase_ops(vR, vP, 1)))
    ob = ["n0"] + (["n1"] if ng > 2 else []) + ["h0", "h1", "h2", "h3", "d0"] + (["d1"] if ng > 2 else [])
    pb = [x * ng / 4 / 28 for x in ([0, 36, 72, 108, 144, 180, 328, 356] if ng > 2 else [0, 40, 80, 120, 160, 340])]
    b = interleave(valu_stream(vR, vQ, n), [ops[k] for k in ob], {}, pb)
    return fixnops(a + b + s_mfmas(NUM(1), vQ)[:2 if ng > 2 else 1])

sF0, sF1, sEND = 13, 14, 15
sXT = 97
sN1 = 38
sSB = 37
SBK = opt('sbk', 2)
sNUL = 39
sTH = 4
PRIO = opt("prio", 1)

def listaddr(lane, t0, t3):
    I(f"v_lshrrev_b32 v{t0}, 3, v{lane}")
    I(f"v_lshl_add_u32 v{vARX}, v{t0}, 4, s{sL}")
    I(f"v_and_b32 v{t0}, 31, v{lane}")
    I(f"v_lshl_add_u32 v{vARP}, v{t0}, 2, s{sL}")
    I(f"v_lshrrev_b32 v{t3}, 1, v{lane}")
    I(f"v_lshl_add_u32 v{vARE}, v{t3}, 2, s{sL}")
    I(f"v_add_u32 v{vARE}, {R1-R0}, v{vARE}")
    I(f"v_and_b32 v{t0}, 44, v{lane}")
    I(f"v_add_u32 v{vART}, s{sL}, v{t0}")

vOWN = vT + 1
def pads(lane, t0, t1, t2):
    W2 = f"offset0:0 offset1:{(R1-R0)//256}"
    I(f"v_mov_b32 v{t2}, 0xffff0000")
    I(f"v_or_b32 v{t1}, s{sNUL}, v{t2}")
    I(f"v_mov_b32 v{t2}, 0x7fffff00")
    I(f"v_lshl_add_u32 v{t0}, v{lane}, 2, s{sEND}")
    I(f"s_sub_u32 s{sN}, s{sEND}, s{sL}")
    I(f"ds_write2st64_b32 v{t0}, v{t1}, v{t2} {W2}")
    I(f"ds_write2st64_b32 v{t0}, v{t1}, v{t2} offset0:1 offset1:{(R1-R0)//256 + 1}")
    ntiles(False)
def ntiles(sub=True):
    if sub: I(f"s_sub_u32 s{sN}, s{sEND}, s{sL}")
    I(f"s_add_u32 s{sN}, s{sN}, 127")
    I(f"s_lshr_b32 s{sN}, s{sN}, 7")
    I(f"s_sub_i32 s{sN1}, s{sN}, 1")

KN = NAME + "_kernel"
P_HIST, P_HDR = MAP, WU
H0 = 2000
P_EIMG = IMG
P_CIMG = P_EIMG + 64 * LROW
assert P_CIMG + 256 * LROW <= K2_LDS
sTAG, sEPN, sSPIN = 36, 100, 101
def k2():
    emit(f"""
.globl {KN}
.p2align 8
.type {KN},@function
{KN}:""")
    I("s_cmp_ge_u32 s2, 256")
    I("s_cbranch_scc1 K2_END")
    stamp(0)
    KA = sM
    I(f"s_load_dwordx4 s[{KA+4}:{KA+7}], s[0:1], 16")
    I(f"s_load_dwordx2 s[8:9], s[0:1], 88")
    I(f"s_load_dwordx4 s[{KA}:{KA+3}], s[0:1], 0")
    I(f"s_load_dwordx8 s[{KA+8}:{KA+15}], s[0:1], 32")
    I(f"s_load_dwordx4 s[{KA+16}:{KA+19}], s[0:1], 64")
    tid, lane = 255, 254
    CPF = opt("cpf", 192)
    if CPF:
        I(f"s_getpc_b64 s[{sTMP}:{sTMP+1}]")
        L("K2_PC")
        I(f"v_lshlrev_b32 v{vT}, 7, v0")
        I(f"v_min_u32 v{vT}, K2_LAST-K2_PC, v{vT}")
        I(f"v_cmp_gt_u32 vcc, {CPF}, v0")
        I("s_cbranch_vccz K2_NOCPF")
        I(f"global_load_dword v{vT+1}, v{vT}, s[{sTMP}:{sTMP+1}]")
        L("K2_NOCPF")
    vC = vACC
    vA = vACC + 16
    hh = vACC + 28
    vRK = vR
    vMIN = vQ + 8
    vTM = vQ + 10
    u = lambda i: vP + i
    k4, ecb, hda, one, l16 = vE, vE + 1, vE + 2, vE + 3, vT1
    pD, pS, pH, pK, pA, pB, pI, pW = 8, 16, 24, 32, 40, 48, 56, 64
    I(f"v_mov_b32 v{tid}, v0")
    I(f"v_lshrrev_b32 v{u(0)}, 6, v0")
    I(f"v_and_b32 v{lane}, 63, v0")
    I(f"v_readfirstlane_b32 s7, v{u(0)}")
    I("s_and_b32 s10, s2, 7")
    I("s_lshr_b32 s11, s2, 3")
    I("s_lshl_b32 s10, s10, 5")
    I(f"s_add_u32 s{sB}, s10, s11")
    I(f"s_mul_i32 s13, s{sB}, {CH*4}")
    I(f"v_lshlrev_b32 v{u(1)}, 4, v0")
    I(f"v_lshlrev_b32 v1, 3, v0")
    I(f"v_lshlrev_b32 v2, 2, v0")
    I(f"v_mov_b32 v3, 0")
    I(f"v_and_b32 v4, 0x3fc, v2")
    I(f"ds_write_b32 v4, v3 offset:{P_HIST}")
    ASYM = opt("asym", 10)
    I(f"s_and_b32 s10, s7, 3")
    I(f"s_lshr_b32 s{sW}, s7, 2")
    I(f"s_lshl1_add_u32 s{sW}, s10, s{sW}")
    I(f"s_xor_b32 s{sW}, s{sW}, 1")
    I(f"s_movk_i32 s14, 8192")
    I(f"s_movk_i32 s15, 12288")
    I("s_waitcnt lgkmcnt(0)")
    stamp('p')
    WSB = opt("wsb", 0) << 20
    if WSB:
        I(f"s_add_u32 s8, s8, {WSB}")
        I("s_addc_u32 s9, s9, 0")
    vq = []
    def younger(tag): return len(vq) - 1 - max(i for i, t in enumerate(vq) if t == tag)
    q0, q1 = 64, 68
    srd(q0, KA+6, KA+7, CH*4, "s13")
    srd(q1, KA+4, KA+5, CH*4, "s13")
    for r_, q_ in ((pD, q0), (pS, q1)):
        I(f"buffer_load_dwordx4 {rr(r_,4)}, v{u(1)}, s[{q_}:{q_+3}], 0 offen{pol(K1_LD)}")
        I(f"buffer_load_dwordx2 {rr(r_+4,2)}, v1, s[{q_}:{q_+3}], s14 offen{pol(K1_LD)}")
        I(f"buffer_load_dword v{r_+6}, v2, s[{q_}:{q_+3}], s15 offen{pol(K1_LD)}")
        vq += ["D" if r_ == pD else "S"] * 3
        if r_ == pD and opt("db", 1): I("s_barrier")
    I(f"s_add_u32 s10, s8, {WS_EPOCH}")
    I("s_addc_u32 s11, s9, 0")
    I(f"s_load_dword s{sEPN}, s[10:11], 0")
    if not opt("db", 1): I("s_barrier")
    I(f"v_lshrrev_b32 v1, 3, v0")
    I(f"v_lshlrev_b32 v{hda}, 2, v1")
    I(f"v_and_b32 v{u(9)}, 7, v0")
    I(f"v_and_b32 v5, 16, v0")
    I(f"v_lshlrev_b32 v5, 1, v5")
    I(f"v_xor_b32 v5, v5, v{u(1)}")
    I(f"v_lshlrev_b32 v{l16}, 4, v{lane}")
    I(f"v_and_b32 v{vCP}, 16, v{lane}")
    I(f"v_lshlrev_b32 v{vCP}, 2, v{vCP}")
    vXS, vXA = vR + 14, vR + 15
    I(f"v_xor_b32 v{vXS}, v{vCP}, v{l16}")
    I(f"v_and_b32 v{vCP}, 0x70, v{vXS}")
    if SOFF: I(f"v_subrev_u32 v{vCP}, {SOFF * 128}, v{vCP}")
    srd(sX, KA, KA+1, N*128)
    WLPOS = len(out)
    mark = len(out)
    OFF = opt("off", 20)
    lo0, hi0, lo1, hi1 = sT, sN, sMSK, sMSK + 1
    I(f"s_lshr_b32 s10, s{sW}, 1")
    I(f"s_mul_i32 s10, s10, 49")
    I(f"s_bitcmp1_b32 s{sW}, 0")
    I(f"s_cselect_b32 s{lo0}, {OFF}, -4")
    I(f"s_cselect_b32 s{hi0}, 28, {OFF - 17}")
    I(f"s_cselect_b32 s{lo1}, 45, {OFF}")
    I(f"s_add_i32 s{lo0}, s{lo0}, s10")
    I(f"s_add_i32 s{hi0}, s{hi0}, s10")
    I(f"s_add_i32 s{lo1}, s{lo1}, s10")
    I(f"s_add_i32 s{hi1}, s{lo0}, 32")
    I(f"s_max_i32 s{sWIN}, s{lo0}, 0")
    I(f"s_cmp_eq_u32 s{sW}, 7")
    I(f"s_cselect_b32 s{lo1}, {BN}, s{lo1}")
    I(f"s_cselect_b32 s{hi1}, {BN}, s{hi1}")
    I(f"v_lshrrev_b32 v{u(5)}, 5, v{lane}")
    def wloads():
        srd(q0, KA+10, KA+11, 8192)
        I(f"buffer_load_dwordx4 {rr(pW,4)}, v5, s[{q0}:{q0+3}], 0 offen"); vq.append("B")
        srd(q1, KA+12, KA+13, 2048)
        I(f"buffer_load_dwordx4 {rr(pW+4,4)}, v5, s[{q1}:{q1+3}], 0 offen"); vq.append("B")
        I(f"s_lshl_b32 s10, s7, 10")
        for kp, off in ((KA+8, WI_A), (KA+16, WI_V), (KA+14, WI_U)):
            I(f"s_mov_b32 s{q0}, s{kp}")
            I(f"s_mov_b32 s{q0+1}, s{kp+1}")
            I(f"s_add_u32 m0, s10, {WL + off}")
            I("s_nop 0")
            I(f"buffer_load_dwordx4 v5, s[{q0}:{q0+3}], 0 offen lds"); vq.append("W")
    def xloads():
        I(f"s_mul_i32 s10, s{sB}, {BN}")
        I(f"s_add_u32 s10, s10, s{sWIN}")
        I(f"s_lshl_b32 s10, s10, 7")
        I(f"s_mul_i32 s11, s7, 4160")
        for i in range(4):
            I(f"s_add_u32 m0, s11, {XO + i*1040}")
            I(f"s_add_u32 s{sTMP}, s10, {i*1024}")
            I(f"buffer_load_dwordx4 v{vXS}, s[{sX}:{sX+3}], s{sTMP} offen{pol(opt('xo', ''))} lds")
    srd(sEP, KA+2, KA+3, E*32)
    srd(sOUT, KA+18, KA+19, N*128)
    srd(sWS, 8, 9, WS_USED)
    I(f"v_lshrrev_b32 v{u(6)}, 5, v{tid}")
    I(f"v_and_b32 v{u(7)}, 15, v{tid}")
    I(f"v_cmp_eq_u32 vcc, v{u(6)}, v{u(7)}")
    I(f"v_and_b32 v{u(6)}, 16, v{tid}")
    I(f"v_mov_b32 v{u(7)}, 0x3f80")
    I(f"v_lshlrev_b32 v{u(7)}, v{u(6)}, v{u(7)}")
    I(f"v_cndmask_b32 v{u(7)}, 0, v{u(7)}, vcc")
    I(f"v_lshlrev_b32 v{u(6)}, 2, v{tid}")
    I(f"v_mov_b32 v{u(8)}, 0")
    I(f"ds_write_b32 v{u(6)}, v{u(7)}")
    if SM1:
        I(f"v_bfe_u32 v{u(7)}, v{tid}, 3, 1")
        I(f"v_and_b32 v{u(13)}, 7, v{tid}")
        I(f"v_lshl_add_u32 v{u(7)}, v{u(7)}, 2, v{u(13)}")
        I(f"v_lshrrev_b32 v{u(12)}, 6, v{tid}")
        I(f"v_cmp_eq_u32 vcc, v{u(7)}, v{u(12)}")
        I(f"v_bfe_u32 v{u(12)}, v{tid}, 4, 2")
        I(f"v_mov_b32 v{u(7)}, 0x3f80")
        I(f"v_cndmask_b32 v{u(7)}, 0, v{u(7)}, vcc")
        I(f"v_cmp_lt_u32 vcc, 3, v{u(13)}")
        I(f"v_mul_u32_u24 v{u(12)}, 0x5555, v{u(12)}")
        I(f"v_and_b32 v{u(13)}, 60, v{u(6)}")
        I(f"v_cndmask_b32 v{u(7)}, v{u(7)}, v{u(12)}, vcc")
        I(f"ds_write_b32 v{u(6)}, v{u(7)} offset:{T1B}")
        I(f"ds_write_b32 v{u(13)}, v{u(8)} offset:{T1B + 2048}")
    I(f"ds_write_b32 v{u(6)}, v{u(8)} offset:{ZROW}")
    I(f"ds_write2st64_b32 v{u(6)}, v{u(8)}, v{u(8)} offset0:{HIST//256} offset1:{HIST//256 + 8}")
    I(f"s_movk_i32 s{s128}, 128")
    I(f"s_mul_i32 s{sSTG}, s{sW}, {WST}")
    I(f"s_add_u32 s{sSTG}, s{sSTG}, {STG}")
    I(f"s_movk_i32 s{sSKIP}, {QCAP}")
    I(f"s_add_u32 s{sNUL}, s{sWIN}, 32")
    I(f"s_lshl_b32 s11, s{sWIN}, 6")
    I(f"s_mov_b32 s{sXT}, 0")
    I(f"v_bfe_u32 v{u(6)}, v{lane}, 4, 1")
    I(f"v_and_b32 v{vCH}, 1, v{lane}")
    I(f"v_lshlrev_b32 v{vCH}, 4, v{vCH}")
    I(f"v_lshlrev_b32 v{vC1}, 5, v{u(5)}")
    I(f"v_subrev_u32 v{vC1}, s11, v{vC1}")
    I(f"v_and_b32 v{u(7)}, 3, v{lane}")
    I(f"v_lshlrev_b32 v{u(7)}, 3, v{u(7)}")
    I(f"v_lshl_add_u32 v{vC2}, v{u(6)}, 5, v{u(7)}")
    I(f"v_subrev_u32 v{vC2}, s11, v{vC2}")
    I(f"v_mul_u32_u24 v{u(8)}, 130, v{u(7)}")
    I(f"v_and_b32 v{u(6)}, 28, v{lane}")
    I(f"v_lshl_add_u32 v{u(8)}, v{u(6)}, 5, v{u(8)}")
    I(f"v_bfe_u32 v{u(6)}, v{lane}, 3, 1")
    I(f"v_xor_b32 v{u(6)}, v{u(6)}, v{u(5)}")
    I(f"v_lshl_add_u32 v{u(8)}, v{u(6)}, 6, v{u(8)}")
    I(f"v_add_u32 v{vAX}, s{sSTG}, v{u(8)}")
    I(f"v_and_b32 v{u(6)}, 31, v{lane}")
    I(f"v_lshl_add_u32 v{u(6)}, v{u(6)}, 1, v{u(5)}")
    I(f"v_lshl_add_u32 v{vAE}, v{u(6)}, 4, s{sSTG}")
    I(f"v_add_u32 v{vAE}, 4160, v{vAE}")
    I(f"s_mul_i32 s{sL}, s{sW}, {LCAP*4}")
    I(f"s_add_u32 s{sL}, s{sL}, {R0}")
    listaddr(lane, u(6), u(7))
    def ownaddr(d, lab, t):
        I(f"v_and_b32 v{d}, 31, v{lab}")
        I(f"v_bfe_u32 v{t}, v{d}, 1, 1")
        I(f"v_xor_b32 v{t}, v{t}, v{u(5)}")
        I(f"v_lshlrev_b32 v{t}, 6, v{t}")
        I(f"v_lshl_add_u32 v{t}, v{d}, 7, v{t}")
        I(f"v_lshrrev_b32 v{d}, 3, v{d}")
        I(f"v_lshl_add_u32 v{d}, v{d}, 4, v{t}")
        I(f"v_add_u32 v{d}, s10, v{d}")
    I(f"s_mul_i32 s10, s7, 4160")
    I(f"s_add_u32 s10, s10, {XO}")
    ownaddr(u(14), lane, u(6))
    I(f"v_lshrrev_b32 v{u(6)}, 1, v{lane}")
    I(f"v_xor_b32 v{u(6)}, v{u(6)}, v{lane}")
    I(f"v_and_b32 v{u(6)}, 4, v{u(6)}")
    I(f"v_mul_u32_u24 v{u(6)}, 3, v{u(6)}")
    I(f"v_xor_b32 v{u(6)}, v{u(6)}, v{lane}")
    ownaddr(vXA, u(6), u(7))
    I(f"v_mov_b32 v{vIX}, 0xdddd")
    I(f"v_lshlrev_b32 v{k4}, 2, v{u(9)}")
    vEB = vQ + 4
    I(f"v_mul_u32_u24 v{vEB}, {CH*8}, v{hda}")
    for i in range(1, 4):
        I(f"v_add_u32 v{vEB+i}, {64*i*CH*32}, v{vEB}")
    I(f"v_mov_b32 v{one}, 4")
    I(f"v_mov_b32 v{ecb}, 1")
    I(f"v_and_b32 v{u(11)}, 31, v{lane}")
    I(f"v_add_u32 v{u(11)}, s{sWIN}, v{u(11)}")
    I(f"v_lshlrev_b32 v{u(12)}, 4, v{u(11)}")
    I(f"v_lshl_add_u32 v{u(12)}, v{u(5)}, 3, v{u(12)}")
    for i in range(4): I(f"v_mov_b64 v[{vT2+2*i}:{vT2+2*i+1}], 0")
    I(f"s_lshl_b32 s{sEND}, s{sW}, 2")
    I(f"v_mov_b32 v{vMIN}, s{sEND}")
    I(f"v_lshlrev_b32 v{vMIN+1}, 2, v{u(11)}")
    static = out[mark:]; del out[mark:]
    WLP = opt("wl", 2)
    if WLP == 0: wloads()
    XP_ = opt("xp", 6)
    SP = opt("sp0", 0)
    SPN = opt("spn", 1000)
    if SP:
        out.extend(static[:SPN]); static = static[SPN:]
    c1, c2, c3 = 60, 61, 62
    pm = 78
    pX = 23
    xb = lambda i: (23, 23, 23, 23, 31, 31, 39)[i]
    I(f"s_mov_b32 s{c1}, 85599")
    I(f"s_mov_b32 s{c2}, {-BN & 0xffffffff}")
    I(f"s_movk_i32 s{c3}, {H0}")
    I(f"v_mov_b32 v7, {KQ}")
    I(f"s_mov_b32 s10, {SOFF << 16}")
    I(f"v_lshl_add_u32 v{pI}, v{lane}, 10, s10")
    for i in range(1, 4): I(f"v_add_u32 v{pI+i}, {i << 8}, v{pI}")
    I(f"v_and_b32 v{pI+4}, 127, v{tid}")
    I(f"v_lshl_add_u32 v{pI+4}, v{pI+4}, 9, s10")
    I(f"v_add_u32 v{pI+5}, 256, v{pI+4}")
    I(f"v_lshl_add_u32 v{pI+6}, v{lane}, 8, s10")
    I(f"v_lshrrev_b32 v23, 6, v{tid}")
    I(f"v_lshrrev_b32 v31, 7, v{tid}")
    I(f"v_add_u32 v31, 8, v31")
    I(f"v_mov_b32 v39, 12")
    I(f"v_cmp_gt_u32 s[{pm}:{pm+1}], {CH - 3072}, v{tid}")
    I(f"s_mov_b32 s11, {RS}")
    I(f"v_lshlrev_b32 v3, 4, v{u(9)}")
    I(f"v_mad_u32_u24 v4, v1, s11, v3")
    I(f"v_mul_u32_u24 v6, {LROW // 4}, v1")
    I(f"v_lshl_add_u32 v6, v{u(9)}, 2, v6")
    I(f"v_lshlrev_b32 v3, 2, v6")
    I(f"v_add_u32 v3, {P_CIMG}, v3")
    I(f"v_add_u32 v6, {P_EIMG}, v6")
    I(f"v_mov_b32 v{vTM}, {TMASK:#x}")
    I(f"v_mov_b32 v15, 0x0f0f0f")
    X0 = (LROW // 16) * H0
    sSO = sCI
    def cload(i):
        so = "0" if i == 0 else f"s{sSO+i-1}"
        I(f"buffer_load_dwordx4 {rr(vC+4*i,4)}, v{u(1)}, s[{sCEL}:{sCEL+3}], {so} offen sc1")
    def cloads():
        if opt("dly", 0): I(f"s_sleep {opt('dly', 0)}")
        stamp('w')
        for i in range(4): cload(i); vq.append("C")
    def prod(idx):
        n = len(idx)
        for i in idx: I(f"v_mul_u32_u24 v{pB+i}, s{c1}, v{pD+i}")
        for i in idx: I(f"v_lshrrev_b32 v{pB+i}, 24, v{pB+i}")
        for i in idx:
            I(f"v_lshl_add_u32 v{pH+i}, v{pB+i}, 2, s{c3}")
            I(f"ds_add_rtn_u32 v{pK+i}, v{pH+i}, v7 offset:{P_HIST - H0}")
        for i in idx:
            I(f"v_mad_i32_i24 v{pD+i}, v{pB+i}, s{c2}, v{pD+i}")
            I(f"v_or_b32 v{pD+i}, v{pD+i}, v{pI+i}")
        for j, i in enumerate(idx):
            I(f"s_waitcnt lgkmcnt({n - 1})")
            I(f"v_lshrrev_b32 v{pK+i}, 16, v{pK+i}")
            I(f"v_min_u32 v{pA+i}, {QCAP}, v{pK+i}")
            I(f"v_mad_u32_u24 v{pA+i}, v{pH+i}, {LROW // 16}, v{pA+i}")
            I(f"v_lshlrev_b32 v{pB+i}, 2, v{pA+i}")
            I(f"ds_write_b8 v{pA+i}, v{xb(i)} offset:{P_EIMG - X0}")
    def prod2(idx):
        for i in idx:
            I(f"v_lshl_add_u32 v{pS+i}, v{pS+i}, 16, v{pD+i}")
            I(f"ds_write_b32 v{pB+i}, v{pS+i} offset:{P_CIMG - 4*X0}")
    if WLP == 1: wloads()
    stamp('q')
    I(f"s_waitcnt vmcnt({younger('D')})")
    stamp('d')
    prod(range(6))
    I(f"s_cmp_lg_u32 s7, 0")
    I("s_cbranch_scc1 K1_NO7")
    I(f"s_mov_b64 exec, s[{pm}:{pm+1}]")
    I("s_waitcnt lgkmcnt(0)")
    prod([6])
    I(f"s_waitcnt vmcnt({younger('S')})")
    prod2([6])
    I("s_mov_b64 exec, -1")
    L("K1_NO7")
    if WLP == 2: wloads()
    I(f"s_waitcnt vmcnt({younger('S')})")
    prod2(range(6))
    I(f"s_lshl_b32 s15, s{sB}, 7")
    sST_ = sCEL
    srd(sST_, 8, 9, 511*RS + CELLB, "s15")
    I("s_waitcnt lgkmcnt(0)")
    I(f"s_add_u32 s{sEPN}, s{sEPN}, 1")
    I(f"s_and_b32 s10, s{sEPN}, 15")
    I(f"s_and_b32 s11, s{sEPN}, 0xf0")
    I(f"s_mul_i32 s{sTAG}, s10, 0x1010")
    I(f"s_lshl_b32 s11, s11, 16")
    I(f"s_xor_b32 s{sTAG}, s{sTAG}, 0xf000")
    I(f"s_or_b32 s{sTAG}, s{sTAG}, s11")
    I(f"s_mov_b32 s{sSPIN}, {opt('spin', 300000)}")
    I("s_barrier")
    stamp('i')
    oC, oE, oH, oA = vACC, vACC + 16, vACC + 20, vACC + 24
    I(f"ds_read_b128 {rr(oA,4)}, v{l16} offset:{P_HIST}")
    for i in range(4):
        I(f"ds_read_u16 v{oH+i}, v{hda} offset:{P_HIST + 256*i + 2}")
        I(f"ds_read_b32 v{oE+i}, v6 offset:{16*LROW*i}")
        I(f"ds_read_b128 {rr(oC+4*i,4)}, v3 offset:{64*LROW*i}")
    I("s_waitcnt lgkmcnt(12)")
    I(f"v_max3_u32 v1, v{oA}, v{oA+1}, v{oA+2}")
    I(f"v_max_u32 v1, v1, v{oA+3}")
    I(f"v_cmp_le_u32 vcc, {(QCAP + 1) << 16}, v1")
    I("s_mov_b32 s10, 0")
    I("s_cbranch_vccnz K1_OVF")
    L("K1_OUT")
    for i in range(4):
        r = oC + 4*i
        I(f"s_waitcnt lgkmcnt({9 - 3*i})")
        I(f"v_lshl_or_b32 v{oH+i}, v{oH+i}, 24, s{sTAG}")
        I(f"v_and_or_b32 v{r+3}, v{oE+i}, v15, v{oH+i}")
        I(f"buffer_store_dwordx4 {rr(r,4)}, v4, s[{sST_}:{sST_+3}], s10 offen sc1"); vq.append("O")
        I(f"s_add_u32 s10, s10, {64*RS}")
    I(f"v_max3_u32 v1, v{oH}, v{oH+1}, v{oH+2}")
    I(f"v_max_u32 v1, v1, v{oH+3}")
    I(f"v_cmp_le_u32 vcc, {33 << 24}, v1")
    I("s_cbranch_vccnz K1_EXT")
    L("K1_EXTR")
    stamp('o')
    if TS == 10:
        I("s_waitcnt vmcnt(0)")
        stamp('A')
    if opt("bar", 0): I("s_barrier")
    out.extend(static)
    I(f"s_mul_i32 s10, s{sB}, {RS}")
    srd(sCEL, 8, 9, NCH*CELLB, "s10")
    for k in (1, 2, 3):
        I(f"s_movk_i32 s{sSO+k-1}, {64*CELLB*k}")
    CP = opt("cp", 2)
    if CP == 0: cloads()
    I(f"s_mov_b32 s10, {f2u(-LOG2E):#x}")
    I(f"s_waitcnt vmcnt({younger('B')})")
    for i in range(8):
        I(f"v_lshlrev_b32 v{vAT+2*i}, 16, v{pW+i}")
        I(f"v_and_b32 v{vAT+2*i+1}, 0xffff0000, v{pW+i}")
    for i in range(16): I(f"v_mul_f32 v{vAT+i}, s10, v{vAT+i}")
    for i in range(8): I(f"v_cvt_pk_bf16_f32 v{pW+i}, v{vAT+2*i}, v{vAT+2*i+1}")
    I(f"ds_write_b128 v{u(1)}, {rr(pW,4)} offset:{WL + WI_B}")
    I(f"s_cmp_ge_u32 s7, 2")
    I("s_cbranch_scc1 K1_NOWC")
    I(f"ds_write_b128 v{u(1)}, {rr(pW+4,4)} offset:{WL + WI_C}")
    L("K1_NOWC")
    w0, w1, wc0, wc1, xa_ = vT1 + 1, vT1 + 2, vT1 + 3, vT1 + 4, vT
    I(f"v_bfe_u32 v{w0}, v{lane}, 2, 2")
    I(f"v_lshlrev_b32 v{w0}, 7, v{w0}")
    I(f"v_lshl_add_u32 v{w0}, v{vCH}, 2, v{w0}")
    I(f"v_and_b32 v{w1}, 16, v{lane}")
    I(f"v_and_b32 v{wc0}, 2, v{lane}")
    I(f"v_lshl_add_u32 v{w1}, v{wc0}, 2, v{w1}")
    I(f"v_and_b32 v{wc0}, 8, v{lane}")
    I(f"v_lshl_add_u32 v{w1}, v{wc0}, 2, v{w1}")
    I(f"v_add_u32 v{w0}, v{w0}, v{w1}")
    I(f"v_lshl_add_u32 v{wc0}, v{u(5)}, 10, v{w0}")
    I(f"v_lshl_add_u32 v{w0}, v{u(5)}, 12, v{w0}")
    I(f"v_xor_b32 v{w1}, 32, v{w0}")
    I(f"v_xor_b32 v{wc1}, 32, v{wc0}")
    def wtr(reg, img, ft, s_, c=False):
        ad = (wc0, wc1)[ft] if c else (w0, w1)[ft]
        return [f"ds_read_b64_tr_b16 {rr(reg+2*h_,2)}, v{ad} offset:{WL + img + 1024*s_ + 512*h_}" for h_ in range(2)]
    I(f"s_lshl_b32 s10, s7, 10")
    I(f"s_and_b32 s11, s7, 4")
    I(f"s_mul_i32 s11, s11, {8 - 1024}")
    I(f"s_add_u32 s11, s11, s10")
    I(f"v_xor_b32 v{xa_}, s11, v{w0}")
    I(f"s_waitcnt vmcnt({0 if opt('ack', 1) else younger('W')}) lgkmcnt(0)")
    I("s_barrier")
    if CP == 1: cloads()
    for h_ in range(2):
        I(f"ds_read_b64_tr_b16 {rr(vAT+2*h_,2)}, v{xa_} offset:{WL + WI_U + 512*h_}")
        I(f"ds_read_b64_tr_b16 {rr(vAT+4+2*h_,2)}, v{xa_} offset:{WL + WI_A + 512*h_}")
    I(f"v_add_u32 v{xa_}, s10, v{l16}")
    rest = []
    for reg, img in ((vWB, WI_B), (vWC, WI_C), (vWV, WI_V)):
        for ft in range(2):
            if img == WI_C: rest += wtr(vWC + 4*ft, WI_C, ft, 0, True)
            else:
                for s_ in range(4): rest += wtr(reg + 16*ft + 4*s_, img, ft, s_)
    for x_ in rest[:8]: I(x_)
    rest = rest[8:]
    I("s_waitcnt lgkmcnt(8)")
    I(f"ds_write_b128 v{xa_}, {rr(vAT,4)} offset:{WU}")
    I(f"ds_write_b128 v{xa_}, {rr(vAT+4,4)} offset:{WA}")
    while rest:
        I("s_waitcnt lgkmcnt(8)")
        for x_ in rest[:6]: I(x_)
        rest = rest[6:]
    stamp('k')
    sPH = 5
    ROT = opt("rot", 1)
    I(f"s_mov_b32 s{sPH}, {85899 if ROT else PHM}")
    if ROT:
        assert SOFF == 0
        I(f"s_lshr_b32 s6, s{sB}, 5")
        I(f"s_mul_i32 s6, s6, {32 * BN * 85899}")
        I(f"s_sub_u32 s6, s6, {opt('rof', 0) * 85899}")
    if CP == 2: cloads()
    SW1 = "dst_sel:DWORD dst_unused:UNUSED_PAD src0_sel:DWORD src1_sel:WORD_1"
    def haddr(d, r):
        return [f"v_mul_u32_u24_sdwa v{d}, s{sPH}, v{r} {SW1}"] + ([f"v_subrev_u32 v{d}, s6, v{d}"] if ROT else []) + [f"v_alignbit_b32 v{d}, v{r}, v{d}, 28", f"v_and_b32 v{d}, 0xffc, v{d}"]
    def remain(d, r, k):
        I(f"v_sub_u32_sdwa v{d}, v{r}, v{k} dst_sel:DWORD dst_unused:UNUSED_PAD src0_sel:BYTE_3 src1_sel:DWORD")
    for i in range(4):
        L(f"K2_CHK{i}")
        I(f"s_waitcnt vmcnt({3 - i})")
        r = vC + 4*i
        I(f"v_bitop3_b32 v{u(0)}, v{r+3}, s{sTAG}, v{vTM} bitop3:0x28")
        I(f"v_cmp_ne_u32 vcc, 0, v{u(0)}")
        remain(u(0), r + 3, k4)
        hs = [haddr(vA+3*i+j, r+j) for j in range(3)]
        for j in range(3): I(hs[j][0])
        I(f"s_cbranch_vccnz K2_RETRY{i}")
        if i == 0: stamp(1)
        for j in range(3):
            m = sM + 2*(3*i+j)
            I(f"v_cmp_lt_i32 s[{m}:{m+1}], {j}, v{u(0)}")
        for st in range(1, len(hs[0])):
            for j in range(3): I(hs[j][st])
        for j in range(3):
            m = sM + 2*(3*i+j)
            I(f"s_mov_b64 exec, s[{m}:{m+1}]")
            I(f"ds_add_rtn_u32 v{vRK+3*i+j}, v{vA+3*i+j}, v{one} offset:{HIST}")
        I("s_mov_b64 exec, -1")
    I(f"v_max3_u32 v{u(0)}, v{vC+3}, v{vC+7}, v{vC+11}")
    I(f"v_max_u32 v{u(0)}, v{u(0)}, v{vC+15}")
    I(f"v_cmp_le_u32 vcc, {33 << 24}, v{u(0)}")
    sSEL = sM + 24
    for j in range(3): I(f"s_mov_b32 s{sSEL+j}, {0x0c0c0001 | (4 + j) << 8:#x}")
    I(f"s_mov_b32 s{sSEL+3}, 0x05040100")
    I("s_cbranch_vccnz K2_XT1")
    L("K2_XT1R")
    vEO = vX
    fill = []
    for i in range(4):
        fill.append(f"v_and_b32 v{vC+4*i+3}, 0x0f0f0f, v{vC+4*i+3}")
    for i in range(4):
        for j in range(3): fill.append(f"v_perm_b32 v{vEO+3*i+j}, v{vC+4*i+3}, v{vC+4*i+j}, s{sSEL+j}")
    for i in range(4):
        for j in range(3): fill.append(f"v_lshl_add_u32 v{vEO+3*i+j}, v{vEO+3*i+j}, 5, v{vEB+i}")
    EPF, XPF = opt("epf", 0), opt("xpf", 0)
    def epref(fill):
        dm = vT1 + 6
        if XPF:
            I(f"s_lshr_b32 s10, s2, 3")
            I(f"s_mul_i32 s10, s10, {XPF}")
            I(f"v_cmp_gt_u32 vcc, {XPF}, v{tid}")
            I(f"v_add_lshl_u32 v{dm}, v{tid}, s10, 7")
            I("s_and_b64 exec, exec, vcc")
            I("s_cbranch_execz K2_NOXPF")
            I(f"buffer_load_dword v{dm}, v{dm}, s[{sX}:{sX+3}], 0 offen")
            L("K2_NOXPF")
            I("s_mov_b64 exec, -1")
        while fill: I(fill.pop(0))
        I(f"s_mov_b32 s10, {(SOFF + opt('et', T0)) << 16:#x}")
        for s in range(12):
            m = sM + 2*s
            I(f"s_mov_b64 exec, s[{m}:{m+1}]")
            I(f"v_cmpx_gt_u32 vcc, s10, v{vC+4*(s//3)+s%3}")
            I(f"buffer_load_dword v{dm}, v{vEO+s}, s[{sEP}:{sEP+3}], 0 offen")
        I("s_mov_b64 exec, -1")
    if EPF == 1: epref(fill)
    MT, MTP = opt("mt", 0), opt("mtp", 0)
    def mtouch():
        dm = vT1 + 6
        I(f"s_mul_i32 s10, s{sB}, {CH*32}")
        for k in range((MT + 511) // 512):
            n = min(512, MT - 512*k)
            I(f"v_min_u32 v{dm+1}, {n - 1}, v{tid}")
            I(f"v_lshlrev_b32 v{dm+1}, {opt('mts', 7)}, v{dm+1}")
            if n < 512:
                I(f"s_cmp_ge_u32 s7, {(n + 63) // 64}")
                I(f"s_cbranch_scc1 K2_NOMT{k}")
            I(f"buffer_load_dword v{dm}, v{dm+1}, s[{sEP}:{sEP+3}], s10 offen")
            if n < 512: L(f"K2_NOMT{k}")
            I(f"s_add_u32 s10, s10, 65536")
    if MT and MTP == 0: mtouch()
    stamp('s')
    I("s_waitcnt lgkmcnt(0)")
    I("s_barrier")
    stamp(2)
    c, p, tot, sc = u(0), u(4), u(8), u(9)
    own, ownn, owna = u(10), u(11), u(12)
    SD = "dst_sel:DWORD dst_unused:UNUSED_PAD src0_sel:WORD_0 src1_sel:WORD_0"
    for i in range(4):
        I(f"ds_read_b128 {rr(hh+4*i,4)}, v{l16} offset:{HIST + 1024*i}")
    I(f"ds_read_b64 v[{u(6)}:{u(7)}], v{owna} offset:{HIST}")
    def xearly():
        xloads()
    if XP_ == 6: xearly()
    if EPF == 2: epref(fill)
    if MT and MTP == 1: mtouch()
    for k in range(8):
        if fill: I(fill.pop(0))
    for i in range(4):
        I(f"s_waitcnt lgkmcnt({4 - i})")
        I(f"v_add_u32_sdwa v{c+i}, v{hh+4*i}, v{hh+4*i+1} {SD}")
        I(f"v_add_u32_sdwa v{hh+4*i}, v{hh+4*i+2}, v{hh+4*i+3} {SD}")
        I(f"v_add_u32 v{c+i}, v{c+i}, v{hh+4*i}")
    I(f"v_lshl_or_b32 v{p}, v{c+1}, 16, v{c}")
    I(f"v_lshl_or_b32 v{p+1}, v{c+3}, 16, v{c+2}")
    I("s_waitcnt lgkmcnt(0)")
    I(f"v_perm_b32 v{own}, v{u(7)}, v{u(6)}, s{sSEL+3}")
    for dp in ["row_shr:%d row_mask:0xf bank_mask:0xf bound_ctrl:0" % sh for sh in (1, 2, 4, 8)] + \
              ["row_bcast:15 row_mask:0xa bank_mask:0xf", "row_bcast:31 row_mask:0xc bank_mask:0xf"]:
        I(f"v_add_u32_dpp v{p}, v{p}, v{p} {dp}")
        I(f"v_add_u32_dpp v{p+1}, v{p+1}, v{p+1} {dp}")
        I(fill.pop(0) if fill else "s_nop 0")
    I(f"v_readlane_b32 s10, v{p}, 63")
    I(f"v_readlane_b32 s11, v{p+1}, 63")
    for i in range(4):
        I(f"v_lshlrev_b32_sdwa v{hh+i}, v{ecb}, v{p+(i>>1)} dst_sel:DWORD dst_unused:UNUSED_PAD src0_sel:DWORD src1_sel:WORD_{i&1}")
        I(f"v_sub_u32 v{c+i}, v{hh+i}, v{c+i}")
    b1, b2, b3 = 4, 5, 6
    I(f"s_and_b32 s{b1}, s10, 0xffff")
    I("s_lshr_b32 s10, s10, 16")
    I(f"s_add_u32 s{b2}, s{b1}, s10")
    I("s_and_b32 s10, s11, 0xffff")
    I(f"s_add_u32 s{b3}, s{b2}, s10")
    I("s_lshr_b32 s11, s11, 16")
    I(f"s_add_u32 s10, s{b3}, s11")
    for i, b in ((1, b1), (2, b2), (3, b3)):
        I(f"v_lshl_add_u32 v{c+i}, s{b}, 1, v{c+i}")
    KV = opt("kv", "1_4_3232_5") if SBK else ""
    if KV:
        klo, khi, kref, ksh = [int(x) for x in KV.split("_")]
        assert klo >= 1
        I(f"s_sub_i32 s{sSB}, {4*kref}, s10")
        I(f"s_ashr_i32 s{sSB}, s{sSB}, {ksh + 2}")
        I(f"s_max_i32 s{sSB}, s{sSB}, {klo}")
        I(f"s_min_i32 s{sSB}, s{sSB}, {khi}")
    I("s_lshr_b32 s11, s10, 5")
    I(f"s_add_u32 s11, s11, 16")
    I("s_and_b32 s11, s11, -32")
    if KV:
        I(f"s_cmp_ge_i32 s{sSB}, {opt('shk', 1)}")
        I(f"s_cselect_b32 s{sF0}, {ASYM + 32}, {ASYM}")
        I(f"s_sub_i32 s11, s11, s{sF0}")
    else: I(f"s_sub_i32 s11, s11, {ASYM + 32*opt('sh', 1)}")
    I("s_lshl_b32 s11, s11, 3")
    I("s_lshr_b32 s10, s10, 1")
    I(f"s_lshr_b32 s{sF0}, s{sW}, 1")
    I(f"s_mul_i32 s{sF0}, s{sF0}, s10")
    I(f"s_add_i32 s11, s11, s{sF0}")
    I(f"s_add_i32 s10, s10, s{sF0}")
    I(f"s_bitcmp1_b32 s{sW}, 0")
    I(f"s_cselect_b32 s{sEND}, s11, s{sF0}")
    I("s_cselect_b32 s10, s10, s11")
    I(f"s_mov_b32 s{sF0}, 0")
    I(f"s_mov_b32 s{sF1}, 0")
    for i in range(4):
        I(f"v_cmp_gt_i32 vcc, s{sEND}, v{c+i}")
        I(f"v_cmp_gt_i32 s[{sTMP}:{sTMP+1}], s10, v{c+i}")
        I("s_bcnt1_i32_b64 s11, vcc")
        I(f"s_add_u32 s{sF0}, s{sF0}, s11")
        I(f"s_bcnt1_i32_b64 s11, s[{sTMP}:{sTMP+1}]")
        I(f"s_add_u32 s{sF1}, s{sF1}, s11")
    I(f"s_max_i32 s{sF0}, s{sF0}, s{lo0}")
    I(f"s_min_i32 s{sF0}, s{sF0}, s{hi0}")
    I(f"s_max_i32 s{sF1}, s{sF1}, s{lo1}")
    I(f"s_min_i32 s{sF1}, s{sF1}, s{hi1}")
    I(f"v_cmp_le_u32 vcc, s{sF0}, v{ownn}")
    I(f"v_cmp_gt_u32 s[10:11], s{sF1}, v{ownn}")
    I("s_nop 0")
    I("s_and_b64 vcc, vcc, s[10:11]")
    I(f"v_cndmask_b32 v{own}, 0, v{own}, vcc")
    I(f"v_mov_b32 v{tot}, v{own}")
    wave_scan(tot, fill, half=True)
    for x_ in fill: I(x_)
    I(f"s_sub_u32 s{sTMP}, s{sL}, {R0}")
    I(f"v_readlane_b32 s10, v{tot}, 31")
    I(f"v_readlane_b32 s11, v{tot}, 63")
    I(f"v_sub_u32 v{tot}, v{tot}, v{own}")
    I(f"v_mov_b32 v{vOWN}, v{u(14)}")
    I(f"s_and_b32 s{sTH}, s10, 0xffff")
    I("s_lshr_b32 s10, s10, 16")
    I(f"s_add_u32 s{sTH+1}, s{sTH}, s10")
    I("s_and_b32 s10, s11, 0xffff")
    I(f"s_add_u32 s{sTH+2}, s{sTH+1}, s10")
    I("s_lshr_b32 s11, s11, 16")
    I(f"s_add_u32 s{sEND}, s{sTH+2}, s11")
    I(f"s_lshl_b32 s10, s{sTH}, 16")
    I(f"s_pack_ll_b32_b16 s11, s{sTH+1}, s{sTH+2}")
    I(f"s_pack_ll_b32_b16 s{sTMP}, s{sTMP}, s{sTMP}")
    I(f"s_add_u32 s10, s10, s{sTMP}")
    I(f"s_add_u32 s11, s11, s{sTMP}")
    I("s_mov_b32 exec_lo, vcc_lo")
    I("s_mov_b32 exec_hi, 0")
    I(f"v_add_u32 v{tot}, s10, v{tot}")
    I("s_mov_b32 exec_lo, 0")
    I("s_mov_b32 exec_hi, vcc_hi")
    I(f"v_add_u32 v{tot}, s11, v{tot}")
    I("s_mov_b64 exec, vcc")
    I(f"ds_write_b16 v{owna}, v{tot} offset:{HIST + 2}")
    I(f"ds_write_b16_d16_hi v{owna}, v{tot} offset:{HIST + 6}")
    I(f"ds_write_b32 v{vMIN+1}, v{vMIN} offset:{MAP}")
    I("s_mov_b64 exec, -1")
    I(f"v_mov_b32 v{sc}, {FLAG}")
    I(f"s_cmp_le_u32 s{sEND}, {LMAX*4}")
    I("s_cbranch_scc1 K2_LFIT")
    I(f"ds_write_b32 v{sc}, v{sc}")
    I(f"s_mov_b32 s{sEND}, 0")
    L("K2_LFIT")
    I(f"s_add_u32 s{sEND}, s{sEND}, s{sL}")
    for k in range(3):
        I(f"s_add_i32 s{sTH+k}, s{sTH+k}, {opt('tho', 64)}")
        I(f"s_lshr_b32 s{sTH+k}, s{sTH+k}, 7")
    if XP_ == 7: xearly()
    pads(lane, u(0), u(1), u(2))
    I(f"v_mov_b32 v{u(0)}, s{sEND}")
    I(f"ds_write_b32 v{vMIN}, v{u(0)} offset:{CNT}")
    I("s_waitcnt lgkmcnt(0)")
    stamp('a')
    I("s_barrier")
    stamp('b')
    I(f"ds_read_b64 v[{u(6)}:{u(7)}], v{sc}")
    for s in range(12):
        m = sM + 2*s
        I(f"s_mov_b64 exec, s[{m}:{m+1}]")
        I(f"ds_read_u16 v{vA+s}, v{vA+s} offset:{HIST + 2}")
    I("s_mov_b64 exec, -1")
    I(f"s_waitcnt lgkmcnt(0)")
    I(f"v_readfirstlane_b32 s{sST}, v{u(6)}")
    I(f"v_readfirstlane_b32 s{sCUR}, v{u(7)}")
    for s in range(12): I(f"v_add_u32 v{vA+s}, v{vA+s}, v{vRK+s}")
    I(f"s_cmp_gt_u32 s{sST}, {XMAX}")
    I("s_cbranch_scc1 K2_OVF")
    for s in range(12):
        m = sM + 2*s
        I(f"s_mov_b64 exec, s[{m}:{m+1}]")
        I(f"ds_write2st64_b32 v{vA+s}, v{vC+4*(s//3)+s%3}, v{vEO+s} offset0:{R0//256} offset1:{R1//256}")
    I("s_mov_b64 exec, -1")
    L("K2_PADS0")
    sERL = 1
    I(f"s_add_u32 s10, s{sSB}, 2")
    I(f"s_cmp_gt_u32 s{sN}, s10")
    I(f"s_cselect_b32 s{sERL}, s{sW}, 0")
    I("s_waitcnt lgkmcnt(0)")
    stamp('c')
    I("s_barrier")
    stamp(3)
    def first_tile():
        I(f"ds_read_b128 {rr(vQD,4)}, v{vARX}")
        I(f"ds_read_b32 v{vR1}, v{vARE}")
        I(f"ds_read_u8 v{vL1}, v{vARP}")
        I("s_waitcnt lgkmcnt(1)")
        for s in dma_tile(0): I(s)
    EM2 = opt("em2", 1)
    def newend(tag):
        if not EM2: I(f"s_mov_b32 s{sSB}, -1")
        I(f"s_cmp_eq_u32 s{sST}, 0")
        I(f"s_cbranch_scc1 K2_NE{tag}")
        I(f"s_lshl_b32 s10, s{sW}, 2")
        I(f"v_mov_b32 v{vT1+6}, s10")
        I(f"ds_read_b32 v{vT1+6}, v{vT1+6} offset:{CNT}")
        I("s_waitcnt lgkmcnt(0)")
        I(f"v_readfirstlane_b32 s{sEND}, v{vT1+6}")
        I("s_nop 3")
        ntiles()
        L(f"K2_NE{tag}")
    I(f"s_bitcmp1_b32 s{sERL}, 0")
    I("s_cbranch_scc1 K2_EARLY")
    I("s_waitcnt vmcnt(0)")
    I("s_branch K2_LATE0")
    L("K2_EARLY")
    first_tile()
    L("K2_LATE0")
    vWA = vACC
    I("s_waitcnt vmcnt(5)")
    I(f"s_cmp_lg_u32 s{sXT}, 0")
    I("s_cbranch_scc1 K2_XT2")
    L("K2_XT2R")
    for q in range(4): I(f"ds_read_b128 {rr(vX+4*q,4)}, v{vXA} offset:{16*q}")
    I(f"v_add_u32 v{l16}, 8192, v{l16}")
    for k in range(8): I(f"ds_read_b128 {rr(vWA+4*k,4)}, v{l16} offset:{WA - 8192 + 1024*k}")
    I(f"s_mov_b32 s10, {f2u(1e-6):#x}")
    I(f"s_mov_b32 s11, s10")
    I(mfma(NUM(1), vT2, vT2))
    for i in range(8): I(f"v_mov_b64 v[{DEN(1)+2*i}:{DEN(1)+2*i+1}], s[10:11]")
    for k in range(8):
        D = (vP, vQ)[k >> 2]
        I(f"s_waitcnt lgkmcnt({7 - k})")
        I(mfma(D, vX + 4*(k & 3), vWA + 4*k, None if k & 3 == 0 else D))
    I(mfma(NUM(0), vT2, vT2))
    for i in range(8): I(f"v_mov_b64 v[{DEN(0)+2*i}:{DEN(0)+2*i+1}], s[10:11]")
    I(f"s_mov_b32 s10, {f2u(-LOG2E):#x}")
    for i in range(32): I(f"v_mul_f32 v{vP+i}, s10, v{vP+i}")
    for i in range(16): I(f"v_cvt_pk_bf16_f32 v{vAT+i}, v{vP+2*i}, v{vP+2*i+1}")

    I(f"s_mov_b32 s{sCI}, -1")
    I(f"s_mov_b64 s[{sMSK}:{sMSK+1}], 0")
    I(f"s_mov_b32 s{sR0}, 0")
    I(f"s_mov_b32 s{sCNT}, 0")
    I(f"s_cmp_lg_u32 s{sCUR}, 0")
    I(f"s_cselect_b32 s{sMORE}, 1, 0")
    I(f"s_bitcmp1_b32 s{sERL}, 0")
    I("s_cbranch_scc1 K2_HAD0")
    I("s_barrier")
    newend("y")
    L("K2_GO")
    first_tile()
    L("K2_HAD0")
    I("s_waitcnt lgkmcnt(0)")
    I(f"v_lshl_add_u32 v{vL1}, v{vL1}, 6, v{vC1}")
    I(f"ds_read_b128 {rr(vQD,4)}, v{vARX} offset:128")
    I(f"ds_read_b32 v{vR1}, v{vARE} offset:128")
    for s in t1_reads(): I(s)
    I(mfma(vQ, vT2, vT2))
    stamp(4)
    I("s_waitcnt vmcnt(0)")
    stamp(5)
    I(f"ds_read_b128 {rr(vE,4)}, v{vAE}")
    for q in range(4):
        I(f"ds_read_b128 {rr(vX+4*q,4)}, v{vAX} offset:{16*q}")
    I("s_waitcnt lgkmcnt(0)")
    if EM2:
        for x_ in dma_tile(0): I(x_)
        I(f"s_cmp_lt_i32 s{sSB}, 0")
        I("s_cbranch_scc1 K2_B1")
        I("s_barrier")
        I(f"s_bitcmp1_b32 s{sERL}, 0")
        I(f"s_cselect_b32 s{sSB}, s{sSB}, -1")
        I("s_cbranch_scc0 K2_B1")
        newend("o")
        L("K2_B1")
        I(f"s_cmp_lg_u32 s{sN}, 0")
        I("s_cbranch_scc1 K2_NZ")
        I("s_waitcnt vmcnt(0)")
        I("s_branch K2_DONE")
        L("K2_NZ")
    else:
        I(f"s_cmp_eq_u32 s{sN}, 0")
        I("s_cbranch_scc1 K2_DONE")
    for s in g_mfmas(vP, 0):
        if s.startswith("v_smfmac"):
            if EM2: I("s_nop 9")
            else:
                for x_ in dma_tile(0): I(x_)
        I(s)
    I(f"s_mov_b32 s{sT}, 0")
    sEV = 87
    TPF, sPFT = opt("tpf", 0), 0
    LT = [int(x) for x in opt("lt", "1234")] if opt("lt", "1234") != "0" else []
    def prio_code(uid):
        return [f"s_cmp_ge_u32 s{sT}, s{sEV}", f"s_cbranch_scc1 K2_EV{uid}", f"K2_EVR{uid}:"]
    def next_event():
        I(f"s_mov_b32 s{sEV}, s{sN}")
        for r in [sTH, sTH+1, sTH+2] + ([sSB] if SBK else []) + ([sN1] if LT else []) + ([sPFT] if TPF else []):
            I(f"s_cmp_gt_i32 s{r}, s{sT}")
            I(f"s_cselect_b32 s10, s{r}, s{sEV}")
            I(f"s_min_u32 s{sEV}, s{sEV}, s10")
    YK = opt("yk", 2)
    if YK:
        I(f"s_sub_u32 s10, s{sN}, {YK - 1 if YK < 10 else 0}")
        I(f"s_bitcmp1_b32 s{sW}, 0")
        I(f"s_cselect_b32 s{sTH+2}, s{sTH+2}, s10")
    I("s_setprio 3")
    if TPF: I(f"s_sub_i32 s{sPFT}, s{sN}, {TPF}")
    next_event()
    tst = ["s_memrealtime s[98:99]", "s_waitcnt lgkmcnt(0)", "s_mov_b32 m0, s72", "s_nop 0", "v_writelane_b32 v255, s98, m0", "s_memtime s[98:99]", "s_waitcnt lgkmcnt(0)", "s_add_u32 m0, s72, 32", "s_nop 0", "v_writelane_b32 v255, s98, m0"] if TS == 4 else []
    body = tst + phaseA(0) + phaseB(0)
    body += prio_code(0)
    body += tst + phaseA(1) + phaseB(1)
    body += [f"v_add_u32 v{r}, 0x100, v{r}" for r in (vARX, vARP, vARE, vART)]
    body += [f"s_cmp_lt_u32 s{sT}, s{sEV}", f"s_cbranch_scc1 K2_LOOP"]
    check_body(body)
    DBG = opt("dbg", "")
    if "ell" in DBG:
        nb = []
        for b in body:
            if b.startswith("v_smfmac") and b.endswith(f"v{vIX}"): continue
            if b.startswith("v_smfmac") and "noA" in DBG: continue
            if b.startswith("ds_read_b64_tr") or b.startswith("ds_read_u8 v23") or b.startswith("v_lshl_add_u32 v23"): continue
            m = re.fullmatch(r"v_mul_f32 v(\d+), v(\d+), v\d+", b)
            if m:
                h, g = int(m.group(1)), int(m.group(2)); ft = 0 if g < vQ else 1; i = h - vQ
                nb.append(f"v_fmac_f32 v{NUM(ft)+i}, v{g}, v{h}")
                nb.append(f"v_add_f32 v{DEN(ft)+i}, v{DEN(ft)+i}, v{g}")
                continue
            nb.append(b)
        body = nb
    if "fl" in DBG:
        nb = []; cnt = 0
        for b in body:
            if b.startswith("ds_read_b128 v[172") or b.startswith("ds_read_b32 v176") or b.startswith("ds_read_u8 v250") or b.startswith("v_lshl_add_u32 v250"): continue
            m = re.fullmatch(r"v_add_f32 v(\d+), v(\d+), v(\d+)", b)
            if m:
                cnt += 1
                if cnt % 4 == 0:
                    k = (cnt // 4) % 4
                    nb.append(f"v_cvt_pk_bf16_f32 v{vT2+k}, v{m.group(1)}, v{int(m.group(1))+16}")
                    nb.append(f"ds_pk_add_bf16 v{vT1+7}, v{vT2+k} offset:{256*(cnt%64)//4}")
                    nb.append(f"ds_read_u16_d16_hi v{vAT+k}, v{vC1} offset:{16384 + 128*k}")
                    if k % 2: nb.append(f"v_add_u32 v{vT2+4}, v{vT2+5}, v{vC1}")
                    continue
            if b.startswith("s_waitcnt lgkmcnt"): b = "s_waitcnt lgkmcnt(0)" if "(0)" in b else b
            nb.append(b)
        body = [f"v_lshl_add_u32 v{vT1+7}, v{lane}, 2, s{sSTG}", f"v_subrev_u32 v{vT1+7}, 33280, v{vT1+7}", f"v_lshlrev_b32 v{vC1}, 1, v{lane}"] + nb
    if "drop" in DBG:
        n = int(DBG[DBG.index("drop") + 4:])
        body = [b for b in body if not (b.startswith("v_add_f32") and (int(b.split()[1][1:-1]) - vP) % 16 < n)]
    if "half" in DBG:
        body = [b for b in body if not (b.startswith("v_smfmac") and b.endswith(f"v{vIX}") and f"v[{vT2+4}:" in b)]
    if "nodma" in DBG: body = [b for b in body if not b.startswith("buffer_load")]
    emit(".p2align 6")
    L("K2_LOOP")
    for s in body:
        if s.endswith(":"): L(s[:-1])
        else: I(s)
    for uid in (1, 0):
        if uid == 0: L("K2_EV0")
        I(f"s_cmp_ge_u32 s{sT}, s{sN}")
        I("s_cbranch_scc1 K2_TAIL")
        if SBK:
            I(f"s_cmp_lg_u32 s{sT}, s{sSB}")
            I(f"s_cbranch_scc1 K2_SB{uid}")
            I("s_barrier")
            if EM2: I(f"s_mov_b32 s{sSB}, -1")
            else: newend(uid)
            L(f"K2_SB{uid}")
        for k in range(3):
            I(f"s_cmp_lg_u32 s{sT}, s{sTH+k}")
            I(f"s_cbranch_scc1 K2_PR{uid}_{k}")
            I(f"s_setprio {2-k}")
            L(f"K2_PR{uid}_{k}")
        if TPF:
            I(f"s_cmp_lg_u32 s{sT}, s{sPFT}")
            I(f"s_cbranch_scc1 K2_TP{uid}")
            I("s_getpc_b64 s[10:11]")
            L(f"K2_TPC{uid}")
            I(f"v_lshlrev_b32 v{vT1+7}, 7, v{lane}")
            I(f"v_min_u32 v{vT1+7}, K2_END-K2_TPC{uid}, v{vT1+7}")
            I(f"global_load_dword v{vT1+6}, v{vT1+7}, s[10:11]")
            L(f"K2_TP{uid}")
        if LT:
            I(f"s_cmp_eq_u32 s{sT}, s{sN1}")
            I(f"s_cbranch_scc1 K2_LT{uid}")
        next_event()
        I("s_branch K2_LOOP" if uid else "s_branch K2_EVR0")
    if LT:
        L("K2_LT0")
        I(f"v_add_u32 v{vART}, 128, v{vART}")
        L("K2_LT1")
        I(f"s_sub_u32 s10, s{sEND}, s{sL}")
        I(f"s_sub_u32 s10, s10, 4")
        I(f"s_and_b32 s10, s10, 127")
        for ng in LT[:-1]:
            I(f"s_cmp_lt_u32 s10, {32*ng}")
            I(f"s_cbranch_scc1 K2_LG{ng}")
        for ng in reversed(LT):
            if ng != LT[-1]: L(f"K2_LG{ng}")
            for x_ in last_tile(ng): I(x_)
            I("s_branch K2_DONE")
    L("K2_TAIL")
    for s in s_mfmas(NUM(1), vQ): I(s)
    L("K2_DONE")
    I(f"s_cmp_lg_u32 s{sMORE}, 0")
    I("s_cbranch_scc1 K2_SLOW")
    L("K2_EPI")
    stamp(6)
    I(f"v_lshlrev_b32 v{vT}, 4, v{lane}")
    for q in range(4):
        I(f"ds_read_b128 {rr(vX+4*q,4)}, v{vOWN} offset:{16*q}")
    for k in range(8):
        I(f"ds_read_b128 {rr(vWB+4*k,4)}, v{vT} offset:{WU + 1024*k}")
    I(f"v_and_b32 v{vQD+1}, 31, v{lane}")
    I(f"v_and_b32 v{vC1}, 32, v{lane}")
    I(f"v_mul_u32_u24 v{vC2}, 144, v{vQD+1}")
    I(f"v_lshrrev_b32 v{vQD+2}, 2, v{vC1}")
    I(f"v_lshl_add_u32 v{vQD+1}, v{vQD+1}, 6, v{vQD+2}")
    for s_ in range(2):
        I(f"ds_read2_b64 {rr(vT2+4*s_,4)}, v{vQD+1} offset0:{4*s_} offset1:{4*s_+2}")
    I("s_waitcnt lgkmcnt(10)")
    for i in range(16):
        I(f"v_lshlrev_b32 v{vWV+2*i}, 16, v{vX+i}")
        I(f"v_and_b32 v{vWV+2*i+1}, 0xffff0000, v{vX+i}")
    I(f"v_lshl_add_u32 v{vT+1}, v{vC1}, 1, v{vC2}")
    I(f"v_add_u32 v{vT+1}, s{sSTG}, v{vT+1}")
    I(f"s_sub_u32 s10, s{sF0}, s{sWIN}")
    I("s_mul_i32 s10, s10, 144")
    I(f"s_add_u32 s10, s10, s{sSTG}")
    I(f"v_lshrrev_b32 v{vQD}, 3, v{lane}")
    I(f"v_lshl_add_u32 v{vQD}, v{vQD}, 4, v{vT}")
    I(f"v_add_u32 v{vQD}, s10, v{vQD}")
    I(f"s_mul_i32 s10, s{sB}, {BN}")
    I(f"s_add_u32 s11, s10, s{sF1}")
    I(f"s_add_u32 s10, s10, s{sF0}")
    I(f"s_min_u32 s11, s11, {N}")
    I(f"s_min_u32 s10, s10, {N}")
    I("s_sub_u32 s11, s11, s10")
    I("s_lshl_b32 s10, s10, 7")
    I(f"s_add_u32 s{sOUT}, s{sOUT}, s10")
    I(f"s_addc_u32 s{sOUT+1}, s{sOUT+1}, 0")
    I(f"s_lshl_b32 s{sOUT+2}, s11, 7")
    for ft, D in ((0, vP), (1, vQ)):
        for q in range(4):
            I(f"s_waitcnt lgkmcnt({9 - 4*ft - q})")
            I(mfma(D, vWB+16*ft+4*q, vX+4*q, vWV+16*ft if q == 0 else D))
            for i in range(4):
                r = DEN(ft) + 4*q + i
                I(f"v_rcp_f32 v{r}, v{r}")
    I("s_waitcnt lgkmcnt(0)")
    for ft, D in ((0, vP), (1, vQ)):
        for i in range(16):
            I(f"v_mul_f32 v{NUM(ft)+i}, v{NUM(ft)+i}, v{DEN(ft)+i}")
        for i in range(8):
            I(f"v_cvt_pk_bf16_f32 v{DEN(ft)+i}, v{NUM(ft)+2*i}, v{NUM(ft)+2*i+1}")
        I(mfma(D, DEN(ft), vT2, D))
        I("s_nop 0")
        I(mfma(D, DEN(ft)+4, vT2+4, D))
    for q in range(4):
        for i in range(8*q, 8*q+8):
            I(f"v_max_f32 v{vP+i}, v{vP+i}, v{vWV+i}")
        for d in range(4):
            i = 4*q + d
            I(f"v_cvt_pk_bf16_f32 v{vR+i}, v{vP+2*i}, v{vP+2*i+1}")
        I(f"ds_write_b128 v{vT+1}, {rr(vR+4*q,4)} offset:{16*q}")
    for q in range(4):
        I(f"ds_read_b128 {rr(vX+4*q,4)}, v{vQD} offset:{8*144*q}")
    for q in range(4):
        I(f"s_waitcnt lgkmcnt({3-q})")
        I(f"buffer_store_dwordx4 {rr(vX+4*q,4)}, v{vT}, s[{sOUT}:{sOUT+3}], 0 offen offset:{1024*q}{pol(K2_OP)}")
    I(f"s_add_u32 s10, s2, s7")
    I("s_cmp_lg_u32 s10, 0")
    I("s_cbranch_scc1 K2_NOEP")
    I(f"v_mov_b32 v{vP}, {WS_EPOCH}")
    I(f"v_mov_b32 v{vP+1}, s{sEPN}")
    I(f"buffer_store_dword v{vP+1}, v{vP}, s[{sWS}:{sWS+3}], 0 offen sc1")
    L("K2_NOEP")
    if TS == 2 or opt("tsn", 0): I(f"s_mov_b32 s89, s{sN}")
    if TS == 8:
        I(f"s_sub_u32 s94, {opt('spin', 300000)}, s{sSPIN}")
        I(f"s_mul_i32 s94, s94, 100")
        I(f"s_add_u32 s94, s94, s88")
    if TS and WSB:
        I(f"s_sub_u32 s8, s8, {WSB}")
        I("s_subb_u32 s9, s9, 0")
    if TS: I(f"s_mov_b32 s{sW}, s7")
    if TS == 4:
        I("s_mov_b64 exec, -1")
        I(f"s_lshl_b32 s87, s2, 11")
        I(f"s_add_u32 s87, s87, {WS_TS + 0x180000}")
        I(f"s_lshl_b32 s86, s{sW}, 8")
        I("s_add_u32 s87, s87, s86")
        I(f"v_lshl_add_u32 v{vP}, v{lane}, 2, s87")
        I(f"global_store_dword v{vP}, v255, s[8:9]")
    stamp_out(8, 8, sW, 8, 0x100000, vP)
    L("K2_END")
    I("s_endpgm")
    def spin():
        if opt("slp", 0): I(f"s_sleep {opt('slp', 1)}")
        I(f"s_sub_u32 s{sSPIN}, s{sSPIN}, 1")
        I("s_cbranch_scc1 K2_END")
    for i in range(4):
        L(f"K2_RETRY{i}")
        spin()
        I("s_waitcnt vmcnt(0)")
        for j in range(i, 4):
            I(f"v_bitop3_b32 v{u(0)}, v{vC+4*j+3}, s{sTAG}, v{vTM} bitop3:0x28")
            for dp in ("quad_perm:[1,0,3,2]", "quad_perm:[2,3,0,1]", "row_half_mirror"):
                I("s_nop 1")
                I(f"v_or_b32_dpp v{u(0)}, v{u(0)}, v{u(0)} {dp} row_mask:0xf bank_mask:0xf")
            I(f"v_cmp_ne_u32 vcc, 0, v{u(0)}")
            I("s_and_b64 exec, exec, vcc")
            I(f"s_cbranch_execz K2_RT{i}{j}")
            cload(j)
            L(f"K2_RT{i}{j}")
            I("s_mov_b64 exec, -1")
        I("s_waitcnt vmcnt(0)")
        I(f"s_branch K2_CHK{i}")
    L("K1_EXT")
    I(f"s_mov_b32 s14, 0x0f0f0f0f")
    I(f"s_mov_b32 s15, s14")
    for i in range(4):
        I(f"ds_read_b32 v{oE+i}, v6 offset:{16*LROW*i + 32}")
        I(f"ds_read_b128 {rr(pD+8*i,4)}, v3 offset:{64*LROW*i + 128}")
    I("s_waitcnt lgkmcnt(0)")
    for i in range(4):
        I(f"v_cmp_le_u32 vcc, {33 << 24}, v{oH+i}")
        I(f"v_and_or_b32 v{pD+8*i+3}, v{oE+i}, v15, v{oH+i}")
        I("s_and_b64 exec, vcc, s[14:15]")
        I(f"s_cbranch_execz K1_EX{i}")
        I(f"buffer_store_dwordx4 {rr(pD+8*i,4)}, v4, s[{sST_}:{sST_+3}], s10 offen sc1")
        L(f"K1_EX{i}")
        I("s_mov_b64 exec, -1")
        I(f"s_add_u32 s10, s10, {64*RS}")
    I("s_branch K1_EXTR")
    L("K1_OVF")
    t = vAT
    for i in range(4):
        I(f"v_lshrrev_b32 v{t+i}, 16, v{oA+i}")
        I(f"v_lshrrev_b32 v{t+4}, 18, v{oA+i}")
        I(f"v_sub_u32 v{t+i}, v{t+i}, v{t+4}")
    I(f"v_add_u32 v{t+5}, v{t}, v{t+1}")
    I(f"v_add_u32 v{t+6}, v{t+5}, v{t+2}")
    I(f"v_add_u32 v{t+7}, v{t+6}, v{t+3}")
    I(f"v_mov_b32 v1, v{t+7}")
    wave_scan(1)
    I("s_nop 0")
    I(f"v_sub_u32 v{t+4}, v1, v{t+7}")
    I(f"v_add_u32 v{t+7}, v{t+4}, v{t+6}")
    I(f"v_add_u32 v{t+6}, v{t+4}, v{t+5}")
    I(f"v_add_u32 v{t+5}, v{t+4}, v{t}")
    for i in range(4):
        I(f"v_lshl_or_b32 v{t+4+i}, v{t+i}, 16, v{t+4+i}")
    I("s_waitcnt lgkmcnt(0)")
    I(f"ds_write_b128 v{l16}, {rr(t+4,4)} offset:{P_HDR}")
    for i in range(4): I(f"v_min_u32 v{oH+i}, 255, v{oH+i}")
    I(f"s_lshl_b32 s15, s{sB}, 2")
    I(f"s_add_u32 s15, s15, {WS_HDR}")
    srd(q0, 8, 9, NB*NCH*4, "s15")
    I(f"v_lshlrev_b32 v1, 12, v{lane}")
    for i in range(4):
        I(f"buffer_store_dword v{t+4+i}, v1, s[{q0}:{q0+3}], 0 offen offset:{1024*i} sc1")
    I(f"s_add_u32 s15, s13, {WS_RECS}")
    srd(q0, 8, 9, CH*4, "s15")
    I("s_lshr_b32 s15, s13, 2")
    I(f"s_add_u32 s15, s15, {WS_XB}")
    srd(q1, 8, 9, CH, "s15")
    I(f"v_cndmask_b32 v{pH+6}, v{pH}, v{pH+6}, s[{pm}:{pm+1}]")
    I(f"v_cndmask_b32 v{pK+6}, 0, v{pK+6}, s[{pm}:{pm+1}]")
    for i in range(7):
        I(f"ds_read_u16 v{pA+i}, v{pH+i} offset:{P_HDR - H0}")
    I("s_waitcnt lgkmcnt(0)")
    for i in range(7):
        I(f"v_lshrrev_b32 v1, 2, v{pK+i}")
        I(f"v_sub_u32 v1, v{pK+i}, v1")
        I(f"v_add_u32 v{pA+i}, v{pA+i}, v1")
        I(f"v_cmp_le_u32 vcc, {QCAP}, v{pK+i}")
        I(f"v_lshlrev_b32 v{pB+i}, 2, v{pA+i}")
        I("s_and_saveexec_b64 s[14:15], vcc")
        I(f"s_cbranch_execz K1_OV3_{i}")
        I(f"buffer_store_byte v{xb(i)}, v{pA+i}, s[{q1}:{q1+3}], 0 offen sc1")
        I(f"buffer_store_dword v{pS+i}, v{pB+i}, s[{q0}:{q0+3}], 0 offen sc1")
        L(f"K1_OV3_{i}")
        I("s_mov_b64 exec, -1")
    I("s_waitcnt vmcnt(0)")
    I("s_barrier")
    I("s_branch K1_OUT")
    xd, xa, xk, xrem, xeb, xad, xt = vACC + 44, vACC + 52, vACC + 58, vQ, vQ + 2, vX + 12, vX + 14
    L("K2_XT1")
    I(f"s_mov_b32 s{sXT}, 1")
    I(f"v_cmp_le_u32 vcc, {(QCAP + 1) << 24}, v{u(0)}")
    I(f"v_mov_b32 v{xt}, {FLAG + 4}")
    I("s_cbranch_vccz K2_XT1A")
    I(f"ds_write_b32 v{xt}, v{one}")
    L("K2_XT1A")
    I("s_mov_b32 s10, 0xf0f0f0f0")
    I("s_mov_b32 s11, s10")
    I(f"v_and_b32 v{xt}, 12, v{k4}")
    I(f"v_add_u32 v{xt}, 32, v{xt}")
    I(f"v_and_b32 v{xad}, 64, v{u(1)}")
    I(f"v_mul_u32_u24 v{xad}, 127, v{xad}")
    I(f"v_add_u32 v{xad}, v{xad}, v{u(1)}")
    I(f"v_add_u32 v{xad+1}, 16384, v{xad}")
    I(f"v_mov_b32 v{xt+1}, 0x7ffffff0")
    for g in range(2):
        I(f"v_cndmask_b32 v{xrem+g}, v{vC+8*g+3}, v{vC+8*g+7}, s[10:11]")
        I(f"v_cndmask_b32 v{xeb+g}, v{vEB+2*g}, v{vEB+2*g+1}, s[10:11]")
        I(f"v_cmp_le_u32 vcc, {33 << 24}, v{xrem+g}")
        remain(xrem + g, xrem + g, xt)
        I("s_nop 0")
        I(f"v_cndmask_b32 v{xad+g}, v{xt+1}, v{xad+g}, vcc")
    I(f"s_add_u32 s{sCEL}, s{sCEL}, {WS_EXT}")
    I(f"s_addc_u32 s{sCEL+1}, s{sCEL+1}, 0")
    def xloads2():
        for g in range(2):
            I(f"buffer_load_dwordx4 {rr(xd+4*g,4)}, v{xad+g}, s[{sCEL}:{sCEL+3}], 0 offen sc1")
    xloads2()
    I(f"v_med3_i32 v{xt}, v{xrem}, 0, 3")
    I(f"v_med3_i32 v{xt+1}, v{xrem+1}, 0, 3")
    I(f"v_add_u32 v{xt}, v{xt}, v{xt+1}")
    I(f"v_mov_b32 v{xt+1}, {FLAG}")
    I(f"v_cmpx_lt_u32 vcc, 0, v{xt}")
    I(f"ds_add_u32 v{xt+1}, v{xt}")
    I("s_mov_b64 exec, -1")
    I("s_branch K2_XT1R")
    def xvalid(tag):
        L(f"K2_XV{tag}")
        I("s_mov_b64 s[10:11], 0")
        for g in range(2):
            I(f"v_bitop3_b32 v{xt}, v{xd+4*g+3}, s{sTAG}, v{vTM} bitop3:0x28")
            I(f"v_cmp_ne_u32 s[{sTMP}:{sTMP+1}], 0, v{xt}")
            I(f"v_cmp_gt_u32 vcc, 0x7ffffff0, v{xad+g}")
            I(f"s_and_b64 vcc, vcc, s[{sTMP}:{sTMP+1}]")
            I("s_or_b64 s[10:11], s[10:11], vcc")
        I(f"s_cbranch_scc0 K2_XW{tag}")
        spin()
        xloads2()
        I("s_waitcnt vmcnt(0)")
        I(f"s_branch K2_XV{tag}")
        L(f"K2_XW{tag}")
    L("K2_XT2")
    xvalid("a")
    for g in range(2):
        for j in range(3):
            I(f"v_and_b32 v{xa+3*g+j}, 255, v{xd+4*g+j}")
            I(f"v_lshlrev_b32 v{xa+3*g+j}, 2, v{xa+3*g+j}")
            I(f"ds_read_b32 v{xa+3*g+j}, v{xa+3*g+j} offset:{MAP}")
        I(f"v_and_b32 v{xd+4*g+3}, 0x0f0f0f, v{xd+4*g+3}")
    I("s_waitcnt lgkmcnt(0)")
    for g in range(2):
        for j in range(3):
            i = 3*g + j
            I(f"v_perm_b32 v{xk+i}, v{xd+4*g+3}, v{xd+4*g+j}, s{sSEL+j}")
            I(f"v_lshl_add_u32 v{xk+i}, v{xk+i}, 5, v{xeb+g}")
            I(f"v_cmpx_lt_i32 vcc, {j}, v{xrem+g}")
            I(f"ds_add_rtn_u32 v{xa+i}, v{xa+i}, v{one} offset:{CNT}")
            I("s_mov_b64 exec, -1")
    I("s_waitcnt lgkmcnt(0)")
    for g in range(2):
        for j in range(3):
            i = 3*g + j
            I(f"v_cmpx_lt_i32 vcc, {j}, v{xrem+g}")
            I(f"ds_write2st64_b32 v{xa+i}, v{xd+4*g+j}, v{xk+i} offset0:0 offset1:{(R1-R0)//256}")
            I("s_mov_b64 exec, -1")
    I("s_waitcnt lgkmcnt(0)")
    I("s_branch K2_XT2R")
    L("K2_OVF")
    I(f"s_mov_b32 s{sCUR}, 1")
    I(f"s_mov_b32 s{sST}, 0")
    I(f"s_mov_b32 s{sSKIP}, 0")
    I(f"s_mov_b32 s{sEND}, s{sL}")
    pads(lane, vP, vP+1, vP+2)
    I(f"s_cmp_eq_u32 s{sXT}, 0")
    I("s_cbranch_scc1 K2_PADS0")
    I(f"s_mov_b32 s{sXT}, 0")
    I("s_waitcnt vmcnt(0)")
    xvalid("b")
    I("s_branch K2_PADS0")
    SB = 448
    t0, t1, t2, t3, t4 = vP, vP+1, vP+2, vP+3, vP+4
    L("K2_SLOW")
    I(f"s_add_u32 s{sR0}, s{sR0}, {SB}")
    I(f"s_cmp_lt_u32 s{sR0}, s{sCNT}")
    I("s_cbranch_scc1 K2_BATCH")
    L("K2_FIND")
    I(f"s_cmp_lg_u64 s[{sMSK}:{sMSK+1}], 0")
    I("s_cbranch_scc1 K2_GOT")
    I(f"s_add_u32 s{sCI}, s{sCI}, 1")
    I(f"s_cmp_ge_u32 s{sCI}, 4")
    I("s_cbranch_scc1 K2_EPI")
    I(f"s_mul_i32 s10, s{sB}, {RS}")
    I(f"s_lshl_b32 s11, s{sCI}, 13")
    I("s_add_u32 s10, s10, s11")
    I(f"v_lshlrev_b32 v{vT}, 7, v{lane}")
    I(f"buffer_load_ubyte v{vT}, v{vT}, s[{sWS}:{sWS+3}], s10 offen offset:15 sc1")
    I("s_waitcnt vmcnt(0)")
    I(f"v_cmp_lt_u32 s[{sMSK}:{sMSK+1}], s{sSKIP}, v{vT}")
    I("s_nop 3")
    I("s_branch K2_FIND")
    L("K2_GOT")
    I(f"s_ff1_i32_b64 s10, s[{sMSK}:{sMSK+1}]")
    I(f"s_bitset0_b64 s[{sMSK}:{sMSK+1}], s10")
    I(f"s_lshl_b32 s11, s{sCI}, 6")
    I(f"s_add_u32 s{sCUR}, s10, s11")
    I(f"s_mul_i32 s10, s{sB}, {RS}")
    I(f"s_lshl_b32 s11, s{sCUR}, 7")
    I("s_add_u32 s10, s10, s11")
    I(f"s_lshl_b32 s11, s{sB}, 8")
    I(f"s_add_u32 s11, s11, s{sCUR}")
    I(f"s_lshl_b32 s11, s11, 2")
    I(f"s_add_u32 s11, s11, {WS_HDR}")
    I(f"v_mov_b32 v{t0}, 0")
    I(f"buffer_load_ubyte v{t1}, v{t0}, s[{sWS}:{sWS+3}], s10 offen offset:15 sc1")
    I(f"buffer_load_dword v{t2}, v{t0}, s[{sWS}:{sWS+3}], s11 offen sc1")
    I("s_waitcnt vmcnt(0)")
    I(f"v_readfirstlane_b32 s10, v{t1}")
    I(f"v_readfirstlane_b32 s11, v{t2}")
    I("s_nop 3")
    I(f"s_and_b32 s{sST}, s11, 0xffff")
    I("s_lshr_b32 s11, s11, 16")
    I(f"s_lshr_b32 s{sCNT}, s10, 2")
    I(f"s_sub_u32 s{sCNT}, s10, s{sCNT}")
    I(f"s_cmp_gt_u32 s10, {QCAP}")
    I(f"s_cselect_b32 s{sCNT}, s11, s{sCNT}")
    I(f"s_lshr_b32 s10, s{sSKIP}, 2")
    I(f"s_sub_u32 s{sR0}, s{sSKIP}, s10")
    L("K2_BATCH")
    I("s_barrier")
    I(f"v_and_b32 v{t0}, 7, v{lane}")
    I(f"v_mul_u32_u24 v{t1}, {LCAP*4}, v{t0}")
    I(f"v_add_u32 v{t1}, {R0}, v{t1}")
    I(f"v_lshlrev_b32 v{t0}, 2, v{t0}")
    I(f"ds_write_b32 v{t0}, v{t1} offset:{CNT}")
    I(f"v_add_u32 v{t0}, s{sR0}, v{tid}")
    I(f"s_mul_i32 s10, s{sB}, {RS}")
    I(f"s_lshl_b32 s11, s{sCUR}, 7")
    I("s_add_u32 s10, s10, s11")
    I(f"v_mul_u32_u24 v{t2}, {KQ}, v{t0}")
    I(f"v_lshrrev_b32 v{t2}, 16, v{t2}")
    I(f"v_lshl_add_u32 v{t1}, v{t2}, 2, s10")
    I(f"v_add_u32 v{t3}, {WS_EXT - 128}, v{t1}")
    I(f"v_cmp_lt_u32 vcc, 31, v{t2}")
    I(f"s_mul_i32 s11, s{sCUR}, {CH}")
    I(f"s_add_u32 s11, s11, s{sST}")
    I(f"v_cndmask_b32 v{t1}, v{t1}, v{t3}, vcc")
    I(f"v_or_b32 v{t3}, 12, v{t1}")
    I(f"v_and_b32 v{t4}, 3, v{t2}")
    I(f"v_add_u32 v{t3}, v{t3}, v{t4}")
    I(f"v_cmp_le_u32 vcc, {QCAP}, v{t2}")
    I(f"v_add_u32 v{t2}, s11, v{t0}")
    I(f"v_add_u32 v{t4}, {WS_XB}, v{t2}")
    I(f"v_cndmask_b32 v{t3}, v{t3}, v{t4}, vcc")
    I(f"v_lshlrev_b32 v{t2}, 2, v{t2}")
    I(f"v_add_u32 v{t2}, {WS_RECS}, v{t2}")
    I(f"v_cndmask_b32 v{t1}, v{t1}, v{t2}, vcc")
    I(f"s_add_u32 s10, s{sR0}, {SB}")
    I(f"s_min_u32 s10, s10, s{sCNT}")
    I(f"v_cmp_gt_u32 vcc, s10, v{t0}")
    I(f"v_mov_b32 v{t2}, 0x7ffffff0")
    I(f"s_mul_i32 s{sTMP}, s{sCUR}, {CH*32}")
    I(f"v_cndmask_b32 v{t1}, v{t2}, v{t1}, vcc")
    I(f"v_cndmask_b32 v{t3}, v{t2}, v{t3}, vcc")
    I(f"buffer_load_dword v{t1}, v{t1}, s[{sWS}:{sWS+3}], 0 offen sc1")
    I(f"buffer_load_ubyte v{t3}, v{t3}, s[{sWS}:{sWS+3}], 0 offen sc1")
    I("s_waitcnt lgkmcnt(0)")
    I("s_barrier")
    I("s_and_saveexec_b64 s[10:11], vcc")
    I("s_waitcnt vmcnt(0)")
    I(f"v_and_b32 v{t0}, 255, v{t1}")
    I(f"v_lshlrev_b32 v{t0}, 2, v{t0}")
    I(f"ds_read_b32 v{t0}, v{t0} offset:{MAP}")
    I(f"v_bfe_u32 v{t2}, v{t1}, 8, 8")
    I(f"v_and_b32 v{t3}, 15, v{t3}")
    I(f"v_lshl_or_b32 v{t3}, v{t3}, 8, v{t2}")
    I(f"v_mov_b32 v{t2}, 4")
    I(f"v_lshl_add_u32 v{t3}, v{t3}, 5, s{sTMP}")
    I("s_waitcnt lgkmcnt(0)")
    I(f"ds_add_rtn_u32 v{t0}, v{t0}, v{t2} offset:{CNT}")
    I("s_waitcnt lgkmcnt(0)")
    I(f"ds_write2st64_b32 v{t0}, v{t1}, v{t3} offset0:0 offset1:{(R1-R0)//256}")
    I("s_mov_b64 exec, -1")
    I("s_waitcnt lgkmcnt(0)")
    I("s_barrier")
    I(f"s_lshl_b32 s10, s{sW}, 2")
    I(f"v_mov_b32 v{t0}, s10")
    I(f"ds_read_b32 v{t0}, v{t0} offset:{CNT}")
    for i in range(8): I(f"v_mov_b32 v{vT2+i}, 0")
    listaddr(lane, t1, t2)
    I("s_waitcnt lgkmcnt(0)")
    I(f"v_readfirstlane_b32 s{sEND}, v{t0}")
    I("s_nop 3")
    pads(lane, t0, t1, t2)
    L("K2_LAST")
    I("s_branch K2_GO")

def regs_of(tok):
    tok = tok.strip()
    m = re.fullmatch(r"v\[(\d+):(\d+)\]", tok)
    if m: return list(range(int(m.group(1)), int(m.group(2)) + 1))
    m = re.fullmatch(r"v(\d+)", tok)
    if m: return [int(m.group(1))]
    return []
def parse(ins):
    op, _, rest = ins.partition(" ")
    ops = [o.strip().split(" ")[0] for o in rest.split(",")] if rest else []
    if op.startswith("v_mfma"):
        return "mfma", regs_of(ops[0]), regs_of(ops[1]) + regs_of(ops[2]), regs_of(ops[3])
    if op.startswith("v_smfmac"):
        return "mfma", regs_of(ops[0]), regs_of(ops[1]) + regs_of(ops[2]) + regs_of(ops[3]), regs_of(ops[0])
    if op.startswith("v_"):
        k = "trans" if op in ("v_exp_f32", "v_rcp_f32") else "valu"
        return k, regs_of(ops[0]), sum((regs_of(o) for o in ops[1:]), []), []
    if op.startswith("ds_read"):
        return "ds", regs_of(ops[0]), regs_of(ops[1]), []
    if op.startswith("buffer_load"):
        return "vm", [], regs_of(ops[0]) + regs_of(ops[1]), []
    return "other", [], [], []
def check_body(body):
    seq = [b for b in body if not b.endswith(":")]
    for skip_dma in (False, True):
        s2 = []
        sk = False
        for b in body:
            if skip_dma and b.startswith("s_cbranch_scc0 K2_ND"):
                s2.append(b); sk = True; continue
            if b.startswith("K2_ND"): sk = False
            if b.endswith(":") or sk: continue
            s2.append(b)
        seq = s2 * 3
        last = {}
        lastc = {}
        pend = []
        for i, ins in enumerate(seq):
            k, d, s, c = parse(ins)
            m = re.search(r"lgkmcnt\((\d+)\)", ins)
            if m:
                n = int(m.group(1))
                while len(pend) > n: pend.pop(0)
            pr = set(sum(pend, []))
            for r in d + s + c:
                assert r not in pr or i < len(s2), f"pending LDS reg v{r} used by {ins} @{i}"
            for r in s + c + d:
                if r not in last: continue
                pk, pi = last[r]; dist = i - pi - 1
                if pk == "mfma":
                    if k == "mfma" and r in c and r not in s: need = 0
                    elif k == "mfma" and r in d and r not in s: need = 0
                    else: need = 12
                elif pk in ("valu", "trans") and k == "mfma" and r in s + c: need = 2
                elif pk == "trans" and k in ("valu", "mfma", "ds", "vm") and r in s: need = 1
                else: need = 0
                assert dist >= need, f"hazard {pk}->{k} v{r} dist {dist} need {need}: {ins} @{i}"
            if k in ("valu", "trans"):
                for r in d:
                    if r in lastc: assert i - lastc[r] - 1 >= 7, f"srcC WAR {ins}"
            for r in c: lastc[r] = i
            for r in d: last[r] = (k, i)
            if k == "ds":
                pend.append(d); assert len(pend) <= 15

hdr = open("/code/" + NAME + ".s.ref").read().split("\n")
for l in hdr:
    if l.startswith("; Override"): break
    out.append(l)
LEAK = opt("leak", "")
if LEAK:
    out.append(f"; @launch kernel={KN} grid=(256,1,1) block=(512,1,1) lds={K2_LDS}")
    out.append("; @launch kernel=spin_kernel grid=(1,1,1) block=(64,1,1) lds=0")
else: out.append(f"; @launch grid=(256,1,1) block=(512,1,1) lds={K2_LDS}")
emit('.amdgcn_target "amdgcn-amd-amdhsa--gfx950"\n.text')
k2()
KL = [(KN, 256, 102)]
if LEAK:
    kind, k = LEAK[:3], int(LEAK[3:])
    emit(".globl spin_kernel\n.p2align 8\n.type spin_kernel,@function\nspin_kernel:")
    I("s_memrealtime s[12:13]")
    I("s_cmp_lg_u32 s2, 0")
    I("s_cbranch_scc1 SP_END")
    I("s_load_dwordx2 s[4:5], s[0:1], 88")
    I("s_waitcnt lgkmcnt(0)")
    I(f"s_add_u32 s4, s4, {WS_TS + 0x100000}")
    I("s_addc_u32 s5, s5, 0")
    I("v_lshlrev_b32 v1, 5, v0")
    for j in range(31):
        I(f"global_load_dword v{2+j}, v1, s[4:5]")
        I(f"global_load_dword v{34+j}, v1, s[4:5] offset:{4*(k%8)}")
        I("v_add_u32 v1, 2048, v1")
    I("s_waitcnt vmcnt(0)")
    I("v_readfirstlane_b32 s6, v2")
    I("s_nop 1")
    I("s_sub_u32 s6, s6, 1000")
    for j in range(31):
        I(f"v_subrev_u32 v{2+j}, s6, v{2+j}")
        I(f"v_subrev_u32 v{34+j}, s6, v{34+j}")
    if kind == "cnt":
        for j in range(31):
            I(f"v_cmp_lt_u32 vcc, {1000 + opt('thr', 550)}, v{34+j}")
            I("s_nop 1")
            I(f"v_cndmask_b32 v{34+j}, 0, 1, vcc")
            I(f"v_mov_b32 v{2+j}, 0")
    op = {"max": "max_u32", "min": "min_u32", "avg": "add_u32", "now": "max_u32", "cnt": "add_u32"}[kind]
    for j in range(1, 31):
        I(f"v_min_u32 v2, v2, v{2+j}")
        I(f"v_{op} v34, v34, v{34+j}")
    I("s_nop 1")
    I("v_readlane_b32 s8, v2, 0")
    I("v_readlane_b32 s9, v34, 0")
    for l in range(1, 64):
        I(f"v_readlane_b32 s10, v2, {l}")
        I(f"v_readlane_b32 s11, v34, {l}")
        I("s_min_u32 s8, s8, s10")
        I(f"s_{op} s9, s9, s11")
    if kind == "avg":
        I(f"s_mul_hi_u32 s9, s9, {(1 << 32) // (31*64)}")
    if kind == "now":
        I("s_sub_u32 s8, s12, s6")
        I("s_sub_u32 s6, s8, s9")
    else: I("s_sub_u32 s6, s9, s8")
    I("s_lshl_b32 s6, s6, 2")
    I("s_min_u32 s6, s6, 30000")
    I("s_memrealtime s[8:9]")
    I("s_waitcnt lgkmcnt(0)")
    L("SP_L")
    I("s_memrealtime s[10:11]")
    I("s_waitcnt lgkmcnt(0)")
    I("s_sub_u32 s7, s10, s8")
    I("s_cmp_lt_u32 s7, s6")
    I("s_cbranch_scc1 SP_L")
    L("SP_END")
    I("s_endpgm")
    KL.append(("spin_kernel", 72, 16))
emit('.section .rodata,"a"')
for name, vg, sg in KL:
    emit(f""".p2align 6
.amdhsa_kernel {name}
  .amdhsa_next_free_vgpr {vg}
  .amdhsa_next_free_sgpr {sg}
  .amdhsa_accum_offset {vg}
  .amdhsa_group_segment_fixed_size 0
  .amdhsa_kernarg_size 96
  .amdhsa_user_sgpr_count 2
  .amdhsa_user_sgpr_kernarg_segment_ptr 1
  .amdhsa_system_sgpr_workgroup_id_x 1
.end_amdhsa_kernel""")
path = sys.argv[1] if len(sys.argv) > 1 else "/code/" + NAME + ".s"
open(path, "w").write("\n".join(out) + "\n")
print("wrote", path, len(out), "lines; lds", K2_LDS)
```

```python
import sys, re, math

NAME = "standalone__edge_featured_mpnn_gatedgcn__graph"
OPT = dict(kv.split("=") for kv in sys.argv[2:])
def opt(k, d):
    v = OPT.get(k)
    if v is None: return d
    return type(d)(v)

N, E = 50000, 800000
NCH, CH = 256, 3125
NB, BN = 256, 196
CELLB = 128
RS = 257 * CELLB
WS_EXT = NB * RS
QCAP = 48
KQ = 87382
LROW = 4 * (QCAP + 4)
WS_RECS = 0x1100000
WS_XB = 0x1500000
WS_HDR = 0x1600000
WS_EPOCH = 0x1700000
WS_USED = WS_EPOCH + 128
WI_U, WI_B, WI_V, WI_A, WI_C = 0, 8192, 16384, 24576, 32768
TMASK = 0x00f0f0f0
T0 = opt("t0", 12500)
LPH = (N - T0 + 2) // 3
SOFF = LPH - T0
PHM = (1 << 30) // LPH
assert 0 <= SOFF and N + SOFF <= 65536 and ((N - 1 + SOFF) * PHM) >> 30 <= 3
LOG2E = 1.4426950408889634
import struct
def f2u(f): return struct.unpack("<I", struct.pack("<f", f))[0]

out = []
def emit(s=""):
    for l in s.strip("\n").split("\n"):
        out.append(l.rstrip())
def I(s): out.append("    " + s)
def L(s): out.append(s + ":")
def C(s): out.append("    ; " + s)

def srd(d, lo, hi, size, add=None):
    if add is None:
        I(f"s_mov_b32 s{d}, s{lo}")
        I(f"s_mov_b32 s{d+1}, s{hi}")
    else:
        I(f"s_add_u32 s{d}, s{lo}, {add}")
        I(f"s_addc_u32 s{d+1}, s{hi}, 0")
    I(f"s_mov_b32 s{d+2}, {size}")
    I(f"s_mov_b32 s{d+3}, 0x20000")

def wave_scan(v, fill=None, half=False):
    def gap():
        if fill and len(fill) >= 2:
            I(fill.pop(0)); I(fill.pop(0))
        else: I("s_nop 1")
    for sh in (1, 2, 4, 8):
        gap()
        I(f"v_add_u32_dpp v{v}, v{v}, v{v} row_shr:{sh} row_mask:0xf bank_mask:0xf bound_ctrl:0")
    gap()
    I(f"v_add_u32_dpp v{v}, v{v}, v{v} row_bcast:15 row_mask:0xa bank_mask:0xf")
    if half: return
    gap()
    I(f"v_add_u32_dpp v{v}, v{v}, v{v} row_bcast:31 row_mask:0xc bank_mask:0xf")

TS = opt("ts", 0)
WS_TS = 0x3000000
SMAP = {1: {0: 0, 'd': 1, 'i': 2, 'w': 3, 2: 4, 5: 5, 6: 6, 7: 7},
        5: {0: 0, 'w': 1, 2: 2, 'a': 3, 'b': 4, 'c': 5, 3: 6, 7: 7},
        6: {0: 0, 'p': 1, 'q': 2, 'd': 3, 'i': 4, 'o': 5, 'k': 6, 7: 7},
        8: {0: 0, 'i': 1, 'w': 2, 1: 3, 2: 4, 3: 5, 7: 7},
        10: {0: 0, 'd': 1, 'i': 2, 'o': 3, 'A': 4, 'w': 5, 2: 6, 7: 7},
        11: {0: 0, 2: 1, 'b': 2, 'c': 3, 3: 4, 5: 5, 'L': 6, 7: 7},
        9: {0: 0, 'q': 1, 'd': 2, 'i': 3, 'w': 4, 2: 5, 3: 6, 7: 7},
        7: {0: 0, 'k': 1, 'w': 2, 1: 3, 's': 4, 2: 5, 3: 6, 7: 7}}
def stamp(i):
    if TS in SMAP:
        i = SMAP[TS].get(i)
        if i is None: return
    elif isinstance(i, str): return
    if TS == 3:
        if i not in (0, 5, 6, 7): return
        I("s_memtime s[98:99]")
        I("s_waitcnt lgkmcnt(0)")
        I(f"s_mov_b32 s{88+{5:1,6:2,0:3,7:4}[i]}, s98")
    if TS:
        I("s_memrealtime s[98:99]" if TS != 2 else "s_memtime s[98:99]")
        I("s_waitcnt lgkmcnt(0)")
        I(f"s_mov_b32 s{88+i}, s98")
def stamp_out(n, wslo, swave, nw, off, v):
    if not TS: return
    I("s_waitcnt vmcnt(0)")
    stamp(7)
    I("s_mov_b64 exec, 1")
    I(f"s_mul_i32 s87, s2, {nw}")
    I(f"s_add_u32 s87, s87, s{swave}")
    I("s_lshl_b32 s87, s87, 5")
    I(f"s_add_u32 s87, s87, {WS_TS + off}")
    I(f"v_mov_b32 v{v}, s87")
    for i in range(n):
        I(f"v_mov_b32 v{v+1}, s{88+i}")
        I(f"global_store_dword v{v}, v{v+1}, s[{wslo}:{wslo+1}] offset:{4*i}")
K1_LD = opt("k1ld", "nt")
def pol(p): return (" " + p.replace("_", " ")) if p else ""

SM1 = opt("sm1", 1)
TAB, ZROW, CNT, FLAG, HIST, MAP = 0, 2048, 2112, 2176, 2304, 6400
T1B = 7424
LCAP = 672
XMAX = 64
LMAX = LCAP - 128
R0 = T1B + 2304
R1 = R0 + 8 * LCAP * 4
assert R1 % 256 == 0 and R0 % 256 == 0
WL = R0
WU = R1 + 8 * LCAP * 4
WA = WU + 8192
XO = WA + 8192
STG = XO + 8 * 4160
SLOT = 5184
WST = SLOT
IMG = 91136
assert IMG >= XO and STG + 8 * WST <= IMG + 320 * LROW
K2_LDS = IMG + 320 * LROW
assert K2_LDS <= 163840, K2_LDS

vWB, vWV, vWC, vAT = 0, 32, 64, 72
vACC = 88
vX, vE, vT1, vT2 = 152, 168, 172, 180
vP, vQ, vR = 188, 204, 220
vQD = 236
vR1 = 240
vCP, vCH, vAX, vAE, vC1, vC2, vARX, vART, vARP = 241, 242, 243, 244, 245, 246, 247, 248, 249
vL1 = 250
vARE = 251
vT = 252
DEN = lambda ft: vACC + 32 * ft
NUM = lambda ft: vACC + 32 * ft + 16
def rr(a, n): return f"v[{a}:{a+n-1}]"
def mfma(d, a, b, c=None):
    return f"v_mfma_f32_32x32x16_bf16 {rr(d,16)}, {rr(a,4)}, {rr(b,4)}, " + ("0" if c is None else rr(c, 16))

K2_XP = opt("k2x", "")
K2_EP = opt("k2e", "")
K2_CP = opt("k2c", "")
K2_OP = opt("k2o", "sc1")

sW, sB = 3, 12
sX, sEP, sWS, sOUT = 16, 20, 24, 28
sCEL, sWI = 32, 36
sM = 40
sT, sN, sSTG, s128, sL, sSKIP, sMORE = 72, 73, 74, 75, 76, 77, 78
sCI, sCUR, sR0, sCNT, sST, sMSK = 79, 80, 81, 82, 83, 84
sTMP = 86
sWIN = 96

def dma_tile(par):
    r = []
    for i in range(4):
        r.append(f"s_add_u32 m0, s{sSTG}, {par*SLOT + i*1040}")
        r.append(f"v_mad_u32_u16 v{vQD+i}, v{vQD+i}, s{s128}, v{vCP} op_sel:[1,0,0,0]")
        r.append(f"buffer_load_dwordx4 v{vQD+i}, s[{sX}:{sX+3}], 0 offen{pol(K2_XP)} lds")
    r.append(f"s_add_u32 m0, s{sSTG}, {par*SLOT + 4160}")
    r.append(f"v_add_u32 v{vR1}, v{vR1}, v{vCH}")
    r.append(f"buffer_load_dwordx4 v{vR1}, s[{sEP}:{sEP+3}], 0 offen{pol(K2_EP)} lds")
    return r

def valu_stream(G, H, n=16):
    s = []
    ex = [(f"v_exp_f32 v{G+i}, v{G+i}", 8) for i in range(n)]
    ad = [(f"v_add_f32 v{G+i}, 1.0, v{G+i}", 4) for i in range(n)]
    rc = [(f"v_rcp_f32 v{G+i}, v{G+i}", 8) for i in range(n)]
    mu = [(f"v_mul_f32 v{H+i}, v{G+i}, v{H+i}", 4) for i in range(n)]
    for i in range(n + 4):
        if i < n: s.append(ex[i])
        if 0 <= i - 2 < n: s.append(ad[i-2])
        if 0 <= i - 4 < n: s.append(rc[i-4])
    return s + mu

def interleave(valu, mf, extra, pos, spacing=opt('sp', 28)):
    res = []
    cum = 0; k = 0
    for ins, c in valu:
        while k < len(mf) and cum >= pos[k] * spacing:
            res.extend(extra.get(('b', k), []))
            res.append(mf[k])
            res.extend(extra.get(('a', k), []))
            k += 1
        res.append(ins); cum += c
    assert k == len(mf)
    return res

def g_mfmas(D, ft):
    m = [mfma(D, vE, vWC + 4*ft)]
    if SM1:
        m += [mfma(D, vX + 4*q, vWB + 16*ft + 4*q, D) for q in range(4)]
        m += [f"v_smfmac_f32_32x32x32_bf16 {rr(D,16)}, {rr(vT1,4)}, {rr(vAT+8*ft,8)}, v{vT1+4}"]
        return m
    m += [mfma(D, vT1 + 4*s, vAT + 8*ft + 4*s, D) for s in range(2)]
    m += [mfma(D, vX + 4*q, vWB + 16*ft + 4*q, D) for q in range(4)]
    return m
def h_mfmas(D, ft):
    return [mfma(D, vX + 4*q, vWV + 16*ft + 4*q, None if q == 0 else D) for q in range(4)]
vIX = vT1 + 5
def s_mfmas(acc, src):
    return [f"v_smfmac_f32_32x32x32_bf16 {rr(acc,16)}, {rr(vT2+4*s,4)}, {rr(src+8*s,8)}, v{vIX}" for s in range(2)]
def t1_reads():
    return [f"ds_read_b128 {rr(vT1,4)}, v{vL1} offset:{T1B}", f"ds_read_b32 v{vT1+4}, v{vL1} offset:{T1B+16}"]

ORD = opt("ord", "n0 n1 e h0 h1 a h2 h3 x0 x1 x2 x3 d0 d1").replace("_", " ").split()
POS = [float(x) / 28 for x in opt("pos", "0_27_54_81_108_135_162_189_216_243_270_297_328_356").split("_")]
def phase_ops(G, Gn, ft):
    n = s_mfmas(NUM(1-ft), vQ); d = s_mfmas(DEN(ft), G); h = h_mfmas(vQ, ft); g = g_mfmas(Gn, 1-ft)
    m = {"n0": n[0], "n1": n[1], "d0": d[0], "d1": d[1], "e": g[0], "a": g[5]}
    for q in range(4): m[f"h{q}"] = h[q]; m[f"x{q}"] = g[1+q]
    return [m[k] for k in ORD]
K = lambda k: ORD.index(k)
def phaseA(par):
    o = par * 128
    ex = {}
    ex[('a', K("n0"))] = [f"ds_read_u8 v{vQD+u}, v{vART} offset:{o + 64*(u>>1) + 16*(u&1)}" for u in range(4)] + \
                         [f"ds_read_u8 v{vL1}, v{vARP} offset:{o + 128}"]
    ex[('a', K("h1"))] = ["s_waitcnt lgkmcnt(0)"] + [f"v_lshl_add_u32 v{vQD+u}, v{vQD+u}, 6, v{vC2}" for u in range(4)] + \
                         [f"v_lshl_add_u32 v{vL1}, v{vL1}, 6, v{vC1}"]
    ex[('a', K("a"))] = [f"ds_read_b64_tr_b16 v[{vT2+2*u}:{vT2+2*u+1}], v{vQD+u}" for u in range(4)] + t1_reads()
    ex[('a', K("x0"))] = [f"ds_read_b128 {rr(vQD,4)}, v{vARX} offset:{o + 2*128}",
                          f"ds_read_b32 v{vR1}, v{vARE} offset:{o + 2*128}",
                          f"s_add_u32 s{sT}, s{sT}, 1"]
    ex[('b', K("d0"))] = ["s_waitcnt lgkmcnt(0)"]
    return interleave(valu_stream(vP, vQ), phase_ops(vP, vR, 0), ex, POS)

def phaseB(par):
    ex = {}
    ex[('a', K("n0"))] = ["s_waitcnt vmcnt(0)", f"ds_read_b128 {rr(vE,4)}, v{vAE}"]
    if TS == 4:
        ex[('a', K("n0"))] = ["s_memtime s[94:95]", "s_waitcnt vmcnt(0) lgkmcnt(0)", "s_memtime s[98:99]", "s_waitcnt lgkmcnt(0)", "s_sub_u32 s98, s98, s94",
                              "s_add_u32 m0, s72, 15", "s_nop 0", "v_writelane_b32 v255, s98, m0", f"ds_read_b128 {rr(vE,4)}, v{vAE}"]
    for q in range(4):
        ex[('a', K(f"h{q}"))] = [f"ds_read_b128 {rr(vX+4*q,4)}, v{vAX} offset:{16*q}"]
    ex[('b', K("e"))] = [f"s_waitcnt lgkmcnt({sum(K(f'h{q}') < K('e') for q in range(4))})"]
    for q in range(4): ex[('b', K(f"x{q}"))] = [f"s_waitcnt lgkmcnt({sum(K(f'h{p}') < K(f'x{q}') for p in range(q+1, 4))})"]
    dk = opt("dk", "x3")
    ex[('a', K(dk))] = ([] if dk == "x3" or K(dk) > K("x3") else ["s_waitcnt lgkmcnt(0)"]) + \
                       [f"s_cmp_lt_i32 s{sT}, s{sN1}", f"s_cbranch_scc0 K2_ND_{par}"] + dma_tile(0) + [f"K2_ND_{par}:"]
    return interleave(valu_stream(vR, vQ), phase_ops(vR, vP, 1), ex, POS)

def fixnops(seq):
    res = []; last = {}; pos = 0
    for ins in seq:
        k, d, s_, c = parse(ins)
        need = 0
        for r in s_ + c + d:
            if r not in last: continue
            pk, pi, pop = last[r]
            if pk == "mfma":
                if k == "mfma" and r not in s_: w = 0 if pop == ins.split()[0] or r not in c else 10
                else: w = 12
            elif pk in ("valu", "trans") and k == "mfma" and r in s_ + c: w = 2
            elif pk == "trans" and k != "trans" and r in s_: w = 1
            else: w = 0
            need = max(need, w - (pos - pi - 1))
        if need > 0:
            res.append(f"s_nop {need - 1}"); pos += need
        for r in d: last[r] = (k, pos, ins.split()[0])
        res.append(ins); pos += 1
    return res
def last_tile(ng):
    n = 4 * ng
    keep = lambda ks: [k for k in ks if ng > 2 or k not in ("N1", "d1")]
    ops = dict(zip(ORD, phase_ops(vP, vR, 0)))
    oa = keep(ORD)
    ex = {}
    ex[('a', 0)] = [f"ds_read_u8 v{vQD+u}, v{vART} offset:{64*(u>>1) + 16*(u&1)}" for u in range(4)]
    ex[('a', oa.index("h1"))] = ["s_waitcnt lgkmcnt(0)"] + [f"v_lshl_add_u32 v{vQD+u}, v{vQD+u}, 6, v{vC2}" for u in range(4)]
    ex[('a', oa.index("a"))] = [f"ds_read_b64_tr_b16 v[{vT2+2*u}:{vT2+2*u+1}], v{vQD+u}" for u in range(4)]
    ex[('b', oa.index("d0"))] = ["s_waitcnt lgkmcnt(0)"]
    pa = [POS[ORD.index(k)] * ng / 4 * (1 if k[0] != "d" or ng > 2 else 1.04) for k in oa]
    a = interleave(valu_stream(vP, vQ, n), [ops[k] for k in oa], ex, pa)
    ops = dict(zip(ORD, phase_ops(vR, vP, 1)))
    ob = ["n0"] + (["n1"] if ng > 2 else []) + ["h0", "h1", "h2", "h3", "d0"] + (["d1"] if ng > 2 else [])
    pb = [x * ng / 4 / 28 for x in ([0, 36, 72, 108, 144, 180, 328, 356] if ng > 2 else [0, 40, 80, 120, 160, 340])]
    b = interleave(valu_stream(vR, vQ, n), [ops[k] for k in ob], {}, pb)
    return fixnops(a + b + s_mfmas(NUM(1), vQ)[:2 if ng > 2 else 1])

sF0, sF1, sEND = 13, 14, 15
sXT = 97
sN1 = 38
sSB = 37
SBK = opt('sbk', 2)
sNUL = 39
sTH = 4
PRIO = opt("prio", 1)

def listaddr(lane, t0, t3):
    I(f"v_lshrrev_b32 v{t0}, 3, v{lane}")
    I(f"v_lshl_add_u32 v{vARX}, v{t0}, 4, s{sL}")
    I(f"v_and_b32 v{t0}, 31, v{lane}")
    I(f"v_lshl_add_u32 v{vARP}, v{t0}, 2, s{sL}")
    I(f"v_lshrrev_b32 v{t3}, 1, v{lane}")
    I(f"v_lshl_add_u32 v{vARE}, v{t3}, 2, s{sL}")
    I(f"v_add_u32 v{vARE}, {R1-R0}, v{vARE}")
    I(f"v_and_b32 v{t0}, 44, v{lane}")
    I(f"v_add_u32 v{vART}, s{sL}, v{t0}")

vOWN = vT + 1
def pads(lane, t0, t1, t2):
    W2 = f"offset0:0 offset1:{(R1-R0)//256}"
    I(f"v_mov_b32 v{t2}, 0xffff0000")
    I(f"v_or_b32 v{t1}, s{sNUL}, v{t2}")
    I(f"v_mov_b32 v{t2}, 0x7fffff00")
    I(f"v_lshl_add_u32 v{t0}, v{lane}, 2, s{sEND}")
    I(f"s_sub_u32 s{sN}, s{sEND}, s{sL}")
    I(f"ds_write2st64_b32 v{t0}, v{t1}, v{t2} {W2}")
    I(f"ds_write2st64_b32 v{t0}, v{t1}, v{t2} offset0:1 offset1:{(R1-R0)//256 + 1}")
    ntiles(False)
def ntiles(sub=True):
    if sub: I(f"s_sub_u32 s{sN}, s{sEND}, s{sL}")
    I(f"s_add_u32 s{sN}, s{sN}, 127")
    I(f"s_lshr_b32 s{sN}, s{sN}, 7")
    I(f"s_sub_i32 s{sN1}, s{sN}, 1")

KN = NAME + "_kernel"
P_HIST, P_HDR = MAP, WU
H0 = 2000
P_EIMG = IMG
P_CIMG = P_EIMG + 64 * LROW
assert P_CIMG + 256 * LROW <= K2_LDS
sTAG, sEPN, sSPIN = 36, 100, 101
def k2():
    emit(f"""
.globl {KN}
.p2align 8
.type {KN},@function
{KN}:""")
    I("s_cmp_ge_u32 s2, 256")
    I("s_cbranch_scc1 K2_END")
    stamp(0)
    KA = sM
    I(f"s_load_dwordx4 s[{KA+4}:{KA+7}], s[0:1], 16")
    I(f"s_load_dwordx2 s[8:9], s[0:1], 88")
    I(f"s_load_dwordx4 s[{KA}:{KA+3}], s[0:1], 0")
    I(f"s_load_dwordx8 s[{KA+8}:{KA+15}], s[0:1], 32")
    I(f"s_load_dwordx4 s[{KA+16}:{KA+19}], s[0:1], 64")
    tid, lane = 255, 254
    CPF = opt("cpf", 192)
    if CPF:
        I(f"s_getpc_b64 s[{sTMP}:{sTMP+1}]")
        L("K2_PC")
        I(f"v_lshlrev_b32 v{vT}, 7, v0")
        I(f"v_min_u32 v{vT}, K2_LAST-K2_PC, v{vT}")
        I(f"v_cmp_gt_u32 vcc, {CPF}, v0")
        I("s_cbranch_vccz K2_NOCPF")
        I(f"global_load_dword v{vT+1}, v{vT}, s[{sTMP}:{sTMP+1}]")
        L("K2_NOCPF")
    vC = vACC
    vA = vACC + 16
    hh = vACC + 28
    vRK = vR
    vMIN = vQ + 8
    vTM = vQ + 10
    u = lambda i: vP + i
    k4, ecb, hda, one, l16 = vE, vE + 1, vE + 2, vE + 3, vT1
    pD, pS, pH, pK, pA, pB, pI, pW = 8, 16, 24, 32, 40, 48, 56, 64
    I(f"v_mov_b32 v{tid}, v0")
    I(f"v_lshrrev_b32 v{u(0)}, 6, v0")
    I(f"v_and_b32 v{lane}, 63, v0")
    I(f"v_readfirstlane_b32 s7, v{u(0)}")
    I("s_and_b32 s10, s2, 7")
    I("s_lshr_b32 s11, s2, 3")
    I("s_lshl_b32 s10, s10, 5")
    I(f"s_add_u32 s{sB}, s10, s11")
    I(f"s_mul_i32 s13, s{sB}, {CH*4}")
    I(f"v_lshlrev_b32 v{u(1)}, 4, v0")
    I(f"v_lshlrev_b32 v1, 3, v0")
    I(f"v_lshlrev_b32 v2, 2, v0")
    I(f"v_mov_b32 v3, 0")
    I(f"v_and_b32 v4, 0x3fc, v2")
    I(f"ds_write_b32 v4, v3 offset:{P_HIST}")
    ASYM = opt("asym", 10)
    I(f"s_and_b32 s10, s7, 3")
    I(f"s_lshr_b32 s{sW}, s7, 2")
    I(f"s_lshl1_add_u32 s{sW}, s10, s{sW}")
    I(f"s_xor_b32 s{sW}, s{sW}, 1")
    I(f"s_movk_i32 s14, 8192")
    I(f"s_movk_i32 s15, 12288")
    I("s_waitcnt lgkmcnt(0)")
    stamp('p')
    WSB = opt("wsb", 0) << 20
    if WSB:
        I(f"s_add_u32 s8, s8, {WSB}")
        I("s_addc_u32 s9, s9, 0")
    vq = []
    def younger(tag): return len(vq) - 1 - max(i for i, t in enumerate(vq) if t == tag)
    q0, q1 = 64, 68
    srd(q0, KA+6, KA+7, CH*4, "s13")
    srd(q1, KA+4, KA+5, CH*4, "s13")
    for r_, q_ in ((pD, q0), (pS, q1)):
        I(f"buffer_load_dwordx4 {rr(r_,4)}, v{u(1)}, s[{q_}:{q_+3}], 0 offen{pol(K1_LD)}")
        I(f"buffer_load_dwordx2 {rr(r_+4,2)}, v1, s[{q_}:{q_+3}], s14 offen{pol(K1_LD)}")
        I(f"buffer_load_dword v{r_+6}, v2, s[{q_}:{q_+3}], s15 offen{pol(K1_LD)}")
        vq += ["D" if r_ == pD else "S"] * 3
        if r_ == pD and opt("db", 1): I("s_barrier")
    I(f"s_add_u32 s10, s8, {WS_EPOCH}")
    I("s_addc_u32 s11, s9, 0")
    I(f"s_load_dword s{sEPN}, s[10:11], 0")
    if not opt("db", 1): I("s_barrier")
    I(f"v_lshrrev_b32 v1, 3, v0")
    I(f"v_lshlrev_b32 v{hda}, 2, v1")
    I(f"v_and_b32 v{u(9)}, 7, v0")
    I(f"v_and_b32 v5, 16, v0")
    I(f"v_lshlrev_b32 v5, 1, v5")
    I(f"v_xor_b32 v5, v5, v{u(1)}")
    I(f"v_lshlrev_b32 v{l16}, 4, v{lane}")
    I(f"v_and_b32 v{vCP}, 16, v{lane}")
    I(f"v_lshlrev_b32 v{vCP}, 2, v{vCP}")
    vXS, vXA = vR + 14, vR + 15
    I(f"v_xor_b32 v{vXS}, v{vCP}, v{l16}")
    I(f"v_and_b32 v{vCP}, 0x70, v{vXS}")
    if SOFF: I(f"v_subrev_u32 v{vCP}, {SOFF * 128}, v{vCP}")
    srd(sX, KA, KA+1, N*128)
    WLPOS = len(out)
    mark = len(out)
    OFF = opt("off", 20)
    lo0, hi0, lo1, hi1 = sT, sN, sMSK, sMSK + 1
    I(f"s_lshr_b32 s10, s{sW}, 1")
    I(f"s_mul_i32 s10, s10, 49")
    I(f"s_bitcmp1_b32 s{sW}, 0")
    I(f"s_cselect_b32 s{lo0}, {OFF}, -4")
    I(f"s_cselect_b32 s{hi0}, 28, {OFF - 17}")
    I(f"s_cselect_b32 s{lo1}, 45, {OFF}")
    I(f"s_add_i32 s{lo0}, s{lo0}, s10")
    I(f"s_add_i32 s{hi0}, s{hi0}, s10")
    I(f"s_add_i32 s{lo1}, s{lo1}, s10")
    I(f"s_add_i32 s{hi1}, s{lo0}, 32")
    I(f"s_max_i32 s{sWIN}, s{lo0}, 0")
    I(f"s_cmp_eq_u32 s{sW}, 7")
    I(f"s_cselect_b32 s{lo1}, {BN}, s{lo1}")
    I(f"s_cselect_b32 s{hi1}, {BN}, s{hi1}")
    I(f"v_lshrrev_b32 v{u(5)}, 5, v{lane}")
    def wloads():
        srd(q0, KA+10, KA+11, 8192)
        I(f"buffer_load_dwordx4 {rr(pW,4)}, v5, s[{q0}:{q0+3}], 0 offen"); vq.append("B")
        srd(q1, KA+12, KA+13, 2048)
        I(f"buffer_load_dwordx4 {rr(pW+4,4)}, v5, s[{q1}:{q1+3}], 0 offen"); vq.append("B")
        I(f"s_lshl_b32 s10, s7, 10")
        for kp, off in ((KA+8, WI_A), (KA+16, WI_V), (KA+14, WI_U)):
            I(f"s_mov_b32 s{q0}, s{kp}")
            I(f"s_mov_b32 s{q0+1}, s{kp+1}")
            I(f"s_add_u32 m0, s10, {WL + off}")
            I("s_nop 0")
            I(f"buffer_load_dwordx4 v5, s[{q0}:{q0+3}], 0 offen lds"); vq.append("W")
    def xloads():
        I(f"s_mul_i32 s10, s{sB}, {BN}")
        I(f"s_add_u32 s10, s10, s{sWIN}")
        I(f"s_lshl_b32 s10, s10, 7")
        I(f"s_mul_i32 s11, s7, 4160")
        for i in range(4):
            I(f"s_add_u32 m0, s11, {XO + i*1040}")
            I(f"s_add_u32 s{sTMP}, s10, {i*1024}")
            I(f"buffer_load_dwordx4 v{vXS}, s[{sX}:{sX+3}], s{sTMP} offen{pol(opt('xo', ''))} lds")
    srd(sEP, KA+2, KA+3, E*32)
    srd(sOUT, KA+18, KA+19, N*128)
    srd(sWS, 8, 9, WS_USED)
    I(f"v_lshrrev_b32 v{u(6)}, 5, v{tid}")
    I(f"v_and_b32 v{u(7)}, 15, v{tid}")
    I(f"v_cmp_eq_u32 vcc, v{u(6)}, v{u(7)}")
    I(f"v_and_b32 v{u(6)}, 16, v{tid}")
    I(f"v_mov_b32 v{u(7)}, 0x3f80")
    I(f"v_lshlrev_b32 v{u(7)}, v{u(6)}, v{u(7)}")
    I(f"v_cndmask_b32 v{u(7)}, 0, v{u(7)}, vcc")
    I(f"v_lshlrev_b32 v{u(6)}, 2, v{tid}")
    I(f"v_mov_b32 v{u(8)}, 0")
    I(f"ds_write_b32 v{u(6)}, v{u(7)}")
    if SM1:
        I(f"v_bfe_u32 v{u(7)}, v{tid}, 3, 1")
        I(f"v_and_b32 v{u(13)}, 7, v{tid}")
        I(f"v_lshl_add_u32 v{u(7)}, v{u(7)}, 2, v{u(13)}")
        I(f"v_lshrrev_b32 v{u(12)}, 6, v{tid}")
        I(f"v_cmp_eq_u32 vcc, v{u(7)}, v{u(12)}")
        I(f"v_bfe_u32 v{u(12)}, v{tid}, 4, 2")
        I(f"v_mov_b32 v{u(7)}, 0x3f80")
        I(f"v_cndmask_b32 v{u(7)}, 0, v{u(7)}, vcc")
        I(f"v_cmp_lt_u32 vcc, 3, v{u(13)}")
        I(f"v_mul_u32_u24 v{u(12)}, 0x5555, v{u(12)}")
        I(f"v_and_b32 v{u(13)}, 60, v{u(6)}")
        I(f"v_cndmask_b32 v{u(7)}, v{u(7)}, v{u(12)}, vcc")
        I(f"ds_write_b32 v{u(6)}, v{u(7)} offset:{T1B}")
        I(f"ds_write_b32 v{u(13)}, v{u(8)} offset:{T1B + 2048}")
    I(f"ds_write_b32 v{u(6)}, v{u(8)} offset:{ZROW}")
    I(f"ds_write2st64_b32 v{u(6)}, v{u(8)}, v{u(8)} offset0:{HIST//256} offset1:{HIST//256 + 8}")
    I(f"s_movk_i32 s{s128}, 128")
    I(f"s_mul_i32 s{sSTG}, s{sW}, {WST}")
    I(f"s_add_u32 s{sSTG}, s{sSTG}, {STG}")
    I(f"s_movk_i32 s{sSKIP}, {QCAP}")
    I(f"s_add_u32 s{sNUL}, s{sWIN}, 32")
    I(f"s_lshl_b32 s11, s{sWIN}, 6")
    I(f"s_mov_b32 s{sXT}, 0")
    I(f"v_bfe_u32 v{u(6)}, v{lane}, 4, 1")
    I(f"v_and_b32 v{vCH}, 1, v{lane}")
    I(f"v_lshlrev_b32 v{vCH}, 4, v{vCH}")
    I(f"v_lshlrev_b32 v{vC1}, 5, v{u(5)}")
    I(f"v_subrev_u32 v{vC1}, s11, v{vC1}")
    I(f"v_and_b32 v{u(7)}, 3, v{lane}")
    I(f"v_lshlrev_b32 v{u(7)}, 3, v{u(7)}")
    I(f"v_lshl_add_u32 v{vC2}, v{u(6)}, 5, v{u(7)}")
    I(f"v_subrev_u32 v{vC2}, s11, v{vC2}")
    I(f"v_mul_u32_u24 v{u(8)}, 130, v{u(7)}")
    I(f"v_and_b32 v{u(6)}, 28, v{lane}")
    I(f"v_lshl_add_u32 v{u(8)}, v{u(6)}, 5, v{u(8)}")
    I(f"v_bfe_u32 v{u(6)}, v{lane}, 3, 1")
    I(f"v_xor_b32 v{u(6)}, v{u(6)}, v{u(5)}")
    I(f"v_lshl_add_u32 v{u(8)}, v{u(6)}, 6, v{u(8)}")
    I(f"v_add_u32 v{vAX}, s{sSTG}, v{u(8)}")
    I(f"v_and_b32 v{u(6)}, 31, v{lane}")
    I(f"v_lshl_add_u32 v{u(6)}, v{u(6)}, 1, v{u(5)}")
    I(f"v_lshl_add_u32 v{vAE}, v{u(6)}, 4, s{sSTG}")
    I(f"v_add_u32 v{vAE}, 4160, v{vAE}")
    I(f"s_mul_i32 s{sL}, s{sW}, {LCAP*4}")
    I(f"s_add_u32 s{sL}, s{sL}, {R0}")
    listaddr(lane, u(6), u(7))
    def ownaddr(d, lab, t):
        I(f"v_and_b32 v{d}, 31, v{lab}")
        I(f"v_bfe_u32 v{t}, v{d}, 1, 1")
        I(f"v_xor_b32 v{t}, v{t}, v{u(5)}")
        I(f"v_lshlrev_b32 v{t}, 6, v{t}")
        I(f"v_lshl_add_u32 v{t}, v{d}, 7, v{t}")
        I(f"v_lshrrev_b32 v{d}, 3, v{d}")
        I(f"v_lshl_add_u32 v{d}, v{d}, 4, v{t}")
        I(f"v_add_u32 v{d}, s10, v{d}")
    I(f"s_mul_i32 s10, s7, 4160")
    I(f"s_add_u32 s10, s10, {XO}")
    ownaddr(u(14), lane, u(6))
    I(f"v_lshrrev_b32 v{u(6)}, 1, v{lane}")
    I(f"v_xor_b32 v{u(6)}, v{u(6)}, v{lane}")
    I(f"v_and_b32 v{u(6)}, 4, v{u(6)}")
    I(f"v_mul_u32_u24 v{u(6)}, 3, v{u(6)}")
    I(f"v_xor_b32 v{u(6)}, v{u(6)}, v{lane}")
    ownaddr(vXA, u(6), u(7))
    I(f"v_mov_b32 v{vIX}, 0xdddd")
    I(f"v_lshlrev_b32 v{k4}, 2, v{u(9)}")
    vEB = vQ + 4
    I(f"v_mul_u32_u24 v{vEB}, {CH*8}, v{hda}")
    for i in range(1, 4):
        I(f"v_add_u32 v{vEB+i}, {64*i*CH*32}, v{vEB}")
    I(f"v_mov_b32 v{one}, 4")
    I(f"v_mov_b32 v{ecb}, 1")
    I(f"v_and_b32 v{u(11)}, 31, v{lane}")
    I(f"v_add_u32 v{u(11)}, s{sWIN}, v{u(11)}")
    I(f"v_lshlrev_b32 v{u(12)}, 4, v{u(11)}")
    I(f"v_lshl_add_u32 v{u(12)}, v{u(5)}, 3, v{u(12)}")
    for i in range(4): I(f"v_mov_b64 v[{vT2+2*i}:{vT2+2*i+1}], 0")
    I(f"s_lshl_b32 s{sEND}, s{sW}, 2")
    I(f"v_mov_b32 v{vMIN}, s{sEND}")
    I(f"v_lshlrev_b32 v{vMIN+1}, 2, v{u(11)}")
    static = out[mark:]; del out[mark:]
    WLP = opt("wl", 2)
    if WLP == 0: wloads()
    XP_ = opt("xp", 6)
    SP = opt("sp0", 0)
    SPN = opt("spn", 1000)
    if SP:
        out.extend(static[:SPN]); static = static[SPN:]
    c1, c2, c3 = 60, 61, 62
    pm = 78
    pX = 23
    xb = lambda i: (23, 23, 23, 23, 31, 31, 39)[i]
    I(f"s_mov_b32 s{c1}, 85599")
    I(f"s_mov_b32 s{c2}, {-BN & 0xffffffff}")
    I(f"s_movk_i32 s{c3}, {H0}")
    I(f"v_mov_b32 v7, {KQ}")
    I(f"s_mov_b32 s10, {SOFF << 16}")
    I(f"v_lshl_add_u32 v{pI}, v{lane}, 10, s10")
    for i in range(1, 4): I(f"v_add_u32 v{pI+i}, {i << 8}, v{pI}")
    I(f"v_and_b32 v{pI+4}, 127, v{tid}")
    I(f"v_lshl_add_u32 v{pI+4}, v{pI+4}, 9, s10")
    I(f"v_add_u32 v{pI+5}, 256, v{pI+4}")
    I(f"v_lshl_add_u32 v{pI+6}, v{lane}, 8, s10")
    I(f"v_lshrrev_b32 v23, 6, v{tid}")
    I(f"v_lshrrev_b32 v31, 7, v{tid}")
    I(f"v_add_u32 v31, 8, v31")
    I(f"v_mov_b32 v39, 12")
    I(f"v_cmp_gt_u32 s[{pm}:{pm+1}], {CH - 3072}, v{tid}")
    I(f"s_mov_b32 s11, {RS}")
    I(f"v_lshlrev_b32 v3, 4, v{u(9)}")
    I(f"v_mad_u32_u24 v4, v1, s11, v3")
    I(f"v_mul_u32_u24 v6, {LROW // 4}, v1")
    I(f"v_lshl_add_u32 v6, v{u(9)}, 2, v6")
    I(f"v_lshlrev_b32 v3, 2, v6")
    I(f"v_add_u32 v3, {P_CIMG}, v3")
    I(f"v_add_u32 v6, {P_EIMG}, v6")
    I(f"v_mov_b32 v{vTM}, {TMASK:#x}")
    I(f"v_mov_b32 v15, 0x0f0f0f")
    X0 = (LROW // 16) * H0
    sSO = sCI
    def cload(i):
        so = "0" if i == 0 else f"s{sSO+i-1}"
        I(f"buffer_load_dwordx4 {rr(vC+4*i,4)}, v{u(1)}, s[{sCEL}:{sCEL+3}], {so} offen sc1")
    def cloads():
        if opt("dly", 0): I(f"s_sleep {opt('dly', 0)}")
        stamp('w')
        for i in range(4): cload(i); vq.append("C")
    def prod(idx):
        n = len(idx)
        for i in idx: I(f"v_mul_u32_u24 v{pB+i}, s{c1}, v{pD+i}")
        for i in idx: I(f"v_lshrrev_b32 v{pB+i}, 24, v{pB+i}")
        for i in idx:
            I(f"v_lshl_add_u32 v{pH+i}, v{pB+i}, 2, s{c3}")
            I(f"ds_add_rtn_u32 v{pK+i}, v{pH+i}, v7 offset:{P_HIST - H0}")
        for i in idx:
            I(f"v_mad_i32_i24 v{pD+i}, v{pB+i}, s{c2}, v{pD+i}")
            I(f"v_or_b32 v{pD+i}, v{pD+i}, v{pI+i}")
        for j, i in enumerate(idx):
            I(f"s_waitcnt lgkmcnt({n - 1})")
            I(f"v_lshrrev_b32 v{pK+i}, 16, v{pK+i}")
            I(f"v_min_u32 v{pA+i}, {QCAP}, v{pK+i}")
            I(f"v_mad_u32_u24 v{pA+i}, v{pH+i}, {LROW // 16}, v{pA+i}")
            I(f"v_lshlrev_b32 v{pB+i}, 2, v{pA+i}")
            I(f"ds_write_b8 v{pA+i}, v{xb(i)} offset:{P_EIMG - X0}")
    def prod2(idx):
        for i in idx:
            I(f"v_lshl_add_u32 v{pS+i}, v{pS+i}, 16, v{pD+i}")
            I(f"ds_write_b32 v{pB+i}, v{pS+i} offset:{P_CIMG - 4*X0}")
    if WLP == 1: wloads()
    stamp('q')
    I(f"s_waitcnt vmcnt({younger('D')})")
    stamp('d')
    prod(range(6))
    I(f"s_cmp_lg_u32 s7, 0")
    I("s_cbranch_scc1 K1_NO7")
    I(f"s_mov_b64 exec, s[{pm}:{pm+1}]")
    I("s_waitcnt lgkmcnt(0)")
    prod([6])
    I(f"s_waitcnt vmcnt({younger('S')})")
    prod2([6])
    I("s_mov_b64 exec, -1")
    L("K1_NO7")
    if WLP == 2: wloads()
    I(f"s_waitcnt vmcnt({younger('S')})")
    prod2(range(6))
    I(f"s_lshl_b32 s15, s{sB}, 7")
    sST_ = sCEL
    srd(sST_, 8, 9, 511*RS + CELLB, "s15")
    I("s_waitcnt lgkmcnt(0)")
    I(f"s_add_u32 s{sEPN}, s{sEPN}, 1")
    I(f"s_and_b32 s10, s{sEPN}, 15")
    I(f"s_and_b32 s11, s{sEPN}, 0xf0")
    I(f"s_mul_i32 s{sTAG}, s10, 0x1010")
    I(f"s_lshl_b32 s11, s11, 16")
    I(f"s_xor_b32 s{sTAG}, s{sTAG}, 0xf000")
    I(f"s_or_b32 s{sTAG}, s{sTAG}, s11")
    I(f"s_mov_b32 s{sSPIN}, {opt('spin', 300000)}")
    I("s_barrier")
    stamp('i')
    oC, oE, oH, oA = vACC, vACC + 16, vACC + 20, vACC + 24
    I(f"ds_read_b128 {rr(oA,4)}, v{l16} offset:{P_HIST}")
    for i in range(4):
        I(f"ds_read_u16 v{oH+i}, v{hda} offset:{P_HIST + 256*i + 2}")
        I(f"ds_read_b32 v{oE+i}, v6 offset:{16*LROW*i}")
        I(f"ds_read_b128 {rr(oC+4*i,4)}, v3 offset:{64*LROW*i}")
    I("s_waitcnt lgkmcnt(12)")
    I(f"v_max3_u32 v1, v{oA}, v{oA+1}, v{oA+2}")
    I(f"v_max_u32 v1, v1, v{oA+3}")
    I(f"v_cmp_le_u32 vcc, {(QCAP + 1) << 16}, v1")
    I("s_mov_b32 s10, 0")
    I("s_cbranch_vccnz K1_OVF")
    L("K1_OUT")
    for i in range(4):
        r = oC + 4*i
        I(f"s_waitcnt lgkmcnt({9 - 3*i})")
        I(f"v_lshl_or_b32 v{oH+i}, v{oH+i}, 24, s{sTAG}")
        I(f"v_and_or_b32 v{r+3}, v{oE+i}, v15, v{oH+i}")
        I(f"buffer_store_dwordx4 {rr(r,4)}, v4, s[{sST_}:{sST_+3}], s10 offen sc1"); vq.append("O")
        I(f"s_add_u32 s10, s10, {64*RS}")
    I(f"v_max3_u32 v1, v{oH}, v{oH+1}, v{oH+2}")
    I(f"v_max_u32 v1, v1, v{oH+3}")
    I(f"v_cmp_le_u32 vcc, {33 << 24}, v1")
    I("s_cbranch_vccnz K1_EXT")
    L("K1_EXTR")
    stamp('o')
    if TS == 10:
        I("s_waitcnt vmcnt(0)")
        stamp('A')
    if opt("bar", 0): I("s_barrier")
    out.extend(static)
    I(f"s_mul_i32 s10, s{sB}, {RS}")
    srd(sCEL, 8, 9, NCH*CELLB, "s10")
    for k in (1, 2, 3):
        I(f"s_movk_i32 s{sSO+k-1}, {64*CELLB*k}")
    CP = opt("cp", 2)
    if CP == 0: cloads()
    I(f"s_mov_b32 s10, {f2u(-LOG2E):#x}")
    I(f"s_waitcnt vmcnt({younger('B')})")
    for i in range(8):
        I(f"v_lshlrev_b32 v{vAT+2*i}, 16, v{pW+i}")
        I(f"v_and_b32 v{vAT+2*i+1}, 0xffff0000, v{pW+i}")
    for i in range(16): I(f"v_mul_f32 v{vAT+i}, s10, v{vAT+i}")
    for i in range(8): I(f"v_cvt_pk_bf16_f32 v{pW+i}, v{vAT+2*i}, v{vAT+2*i+1}")
    I(f"ds_write_b128 v{u(1)}, {rr(pW,4)} offset:{WL + WI_B}")
    I(f"s_cmp_ge_u32 s7, 2")
    I("s_cbranch_scc1 K1_NOWC")
    I(f"ds_write_b128 v{u(1)}, {rr(pW+4,4)} offset:{WL + WI_C}")
    L("K1_NOWC")
    w0, w1, wc0, wc1, xa_ = vT1 + 1, vT1 + 2, vT1 + 3, vT1 + 4, vT
    I(f"v_bfe_u32 v{w0}, v{lane}, 2, 2")
    I(f"v_lshlrev_b32 v{w0}, 7, v{w0}")
    I(f"v_lshl_add_u32 v{w0}, v{vCH}, 2, v{w0}")
    I(f"v_and_b32 v{w1}, 16, v{lane}")
    I(f"v_and_b32 v{wc0}, 2, v{lane}")
    I(f"v_lshl_add_u32 v{w1}, v{wc0}, 2, v{w1}")
    I(f"v_and_b32 v{wc0}, 8, v{lane}")
    I(f"v_lshl_add_u32 v{w1}, v{wc0}, 2, v{w1}")
    I(f"v_add_u32 v{w0}, v{w0}, v{w1}")
    I(f"v_lshl_add_u32 v{wc0}, v{u(5)}, 10, v{w0}")
    I(f"v_lshl_add_u32 v{w0}, v{u(5)}, 12, v{w0}")
    I(f"v_xor_b32 v{w1}, 32, v{w0}")
    I(f"v_xor_b32 v{wc1}, 32, v{wc0}")
    def wtr(reg, img, ft, s_, c=False):
        ad = (wc0, wc1)[ft] if c else (w0, w1)[ft]
        return [f"ds_read_b64_tr_b16 {rr(reg+2*h_,2)}, v{ad} offset:{WL + img + 1024*s_ + 512*h_}" for h_ in range(2)]
    I(f"s_lshl_b32 s10, s7, 10")
    I(f"s_and_b32 s11, s7, 4")
    I(f"s_mul_i32 s11, s11, {8 - 1024}")
    I(f"s_add_u32 s11, s11, s10")
    I(f"v_xor_b32 v{xa_}, s11, v{w0}")
    I(f"s_waitcnt vmcnt({0 if opt('ack', 1) else younger('W')}) lgkmcnt(0)")
    I("s_barrier")
    if CP == 1: cloads()
    for h_ in range(2):
        I(f"ds_read_b64_tr_b16 {rr(vAT+2*h_,2)}, v{xa_} offset:{WL + WI_U + 512*h_}")
        I(f"ds_read_b64_tr_b16 {rr(vAT+4+2*h_,2)}, v{xa_} offset:{WL + WI_A + 512*h_}")
    I(f"v_add_u32 v{xa_}, s10, v{l16}")
    rest = []
    for reg, img in ((vWB, WI_B), (vWC, WI_C), (vWV, WI_V)):
        for ft in range(2):
            if img == WI_C: rest += wtr(vWC + 4*ft, WI_C, ft, 0, True)
            else:
                for s_ in range(4): rest += wtr(reg + 16*ft + 4*s_, img, ft, s_)
    for x_ in rest[:8]: I(x_)
    rest = rest[8:]
    I("s_waitcnt lgkmcnt(8)")
    I(f"ds_write_b128 v{xa_}, {rr(vAT,4)} offset:{WU}")
    I(f"s_mov_b32 s10, {f2u(-LOG2E):#x}")
    for i in range(4):
        I(f"v_lshlrev_b32 v{vAT+8+2*i}, 16, v{vAT+4+i}")
        I(f"v_and_b32 v{vAT+9+2*i}, 0xffff0000, v{vAT+4+i}")
    for i in range(8): I(f"v_mul_f32 v{vAT+8+i}, s10, v{vAT+8+i}")
    for i in range(4): I(f"v_cvt_pk_bf16_f32 v{vAT+4+i}, v{vAT+8+2*i}, v{vAT+9+2*i}")
    I(f"ds_write_b128 v{xa_}, {rr(vAT+4,4)} offset:{WA}")
    QK, QB = opt("qk", 12), 252 * 16
    I(f"v_and_b32 v{u(0)}, 3, v{lane}")
    I(f"v_lshlrev_b32 v{u(2)}, 4, v{u(0)}")
    I(f"v_mul_u32_u24 v{u(0)}, {2*LCAP*4}, v{u(0)}")
    I(f"v_add_u32 v{u(0)}, {LCAP*4}, v{u(0)}")
    I(f"ds_write_b16 v{u(2)}, v{u(0)} offset:{HIST + QB + 2}")
    while rest:
        I("s_waitcnt lgkmcnt(8)")
        for x_ in rest[:6]: I(x_)
        rest = rest[6:]
    stamp('k')
    sPH = 5
    ROT = opt("rot", 1)
    I(f"s_mov_b32 s{sPH}, {85899 if ROT else PHM}")
    if ROT:
        assert SOFF == 0
        I(f"s_lshr_b32 s6, s{sB}, 5")
        I(f"s_mul_i32 s6, s6, {32 * BN * 85899}")
        I(f"s_sub_u32 s6, s6, {opt('rof', 0) * 85899}")
    if CP == 2: cloads()
    sSEL = sM + 24
    for j in range(3): I(f"s_mov_b32 s{sSEL+j}, {0x0c0c0001 | (4 + j) << 8:#x}")
    I(f"s_mov_b32 s{sSEL+3}, 0x05040100")
    sQM = [sM + 28, sM + 30, sTMP]
    I(f"s_movk_i32 s4, 1338")
    I(f"s_movk_i32 s13, {QB}")
    I(f"s_movk_i32 s14, {QK * 1338}")
    I("s_waitcnt lgkmcnt(0)")
    I("s_barrier")
    vEO = vX
    SW1 = "dst_sel:DWORD dst_unused:UNUSED_PAD src0_sel:DWORD src1_sel:WORD_1"
    def haddr(d, r):
        return [f"v_mul_u32_u24_sdwa v{d}, s{sPH}, v{r} {SW1}"] + ([f"v_subrev_u32 v{d}, s6, v{d}"] if ROT else []) + [f"v_alignbit_b32 v{d}, v{r}, v{d}, 28", f"v_and_b32 v{d}, 0xffc, v{d}"]
    def remain(d, r, k):
        I(f"v_sub_u32_sdwa v{d}, v{r}, v{k} dst_sel:DWORD dst_unused:UNUSED_PAD src0_sel:BYTE_3 src1_sel:DWORD")
    for i in range(4):
        L(f"K2_CHK{i}")
        I(f"s_waitcnt vmcnt({3 - i})")
        r = vC + 4*i
        I(f"v_bitop3_b32 v{u(0)}, v{r+3}, s{sTAG}, v{vTM} bitop3:0x28")
        I(f"v_cmp_ne_u32 vcc, 0, v{u(0)}")
        remain(u(0), r + 3, k4)
        hs = [haddr(vA+3*i+j, r+j) for j in range(3)]
        for j in range(3): I(hs[j][0])
        I(f"s_cbranch_vccnz K2_RETRY{i}")
        if i == 0: stamp(1)
        for j in range(3):
            m = sM + 2*(3*i+j)
            I(f"v_cmp_lt_i32 s[{m}:{m+1}], {j}, v{u(0)}")
        for st in range(1, len(hs[0])):
            for j in range(3): I(hs[j][st])
        if i == 0:
            qt = hh
            for j in range(3): I(f"v_mul_u32_u24_sdwa v{qt+j}, s4, v{r+j} dst_sel:DWORD dst_unused:UNUSED_PAD src0_sel:DWORD src1_sel:BYTE_0")
            for j in range(3): I(f"v_subrev_u32 v{qt+j}, {30 * 1338}, v{qt+j}")
            for j in range(3): I(f"v_cmp_gt_u16 s[{sQM[j]}:{sQM[j]+1}], s14, v{qt+j}")
            for j in range(3): I(f"v_lshrrev_b32 v{qt+j}, 16, v{qt+j}")
            for j in range(3): I(f"v_lshl_add_u32 v{qt+j}, v{qt+j}, 4, s13")
            for j in range(3): I(f"v_cndmask_b32 v{vA+j}, v{vA+j}, v{qt+j}, s[{sQM[j]}:{sQM[j]+1}]")
        for j in range(3):
            m = sM + 2*(3*i+j)
            I(f"s_mov_b64 exec, s[{m}:{m+1}]")
            I(f"ds_add_rtn_u32 v{vRK+3*i+j}, v{vA+3*i+j}, v{one} offset:{HIST}")
        I("s_mov_b64 exec, -1")
        if i == 0:
            I(f"v_and_b32 v{qt+3}, 0x0f0f0f, v{r+3}")
            for j in range(3):
                I(f"v_perm_b32 v{vEO+j}, v{qt+3}, v{r+j}, s{sSEL+j}")
                I(f"s_and_b64 s[{sQM[j]}:{sQM[j]+1}], s[{sQM[j]}:{sQM[j]+1}], s[{sM+2*j}:{sM+2*j+1}]")
                I(f"v_lshl_add_u32 v{vEO+j}, v{vEO+j}, 5, v{vEB}")
                I(f"s_andn2_b64 s[{sM+2*j}:{sM+2*j+1}], s[{sM+2*j}:{sM+2*j+1}], s[{sQM[j]}:{sQM[j]+1}]")
        if i == 0: I("s_waitcnt lgkmcnt(0)") if opt("qw", 1) == 0 else None
        if i == opt("qw", 1):
            I("s_waitcnt lgkmcnt(0)")
            for j in range(3):
                I(f"v_min_u16 v{qt+j}, {LMAX*4}, v{vRK+j}")
                I(f"v_add_u32_sdwa v{qt+j}, v{qt+j}, v{vRK+j} dst_sel:DWORD dst_unused:UNUSED_PAD src0_sel:WORD_0 src1_sel:WORD_1")
            for j in range(3):
                I(f"s_mov_b64 exec, s[{sQM[j]}:{sQM[j]+1}]")
                I(f"ds_write2st64_b32 v{qt+j}, v{vC+j}, v{vEO+j} offset0:{R0//256} offset1:{R1//256}")
            I("s_mov_b64 exec, -1")
    I(f"v_max3_u32 v{u(0)}, v{vC+3}, v{vC+7}, v{vC+11}")
    I(f"v_max_u32 v{u(0)}, v{u(0)}, v{vC+15}")
    I(f"v_cmp_le_u32 vcc, {33 << 24}, v{u(0)}")
    I("s_cbranch_vccnz K2_XT1")
    L("K2_XT1R")
    fill = []
    for i in range(1, 4):
        fill.append(f"v_and_b32 v{vC+4*i+3}, 0x0f0f0f, v{vC+4*i+3}")
    for i in range(1, 4):
        for j in range(3): fill.append(f"v_perm_b32 v{vEO+3*i+j}, v{vC+4*i+3}, v{vC+4*i+j}, s{sSEL+j}")
    for i in range(1, 4):
        for j in range(3): fill.append(f"v_lshl_add_u32 v{vEO+3*i+j}, v{vEO+3*i+j}, 5, v{vEB+i}")
    I(f"s_lshr_b32 s4, s{sW}, 1")
    I(f"s_add_u32 s4, s4, 60")
    stamp('s')
    I("s_waitcnt lgkmcnt(0)")
    I("s_barrier")
    stamp(2)
    c, p, tot, sc = u(0), u(4), u(8), u(9)
    own, ownn, owna = u(10), u(11), u(12)
    SD = "dst_sel:DWORD dst_unused:UNUSED_PAD src0_sel:WORD_0 src1_sel:WORD_0"
    sQ, sQD = sM + 28, sM + 29
    def first_reads():
        I(f"ds_read_b128 {rr(vQD,4)}, v{vARX}")
        I(f"ds_read_b32 v{vR1}, v{vARE}")
        I(f"ds_read_u8 v{vL1}, v{vARP}")
    I(f"ds_read_b128 {rr(hh+12,4)}, v{l16} offset:{HIST + 3072}")
    first_reads()
    for i in range(3):
        I(f"ds_read_b128 {rr(hh+4*i,4)}, v{l16} offset:{HIST + 1024*i}")
    I(f"ds_read_b64 v[{u(6)}:{u(7)}], v{owna} offset:{HIST}")
    XY = opt("xy", 2)
    if XY:
        I(f"s_bitcmp1_b32 s{sW}, 0")
        I("s_cbranch_scc0 K2_NOX1")
    xloads()
    L("K2_NOX1")
    def xlate():
        I(f"s_bitcmp1_b32 s{sW}, 0")
        I("s_cbranch_scc1 K2_NOX2")
        xloads()
        L("K2_NOX2")
    I("s_waitcnt lgkmcnt(5)")
    I(f"v_readlane_b32 s{sQ}, v{hh+12}, s4")
    I(fill.pop(0)); I(fill.pop(0))
    I(f"s_and_b32 s{sQ}, s{sQ}, 0xffff")
    I(f"s_bitcmp1_b32 s{sW}, 0")
    I(f"s_cselect_b32 s{sQ}, s{sQ}, 0")
    I(f"s_cmp_ge_u32 s{sQ}, 128")
    I(f"s_cselect_b32 s{sQD}, 1, 0")
    I("s_cbranch_scc0 K2_NOQ")
    for x_ in dma_tile(0): I(x_)
    L("K2_NOQ")
    for i in (3, 0, 1, 2):
        if i < 3: I(f"s_waitcnt lgkmcnt({3 - i})")
        I(f"v_add_u32_sdwa v{c+i}, v{hh+4*i}, v{hh+4*i+1} {SD}")
        I(f"v_add_u32_sdwa v{hh+4*i}, v{hh+4*i+2}, v{hh+4*i+3} {SD}")
        I(f"v_add_u32 v{c+i}, v{c+i}, v{hh+4*i}")
    I(f"v_lshl_or_b32 v{p}, v{c+1}, 16, v{c}")
    I(f"v_lshl_or_b32 v{p+1}, v{c+3}, 16, v{c+2}")
    I("s_waitcnt lgkmcnt(0)")
    I(f"v_perm_b32 v{own}, v{u(7)}, v{u(6)}, s{sSEL+3}")
    for dp in ["row_shr:%d row_mask:0xf bank_mask:0xf bound_ctrl:0" % sh for sh in (1, 2, 4, 8)] + \
              ["row_bcast:15 row_mask:0xa bank_mask:0xf", "row_bcast:31 row_mask:0xc bank_mask:0xf"]:
        I(f"v_add_u32_dpp v{p}, v{p}, v{p} {dp}")
        I(f"v_add_u32_dpp v{p+1}, v{p+1}, v{p+1} {dp}")
        I(fill.pop(0) if fill else "s_nop 0")
    I("s_sub_u32 s4, s4, 1")
    I(f"v_readlane_b32 s10, v{p}, 63")
    I(f"v_readlane_b32 s11, v{p+1}, 63")
    I(f"v_readlane_b32 s{sF1}, v{p+1}, 59")
    I(f"v_readlane_b32 s{sTMP}, v{p+1}, s4")
    for i in range(3):
        I(f"v_lshlrev_b32_sdwa v{hh+i}, v{ecb}, v{p+(i>>1)} dst_sel:DWORD dst_unused:UNUSED_PAD src0_sel:DWORD src1_sel:WORD_{i&1}")
        I(f"v_sub_u32 v{c+i}, v{hh+i}, v{c+i}")
    b1, b2 = 4, 5
    I(f"s_and_b32 s{b1}, s10, 0xffff")
    I("s_lshr_b32 s10, s10, 16")
    I(f"s_add_u32 s{b2}, s{b1}, s10")
    I("s_and_b32 s10, s11, 0xffff")
    I(f"s_add_u32 s10, s{b2}, s10")
    I("s_lshr_b32 s11, s11, 16")
    I(f"s_add_u32 s10, s10, s11")
    I(f"s_lshr_b32 s{sF1}, s{sF1}, 16")
    I(f"s_lshr_b32 s{sTMP}, s{sTMP}, 16")
    I(f"s_sub_u32 s6, s{sTMP}, s{sF1}")
    I(f"s_lshl_b32 s6, s6, 1")
    for i, b in ((1, b1), (2, b2)):
        I(f"v_lshl_add_u32 v{c+i}, s{b}, 1, v{c+i}")
    KV = opt("kv", "1_4_3216_5") if SBK else ""
    if KV:
        klo, khi, kref, ksh = [int(x) for x in KV.split("_")]
        assert klo >= 1
        I(f"s_sub_i32 s{sSB}, {4*kref}, s10")
        I(f"s_ashr_i32 s{sSB}, s{sSB}, {ksh + 2}")
        I(f"s_max_i32 s{sSB}, s{sSB}, {klo}")
        I(f"s_min_i32 s{sSB}, s{sSB}, {khi}")
    I("s_lshr_b32 s11, s10, 5")
    I(f"s_add_u32 s11, s11, 16")
    I("s_and_b32 s11, s11, -32")
    if KV:
        I(f"s_cmp_ge_i32 s{sSB}, {opt('shk', 1)}")
        I(f"s_cselect_b32 s{sF0}, {ASYM + 32}, {ASYM}")
        I(f"s_sub_i32 s11, s11, s{sF0}")
    else: I(f"s_sub_i32 s11, s11, {ASYM + 32*opt('sh', 1)}")
    I("s_lshl_b32 s11, s11, 3")
    I("s_lshr_b32 s10, s10, 1")
    I(f"s_lshr_b32 s{sF0}, s{sW}, 1")
    I(f"s_mul_i32 s{sF0}, s{sF0}, s10")
    I(f"s_sub_i32 s{sF0}, s{sF0}, s6")
    I(f"s_sub_i32 s10, s10, s{sQ}")
    I(f"s_sub_i32 s10, s10, s{sQ}")
    I(f"s_add_i32 s11, s11, s{sF0}")
    I(f"s_add_i32 s10, s10, s{sF0}")
    I(f"s_bitcmp1_b32 s{sW}, 0")
    I(f"s_cselect_b32 s{sEND}, s11, s{sF0}")
    I("s_cselect_b32 s10, s10, s11")
    I(f"s_mov_b32 s{sF0}, 0")
    I(f"s_mov_b32 s{sF1}, 0")
    for i in range(3):
        I(f"v_cmp_gt_i32 vcc, s{sEND}, v{c+i}")
        I(f"v_cmp_gt_i32 s[{sTMP}:{sTMP+1}], s10, v{c+i}")
        I("s_bcnt1_i32_b64 s11, vcc")
        I(f"s_add_u32 s{sF0}, s{sF0}, s11")
        I(f"s_bcnt1_i32_b64 s11, s[{sTMP}:{sTMP+1}]")
        I(f"s_add_u32 s{sF1}, s{sF1}, s11")
    I(f"s_max_i32 s{sF0}, s{sF0}, s{lo0}")
    I(f"s_min_i32 s{sF0}, s{sF0}, s{hi0}")
    I(f"s_max_i32 s{sF1}, s{sF1}, s{lo1}")
    I(f"s_min_i32 s{sF1}, s{sF1}, s{hi1}")
    I(f"v_cmp_le_u32 vcc, s{sF0}, v{ownn}")
    I(f"v_cmp_gt_u32 s[10:11], s{sF1}, v{ownn}")
    I("s_nop 0")
    I("s_and_b64 vcc, vcc, s[10:11]")
    I(f"v_cndmask_b32 v{own}, 0, v{own}, vcc")
    I(f"v_mov_b32 v{tot}, v{own}")
    wave_scan(tot, fill, half=True)
    for x_ in fill: I(x_)
    I(f"s_sub_u32 s{sTMP}, s{sL}, {R0}")
    I(f"s_add_u32 s{sTMP}, s{sTMP}, s{sQ}")
    I(f"v_readlane_b32 s10, v{tot}, 31")
    I(f"v_readlane_b32 s11, v{tot}, 63")
    I(f"v_sub_u32 v{tot}, v{tot}, v{own}")
    I(f"v_mov_b32 v{vOWN}, v{u(14)}")
    I(f"s_and_b32 s{sTH}, s10, 0xffff")
    I("s_lshr_b32 s10, s10, 16")
    I(f"s_add_u32 s{sTH+1}, s{sTH}, s10")
    I("s_and_b32 s10, s11, 0xffff")
    I(f"s_add_u32 s{sTH+2}, s{sTH+1}, s10")
    I("s_lshr_b32 s11, s11, 16")
    I(f"s_add_u32 s{sEND}, s{sTH+2}, s11")
    I(f"s_lshl_b32 s10, s{sTH}, 16")
    I(f"s_pack_ll_b32_b16 s11, s{sTH+1}, s{sTH+2}")
    I(f"s_pack_ll_b32_b16 s{sTMP}, s{sTMP}, s{sTMP}")
    I(f"s_add_u32 s10, s10, s{sTMP}")
    I(f"s_add_u32 s11, s11, s{sTMP}")
    I("s_mov_b32 exec_lo, vcc_lo")
    I("s_mov_b32 exec_hi, 0")
    I(f"v_add_u32 v{tot}, s10, v{tot}")
    I("s_mov_b32 exec_lo, 0")
    I("s_mov_b32 exec_hi, vcc_hi")
    I(f"v_add_u32 v{tot}, s11, v{tot}")
    I("s_mov_b64 exec, vcc")
    I(f"ds_write_b16 v{owna}, v{tot} offset:{HIST + 2}")
    I(f"ds_write_b16_d16_hi v{owna}, v{tot} offset:{HIST + 6}")
    I(f"ds_write_b32 v{vMIN+1}, v{vMIN} offset:{MAP}")
    I("s_mov_b64 exec, -1")
    I(f"v_mov_b32 v{sc}, {FLAG}")
    I(f"s_add_u32 s{sEND}, s{sEND}, s{sQ}")
    I(f"s_add_u32 s{sQ}, s{sQ}, {opt('tho', 64)}")
    I(f"s_cmp_le_u32 s{sEND}, {LMAX*4}")
    I("s_cbranch_scc1 K2_LFIT")
    I(f"ds_write_b32 v{sc}, v{sc}")
    I(f"s_mov_b32 s{sEND}, 0")
    L("K2_LFIT")
    I(f"s_add_u32 s{sEND}, s{sEND}, s{sL}")
    for k in range(3):
        I(f"s_add_i32 s{sTH+k}, s{sTH+k}, s{sQ}")
        I(f"s_lshr_b32 s{sTH+k}, s{sTH+k}, 7")
    pads(lane, u(0), u(1), u(2))
    I(f"v_mov_b32 v{u(0)}, s{sEND}")
    I(f"ds_write_b32 v{vMIN}, v{u(0)} offset:{CNT}")
    if XY == 1: xlate()
    I("s_waitcnt lgkmcnt(0)")
    stamp('a')
    I("s_barrier")
    stamp('b')
    I(f"ds_read_b64 v[{u(6)}:{u(7)}], v{sc}")
    for s in range(12):
        m = sM + 2*s
        I(f"s_mov_b64 exec, s[{m}:{m+1}]")
        I(f"ds_read_u16 v{vA+s}, v{vA+s} offset:{HIST + 2}")
    I("s_mov_b64 exec, -1")
    I(f"s_waitcnt lgkmcnt(0)")
    I(f"v_readfirstlane_b32 s{sST}, v{u(6)}")
    I(f"v_readfirstlane_b32 s{sCUR}, v{u(7)}")
    for s in range(12): I(f"v_add_u32 v{vA+s}, v{vA+s}, v{vRK+s}")
    I(f"s_cmp_gt_u32 s{sST}, {XMAX}")
    I("s_cbranch_scc1 K2_OVF")
    for s in range(12):
        m = sM + 2*s
        I(f"s_mov_b64 exec, s[{m}:{m+1}]")
        I(f"ds_write2st64_b32 v{vA+s}, v{vC+4*(s//3)+s%3}, v{vEO+s} offset0:{R0//256} offset1:{R1//256}")
    I("s_mov_b64 exec, -1")
    L("K2_PADS0")
    sERL = 1
    I(f"s_add_u32 s10, s{sSB}, 2")
    I(f"s_cmp_gt_u32 s{sN}, s10")
    I(f"s_cselect_b32 s{sERL}, s{sW}, 0")
    I(f"s_mov_b32 s{sCI}, -1")
    I(f"s_mov_b64 s[{sMSK}:{sMSK+1}], 0")
    I(f"s_mov_b32 s{sR0}, 0")
    I(f"s_mov_b32 s{sCNT}, 0")
    I(f"s_cmp_lg_u32 s{sCUR}, 0")
    I(f"s_cselect_b32 s{sMORE}, 1, 0")
    def atable():
        vWA = vACC
        for q in range(4): I(f"ds_read_b128 {rr(vX+4*q,4)}, v{vXA} offset:{16*q}")
        I(f"v_add_u32 v{l16}, 8192, v{l16}")
        for k in range(8): I(f"ds_read_b128 {rr(vWA+4*k,4)}, v{l16} offset:{WA - 8192 + 1024*k}")
        I(f"s_mov_b32 s10, {f2u(1e-6):#x}")
        I(f"s_mov_b32 s11, s10")
        I(mfma(NUM(1), vT2, vT2))
        for i in range(8): I(f"v_mov_b64 v[{DEN(1)+2*i}:{DEN(1)+2*i+1}], s[10:11]")
        for k in range(8):
            D = (vP, vQ)[k >> 2]
            I(f"s_waitcnt lgkmcnt({7 - k})")
            I(mfma(D, vX + 4*(k & 3), vWA + 4*k, None if k & 3 == 0 else D))
    def atable2():
        I(mfma(NUM(0), vT2, vT2))
        I(f"s_mov_b32 s10, {f2u(1e-6):#x}")
        I(f"s_mov_b32 s11, s10")
        for i in range(8): I(f"v_mov_b64 v[{DEN(0)+2*i}:{DEN(0)+2*i+1}], s[10:11]")
        for i in range(16): I(f"v_cvt_pk_bf16_f32 v{vAT+i}, v{vP+2*i}, v{vP+2*i+1}")
    def first_tile():
        first_reads()
        I("s_waitcnt lgkmcnt(1)")
        for s in dma_tile(0): I(s)
    EM2 = 1
    def newend(tag):
        I(f"s_cmp_eq_u32 s{sST}, 0")
        I(f"s_cbranch_scc1 K2_NE{tag}")
        I(f"s_lshl_b32 s10, s{sW}, 2")
        I(f"v_mov_b32 v{vT1+6}, s10")
        I(f"ds_read_b32 v{vT1+6}, v{vT1+6} offset:{CNT}")
        I("s_waitcnt lgkmcnt(0)")
        I(f"v_readfirstlane_b32 s{sEND}, v{vT1+6}")
        I("s_nop 3")
        ntiles()
        L(f"K2_NE{tag}")
    I(f"s_and_b32 s{sQD}, s{sQD}, s{sERL}")
    I(f"s_cmp_gt_u32 s{sQD}, s{sXT}")
    I("s_cbranch_scc0 K2_SIDE")
    I("s_waitcnt vmcnt(5) lgkmcnt(0)")
    atable()
    stamp('c')
    I("s_barrier")
    stamp(3)
    atable2()
    I("s_branch K2_HAD0")
    L("K2_SIDE")
    if XY == 2: xlate()
    I("s_waitcnt vmcnt(5) lgkmcnt(0)")
    stamp('c')
    I("s_barrier")
    stamp(3)
    I(f"s_cmp_lg_u32 s{sQD}, 0")
    I("s_cbranch_scc1 K2_SIDE1")
    I(f"s_waitcnt vmcnt({0 if XY == 3 else 4})")
    I(f"s_bitcmp1_b32 s{sW}, 0")
    I("s_cbranch_scc0 K2_SIDE1")
    I("s_waitcnt vmcnt(0)")
    I(f"s_bitcmp1_b32 s{sERL}, 0")
    I("s_cbranch_scc0 K2_SIDE1")
    first_tile()
    L("K2_SIDE1")
    I(f"s_cmp_lg_u32 s{sXT}, 0")
    I("s_cbranch_scc1 K2_XT2")
    L("K2_XT2R")
    I(f"s_bitcmp1_b32 s{sERL}, 0")
    I("s_cbranch_scc1 K2_SIDE2")
    I("s_barrier")
    newend("y")
    if XY == 3: xlate()
    first_tile()
    L("K2_SIDE2")
    I("s_waitcnt vmcnt(5) lgkmcnt(0)")
    atable()
    atable2()
    I("s_branch K2_HAD0")
    L("K2_GO")
    first_tile()
    L("K2_HAD0")
    I("s_waitcnt lgkmcnt(0)")
    I(f"v_lshl_add_u32 v{vL1}, v{vL1}, 6, v{vC1}")
    I(f"ds_read_b128 {rr(vQD,4)}, v{vARX} offset:128")
    I(f"ds_read_b32 v{vR1}, v{vARE} offset:128")
    for s in t1_reads(): I(s)
    I(mfma(vQ, vT2, vT2))
    stamp(4)
    I("s_waitcnt vmcnt(0)")
    stamp(5)
    I(f"ds_read_b128 {rr(vE,4)}, v{vAE}")
    for q in range(4):
        I(f"ds_read_b128 {rr(vX+4*q,4)}, v{vAX} offset:{16*q}")
    I("s_waitcnt lgkmcnt(0)")
    if EM2:
        for x_ in dma_tile(0): I(x_)
        I(f"s_cmp_lt_i32 s{sSB}, 0")
        I("s_cbranch_scc1 K2_B1")
        I("s_barrier")
        I(f"s_bitcmp1_b32 s{sERL}, 0")
        I(f"s_cselect_b32 s{sSB}, s{sSB}, -1")
        I("s_cbranch_scc0 K2_B1")
        newend("o")
        L("K2_B1")
        I(f"s_cmp_lg_u32 s{sN}, 0")
        I("s_cbranch_scc1 K2_NZ")
        I("s_waitcnt vmcnt(0)")
        I("s_branch K2_DONE")
        L("K2_NZ")
    else:
        I(f"s_cmp_eq_u32 s{sN}, 0")
        I("s_cbranch_scc1 K2_DONE")
    for s in g_mfmas(vP, 0):
        if s.startswith("v_smfmac"):
            if EM2: I("s_nop 9")
            else:
                for x_ in dma_tile(0): I(x_)
        I(s)
    stamp('L')
    I(f"s_mov_b32 s{sT}, 0")
    sEV = 87
    TPF, sPFT = opt("tpf", 0), 0
    LT = [int(x) for x in opt("lt", "1234")] if opt("lt", "1234") != "0" else []
    def prio_code(uid):
        return [f"s_cmp_ge_u32 s{sT}, s{sEV}", f"s_cbranch_scc1 K2_EV{uid}", f"K2_EVR{uid}:"]
    def next_event():
        I(f"s_mov_b32 s{sEV}, s{sN}")
        for r in [sTH, sTH+1, sTH+2] + ([sSB] if SBK else []) + ([sN1] if LT else []) + ([sPFT] if TPF else []):
            I(f"s_cmp_gt_i32 s{r}, s{sT}")
            I(f"s_cselect_b32 s10, s{r}, s{sEV}")
            I(f"s_min_u32 s{sEV}, s{sEV}, s10")
    YK = opt("yk", 2)
    if YK:
        I(f"s_sub_u32 s10, s{sN}, {YK - 1 if YK < 10 else 0}")
        I(f"s_bitcmp1_b32 s{sW}, 0")
        I(f"s_cselect_b32 s{sTH+2}, s{sTH+2}, s10")
    I("s_setprio 3")
    if TPF: I(f"s_sub_i32 s{sPFT}, s{sN}, {TPF}")
    next_event()
    tst = ["s_memrealtime s[98:99]", "s_waitcnt lgkmcnt(0)", "s_mov_b32 m0, s72", "s_nop 0", "v_writelane_b32 v255, s98, m0", "s_memtime s[98:99]", "s_waitcnt lgkmcnt(0)", "s_add_u32 m0, s72, 32", "s_nop 0", "v_writelane_b32 v255, s98, m0"] if TS == 4 else []
    body = tst + phaseA(0) + phaseB(0)
    body += prio_code(0)
    body += tst + phaseA(1) + phaseB(1)
    body += [f"v_add_u32 v{r}, 0x100, v{r}" for r in (vARX, vARP, vARE, vART)]
    body += [f"s_cmp_lt_u32 s{sT}, s{sEV}", f"s_cbranch_scc1 K2_LOOP"]
    check_body(body)
    DBG = opt("dbg", "")
    if "ell" in DBG:
        nb = []
        for b in body:
            if b.startswith("v_smfmac") and b.endswith(f"v{vIX}"): continue
            if b.startswith("v_smfmac") and "noA" in DBG: continue
            if b.startswith("ds_read_b64_tr") or b.startswith("ds_read_u8 v23") or b.startswith("v_lshl_add_u32 v23"): continue
            m = re.fullmatch(r"v_mul_f32 v(\d+), v(\d+), v\d+", b)
            if m:
                h, g = int(m.group(1)), int(m.group(2)); ft = 0 if g < vQ else 1; i = h - vQ
                nb.append(f"v_fmac_f32 v{NUM(ft)+i}, v{g}, v{h}")
                nb.append(f"v_add_f32 v{DEN(ft)+i}, v{DEN(ft)+i}, v{g}")
                continue
            nb.append(b)
        body = nb
    if "fl" in DBG:
        nb = []; cnt = 0
        for b in body:
            if b.startswith("ds_read_b128 v[172") or b.startswith("ds_read_b32 v176") or b.startswith("ds_read_u8 v250") or b.startswith("v_lshl_add_u32 v250"): continue
            m = re.fullmatch(r"v_add_f32 v(\d+), v(\d+), v(\d+)", b)
            if m:
                cnt += 1
                if cnt % 4 == 0:
                    k = (cnt // 4) % 4
                    nb.append(f"v_cvt_pk_bf16_f32 v{vT2+k}, v{m.group(1)}, v{int(m.group(1))+16}")
                    nb.append(f"ds_pk_add_bf16 v{vT1+7}, v{vT2+k} offset:{256*(cnt%64)//4}")
                    nb.append(f"ds_read_u16_d16_hi v{vAT+k}, v{vC1} offset:{16384 + 128*k}")
                    if k % 2: nb.append(f"v_add_u32 v{vT2+4}, v{vT2+5}, v{vC1}")
                    continue
            if b.startswith("s_waitcnt lgkmcnt"): b = "s_waitcnt lgkmcnt(0)" if "(0)" in b else b
            nb.append(b)
        body = [f"v_lshl_add_u32 v{vT1+7}, v{lane}, 2, s{sSTG}", f"v_subrev_u32 v{vT1+7}, 33280, v{vT1+7}", f"v_lshlrev_b32 v{vC1}, 1, v{lane}"] + nb
    if "drop" in DBG:
        n = int(DBG[DBG.index("drop") + 4:])
        body = [b for b in body if not (b.startswith("v_add_f32") and (int(b.split()[1][1:-1]) - vP) % 16 < n)]
    if "half" in DBG:
        body = [b for b in body if not (b.startswith("v_smfmac") and b.endswith(f"v{vIX}") and f"v[{vT2+4}:" in b)]
    if "nodma" in DBG: body = [b for b in body if not b.startswith("buffer_load")]
    emit(".p2align 6")
    L("K2_LOOP")
    for s in body:
        if s.endswith(":"): L(s[:-1])
        else: I(s)
    for uid in (1, 0):
        if uid == 0: L("K2_EV0")
        I(f"s_cmp_ge_u32 s{sT}, s{sN}")
        I("s_cbranch_scc1 K2_TAIL")
        if SBK:
            I(f"s_cmp_lg_u32 s{sT}, s{sSB}")
            I(f"s_cbranch_scc1 K2_SB{uid}")
            I("s_barrier")
            if EM2: I(f"s_mov_b32 s{sSB}, -1")
            else: newend(uid)
            L(f"K2_SB{uid}")
        for k in range(3):
            I(f"s_cmp_lg_u32 s{sT}, s{sTH+k}")
            I(f"s_cbranch_scc1 K2_PR{uid}_{k}")
            I(f"s_setprio {2-k}")
            L(f"K2_PR{uid}_{k}")
        if TPF:
            I(f"s_cmp_lg_u32 s{sT}, s{sPFT}")
            I(f"s_cbranch_scc1 K2_TP{uid}")
            I("s_getpc_b64 s[10:11]")
            L(f"K2_TPC{uid}")
            I(f"v_lshlrev_b32 v{vT1+7}, 7, v{lane}")
            I(f"v_min_u32 v{vT1+7}, K2_END-K2_TPC{uid}, v{vT1+7}")
            I(f"global_load_dword v{vT1+6}, v{vT1+7}, s[10:11]")
            L(f"K2_TP{uid}")
        if LT:
            I(f"s_cmp_eq_u32 s{sT}, s{sN1}")
            I(f"s_cbranch_scc1 K2_LT{uid}")
        next_event()
        I("s_branch K2_LOOP" if uid else "s_branch K2_EVR0")
    if LT:
        L("K2_LT0")
        I(f"v_add_u32 v{vART}, 128, v{vART}")
        L("K2_LT1")
        I(f"s_sub_u32 s10, s{sEND}, s{sL}")
        I(f"s_sub_u32 s10, s10, 4")
        I(f"s_and_b32 s10, s10, 127")
        for ng in LT[:-1]:
            I(f"s_cmp_lt_u32 s10, {32*ng}")
            I(f"s_cbranch_scc1 K2_LG{ng}")
        for ng in reversed(LT):
            if ng != LT[-1]: L(f"K2_LG{ng}")
            for x_ in last_tile(ng): I(x_)
            I("s_branch K2_DONE")
    L("K2_TAIL")
    for s in s_mfmas(NUM(1), vQ): I(s)
    L("K2_DONE")
    I(f"s_cmp_lg_u32 s{sMORE}, 0")
    I("s_cbranch_scc1 K2_SLOW")
    L("K2_EPI")
    stamp(6)
    I(f"v_lshlrev_b32 v{vT}, 4, v{lane}")
    for q in range(4):
        I(f"ds_read_b128 {rr(vX+4*q,4)}, v{vOWN} offset:{16*q}")
    for k in range(8):
        I(f"ds_read_b128 {rr(vWB+4*k,4)}, v{vT} offset:{WU + 1024*k}")
    I(f"v_and_b32 v{vQD+1}, 31, v{lane}")
    I(f"v_and_b32 v{vC1}, 32, v{lane}")
    I(f"v_mul_u32_u24 v{vC2}, 144, v{vQD+1}")
    I(f"v_lshrrev_b32 v{vQD+2}, 2, v{vC1}")
    I(f"v_lshl_add_u32 v{vQD+1}, v{vQD+1}, 6, v{vQD+2}")
    for s_ in range(2):
        I(f"ds_read2_b64 {rr(vT2+4*s_,4)}, v{vQD+1} offset0:{4*s_} offset1:{4*s_+2}")
    I("s_waitcnt lgkmcnt(10)")
    for i in range(16):
        I(f"v_lshlrev_b32 v{vWV+2*i}, 16, v{vX+i}")
        I(f"v_and_b32 v{vWV+2*i+1}, 0xffff0000, v{vX+i}")
    I(f"v_lshl_add_u32 v{vT+1}, v{vC1}, 1, v{vC2}")
    I(f"v_add_u32 v{vT+1}, s{sSTG}, v{vT+1}")
    I(f"s_sub_u32 s10, s{sF0}, s{sWIN}")
    I("s_mul_i32 s10, s10, 144")
    I(f"s_add_u32 s10, s10, s{sSTG}")
    I(f"v_lshrrev_b32 v{vQD}, 3, v{lane}")
    I(f"v_lshl_add_u32 v{vQD}, v{vQD}, 4, v{vT}")
    I(f"v_add_u32 v{vQD}, s10, v{vQD}")
    I(f"s_mul_i32 s10, s{sB}, {BN}")
    I(f"s_add_u32 s11, s10, s{sF1}")
    I(f"s_add_u32 s10, s10, s{sF0}")
    I(f"s_min_u32 s11, s11, {N}")
    I(f"s_min_u32 s10, s10, {N}")
    I("s_sub_u32 s11, s11, s10")
    I("s_lshl_b32 s10, s10, 7")
    I(f"s_add_u32 s{sOUT}, s{sOUT}, s10")
    I(f"s_addc_u32 s{sOUT+1}, s{sOUT+1}, 0")
    I(f"s_lshl_b32 s{sOUT+2}, s11, 7")
    for ft, D in ((0, vP), (1, vQ)):
        for q in range(4):
            I(f"s_waitcnt lgkmcnt({9 - 4*ft - q})")
            I(mfma(D, vWB+16*ft+4*q, vX+4*q, vWV+16*ft if q == 0 else D))
            for i in range(4):
                r = DEN(ft) + 4*q + i
                I(f"v_rcp_f32 v{r}, v{r}")
    I("s_waitcnt lgkmcnt(0)")
    for ft, D in ((0, vP), (1, vQ)):
        for i in range(16):
            I(f"v_mul_f32 v{NUM(ft)+i}, v{NUM(ft)+i}, v{DEN(ft)+i}")
        for i in range(8):
            I(f"v_cvt_pk_bf16_f32 v{DEN(ft)+i}, v{NUM(ft)+2*i}, v{NUM(ft)+2*i+1}")
        I(mfma(D, DEN(ft), vT2, D))
        I("s_nop 0")
        I(mfma(D, DEN(ft)+4, vT2+4, D))
    for q in range(4):
        for i in range(8*q, 8*q+8):
            I(f"v_max_f32 v{vP+i}, v{vP+i}, v{vWV+i}")
        for d in range(4):
            i = 4*q + d
            I(f"v_cvt_pk_bf16_f32 v{vR+i}, v{vP+2*i}, v{vP+2*i+1}")
        I(f"ds_write_b128 v{vT+1}, {rr(vR+4*q,4)} offset:{16*q}")
    for q in range(4):
        I(f"ds_read_b128 {rr(vX+4*q,4)}, v{vQD} offset:{8*144*q}")
    for q in range(4):
        I(f"s_waitcnt lgkmcnt({3-q})")
        I(f"buffer_store_dwordx4 {rr(vX+4*q,4)}, v{vT}, s[{sOUT}:{sOUT+3}], 0 offen offset:{1024*q}{pol(K2_OP)}")
    I(f"s_add_u32 s10, s2, s7")
    I("s_cmp_lg_u32 s10, 0")
    I("s_cbranch_scc1 K2_NOEP")
    I(f"v_mov_b32 v{vP}, {WS_EPOCH}")
    I(f"v_mov_b32 v{vP+1}, s{sEPN}")
    I(f"buffer_store_dword v{vP+1}, v{vP}, s[{sWS}:{sWS+3}], 0 offen sc1")
    L("K2_NOEP")
    if TS == 2 or opt("tsn", 0): I(f"s_mov_b32 s89, s{sN}")
    if TS == 8:
        I(f"s_sub_u32 s94, {opt('spin', 300000)}, s{sSPIN}")
        I(f"s_mul_i32 s94, s94, 100")
        I(f"s_add_u32 s94, s94, s88")
    if TS and WSB:
        I(f"s_sub_u32 s8, s8, {WSB}")
        I("s_subb_u32 s9, s9, 0")
    if TS: I(f"s_mov_b32 s{sW}, s7")
    if TS == 4:
        I("s_mov_b64 exec, -1")
        I(f"s_lshl_b32 s87, s2, 11")
        I(f"s_add_u32 s87, s87, {WS_TS + 0x180000}")
        I(f"s_lshl_b32 s86, s{sW}, 8")
        I("s_add_u32 s87, s87, s86")
        I(f"v_lshl_add_u32 v{vP}, v{lane}, 2, s87")
        I(f"global_store_dword v{vP}, v255, s[8:9]")
    stamp_out(8, 8, sW, 8, 0x100000, vP)
    L("K2_END")
    I("s_endpgm")
    def spin():
        if opt("slp", 0): I(f"s_sleep {opt('slp', 1)}")
        I(f"s_sub_u32 s{sSPIN}, s{sSPIN}, 1")
        I("s_cbranch_scc1 K2_END")
    for i in range(4):
        L(f"K2_RETRY{i}")
        spin()
        I("s_waitcnt vmcnt(0)")
        for j in range(i, 4):
            I(f"v_bitop3_b32 v{u(0)}, v{vC+4*j+3}, s{sTAG}, v{vTM} bitop3:0x28")
            for dp in ("quad_perm:[1,0,3,2]", "quad_perm:[2,3,0,1]", "row_half_mirror"):
                I("s_nop 1")
                I(f"v_or_b32_dpp v{u(0)}, v{u(0)}, v{u(0)} {dp} row_mask:0xf bank_mask:0xf")
            I(f"v_cmp_ne_u32 vcc, 0, v{u(0)}")
            I("s_and_b64 exec, exec, vcc")
            I(f"s_cbranch_execz K2_RT{i}{j}")
            cload(j)
            L(f"K2_RT{i}{j}")
            I("s_mov_b64 exec, -1")
        I("s_waitcnt vmcnt(0)")
        I(f"s_branch K2_CHK{i}")
    L("K1_EXT")
    I(f"s_mov_b32 s14, 0x0f0f0f0f")
    I(f"s_mov_b32 s15, s14")
    for i in range(4):
        I(f"ds_read_b32 v{oE+i}, v6 offset:{16*LROW*i + 32}")
        I(f"ds_read_b128 {rr(pD+8*i,4)}, v3 offset:{64*LROW*i + 128}")
    I("s_waitcnt lgkmcnt(0)")
    for i in range(4):
        I(f"v_cmp_le_u32 vcc, {33 << 24}, v{oH+i}")
        I(f"v_and_or_b32 v{pD+8*i+3}, v{oE+i}, v15, v{oH+i}")
        I("s_and_b64 exec, vcc, s[14:15]")
        I(f"s_cbranch_execz K1_EX{i}")
        I(f"buffer_store_dwordx4 {rr(pD+8*i,4)}, v4, s[{sST_}:{sST_+3}], s10 offen sc1")
        L(f"K1_EX{i}")
        I("s_mov_b64 exec, -1")
        I(f"s_add_u32 s10, s10, {64*RS}")
    I("s_branch K1_EXTR")
    L("K1_OVF")
    t = vAT
    for i in range(4):
        I(f"v_lshrrev_b32 v{t+i}, 16, v{oA+i}")
        I(f"v_lshrrev_b32 v{t+4}, 18, v{oA+i}")
        I(f"v_sub_u32 v{t+i}, v{t+i}, v{t+4}")
    I(f"v_add_u32 v{t+5}, v{t}, v{t+1}")
    I(f"v_add_u32 v{t+6}, v{t+5}, v{t+2}")
    I(f"v_add_u32 v{t+7}, v{t+6}, v{t+3}")
    I(f"v_mov_b32 v1, v{t+7}")
    wave_scan(1)
    I("s_nop 0")
    I(f"v_sub_u32 v{t+4}, v1, v{t+7}")
    I(f"v_add_u32 v{t+7}, v{t+4}, v{t+6}")
    I(f"v_add_u32 v{t+6}, v{t+4}, v{t+5}")
    I(f"v_add_u32 v{t+5}, v{t+4}, v{t}")
    for i in range(4):
        I(f"v_lshl_or_b32 v{t+4+i}, v{t+i}, 16, v{t+4+i}")
    I("s_waitcnt lgkmcnt(0)")
    I(f"ds_write_b128 v{l16}, {rr(t+4,4)} offset:{P_HDR}")
    for i in range(4): I(f"v_min_u32 v{oH+i}, 255, v{oH+i}")
    I(f"s_lshl_b32 s15, s{sB}, 2")
    I(f"s_add_u32 s15, s15, {WS_HDR}")
    srd(q0, 8, 9, NB*NCH*4, "s15")
    I(f"v_lshlrev_b32 v1, 12, v{lane}")
    for i in range(4):
        I(f"buffer_store_dword v{t+4+i}, v1, s[{q0}:{q0+3}], 0 offen offset:{1024*i} sc1")
    I(f"s_add_u32 s15, s13, {WS_RECS}")
    srd(q0, 8, 9, CH*4, "s15")
    I("s_lshr_b32 s15, s13, 2")
    I(f"s_add_u32 s15, s15, {WS_XB}")
    srd(q1, 8, 9, CH, "s15")
    I(f"v_cndmask_b32 v{pH+6}, v{pH}, v{pH+6}, s[{pm}:{pm+1}]")
    I(f"v_cndmask_b32 v{pK+6}, 0, v{pK+6}, s[{pm}:{pm+1}]")
    for i in range(7):
        I(f"ds_read_u16 v{pA+i}, v{pH+i} offset:{P_HDR - H0}")
    I("s_waitcnt lgkmcnt(0)")
    for i in range(7):
        I(f"v_lshrrev_b32 v1, 2, v{pK+i}")
        I(f"v_sub_u32 v1, v{pK+i}, v1")
        I(f"v_add_u32 v{pA+i}, v{pA+i}, v1")
        I(f"v_cmp_le_u32 vcc, {QCAP}, v{pK+i}")
        I(f"v_lshlrev_b32 v{pB+i}, 2, v{pA+i}")
        I("s_and_saveexec_b64 s[14:15], vcc")
        I(f"s_cbranch_execz K1_OV3_{i}")
        I(f"buffer_store_byte v{xb(i)}, v{pA+i}, s[{q1}:{q1+3}], 0 offen sc1")
        I(f"buffer_store_dword v{pS+i}, v{pB+i}, s[{q0}:{q0+3}], 0 offen sc1")
        L(f"K1_OV3_{i}")
        I("s_mov_b64 exec, -1")
    I("s_waitcnt vmcnt(0)")
    I("s_barrier")
    I("s_branch K1_OUT")
    xd, xa, xk, xrem, xeb, xad, xt = vACC + 44, vACC + 52, vACC + 58, vQ, vQ + 2, vX + 12, vX + 14
    L("K2_XT1")
    I(f"s_mov_b32 s{sXT}, 1")
    I(f"v_cmp_le_u32 vcc, {(QCAP + 1) << 24}, v{u(0)}")
    I(f"v_mov_b32 v{xt}, {FLAG + 4}")
    I("s_cbranch_vccz K2_XT1A")
    I(f"ds_write_b32 v{xt}, v{one}")
    L("K2_XT1A")
    I("s_mov_b32 s10, 0xf0f0f0f0")
    I("s_mov_b32 s11, s10")
    I(f"v_and_b32 v{xt}, 12, v{k4}")
    I(f"v_add_u32 v{xt}, 32, v{xt}")
    I(f"v_and_b32 v{xad}, 64, v{u(1)}")
    I(f"v_mul_u32_u24 v{xad}, 127, v{xad}")
    I(f"v_add_u32 v{xad}, v{xad}, v{u(1)}")
    I(f"v_add_u32 v{xad+1}, 16384, v{xad}")
    I(f"v_mov_b32 v{xt+1}, 0x7ffffff0")
    for g in range(2):
        I(f"v_cndmask_b32 v{xrem+g}, v{vC+8*g+3}, v{vC+8*g+7}, s[10:11]")
        I(f"v_cndmask_b32 v{xeb+g}, v{vEB+2*g}, v{vEB+2*g+1}, s[10:11]")
        I(f"v_cmp_le_u32 vcc, {33 << 24}, v{xrem+g}")
        remain(xrem + g, xrem + g, xt)
        I("s_nop 0")
        I(f"v_cndmask_b32 v{xad+g}, v{xt+1}, v{xad+g}, vcc")
    I(f"s_add_u32 s{sCEL}, s{sCEL}, {WS_EXT}")
    I(f"s_addc_u32 s{sCEL+1}, s{sCEL+1}, 0")
    def xloads2():
        for g in range(2):
            I(f"buffer_load_dwordx4 {rr(xd+4*g,4)}, v{xad+g}, s[{sCEL}:{sCEL+3}], 0 offen sc1")
    xloads2()
    I(f"v_med3_i32 v{xt}, v{xrem}, 0, 3")
    I(f"v_med3_i32 v{xt+1}, v{xrem+1}, 0, 3")
    I(f"v_add_u32 v{xt}, v{xt}, v{xt+1}")
    I(f"v_mov_b32 v{xt+1}, {FLAG}")
    I(f"v_cmpx_lt_u32 vcc, 0, v{xt}")
    I(f"ds_add_u32 v{xt+1}, v{xt}")
    I("s_mov_b64 exec, -1")
    I("s_branch K2_XT1R")
    def xvalid(tag):
        L(f"K2_XV{tag}")
        I("s_mov_b64 s[10:11], 0")
        for g in range(2):
            I(f"v_bitop3_b32 v{xt}, v{xd+4*g+3}, s{sTAG}, v{vTM} bitop3:0x28")
            I(f"v_cmp_ne_u32 s[{sTMP}:{sTMP+1}], 0, v{xt}")
            I(f"v_cmp_gt_u32 vcc, 0x7ffffff0, v{xad+g}")
            I(f"s_and_b64 vcc, vcc, s[{sTMP}:{sTMP+1}]")
            I("s_or_b64 s[10:11], s[10:11], vcc")
        I(f"s_cbranch_scc0 K2_XW{tag}")
        spin()
        xloads2()
        I("s_waitcnt vmcnt(0)")
        I(f"s_branch K2_XV{tag}")
        L(f"K2_XW{tag}")
    L("K2_XT2")
    xvalid("a")
    for g in range(2):
        for j in range(3):
            I(f"v_and_b32 v{xa+3*g+j}, 255, v{xd+4*g+j}")
            I(f"v_lshlrev_b32 v{xa+3*g+j}, 2, v{xa+3*g+j}")
            I(f"ds_read_b32 v{xa+3*g+j}, v{xa+3*g+j} offset:{MAP}")
        I(f"v_and_b32 v{xd+4*g+3}, 0x0f0f0f, v{xd+4*g+3}")
    I("s_waitcnt lgkmcnt(0)")
    for g in range(2):
        for j in range(3):
            i = 3*g + j
            I(f"v_perm_b32 v{xk+i}, v{xd+4*g+3}, v{xd+4*g+j}, s{sSEL+j}")
            I(f"v_lshl_add_u32 v{xk+i}, v{xk+i}, 5, v{xeb+g}")
            I(f"v_cmpx_lt_i32 vcc, {j}, v{xrem+g}")
            I(f"ds_add_rtn_u32 v{xa+i}, v{xa+i}, v{one} offset:{CNT}")
            I("s_mov_b64 exec, -1")
    I("s_waitcnt lgkmcnt(0)")
    for g in range(2):
        for j in range(3):
            i = 3*g + j
            I(f"v_cmpx_lt_i32 vcc, {j}, v{xrem+g}")
            I(f"ds_write2st64_b32 v{xa+i}, v{xd+4*g+j}, v{xk+i} offset0:0 offset1:{(R1-R0)//256}")
            I("s_mov_b64 exec, -1")
    I("s_waitcnt lgkmcnt(0)")
    I("s_branch K2_XT2R")
    L("K2_OVF")
    I(f"s_mov_b32 s{sCUR}, 1")
    I(f"s_mov_b32 s{sST}, 0")
    I(f"s_mov_b32 s{sSKIP}, 0")
    I(f"s_mov_b32 s{sEND}, s{sL}")
    pads(lane, vP, vP+1, vP+2)
    I(f"s_cmp_eq_u32 s{sXT}, 0")
    I("s_cbranch_scc1 K2_PADS0")
    I(f"s_mov_b32 s{sXT}, 0")
    I("s_waitcnt vmcnt(0)")
    xvalid("b")
    I("s_branch K2_PADS0")
    SB = 448
    t0, t1, t2, t3, t4 = vP, vP+1, vP+2, vP+3, vP+4
    L("K2_SLOW")
    I(f"s_add_u32 s{sR0}, s{sR0}, {SB}")
    I(f"s_cmp_lt_u32 s{sR0}, s{sCNT}")
    I("s_cbranch_scc1 K2_BATCH")
    L("K2_FIND")
    I(f"s_cmp_lg_u64 s[{sMSK}:{sMSK+1}], 0")
    I("s_cbranch_scc1 K2_GOT")
    I(f"s_add_u32 s{sCI}, s{sCI}, 1")
    I(f"s_cmp_ge_u32 s{sCI}, 4")
    I("s_cbranch_scc1 K2_EPI")
    I(f"s_mul_i32 s10, s{sB}, {RS}")
    I(f"s_lshl_b32 s11, s{sCI}, 13")
    I("s_add_u32 s10, s10, s11")
    I(f"v_lshlrev_b32 v{vT}, 7, v{lane}")
    I(f"buffer_load_ubyte v{vT}, v{vT}, s[{sWS}:{sWS+3}], s10 offen offset:15 sc1")
    I("s_waitcnt vmcnt(0)")
    I(f"v_cmp_lt_u32 s[{sMSK}:{sMSK+1}], s{sSKIP}, v{vT}")
    I("s_nop 3")
    I("s_branch K2_FIND")
    L("K2_GOT")
    I(f"s_ff1_i32_b64 s10, s[{sMSK}:{sMSK+1}]")
    I(f"s_bitset0_b64 s[{sMSK}:{sMSK+1}], s10")
    I(f"s_lshl_b32 s11, s{sCI}, 6")
    I(f"s_add_u32 s{sCUR}, s10, s11")
    I(f"s_mul_i32 s10, s{sB}, {RS}")
    I(f"s_lshl_b32 s11, s{sCUR}, 7")
    I("s_add_u32 s10, s10, s11")
    I(f"s_lshl_b32 s11, s{sB}, 8")
    I(f"s_add_u32 s11, s11, s{sCUR}")
    I(f"s_lshl_b32 s11, s11, 2")
    I(f"s_add_u32 s11, s11, {WS_HDR}")
    I(f"v_mov_b32 v{t0}, 0")
    I(f"buffer_load_ubyte v{t1}, v{t0}, s[{sWS}:{sWS+3}], s10 offen offset:15 sc1")
    I(f"buffer_load_dword v{t2}, v{t0}, s[{sWS}:{sWS+3}], s11 offen sc1")
    I("s_waitcnt vmcnt(0)")
    I(f"v_readfirstlane_b32 s10, v{t1}")
    I(f"v_readfirstlane_b32 s11, v{t2}")
    I("s_nop 3")
    I(f"s_and_b32 s{sST}, s11, 0xffff")
    I("s_lshr_b32 s11, s11, 16")
    I(f"s_lshr_b32 s{sCNT}, s10, 2")
    I(f"s_sub_u32 s{sCNT}, s10, s{sCNT}")
    I(f"s_cmp_gt_u32 s10, {QCAP}")
    I(f"s_cselect_b32 s{sCNT}, s11, s{sCNT}")
    I(f"s_lshr_b32 s10, s{sSKIP}, 2")
    I(f"s_sub_u32 s{sR0}, s{sSKIP}, s10")
    L("K2_BATCH")
    I("s_barrier")
    I(f"v_and_b32 v{t0}, 7, v{lane}")
    I(f"v_mul_u32_u24 v{t1}, {LCAP*4}, v{t0}")
    I(f"v_add_u32 v{t1}, {R0}, v{t1}")
    I(f"v_lshlrev_b32 v{t0}, 2, v{t0}")
    I(f"ds_write_b32 v{t0}, v{t1} offset:{CNT}")
    I(f"v_add_u32 v{t0}, s{sR0}, v{tid}")
    I(f"s_mul_i32 s10, s{sB}, {RS}")
    I(f"s_lshl_b32 s11, s{sCUR}, 7")
    I("s_add_u32 s10, s10, s11")
    I(f"v_mul_u32_u24 v{t2}, {KQ}, v{t0}")
    I(f"v_lshrrev_b32 v{t2}, 16, v{t2}")
    I(f"v_lshl_add_u32 v{t1}, v{t2}, 2, s10")
    I(f"v_add_u32 v{t3}, {WS_EXT - 128}, v{t1}")
    I(f"v_cmp_lt_u32 vcc, 31, v{t2}")
    I(f"s_mul_i32 s11, s{sCUR}, {CH}")
    I(f"s_add_u32 s11, s11, s{sST}")
    I(f"v_cndmask_b32 v{t1}, v{t1}, v{t3}, vcc")
    I(f"v_or_b32 v{t3}, 12, v{t1}")
    I(f"v_and_b32 v{t4}, 3, v{t2}")
    I(f"v_add_u32 v{t3}, v{t3}, v{t4}")
    I(f"v_cmp_le_u32 vcc, {QCAP}, v{t2}")
    I(f"v_add_u32 v{t2}, s11, v{t0}")
    I(f"v_add_u32 v{t4}, {WS_XB}, v{t2}")
    I(f"v_cndmask_b32 v{t3}, v{t3}, v{t4}, vcc")
    I(f"v_lshlrev_b32 v{t2}, 2, v{t2}")
    I(f"v_add_u32 v{t2}, {WS_RECS}, v{t2}")
    I(f"v_cndmask_b32 v{t1}, v{t1}, v{t2}, vcc")
    I(f"s_add_u32 s10, s{sR0}, {SB}")
    I(f"s_min_u32 s10, s10, s{sCNT}")
    I(f"v_cmp_gt_u32 vcc, s10, v{t0}")
    I(f"v_mov_b32 v{t2}, 0x7ffffff0")
    I(f"s_mul_i32 s{sTMP}, s{sCUR}, {CH*32}")
    I(f"v_cndmask_b32 v{t1}, v{t2}, v{t1}, vcc")
    I(f"v_cndmask_b32 v{t3}, v{t2}, v{t3}, vcc")
    I(f"buffer_load_dword v{t1}, v{t1}, s[{sWS}:{sWS+3}], 0 offen sc1")
    I(f"buffer_load_ubyte v{t3}, v{t3}, s[{sWS}:{sWS+3}], 0 offen sc1")
    I("s_waitcnt lgkmcnt(0)")
    I("s_barrier")
    I("s_and_saveexec_b64 s[10:11], vcc")
    I("s_waitcnt vmcnt(0)")
    I(f"v_and_b32 v{t0}, 255, v{t1}")
    I(f"v_lshlrev_b32 v{t0}, 2, v{t0}")
    I(f"ds_read_b32 v{t0}, v{t0} offset:{MAP}")
    I(f"v_bfe_u32 v{t2}, v{t1}, 8, 8")
    I(f"v_and_b32 v{t3}, 15, v{t3}")
    I(f"v_lshl_or_b32 v{t3}, v{t3}, 8, v{t2}")
    I(f"v_mov_b32 v{t2}, 4")
    I(f"v_lshl_add_u32 v{t3}, v{t3}, 5, s{sTMP}")
    I("s_waitcnt lgkmcnt(0)")
    I(f"ds_add_rtn_u32 v{t0}, v{t0}, v{t2} offset:{CNT}")
    I("s_waitcnt lgkmcnt(0)")
    I(f"ds_write2st64_b32 v{t0}, v{t1}, v{t3} offset0:0 offset1:{(R1-R0)//256}")
    I("s_mov_b64 exec, -1")
    I("s_waitcnt lgkmcnt(0)")
    I("s_barrier")
    I(f"s_lshl_b32 s10, s{sW}, 2")
    I(f"v_mov_b32 v{t0}, s10")
    I(f"ds_read_b32 v{t0}, v{t0} offset:{CNT}")
    for i in range(8): I(f"v_mov_b32 v{vT2+i}, 0")
    listaddr(lane, t1, t2)
    I("s_waitcnt lgkmcnt(0)")
    I(f"v_readfirstlane_b32 s{sEND}, v{t0}")
    I("s_nop 3")
    pads(lane, t0, t1, t2)
    L("K2_LAST")
    I("s_branch K2_GO")

def regs_of(tok):
    tok = tok.strip()
    m = re.fullmatch(r"v\[(\d+):(\d+)\]", tok)
    if m: return list(range(int(m.group(1)), int(m.group(2)) + 1))
    m = re.fullmatch(r"v(\d+)", tok)
    if m: return [int(m.group(1))]
    return []
def parse(ins):
    op, _, rest = ins.partition(" ")
    ops = [o.strip().split(" ")[0] for o in rest.split(",")] if rest else []
    if op.startswith("v_mfma"):
        return "mfma", regs_of(ops[0]), regs_of(ops[1]) + regs_of(ops[2]), regs_of(ops[3])
    if op.startswith("v_smfmac"):
        return "mfma", regs_of(ops[0]), regs_of(ops[1]) + regs_of(ops[2]) + regs_of(ops[3]), regs_of(ops[0])
    if op.startswith("v_"):
        k = "trans" if op in ("v_exp_f32", "v_rcp_f32") else "valu"
        return k, regs_of(ops[0]), sum((regs_of(o) for o in ops[1:]), []), []
    if op.startswith("ds_read"):
        return "ds", regs_of(ops[0]), regs_of(ops[1]), []
    if op.startswith("buffer_load"):
        return "vm", [], regs_of(ops[0]) + regs_of(ops[1]), []
    return "other", [], [], []
def check_body(body):
    seq = [b for b in body if not b.endswith(":")]
    for skip_dma in (False, True):
        s2 = []
        sk = False
        for b in body:
            if skip_dma and b.startswith("s_cbranch_scc0 K2_ND"):
                s2.append(b); sk = True; continue
            if b.startswith("K2_ND"): sk = False
            if b.endswith(":") or sk: continue
            s2.append(b)
        seq = s2 * 3
        last = {}
        lastc = {}
        pend = []
        for i, ins in enumerate(seq):
            k, d, s, c = parse(ins)
            m = re.search(r"lgkmcnt\((\d+)\)", ins)
            if m:
                n = int(m.group(1))
                while len(pend) > n: pend.pop(0)
            pr = set(sum(pend, []))
            for r in d + s + c:
                assert r not in pr or i < len(s2), f"pending LDS reg v{r} used by {ins} @{i}"
            for r in s + c + d:
                if r not in last: continue
                pk, pi = last[r]; dist = i - pi - 1
                if pk == "mfma":
                    if k == "mfma" and r in c and r not in s: need = 0
                    elif k == "mfma" and r in d and r not in s: need = 0
                    else: need = 12
                elif pk in ("valu", "trans") and k == "mfma" and r in s + c: need = 2
                elif pk == "trans" and k in ("valu", "mfma", "ds", "vm") and r in s: need = 1
                else: need = 0
                assert dist >= need, f"hazard {pk}->{k} v{r} dist {dist} need {need}: {ins} @{i}"
            if k in ("valu", "trans"):
                for r in d:
                    if r in lastc: assert i - lastc[r] - 1 >= 7, f"srcC WAR {ins}"
            for r in c: lastc[r] = i
            for r in d: last[r] = (k, i)
            if k == "ds":
                pend.append(d); assert len(pend) <= 15

hdr = open("/code/" + NAME + ".s.ref").read().split("\n")
for l in hdr:
    if l.startswith("; Override"): break
    out.append(l)
LEAK = opt("leak", "")
if LEAK:
    out.append(f"; @launch kernel={KN} grid=(256,1,1) block=(512,1,1) lds={K2_LDS}")
    out.append("; @launch kernel=spin_kernel grid=(1,1,1) block=(64,1,1) lds=0")
else: out.append(f"; @launch grid=(256,1,1) block=(512,1,1) lds={K2_LDS}")
emit('.amdgcn_target "amdgcn-amd-amdhsa--gfx950"\n.text')
k2()
KL = [(KN, 256, 102)]
if LEAK:
    kind, k = LEAK[:3], int(LEAK[3:])
    emit(".globl spin_kernel\n.p2align 8\n.type spin_kernel,@function\nspin_kernel:")
    I("s_memrealtime s[12:13]")
    I("s_cmp_lg_u32 s2, 0")
    I("s_cbranch_scc1 SP_END")
    I("s_load_dwordx2 s[4:5], s[0:1], 88")
    I("s_waitcnt lgkmcnt(0)")
    I(f"s_add_u32 s4, s4, {WS_TS + 0x100000}")
    I("s_addc_u32 s5, s5, 0")
    I("v_lshlrev_b32 v1, 5, v0")
    for j in range(31):
        I(f"global_load_dword v{2+j}, v1, s[4:5]")
        I(f"global_load_dword v{34+j}, v1, s[4:5] offset:{4*(k%8)}")
        I("v_add_u32 v1, 2048, v1")
    I("s_waitcnt vmcnt(0)")
    I("v_readfirstlane_b32 s6, v2")
    I("s_nop 1")
    I("s_sub_u32 s6, s6, 1000")
    for j in range(31):
        I(f"v_subrev_u32 v{2+j}, s6, v{2+j}")
        I(f"v_subrev_u32 v{34+j}, s6, v{34+j}")
    if kind == "cnt":
        for j in range(31):
            I(f"v_cmp_lt_u32 vcc, {1000 + opt('thr', 550)}, v{34+j}")
            I("s_nop 1")
            I(f"v_cndmask_b32 v{34+j}, 0, 1, vcc")
            I(f"v_mov_b32 v{2+j}, 0")
    op = {"max": "max_u32", "min": "min_u32", "avg": "add_u32", "now": "max_u32", "cnt": "add_u32"}[kind]
    for j in range(1, 31):
        I(f"v_min_u32 v2, v2, v{2+j}")
        I(f"v_{op} v34, v34, v{34+j}")
    I("s_nop 1")
    I("v_readlane_b32 s8, v2, 0")
    I("v_readlane_b32 s9, v34, 0")
    for l in range(1, 64):
        I(f"v_readlane_b32 s10, v2, {l}")
        I(f"v_readlane_b32 s11, v34, {l}")
        I("s_min_u32 s8, s8, s10")
        I(f"s_{op} s9, s9, s11")
    if kind == "avg":
        I(f"s_mul_hi_u32 s9, s9, {(1 << 32) // (31*64)}")
    if kind == "now":
        I("s_sub_u32 s8, s12, s6")
        I("s_sub_u32 s6, s8, s9")
    else: I("s_sub_u32 s6, s9, s8")
    I("s_lshl_b32 s6, s6, 2")
    I("s_min_u32 s6, s6, 30000")
    I("s_memrealtime s[8:9]")
    I("s_waitcnt lgkmcnt(0)")
    L("SP_L")
    I("s_memrealtime s[10:11]")
    I("s_waitcnt lgkmcnt(0)")
    I("s_sub_u32 s7, s10, s8")
    I("s_cmp_lt_u32 s7, s6")
    I("s_cbranch_scc1 SP_L")
    L("SP_END")
    I("s_endpgm")
    KL.append(("spin_kernel", 72, 16))
emit('.section .rodata,"a"')
for name, vg, sg in KL:
    emit(f""".p2align 6
.amdhsa_kernel {name}
  .amdhsa_next_free_vgpr {vg}
  .amdhsa_next_free_sgpr {sg}
  .amdhsa_accum_offset {vg}
  .amdhsa_group_segment_fixed_size 0
  .amdhsa_kernarg_size 96
  .amdhsa_user_sgpr_count 2
  .amdhsa_user_sgpr_kernarg_segment_ptr 1
  .amdhsa_system_sgpr_workgroup_id_x 1
.end_amdhsa_kernel""")
path = sys.argv[1] if len(sys.argv) > 1 else "/code/" + NAME + ".s"
open(path, "w").write("\n".join(out) + "\n")
print("wrote", path, len(out), "lines; lds", K2_LDS)
```

```python
import sys, re, math

NAME = "standalone__edge_featured_mpnn_gatedgcn__graph"
OPT = dict(kv.split("=") for kv in sys.argv[2:])
def opt(k, d):
    v = OPT.get(k)
    if v is None: return d
    return type(d)(v)

N, E = 50000, 800000
NCH, CH = 256, 3125
NB, BN = 256, 196
CELLB = 128
RS = 257 * CELLB
WS_EXT = NB * RS
QCAP = 48
KQ = 87382
LROW = 4 * (QCAP + 4)
WS_RECS = 0x1100000
WS_XB = 0x1500000
WS_HDR = 0x1600000
WS_EPOCH = 0x1700000
WS_USED = WS_EPOCH + 128
WI_U, WI_B, WI_V, WI_A, WI_C = 0, 8192, 16384, 24576, 32768
TMASK = 0x00f0f0f0
T0 = opt("t0", 12500)
LPH = (N - T0 + 2) // 3
SOFF = LPH - T0
PHM = (1 << 30) // LPH
assert 0 <= SOFF and N + SOFF <= 65536 and ((N - 1 + SOFF) * PHM) >> 30 <= 3
LOG2E = 1.4426950408889634
import struct
def f2u(f): return struct.unpack("<I", struct.pack("<f", f))[0]

out = []
def emit(s=""):
    for l in s.strip("\n").split("\n"):
        out.append(l.rstrip())
def I(s): out.append("    " + s)
def L(s): out.append(s + ":")
def C(s): out.append("    ; " + s)

def srd(d, lo, hi, size, add=None):
    if add is None:
        I(f"s_mov_b32 s{d}, s{lo}")
        I(f"s_mov_b32 s{d+1}, s{hi}")
    else:
        I(f"s_add_u32 s{d}, s{lo}, {add}")
        I(f"s_addc_u32 s{d+1}, s{hi}, 0")
    I(f"s_mov_b32 s{d+2}, {size}")
    I(f"s_mov_b32 s{d+3}, 0x20000")

def wave_scan(v, fill=None, half=False):
    def gap():
        if fill and len(fill) >= 2:
            I(fill.pop(0)); I(fill.pop(0))
        else: I("s_nop 1")
    for sh in (1, 2, 4, 8):
        gap()
        I(f"v_add_u32_dpp v{v}, v{v}, v{v} row_shr:{sh} row_mask:0xf bank_mask:0xf bound_ctrl:0")
    gap()
    I(f"v_add_u32_dpp v{v}, v{v}, v{v} row_bcast:15 row_mask:0xa bank_mask:0xf")
    if half: return
    gap()
    I(f"v_add_u32_dpp v{v}, v{v}, v{v} row_bcast:31 row_mask:0xc bank_mask:0xf")

TS = opt("ts", 0)
WS_TS = 0x3000000
SMAP = {1: {0: 0, 'd': 1, 'i': 2, 'w': 3, 2: 4, 5: 5, 6: 6, 7: 7},
        5: {0: 0, 'w': 1, 2: 2, 'a': 3, 'b': 4, 'c': 5, 3: 6, 7: 7},
        6: {0: 0, 'p': 1, 'q': 2, 'd': 3, 'i': 4, 'o': 5, 'k': 6, 7: 7},
        8: {0: 0, 'i': 1, 'w': 2, 1: 3, 2: 4, 3: 5, 7: 7},
        10: {0: 0, 'd': 1, 'i': 2, 'o': 3, 'A': 4, 'w': 5, 2: 6, 7: 7},
        12: {0: 0, 'T': 1, 6: 2, 'e1': 3, 'e2': 4, 'e3': 5, 'e4': 6, 7: 7},
        11: {0: 0, 2: 1, 'b': 2, 'c': 3, 3: 4, 5: 5, 'L': 6, 7: 7},
        9: {0: 0, 'q': 1, 'd': 2, 'i': 3, 'w': 4, 2: 5, 3: 6, 7: 7},
        7: {0: 0, 'k': 1, 'w': 2, 1: 3, 's': 4, 2: 5, 3: 6, 7: 7}}
def stamp(i):
    if TS in SMAP:
        i = SMAP[TS].get(i)
        if i is None: return
    elif isinstance(i, str): return
    if TS == 3:
        if i not in (0, 5, 6, 7): return
        I("s_memtime s[98:99]")
        I("s_waitcnt lgkmcnt(0)")
        I(f"s_mov_b32 s{88+{5:1,6:2,0:3,7:4}[i]}, s98")
    if TS:
        I("s_memrealtime s[98:99]" if TS != 2 else "s_memtime s[98:99]")
        I("s_waitcnt lgkmcnt(0)")
        I(f"s_mov_b32 s{88+i}, s98")
def stamp_out(n, wslo, swave, nw, off, v):
    if not TS: return
    I("s_waitcnt vmcnt(0)")
    stamp(7)
    I("s_mov_b64 exec, 1")
    I(f"s_mul_i32 s87, s2, {nw}")
    I(f"s_add_u32 s87, s87, s{swave}")
    I("s_lshl_b32 s87, s87, 5")
    I(f"s_add_u32 s87, s87, {WS_TS + off}")
    I(f"v_mov_b32 v{v}, s87")
    for i in range(n):
        I(f"v_mov_b32 v{v+1}, s{88+i}")
        I(f"global_store_dword v{v}, v{v+1}, s[{wslo}:{wslo+1}] offset:{4*i}")
K1_LD = opt("k1ld", "nt")
def pol(p): return (" " + p.replace("_", " ")) if p else ""

SM1 = opt("sm1", 1)
TAB, ZROW, CNT, FLAG, HIST, MAP = 0, 2048, 2112, 2176, 2304, 6400
T1B = 7424
LCAP = 672
XMAX = 64
LMAX = LCAP - 128
R0 = T1B + 2304
R1 = R0 + 8 * LCAP * 4
assert R1 % 256 == 0 and R0 % 256 == 0
WL = R0
WU = R1 + 8 * LCAP * 4
WA = WU + 8192
XO = WA + 8192
STG = XO + 8 * 4160
SLOT = 5184
WST = SLOT
IMG = 91136
assert IMG >= XO and STG + 8 * WST <= IMG + 320 * LROW
K2_LDS = IMG + 320 * LROW
assert K2_LDS <= 163840, K2_LDS

vWB, vWV, vWC, vAT = 0, 32, 64, 72
vACC = 88
vX, vE, vT1, vT2 = 152, 168, 172, 180
vP, vQ, vR = 188, 204, 220
vQD = 236
vR1 = 240
vCP, vCH, vAX, vAE, vC1, vC2, vARX, vART, vARP = 241, 242, 243, 244, 245, 246, 247, 248, 249
vL1 = 250
vARE = 251
vT = 252
DEN = lambda ft: vACC + 32 * ft
NUM = lambda ft: vACC + 32 * ft + 16
def rr(a, n): return f"v[{a}:{a+n-1}]"
def mfma(d, a, b, c=None):
    return f"v_mfma_f32_32x32x16_bf16 {rr(d,16)}, {rr(a,4)}, {rr(b,4)}, " + ("0" if c is None else rr(c, 16))

K2_XP = opt("k2x", "")
K2_EP = opt("k2e", "")
K2_CP = opt("k2c", "")
K2_OP = opt("k2o", "sc1")

sW, sB = 3, 12
sX, sEP, sWS, sOUT = 16, 20, 24, 28
sCEL, sWI = 32, 36
sM = 40
sT, sN, sSTG, s128, sL, sSKIP, sMORE = 72, 73, 74, 75, 76, 77, 78
sCI, sCUR, sR0, sCNT, sST, sMSK = 79, 80, 81, 82, 83, 84
sTMP = 86
sWIN = 96

def dma_tile(par):
    r = []
    for i in range(4):
        r.append(f"s_add_u32 m0, s{sSTG}, {par*SLOT + i*1040}")
        r.append(f"v_mad_u32_u16 v{vQD+i}, v{vQD+i}, s{s128}, v{vCP} op_sel:[1,0,0,0]")
        r.append(f"buffer_load_dwordx4 v{vQD+i}, s[{sX}:{sX+3}], 0 offen{pol(K2_XP)} lds")
    r.append(f"s_add_u32 m0, s{sSTG}, {par*SLOT + 4160}")
    r.append(f"v_add_u32 v{vR1}, v{vR1}, v{vCH}")
    r.append(f"buffer_load_dwordx4 v{vR1}, s[{sEP}:{sEP+3}], 0 offen{pol(K2_EP)} lds")
    return r

def valu_stream(G, H, n=16):
    s = []
    ex = [(f"v_exp_f32 v{G+i}, v{G+i}", 8) for i in range(n)]
    ad = [(f"v_add_f32 v{G+i}, 1.0, v{G+i}", 4) for i in range(n)]
    rc = [(f"v_rcp_f32 v{G+i}, v{G+i}", 8) for i in range(n)]
    mu = [(f"v_mul_f32 v{H+i}, v{G+i}, v{H+i}", 4) for i in range(n)]
    for i in range(n + 4):
        if i < n: s.append(ex[i])
        if 0 <= i - 2 < n: s.append(ad[i-2])
        if 0 <= i - 4 < n: s.append(rc[i-4])
    return s + mu

def interleave(valu, mf, extra, pos, spacing=opt('sp', 28)):
    res = []
    cum = 0; k = 0
    for ins, c in valu:
        while k < len(mf) and cum >= pos[k] * spacing:
            res.extend(extra.get(('b', k), []))
            res.append(mf[k])
            res.extend(extra.get(('a', k), []))
            k += 1
        res.append(ins); cum += c
    assert k == len(mf)
    return res

def g_mfmas(D, ft):
    m = [mfma(D, vE, vWC + 4*ft)]
    if SM1:
        m += [mfma(D, vX + 4*q, vWB + 16*ft + 4*q, D) for q in range(4)]
        m += [f"v_smfmac_f32_32x32x32_bf16 {rr(D,16)}, {rr(vT1,4)}, {rr(vAT+8*ft,8)}, v{vT1+4}"]
        return m
    m += [mfma(D, vT1 + 4*s, vAT + 8*ft + 4*s, D) for s in range(2)]
    m += [mfma(D, vX + 4*q, vWB + 16*ft + 4*q, D) for q in range(4)]
    return m
def h_mfmas(D, ft):
    return [mfma(D, vX + 4*q, vWV + 16*ft + 4*q, None if q == 0 else D) for q in range(4)]
vIX = vT1 + 5
def s_mfmas(acc, src):
    return [f"v_smfmac_f32_32x32x32_bf16 {rr(acc,16)}, {rr(vT2+4*s,4)}, {rr(src+8*s,8)}, v{vIX}" for s in range(2)]
def t1_reads():
    return [f"ds_read_b128 {rr(vT1,4)}, v{vL1} offset:{T1B}", f"ds_read_b32 v{vT1+4}, v{vL1} offset:{T1B+16}"]

ORD = opt("ord", "n0 n1 e h0 h1 a h2 h3 x0 x1 x2 x3 d0 d1").replace("_", " ").split()
POS = [float(x) / 28 for x in opt("pos", "0_27_54_81_108_135_162_189_216_243_270_297_328_356").split("_")]
def phase_ops(G, Gn, ft):
    n = s_mfmas(NUM(1-ft), vQ); d = s_mfmas(DEN(ft), G); h = h_mfmas(vQ, ft); g = g_mfmas(Gn, 1-ft)
    m = {"n0": n[0], "n1": n[1], "d0": d[0], "d1": d[1], "e": g[0], "a": g[5]}
    for q in range(4): m[f"h{q}"] = h[q]; m[f"x{q}"] = g[1+q]
    return [m[k] for k in ORD]
K = lambda k: ORD.index(k)
def phaseA(par):
    o = par * 128
    ex = {}
    ex[('a', K("n0"))] = [f"ds_read_u8 v{vQD+u}, v{vART} offset:{o + 64*(u>>1) + 16*(u&1)}" for u in range(4)] + \
                         [f"ds_read_u8 v{vL1}, v{vARP} offset:{o + 128}"]
    ex[('a', K("h1"))] = ["s_waitcnt lgkmcnt(0)"] + [f"v_lshl_add_u32 v{vQD+u}, v{vQD+u}, 6, v{vC2}" for u in range(4)] + \
                         [f"v_lshl_add_u32 v{vL1}, v{vL1}, 6, v{vC1}"]
    ex[('a', K("a"))] = [f"ds_read_b64_tr_b16 v[{vT2+2*u}:{vT2+2*u+1}], v{vQD+u}" for u in range(4)] + t1_reads()
    ex[('a', K("x0"))] = [f"ds_read_b128 {rr(vQD,4)}, v{vARX} offset:{o + 2*128}",
                          f"ds_read_b32 v{vR1}, v{vARE} offset:{o + 2*128}",
                          f"s_add_u32 s{sT}, s{sT}, 1"]
    ex[('b', K("d0"))] = ["s_waitcnt lgkmcnt(0)"]
    return interleave(valu_stream(vP, vQ), phase_ops(vP, vR, 0), ex, POS)

def phaseB(par):
    ex = {}
    ex[('a', K("n0"))] = ["s_waitcnt vmcnt(0)", f"ds_read_b128 {rr(vE,4)}, v{vAE}"]
    if TS == 4:
        ex[('a', K("n0"))] = ["s_memtime s[94:95]", "s_waitcnt vmcnt(0) lgkmcnt(0)", "s_memtime s[98:99]", "s_waitcnt lgkmcnt(0)", "s_sub_u32 s98, s98, s94",
                              "s_add_u32 m0, s72, 15", "s_nop 0", "v_writelane_b32 v255, s98, m0", f"ds_read_b128 {rr(vE,4)}, v{vAE}"]
    for q in range(4):
        ex[('a', K(f"h{q}"))] = [f"ds_read_b128 {rr(vX+4*q,4)}, v{vAX} offset:{16*q}"]
    ex[('b', K("e"))] = [f"s_waitcnt lgkmcnt({sum(K(f'h{q}') < K('e') for q in range(4))})"]
    for q in range(4): ex[('b', K(f"x{q}"))] = [f"s_waitcnt lgkmcnt({sum(K(f'h{p}') < K(f'x{q}') for p in range(q+1, 4))})"]
    dk = opt("dk", "x3")
    ex[('a', K(dk))] = ([] if dk == "x3" or K(dk) > K("x3") else ["s_waitcnt lgkmcnt(0)"]) + \
                       [f"s_cmp_lt_i32 s{sT}, s{sN1}", f"s_cbranch_scc0 K2_ND_{par}"] + dma_tile(0) + [f"K2_ND_{par}:"]
    return interleave(valu_stream(vR, vQ), phase_ops(vR, vP, 1), ex, POS)

def fixnops(seq):
    res = []; last = {}; pos = 0
    for ins in seq:
        k, d, s_, c = parse(ins)
        need = 0
        for r in s_ + c + d:
            if r not in last: continue
            pk, pi, pop = last[r]
            if pk == "mfma":
                if k == "mfma" and r not in s_: w = 0 if pop == ins.split()[0] or r not in c else 10
                else: w = 12
            elif pk in ("valu", "trans") and k == "mfma" and r in s_ + c: w = 2
            elif pk == "trans" and k != "trans" and r in s_: w = 1
            else: w = 0
            need = max(need, w - (pos - pi - 1))
        if need > 0:
            res.append(f"s_nop {need - 1}"); pos += need
        for r in d: last[r] = (k, pos, ins.split()[0])
        res.append(ins); pos += 1
    return res
LANE = 254
eL, eI, eW, eR = vT, vARX, vARP, vARE
sER = sERT = 70
def epi_addr():
    return [f"v_lshlrev_b32 v{eL}, 4, v{LANE}", f"v_and_b32 v{eI}, 31, v{LANE}", f"v_and_b32 v{vC1}, 32, v{LANE}",
            f"v_mul_u32_u24 v{eW}, 144, v{eI}", f"v_lshrrev_b32 v{eR}, 2, v{vC1}", f"v_lshl_add_u32 v{eI}, v{eI}, 6, v{eR}",
            f"v_lshl_add_u32 v{eW}, v{vC1}, 1, v{eW}", f"v_add_u32 v{eW}, s{sSTG}, v{eW}",
            f"v_lshrrev_b32 v{eR}, 3, v{LANE}", f"v_lshl_add_u32 v{eR}, v{eR}, 4, v{eL}", f"v_add_u32 v{eR}, s{sER}, v{eR}"]
def epi_id(): return [f"ds_read2_b64 {rr(vWC+4*s_,4)}, v{eI} offset0:{4*s_} offset1:{4*s_+2}" for s_ in range(2)]
def epi_wu(): return [f"ds_read_b128 {rr(vWB+4*k,4)}, v{eL} offset:{WU + 1024*k}" for k in range(8)]
def epi_x(q): return f"ds_read_b128 {rr(vX+4*q,4)}, v{vOWN} offset:{16*q}"
def last_tile(ng):
    n = 4 * ng
    keep = lambda ks: [k for k in ks if ng > 2 or k not in ("N1", "d1")]
    ops = dict(zip(ORD, phase_ops(vP, vR, 0)))
    oa = keep(ORD)
    ex = {}
    ex[('a', 0)] = [f"ds_read_u8 v{vQD+u}, v{vART} offset:{64*(u>>1) + 16*(u&1)}" for u in range(4)]
    ex[('a', oa.index("h1"))] = ["s_waitcnt lgkmcnt(0)"] + [f"v_lshl_add_u32 v{vQD+u}, v{vQD+u}, 6, v{vC2}" for u in range(4)]
    ex[('a', oa.index("a"))] = [f"ds_read_b64_tr_b16 v[{vT2+2*u}:{vT2+2*u+1}], v{vQD+u}" for u in range(4)]
    ex[('a', 1)] = epi_addr()
    ex[('a', oa.index("x3"))] = epi_id() + epi_wu()
    ex[('b', oa.index("d0"))] = ["s_waitcnt lgkmcnt(10)"]
    pa = [POS[ORD.index(k)] * ng / 4 * (1 if k[0] != "d" or ng > 2 else 1.04) for k in oa]
    a = interleave(valu_stream(vP, vQ, n), [ops[k] for k in oa], ex, pa)
    ops = dict(zip(ORD, phase_ops(vR, vP, 1)))
    ob = ["n0"] + (["n1"] if ng > 2 else []) + ["h0", "h1", "h2", "h3", "d0"] + (["d1"] if ng > 2 else [])
    pb = [x * ng / 4 / 28 for x in ([0, 36, 72, 108, 144, 180, 328, 356] if ng > 2 else [0, 40, 80, 120, 160, 340])]
    ex = {('a', ob.index(f"h{q}")): [epi_x(q)] for q in range(4)}
    b = interleave(valu_stream(vR, vQ, n), [ops[k] for k in ob], ex, pb)
    return fixnops(a + b + s_mfmas(NUM(1), vQ)[:2 if ng > 2 else 1])

sF0, sF1, sEND = 13, 14, 15
sXT = 97
sN1 = 38
sSB = 37
SBK = opt('sbk', 2)
sNUL = 39
sTH = 4
PRIO = opt("prio", 1)

def listaddr(lane, t0, t3):
    I(f"v_lshrrev_b32 v{t0}, 3, v{lane}")
    I(f"v_lshl_add_u32 v{vARX}, v{t0}, 4, s{sL}")
    I(f"v_and_b32 v{t0}, 31, v{lane}")
    I(f"v_lshl_add_u32 v{vARP}, v{t0}, 2, s{sL}")
    I(f"v_lshrrev_b32 v{t3}, 1, v{lane}")
    I(f"v_lshl_add_u32 v{vARE}, v{t3}, 2, s{sL}")
    I(f"v_add_u32 v{vARE}, {R1-R0}, v{vARE}")
    I(f"v_and_b32 v{t0}, 44, v{lane}")
    I(f"v_add_u32 v{vART}, s{sL}, v{t0}")

vOWN = vT + 1
def pads(lane, t0, t1, t2):
    W2 = f"offset0:0 offset1:{(R1-R0)//256}"
    I(f"v_mov_b32 v{t2}, 0xffff0000")
    I(f"v_or_b32 v{t1}, s{sNUL}, v{t2}")
    I(f"v_mov_b32 v{t2}, 0x7fffff00")
    I(f"v_lshl_add_u32 v{t0}, v{lane}, 2, s{sEND}")
    I(f"s_sub_u32 s{sN}, s{sEND}, s{sL}")
    I(f"ds_write2st64_b32 v{t0}, v{t1}, v{t2} {W2}")
    I(f"ds_write2st64_b32 v{t0}, v{t1}, v{t2} offset0:1 offset1:{(R1-R0)//256 + 1}")
    ntiles(False)
def ntiles(sub=True):
    if sub: I(f"s_sub_u32 s{sN}, s{sEND}, s{sL}")
    I(f"s_add_u32 s{sN}, s{sN}, 127")
    I(f"s_lshr_b32 s{sN}, s{sN}, 7")
    I(f"s_sub_i32 s{sN1}, s{sN}, 1")

KN = NAME + "_kernel"
P_HIST, P_HDR = MAP, WU
H0 = 2000
P_EIMG = IMG
P_CIMG = P_EIMG + 64 * LROW
assert P_CIMG + 256 * LROW <= K2_LDS
sTAG, sEPN, sSPIN = 36, 100, 101
def k2():
    emit(f"""
.globl {KN}
.p2align 8
.type {KN},@function
{KN}:""")
    I("s_cmp_ge_u32 s2, 256")
    I("s_cbranch_scc1 K2_END")
    stamp(0)
    KA = sM
    I(f"s_load_dwordx4 s[{KA+4}:{KA+7}], s[0:1], 16")
    I(f"s_load_dwordx2 s[8:9], s[0:1], 88")
    I(f"s_load_dwordx4 s[{KA}:{KA+3}], s[0:1], 0")
    I(f"s_load_dwordx8 s[{KA+8}:{KA+15}], s[0:1], 32")
    I(f"s_load_dwordx4 s[{KA+16}:{KA+19}], s[0:1], 64")
    tid, lane = 255, 254
    CPF = opt("cpf", 192)
    if CPF:
        I(f"s_getpc_b64 s[{sTMP}:{sTMP+1}]")
        L("K2_PC")
        I(f"v_lshlrev_b32 v{vT}, 7, v0")
        I(f"v_min_u32 v{vT}, K2_LAST-K2_PC, v{vT}")
        I(f"v_cmp_gt_u32 vcc, {CPF}, v0")
        I("s_cbranch_vccz K2_NOCPF")
        I(f"global_load_dword v{vT+1}, v{vT}, s[{sTMP}:{sTMP+1}]")
        L("K2_NOCPF")
    vC = vACC
    vA = vACC + 16
    hh = vACC + 28
    vRK = vR
    vMIN = vQ + 8
    vTM = vQ + 10
    u = lambda i: vP + i
    k4, ecb, hda, one, l16 = vE, vE + 1, vE + 2, vE + 3, vT1
    pD, pS, pH, pK, pA, pB, pI, pW = 8, 16, 24, 32, 40, 48, 56, 64
    I(f"v_mov_b32 v{tid}, v0")
    I(f"v_lshrrev_b32 v{u(0)}, 6, v0")
    I(f"v_and_b32 v{lane}, 63, v0")
    I(f"v_readfirstlane_b32 s7, v{u(0)}")
    I("s_and_b32 s10, s2, 7")
    I("s_lshr_b32 s11, s2, 3")
    I("s_lshl_b32 s10, s10, 5")
    I(f"s_add_u32 s{sB}, s10, s11")
    I(f"s_mul_i32 s13, s{sB}, {CH*4}")
    I(f"v_lshlrev_b32 v{u(1)}, 4, v0")
    I(f"v_lshlrev_b32 v1, 3, v0")
    I(f"v_lshlrev_b32 v2, 2, v0")
    I(f"v_mov_b32 v3, 0")
    I(f"v_and_b32 v4, 0x3fc, v2")
    I(f"ds_write_b32 v4, v3 offset:{P_HIST}")
    ASYM = opt("asym", 10)
    I(f"s_and_b32 s10, s7, 3")
    I(f"s_lshr_b32 s{sW}, s7, 2")
    I(f"s_lshl1_add_u32 s{sW}, s10, s{sW}")
    I(f"s_xor_b32 s{sW}, s{sW}, 1")
    I(f"s_movk_i32 s14, 8192")
    I(f"s_movk_i32 s15, 12288")
    I("s_waitcnt lgkmcnt(0)")
    stamp('p')
    WSB = opt("wsb", 0) << 20
    if WSB:
        I(f"s_add_u32 s8, s8, {WSB}")
        I("s_addc_u32 s9, s9, 0")
    vq = []
    def younger(tag): return len(vq) - 1 - max(i for i, t in enumerate(vq) if t == tag)
    q0, q1 = 64, 68
    srd(q0, KA+6, KA+7, CH*4, "s13")
    srd(q1, KA+4, KA+5, CH*4, "s13")
    for r_, q_ in ((pD, q0), (pS, q1)):
        I(f"buffer_load_dwordx4 {rr(r_,4)}, v{u(1)}, s[{q_}:{q_+3}], 0 offen{pol(K1_LD)}")
        I(f"buffer_load_dwordx2 {rr(r_+4,2)}, v1, s[{q_}:{q_+3}], s14 offen{pol(K1_LD)}")
        I(f"buffer_load_dword v{r_+6}, v2, s[{q_}:{q_+3}], s15 offen{pol(K1_LD)}")
        vq += ["D" if r_ == pD else "S"] * 3
        if r_ == pD and opt("db", 1): I("s_barrier")
    I(f"s_add_u32 s10, s8, {WS_EPOCH}")
    I("s_addc_u32 s11, s9, 0")
    I(f"s_load_dword s{sEPN}, s[10:11], 0")
    if not opt("db", 1): I("s_barrier")
    I(f"v_lshrrev_b32 v1, 3, v0")
    I(f"v_lshlrev_b32 v{hda}, 2, v1")
    I(f"v_and_b32 v{u(9)}, 7, v0")
    I(f"v_and_b32 v5, 16, v0")
    I(f"v_lshlrev_b32 v5, 1, v5")
    I(f"v_xor_b32 v5, v5, v{u(1)}")
    I(f"v_lshlrev_b32 v{l16}, 4, v{lane}")
    I(f"v_and_b32 v{vCP}, 16, v{lane}")
    I(f"v_lshlrev_b32 v{vCP}, 2, v{vCP}")
    vXS, vXA = vR + 14, vR + 15
    I(f"v_xor_b32 v{vXS}, v{vCP}, v{l16}")
    I(f"v_and_b32 v{vCP}, 0x70, v{vXS}")
    if SOFF: I(f"v_subrev_u32 v{vCP}, {SOFF * 128}, v{vCP}")
    srd(sX, KA, KA+1, N*128)
    OFF = opt("off", 20)
    def xshared():
        I(f"s_lshr_b32 s10, s{sW}, 1")
        I(f"s_mul_i32 s11, s10, 4160")
        I(f"s_mul_i32 s10, s10, 49")
        I(f"s_mul_i32 s4, s{sB}, {BN}")
        I(f"s_add_u32 s10, s10, s4")
        I(f"s_add_u32 s10, s10, {OFF}")
        I(f"s_lshl_b32 s10, s10, 7")
        I(f"s_bitcmp1_b32 s{sW}, 0")
        I(f"s_cselect_b32 s4, 0, 2048")
        I(f"s_cselect_b32 s6, 0, 2080")
        I(f"s_add_u32 s10, s10, s4")
        I(f"s_add_u32 s11, s11, s6")
        for i in range(2):
            I(f"s_add_u32 m0, s11, {XO + i*1040}")
            I(f"s_add_u32 s4, s10, {i*1024}")
            I(f"buffer_load_dwordx4 v{vXS}, s[{sX}:{sX+3}], s4 offen{pol(opt('xo', ''))} lds"); vq.append("X")
    XE = opt("xe", 0)
    if XE == 1: xshared()
    mark = len(out)
    OFF = opt("off", 20)
    lo0, hi0, lo1, hi1 = sT, sN, sMSK, sMSK + 1
    I(f"s_lshr_b32 s10, s{sW}, 1")
    I(f"s_mul_i32 s10, s10, 49")
    I(f"s_bitcmp1_b32 s{sW}, 0")
    I(f"s_cselect_b32 s{lo0}, {OFF}, -4")
    I(f"s_cselect_b32 s{hi0}, 28, {OFF - 17}")
    I(f"s_cselect_b32 s{lo1}, 45, {OFF}")
    I(f"s_add_i32 s{lo0}, s{lo0}, s10")
    I(f"s_add_i32 s{hi0}, s{hi0}, s10")
    I(f"s_add_i32 s{lo1}, s{lo1}, s10")
    I(f"s_add_i32 s{hi1}, s{lo0}, 32")
    I(f"s_max_i32 s{sWIN}, s{lo0}, 0")
    I(f"s_cmp_eq_u32 s{sW}, 7")
    I(f"s_cselect_b32 s{lo1}, {BN}, s{lo1}")
    I(f"s_cselect_b32 s{hi1}, {BN}, s{hi1}")
    I(f"v_lshrrev_b32 v{u(5)}, 5, v{lane}")
    def wloads():
        srd(q0, KA+10, KA+11, 8192)
        I(f"buffer_load_dwordx4 {rr(pW,4)}, v5, s[{q0}:{q0+3}], 0 offen"); vq.append("B")
        srd(q1, KA+12, KA+13, 2048)
        I(f"buffer_load_dwordx4 {rr(pW+4,4)}, v5, s[{q1}:{q1+3}], 0 offen"); vq.append("B")
        I(f"s_lshl_b32 s10, s7, 10")
        for kp, off in ((KA+8, WI_A), (KA+16, WI_V), (KA+14, WI_U)):
            I(f"s_mov_b32 s{q0}, s{kp}")
            I(f"s_mov_b32 s{q0+1}, s{kp+1}")
            I(f"s_add_u32 m0, s10, {WL + off}")
            I("s_nop 0")
            I(f"buffer_load_dwordx4 v5, s[{q0}:{q0+3}], 0 offen lds"); vq.append("W")
    def xloads():
        I(f"s_mul_i32 s10, s{sB}, {BN}")
        I(f"s_add_u32 s10, s10, s{sWIN}")
        I(f"s_lshl_b32 s10, s10, 7")
        I(f"s_mul_i32 s11, s7, 4160")
        for i in range(4):
            I(f"s_add_u32 m0, s11, {XO + i*1040}")
            I(f"s_add_u32 s{sTMP}, s10, {i*1024}")
            I(f"buffer_load_dwordx4 v{vXS}, s[{sX}:{sX+3}], s{sTMP} offen{pol(opt('xo', ''))} lds")
    srd(sEP, KA+2, KA+3, E*32)
    srd(sOUT, KA+18, KA+19, N*128)
    srd(sWS, 8, 9, WS_USED)
    I(f"v_lshrrev_b32 v{u(6)}, 5, v{tid}")
    I(f"v_and_b32 v{u(7)}, 15, v{tid}")
    I(f"v_cmp_eq_u32 vcc, v{u(6)}, v{u(7)}")
    I(f"v_and_b32 v{u(6)}, 16, v{tid}")
    I(f"v_mov_b32 v{u(7)}, 0x3f80")
    I(f"v_lshlrev_b32 v{u(7)}, v{u(6)}, v{u(7)}")
    I(f"v_cndmask_b32 v{u(7)}, 0, v{u(7)}, vcc")
    I(f"v_lshlrev_b32 v{u(6)}, 2, v{tid}")
    I(f"v_mov_b32 v{u(8)}, 0")
    I(f"ds_write_b32 v{u(6)}, v{u(7)}")
    if SM1:
        I(f"v_bfe_u32 v{u(7)}, v{tid}, 3, 1")
        I(f"v_and_b32 v{u(13)}, 7, v{tid}")
        I(f"v_lshl_add_u32 v{u(7)}, v{u(7)}, 2, v{u(13)}")
        I(f"v_lshrrev_b32 v{u(12)}, 6, v{tid}")
        I(f"v_cmp_eq_u32 vcc, v{u(7)}, v{u(12)}")
        I(f"v_bfe_u32 v{u(12)}, v{tid}, 4, 2")
        I(f"v_mov_b32 v{u(7)}, 0x3f80")
        I(f"v_cndmask_b32 v{u(7)}, 0, v{u(7)}, vcc")
        I(f"v_cmp_lt_u32 vcc, 3, v{u(13)}")
        I(f"v_mul_u32_u24 v{u(12)}, 0x5555, v{u(12)}")
        I(f"v_and_b32 v{u(13)}, 60, v{u(6)}")
        I(f"v_cndmask_b32 v{u(7)}, v{u(7)}, v{u(12)}, vcc")
        I(f"ds_write_b32 v{u(6)}, v{u(7)} offset:{T1B}")
        I(f"ds_write_b32 v{u(13)}, v{u(8)} offset:{T1B + 2048}")
    I(f"ds_write_b32 v{u(6)}, v{u(8)} offset:{ZROW}")
    I(f"ds_write2st64_b32 v{u(6)}, v{u(8)}, v{u(8)} offset0:{HIST//256} offset1:{HIST//256 + 8}")
    I(f"s_movk_i32 s{s128}, 128")
    I(f"s_mul_i32 s{sSTG}, s{sW}, {WST}")
    I(f"s_add_u32 s{sSTG}, s{sSTG}, {STG}")
    I(f"s_movk_i32 s{sSKIP}, {QCAP}")
    I(f"s_add_u32 s{sNUL}, s{sWIN}, 32")
    I(f"s_lshl_b32 s11, s{sWIN}, 6")
    I(f"s_mov_b32 s{sXT}, 0")
    I(f"v_bfe_u32 v{u(6)}, v{lane}, 4, 1")
    I(f"v_and_b32 v{vCH}, 1, v{lane}")
    I(f"v_lshlrev_b32 v{vCH}, 4, v{vCH}")
    I(f"v_lshlrev_b32 v{vC1}, 5, v{u(5)}")
    I(f"v_subrev_u32 v{vC1}, s11, v{vC1}")
    I(f"v_and_b32 v{u(7)}, 3, v{lane}")
    I(f"v_lshlrev_b32 v{u(7)}, 3, v{u(7)}")
    I(f"v_lshl_add_u32 v{vC2}, v{u(6)}, 5, v{u(7)}")
    I(f"v_subrev_u32 v{vC2}, s11, v{vC2}")
    I(f"v_mul_u32_u24 v{u(8)}, 130, v{u(7)}")
    I(f"v_and_b32 v{u(6)}, 28, v{lane}")
    I(f"v_lshl_add_u32 v{u(8)}, v{u(6)}, 5, v{u(8)}")
    I(f"v_bfe_u32 v{u(6)}, v{lane}, 3, 1")
    I(f"v_xor_b32 v{u(6)}, v{u(6)}, v{u(5)}")
    I(f"v_lshl_add_u32 v{u(8)}, v{u(6)}, 6, v{u(8)}")
    I(f"v_add_u32 v{vAX}, s{sSTG}, v{u(8)}")
    I(f"v_and_b32 v{u(6)}, 31, v{lane}")
    I(f"v_lshl_add_u32 v{u(6)}, v{u(6)}, 1, v{u(5)}")
    I(f"v_lshl_add_u32 v{vAE}, v{u(6)}, 4, s{sSTG}")
    I(f"v_add_u32 v{vAE}, 4160, v{vAE}")
    I(f"s_mul_i32 s{sL}, s{sW}, {LCAP*4}")
    I(f"s_add_u32 s{sL}, s{sL}, {R0}")
    listaddr(lane, u(6), u(7))
    def ownaddr(d, lab, t):
        I(f"v_and_b32 v{d}, 31, v{lab}")
        I(f"v_bfe_u32 v{t}, v{d}, 1, 1")
        I(f"v_xor_b32 v{t}, v{t}, v{u(5)}")
        I(f"v_lshlrev_b32 v{t}, 6, v{t}")
        I(f"v_lshl_add_u32 v{t}, v{d}, 7, v{t}")
        I(f"v_lshrrev_b32 v{d}, 3, v{d}")
        I(f"v_lshl_add_u32 v{d}, v{d}, 4, v{t}")
        I(f"v_add_u32 v{d}, s10, v{d}")
    I(f"s_mul_i32 s10, s7, 4160")
    I(f"s_add_u32 s10, s10, {XO}")
    ownaddr(u(14), lane, u(6))
    I(f"v_lshrrev_b32 v{u(6)}, 1, v{lane}")
    I(f"v_xor_b32 v{u(6)}, v{u(6)}, v{lane}")
    I(f"v_and_b32 v{u(6)}, 4, v{u(6)}")
    I(f"v_mul_u32_u24 v{u(6)}, 3, v{u(6)}")
    I(f"v_xor_b32 v{u(6)}, v{u(6)}, v{lane}")
    ownaddr(vXA, u(6), u(7))
    I(f"v_mov_b32 v{vIX}, 0xdddd")
    I(f"v_lshlrev_b32 v{k4}, 2, v{u(9)}")
    vEB = vQ + 4
    I(f"v_mul_u32_u24 v{vEB}, {CH*8}, v{hda}")
    for i in range(1, 4):
        I(f"v_add_u32 v{vEB+i}, {64*i*CH*32}, v{vEB}")
    I(f"v_mov_b32 v{one}, 4")
    I(f"v_mov_b32 v{ecb}, 1")
    I(f"v_and_b32 v{u(11)}, 31, v{lane}")
    I(f"v_add_u32 v{u(11)}, s{sWIN}, v{u(11)}")
    I(f"v_lshlrev_b32 v{u(12)}, 4, v{u(11)}")
    I(f"v_lshl_add_u32 v{u(12)}, v{u(5)}, 3, v{u(12)}")
    for i in range(4): I(f"v_mov_b64 v[{vT2+2*i}:{vT2+2*i+1}], 0")
    I(f"s_lshl_b32 s{sEND}, s{sW}, 2")
    I(f"v_mov_b32 v{vMIN}, s{sEND}")
    I(f"v_lshlrev_b32 v{vMIN+1}, 2, v{u(11)}")
    static = out[mark:]; del out[mark:]
    WLP = opt("wl", 2)
    if WLP == 0: wloads()
    XP_ = opt("xp", 6)
    SP = opt("sp0", 0)
    SPN = opt("spn", 1000)
    if SP:
        out.extend(static[:SPN]); static = static[SPN:]
    c1, c2, c3 = 60, 61, 62
    pm = 78
    pX = 23
    xb = lambda i: (23, 23, 23, 23, 31, 31, 39)[i]
    I(f"s_mov_b32 s{c1}, 85599")
    I(f"s_mov_b32 s{c2}, {-BN & 0xffffffff}")
    I(f"s_movk_i32 s{c3}, {H0}")
    I(f"v_mov_b32 v7, {KQ}")
    I(f"s_mov_b32 s10, {SOFF << 16}")
    I(f"v_lshl_add_u32 v{pI}, v{lane}, 10, s10")
    for i in range(1, 4): I(f"v_add_u32 v{pI+i}, {i << 8}, v{pI}")
    I(f"v_and_b32 v{pI+4}, 127, v{tid}")
    I(f"v_lshl_add_u32 v{pI+4}, v{pI+4}, 9, s10")
    I(f"v_add_u32 v{pI+5}, 256, v{pI+4}")
    I(f"v_lshl_add_u32 v{pI+6}, v{lane}, 8, s10")
    I(f"v_lshrrev_b32 v23, 6, v{tid}")
    I(f"v_lshrrev_b32 v31, 7, v{tid}")
    I(f"v_add_u32 v31, 8, v31")
    I(f"v_mov_b32 v39, 12")
    I(f"v_cmp_gt_u32 s[{pm}:{pm+1}], {CH - 3072}, v{tid}")
    I(f"s_mov_b32 s11, {RS}")
    I(f"v_lshlrev_b32 v3, 4, v{u(9)}")
    I(f"v_mad_u32_u24 v4, v1, s11, v3")
    I(f"v_mul_u32_u24 v6, {LROW // 4}, v1")
    I(f"v_lshl_add_u32 v6, v{u(9)}, 2, v6")
    I(f"v_lshlrev_b32 v3, 2, v6")
    I(f"v_add_u32 v3, {P_CIMG}, v3")
    I(f"v_add_u32 v6, {P_EIMG}, v6")
    I(f"v_mov_b32 v{vTM}, {TMASK:#x}")
    I(f"v_mov_b32 v15, 0x0f0f0f")
    X0 = (LROW // 16) * H0
    sSO = sCI
    def cload(i):
        so = "0" if i == 0 else f"s{sSO+i-1}"
        I(f"buffer_load_dwordx4 {rr(vC+4*i,4)}, v{u(1)}, s[{sCEL}:{sCEL+3}], {so} offen sc1")
    def cloads():
        if opt("dly", 0): I(f"s_sleep {opt('dly', 0)}")
        stamp('w')
        for i in range(4): cload(i); vq.append("C")
    def prod(idx):
        n = len(idx)
        for i in idx: I(f"v_mul_u32_u24 v{pB+i}, s{c1}, v{pD+i}")
        for i in idx: I(f"v_lshrrev_b32 v{pB+i}, 24, v{pB+i}")
        for i in idx:
            I(f"v_lshl_add_u32 v{pH+i}, v{pB+i}, 2, s{c3}")
            I(f"ds_add_rtn_u32 v{pK+i}, v{pH+i}, v7 offset:{P_HIST - H0}")
        for i in idx:
            I(f"v_mad_i32_i24 v{pD+i}, v{pB+i}, s{c2}, v{pD+i}")
            I(f"v_or_b32 v{pD+i}, v{pD+i}, v{pI+i}")
        for j, i in enumerate(idx):
            I(f"s_waitcnt lgkmcnt({n - 1})")
            I(f"v_lshrrev_b32 v{pK+i}, 16, v{pK+i}")
            I(f"v_min_u32 v{pA+i}, {QCAP}, v{pK+i}")
            I(f"v_mad_u32_u24 v{pA+i}, v{pH+i}, {LROW // 16}, v{pA+i}")
            I(f"v_lshlrev_b32 v{pB+i}, 2, v{pA+i}")
            I(f"ds_write_b8 v{pA+i}, v{xb(i)} offset:{P_EIMG - X0}")
    def prod2(idx):
        for i in idx:
            I(f"v_lshl_add_u32 v{pS+i}, v{pS+i}, 16, v{pD+i}")
            I(f"ds_write_b32 v{pB+i}, v{pS+i} offset:{P_CIMG - 4*X0}")
    if WLP == 1: wloads()
    if XE == 2: xshared()
    stamp('q')
    I(f"s_waitcnt vmcnt({younger('D')})")
    stamp('d')
    prod(range(6))
    I(f"s_cmp_lg_u32 s7, 0")
    I("s_cbranch_scc1 K1_NO7")
    I(f"s_mov_b64 exec, s[{pm}:{pm+1}]")
    I("s_waitcnt lgkmcnt(0)")
    prod([6])
    I(f"s_waitcnt vmcnt({younger('S')})")
    prod2([6])
    I("s_mov_b64 exec, -1")
    L("K1_NO7")
    if WLP == 2: wloads()
    if XE == 3: xshared()
    I(f"s_waitcnt vmcnt({younger('S')})")
    prod2(range(6))
    if WLP == 3: wloads()
    I(f"s_lshl_b32 s15, s{sB}, 7")
    sST_ = sCEL
    srd(sST_, 8, 9, 511*RS + CELLB, "s15")
    I("s_waitcnt lgkmcnt(0)")
    I(f"s_add_u32 s{sEPN}, s{sEPN}, 1")
    I(f"s_and_b32 s10, s{sEPN}, 15")
    I(f"s_and_b32 s11, s{sEPN}, 0xf0")
    I(f"s_mul_i32 s{sTAG}, s10, 0x1010")
    I(f"s_lshl_b32 s11, s11, 16")
    I(f"s_xor_b32 s{sTAG}, s{sTAG}, 0xf000")
    I(f"s_or_b32 s{sTAG}, s{sTAG}, s11")
    I(f"s_mov_b32 s{sSPIN}, {opt('spin', 300000)}")
    I("s_barrier")
    stamp('i')
    oC, oE, oH, oA = vACC, vACC + 16, vACC + 20, vACC + 24
    I(f"ds_read_b128 {rr(oA,4)}, v{l16} offset:{P_HIST}")
    for i in range(4):
        I(f"ds_read_u16 v{oH+i}, v{hda} offset:{P_HIST + 256*i + 2}")
        I(f"ds_read_b32 v{oE+i}, v6 offset:{16*LROW*i}")
        I(f"ds_read_b128 {rr(oC+4*i,4)}, v3 offset:{64*LROW*i}")
    I("s_waitcnt lgkmcnt(12)")
    I(f"v_max3_u32 v1, v{oA}, v{oA+1}, v{oA+2}")
    I(f"v_max_u32 v1, v1, v{oA+3}")
    I(f"v_cmp_le_u32 vcc, {(QCAP + 1) << 16}, v1")
    I("s_mov_b32 s10, 0")
    I("s_cbranch_vccnz K1_OVF")
    L("K1_OUT")
    for i in range(4):
        r = oC + 4*i
        I(f"s_waitcnt lgkmcnt({9 - 3*i})")
        I(f"v_lshl_or_b32 v{oH+i}, v{oH+i}, 24, s{sTAG}")
        I(f"v_and_or_b32 v{r+3}, v{oE+i}, v15, v{oH+i}")
        I(f"buffer_store_dwordx4 {rr(r,4)}, v4, s[{sST_}:{sST_+3}], s10 offen sc1"); vq.append("O")
        I(f"s_add_u32 s10, s10, {64*RS}")
    I(f"v_max3_u32 v1, v{oH}, v{oH+1}, v{oH+2}")
    I(f"v_max_u32 v1, v1, v{oH+3}")
    I(f"v_cmp_le_u32 vcc, {33 << 24}, v1")
    I("s_cbranch_vccnz K1_EXT")
    L("K1_EXTR")
    if WLP == 4: wloads()
    stamp('o')
    if TS == 10:
        I("s_waitcnt vmcnt(0)")
        stamp('A')
    if opt("bar", 0): I("s_barrier")
    out.extend(static)
    I(f"s_mul_i32 s10, s{sB}, {RS}")
    srd(sCEL, 8, 9, NCH*CELLB, "s10")
    for k in (1, 2, 3):
        I(f"s_movk_i32 s{sSO+k-1}, {64*CELLB*k}")
    CP = opt("cp", 1)
    if CP == 0: cloads()
    I(f"s_mov_b32 s10, {f2u(-LOG2E):#x}")
    I(f"s_waitcnt vmcnt({younger('B')})")
    for i in range(8):
        I(f"v_lshlrev_b32 v{vAT+2*i}, 16, v{pW+i}")
        I(f"v_and_b32 v{vAT+2*i+1}, 0xffff0000, v{pW+i}")
    for i in range(16): I(f"v_mul_f32 v{vAT+i}, s10, v{vAT+i}")
    for i in range(8): I(f"v_cvt_pk_bf16_f32 v{pW+i}, v{vAT+2*i}, v{vAT+2*i+1}")
    I(f"ds_write_b128 v{u(1)}, {rr(pW,4)} offset:{WL + WI_B}")
    I(f"s_cmp_ge_u32 s7, 2")
    I("s_cbranch_scc1 K1_NOWC")
    I(f"ds_write_b128 v{u(1)}, {rr(pW+4,4)} offset:{WL + WI_C}")
    L("K1_NOWC")
    w0, w1, wc0, wc1, xa_ = vT1 + 1, vT1 + 2, vT1 + 3, vT1 + 4, vT
    I(f"v_bfe_u32 v{w0}, v{lane}, 2, 2")
    I(f"v_lshlrev_b32 v{w0}, 7, v{w0}")
    I(f"v_lshl_add_u32 v{w0}, v{vCH}, 2, v{w0}")
    I(f"v_and_b32 v{w1}, 16, v{lane}")
    I(f"v_and_b32 v{wc0}, 2, v{lane}")
    I(f"v_lshl_add_u32 v{w1}, v{wc0}, 2, v{w1}")
    I(f"v_and_b32 v{wc0}, 8, v{lane}")
    I(f"v_lshl_add_u32 v{w1}, v{wc0}, 2, v{w1}")
    I(f"v_add_u32 v{w0}, v{w0}, v{w1}")
    I(f"v_lshl_add_u32 v{wc0}, v{u(5)}, 10, v{w0}")
    I(f"v_lshl_add_u32 v{w0}, v{u(5)}, 12, v{w0}")
    I(f"v_xor_b32 v{w1}, 32, v{w0}")
    I(f"v_xor_b32 v{wc1}, 32, v{wc0}")
    def wtr(reg, img, ft, s_, c=False):
        ad = (wc0, wc1)[ft] if c else (w0, w1)[ft]
        return [f"ds_read_b64_tr_b16 {rr(reg+2*h_,2)}, v{ad} offset:{WL + img + 1024*s_ + 512*h_}" for h_ in range(2)]
    I(f"s_lshl_b32 s10, s7, 10")
    I(f"s_and_b32 s11, s7, 4")
    I(f"s_mul_i32 s11, s11, {8 - 1024}")
    I(f"s_add_u32 s11, s11, s10")
    I(f"v_xor_b32 v{xa_}, s11, v{w0}")
    I(f"s_waitcnt vmcnt({0 if opt('ack', 1) else younger('W')}) lgkmcnt(0)")
    I("s_barrier")
    if CP == 1: cloads()
    for h_ in range(2):
        I(f"ds_read_b64_tr_b16 {rr(vAT+2*h_,2)}, v{xa_} offset:{WL + WI_U + 512*h_}")
        I(f"ds_read_b64_tr_b16 {rr(vAT+4+2*h_,2)}, v{xa_} offset:{WL + WI_A + 512*h_}")
    I(f"v_add_u32 v{xa_}, s10, v{l16}")
    rest = []
    for reg, img in ((vWB, WI_B), (vWC, WI_C), (vWV, WI_V)):
        for ft in range(2):
            if img == WI_C: rest += wtr(vWC + 4*ft, WI_C, ft, 0, True)
            else:
                for s_ in range(4): rest += wtr(reg + 16*ft + 4*s_, img, ft, s_)
    for x_ in rest[:8]: I(x_)
    rest = rest[8:]
    I("s_waitcnt lgkmcnt(8)")
    I(f"ds_write_b128 v{xa_}, {rr(vAT,4)} offset:{WU}")
    I(f"s_mov_b32 s10, {f2u(-LOG2E):#x}")
    for i in range(4):
        I(f"v_lshlrev_b32 v{vAT+8+2*i}, 16, v{vAT+4+i}")
        I(f"v_and_b32 v{vAT+9+2*i}, 0xffff0000, v{vAT+4+i}")
    for i in range(8): I(f"v_mul_f32 v{vAT+8+i}, s10, v{vAT+8+i}")
    for i in range(4): I(f"v_cvt_pk_bf16_f32 v{vAT+4+i}, v{vAT+8+2*i}, v{vAT+9+2*i}")
    I(f"ds_write_b128 v{xa_}, {rr(vAT+4,4)} offset:{WA}")
    QK, QB = opt("qk", 12), 252 * 16
    I(f"v_and_b32 v{u(0)}, 3, v{lane}")
    I(f"v_lshlrev_b32 v{u(2)}, 4, v{u(0)}")
    I(f"v_mul_u32_u24 v{u(0)}, {2*LCAP*4}, v{u(0)}")
    I(f"v_add_u32 v{u(0)}, {LCAP*4}, v{u(0)}")
    I(f"ds_write_b16 v{u(2)}, v{u(0)} offset:{HIST + QB + 2}")
    while rest:
        I("s_waitcnt lgkmcnt(8)")
        for x_ in rest[:6]: I(x_)
        rest = rest[6:]
    stamp('k')
    sPH = 5
    ROT = opt("rot", 1)
    I(f"s_mov_b32 s{sPH}, {85899 if ROT else PHM}")
    if ROT:
        assert SOFF == 0
        I(f"s_lshr_b32 s6, s{sB}, 5")
        I(f"s_mul_i32 s6, s6, {32 * BN * 85899}")
        I(f"s_sub_u32 s6, s6, {opt('rof', 0) * 85899}")
    if CP == 2:
        if opt("own", -1) >= 0: I(f"s_waitcnt vmcnt({opt('own', -1)})")
        cloads()
    XC = opt("xc", 0)
    if XC == 4: xloads()
    if XC == 2: xshared()
    sSEL = sM + 24
    for j in range(3): I(f"s_mov_b32 s{sSEL+j}, {0x0c0c0001 | (4 + j) << 8:#x}")
    I(f"s_mov_b32 s{sSEL+3}, 0x05040100")
    sQM = [sM + 28, sM + 30, sTMP]
    I(f"s_movk_i32 s4, 1338")
    I(f"s_movk_i32 s13, {QB}")
    I(f"s_movk_i32 s14, {QK * 1338}")
    I("s_waitcnt lgkmcnt(0)")
    I("s_barrier")
    vEO = vX
    SW1 = "dst_sel:DWORD dst_unused:UNUSED_PAD src0_sel:DWORD src1_sel:WORD_1"
    def haddr(d, r):
        return [f"v_mul_u32_u24_sdwa v{d}, s{sPH}, v{r} {SW1}"] + ([f"v_subrev_u32 v{d}, s6, v{d}"] if ROT else []) + [f"v_alignbit_b32 v{d}, v{r}, v{d}, 28", f"v_and_b32 v{d}, 0xffc, v{d}"]
    def remain(d, r, k):
        I(f"v_sub_u32_sdwa v{d}, v{r}, v{k} dst_sel:DWORD dst_unused:UNUSED_PAD src0_sel:BYTE_3 src1_sel:DWORD")
    for i in range(4):
        L(f"K2_CHK{i}")
        I(f"s_waitcnt vmcnt({3 - i + XC})")
        r = vC + 4*i
        I(f"v_bitop3_b32 v{u(0)}, v{r+3}, s{sTAG}, v{vTM} bitop3:0x28")
        I(f"v_cmp_ne_u32 vcc, 0, v{u(0)}")
        remain(u(0), r + 3, k4)
        hs = [haddr(vA+3*i+j, r+j) for j in range(3)]
        for j in range(3): I(hs[j][0])
        I(f"s_cbranch_vccnz K2_RETRY{i}")
        if i == 0: stamp(1)
        for j in range(3):
            m = sM + 2*(3*i+j)
            I(f"v_cmp_lt_i32 s[{m}:{m+1}], {j}, v{u(0)}")
        for st in range(1, len(hs[0])):
            for j in range(3): I(hs[j][st])
        if i == 0:
            qt = hh
            for j in range(3): I(f"v_mul_u32_u24_sdwa v{qt+j}, s4, v{r+j} dst_sel:DWORD dst_unused:UNUSED_PAD src0_sel:DWORD src1_sel:BYTE_0")
            for j in range(3): I(f"v_subrev_u32 v{qt+j}, {30 * 1338}, v{qt+j}")
            for j in range(3): I(f"v_cmp_gt_u16 s[{sQM[j]}:{sQM[j]+1}], s14, v{qt+j}")
            for j in range(3): I(f"v_lshrrev_b32 v{qt+j}, 16, v{qt+j}")
            for j in range(3): I(f"v_lshl_add_u32 v{qt+j}, v{qt+j}, 4, s13")
            for j in range(3): I(f"v_cndmask_b32 v{vA+j}, v{vA+j}, v{qt+j}, s[{sQM[j]}:{sQM[j]+1}]")
        for j in range(3):
            m = sM + 2*(3*i+j)
            I(f"s_mov_b64 exec, s[{m}:{m+1}]")
            I(f"ds_add_rtn_u32 v{vRK+3*i+j}, v{vA+3*i+j}, v{one} offset:{HIST}")
        I("s_mov_b64 exec, -1")
        if i == 0:
            I(f"v_and_b32 v{qt+3}, 0x0f0f0f, v{r+3}")
            for j in range(3):
                I(f"v_perm_b32 v{vEO+j}, v{qt+3}, v{r+j}, s{sSEL+j}")
                I(f"s_and_b64 s[{sQM[j]}:{sQM[j]+1}], s[{sQM[j]}:{sQM[j]+1}], s[{sM+2*j}:{sM+2*j+1}]")
                I(f"v_lshl_add_u32 v{vEO+j}, v{vEO+j}, 5, v{vEB}")
                I(f"s_andn2_b64 s[{sM+2*j}:{sM+2*j+1}], s[{sM+2*j}:{sM+2*j+1}], s[{sQM[j]}:{sQM[j]+1}]")
        if i == 0: I("s_waitcnt lgkmcnt(0)") if opt("qw", 1) == 0 else None
        if i == opt("qw", 1):
            I("s_waitcnt lgkmcnt(0)")
            for j in range(3):
                I(f"v_min_u16 v{qt+j}, {LMAX*4}, v{vRK+j}")
                I(f"v_add_u32_sdwa v{qt+j}, v{qt+j}, v{vRK+j} dst_sel:DWORD dst_unused:UNUSED_PAD src0_sel:WORD_0 src1_sel:WORD_1")
            for j in range(3):
                I(f"s_mov_b64 exec, s[{sQM[j]}:{sQM[j]+1}]")
                I(f"ds_write2st64_b32 v{qt+j}, v{vC+j}, v{vEO+j} offset0:{R0//256} offset1:{R1//256}")
            I("s_mov_b64 exec, -1")
    I(f"v_max3_u32 v{u(0)}, v{vC+3}, v{vC+7}, v{vC+11}")
    I(f"v_max_u32 v{u(0)}, v{u(0)}, v{vC+15}")
    I(f"v_cmp_le_u32 vcc, {33 << 24}, v{u(0)}")
    I("s_cbranch_vccnz K2_XT1")
    L("K2_XT1R")
    fill = []
    for i in range(1, 4):
        fill.append(f"v_and_b32 v{vC+4*i+3}, 0x0f0f0f, v{vC+4*i+3}")
    for i in range(1, 4):
        for j in range(3): fill.append(f"v_perm_b32 v{vEO+3*i+j}, v{vC+4*i+3}, v{vC+4*i+j}, s{sSEL+j}")
    for i in range(1, 4):
        for j in range(3): fill.append(f"v_lshl_add_u32 v{vEO+3*i+j}, v{vEO+3*i+j}, 5, v{vEB+i}")
    I(f"s_lshr_b32 s4, s{sW}, 1")
    I(f"s_add_u32 s4, s4, 60")
    stamp('s')
    I("s_waitcnt lgkmcnt(0)")
    I("s_barrier")
    stamp(2)
    c, p, tot, sc = u(0), u(4), u(8), u(9)
    own, ownn, owna = u(10), u(11), u(12)
    SD = "dst_sel:DWORD dst_unused:UNUSED_PAD src0_sel:WORD_0 src1_sel:WORD_0"
    sQ, sQD = sM + 28, sM + 29
    def first_reads():
        I(f"ds_read_b128 {rr(vQD,4)}, v{vARX}")
        I(f"ds_read_b32 v{vR1}, v{vARE}")
        I(f"ds_read_u8 v{vL1}, v{vARP}")
    I(f"ds_read_b128 {rr(hh+12,4)}, v{l16} offset:{HIST + 3072}")
    first_reads()
    for i in range(3):
        I(f"ds_read_b128 {rr(hh+4*i,4)}, v{l16} offset:{HIST + 1024*i}")
    I(f"ds_read_b64 v[{u(6)}:{u(7)}], v{owna} offset:{HIST}")
    XY = opt("xy", 2)
    if XC == 4: XY = 0
    if not XC and not XE:
        if XY:
            I(f"s_bitcmp1_b32 s{sW}, 0")
            I("s_cbranch_scc0 K2_NOX1")
        xloads()
        L("K2_NOX1")
    def xlate():
        I(f"s_bitcmp1_b32 s{sW}, 0")
        I("s_cbranch_scc1 K2_NOX2")
        xloads()
        L("K2_NOX2")
    I("s_waitcnt lgkmcnt(5)")
    I(f"v_readlane_b32 s{sQ}, v{hh+12}, s4")
    I(fill.pop(0)); I(fill.pop(0))
    I(f"s_and_b32 s{sQ}, s{sQ}, 0xffff")
    I(f"s_bitcmp1_b32 s{sW}, 0")
    I(f"s_cselect_b32 s{sQ}, s{sQ}, 0")
    I(f"s_cmp_ge_u32 s{sQ}, 128")
    I(f"s_cselect_b32 s{sQD}, 1, 0")
    I("s_cbranch_scc0 K2_NOQ")
    for x_ in dma_tile(0): I(x_)
    L("K2_NOQ")
    for i in (3, 0, 1, 2):
        if i < 3: I(f"s_waitcnt lgkmcnt({3 - i})")
        I(f"v_add_u32_sdwa v{c+i}, v{hh+4*i}, v{hh+4*i+1} {SD}")
        I(f"v_add_u32_sdwa v{hh+4*i}, v{hh+4*i+2}, v{hh+4*i+3} {SD}")
        I(f"v_add_u32 v{c+i}, v{c+i}, v{hh+4*i}")
    I(f"v_lshl_or_b32 v{p}, v{c+1}, 16, v{c}")
    I(f"v_lshl_or_b32 v{p+1}, v{c+3}, 16, v{c+2}")
    I("s_waitcnt lgkmcnt(0)")
    I(f"v_perm_b32 v{own}, v{u(7)}, v{u(6)}, s{sSEL+3}")
    for dp in ["row_shr:%d row_mask:0xf bank_mask:0xf bound_ctrl:0" % sh for sh in (1, 2, 4, 8)] + \
              ["row_bcast:15 row_mask:0xa bank_mask:0xf", "row_bcast:31 row_mask:0xc bank_mask:0xf"]:
        I(f"v_add_u32_dpp v{p}, v{p}, v{p} {dp}")
        I(f"v_add_u32_dpp v{p+1}, v{p+1}, v{p+1} {dp}")
        I(fill.pop(0) if fill else "s_nop 0")
    I("s_sub_u32 s4, s4, 1")
    I(f"v_readlane_b32 s10, v{p}, 63")
    I(f"v_readlane_b32 s11, v{p+1}, 63")
    I(f"v_readlane_b32 s{sF1}, v{p+1}, 59")
    I(f"v_readlane_b32 s{sTMP}, v{p+1}, s4")
    for i in range(3):
        I(f"v_lshlrev_b32_sdwa v{hh+i}, v{ecb}, v{p+(i>>1)} dst_sel:DWORD dst_unused:UNUSED_PAD src0_sel:DWORD src1_sel:WORD_{i&1}")
        I(f"v_sub_u32 v{c+i}, v{hh+i}, v{c+i}")
    b1, b2 = 4, 5
    I(f"s_and_b32 s{b1}, s10, 0xffff")
    I("s_lshr_b32 s10, s10, 16")
    I(f"s_add_u32 s{b2}, s{b1}, s10")
    I("s_and_b32 s10, s11, 0xffff")
    I(f"s_add_u32 s10, s{b2}, s10")
    I("s_lshr_b32 s11, s11, 16")
    I(f"s_add_u32 s10, s10, s11")
    I(f"s_lshr_b32 s{sF1}, s{sF1}, 16")
    I(f"s_lshr_b32 s{sTMP}, s{sTMP}, 16")
    I(f"s_sub_u32 s6, s{sTMP}, s{sF1}")
    I(f"s_lshl_b32 s6, s6, 1")
    for i, b in ((1, b1), (2, b2)):
        I(f"v_lshl_add_u32 v{c+i}, s{b}, 1, v{c+i}")
    KV = opt("kv", "1_4_3216_5") if SBK else ""
    if KV:
        klo, khi, kref, ksh = [int(x) for x in KV.split("_")]
        assert klo >= 1
        I(f"s_sub_i32 s{sSB}, {4*kref}, s10")
        I(f"s_ashr_i32 s{sSB}, s{sSB}, {ksh + 2}")
        I(f"s_max_i32 s{sSB}, s{sSB}, {klo}")
        I(f"s_min_i32 s{sSB}, s{sSB}, {khi}")
    I("s_lshr_b32 s11, s10, 5")
    I(f"s_add_u32 s11, s11, 16")
    I("s_and_b32 s11, s11, -32")
    if KV:
        I(f"s_cmp_ge_i32 s{sSB}, {opt('shk', 1)}")
        I(f"s_cselect_b32 s{sF0}, {ASYM + 32}, {ASYM}")
        I(f"s_sub_i32 s11, s11, s{sF0}")
    else: I(f"s_sub_i32 s11, s11, {ASYM + 32*opt('sh', 1)}")
    I("s_lshl_b32 s11, s11, 3")
    I("s_lshr_b32 s10, s10, 1")
    I(f"s_lshr_b32 s{sF0}, s{sW}, 1")
    I(f"s_mul_i32 s{sF0}, s{sF0}, s10")
    I(f"s_sub_i32 s{sF0}, s{sF0}, s6")
    I(f"s_sub_i32 s10, s10, s{sQ}")
    I(f"s_sub_i32 s10, s10, s{sQ}")
    I(f"s_add_i32 s11, s11, s{sF0}")
    I(f"s_add_i32 s10, s10, s{sF0}")
    I(f"s_bitcmp1_b32 s{sW}, 0")
    I(f"s_cselect_b32 s{sEND}, s11, s{sF0}")
    I("s_cselect_b32 s10, s10, s11")
    I(f"s_mov_b32 s{sF0}, 0")
    I(f"s_mov_b32 s{sF1}, 0")
    for i in range(3):
        I(f"v_cmp_gt_i32 vcc, s{sEND}, v{c+i}")
        I(f"v_cmp_gt_i32 s[{sTMP}:{sTMP+1}], s10, v{c+i}")
        I("s_bcnt1_i32_b64 s11, vcc")
        I(f"s_add_u32 s{sF0}, s{sF0}, s11")
        I(f"s_bcnt1_i32_b64 s11, s[{sTMP}:{sTMP+1}]")
        I(f"s_add_u32 s{sF1}, s{sF1}, s11")
    I(f"s_max_i32 s{sF0}, s{sF0}, s{lo0}")
    I(f"s_min_i32 s{sF0}, s{sF0}, s{hi0}")
    I(f"s_max_i32 s{sF1}, s{sF1}, s{lo1}")
    I(f"s_min_i32 s{sF1}, s{sF1}, s{hi1}")
    I(f"v_cmp_le_u32 vcc, s{sF0}, v{ownn}")
    I(f"v_cmp_gt_u32 s[10:11], s{sF1}, v{ownn}")
    I("s_nop 0")
    I("s_and_b64 vcc, vcc, s[10:11]")
    I(f"v_cndmask_b32 v{own}, 0, v{own}, vcc")
    I(f"v_mov_b32 v{tot}, v{own}")
    wave_scan(tot, fill, half=True)
    for x_ in fill: I(x_)
    I(f"s_sub_u32 s{sTMP}, s{sL}, {R0}")
    I(f"s_add_u32 s{sTMP}, s{sTMP}, s{sQ}")
    I(f"v_readlane_b32 s10, v{tot}, 31")
    I(f"v_readlane_b32 s11, v{tot}, 63")
    I(f"v_sub_u32 v{tot}, v{tot}, v{own}")
    I(f"v_mov_b32 v{vOWN}, v{u(14)}")
    I(f"s_and_b32 s{sTH}, s10, 0xffff")
    I("s_lshr_b32 s10, s10, 16")
    I(f"s_add_u32 s{sTH+1}, s{sTH}, s10")
    I("s_and_b32 s10, s11, 0xffff")
    I(f"s_add_u32 s{sTH+2}, s{sTH+1}, s10")
    I("s_lshr_b32 s11, s11, 16")
    I(f"s_add_u32 s{sEND}, s{sTH+2}, s11")
    I(f"s_lshl_b32 s10, s{sTH}, 16")
    I(f"s_pack_ll_b32_b16 s11, s{sTH+1}, s{sTH+2}")
    I(f"s_pack_ll_b32_b16 s{sTMP}, s{sTMP}, s{sTMP}")
    I(f"s_add_u32 s10, s10, s{sTMP}")
    I(f"s_add_u32 s11, s11, s{sTMP}")
    I("s_mov_b32 exec_lo, vcc_lo")
    I("s_mov_b32 exec_hi, 0")
    I(f"v_add_u32 v{tot}, s10, v{tot}")
    I("s_mov_b32 exec_lo, 0")
    I("s_mov_b32 exec_hi, vcc_hi")
    I(f"v_add_u32 v{tot}, s11, v{tot}")
    I("s_mov_b64 exec, vcc")
    I(f"ds_write_b16 v{owna}, v{tot} offset:{HIST + 2}")
    I(f"ds_write_b16_d16_hi v{owna}, v{tot} offset:{HIST + 6}")
    I(f"ds_write_b32 v{vMIN+1}, v{vMIN} offset:{MAP}")
    I("s_mov_b64 exec, -1")
    I(f"v_mov_b32 v{sc}, {FLAG}")
    I(f"s_add_u32 s{sEND}, s{sEND}, s{sQ}")
    I(f"s_add_u32 s{sQ}, s{sQ}, {opt('tho', 64)}")
    I(f"s_cmp_le_u32 s{sEND}, {LMAX*4}")
    I("s_cbranch_scc1 K2_LFIT")
    I(f"ds_write_b32 v{sc}, v{sc}")
    I(f"s_mov_b32 s{sEND}, 0")
    L("K2_LFIT")
    I(f"s_add_u32 s{sEND}, s{sEND}, s{sL}")
    for k in range(3):
        I(f"s_add_i32 s{sTH+k}, s{sTH+k}, s{sQ}")
        I(f"s_lshr_b32 s{sTH+k}, s{sTH+k}, 7")
    pads(lane, u(0), u(1), u(2))
    I(f"v_mov_b32 v{u(0)}, s{sEND}")
    I(f"ds_write_b32 v{vMIN}, v{u(0)} offset:{CNT}")
    if XY == 1: xlate()
    if XC == 2:
        I(f"s_cmp_lg_u32 s{sQD}, 0")
        I("s_cbranch_scc1 K2_XCW")
        I("s_waitcnt vmcnt(0)")
        L("K2_XCW")
    I("s_waitcnt lgkmcnt(0)")
    stamp('a')
    I("s_barrier")
    stamp('b')
    I(f"ds_read_b64 v[{u(6)}:{u(7)}], v{sc}")
    for s in range(12):
        m = sM + 2*s
        I(f"s_mov_b64 exec, s[{m}:{m+1}]")
        I(f"ds_read_u16 v{vA+s}, v{vA+s} offset:{HIST + 2}")
    I("s_mov_b64 exec, -1")
    I(f"s_waitcnt lgkmcnt(0)")
    I(f"v_readfirstlane_b32 s{sST}, v{u(6)}")
    I(f"v_readfirstlane_b32 s{sCUR}, v{u(7)}")
    for s in range(12): I(f"v_add_u32 v{vA+s}, v{vA+s}, v{vRK+s}")
    I(f"s_cmp_gt_u32 s{sST}, {XMAX}")
    I("s_cbranch_scc1 K2_OVF")
    for s in range(12):
        m = sM + 2*s
        I(f"s_mov_b64 exec, s[{m}:{m+1}]")
        I(f"ds_write2st64_b32 v{vA+s}, v{vC+4*(s//3)+s%3}, v{vEO+s} offset0:{R0//256} offset1:{R1//256}")
    I("s_mov_b64 exec, -1")
    L("K2_PADS0")
    sERL = 1
    I(f"s_add_u32 s10, s{sSB}, 2")
    I(f"s_cmp_gt_u32 s{sN}, s10")
    I(f"s_cselect_b32 s{sERL}, s{sW}, 0")
    I(f"s_sub_u32 s10, s{sF0}, s{sWIN}")
    I("s_mul_i32 s10, s10, 144")
    I(f"s_add_u32 s{sERT}, s10, s{sSTG}")
    I(f"s_mul_i32 s10, s{sB}, {BN}")
    I(f"s_add_u32 s11, s10, s{sF1}")
    I(f"s_add_u32 s10, s10, s{sF0}")
    I(f"s_min_u32 s11, s11, {N}")
    I(f"s_min_u32 s10, s10, {N}")
    I("s_sub_u32 s11, s11, s10")
    I("s_lshl_b32 s10, s10, 7")
    I(f"s_add_u32 s{sOUT}, s{sOUT}, s10")
    I(f"s_addc_u32 s{sOUT+1}, s{sOUT+1}, 0")
    I(f"s_lshl_b32 s{sOUT+2}, s11, 7")
    I(f"s_mov_b32 s{sCI}, -1")
    I(f"s_mov_b64 s[{sMSK}:{sMSK+1}], 0")
    I(f"s_mov_b32 s{sR0}, 0")
    I(f"s_mov_b32 s{sCNT}, 0")
    I(f"s_cmp_lg_u32 s{sCUR}, 0")
    I(f"s_cselect_b32 s{sMORE}, 1, 0")
    def atable():
        vWA = vACC
        for q in range(4): I(f"ds_read_b128 {rr(vX+4*q,4)}, v{vXA} offset:{16*q}")
        I(f"v_add_u32 v{l16}, 8192, v{l16}")
        for k in range(8): I(f"ds_read_b128 {rr(vWA+4*k,4)}, v{l16} offset:{WA - 8192 + 1024*k}")
        I(f"s_mov_b32 s10, {f2u(1e-6):#x}")
        I(f"s_mov_b32 s11, s10")
        I(mfma(NUM(1), vT2, vT2))
        for i in range(8): I(f"v_mov_b64 v[{DEN(1)+2*i}:{DEN(1)+2*i+1}], s[10:11]")
        for k in range(8):
            D = (vP, vQ)[k >> 2]
            I(f"s_waitcnt lgkmcnt({7 - k})")
            I(mfma(D, vX + 4*(k & 3), vWA + 4*k, None if k & 3 == 0 else D))
    def atable2():
        I(mfma(NUM(0), vT2, vT2))
        I(f"s_mov_b32 s10, {f2u(1e-6):#x}")
        I(f"s_mov_b32 s11, s10")
        for i in range(8): I(f"v_mov_b64 v[{DEN(0)+2*i}:{DEN(0)+2*i+1}], s[10:11]")
        for i in range(16): I(f"v_cvt_pk_bf16_f32 v{vAT+i}, v{vP+2*i}, v{vP+2*i+1}")
    def first_tile():
        first_reads()
        I("s_waitcnt lgkmcnt(1)")
        for s in dma_tile(0): I(s)
    EM2 = 1
    def newend(tag):
        I(f"s_cmp_eq_u32 s{sST}, 0")
        I(f"s_cbranch_scc1 K2_NE{tag}")
        I(f"s_lshl_b32 s10, s{sW}, 2")
        I(f"v_mov_b32 v{vT1+6}, s10")
        I(f"ds_read_b32 v{vT1+6}, v{vT1+6} offset:{CNT}")
        I("s_waitcnt lgkmcnt(0)")
        I(f"v_readfirstlane_b32 s{sEND}, v{vT1+6}")
        I("s_nop 3")
        ntiles()
        L(f"K2_NE{tag}")
    I(f"s_and_b32 s{sQD}, s{sQD}, s{sERL}")
    I(f"s_cmp_gt_u32 s{sQD}, s{sXT}")
    I("s_cbranch_scc0 K2_SIDE")
    I("s_waitcnt vmcnt(5) lgkmcnt(0)")
    atable()
    stamp('c')
    I("s_barrier")
    stamp(3)
    atable2()
    I("s_branch K2_HAD0")
    L("K2_SIDE")
    if XY == 2: xlate()
    I("s_waitcnt vmcnt(5) lgkmcnt(0)")
    stamp('c')
    I("s_barrier")
    stamp(3)
    I(f"s_cmp_lg_u32 s{sQD}, 0")
    I("s_cbranch_scc1 K2_SIDE1")
    I(f"s_waitcnt vmcnt({0 if XY in (0, 3) else 4})")
    I(f"s_bitcmp1_b32 s{sW}, 0")
    I("s_cbranch_scc0 K2_SIDE1")
    I("s_waitcnt vmcnt(0)")
    I(f"s_bitcmp1_b32 s{sERL}, 0")
    I("s_cbranch_scc0 K2_SIDE1")
    first_tile()
    L("K2_SIDE1")
    I(f"s_cmp_lg_u32 s{sXT}, 0")
    I("s_cbranch_scc1 K2_XT2")
    L("K2_XT2R")
    I(f"s_bitcmp1_b32 s{sERL}, 0")
    I("s_cbranch_scc1 K2_SIDE2")
    I("s_barrier")
    newend("y")
    if XY == 3: xlate()
    first_tile()
    L("K2_SIDE2")
    I("s_waitcnt vmcnt(5) lgkmcnt(0)")
    atable()
    atable2()
    I("s_branch K2_HAD0")
    L("K2_GO")
    first_tile()
    L("K2_HAD0")
    I("s_waitcnt lgkmcnt(0)")
    I(f"v_lshl_add_u32 v{vL1}, v{vL1}, 6, v{vC1}")
    I(f"ds_read_b128 {rr(vQD,4)}, v{vARX} offset:128")
    I(f"ds_read_b32 v{vR1}, v{vARE} offset:128")
    for s in t1_reads(): I(s)
    I(mfma(vQ, vT2, vT2))
    stamp(4)
    I("s_waitcnt vmcnt(0)")
    stamp(5)
    I(f"ds_read_b128 {rr(vE,4)}, v{vAE}")
    for q in range(4):
        I(f"ds_read_b128 {rr(vX+4*q,4)}, v{vAX} offset:{16*q}")
    I("s_waitcnt lgkmcnt(0)")
    if EM2:
        for x_ in dma_tile(0): I(x_)
        I(f"s_cmp_lt_i32 s{sSB}, 0")
        I("s_cbranch_scc1 K2_B1")
        I("s_barrier")
        I(f"s_bitcmp1_b32 s{sERL}, 0")
        I(f"s_cselect_b32 s{sSB}, s{sSB}, -1")
        I("s_cbranch_scc0 K2_B1")
        newend("o")
        L("K2_B1")
        I(f"s_cmp_lg_u32 s{sN}, 0")
        I("s_cbranch_scc1 K2_NZ")
        I("s_waitcnt vmcnt(0)")
        I("s_branch K2_DONE")
        L("K2_NZ")
    else:
        I(f"s_cmp_eq_u32 s{sN}, 0")
        I("s_cbranch_scc1 K2_DONE")
    for s in g_mfmas(vP, 0):
        if s.startswith("v_smfmac"):
            if EM2: I("s_nop 9")
            else:
                for x_ in dma_tile(0): I(x_)
        I(s)
    stamp('L')
    I(f"s_mov_b32 s{sT}, 0")
    sEV = 87
    TPF, sPFT = opt("tpf", 0), 0
    LT = [int(x) for x in opt("lt", "1234")] if opt("lt", "1234") != "0" else []
    def prio_code(uid):
        return [f"s_cmp_ge_u32 s{sT}, s{sEV}", f"s_cbranch_scc1 K2_EV{uid}", f"K2_EVR{uid}:"]
    def next_event():
        I(f"s_mov_b32 s{sEV}, s{sN}")
        for r in [sTH, sTH+1, sTH+2] + ([sSB] if SBK else []) + ([sN1] if LT else []) + ([sPFT] if TPF else []):
            I(f"s_cmp_gt_i32 s{r}, s{sT}")
            I(f"s_cselect_b32 s10, s{r}, s{sEV}")
            I(f"s_min_u32 s{sEV}, s{sEV}, s10")
    YK = opt("yk", 2)
    if YK:
        I(f"s_sub_u32 s10, s{sN}, {YK - 1 if YK < 10 else 0}")
        I(f"s_bitcmp1_b32 s{sW}, 0")
        I(f"s_cselect_b32 s{sTH+2}, s{sTH+2}, s10")
    I("s_setprio 3")
    if TPF: I(f"s_sub_i32 s{sPFT}, s{sN}, {TPF}")
    next_event()
    tst = ["s_memrealtime s[98:99]", "s_waitcnt lgkmcnt(0)", "s_mov_b32 m0, s72", "s_nop 0", "v_writelane_b32 v255, s98, m0", "s_memtime s[98:99]", "s_waitcnt lgkmcnt(0)", "s_add_u32 m0, s72, 32", "s_nop 0", "v_writelane_b32 v255, s98, m0"] if TS == 4 else []
    body = tst + phaseA(0) + phaseB(0)
    body += prio_code(0)
    body += tst + phaseA(1) + phaseB(1)
    body += [f"v_add_u32 v{r}, 0x100, v{r}" for r in (vARX, vARP, vARE, vART)]
    body += [f"s_cmp_lt_u32 s{sT}, s{sEV}", f"s_cbranch_scc1 K2_LOOP"]
    check_body(body)
    DBG = opt("dbg", "")
    if "ell" in DBG:
        nb = []
        for b in body:
            if b.startswith("v_smfmac") and b.endswith(f"v{vIX}"): continue
            if b.startswith("v_smfmac") and "noA" in DBG: continue
            if b.startswith("ds_read_b64_tr") or b.startswith("ds_read_u8 v23") or b.startswith("v_lshl_add_u32 v23"): continue
            m = re.fullmatch(r"v_mul_f32 v(\d+), v(\d+), v\d+", b)
            if m:
                h, g = int(m.group(1)), int(m.group(2)); ft = 0 if g < vQ else 1; i = h - vQ
                nb.append(f"v_fmac_f32 v{NUM(ft)+i}, v{g}, v{h}")
                nb.append(f"v_add_f32 v{DEN(ft)+i}, v{DEN(ft)+i}, v{g}")
                continue
            nb.append(b)
        body = nb
    if "fl" in DBG:
        nb = []; cnt = 0
        for b in body:
            if b.startswith("ds_read_b128 v[172") or b.startswith("ds_read_b32 v176") or b.startswith("ds_read_u8 v250") or b.startswith("v_lshl_add_u32 v250"): continue
            m = re.fullmatch(r"v_add_f32 v(\d+), v(\d+), v(\d+)", b)
            if m:
                cnt += 1
                if cnt % 4 == 0:
                    k = (cnt // 4) % 4
                    nb.append(f"v_cvt_pk_bf16_f32 v{vT2+k}, v{m.group(1)}, v{int(m.group(1))+16}")
                    nb.append(f"ds_pk_add_bf16 v{vT1+7}, v{vT2+k} offset:{256*(cnt%64)//4}")
                    nb.append(f"ds_read_u16_d16_hi v{vAT+k}, v{vC1} offset:{16384 + 128*k}")
                    if k % 2: nb.append(f"v_add_u32 v{vT2+4}, v{vT2+5}, v{vC1}")
                    continue
            if b.startswith("s_waitcnt lgkmcnt"): b = "s_waitcnt lgkmcnt(0)" if "(0)" in b else b
            nb.append(b)
        body = [f"v_lshl_add_u32 v{vT1+7}, v{lane}, 2, s{sSTG}", f"v_subrev_u32 v{vT1+7}, 33280, v{vT1+7}", f"v_lshlrev_b32 v{vC1}, 1, v{lane}"] + nb
    if "drop" in DBG:
        n = int(DBG[DBG.index("drop") + 4:])
        body = [b for b in body if not (b.startswith("v_add_f32") and (int(b.split()[1][1:-1]) - vP) % 16 < n)]
    if "half" in DBG:
        body = [b for b in body if not (b.startswith("v_smfmac") and b.endswith(f"v{vIX}") and f"v[{vT2+4}:" in b)]
    if "nodma" in DBG: body = [b for b in body if not b.startswith("buffer_load")]
    emit(".p2align 6")
    L("K2_LOOP")
    for s in body:
        if s.endswith(":"): L(s[:-1])
        else: I(s)
    for uid in (1, 0):
        if uid == 0: L("K2_EV0")
        I(f"s_cmp_ge_u32 s{sT}, s{sN}")
        I("s_cbranch_scc1 K2_TAIL")
        if SBK:
            I(f"s_cmp_lg_u32 s{sT}, s{sSB}")
            I(f"s_cbranch_scc1 K2_SB{uid}")
            I("s_barrier")
            if EM2: I(f"s_mov_b32 s{sSB}, -1")
            else: newend(uid)
            L(f"K2_SB{uid}")
        for k in range(3):
            I(f"s_cmp_lg_u32 s{sT}, s{sTH+k}")
            I(f"s_cbranch_scc1 K2_PR{uid}_{k}")
            I(f"s_setprio {2-k}")
            L(f"K2_PR{uid}_{k}")
        if TPF:
            I(f"s_cmp_lg_u32 s{sT}, s{sPFT}")
            I(f"s_cbranch_scc1 K2_TP{uid}")
            I("s_getpc_b64 s[10:11]")
            L(f"K2_TPC{uid}")
            I(f"v_lshlrev_b32 v{vT1+7}, 7, v{lane}")
            I(f"v_min_u32 v{vT1+7}, K2_END-K2_TPC{uid}, v{vT1+7}")
            I(f"global_load_dword v{vT1+6}, v{vT1+7}, s[10:11]")
            L(f"K2_TP{uid}")
        if LT:
            I(f"s_lshl_b32 s10, s{sMORE}, 8")
            I(f"s_add_u32 s10, s10, s{sN1}")
            I(f"s_cmp_eq_u32 s{sT}, s10")
            I(f"s_cbranch_scc1 K2_LT{uid}")
        next_event()
        I("s_branch K2_LOOP" if uid else "s_branch K2_EVR0")
    if LT:
        L("K2_LT0")
        I(f"v_add_u32 v{vART}, 128, v{vART}")
        L("K2_LT1")
        stamp('T')
        I(f"s_sub_u32 s10, s{sEND}, s{sL}")
        I(f"s_sub_u32 s10, s10, 4")
        I(f"s_and_b32 s10, s10, 127")
        for ng in LT[:-1]:
            I(f"s_cmp_lt_u32 s10, {32*ng}")
            I(f"s_cbranch_scc1 K2_LG{ng}")
        for ng in reversed(LT):
            if ng != LT[-1]: L(f"K2_LG{ng}")
            for x_ in last_tile(ng): I(x_)
            I("s_branch K2_EPI2")
    L("K2_TAIL")
    for s in s_mfmas(NUM(1), vQ): I(s)
    L("K2_DONE")
    I(f"s_cmp_lg_u32 s{sMORE}, 0")
    I("s_cbranch_scc1 K2_SLOW")
    L("K2_EPI")
    for x_ in epi_addr() + epi_id() + epi_wu() + [epi_x(q) for q in range(4)]: I(x_)
    L("K2_EPI2")
    stamp(6)
    D = (vP, vAT)
    rc = lambda ft: [f"v_rcp_f32 v{DEN(ft)+i}, v{DEN(ft)+i}" for i in range(16)]
    mu = lambda ft: [f"v_mul_f32 v{NUM(ft)+i}, v{NUM(ft)+i}, v{DEN(ft)+i}" for i in range(16)] + \
                    [f"v_cvt_pk_bf16_f32 v{DEN(ft)+i}, v{NUM(ft)+2*i}, v{NUM(ft)+2*i+1}" for i in range(8)]
    un = lambda ft: sum(([f"v_lshlrev_b32 v{vWV+2*i}, 16, v{vX+i}", f"v_and_b32 v{vWV+2*i+1}, 0xffff0000, v{vX+i}"] for i in range(8*ft, 8*ft+8)), [])
    um = lambda ft: [mfma(D[ft], vWB+16*ft+4*q, vX+4*q, vWV+16*ft if q == 0 else D[ft]) for q in range(4)]
    tm = lambda ft: [mfma(D[ft], DEN(ft)+4*s_, vWC+4*s_, D[ft]) for s_ in range(2)]
    def fin(ft):
        r = []
        for q in range(2):
            r += [f"v_max_f32 v{D[ft]+i}, v{D[ft]+i}, v{vWV+16*ft+i}" for i in range(8*q, 8*q+8)]
            r += [f"v_cvt_pk_bf16_f32 v{vR+8*ft+4*q+d}, v{D[ft]+8*q+2*d}, v{D[ft]+8*q+2*d+1}" for d in range(4)]
            r += [f"ds_write_b128 v{eW}, {rr(vR+8*ft+4*q,4)} offset:{32*ft + 16*q}"]
        return r
    def weave(m, v):
        r = []; k = -(-len(v) // len(m))
        for i, x_ in enumerate(m): r += [x_] + v[i*k:(i+1)*k]
        return r
    seq = ["s_nop 1"] + rc(0)[:8] + ["s_waitcnt lgkmcnt(0)"] + un(0) + rc(0)[8:10] + weave(um(0), rc(0)[10:] + un(1) + mu(0)[:6])
    seq += weave(um(1), mu(0)[6:] + rc(1)[:6]) + weave(tm(0), rc(1)[6:]) + mu(1) + tm(1) + fin(0) + fin(1)
    for x_ in fixnops(seq): I(x_)
    stamp('e3')
    for q in range(4):
        I(f"ds_read_b128 {rr(vX+4*q,4)}, v{eR} offset:{8*144*q}")
    for q in range(4):
        I(f"s_waitcnt lgkmcnt({3-q})")
        I(f"buffer_store_dwordx4 {rr(vX+4*q,4)}, v{eL}, s[{sOUT}:{sOUT+3}], 0 offen offset:{1024*q}{pol(K2_OP)}")
    stamp('e4')
    I(f"s_add_u32 s10, s2, s7")
    I("s_cmp_lg_u32 s10, 0")
    I("s_cbranch_scc1 K2_NOEP")
    I(f"v_mov_b32 v{vP}, {WS_EPOCH}")
    I(f"v_mov_b32 v{vP+1}, s{sEPN}")
    I(f"buffer_store_dword v{vP+1}, v{vP}, s[{sWS}:{sWS+3}], 0 offen sc1")
    L("K2_NOEP")
    if TS == 2 or opt("tsn", 0): I(f"s_mov_b32 s89, s{sN}")
    if TS == 8:
        I(f"s_sub_u32 s94, {opt('spin', 300000)}, s{sSPIN}")
        I(f"s_mul_i32 s94, s94, 100")
        I(f"s_add_u32 s94, s94, s88")
    if TS and WSB:
        I(f"s_sub_u32 s8, s8, {WSB}")
        I("s_subb_u32 s9, s9, 0")
    if TS: I(f"s_mov_b32 s{sW}, s7")
    if TS == 4:
        I("s_mov_b64 exec, -1")
        I(f"s_lshl_b32 s87, s2, 11")
        I(f"s_add_u32 s87, s87, {WS_TS + 0x180000}")
        I(f"s_lshl_b32 s86, s{sW}, 8")
        I("s_add_u32 s87, s87, s86")
        I(f"v_lshl_add_u32 v{vP}, v{lane}, 2, s87")
        I(f"global_store_dword v{vP}, v255, s[8:9]")
    stamp_out(8, 8, sW, 8, 0x100000, vP)
    L("K2_END")
    I("s_endpgm")
    def spin():
        if opt("slp", 0): I(f"s_sleep {opt('slp', 1)}")
        I(f"s_sub_u32 s{sSPIN}, s{sSPIN}, 1")
        I("s_cbranch_scc1 K2_END")
    for i in range(4):
        L(f"K2_RETRY{i}")
        spin()
        I("s_waitcnt vmcnt(0)")
        for j in range(i, 4):
            I(f"v_bitop3_b32 v{u(0)}, v{vC+4*j+3}, s{sTAG}, v{vTM} bitop3:0x28")
            for dp in ("quad_perm:[1,0,3,2]", "quad_perm:[2,3,0,1]", "row_half_mirror"):
                I("s_nop 1")
                I(f"v_or_b32_dpp v{u(0)}, v{u(0)}, v{u(0)} {dp} row_mask:0xf bank_mask:0xf")
            I(f"v_cmp_ne_u32 vcc, 0, v{u(0)}")
            I("s_and_b64 exec, exec, vcc")
            I(f"s_cbranch_execz K2_RT{i}{j}")
            cload(j)
            L(f"K2_RT{i}{j}")
            I("s_mov_b64 exec, -1")
        I("s_waitcnt vmcnt(0)")
        I(f"s_branch K2_CHK{i}")
    L("K1_EXT")
    I(f"s_mov_b32 s14, 0x0f0f0f0f")
    I(f"s_mov_b32 s15, s14")
    for i in range(4):
        I(f"ds_read_b32 v{oE+i}, v6 offset:{16*LROW*i + 32}")
        I(f"ds_read_b128 {rr(pD+8*i,4)}, v3 offset:{64*LROW*i + 128}")
    I("s_waitcnt lgkmcnt(0)")
    for i in range(4):
        I(f"v_cmp_le_u32 vcc, {33 << 24}, v{oH+i}")
        I(f"v_and_or_b32 v{pD+8*i+3}, v{oE+i}, v15, v{oH+i}")
        I("s_and_b64 exec, vcc, s[14:15]")
        I(f"s_cbranch_execz K1_EX{i}")
        I(f"buffer_store_dwordx4 {rr(pD+8*i,4)}, v4, s[{sST_}:{sST_+3}], s10 offen sc1")
        L(f"K1_EX{i}")
        I("s_mov_b64 exec, -1")
        I(f"s_add_u32 s10, s10, {64*RS}")
    I("s_branch K1_EXTR")
    L("K1_OVF")
    t = vAT
    for i in range(4):
        I(f"v_lshrrev_b32 v{t+i}, 16, v{oA+i}")
        I(f"v_lshrrev_b32 v{t+4}, 18, v{oA+i}")
        I(f"v_sub_u32 v{t+i}, v{t+i}, v{t+4}")
    I(f"v_add_u32 v{t+5}, v{t}, v{t+1}")
    I(f"v_add_u32 v{t+6}, v{t+5}, v{t+2}")
    I(f"v_add_u32 v{t+7}, v{t+6}, v{t+3}")
    I(f"v_mov_b32 v1, v{t+7}")
    wave_scan(1)
    I("s_nop 0")
    I(f"v_sub_u32 v{t+4}, v1, v{t+7}")
    I(f"v_add_u32 v{t+7}, v{t+4}, v{t+6}")
    I(f"v_add_u32 v{t+6}, v{t+4}, v{t+5}")
    I(f"v_add_u32 v{t+5}, v{t+4}, v{t}")
    for i in range(4):
        I(f"v_lshl_or_b32 v{t+4+i}, v{t+i}, 16, v{t+4+i}")
    I("s_waitcnt lgkmcnt(0)")
    I(f"ds_write_b128 v{l16}, {rr(t+4,4)} offset:{P_HDR}")
    for i in range(4): I(f"v_min_u32 v{oH+i}, 255, v{oH+i}")
    I(f"s_lshl_b32 s15, s{sB}, 2")
    I(f"s_add_u32 s15, s15, {WS_HDR}")
    srd(q0, 8, 9, NB*NCH*4, "s15")
    I(f"v_lshlrev_b32 v1, 12, v{lane}")
    for i in range(4):
        I(f"buffer_store_dword v{t+4+i}, v1, s[{q0}:{q0+3}], 0 offen offset:{1024*i} sc1")
    I(f"s_add_u32 s15, s13, {WS_RECS}")
    srd(q0, 8, 9, CH*4, "s15")
    I("s_lshr_b32 s15, s13, 2")
    I(f"s_add_u32 s15, s15, {WS_XB}")
    srd(q1, 8, 9, CH, "s15")
    I(f"v_cndmask_b32 v{pH+6}, v{pH}, v{pH+6}, s[{pm}:{pm+1}]")
    I(f"v_cndmask_b32 v{pK+6}, 0, v{pK+6}, s[{pm}:{pm+1}]")
    for i in range(7):
        I(f"ds_read_u16 v{pA+i}, v{pH+i} offset:{P_HDR - H0}")
    I("s_waitcnt lgkmcnt(0)")
    for i in range(7):
        I(f"v_lshrrev_b32 v1, 2, v{pK+i}")
        I(f"v_sub_u32 v1, v{pK+i}, v1")
        I(f"v_add_u32 v{pA+i}, v{pA+i}, v1")
        I(f"v_cmp_le_u32 vcc, {QCAP}, v{pK+i}")
        I(f"v_lshlrev_b32 v{pB+i}, 2, v{pA+i}")
        I("s_and_saveexec_b64 s[14:15], vcc")
        I(f"s_cbranch_execz K1_OV3_{i}")
        I(f"buffer_store_byte v{xb(i)}, v{pA+i}, s[{q1}:{q1+3}], 0 offen sc1")
        I(f"buffer_store_dword v{pS+i}, v{pB+i}, s[{q0}:{q0+3}], 0 offen sc1")
        L(f"K1_OV3_{i}")
        I("s_mov_b64 exec, -1")
    I("s_waitcnt vmcnt(0)")
    I("s_barrier")
    I("s_branch K1_OUT")
    xd, xa, xk, xrem, xeb, xad, xt = vACC + 44, vACC + 52, vACC + 58, vQ, vQ + 2, vX + 12, vX + 14
    L("K2_XT1")
    I(f"s_mov_b32 s{sXT}, 1")
    I(f"v_cmp_le_u32 vcc, {(QCAP + 1) << 24}, v{u(0)}")
    I(f"v_mov_b32 v{xt}, {FLAG + 4}")
    I("s_cbranch_vccz K2_XT1A")
    I(f"ds_write_b32 v{xt}, v{one}")
    L("K2_XT1A")
    I("s_mov_b32 s10, 0xf0f0f0f0")
    I("s_mov_b32 s11, s10")
    I(f"v_and_b32 v{xt}, 12, v{k4}")
    I(f"v_add_u32 v{xt}, 32, v{xt}")
    I(f"v_and_b32 v{xad}, 64, v{u(1)}")
    I(f"v_mul_u32_u24 v{xad}, 127, v{xad}")
    I(f"v_add_u32 v{xad}, v{xad}, v{u(1)}")
    I(f"v_add_u32 v{xad+1}, 16384, v{xad}")
    I(f"v_mov_b32 v{xt+1}, 0x7ffffff0")
    for g in range(2):
        I(f"v_cndmask_b32 v{xrem+g}, v{vC+8*g+3}, v{vC+8*g+7}, s[10:11]")
        I(f"v_cndmask_b32 v{xeb+g}, v{vEB+2*g}, v{vEB+2*g+1}, s[10:11]")
        I(f"v_cmp_le_u32 vcc, {33 << 24}, v{xrem+g}")
        remain(xrem + g, xrem + g, xt)
        I("s_nop 0")
        I(f"v_cndmask_b32 v{xad+g}, v{xt+1}, v{xad+g}, vcc")
    I(f"s_add_u32 s{sCEL}, s{sCEL}, {WS_EXT}")
    I(f"s_addc_u32 s{sCEL+1}, s{sCEL+1}, 0")
    def xloads2():
        for g in range(2):
            I(f"buffer_load_dwordx4 {rr(xd+4*g,4)}, v{xad+g}, s[{sCEL}:{sCEL+3}], 0 offen sc1")
    xloads2()
    I(f"v_med3_i32 v{xt}, v{xrem}, 0, 3")
    I(f"v_med3_i32 v{xt+1}, v{xrem+1}, 0, 3")
    I(f"v_add_u32 v{xt}, v{xt}, v{xt+1}")
    I(f"v_mov_b32 v{xt+1}, {FLAG}")
    I(f"v_cmpx_lt_u32 vcc, 0, v{xt}")
    I(f"ds_add_u32 v{xt+1}, v{xt}")
    I("s_mov_b64 exec, -1")
    I("s_branch K2_XT1R")
    def xvalid(tag):
        L(f"K2_XV{tag}")
        I("s_mov_b64 s[10:11], 0")
        for g in range(2):
            I(f"v_bitop3_b32 v{xt}, v{xd+4*g+3}, s{sTAG}, v{vTM} bitop3:0x28")
            I(f"v_cmp_ne_u32 s[{sTMP}:{sTMP+1}], 0, v{xt}")
            I(f"v_cmp_gt_u32 vcc, 0x7ffffff0, v{xad+g}")
            I(f"s_and_b64 vcc, vcc, s[{sTMP}:{sTMP+1}]")
            I("s_or_b64 s[10:11], s[10:11], vcc")
        I(f"s_cbranch_scc0 K2_XW{tag}")
        spin()
        xloads2()
        I("s_waitcnt vmcnt(0)")
        I(f"s_branch K2_XV{tag}")
        L(f"K2_XW{tag}")
    L("K2_XT2")
    xvalid("a")
    for g in range(2):
        for j in range(3):
            I(f"v_and_b32 v{xa+3*g+j}, 255, v{xd+4*g+j}")
            I(f"v_lshlrev_b32 v{xa+3*g+j}, 2, v{xa+3*g+j}")
            I(f"ds_read_b32 v{xa+3*g+j}, v{xa+3*g+j} offset:{MAP}")
        I(f"v_and_b32 v{xd+4*g+3}, 0x0f0f0f, v{xd+4*g+3}")
    I("s_waitcnt lgkmcnt(0)")
    for g in range(2):
        for j in range(3):
            i = 3*g + j
            I(f"v_perm_b32 v{xk+i}, v{xd+4*g+3}, v{xd+4*g+j}, s{sSEL+j}")
            I(f"v_lshl_add_u32 v{xk+i}, v{xk+i}, 5, v{xeb+g}")
            I(f"v_cmpx_lt_i32 vcc, {j}, v{xrem+g}")
            I(f"ds_add_rtn_u32 v{xa+i}, v{xa+i}, v{one} offset:{CNT}")
            I("s_mov_b64 exec, -1")
    I("s_waitcnt lgkmcnt(0)")
    for g in range(2):
        for j in range(3):
            i = 3*g + j
            I(f"v_cmpx_lt_i32 vcc, {j}, v{xrem+g}")
            I(f"ds_write2st64_b32 v{xa+i}, v{xd+4*g+j}, v{xk+i} offset0:0 offset1:{(R1-R0)//256}")
            I("s_mov_b64 exec, -1")
    I("s_waitcnt lgkmcnt(0)")
    I("s_branch K2_XT2R")
    L("K2_OVF")
    I(f"s_mov_b32 s{sCUR}, 1")
    I(f"s_mov_b32 s{sST}, 0")
    I(f"s_mov_b32 s{sSKIP}, 0")
    I(f"s_mov_b32 s{sEND}, s{sL}")
    pads(lane, vP, vP+1, vP+2)
    I(f"s_cmp_eq_u32 s{sXT}, 0")
    I("s_cbranch_scc1 K2_PADS0")
    I(f"s_mov_b32 s{sXT}, 0")
    I("s_waitcnt vmcnt(0)")
    xvalid("b")
    I("s_branch K2_PADS0")
    SB = 448
    t0, t1, t2, t3, t4 = vP, vP+1, vP+2, vP+3, vP+4
    L("K2_SLOW")
    I(f"s_add_u32 s{sR0}, s{sR0}, {SB}")
    I(f"s_cmp_lt_u32 s{sR0}, s{sCNT}")
    I("s_cbranch_scc1 K2_BATCH")
    L("K2_FIND")
    I(f"s_cmp_lg_u64 s[{sMSK}:{sMSK+1}], 0")
    I("s_cbranch_scc1 K2_GOT")
    I(f"s_add_u32 s{sCI}, s{sCI}, 1")
    I(f"s_cmp_ge_u32 s{sCI}, 4")
    I("s_cbranch_scc1 K2_EPI")
    I(f"s_mul_i32 s10, s{sB}, {RS}")
    I(f"s_lshl_b32 s11, s{sCI}, 13")
    I("s_add_u32 s10, s10, s11")
    I(f"v_lshlrev_b32 v{vT}, 7, v{lane}")
    I(f"buffer_load_ubyte v{vT}, v{vT}, s[{sWS}:{sWS+3}], s10 offen offset:15 sc1")
    I("s_waitcnt vmcnt(0)")
    I(f"v_cmp_lt_u32 s[{sMSK}:{sMSK+1}], s{sSKIP}, v{vT}")
    I("s_nop 3")
    I("s_branch K2_FIND")
    L("K2_GOT")
    I(f"s_ff1_i32_b64 s10, s[{sMSK}:{sMSK+1}]")
    I(f"s_bitset0_b64 s[{sMSK}:{sMSK+1}], s10")
    I(f"s_lshl_b32 s11, s{sCI}, 6")
    I(f"s_add_u32 s{sCUR}, s10, s11")
    I(f"s_mul_i32 s10, s{sB}, {RS}")
    I(f"s_lshl_b32 s11, s{sCUR}, 7")
    I("s_add_u32 s10, s10, s11")
    I(f"s_lshl_b32 s11, s{sB}, 8")
    I(f"s_add_u32 s11, s11, s{sCUR}")
    I(f"s_lshl_b32 s11, s11, 2")
    I(f"s_add_u32 s11, s11, {WS_HDR}")
    I(f"v_mov_b32 v{t0}, 0")
    I(f"buffer_load_ubyte v{t1}, v{t0}, s[{sWS}:{sWS+3}], s10 offen offset:15 sc1")
    I(f"buffer_load_dword v{t2}, v{t0}, s[{sWS}:{sWS+3}], s11 offen sc1")
    I("s_waitcnt vmcnt(0)")
    I(f"v_readfirstlane_b32 s10, v{t1}")
    I(f"v_readfirstlane_b32 s11, v{t2}")
    I("s_nop 3")
    I(f"s_and_b32 s{sST}, s11, 0xffff")
    I("s_lshr_b32 s11, s11, 16")
    I(f"s_lshr_b32 s{sCNT}, s10, 2")
    I(f"s_sub_u32 s{sCNT}, s10, s{sCNT}")
    I(f"s_cmp_gt_u32 s10, {QCAP}")
    I(f"s_cselect_b32 s{sCNT}, s11, s{sCNT}")
    I(f"s_lshr_b32 s10, s{sSKIP}, 2")
    I(f"s_sub_u32 s{sR0}, s{sSKIP}, s10")
    L("K2_BATCH")
    I("s_barrier")
    I(f"v_and_b32 v{t0}, 7, v{lane}")
    I(f"v_mul_u32_u24 v{t1}, {LCAP*4}, v{t0}")
    I(f"v_add_u32 v{t1}, {R0}, v{t1}")
    I(f"v_lshlrev_b32 v{t0}, 2, v{t0}")
    I(f"ds_write_b32 v{t0}, v{t1} offset:{CNT}")
    I(f"v_add_u32 v{t0}, s{sR0}, v{tid}")
    I(f"s_mul_i32 s10, s{sB}, {RS}")
    I(f"s_lshl_b32 s11, s{sCUR}, 7")
    I("s_add_u32 s10, s10, s11")
    I(f"v_mul_u32_u24 v{t2}, {KQ}, v{t0}")
    I(f"v_lshrrev_b32 v{t2}, 16, v{t2}")
    I(f"v_lshl_add_u32 v{t1}, v{t2}, 2, s10")
    I(f"v_add_u32 v{t3}, {WS_EXT - 128}, v{t1}")
    I(f"v_cmp_lt_u32 vcc, 31, v{t2}")
    I(f"s_mul_i32 s11, s{sCUR}, {CH}")
    I(f"s_add_u32 s11, s11, s{sST}")
    I(f"v_cndmask_b32 v{t1}, v{t1}, v{t3}, vcc")
    I(f"v_or_b32 v{t3}, 12, v{t1}")
    I(f"v_and_b32 v{t4}, 3, v{t2}")
    I(f"v_add_u32 v{t3}, v{t3}, v{t4}")
    I(f"v_cmp_le_u32 vcc, {QCAP}, v{t2}")
    I(f"v_add_u32 v{t2}, s11, v{t0}")
    I(f"v_add_u32 v{t4}, {WS_XB}, v{t2}")
    I(f"v_cndmask_b32 v{t3}, v{t3}, v{t4}, vcc")
    I(f"v_lshlrev_b32 v{t2}, 2, v{t2}")
    I(f"v_add_u32 v{t2}, {WS_RECS}, v{t2}")
    I(f"v_cndmask_b32 v{t1}, v{t1}, v{t2}, vcc")
    I(f"s_add_u32 s10, s{sR0}, {SB}")
    I(f"s_min_u32 s10, s10, s{sCNT}")
    I(f"v_cmp_gt_u32 vcc, s10, v{t0}")
    I(f"v_mov_b32 v{t2}, 0x7ffffff0")
    I(f"s_mul_i32 s{sTMP}, s{sCUR}, {CH*32}")
    I(f"v_cndmask_b32 v{t1}, v{t2}, v{t1}, vcc")
    I(f"v_cndmask_b32 v{t3}, v{t2}, v{t3}, vcc")
    I(f"buffer_load_dword v{t1}, v{t1}, s[{sWS}:{sWS+3}], 0 offen sc1")
    I(f"buffer_load_ubyte v{t3}, v{t3}, s[{sWS}:{sWS+3}], 0 offen sc1")
    I("s_waitcnt lgkmcnt(0)")
    I("s_barrier")
    I("s_and_saveexec_b64 s[10:11], vcc")
    I("s_waitcnt vmcnt(0)")
    I(f"v_and_b32 v{t0}, 255, v{t1}")
    I(f"v_lshlrev_b32 v{t0}, 2, v{t0}")
    I(f"ds_read_b32 v{t0}, v{t0} offset:{MAP}")
    I(f"v_bfe_u32 v{t2}, v{t1}, 8, 8")
    I(f"v_and_b32 v{t3}, 15, v{t3}")
    I(f"v_lshl_or_b32 v{t3}, v{t3}, 8, v{t2}")
    I(f"v_mov_b32 v{t2}, 4")
    I(f"v_lshl_add_u32 v{t3}, v{t3}, 5, s{sTMP}")
    I("s_waitcnt lgkmcnt(0)")
    I(f"ds_add_rtn_u32 v{t0}, v{t0}, v{t2} offset:{CNT}")
    I("s_waitcnt lgkmcnt(0)")
    I(f"ds_write2st64_b32 v{t0}, v{t1}, v{t3} offset0:0 offset1:{(R1-R0)//256}")
    I("s_mov_b64 exec, -1")
    I("s_waitcnt lgkmcnt(0)")
    I("s_barrier")
    I(f"s_lshl_b32 s10, s{sW}, 2")
    I(f"v_mov_b32 v{t0}, s10")
    I(f"ds_read_b32 v{t0}, v{t0} offset:{CNT}")
    for i in range(8): I(f"v_mov_b32 v{vT2+i}, 0")
    listaddr(lane, t1, t2)
    I("s_waitcnt lgkmcnt(0)")
    I(f"v_readfirstlane_b32 s{sEND}, v{t0}")
    I("s_nop 3")
    pads(lane, t0, t1, t2)
    L("K2_LAST")
    I("s_branch K2_GO")

def regs_of(tok):
    tok = tok.strip()
    m = re.fullmatch(r"v\[(\d+):(\d+)\]", tok)
    if m: return list(range(int(m.group(1)), int(m.group(2)) + 1))
    m = re.fullmatch(r"v(\d+)", tok)
    if m: return [int(m.group(1))]
    return []
def parse(ins):
    op, _, rest = ins.partition(" ")
    ops = [o.strip().split(" ")[0] for o in rest.split(",")] if rest else []
    if op.startswith("v_mfma"):
        return "mfma", regs_of(ops[0]), regs_of(ops[1]) + regs_of(ops[2]), regs_of(ops[3])
    if op.startswith("v_smfmac"):
        return "mfma", regs_of(ops[0]), regs_of(ops[1]) + regs_of(ops[2]) + regs_of(ops[3]), regs_of(ops[0])
    if op.startswith("v_"):
        k = "trans" if op in ("v_exp_f32", "v_rcp_f32") else "valu"
        return k, regs_of(ops[0]), sum((regs_of(o) for o in ops[1:]), []), []
    if op.startswith("ds_read"):
        return "ds", regs_of(ops[0]), regs_of(ops[1]), []
    if op.startswith("buffer_load"):
        return "vm", [], regs_of(ops[0]) + regs_of(ops[1]), []
    return "other", [], [], []
def check_body(body):
    seq = [b for b in body if not b.endswith(":")]
    for skip_dma in (False, True):
        s2 = []
        sk = False
        for b in body:
            if skip_dma and b.startswith("s_cbranch_scc0 K2_ND"):
                s2.append(b); sk = True; continue
            if b.startswith("K2_ND"): sk = False
            if b.endswith(":") or sk: continue
            s2.append(b)
        seq = s2 * 3
        last = {}
        lastc = {}
        pend = []
        for i, ins in enumerate(seq):
            k, d, s, c = parse(ins)
            m = re.search(r"lgkmcnt\((\d+)\)", ins)
            if m:
                n = int(m.group(1))
                while len(pend) > n: pend.pop(0)
            pr = set(sum(pend, []))
            for r in d + s + c:
                assert r not in pr or i < len(s2), f"pending LDS reg v{r} used by {ins} @{i}"
            for r in s + c + d:
                if r not in last: continue
                pk, pi = last[r]; dist = i - pi - 1
                if pk == "mfma":
                    if k == "mfma" and r in c and r not in s: need = 0
                    elif k == "mfma" and r in d and r not in s: need = 0
                    else: need = 12
                elif pk in ("valu", "trans") and k == "mfma" and r in s + c: need = 2
                elif pk == "trans" and k in ("valu", "mfma", "ds", "vm") and r in s: need = 1
                else: need = 0
                assert dist >= need, f"hazard {pk}->{k} v{r} dist {dist} need {need}: {ins} @{i}"
            if k in ("valu", "trans"):
                for r in d:
                    if r in lastc: assert i - lastc[r] - 1 >= 7, f"srcC WAR {ins}"
            for r in c: lastc[r] = i
            for r in d: last[r] = (k, i)
            if k == "ds":
                pend.append(d); assert len(pend) <= 15

hdr = open("/code/" + NAME + ".s.ref").read().split("\n")
for l in hdr:
    if l.startswith("; Override"): break
    out.append(l)
LEAK = opt("leak", "")
if LEAK:
    out.append(f"; @launch kernel={KN} grid=(256,1,1) block=(512,1,1) lds={K2_LDS}")
    out.append("; @launch kernel=spin_kernel grid=(1,1,1) block=(64,1,1) lds=0")
else: out.append(f"; @launch grid=(256,1,1) block=(512,1,1) lds={K2_LDS}")
emit('.amdgcn_target "amdgcn-amd-amdhsa--gfx950"\n.text')
k2()
KL = [(KN, 256, 102)]
if LEAK:
    kind, k = LEAK[:3], int(LEAK[3:])
    emit(".globl spin_kernel\n.p2align 8\n.type spin_kernel,@function\nspin_kernel:")
    I("s_memrealtime s[12:13]")
    I("s_cmp_lg_u32 s2, 0")
    I("s_cbranch_scc1 SP_END")
    I("s_load_dwordx2 s[4:5], s[0:1], 88")
    I("s_waitcnt lgkmcnt(0)")
    I(f"s_add_u32 s4, s4, {WS_TS + 0x100000}")
    I("s_addc_u32 s5, s5, 0")
    I("v_lshlrev_b32 v1, 5, v0")
    for j in range(31):
        I(f"global_load_dword v{2+j}, v1, s[4:5]")
        I(f"global_load_dword v{34+j}, v1, s[4:5] offset:{4*(k%8)}")
        I("v_add_u32 v1, 2048, v1")
    I("s_waitcnt vmcnt(0)")
    I("v_readfirstlane_b32 s6, v2")
    I("s_nop 1")
    I("s_sub_u32 s6, s6, 1000")
    for j in range(31):
        I(f"v_subrev_u32 v{2+j}, s6, v{2+j}")
        I(f"v_subrev_u32 v{34+j}, s6, v{34+j}")
    if kind == "cnt":
        for j in range(31):
            I(f"v_cmp_lt_u32 vcc, {1000 + opt('thr', 550)}, v{34+j}")
            I("s_nop 1")
            I(f"v_cndmask_b32 v{34+j}, 0, 1, vcc")
            I(f"v_mov_b32 v{2+j}, 0")
    op = {"max": "max_u32", "min": "min_u32", "avg": "add_u32", "now": "max_u32", "cnt": "add_u32"}[kind]
    for j in range(1, 31):
        I(f"v_min_u32 v2, v2, v{2+j}")
        I(f"v_{op} v34, v34, v{34+j}")
    I("s_nop 1")
    I("v_readlane_b32 s8, v2, 0")
    I("v_readlane_b32 s9, v34, 0")
    for l in range(1, 64):
        I(f"v_readlane_b32 s10, v2, {l}")
        I(f"v_readlane_b32 s11, v34, {l}")
        I("s_min_u32 s8, s8, s10")
        I(f"s_{op} s9, s9, s11")
    if kind == "avg":
        I(f"s_mul_hi_u32 s9, s9, {(1 << 32) // (31*64)}")
    if kind == "now":
        I("s_sub_u32 s8, s12, s6")
        I("s_sub_u32 s6, s8, s9")
    else: I("s_sub_u32 s6, s9, s8")
    I("s_lshl_b32 s6, s6, 2")
    I("s_min_u32 s6, s6, 30000")
    I("s_memrealtime s[8:9]")
    I("s_waitcnt lgkmcnt(0)")
    L("SP_L")
    I("s_memrealtime s[10:11]")
    I("s_waitcnt lgkmcnt(0)")
    I("s_sub_u32 s7, s10, s8")
    I("s_cmp_lt_u32 s7, s6")
    I("s_cbranch_scc1 SP_L")
    L("SP_END")
    I("s_endpgm")
    KL.append(("spin_kernel", 72, 16))
emit('.section .rodata,"a"')
for name, vg, sg in KL:
    emit(f""".p2align 6
.amdhsa_kernel {name}
  .amdhsa_next_free_vgpr {vg}
  .amdhsa_next_free_sgpr {sg}
  .amdhsa_accum_offset {vg}
  .amdhsa_group_segment_fixed_size 0
  .amdhsa_kernarg_size 96
  .amdhsa_user_sgpr_count 2
  .amdhsa_user_sgpr_kernarg_segment_ptr 1
  .amdhsa_system_sgpr_workgroup_id_x 1
.end_amdhsa_kernel""")
path = sys.argv[1] if len(sys.argv) > 1 else "/code/" + NAME + ".s"
open(path, "w").write("\n".join(out) + "\n")
print("wrote", path, len(out), "lines; lds", K2_LDS)
```

```python
import sys, re, math

NAME = "standalone__edge_featured_mpnn_gatedgcn__graph"
OPT = dict(kv.split("=") for kv in sys.argv[2:])
def opt(k, d):
    v = OPT.get(k)
    if v is None: return d
    return type(d)(v)

N, E = 50000, 800000
NCH, CH = 256, 3125
NB, BN = 256, 196
CELLB = 128
RS = 257 * CELLB
WS_EXT = NB * RS
QCAP = 48
KQ = 87382
LROW = 4 * (QCAP + 4)
WS_RECS = 0x1100000
WS_XB = 0x1500000
WS_HDR = 0x1600000
WS_EPOCH = 0x1700000
WS_USED = WS_EPOCH + 128
WI_U, WI_B, WI_V, WI_A, WI_C = 0, 8192, 16384, 24576, 32768
TMASK = 0x00f0f0f0
T0 = opt("t0", 12500)
LPH = (N - T0 + 2) // 3
SOFF = LPH - T0
PHM = (1 << 30) // LPH
assert 0 <= SOFF and N + SOFF <= 65536 and ((N - 1 + SOFF) * PHM) >> 30 <= 3
LOG2E = 1.4426950408889634
import struct
def f2u(f): return struct.unpack("<I", struct.pack("<f", f))[0]

out = []
def emit(s=""):
    for l in s.strip("\n").split("\n"):
        out.append(l.rstrip())
def I(s): out.append("    " + s)
def L(s): out.append(s + ":")
def C(s): out.append("    ; " + s)

def srd(d, lo, hi, size, add=None):
    if add is None:
        I(f"s_mov_b32 s{d}, s{lo}")
        I(f"s_mov_b32 s{d+1}, s{hi}")
    else:
        I(f"s_add_u32 s{d}, s{lo}, {add}")
        I(f"s_addc_u32 s{d+1}, s{hi}, 0")
    I(f"s_mov_b32 s{d+2}, {size}")
    I(f"s_mov_b32 s{d+3}, 0x20000")

def wave_scan(v, fill=None, half=False):
    def gap():
        if fill and len(fill) >= 2:
            I(fill.pop(0)); I(fill.pop(0))
        else: I("s_nop 1")
    for sh in (1, 2, 4, 8):
        gap()
        I(f"v_add_u32_dpp v{v}, v{v}, v{v} row_shr:{sh} row_mask:0xf bank_mask:0xf bound_ctrl:0")
    gap()
    I(f"v_add_u32_dpp v{v}, v{v}, v{v} row_bcast:15 row_mask:0xa bank_mask:0xf")
    if half: return
    gap()
    I(f"v_add_u32_dpp v{v}, v{v}, v{v} row_bcast:31 row_mask:0xc bank_mask:0xf")

TS = opt("ts", 0)
WS_TS = 0x3000000
SMAP = {1: {0: 0, 'd': 1, 'i': 2, 'w': 3, 2: 4, 5: 5, 6: 6, 7: 7},
        5: {0: 0, 'w': 1, 2: 2, 'a': 3, 'b': 4, 'c': 5, 3: 6, 7: 7},
        6: {0: 0, 'p': 1, 'q': 2, 'd': 3, 'i': 4, 'o': 5, 'k': 6, 7: 7},
        8: {0: 0, 'i': 1, 'w': 2, 1: 3, 2: 4, 3: 5, 7: 7},
        10: {0: 0, 'd': 1, 'i': 2, 'o': 3, 'A': 4, 'w': 5, 2: 6, 7: 7},
        12: {0: 0, 'T': 1, 6: 2, 'e1': 3, 'e2': 4, 'e3': 5, 'e4': 6, 7: 7},
        11: {0: 0, 2: 1, 'b': 2, 'c': 3, 3: 4, 5: 5, 'L': 6, 7: 7},
        9: {0: 0, 'q': 1, 'd': 2, 'i': 3, 'w': 4, 2: 5, 3: 6, 7: 7},
        7: {0: 0, 'k': 1, 'w': 2, 1: 3, 's': 4, 2: 5, 3: 6, 7: 7}}
def stamp(i):
    if TS in SMAP:
        i = SMAP[TS].get(i)
        if i is None: return
    elif isinstance(i, str): return
    if TS == 3:
        if i not in (0, 5, 6, 7): return
        I("s_memtime s[98:99]")
        I("s_waitcnt lgkmcnt(0)")
        I(f"s_mov_b32 s{88+{5:1,6:2,0:3,7:4}[i]}, s98")
    if TS:
        I("s_memrealtime s[98:99]" if TS != 2 else "s_memtime s[98:99]")
        I("s_waitcnt lgkmcnt(0)")
        I(f"s_mov_b32 s{88+i}, s98")
def stamp_out(n, wslo, swave, nw, off, v):
    if not TS: return
    I("s_waitcnt vmcnt(0)")
    stamp(7)
    I("s_mov_b64 exec, 1")
    I(f"s_mul_i32 s87, s2, {nw}")
    I(f"s_add_u32 s87, s87, s{swave}")
    I("s_lshl_b32 s87, s87, 5")
    I(f"s_add_u32 s87, s87, {WS_TS + off}")
    I(f"v_mov_b32 v{v}, s87")
    for i in range(n):
        I(f"v_mov_b32 v{v+1}, s{88+i}")
        I(f"global_store_dword v{v}, v{v+1}, s[{wslo}:{wslo+1}] offset:{4*i}")
K1_LD = opt("k1ld", "nt")
def pol(p): return (" " + p.replace("_", " ")) if p else ""

SM1 = opt("sm1", 1)
TAB, ZROW, CNT, FLAG, HIST, MAP = 0, 2048, 2112, 2176, 2304, 6400
T1B = 7424
LCAP = 672
XMAX = 64
LMAX = LCAP - 128
R0 = T1B + 2304
R1 = R0 + 8 * LCAP * 4
assert R1 % 256 == 0 and R0 % 256 == 0
WL = R0
WU = R1 + 8 * LCAP * 4
WA = WU + 8192
XO = WA + 8192
STG = XO + 8 * 4160
SLOT = 5184
WST = SLOT
IMG = 91136
assert IMG >= XO and STG + 8 * WST <= IMG + 320 * LROW
K2_LDS = IMG + 320 * LROW
assert K2_LDS <= 163840, K2_LDS

vWB, vWV, vWC, vAT = 0, 32, 64, 72
vACC = 88
vX, vE, vT1, vT2 = 152, 168, 172, 180
vP, vQ, vR = 188, 204, 220
vQD = 236
vR1 = 240
vCP, vCH, vAX, vAE, vC1, vC2, vARX, vART, vARP = 241, 242, 243, 244, 245, 246, 247, 248, 249
vL1 = 250
vARE = 251
vT = 252
DEN = lambda ft: vACC + 32 * ft
NUM = lambda ft: vACC + 32 * ft + 16
def rr(a, n): return f"v[{a}:{a+n-1}]"
def mfma(d, a, b, c=None):
    return f"v_mfma_f32_32x32x16_bf16 {rr(d,16)}, {rr(a,4)}, {rr(b,4)}, " + ("0" if c is None else rr(c, 16))

K2_XP = opt("k2x", "")
K2_EP = opt("k2e", "")
K2_CP = opt("k2c", "")
K2_OP = opt("k2o", "sc1")

sW, sB = 3, 12
sX, sEP, sWS, sOUT = 16, 20, 24, 28
sCEL, sWI = 32, 36
sM = 40
sT, sN, sSTG, s128, sL, sSKIP, sMORE = 72, 73, 74, 75, 76, 77, 78
sCI, sCUR, sR0, sCNT, sST, sMSK = 79, 80, 81, 82, 83, 84
sTMP = 86
sWIN = 96

NT0 = opt('nt0', 0)
def dma_tile(par, t=None, uid=None):
    r = []
    for i in range(4):
        r.append(f"s_add_u32 m0, s{sSTG}, {par*SLOT + i*1040}")
        r.append(f"v_mad_u32_u16 v{vQD+i}, v{vQD+i}, s{s128}, v{vCP} op_sel:[1,0,0,0]")
        r.append(f"buffer_load_dwordx4 v{vQD+i}, s[{sX}:{sX+3}], 0 offen{pol(K2_XP)} lds")
    r.append(f"s_add_u32 m0, s{sSTG}, {par*SLOT + 4160}")
    r.append(f"v_add_u32 v{vR1}, v{vR1}, v{vCH}")
    NTA = opt("nta", 0)
    if NTA:
        r += [f"v_cmp_gt_u32 vcc, {E * 32 * NTA // 100 // 128 * 128}, v{vR1}", "s_mov_b64 exec, vcc",
              f"buffer_load_dwordx4 v{vR1}, s[{sEP}:{sEP+3}], 0 offen lds", "s_not_b64 exec, vcc",
              f"buffer_load_dwordx4 v{vR1}, s[{sEP}:{sEP+3}], 0 offen nt lds", "s_mov_b64 exec, -1"]
    elif t is not None or NT0 <= 2:
        r.append(f"buffer_load_dwordx4 v{vR1}, s[{sEP}:{sEP+3}], 0 offen{pol('nt' if t is not None and t < NT0 else K2_EP)} lds")
    else:
        r += [f"s_cmp_lt_u32 s{sT}, {NT0 - 1}", f"s_cbranch_scc1 K2_NT{uid}",
              f"buffer_load_dwordx4 v{vR1}, s[{sEP}:{sEP+3}], 0 offen{pol(K2_EP)} lds"]
    return r

def valu_stream(G, H, n=16):
    s = []
    ex = [(f"v_exp_f32 v{G+i}, v{G+i}", 8) for i in range(n)]
    ad = [(f"v_add_f32 v{G+i}, 1.0, v{G+i}", 4) for i in range(n)]
    rc = [(f"v_rcp_f32 v{G+i}, v{G+i}", 8) for i in range(n)]
    mu = [(f"v_mul_f32 v{H+i}, v{G+i}, v{H+i}", 4) for i in range(n)]
    for i in range(n + 4):
        if i < n: s.append(ex[i])
        if 0 <= i - 2 < n: s.append(ad[i-2])
        if 0 <= i - 4 < n: s.append(rc[i-4])
    return s + mu

def interleave(valu, mf, extra, pos, spacing=opt('sp', 28)):
    res = []
    cum = 0; k = 0
    for ins, c in valu:
        while k < len(mf) and cum >= pos[k] * spacing:
            res.extend(extra.get(('b', k), []))
            res.append(mf[k])
            res.extend(extra.get(('a', k), []))
            k += 1
        res.append(ins); cum += c
    assert k == len(mf)
    return res

def g_mfmas(D, ft):
    m = [mfma(D, vE, vWC + 4*ft)]
    if SM1:
        m += [mfma(D, vX + 4*q, vWB + 16*ft + 4*q, D) for q in range(4)]
        m += [f"v_smfmac_f32_32x32x32_bf16 {rr(D,16)}, {rr(vT1,4)}, {rr(vAT+8*ft,8)}, v{vT1+4}"]
        return m
    m += [mfma(D, vT1 + 4*s, vAT + 8*ft + 4*s, D) for s in range(2)]
    m += [mfma(D, vX + 4*q, vWB + 16*ft + 4*q, D) for q in range(4)]
    return m
def h_mfmas(D, ft):
    return [mfma(D, vX + 4*q, vWV + 16*ft + 4*q, None if q == 0 else D) for q in range(4)]
vIX = vT1 + 5
def s_mfmas(acc, src):
    return [f"v_smfmac_f32_32x32x32_bf16 {rr(acc,16)}, {rr(vT2+4*s,4)}, {rr(src+8*s,8)}, v{vIX}" for s in range(2)]
def t1_reads():
    return [f"ds_read_b128 {rr(vT1,4)}, v{vL1} offset:{T1B}", f"ds_read_b32 v{vT1+4}, v{vL1} offset:{T1B+16}"]

ORD = opt("ord", "n0 n1 e h0 h1 a h2 h3 x0 x1 x2 x3 d0 d1").replace("_", " ").split()
POS = [float(x) / 28 for x in opt("pos", "0_27_54_81_108_135_162_189_216_243_270_297_328_356").split("_")]
def phase_ops(G, Gn, ft):
    n = s_mfmas(NUM(1-ft), vQ); d = s_mfmas(DEN(ft), G); h = h_mfmas(vQ, ft); g = g_mfmas(Gn, 1-ft)
    m = {"n0": n[0], "n1": n[1], "d0": d[0], "d1": d[1], "e": g[0], "a": g[5]}
    for q in range(4): m[f"h{q}"] = h[q]; m[f"x{q}"] = g[1+q]
    return [m[k] for k in ORD]
K = lambda k: ORD.index(k)
def phaseA(par):
    o = par * 128
    ex = {}
    ex[('a', K("n0"))] = [f"ds_read_u8 v{vQD+u}, v{vART} offset:{o + 64*(u>>1) + 16*(u&1)}" for u in range(4)] + \
                         [f"ds_read_u8 v{vL1}, v{vARP} offset:{o + 128}"]
    ex[('a', K("h1"))] = ["s_waitcnt lgkmcnt(0)"] + [f"v_lshl_add_u32 v{vQD+u}, v{vQD+u}, 6, v{vC2}" for u in range(4)] + \
                         [f"v_lshl_add_u32 v{vL1}, v{vL1}, 6, v{vC1}"]
    ex[('a', K("a"))] = [f"ds_read_b64_tr_b16 v[{vT2+2*u}:{vT2+2*u+1}], v{vQD+u}" for u in range(4)] + t1_reads()
    ex[('a', K("x0"))] = [f"ds_read_b128 {rr(vQD,4)}, v{vARX} offset:{o + 2*128}",
                          f"ds_read_b32 v{vR1}, v{vARE} offset:{o + 2*128}",
                          f"s_add_u32 s{sT}, s{sT}, 1"]
    ex[('b', K("d0"))] = ["s_waitcnt lgkmcnt(0)"]
    return interleave(valu_stream(vP, vQ), phase_ops(vP, vR, 0), ex, POS)

def phaseB(par):
    ex = {}
    ex[('a', K("n0"))] = ["s_waitcnt vmcnt(0)", f"ds_read_b128 {rr(vE,4)}, v{vAE}"]
    if TS == 4:
        ex[('a', K("n0"))] = ["s_memtime s[94:95]", "s_waitcnt vmcnt(0) lgkmcnt(0)", "s_memtime s[98:99]", "s_waitcnt lgkmcnt(0)", "s_sub_u32 s98, s98, s94",
                              "s_add_u32 m0, s72, 15", "s_nop 0", "v_writelane_b32 v255, s98, m0", f"ds_read_b128 {rr(vE,4)}, v{vAE}"]
    for q in range(4):
        ex[('a', K(f"h{q}"))] = [f"ds_read_b128 {rr(vX+4*q,4)}, v{vAX} offset:{16*q}"]
    ex[('b', K("e"))] = [f"s_waitcnt lgkmcnt({sum(K(f'h{q}') < K('e') for q in range(4))})"]
    for q in range(4): ex[('b', K(f"x{q}"))] = [f"s_waitcnt lgkmcnt({sum(K(f'h{p}') < K(f'x{q}') for p in range(q+1, 4))})"]
    dk = opt("dk", "x3")
    ex[('a', K(dk))] = ([] if dk == "x3" or K(dk) > K("x3") else ["s_waitcnt lgkmcnt(0)"]) + \
                       [f"s_cmp_lt_i32 s{sT}, s{sN1}", f"s_cbranch_scc0 K2_ND_{par}"] + dma_tile(0, None, par) + [f"K2_ND_{par}:"]
    return interleave(valu_stream(vR, vQ), phase_ops(vR, vP, 1), ex, POS)

def fixnops(seq):
    res = []; last = {}; pos = 0
    for ins in seq:
        k, d, s_, c = parse(ins)
        need = 0
        for r in s_ + c + d:
            if r not in last: continue
            pk, pi, pop = last[r]
            if pk == "mfma":
                if k == "mfma" and r not in s_: w = 0 if pop == ins.split()[0] or r not in c else 10
                else: w = 12
            elif pk in ("valu", "trans") and k == "mfma" and r in s_ + c: w = 2
            elif pk == "trans" and k != "trans" and r in s_: w = 1
            else: w = 0
            need = max(need, w - (pos - pi - 1))
        if need > 0:
            res.append(f"s_nop {need - 1}"); pos += need
        for r in d: last[r] = (k, pos, ins.split()[0])
        res.append(ins); pos += 1
    return res
LANE = 254
eL, eI, eW, eR = vT, vARX, vARP, vARE
sER = sERT = 70
def epi_addr():
    return [f"v_lshlrev_b32 v{eL}, 4, v{LANE}", f"v_and_b32 v{eI}, 31, v{LANE}", f"v_and_b32 v{vC1}, 32, v{LANE}",
            f"v_mul_u32_u24 v{eW}, 144, v{eI}", f"v_lshrrev_b32 v{eR}, 2, v{vC1}", f"v_lshl_add_u32 v{eI}, v{eI}, 6, v{eR}",
            f"v_lshl_add_u32 v{eW}, v{vC1}, 1, v{eW}", f"v_add_u32 v{eW}, s{sSTG}, v{eW}",
            f"v_lshrrev_b32 v{eR}, 3, v{LANE}", f"v_lshl_add_u32 v{eR}, v{eR}, 4, v{eL}", f"v_add_u32 v{eR}, s{sER}, v{eR}"]
def epi_id(): return [f"ds_read2_b64 {rr(vWC+4*s_,4)}, v{eI} offset0:{4*s_} offset1:{4*s_+2}" for s_ in range(2)]
def epi_wu(): return [f"ds_read_b128 {rr(vWB+4*k,4)}, v{eL} offset:{WU + 1024*k}" for k in range(8)]
def epi_x(q): return f"ds_read_b128 {rr(vX+4*q,4)}, v{vOWN} offset:{16*q}"
def last_tile(ng):
    n = 4 * ng
    keep = lambda ks: [k for k in ks if ng > 2 or k not in ("N1", "d1")]
    ops = dict(zip(ORD, phase_ops(vP, vR, 0)))
    oa = keep(ORD)
    ex = {}
    ex[('a', 0)] = [f"ds_read_u8 v{vQD+u}, v{vART} offset:{64*(u>>1) + 16*(u&1)}" for u in range(4)]
    ex[('a', oa.index("h1"))] = ["s_waitcnt lgkmcnt(0)"] + [f"v_lshl_add_u32 v{vQD+u}, v{vQD+u}, 6, v{vC2}" for u in range(4)]
    ex[('a', oa.index("a"))] = [f"ds_read_b64_tr_b16 v[{vT2+2*u}:{vT2+2*u+1}], v{vQD+u}" for u in range(4)]
    ex[('a', 1)] = epi_addr()
    ex[('a', oa.index("x3"))] = epi_id() + epi_wu()
    ex[('b', oa.index("d0"))] = ["s_waitcnt lgkmcnt(10)"]
    pa = [POS[ORD.index(k)] * ng / 4 * (1 if k[0] != "d" or ng > 2 else 1.04) for k in oa]
    a = interleave(valu_stream(vP, vQ, n), [ops[k] for k in oa], ex, pa)
    ops = dict(zip(ORD, phase_ops(vR, vP, 1)))
    ob = ["n0"] + (["n1"] if ng > 2 else []) + ["h0", "h1", "h2", "h3", "d0"] + (["d1"] if ng > 2 else [])
    pb = [x * ng / 4 / 28 for x in ([0, 36, 72, 108, 144, 180, 328, 356] if ng > 2 else [0, 40, 80, 120, 160, 340])]
    ex = {('a', ob.index(f"h{q}")): [epi_x(q)] for q in range(4)}
    b = interleave(valu_stream(vR, vQ, n), [ops[k] for k in ob], ex, pb)
    return fixnops(a + b + s_mfmas(NUM(1), vQ)[:2 if ng > 2 else 1])

sF0, sF1, sEND = 13, 14, 15
sXT = 97
sN1 = 38
sSB = 37
SBK = opt('sbk', 2)
sNUL = 39
sTH = 4
PRIO = opt("prio", 1)

def listaddr(lane, t0, t3):
    I(f"v_lshrrev_b32 v{t0}, 3, v{lane}")
    I(f"v_lshl_add_u32 v{vARX}, v{t0}, 4, s{sL}")
    I(f"v_and_b32 v{t0}, 31, v{lane}")
    I(f"v_lshl_add_u32 v{vARP}, v{t0}, 2, s{sL}")
    I(f"v_lshrrev_b32 v{t3}, 1, v{lane}")
    I(f"v_lshl_add_u32 v{vARE}, v{t3}, 2, s{sL}")
    I(f"v_add_u32 v{vARE}, {R1-R0}, v{vARE}")
    I(f"v_and_b32 v{t0}, 44, v{lane}")
    I(f"v_add_u32 v{vART}, s{sL}, v{t0}")

vOWN = vT + 1
def pads(lane, t0, t1, t2):
    W2 = f"offset0:0 offset1:{(R1-R0)//256}"
    I(f"v_mov_b32 v{t2}, 0xffff0000")
    I(f"v_or_b32 v{t1}, s{sNUL}, v{t2}")
    I(f"v_mov_b32 v{t2}, 0x7fffff00")
    I(f"v_lshl_add_u32 v{t0}, v{lane}, 2, s{sEND}")
    I(f"s_sub_u32 s{sN}, s{sEND}, s{sL}")
    I(f"ds_write2st64_b32 v{t0}, v{t1}, v{t2} {W2}")
    I(f"ds_write2st64_b32 v{t0}, v{t1}, v{t2} offset0:1 offset1:{(R1-R0)//256 + 1}")
    ntiles(False)
def ntiles(sub=True):
    if sub: I(f"s_sub_u32 s{sN}, s{sEND}, s{sL}")
    I(f"s_add_u32 s{sN}, s{sN}, 127")
    I(f"s_lshr_b32 s{sN}, s{sN}, 7")
    I(f"s_sub_i32 s{sN1}, s{sN}, 1")

KN = NAME + "_kernel"
P_HIST, P_HDR = MAP, WU
H0 = 2000
P_EIMG = IMG
P_CIMG = P_EIMG + 64 * LROW
assert P_CIMG + 256 * LROW <= K2_LDS
sTAG, sEPN, sSPIN = 36, 100, 101
def k2():
    emit(f"""
.globl {KN}
.p2align 8
.type {KN},@function
{KN}:""")
    I("s_cmp_ge_u32 s2, 256")
    I("s_cbranch_scc1 K2_END")
    stamp(0)
    KA = sM
    I(f"s_load_dwordx4 s[{KA+4}:{KA+7}], s[0:1], 16")
    I(f"s_load_dwordx2 s[8:9], s[0:1], 88")
    I(f"s_load_dwordx4 s[{KA}:{KA+3}], s[0:1], 0")
    I(f"s_load_dwordx8 s[{KA+8}:{KA+15}], s[0:1], 32")
    I(f"s_load_dwordx4 s[{KA+16}:{KA+19}], s[0:1], 64")
    tid, lane = 255, 254
    CPF = opt("cpf", 192)
    if CPF:
        I(f"s_getpc_b64 s[{sTMP}:{sTMP+1}]")
        L("K2_PC")
        I(f"v_lshlrev_b32 v{vT}, 7, v0")
        I(f"v_min_u32 v{vT}, K2_LAST-K2_PC, v{vT}")
        I(f"v_cmp_gt_u32 vcc, {CPF}, v0")
        I("s_cbranch_vccz K2_NOCPF")
        I(f"global_load_dword v{vT+1}, v{vT}, s[{sTMP}:{sTMP+1}]")
        L("K2_NOCPF")
    vC = vACC
    vA = vACC + 16
    hh = vACC + 28
    vRK = vR
    vMIN = vQ + 8
    vTM = vQ + 10
    u = lambda i: vP + i
    k4, ecb, hda, one, l16 = vE, vE + 1, vE + 2, vE + 3, vT1
    pD, pS, pH, pK, pA, pB, pI, pW = 8, 16, 24, 32, 40, 48, 56, 64
    I(f"v_mov_b32 v{tid}, v0")
    I(f"v_lshrrev_b32 v{u(0)}, 6, v0")
    I(f"v_and_b32 v{lane}, 63, v0")
    I(f"v_readfirstlane_b32 s7, v{u(0)}")
    I("s_and_b32 s10, s2, 7")
    I("s_lshr_b32 s11, s2, 3")
    I("s_lshl_b32 s10, s10, 5")
    I(f"s_add_u32 s{sB}, s10, s11")
    I(f"s_mul_i32 s13, s{sB}, {CH*4}")
    I(f"v_lshlrev_b32 v{u(1)}, 4, v0")
    I(f"v_lshlrev_b32 v1, 3, v0")
    I(f"v_lshlrev_b32 v2, 2, v0")
    I(f"v_mov_b32 v3, 0")
    I(f"v_and_b32 v4, 0x3fc, v2")
    I(f"ds_write_b32 v4, v3 offset:{P_HIST}")
    ASYM = opt("asym", 10)
    I(f"s_and_b32 s10, s7, 3")
    I(f"s_lshr_b32 s{sW}, s7, 2")
    I(f"s_lshl1_add_u32 s{sW}, s10, s{sW}")
    I(f"s_xor_b32 s{sW}, s{sW}, 1")
    I(f"s_movk_i32 s14, 8192")
    I(f"s_movk_i32 s15, 12288")
    I("s_waitcnt lgkmcnt(0)")
    stamp('p')
    WSB = opt("wsb", 0) << 20
    if WSB:
        I(f"s_add_u32 s8, s8, {WSB}")
        I("s_addc_u32 s9, s9, 0")
    vq = []
    def younger(tag): return len(vq) - 1 - max(i for i, t in enumerate(vq) if t == tag)
    q0, q1 = 64, 68
    srd(q0, KA+6, KA+7, CH*4, "s13")
    srd(q1, KA+4, KA+5, CH*4, "s13")
    for r_, q_ in ((pD, q0), (pS, q1)):
        I(f"buffer_load_dwordx4 {rr(r_,4)}, v{u(1)}, s[{q_}:{q_+3}], 0 offen{pol(K1_LD)}")
        I(f"buffer_load_dwordx2 {rr(r_+4,2)}, v1, s[{q_}:{q_+3}], s14 offen{pol(K1_LD)}")
        I(f"buffer_load_dword v{r_+6}, v2, s[{q_}:{q_+3}], s15 offen{pol(K1_LD)}")
        vq += ["D" if r_ == pD else "S"] * 3
        if r_ == pD and opt("db", 1): I("s_barrier")
    I(f"s_add_u32 s10, s8, {WS_EPOCH}")
    I("s_addc_u32 s11, s9, 0")
    I(f"s_load_dword s{sEPN}, s[10:11], 0")
    if not opt("db", 1): I("s_barrier")
    I(f"v_lshrrev_b32 v1, 3, v0")
    I(f"v_lshlrev_b32 v{hda}, 2, v1")
    I(f"v_and_b32 v{u(9)}, 7, v0")
    I(f"v_and_b32 v5, 16, v0")
    I(f"v_lshlrev_b32 v5, 1, v5")
    I(f"v_xor_b32 v5, v5, v{u(1)}")
    I(f"v_lshlrev_b32 v{l16}, 4, v{lane}")
    I(f"v_and_b32 v{vCP}, 16, v{lane}")
    I(f"v_lshlrev_b32 v{vCP}, 2, v{vCP}")
    vXS, vXA = vR + 14, vR + 15
    I(f"v_xor_b32 v{vXS}, v{vCP}, v{l16}")
    I(f"v_and_b32 v{vCP}, 0x70, v{vXS}")
    if SOFF: I(f"v_subrev_u32 v{vCP}, {SOFF * 128}, v{vCP}")
    srd(sX, KA, KA+1, N*128)
    OFF = opt("off", 20)
    def xshared():
        I(f"s_lshr_b32 s10, s{sW}, 1")
        I(f"s_mul_i32 s11, s10, 4160")
        I(f"s_mul_i32 s10, s10, 49")
        I(f"s_mul_i32 s4, s{sB}, {BN}")
        I(f"s_add_u32 s10, s10, s4")
        I(f"s_add_u32 s10, s10, {OFF}")
        I(f"s_lshl_b32 s10, s10, 7")
        I(f"s_bitcmp1_b32 s{sW}, 0")
        I(f"s_cselect_b32 s4, 0, 2048")
        I(f"s_cselect_b32 s6, 0, 2080")
        I(f"s_add_u32 s10, s10, s4")
        I(f"s_add_u32 s11, s11, s6")
        for i in range(2):
            I(f"s_add_u32 m0, s11, {XO + i*1040}")
            I(f"s_add_u32 s4, s10, {i*1024}")
            I(f"buffer_load_dwordx4 v{vXS}, s[{sX}:{sX+3}], s4 offen{pol(opt('xo', ''))} lds"); vq.append("X")
    XE = opt("xe", 0)
    if XE == 1: xshared()
    mark = len(out)
    OFF = opt("off", 20)
    lo0, hi0, lo1, hi1 = sT, sN, sMSK, sMSK + 1
    I(f"s_lshr_b32 s10, s{sW}, 1")
    I(f"s_mul_i32 s10, s10, 49")
    I(f"s_bitcmp1_b32 s{sW}, 0")
    I(f"s_cselect_b32 s{lo0}, {OFF}, -4")
    I(f"s_cselect_b32 s{hi0}, 28, {OFF - 17}")
    I(f"s_cselect_b32 s{lo1}, 45, {OFF}")
    I(f"s_add_i32 s{lo0}, s{lo0}, s10")
    I(f"s_add_i32 s{hi0}, s{hi0}, s10")
    I(f"s_add_i32 s{lo1}, s{lo1}, s10")
    I(f"s_add_i32 s{hi1}, s{lo0}, 32")
    I(f"s_max_i32 s{sWIN}, s{lo0}, 0")
    I(f"s_cmp_eq_u32 s{sW}, 7")
    I(f"s_cselect_b32 s{lo1}, {BN}, s{lo1}")
    I(f"s_cselect_b32 s{hi1}, {BN}, s{hi1}")
    I(f"v_lshrrev_b32 v{u(5)}, 5, v{lane}")
    def wloads():
        srd(q0, KA+10, KA+11, 8192)
        I(f"buffer_load_dwordx4 {rr(pW,4)}, v5, s[{q0}:{q0+3}], 0 offen"); vq.append("B")
        srd(q1, KA+12, KA+13, 2048)
        I(f"buffer_load_dwordx4 {rr(pW+4,4)}, v5, s[{q1}:{q1+3}], 0 offen"); vq.append("B")
        I(f"s_lshl_b32 s10, s7, 10")
        for kp, off in ((KA+8, WI_A), (KA+16, WI_V), (KA+14, WI_U)):
            I(f"s_mov_b32 s{q0}, s{kp}")
            I(f"s_mov_b32 s{q0+1}, s{kp+1}")
            I(f"s_add_u32 m0, s10, {WL + off}")
            I("s_nop 0")
            I(f"buffer_load_dwordx4 v5, s[{q0}:{q0+3}], 0 offen lds"); vq.append("W")
    def xloads():
        I(f"s_mul_i32 s10, s{sB}, {BN}")
        I(f"s_add_u32 s10, s10, s{sWIN}")
        I(f"s_lshl_b32 s10, s10, 7")
        I(f"s_mul_i32 s11, s7, 4160")
        for i in range(4):
            I(f"s_add_u32 m0, s11, {XO + i*1040}")
            I(f"s_add_u32 s{sTMP}, s10, {i*1024}")
            I(f"buffer_load_dwordx4 v{vXS}, s[{sX}:{sX+3}], s{sTMP} offen{pol(opt('xo', ''))} lds")
    srd(sEP, KA+2, KA+3, E*32)
    srd(sOUT, KA+18, KA+19, N*128)
    srd(sWS, 8, 9, WS_USED)
    I(f"v_lshrrev_b32 v{u(6)}, 5, v{tid}")
    I(f"v_and_b32 v{u(7)}, 15, v{tid}")
    I(f"v_cmp_eq_u32 vcc, v{u(6)}, v{u(7)}")
    I(f"v_and_b32 v{u(6)}, 16, v{tid}")
    I(f"v_mov_b32 v{u(7)}, 0x3f80")
    I(f"v_lshlrev_b32 v{u(7)}, v{u(6)}, v{u(7)}")
    I(f"v_cndmask_b32 v{u(7)}, 0, v{u(7)}, vcc")
    I(f"v_lshlrev_b32 v{u(6)}, 2, v{tid}")
    I(f"v_mov_b32 v{u(8)}, 0")
    I(f"ds_write_b32 v{u(6)}, v{u(7)}")
    if SM1:
        I(f"v_bfe_u32 v{u(7)}, v{tid}, 3, 1")
        I(f"v_and_b32 v{u(13)}, 7, v{tid}")
        I(f"v_lshl_add_u32 v{u(7)}, v{u(7)}, 2, v{u(13)}")
        I(f"v_lshrrev_b32 v{u(12)}, 6, v{tid}")
        I(f"v_cmp_eq_u32 vcc, v{u(7)}, v{u(12)}")
        I(f"v_bfe_u32 v{u(12)}, v{tid}, 4, 2")
        I(f"v_mov_b32 v{u(7)}, 0x3f80")
        I(f"v_cndmask_b32 v{u(7)}, 0, v{u(7)}, vcc")
        I(f"v_cmp_lt_u32 vcc, 3, v{u(13)}")
        I(f"v_mul_u32_u24 v{u(12)}, 0x5555, v{u(12)}")
        I(f"v_and_b32 v{u(13)}, 60, v{u(6)}")
        I(f"v_cndmask_b32 v{u(7)}, v{u(7)}, v{u(12)}, vcc")
        I(f"ds_write_b32 v{u(6)}, v{u(7)} offset:{T1B}")
        I(f"ds_write_b32 v{u(13)}, v{u(8)} offset:{T1B + 2048}")
    I(f"ds_write_b32 v{u(6)}, v{u(8)} offset:{ZROW}")
    I(f"ds_write2st64_b32 v{u(6)}, v{u(8)}, v{u(8)} offset0:{HIST//256} offset1:{HIST//256 + 8}")
    I(f"s_movk_i32 s{s128}, 128")
    I(f"s_mul_i32 s{sSTG}, s{sW}, {WST}")
    I(f"s_add_u32 s{sSTG}, s{sSTG}, {STG}")
    I(f"s_movk_i32 s{sSKIP}, {QCAP}")
    I(f"s_add_u32 s{sNUL}, s{sWIN}, 32")
    I(f"s_lshl_b32 s11, s{sWIN}, 6")
    I(f"s_mov_b32 s{sXT}, 0")
    I(f"v_bfe_u32 v{u(6)}, v{lane}, 4, 1")
    I(f"v_and_b32 v{vCH}, 1, v{lane}")
    I(f"v_lshlrev_b32 v{vCH}, 4, v{vCH}")
    I(f"v_lshlrev_b32 v{vC1}, 5, v{u(5)}")
    I(f"v_subrev_u32 v{vC1}, s11, v{vC1}")
    I(f"v_and_b32 v{u(7)}, 3, v{lane}")
    I(f"v_lshlrev_b32 v{u(7)}, 3, v{u(7)}")
    I(f"v_lshl_add_u32 v{vC2}, v{u(6)}, 5, v{u(7)}")
    I(f"v_subrev_u32 v{vC2}, s11, v{vC2}")
    I(f"v_mul_u32_u24 v{u(8)}, 130, v{u(7)}")
    I(f"v_and_b32 v{u(6)}, 28, v{lane}")
    I(f"v_lshl_add_u32 v{u(8)}, v{u(6)}, 5, v{u(8)}")
    I(f"v_bfe_u32 v{u(6)}, v{lane}, 3, 1")
    I(f"v_xor_b32 v{u(6)}, v{u(6)}, v{u(5)}")
    I(f"v_lshl_add_u32 v{u(8)}, v{u(6)}, 6, v{u(8)}")
    I(f"v_add_u32 v{vAX}, s{sSTG}, v{u(8)}")
    I(f"v_and_b32 v{u(6)}, 31, v{lane}")
    I(f"v_lshl_add_u32 v{u(6)}, v{u(6)}, 1, v{u(5)}")
    I(f"v_lshl_add_u32 v{vAE}, v{u(6)}, 4, s{sSTG}")
    I(f"v_add_u32 v{vAE}, 4160, v{vAE}")
    I(f"s_mul_i32 s{sL}, s{sW}, {LCAP*4}")
    I(f"s_add_u32 s{sL}, s{sL}, {R0}")
    listaddr(lane, u(6), u(7))
    def ownaddr(d, lab, t):
        I(f"v_and_b32 v{d}, 31, v{lab}")
        I(f"v_bfe_u32 v{t}, v{d}, 1, 1")
        I(f"v_xor_b32 v{t}, v{t}, v{u(5)}")
        I(f"v_lshlrev_b32 v{t}, 6, v{t}")
        I(f"v_lshl_add_u32 v{t}, v{d}, 7, v{t}")
        I(f"v_lshrrev_b32 v{d}, 3, v{d}")
        I(f"v_lshl_add_u32 v{d}, v{d}, 4, v{t}")
        I(f"v_add_u32 v{d}, s10, v{d}")
    I(f"s_mul_i32 s10, s7, 4160")
    I(f"s_add_u32 s10, s10, {XO}")
    ownaddr(u(14), lane, u(6))
    I(f"v_lshrrev_b32 v{u(6)}, 1, v{lane}")
    I(f"v_xor_b32 v{u(6)}, v{u(6)}, v{lane}")
    I(f"v_and_b32 v{u(6)}, 4, v{u(6)}")
    I(f"v_mul_u32_u24 v{u(6)}, 3, v{u(6)}")
    I(f"v_xor_b32 v{u(6)}, v{u(6)}, v{lane}")
    ownaddr(vXA, u(6), u(7))
    I(f"v_mov_b32 v{vIX}, 0xdddd")
    I(f"v_lshlrev_b32 v{k4}, 2, v{u(9)}")
    vEB = vQ + 4
    I(f"v_mul_u32_u24 v{vEB}, {CH*8}, v{hda}")
    for i in range(1, 4):
        I(f"v_add_u32 v{vEB+i}, {64*i*CH*32}, v{vEB}")
    I(f"v_mov_b32 v{one}, 4")
    I(f"v_mov_b32 v{ecb}, 1")
    I(f"v_and_b32 v{u(11)}, 31, v{lane}")
    I(f"v_add_u32 v{u(11)}, s{sWIN}, v{u(11)}")
    I(f"v_lshlrev_b32 v{u(12)}, 4, v{u(11)}")
    I(f"v_lshl_add_u32 v{u(12)}, v{u(5)}, 3, v{u(12)}")
    for i in range(4): I(f"v_mov_b64 v[{vT2+2*i}:{vT2+2*i+1}], 0")
    I(f"s_lshl_b32 s{sEND}, s{sW}, 2")
    I(f"v_mov_b32 v{vMIN}, s{sEND}")
    I(f"v_lshlrev_b32 v{vMIN+1}, 2, v{u(11)}")
    static = out[mark:]; del out[mark:]
    WLP = opt("wl", 2)
    if WLP == 0: wloads()
    XP_ = opt("xp", 6)
    SP = opt("sp0", 0)
    SPN = opt("spn", 1000)
    if SP:
        out.extend(static[:SPN]); static = static[SPN:]
    c1, c2, c3 = 60, 61, 62
    pm = 78
    pX = 23
    xb = lambda i: (23, 23, 23, 23, 31, 31, 39)[i]
    I(f"s_mov_b32 s{c1}, 85599")
    I(f"s_mov_b32 s{c2}, {-BN & 0xffffffff}")
    I(f"s_movk_i32 s{c3}, {H0}")
    I(f"v_mov_b32 v7, {KQ}")
    I(f"s_mov_b32 s10, {SOFF << 16}")
    I(f"v_lshl_add_u32 v{pI}, v{lane}, 10, s10")
    for i in range(1, 4): I(f"v_add_u32 v{pI+i}, {i << 8}, v{pI}")
    I(f"v_and_b32 v{pI+4}, 127, v{tid}")
    I(f"v_lshl_add_u32 v{pI+4}, v{pI+4}, 9, s10")
    I(f"v_add_u32 v{pI+5}, 256, v{pI+4}")
    I(f"v_lshl_add_u32 v{pI+6}, v{lane}, 8, s10")
    I(f"v_lshrrev_b32 v23, 6, v{tid}")
    I(f"v_lshrrev_b32 v31, 7, v{tid}")
    I(f"v_add_u32 v31, 8, v31")
    I(f"v_mov_b32 v39, 12")
    I(f"v_cmp_gt_u32 s[{pm}:{pm+1}], {CH - 3072}, v{tid}")
    I(f"s_mov_b32 s11, {RS}")
    I(f"v_lshlrev_b32 v3, 4, v{u(9)}")
    I(f"v_mad_u32_u24 v4, v1, s11, v3")
    I(f"v_mul_u32_u24 v6, {LROW // 4}, v1")
    I(f"v_lshl_add_u32 v6, v{u(9)}, 2, v6")
    I(f"v_lshlrev_b32 v3, 2, v6")
    I(f"v_add_u32 v3, {P_CIMG}, v3")
    I(f"v_add_u32 v6, {P_EIMG}, v6")
    I(f"v_mov_b32 v{vTM}, {TMASK:#x}")
    I(f"v_mov_b32 v15, 0x0f0f0f")
    X0 = (LROW // 16) * H0
    sSO = sCI
    def cload(i):
        so = "0" if i == 0 else f"s{sSO+i-1}"
        I(f"buffer_load_dwordx4 {rr(vC+4*i,4)}, v{u(1)}, s[{sCEL}:{sCEL+3}], {so} offen sc1")
    def cloads():
        if opt("dly", 0): I(f"s_sleep {opt('dly', 0)}")
        stamp('w')
        for i in range(4): cload(i); vq.append("C")
    def prod(idx):
        n = len(idx)
        for i in idx: I(f"v_mul_u32_u24 v{pB+i}, s{c1}, v{pD+i}")
        for i in idx: I(f"v_lshrrev_b32 v{pB+i}, 24, v{pB+i}")
        for i in idx:
            I(f"v_lshl_add_u32 v{pH+i}, v{pB+i}, 2, s{c3}")
            I(f"ds_add_rtn_u32 v{pK+i}, v{pH+i}, v7 offset:{P_HIST - H0}")
        for i in idx:
            I(f"v_mad_i32_i24 v{pD+i}, v{pB+i}, s{c2}, v{pD+i}")
            I(f"v_or_b32 v{pD+i}, v{pD+i}, v{pI+i}")
        for j, i in enumerate(idx):
            I(f"s_waitcnt lgkmcnt({n - 1})")
            I(f"v_lshrrev_b32 v{pK+i}, 16, v{pK+i}")
            I(f"v_min_u32 v{pA+i}, {QCAP}, v{pK+i}")
            I(f"v_mad_u32_u24 v{pA+i}, v{pH+i}, {LROW // 16}, v{pA+i}")
            I(f"v_lshlrev_b32 v{pB+i}, 2, v{pA+i}")
            I(f"ds_write_b8 v{pA+i}, v{xb(i)} offset:{P_EIMG - X0}")
    def prod2(idx):
        for i in idx:
            I(f"v_lshl_add_u32 v{pS+i}, v{pS+i}, 16, v{pD+i}")
            I(f"ds_write_b32 v{pB+i}, v{pS+i} offset:{P_CIMG - 4*X0}")
    if WLP == 1: wloads()
    if XE == 2: xshared()
    stamp('q')
    I(f"s_waitcnt vmcnt({younger('D')})")
    stamp('d')
    prod(range(6))
    I(f"s_cmp_lg_u32 s7, 0")
    I("s_cbranch_scc1 K1_NO7")
    I(f"s_mov_b64 exec, s[{pm}:{pm+1}]")
    I("s_waitcnt lgkmcnt(0)")
    prod([6])
    I(f"s_waitcnt vmcnt({younger('S')})")
    prod2([6])
    I("s_mov_b64 exec, -1")
    L("K1_NO7")
    if WLP == 2: wloads()
    if XE == 3: xshared()
    I(f"s_waitcnt vmcnt({younger('S')})")
    prod2(range(6))
    if WLP == 3: wloads()
    I(f"s_lshl_b32 s15, s{sB}, 7")
    sST_ = sCEL
    srd(sST_, 8, 9, 511*RS + CELLB, "s15")
    I("s_waitcnt lgkmcnt(0)")
    I(f"s_add_u32 s{sEPN}, s{sEPN}, 1")
    I(f"s_and_b32 s10, s{sEPN}, 15")
    I(f"s_and_b32 s11, s{sEPN}, 0xf0")
    I(f"s_mul_i32 s{sTAG}, s10, 0x1010")
    I(f"s_lshl_b32 s11, s11, 16")
    I(f"s_or_b32 s{sTAG}, s{sTAG}, s11")
    I(f"s_and_b32 s10, s{sEPN}, 0x700")
    I(f"s_lshl4_add_u32 s10, s10, 0x8000")
    I(f"s_xor_b32 s{sTAG}, s{sTAG}, s10")
    I(f"s_mov_b32 s{sSPIN}, {opt('spin', 300000)}")
    I("s_barrier")
    stamp('i')
    oC, oE, oH, oA = vACC, vACC + 16, vACC + 20, vACC + 24
    I(f"ds_read_b128 {rr(oA,4)}, v{l16} offset:{P_HIST}")
    for i in range(4):
        I(f"ds_read_u16 v{oH+i}, v{hda} offset:{P_HIST + 256*i + 2}")
        I(f"ds_read_b32 v{oE+i}, v6 offset:{16*LROW*i}")
        I(f"ds_read_b128 {rr(oC+4*i,4)}, v3 offset:{64*LROW*i}")
    I("s_waitcnt lgkmcnt(12)")
    I(f"v_max3_u32 v1, v{oA}, v{oA+1}, v{oA+2}")
    I(f"v_max_u32 v1, v1, v{oA+3}")
    I(f"v_cmp_le_u32 vcc, {(QCAP + 1) << 16}, v1")
    I("s_mov_b32 s10, 0")
    I("s_cbranch_vccnz K1_OVF")
    L("K1_OUT")
    for i in range(4):
        r = oC + 4*i
        I(f"s_waitcnt lgkmcnt({9 - 3*i})")
        I(f"v_lshl_or_b32 v{oH+i}, v{oH+i}, 24, s{sTAG}")
        I(f"v_and_or_b32 v{r+3}, v{oE+i}, v15, v{oH+i}")
        I(f"buffer_store_dwordx4 {rr(r,4)}, v4, s[{sST_}:{sST_+3}], s10 offen sc1"); vq.append("O")
        I(f"s_add_u32 s10, s10, {64*RS}")
    I(f"v_max3_u32 v1, v{oH}, v{oH+1}, v{oH+2}")
    I(f"v_max_u32 v1, v1, v{oH+3}")
    I(f"v_cmp_le_u32 vcc, {33 << 24}, v1")
    I("s_cbranch_vccnz K1_EXT")
    L("K1_EXTR")
    if WLP == 4: wloads()
    stamp('o')
    if TS == 10:
        I("s_waitcnt vmcnt(0)")
        stamp('A')
    if opt("bar", 0): I("s_barrier")
    out.extend(static)
    I(f"s_mul_i32 s10, s{sB}, {RS}")
    srd(sCEL, 8, 9, NCH*CELLB, "s10")
    for k in (1, 2, 3):
        I(f"s_movk_i32 s{sSO+k-1}, {64*CELLB*k}")
    CP = opt("cp", 1)
    if CP == 0: cloads()
    I(f"s_mov_b32 s10, {f2u(-LOG2E):#x}")
    I(f"s_waitcnt vmcnt({younger('B')})")
    for i in range(8):
        I(f"v_lshlrev_b32 v{vAT+2*i}, 16, v{pW+i}")
        I(f"v_and_b32 v{vAT+2*i+1}, 0xffff0000, v{pW+i}")
    for i in range(16): I(f"v_mul_f32 v{vAT+i}, s10, v{vAT+i}")
    for i in range(8): I(f"v_cvt_pk_bf16_f32 v{pW+i}, v{vAT+2*i}, v{vAT+2*i+1}")
    I(f"ds_write_b128 v{u(1)}, {rr(pW,4)} offset:{WL + WI_B}")
    I(f"s_cmp_ge_u32 s7, 2")
    I("s_cbranch_scc1 K1_NOWC")
    I(f"ds_write_b128 v{u(1)}, {rr(pW+4,4)} offset:{WL + WI_C}")
    L("K1_NOWC")
    w0, w1, wc0, wc1, xa_ = vT1 + 1, vT1 + 2, vT1 + 3, vT1 + 4, vT
    I(f"v_bfe_u32 v{w0}, v{lane}, 2, 2")
    I(f"v_lshlrev_b32 v{w0}, 7, v{w0}")
    I(f"v_lshl_add_u32 v{w0}, v{vCH}, 2, v{w0}")
    I(f"v_and_b32 v{w1}, 16, v{lane}")
    I(f"v_and_b32 v{wc0}, 2, v{lane}")
    I(f"v_lshl_add_u32 v{w1}, v{wc0}, 2, v{w1}")
    I(f"v_and_b32 v{wc0}, 8, v{lane}")
    I(f"v_lshl_add_u32 v{w1}, v{wc0}, 2, v{w1}")
    I(f"v_add_u32 v{w0}, v{w0}, v{w1}")
    I(f"v_lshl_add_u32 v{wc0}, v{u(5)}, 10, v{w0}")
    I(f"v_lshl_add_u32 v{w0}, v{u(5)}, 12, v{w0}")
    I(f"v_xor_b32 v{w1}, 32, v{w0}")
    I(f"v_xor_b32 v{wc1}, 32, v{wc0}")
    def wtr(reg, img, ft, s_, c=False):
        ad = (wc0, wc1)[ft] if c else (w0, w1)[ft]
        return [f"ds_read_b64_tr_b16 {rr(reg+2*h_,2)}, v{ad} offset:{WL + img + 1024*s_ + 512*h_}" for h_ in range(2)]
    I(f"s_lshl_b32 s10, s7, 10")
    I(f"s_and_b32 s11, s7, 4")
    I(f"s_mul_i32 s11, s11, {8 - 1024}")
    I(f"s_add_u32 s11, s11, s10")
    I(f"v_xor_b32 v{xa_}, s11, v{w0}")
    I(f"s_waitcnt vmcnt({0 if opt('ack', 1) else younger('W')}) lgkmcnt(0)")
    I("s_barrier")
    if CP == 1: cloads()
    for h_ in range(2):
        I(f"ds_read_b64_tr_b16 {rr(vAT+2*h_,2)}, v{xa_} offset:{WL + WI_U + 512*h_}")
        I(f"ds_read_b64_tr_b16 {rr(vAT+4+2*h_,2)}, v{xa_} offset:{WL + WI_A + 512*h_}")
    I(f"v_add_u32 v{xa_}, s10, v{l16}")
    rest = []
    for reg, img in ((vWB, WI_B), (vWC, WI_C), (vWV, WI_V)):
        for ft in range(2):
            if img == WI_C: rest += wtr(vWC + 4*ft, WI_C, ft, 0, True)
            else:
                for s_ in range(4): rest += wtr(reg + 16*ft + 4*s_, img, ft, s_)
    for x_ in rest[:8]: I(x_)
    rest = rest[8:]
    I("s_waitcnt lgkmcnt(8)")
    I(f"ds_write_b128 v{xa_}, {rr(vAT,4)} offset:{WU}")
    I(f"s_mov_b32 s10, {f2u(-LOG2E):#x}")
    for i in range(4):
        I(f"v_lshlrev_b32 v{vAT+8+2*i}, 16, v{vAT+4+i}")
        I(f"v_and_b32 v{vAT+9+2*i}, 0xffff0000, v{vAT+4+i}")
    for i in range(8): I(f"v_mul_f32 v{vAT+8+i}, s10, v{vAT+8+i}")
    for i in range(4): I(f"v_cvt_pk_bf16_f32 v{vAT+4+i}, v{vAT+8+2*i}, v{vAT+9+2*i}")
    I(f"ds_write_b128 v{xa_}, {rr(vAT+4,4)} offset:{WA}")
    QK, QB = opt("qk", 12), 252 * 16
    I(f"v_and_b32 v{u(0)}, 3, v{lane}")
    I(f"v_lshlrev_b32 v{u(2)}, 4, v{u(0)}")
    I(f"v_mul_u32_u24 v{u(0)}, {2*LCAP*4}, v{u(0)}")
    I(f"v_add_u32 v{u(0)}, {LCAP*4}, v{u(0)}")
    I(f"ds_write_b16 v{u(2)}, v{u(0)} offset:{HIST + QB + 2}")
    while rest:
        I("s_waitcnt lgkmcnt(8)")
        for x_ in rest[:6]: I(x_)
        rest = rest[6:]
    stamp('k')
    sPH = 5
    ROT = opt("rot", 1)
    I(f"s_mov_b32 s{sPH}, {64424 if opt('ph', 's') == 'q' else 85899 if ROT else PHM}")
    if ROT:
        assert SOFF == 0
        I(f"s_lshr_b32 s6, s{sB}, 5")
        I(f"s_mul_i32 s6, s6, {32 * BN * 85899}")
        I(f"s_sub_u32 s6, s6, {opt('rof', 0) * 85899}")
    if CP == 2:
        if opt("own", -1) >= 0: I(f"s_waitcnt vmcnt({opt('own', -1)})")
        cloads()
    XC = opt("xc", 0)
    if XC == 4: xloads()
    if XC == 2: xshared()
    sSEL = sM + 24
    for j in range(3): I(f"s_mov_b32 s{sSEL+j}, {0x0c0c0001 | (4 + j) << 8:#x}")
    I(f"s_mov_b32 s{sSEL+3}, 0x05040100")
    sQM = [sM + 28, sM + 30, sTMP]
    I(f"s_movk_i32 s4, 1338")
    I(f"s_movk_i32 s13, {QB}")
    I(f"s_movk_i32 s14, {QK * 1338}")
    I("s_waitcnt lgkmcnt(0)")
    I("s_barrier")
    vEO = vX
    SW1 = "dst_sel:DWORD dst_unused:UNUSED_PAD src0_sel:DWORD src1_sel:WORD_1"
    def haddr(d, r):
        return [f"v_mul_u32_u24_sdwa v{d}, s{sPH}, v{r} {SW1}"] + ([f"v_subrev_u32 v{d}, s6, v{d}"] if ROT else []) + [f"v_alignbit_b32 v{d}, v{r}, v{d}, 28", f"v_and_b32 v{d}, 0xffc, v{d}"]
    def remain(d, r, k):
        I(f"v_sub_u32_sdwa v{d}, v{r}, v{k} dst_sel:DWORD dst_unused:UNUSED_PAD src0_sel:BYTE_3 src1_sel:DWORD")
    for i in range(4):
        L(f"K2_CHK{i}")
        I(f"s_waitcnt vmcnt({3 - i + XC})")
        r = vC + 4*i
        I(f"v_bitop3_b32 v{u(0)}, v{r+3}, s{sTAG}, v{vTM} bitop3:0x28")
        I(f"v_cmp_ne_u32 vcc, 0, v{u(0)}")
        remain(u(0), r + 3, k4)
        hs = [haddr(vA+3*i+j, r+j) for j in range(3)]
        PHK = opt("ph", "s")
        if PHK == "e":
            hs = [[f"v_and_b32 v{vA+3*i+j}, 255, v{r+j}", f"v_lshl_add_u32 v{vA+3*i+j}, v{vA+3*i+j}, 4, {4*i}"] for j in range(3)]
        if PHK == "m":
            for j in range(3):
                d_ = vA+3*i+j
                hs[j] = hs[j][:-2] + [f"v_lshrrev_b32 v{d_}, 1, v{d_}"] + ([f"v_xor_b32 v{d_}, 0xc0000000, v{d_}"] if i >= opt("me", 2) else []) + hs[j][-2:]
        if PHK == "q":
            for j in range(3):
                d_ = vA+3*i+j
                if i == 0: hs[j] = [f"v_and_b32 v{d_}, 255, v{r+j}", f"v_lshlrev_b32 v{d_}, 4, v{d_}"]
                else: hs[j] = [f"v_mul_u32_u24_sdwa v{d_}, s{sPH}, v{r+j} {SW1}", f"v_add_u32 v{d_}, 0x40000000, v{d_}"] + hs[j][-2:]
        for j in range(3): I(hs[j][0])
        I(f"s_cbranch_vccnz K2_RETRY{i}")
        if i == 0: stamp(1)
        for j in range(3):
            m = sM + 2*(3*i+j)
            I(f"v_cmp_lt_i32 s[{m}:{m+1}], {j}, v{u(0)}")
        for st in range(1, len(hs[0])):
            for j in range(3): I(hs[j][st])
        if i == 0:
            qt = hh
            for j in range(3): I(f"v_mul_u32_u24_sdwa v{qt+j}, s4, v{r+j} dst_sel:DWORD dst_unused:UNUSED_PAD src0_sel:DWORD src1_sel:BYTE_0")
            for j in range(3): I(f"v_subrev_u32 v{qt+j}, {30 * 1338}, v{qt+j}")
            for j in range(3): I(f"v_cmp_gt_u16 s[{sQM[j]}:{sQM[j]+1}], s14, v{qt+j}")
            for j in range(3): I(f"v_lshrrev_b32 v{qt+j}, 16, v{qt+j}")
            for j in range(3): I(f"v_lshl_add_u32 v{qt+j}, v{qt+j}, 4, s13")
            for j in range(3): I(f"v_cndmask_b32 v{vA+j}, v{vA+j}, v{qt+j}, s[{sQM[j]}:{sQM[j]+1}]")
        for j in range(3):
            m = sM + 2*(3*i+j)
            I(f"s_mov_b64 exec, s[{m}:{m+1}]")
            I(f"ds_add_rtn_u32 v{vRK+3*i+j}, v{vA+3*i+j}, v{one} offset:{HIST}")
        I("s_mov_b64 exec, -1")
        if i == 0:
            I(f"v_and_b32 v{qt+3}, 0x0f0f0f, v{r+3}")
            for j in range(3):
                I(f"v_perm_b32 v{vEO+j}, v{qt+3}, v{r+j}, s{sSEL+j}")
                I(f"s_and_b64 s[{sQM[j]}:{sQM[j]+1}], s[{sQM[j]}:{sQM[j]+1}], s[{sM+2*j}:{sM+2*j+1}]")
                I(f"v_lshl_add_u32 v{vEO+j}, v{vEO+j}, 5, v{vEB}")
                I(f"s_andn2_b64 s[{sM+2*j}:{sM+2*j+1}], s[{sM+2*j}:{sM+2*j+1}], s[{sQM[j]}:{sQM[j]+1}]")
        if i == 0: I("s_waitcnt lgkmcnt(0)") if opt("qw", 1) == 0 else None
        if i == opt("qw", 1):
            I("s_waitcnt lgkmcnt(0)")
            for j in range(3):
                I(f"v_min_u16 v{qt+j}, {LMAX*4}, v{vRK+j}")
                I(f"v_add_u32_sdwa v{qt+j}, v{qt+j}, v{vRK+j} dst_sel:DWORD dst_unused:UNUSED_PAD src0_sel:WORD_0 src1_sel:WORD_1")
            for j in range(3):
                I(f"s_mov_b64 exec, s[{sQM[j]}:{sQM[j]+1}]")
                I(f"ds_write2st64_b32 v{qt+j}, v{vC+j}, v{vEO+j} offset0:{R0//256} offset1:{R1//256}")
            I("s_mov_b64 exec, -1")
    I(f"v_max3_u32 v{u(0)}, v{vC+3}, v{vC+7}, v{vC+11}")
    I(f"v_max_u32 v{u(0)}, v{u(0)}, v{vC+15}")
    I(f"v_cmp_le_u32 vcc, {33 << 24}, v{u(0)}")
    I("s_cbranch_vccnz K2_XT1")
    L("K2_XT1R")
    fill = []
    for i in range(1, 4):
        fill.append(f"v_and_b32 v{vC+4*i+3}, 0x0f0f0f, v{vC+4*i+3}")
    for i in range(1, 4):
        for j in range(3): fill.append(f"v_perm_b32 v{vEO+3*i+j}, v{vC+4*i+3}, v{vC+4*i+j}, s{sSEL+j}")
    for i in range(1, 4):
        for j in range(3): fill.append(f"v_lshl_add_u32 v{vEO+3*i+j}, v{vEO+3*i+j}, 5, v{vEB+i}")
    I(f"s_lshr_b32 s4, s{sW}, 1")
    I(f"s_add_u32 s4, s4, 60")
    stamp('s')
    I("s_waitcnt lgkmcnt(0)")
    I("s_barrier")
    stamp(2)
    c, p, tot, sc = u(0), u(4), u(8), u(9)
    own, ownn, owna = u(10), u(11), u(12)
    SD = "dst_sel:DWORD dst_unused:UNUSED_PAD src0_sel:WORD_0 src1_sel:WORD_0"
    sQ, sQD = sM + 28, sM + 29
    def first_reads():
        I(f"ds_read_b128 {rr(vQD,4)}, v{vARX}")
        I(f"ds_read_b32 v{vR1}, v{vARE}")
        I(f"ds_read_u8 v{vL1}, v{vARP}")
    I(f"ds_read_b128 {rr(hh+12,4)}, v{l16} offset:{HIST + 3072}")
    first_reads()
    for i in range(3):
        I(f"ds_read_b128 {rr(hh+4*i,4)}, v{l16} offset:{HIST + 1024*i}")
    I(f"ds_read_b64 v[{u(6)}:{u(7)}], v{owna} offset:{HIST}")
    XY = opt("xy", 2)
    if XC == 4: XY = 0
    if not XC and not XE:
        if XY:
            I(f"s_bitcmp1_b32 s{sW}, 0")
            I("s_cbranch_scc0 K2_NOX1")
        xloads()
        L("K2_NOX1")
    def xlate():
        I(f"s_bitcmp1_b32 s{sW}, 0")
        I("s_cbranch_scc1 K2_NOX2")
        xloads()
        L("K2_NOX2")
    I("s_waitcnt lgkmcnt(5)")
    I(f"v_readlane_b32 s{sQ}, v{hh+12}, s4")
    I(fill.pop(0)); I(fill.pop(0))
    I(f"s_and_b32 s{sQ}, s{sQ}, 0xffff")
    I(f"s_bitcmp1_b32 s{sW}, 0")
    I(f"s_cselect_b32 s{sQ}, s{sQ}, 0")
    I(f"s_cmp_ge_u32 s{sQ}, 128")
    I(f"s_cselect_b32 s{sQD}, 1, 0")
    I("s_cbranch_scc0 K2_NOQ")
    for x_ in dma_tile(0, 0): I(x_)
    L("K2_NOQ")
    for i in (3, 0, 1, 2):
        if i < 3: I(f"s_waitcnt lgkmcnt({3 - i})")
        I(f"v_add_u32_sdwa v{c+i}, v{hh+4*i}, v{hh+4*i+1} {SD}")
        I(f"v_add_u32_sdwa v{hh+4*i}, v{hh+4*i+2}, v{hh+4*i+3} {SD}")
        I(f"v_add_u32 v{c+i}, v{c+i}, v{hh+4*i}")
    I(f"v_lshl_or_b32 v{p}, v{c+1}, 16, v{c}")
    I(f"v_lshl_or_b32 v{p+1}, v{c+3}, 16, v{c+2}")
    I("s_waitcnt lgkmcnt(0)")
    I(f"v_perm_b32 v{own}, v{u(7)}, v{u(6)}, s{sSEL+3}")
    for dp in ["row_shr:%d row_mask:0xf bank_mask:0xf bound_ctrl:0" % sh for sh in (1, 2, 4, 8)] + \
              ["row_bcast:15 row_mask:0xa bank_mask:0xf", "row_bcast:31 row_mask:0xc bank_mask:0xf"]:
        I(f"v_add_u32_dpp v{p}, v{p}, v{p} {dp}")
        I(f"v_add_u32_dpp v{p+1}, v{p+1}, v{p+1} {dp}")
        I(fill.pop(0) if fill else "s_nop 0")
    I("s_sub_u32 s4, s4, 1")
    I(f"v_readlane_b32 s10, v{p}, 63")
    I(f"v_readlane_b32 s11, v{p+1}, 63")
    I(f"v_readlane_b32 s{sF1}, v{p+1}, 59")
    I(f"v_readlane_b32 s{sTMP}, v{p+1}, s4")
    for i in range(3):
        I(f"v_lshlrev_b32_sdwa v{hh+i}, v{ecb}, v{p+(i>>1)} dst_sel:DWORD dst_unused:UNUSED_PAD src0_sel:DWORD src1_sel:WORD_{i&1}")
        I(f"v_sub_u32 v{c+i}, v{hh+i}, v{c+i}")
    b1, b2 = 4, 5
    I(f"s_and_b32 s{b1}, s10, 0xffff")
    I("s_lshr_b32 s10, s10, 16")
    I(f"s_add_u32 s{b2}, s{b1}, s10")
    I("s_and_b32 s10, s11, 0xffff")
    I(f"s_add_u32 s10, s{b2}, s10")
    I("s_lshr_b32 s11, s11, 16")
    I(f"s_add_u32 s10, s10, s11")
    I(f"s_lshr_b32 s{sF1}, s{sF1}, 16")
    I(f"s_lshr_b32 s{sTMP}, s{sTMP}, 16")
    I(f"s_sub_u32 s6, s{sTMP}, s{sF1}")
    I(f"s_lshl_b32 s6, s6, 1")
    for i, b in ((1, b1), (2, b2)):
        I(f"v_lshl_add_u32 v{c+i}, s{b}, 1, v{c+i}")
    KV = opt("kv", "1_4_3216_5") if SBK else ""
    if KV:
        klo, khi, kref, ksh = [int(x) for x in KV.split("_")]
        assert klo >= 1
        I(f"s_sub_i32 s{sSB}, {4*kref}, s10")
        I(f"s_ashr_i32 s{sSB}, s{sSB}, {ksh + 2}")
        I(f"s_max_i32 s{sSB}, s{sSB}, {klo}")
        I(f"s_min_i32 s{sSB}, s{sSB}, {khi}")
    I("s_lshr_b32 s11, s10, 5")
    I(f"s_add_u32 s11, s11, 16")
    I("s_and_b32 s11, s11, -32")
    if KV:
        I(f"s_cmp_ge_i32 s{sSB}, {opt('shk', 1)}")
        I(f"s_cselect_b32 s{sF0}, {ASYM + 32}, {ASYM}")
        I(f"s_sub_i32 s11, s11, s{sF0}")
    else: I(f"s_sub_i32 s11, s11, {ASYM + 32*opt('sh', 1)}")
    I("s_lshl_b32 s11, s11, 3")
    I("s_lshr_b32 s10, s10, 1")
    I(f"s_lshr_b32 s{sF0}, s{sW}, 1")
    I(f"s_mul_i32 s{sF0}, s{sF0}, s10")
    I(f"s_sub_i32 s{sF0}, s{sF0}, s6")
    I(f"s_sub_i32 s10, s10, s{sQ}")
    I(f"s_sub_i32 s10, s10, s{sQ}")
    I(f"s_add_i32 s11, s11, s{sF0}")
    I(f"s_add_i32 s10, s10, s{sF0}")
    I(f"s_bitcmp1_b32 s{sW}, 0")
    I(f"s_cselect_b32 s{sEND}, s11, s{sF0}")
    I("s_cselect_b32 s10, s10, s11")
    I(f"s_mov_b32 s{sF0}, 0")
    I(f"s_mov_b32 s{sF1}, 0")
    for i in range(3):
        I(f"v_cmp_gt_i32 vcc, s{sEND}, v{c+i}")
        I(f"v_cmp_gt_i32 s[{sTMP}:{sTMP+1}], s10, v{c+i}")
        I("s_bcnt1_i32_b64 s11, vcc")
        I(f"s_add_u32 s{sF0}, s{sF0}, s11")
        I(f"s_bcnt1_i32_b64 s11, s[{sTMP}:{sTMP+1}]")
        I(f"s_add_u32 s{sF1}, s{sF1}, s11")
    I(f"s_max_i32 s{sF0}, s{sF0}, s{lo0}")
    I(f"s_min_i32 s{sF0}, s{sF0}, s{hi0}")
    I(f"s_max_i32 s{sF1}, s{sF1}, s{lo1}")
    I(f"s_min_i32 s{sF1}, s{sF1}, s{hi1}")
    I(f"v_cmp_le_u32 vcc, s{sF0}, v{ownn}")
    I(f"v_cmp_gt_u32 s[10:11], s{sF1}, v{ownn}")
    I("s_nop 0")
    I("s_and_b64 vcc, vcc, s[10:11]")
    I(f"v_cndmask_b32 v{own}, 0, v{own}, vcc")
    I(f"v_mov_b32 v{tot}, v{own}")
    wave_scan(tot, fill, half=True)
    for x_ in fill: I(x_)
    I(f"s_sub_u32 s{sTMP}, s{sL}, {R0}")
    I(f"s_add_u32 s{sTMP}, s{sTMP}, s{sQ}")
    I(f"v_readlane_b32 s10, v{tot}, 31")
    I(f"v_readlane_b32 s11, v{tot}, 63")
    I(f"v_sub_u32 v{tot}, v{tot}, v{own}")
    I(f"v_mov_b32 v{vOWN}, v{u(14)}")
    I(f"s_and_b32 s{sTH}, s10, 0xffff")
    I("s_lshr_b32 s10, s10, 16")
    I(f"s_add_u32 s{sTH+1}, s{sTH}, s10")
    I("s_and_b32 s10, s11, 0xffff")
    I(f"s_add_u32 s{sTH+2}, s{sTH+1}, s10")
    I("s_lshr_b32 s11, s11, 16")
    I(f"s_add_u32 s{sEND}, s{sTH+2}, s11")
    I(f"s_lshl_b32 s10, s{sTH}, 16")
    I(f"s_pack_ll_b32_b16 s11, s{sTH+1}, s{sTH+2}")
    I(f"s_pack_ll_b32_b16 s{sTMP}, s{sTMP}, s{sTMP}")
    I(f"s_add_u32 s10, s10, s{sTMP}")
    I(f"s_add_u32 s11, s11, s{sTMP}")
    I("s_mov_b32 exec_lo, vcc_lo")
    I("s_mov_b32 exec_hi, 0")
    I(f"v_add_u32 v{tot}, s10, v{tot}")
    I("s_mov_b32 exec_lo, 0")
    I("s_mov_b32 exec_hi, vcc_hi")
    I(f"v_add_u32 v{tot}, s11, v{tot}")
    I("s_mov_b64 exec, vcc")
    I(f"ds_write_b16 v{owna}, v{tot} offset:{HIST + 2}")
    I(f"ds_write_b16_d16_hi v{owna}, v{tot} offset:{HIST + 6}")
    I(f"ds_write_b32 v{vMIN+1}, v{vMIN} offset:{MAP}")
    I("s_mov_b64 exec, -1")
    I(f"v_mov_b32 v{sc}, {FLAG}")
    I(f"s_add_u32 s{sEND}, s{sEND}, s{sQ}")
    I(f"s_add_u32 s{sQ}, s{sQ}, {opt('tho', 64)}")
    I(f"s_cmp_le_u32 s{sEND}, {LMAX*4}")
    I("s_cbranch_scc1 K2_LFIT")
    I(f"ds_write_b32 v{sc}, v{sc}")
    I(f"s_mov_b32 s{sEND}, 0")
    L("K2_LFIT")
    I(f"s_add_u32 s{sEND}, s{sEND}, s{sL}")
    for k in range(3):
        I(f"s_add_i32 s{sTH+k}, s{sTH+k}, s{sQ}")
        I(f"s_lshr_b32 s{sTH+k}, s{sTH+k}, 7")
    pads(lane, u(0), u(1), u(2))
    I(f"v_mov_b32 v{u(0)}, s{sEND}")
    I(f"ds_write_b32 v{vMIN}, v{u(0)} offset:{CNT}")
    if XY == 1: xlate()
    if XC == 2:
        I(f"s_cmp_lg_u32 s{sQD}, 0")
        I("s_cbranch_scc1 K2_XCW")
        I("s_waitcnt vmcnt(0)")
        L("K2_XCW")
    I("s_waitcnt lgkmcnt(0)")
    stamp('a')
    I("s_barrier")
    stamp('b')
    I(f"ds_read_b64 v[{u(6)}:{u(7)}], v{sc}")
    for s in range(12):
        m = sM + 2*s
        I(f"s_mov_b64 exec, s[{m}:{m+1}]")
        I(f"ds_read_u16 v{vA+s}, v{vA+s} offset:{HIST + 2}")
    I("s_mov_b64 exec, -1")
    I(f"s_waitcnt lgkmcnt(0)")
    I(f"v_readfirstlane_b32 s{sST}, v{u(6)}")
    I(f"v_readfirstlane_b32 s{sCUR}, v{u(7)}")
    for s in range(12): I(f"v_add_u32 v{vA+s}, v{vA+s}, v{vRK+s}")
    I(f"s_cmp_gt_u32 s{sST}, {XMAX}")
    I("s_cbranch_scc1 K2_OVF")
    for s in range(12):
        m = sM + 2*s
        I(f"s_mov_b64 exec, s[{m}:{m+1}]")
        I(f"ds_write2st64_b32 v{vA+s}, v{vC+4*(s//3)+s%3}, v{vEO+s} offset0:{R0//256} offset1:{R1//256}")
    I("s_mov_b64 exec, -1")
    L("K2_PADS0")
    sERL = 1
    I(f"s_add_u32 s10, s{sSB}, 2")
    I(f"s_cmp_gt_u32 s{sN}, s10")
    I(f"s_cselect_b32 s{sERL}, s{sW}, 0")
    I(f"s_sub_u32 s10, s{sF0}, s{sWIN}")
    I("s_mul_i32 s10, s10, 144")
    I(f"s_add_u32 s{sERT}, s10, s{sSTG}")
    I(f"s_mul_i32 s10, s{sB}, {BN}")
    I(f"s_add_u32 s11, s10, s{sF1}")
    I(f"s_add_u32 s10, s10, s{sF0}")
    I(f"s_min_u32 s11, s11, {N}")
    I(f"s_min_u32 s10, s10, {N}")
    I("s_sub_u32 s11, s11, s10")
    I("s_lshl_b32 s10, s10, 7")
    I(f"s_add_u32 s{sOUT}, s{sOUT}, s10")
    I(f"s_addc_u32 s{sOUT+1}, s{sOUT+1}, 0")
    I(f"s_lshl_b32 s{sOUT+2}, s11, 7")
    I(f"s_mov_b32 s{sCI}, -1")
    I(f"s_mov_b64 s[{sMSK}:{sMSK+1}], 0")
    I(f"s_mov_b32 s{sR0}, 0")
    I(f"s_mov_b32 s{sCNT}, 0")
    I(f"s_cmp_lg_u32 s{sCUR}, 0")
    I(f"s_cselect_b32 s{sMORE}, 1, 0")
    def atable():
        vWA = vACC
        for q in range(4): I(f"ds_read_b128 {rr(vX+4*q,4)}, v{vXA} offset:{16*q}")
        I(f"v_add_u32 v{l16}, 8192, v{l16}")
        for k in range(8): I(f"ds_read_b128 {rr(vWA+4*k,4)}, v{l16} offset:{WA - 8192 + 1024*k}")
        I(f"s_mov_b32 s10, {f2u(1e-6):#x}")
        I(f"s_mov_b32 s11, s10")
        I(mfma(NUM(1), vT2, vT2))
        for i in range(8): I(f"v_mov_b64 v[{DEN(1)+2*i}:{DEN(1)+2*i+1}], s[10:11]")
        for k in range(8):
            D = (vP, vQ)[k >> 2]
            I(f"s_waitcnt lgkmcnt({7 - k})")
            I(mfma(D, vX + 4*(k & 3), vWA + 4*k, None if k & 3 == 0 else D))
    def atable2():
        I(mfma(NUM(0), vT2, vT2))
        I(f"s_mov_b32 s10, {f2u(1e-6):#x}")
        I(f"s_mov_b32 s11, s10")
        for i in range(8): I(f"v_mov_b64 v[{DEN(0)+2*i}:{DEN(0)+2*i+1}], s[10:11]")
        for i in range(16): I(f"v_cvt_pk_bf16_f32 v{vAT+i}, v{vP+2*i}, v{vP+2*i+1}")
    def first_tile():
        first_reads()
        I("s_waitcnt lgkmcnt(1)")
        for s in dma_tile(0, 0): I(s)
    EM2 = 1
    def newend(tag):
        I(f"s_cmp_eq_u32 s{sST}, 0")
        I(f"s_cbranch_scc1 K2_NE{tag}")
        I(f"s_lshl_b32 s10, s{sW}, 2")
        I(f"v_mov_b32 v{vT1+6}, s10")
        I(f"ds_read_b32 v{vT1+6}, v{vT1+6} offset:{CNT}")
        I("s_waitcnt lgkmcnt(0)")
        I(f"v_readfirstlane_b32 s{sEND}, v{vT1+6}")
        I("s_nop 3")
        ntiles()
        L(f"K2_NE{tag}")
    I(f"s_and_b32 s{sQD}, s{sQD}, s{sERL}")
    I(f"s_cmp_gt_u32 s{sQD}, s{sXT}")
    I("s_cbranch_scc0 K2_SIDE")
    I("s_waitcnt vmcnt(5) lgkmcnt(0)")
    atable()
    stamp('c')
    I("s_barrier")
    stamp(3)
    atable2()
    I("s_branch K2_HAD0")
    L("K2_SIDE")
    if XY == 2: xlate()
    I("s_waitcnt vmcnt(5) lgkmcnt(0)")
    stamp('c')
    I("s_barrier")
    stamp(3)
    I(f"s_cmp_lg_u32 s{sQD}, 0")
    I("s_cbranch_scc1 K2_SIDE1")
    I(f"s_waitcnt vmcnt({0 if XY in (0, 3) else 4})")
    I(f"s_bitcmp1_b32 s{sW}, 0")
    I("s_cbranch_scc0 K2_SIDE1")
    I("s_waitcnt vmcnt(0)")
    I(f"s_bitcmp1_b32 s{sERL}, 0")
    I("s_cbranch_scc0 K2_SIDE1")
    first_tile()
    L("K2_SIDE1")
    I(f"s_cmp_lg_u32 s{sXT}, 0")
    I("s_cbranch_scc1 K2_XT2")
    L("K2_XT2R")
    I(f"s_bitcmp1_b32 s{sERL}, 0")
    I("s_cbranch_scc1 K2_SIDE2")
    I("s_barrier")
    newend("y")
    if XY == 3: xlate()
    first_tile()
    L("K2_SIDE2")
    I("s_waitcnt vmcnt(5) lgkmcnt(0)")
    atable()
    atable2()
    I("s_branch K2_HAD0")
    L("K2_GO")
    first_tile()
    L("K2_HAD0")
    I("s_waitcnt lgkmcnt(0)")
    I(f"v_lshl_add_u32 v{vL1}, v{vL1}, 6, v{vC1}")
    I(f"ds_read_b128 {rr(vQD,4)}, v{vARX} offset:128")
    I(f"ds_read_b32 v{vR1}, v{vARE} offset:128")
    for s in t1_reads(): I(s)
    I(mfma(vQ, vT2, vT2))
    stamp(4)
    I("s_waitcnt vmcnt(0)")
    stamp(5)
    I(f"ds_read_b128 {rr(vE,4)}, v{vAE}")
    for q in range(4):
        I(f"ds_read_b128 {rr(vX+4*q,4)}, v{vAX} offset:{16*q}")
    I("s_waitcnt lgkmcnt(0)")
    if EM2:
        for x_ in dma_tile(0, 1): I(x_)
        I(f"s_cmp_lt_i32 s{sSB}, 0")
        I("s_cbranch_scc1 K2_B1")
        I("s_barrier")
        I(f"s_bitcmp1_b32 s{sERL}, 0")
        I(f"s_cselect_b32 s{sSB}, s{sSB}, -1")
        I("s_cbranch_scc0 K2_B1")
        newend("o")
        L("K2_B1")
        I(f"s_cmp_lg_u32 s{sN}, 0")
        I("s_cbranch_scc1 K2_NZ")
        I("s_waitcnt vmcnt(0)")
        I("s_branch K2_DONE")
        L("K2_NZ")
    else:
        I(f"s_cmp_eq_u32 s{sN}, 0")
        I("s_cbranch_scc1 K2_DONE")
    for s in g_mfmas(vP, 0):
        if s.startswith("v_smfmac"):
            if EM2: I("s_nop 9")
            else:
                for x_ in dma_tile(0): I(x_)
        I(s)
    stamp('L')
    I(f"s_mov_b32 s{sT}, 0")
    sEV = 87
    TPF, sPFT = opt("tpf", 0), 0
    LT = [int(x) for x in opt("lt", "1234")] if opt("lt", "1234") != "0" else []
    def prio_code(uid):
        return [f"s_cmp_ge_u32 s{sT}, s{sEV}", f"s_cbranch_scc1 K2_EV{uid}", f"K2_EVR{uid}:"]
    def next_event():
        I(f"s_mov_b32 s{sEV}, s{sN}")
        for r in [sTH, sTH+1, sTH+2] + ([sSB] if SBK else []) + ([sN1] if LT else []) + ([sPFT] if TPF else []):
            I(f"s_cmp_gt_i32 s{r}, s{sT}")
            I(f"s_cselect_b32 s10, s{r}, s{sEV}")
            I(f"s_min_u32 s{sEV}, s{sEV}, s10")
    YK = opt("yk", 2)
    if YK:
        I(f"s_sub_u32 s10, s{sN}, {YK - 1 if YK < 10 else 0}")
        I(f"s_bitcmp1_b32 s{sW}, 0")
        I(f"s_cselect_b32 s{sTH+2}, s{sTH+2}, s10")
    I("s_setprio 3")
    if TPF: I(f"s_sub_i32 s{sPFT}, s{sN}, {TPF}")
    next_event()
    tst = ["s_memrealtime s[98:99]", "s_waitcnt lgkmcnt(0)", "s_mov_b32 m0, s72", "s_nop 0", "v_writelane_b32 v255, s98, m0", "s_memtime s[98:99]", "s_waitcnt lgkmcnt(0)", "s_add_u32 m0, s72, 32", "s_nop 0", "v_writelane_b32 v255, s98, m0"] if TS == 4 else []
    body = tst + phaseA(0) + phaseB(0)
    body += prio_code(0)
    body += tst + phaseA(1) + phaseB(1)
    body += [f"v_add_u32 v{r}, 0x100, v{r}" for r in (vARX, vARP, vARE, vART)]
    body += [f"s_cmp_lt_u32 s{sT}, s{sEV}", f"s_cbranch_scc1 K2_LOOP"]
    check_body(body)
    DBG = opt("dbg", "")
    if "ell" in DBG:
        nb = []
        for b in body:
            if b.startswith("v_smfmac") and b.endswith(f"v{vIX}"): continue
            if b.startswith("v_smfmac") and "noA" in DBG: continue
            if b.startswith("ds_read_b64_tr") or b.startswith("ds_read_u8 v23") or b.startswith("v_lshl_add_u32 v23"): continue
            m = re.fullmatch(r"v_mul_f32 v(\d+), v(\d+), v\d+", b)
            if m:
                h, g = int(m.group(1)), int(m.group(2)); ft = 0 if g < vQ else 1; i = h - vQ
                nb.append(f"v_fmac_f32 v{NUM(ft)+i}, v{g}, v{h}")
                nb.append(f"v_add_f32 v{DEN(ft)+i}, v{DEN(ft)+i}, v{g}")
                continue
            nb.append(b)
        body = nb
    if "fl" in DBG:
        nb = []; cnt = 0
        for b in body:
            if b.startswith("ds_read_b128 v[172") or b.startswith("ds_read_b32 v176") or b.startswith("ds_read_u8 v250") or b.startswith("v_lshl_add_u32 v250"): continue
            m = re.fullmatch(r"v_add_f32 v(\d+), v(\d+), v(\d+)", b)
            if m:
                cnt += 1
                if cnt % 4 == 0:
                    k = (cnt // 4) % 4
                    nb.append(f"v_cvt_pk_bf16_f32 v{vT2+k}, v{m.group(1)}, v{int(m.group(1))+16}")
                    nb.append(f"ds_pk_add_bf16 v{vT1+7}, v{vT2+k} offset:{256*(cnt%64)//4}")
                    nb.append(f"ds_read_u16_d16_hi v{vAT+k}, v{vC1} offset:{16384 + 128*k}")
                    if k % 2: nb.append(f"v_add_u32 v{vT2+4}, v{vT2+5}, v{vC1}")
                    continue
            if b.startswith("s_waitcnt lgkmcnt"): b = "s_waitcnt lgkmcnt(0)" if "(0)" in b else b
            nb.append(b)
        body = [f"v_lshl_add_u32 v{vT1+7}, v{lane}, 2, s{sSTG}", f"v_subrev_u32 v{vT1+7}, 33280, v{vT1+7}", f"v_lshlrev_b32 v{vC1}, 1, v{lane}"] + nb
    if "drop" in DBG:
        n = int(DBG[DBG.index("drop") + 4:])
        body = [b for b in body if not (b.startswith("v_add_f32") and (int(b.split()[1][1:-1]) - vP) % 16 < n)]
    if "half" in DBG:
        body = [b for b in body if not (b.startswith("v_smfmac") and b.endswith(f"v{vIX}") and f"v[{vT2+4}:" in b)]
    if "nodma" in DBG: body = [b for b in body if not b.startswith("buffer_load")]
    emit(".p2align 6")
    L("K2_LOOP")
    for s in body:
        if s.endswith(":"): L(s[:-1])
        else: I(s)
    for uid in (1, 0):
        if uid == 0: L("K2_EV0")
        I(f"s_cmp_ge_u32 s{sT}, s{sN}")
        I("s_cbranch_scc1 K2_TAIL")
        if SBK:
            I(f"s_cmp_lg_u32 s{sT}, s{sSB}")
            I(f"s_cbranch_scc1 K2_SB{uid}")
            I("s_barrier")
            if EM2: I(f"s_mov_b32 s{sSB}, -1")
            else: newend(uid)
            L(f"K2_SB{uid}")
        for k in range(3):
            I(f"s_cmp_lg_u32 s{sT}, s{sTH+k}")
            I(f"s_cbranch_scc1 K2_PR{uid}_{k}")
            I(f"s_setprio {2-k}")
            L(f"K2_PR{uid}_{k}")
        if TPF:
            I(f"s_cmp_lg_u32 s{sT}, s{sPFT}")
            I(f"s_cbranch_scc1 K2_TP{uid}")
            I("s_getpc_b64 s[10:11]")
            L(f"K2_TPC{uid}")
            I(f"v_lshlrev_b32 v{vT1+7}, 7, v{lane}")
            I(f"v_min_u32 v{vT1+7}, K2_END-K2_TPC{uid}, v{vT1+7}")
            I(f"global_load_dword v{vT1+6}, v{vT1+7}, s[10:11]")
            L(f"K2_TP{uid}")
        if LT:
            I(f"s_lshl_b32 s10, s{sMORE}, 8")
            I(f"s_add_u32 s10, s10, s{sN1}")
            I(f"s_cmp_eq_u32 s{sT}, s10")
            I(f"s_cbranch_scc1 K2_LT{uid}")
        next_event()
        I("s_branch K2_LOOP" if uid else "s_branch K2_EVR0")
    if LT:
        L("K2_LT0")
        I(f"v_add_u32 v{vART}, 128, v{vART}")
        L("K2_LT1")
        stamp('T')
        I(f"s_sub_u32 s10, s{sEND}, s{sL}")
        I(f"s_sub_u32 s10, s10, 4")
        I(f"s_and_b32 s10, s10, 127")
        for ng in LT[:-1]:
            I(f"s_cmp_lt_u32 s10, {32*ng}")
            I(f"s_cbranch_scc1 K2_LG{ng}")
        for ng in reversed(LT):
            if ng != LT[-1]: L(f"K2_LG{ng}")
            for x_ in last_tile(ng): I(x_)
            I("s_branch K2_EPI2")
    L("K2_TAIL")
    for s in s_mfmas(NUM(1), vQ): I(s)
    L("K2_DONE")
    I(f"s_cmp_lg_u32 s{sMORE}, 0")
    I("s_cbranch_scc1 K2_SLOW")
    L("K2_EPI")
    for x_ in epi_addr() + epi_id() + epi_wu() + [epi_x(q) for q in range(4)]: I(x_)
    L("K2_EPI2")
    stamp(6)
    D = (vP, vAT)
    rc = lambda ft: [f"v_rcp_f32 v{DEN(ft)+i}, v{DEN(ft)+i}" for i in range(16)]
    mu = lambda ft: [f"v_mul_f32 v{NUM(ft)+i}, v{NUM(ft)+i}, v{DEN(ft)+i}" for i in range(16)] + \
                    [f"v_cvt_pk_bf16_f32 v{DEN(ft)+i}, v{NUM(ft)+2*i}, v{NUM(ft)+2*i+1}" for i in range(8)]
    un = lambda ft: sum(([f"v_lshlrev_b32 v{vWV+2*i}, 16, v{vX+i}", f"v_and_b32 v{vWV+2*i+1}, 0xffff0000, v{vX+i}"] for i in range(8*ft, 8*ft+8)), [])
    um = lambda ft: [mfma(D[ft], vWB+16*ft+4*q, vX+4*q, vWV+16*ft if q == 0 else D[ft]) for q in range(4)]
    tm = lambda ft: [mfma(D[ft], DEN(ft)+4*s_, vWC+4*s_, D[ft]) for s_ in range(2)]
    def fin(ft):
        r = []
        for q in range(2):
            r += [f"v_max_f32 v{D[ft]+i}, v{D[ft]+i}, v{vWV+16*ft+i}" for i in range(8*q, 8*q+8)]
            r += [f"v_cvt_pk_bf16_f32 v{vR+8*ft+4*q+d}, v{D[ft]+8*q+2*d}, v{D[ft]+8*q+2*d+1}" for d in range(4)]
            r += [f"ds_write_b128 v{eW}, {rr(vR+8*ft+4*q,4)} offset:{32*ft + 16*q}"]
        return r
    def weave(m, v):
        r = []; k = -(-len(v) // len(m))
        for i, x_ in enumerate(m): r += [x_] + v[i*k:(i+1)*k]
        return r
    seq = ["s_nop 1"] + rc(0)[:8] + ["s_waitcnt lgkmcnt(0)"] + un(0) + rc(0)[8:10] + weave(um(0), rc(0)[10:] + un(1) + mu(0)[:6])
    seq += weave(um(1), mu(0)[6:] + rc(1)[:6]) + weave(tm(0), rc(1)[6:]) + mu(1) + tm(1) + fin(0) + fin(1)
    for x_ in fixnops(seq): I(x_)
    stamp('e3')
    for q in range(4):
        I(f"ds_read_b128 {rr(vX+4*q,4)}, v{eR} offset:{8*144*q}")
    for q in range(4):
        I(f"s_waitcnt lgkmcnt({3-q})")
        I(f"buffer_store_dwordx4 {rr(vX+4*q,4)}, v{eL}, s[{sOUT}:{sOUT+3}], 0 offen offset:{1024*q}{pol(K2_OP)}")
    stamp('e4')
    I(f"s_add_u32 s10, s2, s7")
    I("s_cmp_lg_u32 s10, 0")
    I("s_cbranch_scc1 K2_NOEP")
    I(f"v_mov_b32 v{vP}, {WS_EPOCH}")
    I(f"v_mov_b32 v{vP+1}, s{sEPN}")
    I(f"buffer_store_dword v{vP+1}, v{vP}, s[{sWS}:{sWS+3}], 0 offen sc1")
    L("K2_NOEP")
    if TS == 2 or opt("tsn", 0): I(f"s_mov_b32 s89, s{sN}")
    if TS == 8:
        I(f"s_sub_u32 s94, {opt('spin', 300000)}, s{sSPIN}")
        I(f"s_mul_i32 s94, s94, 100")
        I(f"s_add_u32 s94, s94, s88")
    if TS and WSB:
        I(f"s_sub_u32 s8, s8, {WSB}")
        I("s_subb_u32 s9, s9, 0")
    if TS: I(f"s_mov_b32 s{sW}, s7")
    if TS == 4:
        I("s_mov_b64 exec, -1")
        I(f"s_lshl_b32 s87, s2, 11")
        I(f"s_add_u32 s87, s87, {WS_TS + 0x180000}")
        I(f"s_lshl_b32 s86, s{sW}, 8")
        I("s_add_u32 s87, s87, s86")
        I(f"v_lshl_add_u32 v{vP}, v{lane}, 2, s87")
        I(f"global_store_dword v{vP}, v255, s[8:9]")
    stamp_out(8, 8, sW, 8, 0x100000, vP)
    L("K2_END")
    I("s_endpgm")
    if NT0 > 2:
        for par in range(2):
            L(f"K2_NT{par}")
            I(f"buffer_load_dwordx4 v{vR1}, s[{sEP}:{sEP+3}], 0 offen nt lds")
            I(f"s_branch K2_ND_{par}")
    def spin():
        if opt("slp", 0): I(f"s_sleep {opt('slp', 1)}")
        I(f"s_sub_u32 s{sSPIN}, s{sSPIN}, 1")
        I("s_cbranch_scc1 K2_END")
    for i in range(4):
        L(f"K2_RETRY{i}")
        spin()
        I("s_waitcnt vmcnt(0)")
        for j in range(i, 4):
            I(f"v_bitop3_b32 v{u(0)}, v{vC+4*j+3}, s{sTAG}, v{vTM} bitop3:0x28")
            for dp in ("quad_perm:[1,0,3,2]", "quad_perm:[2,3,0,1]", "row_half_mirror"):
                I("s_nop 1")
                I(f"v_or_b32_dpp v{u(0)}, v{u(0)}, v{u(0)} {dp} row_mask:0xf bank_mask:0xf")
            I(f"v_cmp_ne_u32 vcc, 0, v{u(0)}")
            I("s_and_b64 exec, exec, vcc")
            I(f"s_cbranch_execz K2_RT{i}{j}")
            cload(j)
            L(f"K2_RT{i}{j}")
            I("s_mov_b64 exec, -1")
        I("s_waitcnt vmcnt(0)")
        I(f"s_branch K2_CHK{i}")
    L("K1_EXT")
    I(f"s_mov_b32 s14, 0x0f0f0f0f")
    I(f"s_mov_b32 s15, s14")
    for i in range(4):
        I(f"ds_read_b32 v{oE+i}, v6 offset:{16*LROW*i + 32}")
        I(f"ds_read_b128 {rr(pD+8*i,4)}, v3 offset:{64*LROW*i + 128}")
    I("s_waitcnt lgkmcnt(0)")
    for i in range(4):
        I(f"v_cmp_le_u32 vcc, {33 << 24}, v{oH+i}")
        I(f"v_and_or_b32 v{pD+8*i+3}, v{oE+i}, v15, v{oH+i}")
        I("s_and_b64 exec, vcc, s[14:15]")
        I(f"s_cbranch_execz K1_EX{i}")
        I(f"buffer_store_dwordx4 {rr(pD+8*i,4)}, v4, s[{sST_}:{sST_+3}], s10 offen sc1")
        L(f"K1_EX{i}")
        I("s_mov_b64 exec, -1")
        I(f"s_add_u32 s10, s10, {64*RS}")
    I("s_branch K1_EXTR")
    L("K1_OVF")
    t = vAT
    for i in range(4):
        I(f"v_lshrrev_b32 v{t+i}, 16, v{oA+i}")
        I(f"v_lshrrev_b32 v{t+4}, 18, v{oA+i}")
        I(f"v_sub_u32 v{t+i}, v{t+i}, v{t+4}")
    I(f"v_add_u32 v{t+5}, v{t}, v{t+1}")
    I(f"v_add_u32 v{t+6}, v{t+5}, v{t+2}")
    I(f"v_add_u32 v{t+7}, v{t+6}, v{t+3}")
    I(f"v_mov_b32 v1, v{t+7}")
    wave_scan(1)
    I("s_nop 0")
    I(f"v_sub_u32 v{t+4}, v1, v{t+7}")
    I(f"v_add_u32 v{t+7}, v{t+4}, v{t+6}")
    I(f"v_add_u32 v{t+6}, v{t+4}, v{t+5}")
    I(f"v_add_u32 v{t+5}, v{t+4}, v{t}")
    for i in range(4):
        I(f"v_lshl_or_b32 v{t+4+i}, v{t+i}, 16, v{t+4+i}")
    I("s_waitcnt lgkmcnt(0)")
    I(f"ds_write_b128 v{l16}, {rr(t+4,4)} offset:{P_HDR}")
    for i in range(4): I(f"v_min_u32 v{oH+i}, 255, v{oH+i}")
    I(f"s_lshl_b32 s15, s{sB}, 2")
    I(f"s_add_u32 s15, s15, {WS_HDR}")
    srd(q0, 8, 9, NB*NCH*4, "s15")
    I(f"v_lshlrev_b32 v1, 12, v{lane}")
    for i in range(4):
        I(f"buffer_store_dword v{t+4+i}, v1, s[{q0}:{q0+3}], 0 offen offset:{1024*i} sc1")
    I(f"s_add_u32 s15, s13, {WS_RECS}")
    srd(q0, 8, 9, CH*4, "s15")
    I("s_lshr_b32 s15, s13, 2")
    I(f"s_add_u32 s15, s15, {WS_XB}")
    srd(q1, 8, 9, CH, "s15")
    I(f"v_cndmask_b32 v{pH+6}, v{pH}, v{pH+6}, s[{pm}:{pm+1}]")
    I(f"v_cndmask_b32 v{pK+6}, 0, v{pK+6}, s[{pm}:{pm+1}]")
    for i in range(7):
        I(f"ds_read_u16 v{pA+i}, v{pH+i} offset:{P_HDR - H0}")
    I("s_waitcnt lgkmcnt(0)")
    for i in range(7):
        I(f"v_lshrrev_b32 v1, 2, v{pK+i}")
        I(f"v_sub_u32 v1, v{pK+i}, v1")
        I(f"v_add_u32 v{pA+i}, v{pA+i}, v1")
        I(f"v_cmp_le_u32 vcc, {QCAP}, v{pK+i}")
        I(f"v_lshlrev_b32 v{pB+i}, 2, v{pA+i}")
        I("s_and_saveexec_b64 s[14:15], vcc")
        I(f"s_cbranch_execz K1_OV3_{i}")
        I(f"buffer_store_byte v{xb(i)}, v{pA+i}, s[{q1}:{q1+3}], 0 offen sc1")
        I(f"buffer_store_dword v{pS+i}, v{pB+i}, s[{q0}:{q0+3}], 0 offen sc1")
        L(f"K1_OV3_{i}")
        I("s_mov_b64 exec, -1")
    I("s_waitcnt vmcnt(0)")
    I("s_barrier")
    I("s_branch K1_OUT")
    xd, xa, xk, xrem, xeb, xad, xt = vACC + 44, vACC + 52, vACC + 58, vQ, vQ + 2, vX + 12, vX + 14
    L("K2_XT1")
    I(f"s_mov_b32 s{sXT}, 1")
    I(f"v_cmp_le_u32 vcc, {(QCAP + 1) << 24}, v{u(0)}")
    I(f"v_mov_b32 v{xt}, {FLAG + 4}")
    I("s_cbranch_vccz K2_XT1A")
    I(f"ds_write_b32 v{xt}, v{one}")
    L("K2_XT1A")
    I("s_mov_b32 s10, 0xf0f0f0f0")
    I("s_mov_b32 s11, s10")
    I(f"v_and_b32 v{xt}, 12, v{k4}")
    I(f"v_add_u32 v{xt}, 32, v{xt}")
    I(f"v_and_b32 v{xad}, 64, v{u(1)}")
    I(f"v_mul_u32_u24 v{xad}, 127, v{xad}")
    I(f"v_add_u32 v{xad}, v{xad}, v{u(1)}")
    I(f"v_add_u32 v{xad+1}, 16384, v{xad}")
    I(f"v_mov_b32 v{xt+1}, 0x7ffffff0")
    for g in range(2):
        I(f"v_cndmask_b32 v{xrem+g}, v{vC+8*g+3}, v{vC+8*g+7}, s[10:11]")
        I(f"v_cndmask_b32 v{xeb+g}, v{vEB+2*g}, v{vEB+2*g+1}, s[10:11]")
        I(f"v_cmp_le_u32 vcc, {33 << 24}, v{xrem+g}")
        remain(xrem + g, xrem + g, xt)
        I("s_nop 0")
        I(f"v_cndmask_b32 v{xad+g}, v{xt+1}, v{xad+g}, vcc")
    I(f"s_add_u32 s{sCEL}, s{sCEL}, {WS_EXT}")
    I(f"s_addc_u32 s{sCEL+1}, s{sCEL+1}, 0")
    def xloads2():
        for g in range(2):
            I(f"buffer_load_dwordx4 {rr(xd+4*g,4)}, v{xad+g}, s[{sCEL}:{sCEL+3}], 0 offen sc1")
    xloads2()
    I(f"v_med3_i32 v{xt}, v{xrem}, 0, 3")
    I(f"v_med3_i32 v{xt+1}, v{xrem+1}, 0, 3")
    I(f"v_add_u32 v{xt}, v{xt}, v{xt+1}")
    I(f"v_mov_b32 v{xt+1}, {FLAG}")
    I(f"v_cmpx_lt_u32 vcc, 0, v{xt}")
    I(f"ds_add_u32 v{xt+1}, v{xt}")
    I("s_mov_b64 exec, -1")
    I("s_branch K2_XT1R")
    def xvalid(tag):
        L(f"K2_XV{tag}")
        I("s_mov_b64 s[10:11], 0")
        for g in range(2):
            I(f"v_bitop3_b32 v{xt}, v{xd+4*g+3}, s{sTAG}, v{vTM} bitop3:0x28")
            I(f"v_cmp_ne_u32 s[{sTMP}:{sTMP+1}], 0, v{xt}")
            I(f"v_cmp_gt_u32 vcc, 0x7ffffff0, v{xad+g}")
            I(f"s_and_b64 vcc, vcc, s[{sTMP}:{sTMP+1}]")
            I("s_or_b64 s[10:11], s[10:11], vcc")
        I(f"s_cbranch_scc0 K2_XW{tag}")
        spin()
        xloads2()
        I("s_waitcnt vmcnt(0)")
        I(f"s_branch K2_XV{tag}")
        L(f"K2_XW{tag}")
    L("K2_XT2")
    xvalid("a")
    for g in range(2):
        for j in range(3):
            I(f"v_and_b32 v{xa+3*g+j}, 255, v{xd+4*g+j}")
            I(f"v_lshlrev_b32 v{xa+3*g+j}, 2, v{xa+3*g+j}")
            I(f"ds_read_b32 v{xa+3*g+j}, v{xa+3*g+j} offset:{MAP}")
        I(f"v_and_b32 v{xd+4*g+3}, 0x0f0f0f, v{xd+4*g+3}")
    I("s_waitcnt lgkmcnt(0)")
    for g in range(2):
        for j in range(3):
            i = 3*g + j
            I(f"v_perm_b32 v{xk+i}, v{xd+4*g+3}, v{xd+4*g+j}, s{sSEL+j}")
            I(f"v_lshl_add_u32 v{xk+i}, v{xk+i}, 5, v{xeb+g}")
            I(f"v_cmpx_lt_i32 vcc, {j}, v{xrem+g}")
            I(f"ds_add_rtn_u32 v{xa+i}, v{xa+i}, v{one} offset:{CNT}")
            I("s_mov_b64 exec, -1")
    I("s_waitcnt lgkmcnt(0)")
    for g in range(2):
        for j in range(3):
            i = 3*g + j
            I(f"v_cmpx_lt_i32 vcc, {j}, v{xrem+g}")
            I(f"ds_write2st64_b32 v{xa+i}, v{xd+4*g+j}, v{xk+i} offset0:0 offset1:{(R1-R0)//256}")
            I("s_mov_b64 exec, -1")
    I("s_waitcnt lgkmcnt(0)")
    I("s_branch K2_XT2R")
    L("K2_OVF")
    I(f"s_mov_b32 s{sCUR}, 1")
    I(f"s_mov_b32 s{sST}, 0")
    I(f"s_mov_b32 s{sSKIP}, 0")
    I(f"s_mov_b32 s{sEND}, s{sL}")
    pads(lane, vP, vP+1, vP+2)
    I(f"s_cmp_eq_u32 s{sXT}, 0")
    I("s_cbranch_scc1 K2_PADS0")
    I(f"s_mov_b32 s{sXT}, 0")
    I("s_waitcnt vmcnt(0)")
    xvalid("b")
    I("s_branch K2_PADS0")
    SB = 448
    t0, t1, t2, t3, t4 = vP, vP+1, vP+2, vP+3, vP+4
    L("K2_SLOW")
    I(f"s_add_u32 s{sR0}, s{sR0}, {SB}")
    I(f"s_cmp_lt_u32 s{sR0}, s{sCNT}")
    I("s_cbranch_scc1 K2_BATCH")
    L("K2_FIND")
    I(f"s_cmp_lg_u64 s[{sMSK}:{sMSK+1}], 0")
    I("s_cbranch_scc1 K2_GOT")
    I(f"s_add_u32 s{sCI}, s{sCI}, 1")
    I(f"s_cmp_ge_u32 s{sCI}, 4")
    I("s_cbranch_scc1 K2_EPI")
    I(f"s_mul_i32 s10, s{sB}, {RS}")
    I(f"s_lshl_b32 s11, s{sCI}, 13")
    I("s_add_u32 s10, s10, s11")
    I(f"v_lshlrev_b32 v{vT}, 7, v{lane}")
    I(f"buffer_load_ubyte v{vT}, v{vT}, s[{sWS}:{sWS+3}], s10 offen offset:15 sc1")
    I("s_waitcnt vmcnt(0)")
    I(f"v_cmp_lt_u32 s[{sMSK}:{sMSK+1}], s{sSKIP}, v{vT}")
    I("s_nop 3")
    I("s_branch K2_FIND")
    L("K2_GOT")
    I(f"s_ff1_i32_b64 s10, s[{sMSK}:{sMSK+1}]")
    I(f"s_bitset0_b64 s[{sMSK}:{sMSK+1}], s10")
    I(f"s_lshl_b32 s11, s{sCI}, 6")
    I(f"s_add_u32 s{sCUR}, s10, s11")
    I(f"s_mul_i32 s10, s{sB}, {RS}")
    I(f"s_lshl_b32 s11, s{sCUR}, 7")
    I("s_add_u32 s10, s10, s11")
    I(f"s_lshl_b32 s11, s{sB}, 8")
    I(f"s_add_u32 s11, s11, s{sCUR}")
    I(f"s_lshl_b32 s11, s11, 2")
    I(f"s_add_u32 s11, s11, {WS_HDR}")
    I(f"v_mov_b32 v{t0}, 0")
    I(f"buffer_load_ubyte v{t1}, v{t0}, s[{sWS}:{sWS+3}], s10 offen offset:15 sc1")
    I(f"buffer_load_dword v{t2}, v{t0}, s[{sWS}:{sWS+3}], s11 offen sc1")
    I("s_waitcnt vmcnt(0)")
    I(f"v_readfirstlane_b32 s10, v{t1}")
    I(f"v_readfirstlane_b32 s11, v{t2}")
    I("s_nop 3")
    I(f"s_and_b32 s{sST}, s11, 0xffff")
    I("s_lshr_b32 s11, s11, 16")
    I(f"s_lshr_b32 s{sCNT}, s10, 2")
    I(f"s_sub_u32 s{sCNT}, s10, s{sCNT}")
    I(f"s_cmp_gt_u32 s10, {QCAP}")
    I(f"s_cselect_b32 s{sCNT}, s11, s{sCNT}")
    I(f"s_lshr_b32 s10, s{sSKIP}, 2")
    I(f"s_sub_u32 s{sR0}, s{sSKIP}, s10")
    L("K2_BATCH")
    I("s_barrier")
    I(f"v_and_b32 v{t0}, 7, v{lane}")
    I(f"v_mul_u32_u24 v{t1}, {LCAP*4}, v{t0}")
    I(f"v_add_u32 v{t1}, {R0}, v{t1}")
    I(f"v_lshlrev_b32 v{t0}, 2, v{t0}")
    I(f"ds_write_b32 v{t0}, v{t1} offset:{CNT}")
    I(f"v_add_u32 v{t0}, s{sR0}, v{tid}")
    I(f"s_mul_i32 s10, s{sB}, {RS}")
    I(f"s_lshl_b32 s11, s{sCUR}, 7")
    I("s_add_u32 s10, s10, s11")
    I(f"v_mul_u32_u24 v{t2}, {KQ}, v{t0}")
    I(f"v_lshrrev_b32 v{t2}, 16, v{t2}")
    I(f"v_lshl_add_u32 v{t1}, v{t2}, 2, s10")
    I(f"v_add_u32 v{t3}, {WS_EXT - 128}, v{t1}")
    I(f"v_cmp_lt_u32 vcc, 31, v{t2}")
    I(f"s_mul_i32 s11, s{sCUR}, {CH}")
    I(f"s_add_u32 s11, s11, s{sST}")
    I(f"v_cndmask_b32 v{t1}, v{t1}, v{t3}, vcc")
    I(f"v_or_b32 v{t3}, 12, v{t1}")
    I(f"v_and_b32 v{t4}, 3, v{t2}")
    I(f"v_add_u32 v{t3}, v{t3}, v{t4}")
    I(f"v_cmp_le_u32 vcc, {QCAP}, v{t2}")
    I(f"v_add_u32 v{t2}, s11, v{t0}")
    I(f"v_add_u32 v{t4}, {WS_XB}, v{t2}")
    I(f"v_cndmask_b32 v{t3}, v{t3}, v{t4}, vcc")
    I(f"v_lshlrev_b32 v{t2}, 2, v{t2}")
    I(f"v_add_u32 v{t2}, {WS_RECS}, v{t2}")
    I(f"v_cndmask_b32 v{t1}, v{t1}, v{t2}, vcc")
    I(f"s_add_u32 s10, s{sR0}, {SB}")
    I(f"s_min_u32 s10, s10, s{sCNT}")
    I(f"v_cmp_gt_u32 vcc, s10, v{t0}")
    I(f"v_mov_b32 v{t2}, 0x7ffffff0")
    I(f"s_mul_i32 s{sTMP}, s{sCUR}, {CH*32}")
    I(f"v_cndmask_b32 v{t1}, v{t2}, v{t1}, vcc")
    I(f"v_cndmask_b32 v{t3}, v{t2}, v{t3}, vcc")
    I(f"buffer_load_dword v{t1}, v{t1}, s[{sWS}:{sWS+3}], 0 offen sc1")
    I(f"buffer_load_ubyte v{t3}, v{t3}, s[{sWS}:{sWS+3}], 0 offen sc1")
    I("s_waitcnt lgkmcnt(0)")
    I("s_barrier")
    I("s_and_saveexec_b64 s[10:11], vcc")
    I("s_waitcnt vmcnt(0)")
    I(f"v_and_b32 v{t0}, 255, v{t1}")
    I(f"v_lshlrev_b32 v{t0}, 2, v{t0}")
    I(f"ds_read_b32 v{t0}, v{t0} offset:{MAP}")
    I(f"v_bfe_u32 v{t2}, v{t1}, 8, 8")
    I(f"v_and_b32 v{t3}, 15, v{t3}")
    I(f"v_lshl_or_b32 v{t3}, v{t3}, 8, v{t2}")
    I(f"v_mov_b32 v{t2}, 4")
    I(f"v_lshl_add_u32 v{t3}, v{t3}, 5, s{sTMP}")
    I("s_waitcnt lgkmcnt(0)")
    I(f"ds_add_rtn_u32 v{t0}, v{t0}, v{t2} offset:{CNT}")
    I("s_waitcnt lgkmcnt(0)")
    I(f"ds_write2st64_b32 v{t0}, v{t1}, v{t3} offset0:0 offset1:{(R1-R0)//256}")
    I("s_mov_b64 exec, -1")
    I("s_waitcnt lgkmcnt(0)")
    I("s_barrier")
    I(f"s_lshl_b32 s10, s{sW}, 2")
    I(f"v_mov_b32 v{t0}, s10")
    I(f"ds_read_b32 v{t0}, v{t0} offset:{CNT}")
    for i in range(8): I(f"v_mov_b32 v{vT2+i}, 0")
    listaddr(lane, t1, t2)
    I("s_waitcnt lgkmcnt(0)")
    I(f"v_readfirstlane_b32 s{sEND}, v{t0}")
    I("s_nop 3")
    pads(lane, t0, t1, t2)
    L("K2_LAST")
    I("s_branch K2_GO")

def regs_of(tok):
    tok = tok.strip()
    m = re.fullmatch(r"v\[(\d+):(\d+)\]", tok)
    if m: return list(range(int(m.group(1)), int(m.group(2)) + 1))
    m = re.fullmatch(r"v(\d+)", tok)
    if m: return [int(m.group(1))]
    return []
def parse(ins):
    op, _, rest = ins.partition(" ")
    ops = [o.strip().split(" ")[0] for o in rest.split(",")] if rest else []
    if op.startswith("v_mfma"):
        return "mfma", regs_of(ops[0]), regs_of(ops[1]) + regs_of(ops[2]), regs_of(ops[3])
    if op.startswith("v_smfmac"):
        return "mfma", regs_of(ops[0]), regs_of(ops[1]) + regs_of(ops[2]) + regs_of(ops[3]), regs_of(ops[0])
    if op.startswith("v_"):
        k = "trans" if op in ("v_exp_f32", "v_rcp_f32") else "valu"
        return k, regs_of(ops[0]), sum((regs_of(o) for o in ops[1:]), []), []
    if op.startswith("ds_read"):
        return "ds", regs_of(ops[0]), regs_of(ops[1]), []
    if op.startswith("buffer_load"):
        return "vm", [], regs_of(ops[0]) + regs_of(ops[1]), []
    return "other", [], [], []
def check_body(body):
    seq = [b for b in body if not b.endswith(":")]
    for skip_dma in (False, True):
        s2 = []
        sk = False
        for b in body:
            if skip_dma and b.startswith("s_cbranch_scc0 K2_ND"):
                s2.append(b); sk = True; continue
            if b.startswith("K2_ND"): sk = False
            if b.endswith(":") or sk: continue
            s2.append(b)
        seq = s2 * 3
        last = {}
        lastc = {}
        pend = []
        for i, ins in enumerate(seq):
            k, d, s, c = parse(ins)
            m = re.search(r"lgkmcnt\((\d+)\)", ins)
            if m:
                n = int(m.group(1))
                while len(pend) > n: pend.pop(0)
            pr = set(sum(pend, []))
            for r in d + s + c:
                assert r not in pr or i < len(s2), f"pending LDS reg v{r} used by {ins} @{i}"
            for r in s + c + d:
                if r not in last: continue
                pk, pi = last[r]; dist = i - pi - 1
                if pk == "mfma":
                    if k == "mfma" and r in c and r not in s: need = 0
                    elif k == "mfma" and r in d and r not in s: need = 0
                    else: need = 12
                elif pk in ("valu", "trans") and k == "mfma" and r in s + c: need = 2
                elif pk == "trans" and k in ("valu", "mfma", "ds", "vm") and r in s: need = 1
                else: need = 0
                assert dist >= need, f"hazard {pk}->{k} v{r} dist {dist} need {need}: {ins} @{i}"
            if k in ("valu", "trans"):
                for r in d:
                    if r in lastc: assert i - lastc[r] - 1 >= 7, f"srcC WAR {ins}"
            for r in c: lastc[r] = i
            for r in d: last[r] = (k, i)
            if k == "ds":
                pend.append(d); assert len(pend) <= 15

hdr = open("/code/" + NAME + ".s.ref").read().split("\n")
for l in hdr:
    if l.startswith("; Override"): break
    out.append(l)
LEAK = opt("leak", "")
if LEAK:
    out.append(f"; @launch kernel={KN} grid=(256,1,1) block=(512,1,1) lds={K2_LDS}")
    out.append("; @launch kernel=spin_kernel grid=(1,1,1) block=(64,1,1) lds=0")
else: out.append(f"; @launch grid=(256,1,1) block=(512,1,1) lds={K2_LDS}")
emit('.amdgcn_target "amdgcn-amd-amdhsa--gfx950"\n.text')
k2()
KL = [(KN, 256, 102)]
if LEAK:
    kind, k = LEAK[:3], int(LEAK[3:])
    emit(".globl spin_kernel\n.p2align 8\n.type spin_kernel,@function\nspin_kernel:")
    I("s_memrealtime s[12:13]")
    I("s_cmp_lg_u32 s2, 0")
    I("s_cbranch_scc1 SP_END")
    I("s_load_dwordx2 s[4:5], s[0:1], 88")
    I("s_waitcnt lgkmcnt(0)")
    I(f"s_add_u32 s4, s4, {WS_TS + 0x100000}")
    I("s_addc_u32 s5, s5, 0")
    I("v_lshlrev_b32 v1, 5, v0")
    for j in range(31):
        I(f"global_load_dword v{2+j}, v1, s[4:5]")
        I(f"global_load_dword v{34+j}, v1, s[4:5] offset:{4*(k%8)}")
        I("v_add_u32 v1, 2048, v1")
    I("s_waitcnt vmcnt(0)")
    I("v_readfirstlane_b32 s6, v2")
    I("s_nop 1")
    I("s_sub_u32 s6, s6, 1000")
    for j in range(31):
        I(f"v_subrev_u32 v{2+j}, s6, v{2+j}")
        I(f"v_subrev_u32 v{34+j}, s6, v{34+j}")
    if kind == "cnt":
        for j in range(31):
            I(f"v_cmp_lt_u32 vcc, {1000 + opt('thr', 550)}, v{34+j}")
            I("s_nop 1")
            I(f"v_cndmask_b32 v{34+j}, 0, 1, vcc")
            I(f"v_mov_b32 v{2+j}, 0")
    op = {"max": "max_u32", "min": "min_u32", "avg": "add_u32", "now": "max_u32", "cnt": "add_u32"}[kind]
    for j in range(1, 31):
        I(f"v_min_u32 v2, v2, v{2+j}")
        I(f"v_{op} v34, v34, v{34+j}")
    I("s_nop 1")
    I("v_readlane_b32 s8, v2, 0")
    I("v_readlane_b32 s9, v34, 0")
    for l in range(1, 64):
        I(f"v_readlane_b32 s10, v2, {l}")
        I(f"v_readlane_b32 s11, v34, {l}")
        I("s_min_u32 s8, s8, s10")
        I(f"s_{op} s9, s9, s11")
    if kind == "avg":
        I(f"s_mul_hi_u32 s9, s9, {(1 << 32) // (31*64)}")
    if kind == "now":
        I("s_sub_u32 s8, s12, s6")
        I("s_sub_u32 s6, s8, s9")
    else: I("s_sub_u32 s6, s9, s8")
    I("s_lshl_b32 s6, s6, 2")
    I("s_min_u32 s6, s6, 30000")
    I("s_memrealtime s[8:9]")
    I("s_waitcnt lgkmcnt(0)")
    L("SP_L")
    I("s_memrealtime s[10:11]")
    I("s_waitcnt lgkmcnt(0)")
    I("s_sub_u32 s7, s10, s8")
    I("s_cmp_lt_u32 s7, s6")
    I("s_cbranch_scc1 SP_L")
    L("SP_END")
    I("s_endpgm")
    KL.append(("spin_kernel", 72, 16))
emit('.section .rodata,"a"')
for name, vg, sg in KL:
    emit(f""".p2align 6
.amdhsa_kernel {name}
  .amdhsa_next_free_vgpr {vg}
  .amdhsa_next_free_sgpr {sg}
  .amdhsa_accum_offset {vg}
  .amdhsa_group_segment_fixed_size 0
  .amdhsa_kernarg_size 96
  .amdhsa_user_sgpr_count 2
  .amdhsa_user_sgpr_kernarg_segment_ptr 1
  .amdhsa_system_sgpr_workgroup_id_x 1
.end_amdhsa_kernel""")
path = sys.argv[1] if len(sys.argv) > 1 else "/code/" + NAME + ".s"
open(path, "w").write("\n".join(out) + "\n")
print("wrote", path, len(out), "lines; lds", K2_LDS)
```

```python
import sys, re, math

NAME = "standalone__edge_featured_mpnn_gatedgcn__graph"
OPT = dict(kv.split("=") for kv in sys.argv[2:])
def opt(k, d):
    v = OPT.get(k)
    if v is None: return d
    return type(d)(v)

N, E = 50000, 800000
NCH, CH = 256, 3125
NB, BN = 256, 196
CELLB = 128
RS = 257 * CELLB
WS_EXT = NB * RS
QCAP = 48
KQ = 87382
LROW = 4 * (QCAP + 4)
WS_RECS = 0x1100000
WS_XB = 0x1500000
WS_HDR = 0x1600000
WS_EPOCH = 0x1700000
WS_USED = WS_EPOCH + 128
WI_U, WI_B, WI_V, WI_A, WI_C = 0, 8192, 16384, 24576, 32768
TMASK = 0x00f0f0f0
T0 = opt("t0", 12500)
LPH = (N - T0 + 2) // 3
SOFF = LPH - T0
PHM = (1 << 30) // LPH
assert 0 <= SOFF and N + SOFF <= 65536 and ((N - 1 + SOFF) * PHM) >> 30 <= 3
LOG2E = 1.4426950408889634
import struct
def f2u(f): return struct.unpack("<I", struct.pack("<f", f))[0]

out = []
def emit(s=""):
    for l in s.strip("\n").split("\n"):
        out.append(l.rstrip())
def I(s): out.append("    " + s)
def L(s): out.append(s + ":")
def C(s): out.append("    ; " + s)

def srd(d, lo, hi, size, add=None):
    if add is None:
        I(f"s_mov_b32 s{d}, s{lo}")
        I(f"s_mov_b32 s{d+1}, s{hi}")
    else:
        I(f"s_add_u32 s{d}, s{lo}, {add}")
        I(f"s_addc_u32 s{d+1}, s{hi}, 0")
    I(f"s_mov_b32 s{d+2}, {size}")
    I(f"s_mov_b32 s{d+3}, 0x20000")

def wave_scan(v, fill=None, half=False):
    def gap():
        if fill and len(fill) >= 2:
            I(fill.pop(0)); I(fill.pop(0))
        else: I("s_nop 1")
    for sh in (1, 2, 4, 8):
        gap()
        I(f"v_add_u32_dpp v{v}, v{v}, v{v} row_shr:{sh} row_mask:0xf bank_mask:0xf bound_ctrl:0")
    gap()
    I(f"v_add_u32_dpp v{v}, v{v}, v{v} row_bcast:15 row_mask:0xa bank_mask:0xf")
    if half: return
    gap()
    I(f"v_add_u32_dpp v{v}, v{v}, v{v} row_bcast:31 row_mask:0xc bank_mask:0xf")

TS = opt("ts", 0)
WS_TS = 0x3000000
SMAP = {1: {0: 0, 'd': 1, 'i': 2, 'w': 3, 2: 4, 5: 5, 6: 6, 7: 7},
        5: {0: 0, 'w': 1, 2: 2, 'a': 3, 'b': 4, 'c': 5, 3: 6, 7: 7},
        6: {0: 0, 'p': 1, 'q': 2, 'd': 3, 'i': 4, 'o': 5, 'k': 6, 7: 7},
        8: {0: 0, 'i': 1, 'w': 2, 1: 3, 2: 4, 3: 5, 7: 7},
        10: {0: 0, 'd': 1, 'i': 2, 'o': 3, 'A': 4, 'w': 5, 2: 6, 7: 7},
        12: {0: 0, 'T': 1, 6: 2, 'e1': 3, 'e2': 4, 'e3': 5, 'e4': 6, 7: 7},
        11: {0: 0, 2: 1, 'b': 2, 'c': 3, 3: 4, 5: 5, 'L': 6, 7: 7},
        9: {0: 0, 'q': 1, 'd': 2, 'i': 3, 'w': 4, 2: 5, 3: 6, 7: 7},
        7: {0: 0, 'k': 1, 'w': 2, 1: 3, 's': 4, 2: 5, 3: 6, 7: 7}}
def stamp(i):
    if TS in SMAP:
        i = SMAP[TS].get(i)
        if i is None: return
    elif isinstance(i, str): return
    if TS == 3:
        if i not in (0, 5, 6, 7): return
        I("s_memtime s[98:99]")
        I("s_waitcnt lgkmcnt(0)")
        I(f"s_mov_b32 s{88+{5:1,6:2,0:3,7:4}[i]}, s98")
    if TS:
        I("s_memrealtime s[98:99]" if TS != 2 else "s_memtime s[98:99]")
        I("s_waitcnt lgkmcnt(0)")
        I(f"s_mov_b32 s{88+i}, s98")
def stamp_out(n, wslo, swave, nw, off, v):
    if not TS: return
    I("s_waitcnt vmcnt(0)")
    stamp(7)
    I("s_mov_b64 exec, 1")
    I(f"s_mul_i32 s87, s2, {nw}")
    I(f"s_add_u32 s87, s87, s{swave}")
    I("s_lshl_b32 s87, s87, 5")
    I(f"s_add_u32 s87, s87, {WS_TS + off}")
    I(f"v_mov_b32 v{v}, s87")
    for i in range(n):
        I(f"v_mov_b32 v{v+1}, s{88+i}")
        I(f"global_store_dword v{v}, v{v+1}, s[{wslo}:{wslo+1}] offset:{4*i}")
K1_LD = opt("k1ld", "nt")
def pol(p): return (" " + p.replace("_", " ")) if p else ""

SM1 = opt("sm1", 1)
TAB, ZROW, CNT, FLAG, HIST, MAP = 0, 2048, 2112, 2176, 2304, 6400
T1B = 7424
LCAP = 672
XMAX = 64
LMAX = LCAP - 128
R0 = T1B + 2304
R1 = R0 + 8 * LCAP * 4
assert R1 % 256 == 0 and R0 % 256 == 0
WL = R0
WU = R1 + 8 * LCAP * 4
WA = WU + 8192
XO = WA + 8192
STG = XO + 8 * 4160
SLOT = 5184
WST = SLOT
IMG = 91136
assert IMG >= XO and STG + 8 * WST <= IMG + 320 * LROW
K2_LDS = IMG + 320 * LROW
assert K2_LDS <= 163840, K2_LDS

vWB, vWV, vWC, vAT = 0, 32, 64, 72
vACC = 88
vX, vE, vT1, vT2 = 152, 168, 172, 180
vP, vQ, vR = 188, 204, 220
vQD = 236
vR1 = 240
vCP, vCH, vAX, vAE, vC1, vC2, vARX, vART, vARP = 241, 242, 243, 244, 245, 246, 247, 248, 249
vL1 = 250
vARE = 251
vT = 252
DEN = lambda ft: vACC + 32 * ft
NUM = lambda ft: vACC + 32 * ft + 16
def rr(a, n): return f"v[{a}:{a+n-1}]"
def mfma(d, a, b, c=None):
    return f"v_mfma_f32_32x32x16_bf16 {rr(d,16)}, {rr(a,4)}, {rr(b,4)}, " + ("0" if c is None else rr(c, 16))

K2_XP = opt("k2x", "")
K2_EP = opt("k2e", "")
K2_CP = opt("k2c", "")
K2_OP = opt("k2o", "sc1")

sW, sB = 3, 12
sX, sEP, sWS, sOUT = 16, 20, 24, 28
sCEL, sWI = 32, 36
sM = 40
sT, sN, sSTG, s128, sL, sSKIP, sMORE = 72, 73, 74, 75, 76, 77, 78
sCI, sCUR, sR0, sCNT, sST, sMSK = 79, 80, 81, 82, 83, 84
sTMP = 86
sWIN = 96

NT0 = opt('nt0', 0)
def dma_tile(par, t=None, uid=None):
    r = []
    for i in range(4):
        r.append(f"s_add_u32 m0, s{sSTG}, {par*SLOT + i*1040}")
        r.append(f"v_mad_u32_u16 v{vQD+i}, v{vQD+i}, s{s128}, v{vCP} op_sel:[1,0,0,0]")
        r.append(f"buffer_load_dwordx4 v{vQD+i}, s[{sX}:{sX+3}], 0 offen{pol(K2_XP)} lds")
    r.append(f"s_add_u32 m0, s{sSTG}, {par*SLOT + 4160}")
    r.append(f"v_add_u32 v{vR1}, v{vR1}, v{vCH}")
    NTA = opt("nta", 0)
    if NTA:
        r += [f"v_cmp_gt_u32 vcc, {E * 32 * NTA // 100 // 128 * 128}, v{vR1}", "s_mov_b64 exec, vcc",
              f"buffer_load_dwordx4 v{vR1}, s[{sEP}:{sEP+3}], 0 offen lds", "s_not_b64 exec, vcc",
              f"buffer_load_dwordx4 v{vR1}, s[{sEP}:{sEP+3}], 0 offen nt lds", "s_mov_b64 exec, -1"]
    elif t is not None or NT0 <= 2:
        r.append(f"buffer_load_dwordx4 v{vR1}, s[{sEP}:{sEP+3}], 0 offen{pol('nt' if t is not None and t < NT0 else K2_EP)} lds")
    else:
        r += [f"s_cmp_lt_u32 s{sT}, {NT0 - 1}", f"s_cbranch_scc1 K2_NT{uid}",
              f"buffer_load_dwordx4 v{vR1}, s[{sEP}:{sEP+3}], 0 offen{pol(K2_EP)} lds"]
    return r

def valu_stream(G, H, n=16):
    s = []
    ex = [(f"v_exp_f32 v{G+i}, v{G+i}", 8) for i in range(n)]
    ad = [(f"v_add_f32 v{G+i}, 1.0, v{G+i}", 4) for i in range(n)]
    rc = [(f"v_rcp_f32 v{G+i}, v{G+i}", 8) for i in range(n)]
    mu = [(f"v_mul_f32 v{H+i}, v{G+i}, v{H+i}", 4) for i in range(n)]
    for i in range(n + 4):
        if i < n: s.append(ex[i])
        if 0 <= i - 2 < n: s.append(ad[i-2])
        if 0 <= i - 4 < n: s.append(rc[i-4])
    return s + mu

def interleave(valu, mf, extra, pos, spacing=opt('sp', 28)):
    res = []
    cum = 0; k = 0
    for ins, c in valu:
        while k < len(mf) and cum >= pos[k] * spacing:
            res.extend(extra.get(('b', k), []))
            res.append(mf[k])
            res.extend(extra.get(('a', k), []))
            k += 1
        res.append(ins); cum += c
    assert k == len(mf)
    return res

def g_mfmas(D, ft):
    m = [mfma(D, vE, vWC + 4*ft)]
    if SM1:
        m += [mfma(D, vX + 4*q, vWB + 16*ft + 4*q, D) for q in range(4)]
        m += [f"v_smfmac_f32_32x32x32_bf16 {rr(D,16)}, {rr(vT1,4)}, {rr(vAT+8*ft,8)}, v{vT1+4}"]
        return m
    m += [mfma(D, vT1 + 4*s, vAT + 8*ft + 4*s, D) for s in range(2)]
    m += [mfma(D, vX + 4*q, vWB + 16*ft + 4*q, D) for q in range(4)]
    return m
def h_mfmas(D, ft):
    return [mfma(D, vX + 4*q, vWV + 16*ft + 4*q, None if q == 0 else D) for q in range(4)]
vIX = vT1 + 5
def s_mfmas(acc, src):
    return [f"v_smfmac_f32_32x32x32_bf16 {rr(acc,16)}, {rr(vT2+4*s,4)}, {rr(src+8*s,8)}, v{vIX}" for s in range(2)]
def t1_reads():
    return [f"ds_read_b128 {rr(vT1,4)}, v{vL1} offset:{T1B}", f"ds_read_b32 v{vT1+4}, v{vL1} offset:{T1B+16}"]

ORD = opt("ord", "n0 n1 e h0 h1 a h2 h3 x0 x1 x2 x3 d0 d1").replace("_", " ").split()
POS = [float(x) / 28 for x in opt("pos", "0_27_54_81_108_135_162_189_216_243_270_297_328_356").split("_")]
def phase_ops(G, Gn, ft):
    n = s_mfmas(NUM(1-ft), vQ); d = s_mfmas(DEN(ft), G); h = h_mfmas(vQ, ft); g = g_mfmas(Gn, 1-ft)
    m = {"n0": n[0], "n1": n[1], "d0": d[0], "d1": d[1], "e": g[0], "a": g[5]}
    for q in range(4): m[f"h{q}"] = h[q]; m[f"x{q}"] = g[1+q]
    return [m[k] for k in ORD]
K = lambda k: ORD.index(k)
def phaseA(par):
    o = par * 128
    ex = {}
    ex[('a', K("n0"))] = [f"ds_read_u8 v{vQD+u}, v{vART} offset:{o + 64*(u>>1) + 16*(u&1)}" for u in range(4)] + \
                         [f"ds_read_u8 v{vL1}, v{vARP} offset:{o + 128}"]
    ex[('a', K("h1"))] = ["s_waitcnt lgkmcnt(0)"] + [f"v_lshl_add_u32 v{vQD+u}, v{vQD+u}, 6, v{vC2}" for u in range(4)] + \
                         [f"v_lshl_add_u32 v{vL1}, v{vL1}, 6, v{vC1}"]
    ex[('a', K("a"))] = [f"ds_read_b64_tr_b16 v[{vT2+2*u}:{vT2+2*u+1}], v{vQD+u}" for u in range(4)] + t1_reads()
    ex[('a', K("x0"))] = [f"ds_read_b128 {rr(vQD,4)}, v{vARX} offset:{o + 2*128}",
                          f"ds_read_b32 v{vR1}, v{vARE} offset:{o + 2*128}",
                          f"s_add_u32 s{sT}, s{sT}, 1"]
    ex[('b', K("d0"))] = ["s_waitcnt lgkmcnt(0)"]
    return interleave(valu_stream(vP, vQ), phase_ops(vP, vR, 0), ex, POS)

def phaseB(par):
    ex = {}
    ex[('a', K("n0"))] = ["s_waitcnt vmcnt(0)", f"ds_read_b128 {rr(vE,4)}, v{vAE}"]
    if TS == 4:
        ex[('a', K("n0"))] = ["s_memtime s[94:95]", "s_waitcnt vmcnt(0) lgkmcnt(0)", "s_memtime s[98:99]", "s_waitcnt lgkmcnt(0)", "s_sub_u32 s98, s98, s94",
                              "s_add_u32 m0, s72, 15", "s_nop 0", "v_writelane_b32 v255, s98, m0", f"ds_read_b128 {rr(vE,4)}, v{vAE}"]
    for q in range(4):
        ex[('a', K(f"h{q}"))] = [f"ds_read_b128 {rr(vX+4*q,4)}, v{vAX} offset:{16*q}"]
    ex[('b', K("e"))] = [f"s_waitcnt lgkmcnt({sum(K(f'h{q}') < K('e') for q in range(4))})"]
    for q in range(4): ex[('b', K(f"x{q}"))] = [f"s_waitcnt lgkmcnt({sum(K(f'h{p}') < K(f'x{q}') for p in range(q+1, 4))})"]
    dk = opt("dk", "x3")
    ex[('a', K(dk))] = ([] if dk == "x3" or K(dk) > K("x3") else ["s_waitcnt lgkmcnt(0)"]) + \
                       [f"s_cmp_lt_i32 s{sT}, s{sN1}", f"s_cbranch_scc0 K2_ND_{par}"] + dma_tile(0, None, par) + [f"K2_ND_{par}:"]
    return interleave(valu_stream(vR, vQ), phase_ops(vR, vP, 1), ex, POS)

def fixnops(seq):
    res = []; last = {}; pos = 0
    for ins in seq:
        k, d, s_, c = parse(ins)
        need = 0
        for r in s_ + c + d:
            if r not in last: continue
            pk, pi, pop = last[r]
            if pk == "mfma":
                if k == "mfma" and r not in s_: w = 0 if pop == ins.split()[0] or r not in c else 10
                else: w = 12
            elif pk in ("valu", "trans") and k == "mfma" and r in s_ + c: w = 2
            elif pk == "trans" and k != "trans" and r in s_: w = 1
            else: w = 0
            need = max(need, w - (pos - pi - 1))
        if need > 0:
            res.append(f"s_nop {need - 1}"); pos += need
        for r in d: last[r] = (k, pos, ins.split()[0])
        res.append(ins); pos += 1
    return res
LANE = 254
eL, eI, eW, eR = vT, vARX, vARP, vARE
sER = sERT = 70
def epi_addr():
    return [f"v_lshlrev_b32 v{eL}, 4, v{LANE}", f"v_and_b32 v{eI}, 31, v{LANE}", f"v_and_b32 v{vC1}, 32, v{LANE}",
            f"v_mul_u32_u24 v{eW}, 144, v{eI}", f"v_lshrrev_b32 v{eR}, 2, v{vC1}", f"v_lshl_add_u32 v{eI}, v{eI}, 6, v{eR}",
            f"v_lshl_add_u32 v{eW}, v{vC1}, 1, v{eW}", f"v_add_u32 v{eW}, s{sSTG}, v{eW}",
            f"v_lshrrev_b32 v{eR}, 3, v{LANE}", f"v_lshl_add_u32 v{eR}, v{eR}, 4, v{eL}", f"v_add_u32 v{eR}, s{sER}, v{eR}"]
def epi_id(): return [f"ds_read2_b64 {rr(vWC+4*s_,4)}, v{eI} offset0:{4*s_} offset1:{4*s_+2}" for s_ in range(2)]
def epi_wu(): return [f"ds_read_b128 {rr(vWB+4*k,4)}, v{eL} offset:{WU + 1024*k}" for k in range(8)]
def epi_x(q): return f"ds_read_b128 {rr(vX+4*q,4)}, v{vOWN} offset:{16*q}"
def last_tile(ng):
    n = 4 * ng
    keep = lambda ks: [k for k in ks if ng > 2 or k not in ("N1", "d1")]
    ops = dict(zip(ORD, phase_ops(vP, vR, 0)))
    oa = keep(ORD)
    ex = {}
    ex[('a', 0)] = [f"ds_read_u8 v{vQD+u}, v{vART} offset:{64*(u>>1) + 16*(u&1)}" for u in range(4)]
    ex[('a', oa.index("h1"))] = ["s_waitcnt lgkmcnt(0)"] + [f"v_lshl_add_u32 v{vQD+u}, v{vQD+u}, 6, v{vC2}" for u in range(4)]
    ex[('a', oa.index("a"))] = [f"ds_read_b64_tr_b16 v[{vT2+2*u}:{vT2+2*u+1}], v{vQD+u}" for u in range(4)]
    ex[('a', 1)] = epi_addr()
    ex[('a', oa.index("x3"))] = epi_id() + epi_wu()
    ex[('b', oa.index("d0"))] = ["s_waitcnt lgkmcnt(10)"]
    pa = [POS[ORD.index(k)] * ng / 4 * (1 if k[0] != "d" or ng > 2 else 1.04) for k in oa]
    a = interleave(valu_stream(vP, vQ, n), [ops[k] for k in oa], ex, pa)
    ops = dict(zip(ORD, phase_ops(vR, vP, 1)))
    ob = ["n0"] + (["n1"] if ng > 2 else []) + ["h0", "h1", "h2", "h3", "d0"] + (["d1"] if ng > 2 else [])
    pb = [x * ng / 4 / 28 for x in ([0, 36, 72, 108, 144, 180, 328, 356] if ng > 2 else [0, 40, 80, 120, 160, 340])]
    ex = {('a', ob.index(f"h{q}")): [epi_x(q)] for q in range(4)}
    b = interleave(valu_stream(vR, vQ, n), [ops[k] for k in ob], ex, pb)
    return fixnops(a + b + s_mfmas(NUM(1), vQ)[:2 if ng > 2 else 1])

sF0, sF1, sEND = 13, 14, 15
sXT = 97
sN1 = 38
sSB = 37
SBK = opt('sbk', 2)
sNUL = 39
sTH = 4
PRIO = opt("prio", 1)

def listaddr(lane, t0, t3):
    I(f"v_lshrrev_b32 v{t0}, 3, v{lane}")
    I(f"v_lshl_add_u32 v{vARX}, v{t0}, 4, s{sL}")
    I(f"v_and_b32 v{t0}, 31, v{lane}")
    I(f"v_lshl_add_u32 v{vARP}, v{t0}, 2, s{sL}")
    I(f"v_lshrrev_b32 v{t3}, 1, v{lane}")
    I(f"v_lshl_add_u32 v{vARE}, v{t3}, 2, s{sL}")
    I(f"v_add_u32 v{vARE}, {R1-R0}, v{vARE}")
    I(f"v_and_b32 v{t0}, 44, v{lane}")
    I(f"v_add_u32 v{vART}, s{sL}, v{t0}")

vOWN = vT + 1
def pads(lane, t0, t1, t2):
    W2 = f"offset0:0 offset1:{(R1-R0)//256}"
    I(f"v_mov_b32 v{t2}, 0xffff0000")
    I(f"v_or_b32 v{t1}, s{sNUL}, v{t2}")
    I(f"v_mov_b32 v{t2}, 0x7fffff00")
    I(f"v_lshl_add_u32 v{t0}, v{lane}, 2, s{sEND}")
    I(f"s_sub_u32 s{sN}, s{sEND}, s{sL}")
    I(f"ds_write2st64_b32 v{t0}, v{t1}, v{t2} {W2}")
    I(f"ds_write2st64_b32 v{t0}, v{t1}, v{t2} offset0:1 offset1:{(R1-R0)//256 + 1}")
    ntiles(False)
def ntiles(sub=True):
    if sub: I(f"s_sub_u32 s{sN}, s{sEND}, s{sL}")
    I(f"s_add_u32 s{sN}, s{sN}, 127")
    I(f"s_lshr_b32 s{sN}, s{sN}, 7")
    I(f"s_sub_i32 s{sN1}, s{sN}, 1")

KN = NAME + "_kernel"
P_HIST, P_HDR = MAP, WU
H0 = 2000
P_EIMG = IMG
P_CIMG = P_EIMG + 64 * LROW
assert P_CIMG + 256 * LROW <= K2_LDS
sTAG, sEPN, sSPIN = 36, 100, 101
def k2():
    emit(f"""
.globl {KN}
.p2align 8
.type {KN},@function
{KN}:""")
    I("s_cmp_ge_u32 s2, 256")
    I("s_cbranch_scc1 K2_END")
    stamp(0)
    KA = sM
    I(f"s_load_dwordx4 s[{KA+4}:{KA+7}], s[0:1], 16")
    I(f"s_load_dwordx2 s[8:9], s[0:1], 88")
    I(f"s_load_dwordx4 s[{KA}:{KA+3}], s[0:1], 0")
    I(f"s_load_dwordx8 s[{KA+8}:{KA+15}], s[0:1], 32")
    I(f"s_load_dwordx4 s[{KA+16}:{KA+19}], s[0:1], 64")
    tid, lane = 255, 254
    CPF = opt("cpf", 192)
    if CPF:
        I(f"s_getpc_b64 s[{sTMP}:{sTMP+1}]")
        L("K2_PC")
        I(f"v_lshlrev_b32 v{vT}, 7, v0")
        I(f"v_min_u32 v{vT}, K2_LAST-K2_PC, v{vT}")
        I(f"v_cmp_gt_u32 vcc, {CPF}, v0")
        I("s_cbranch_vccz K2_NOCPF")
        I(f"global_load_dword v{vT+1}, v{vT}, s[{sTMP}:{sTMP+1}]")
        L("K2_NOCPF")
    vC = vACC
    vA = vACC + 16
    hh = vACC + 28
    vRK = vR
    vMIN = vQ + 8
    vTM = vQ + 10
    u = lambda i: vP + i
    k4, ecb, hda, one, l16 = vE, vE + 1, vE + 2, vE + 3, vT1
    pD, pS, pH, pK, pA, pB, pI, pW = 8, 16, 24, 32, 40, 48, 56, 64
    I(f"v_mov_b32 v{tid}, v0")
    I(f"v_lshrrev_b32 v{u(0)}, 6, v0")
    I(f"v_and_b32 v{lane}, 63, v0")
    I(f"v_readfirstlane_b32 s7, v{u(0)}")
    I("s_and_b32 s10, s2, 7")
    I("s_lshr_b32 s11, s2, 3")
    I("s_lshl_b32 s10, s10, 5")
    I(f"s_add_u32 s{sB}, s10, s11")
    I(f"s_mul_i32 s13, s{sB}, {CH*4}")
    I(f"v_lshlrev_b32 v{u(1)}, 4, v0")
    I(f"v_lshlrev_b32 v1, 3, v0")
    I(f"v_lshlrev_b32 v2, 2, v0")
    I(f"v_mov_b32 v3, 0")
    I(f"v_and_b32 v4, 0x3fc, v2")
    I(f"ds_write_b32 v4, v3 offset:{P_HIST}")
    ASYM = opt("asym", 10)
    I(f"s_and_b32 s10, s7, 3")
    I(f"s_lshr_b32 s{sW}, s7, 2")
    I(f"s_lshl1_add_u32 s{sW}, s10, s{sW}")
    I(f"s_xor_b32 s{sW}, s{sW}, 1")
    I(f"s_movk_i32 s14, 8192")
    I(f"s_movk_i32 s15, 12288")
    I("s_waitcnt lgkmcnt(0)")
    stamp('p')
    WSB = opt("wsb", 0) << 20
    if WSB:
        I(f"s_add_u32 s8, s8, {WSB}")
        I("s_addc_u32 s9, s9, 0")
    vq = []
    def younger(tag): return len(vq) - 1 - max(i for i, t in enumerate(vq) if t == tag)
    q0, q1 = 64, 68
    srd(q0, KA+6, KA+7, CH*4, "s13")
    srd(q1, KA+4, KA+5, CH*4, "s13")
    for r_, q_ in ((pD, q0), (pS, q1)):
        I(f"buffer_load_dwordx4 {rr(r_,4)}, v{u(1)}, s[{q_}:{q_+3}], 0 offen{pol(K1_LD)}")
        I(f"buffer_load_dwordx2 {rr(r_+4,2)}, v1, s[{q_}:{q_+3}], s14 offen{pol(K1_LD)}")
        I(f"buffer_load_dword v{r_+6}, v2, s[{q_}:{q_+3}], s15 offen{pol(K1_LD)}")
        vq += ["D" if r_ == pD else "S"] * 3
        if r_ == pD and opt("db", 1): I("s_barrier")
    I(f"s_add_u32 s10, s8, {WS_EPOCH}")
    I("s_addc_u32 s11, s9, 0")
    I(f"s_load_dword s{sEPN}, s[10:11], 0")
    if not opt("db", 1): I("s_barrier")
    I(f"v_lshrrev_b32 v1, 3, v0")
    I(f"v_lshlrev_b32 v{hda}, 2, v1")
    I(f"v_and_b32 v{u(9)}, 7, v0")
    I(f"v_and_b32 v5, 16, v0")
    I(f"v_lshlrev_b32 v5, 1, v5")
    I(f"v_xor_b32 v5, v5, v{u(1)}")
    I(f"v_lshlrev_b32 v{l16}, 4, v{lane}")
    I(f"v_and_b32 v{vCP}, 16, v{lane}")
    I(f"v_lshlrev_b32 v{vCP}, 2, v{vCP}")
    vXS, vXA = vR + 14, vR + 15
    I(f"v_xor_b32 v{vXS}, v{vCP}, v{l16}")
    I(f"v_and_b32 v{vCP}, 0x70, v{vXS}")
    if SOFF: I(f"v_subrev_u32 v{vCP}, {SOFF * 128}, v{vCP}")
    srd(sX, KA, KA+1, N*128)
    OFF = opt("off", 20)
    def xshared():
        I(f"s_lshr_b32 s10, s{sW}, 1")
        I(f"s_mul_i32 s11, s10, 4160")
        I(f"s_mul_i32 s10, s10, 49")
        I(f"s_mul_i32 s4, s{sB}, {BN}")
        I(f"s_add_u32 s10, s10, s4")
        I(f"s_add_u32 s10, s10, {OFF}")
        I(f"s_lshl_b32 s10, s10, 7")
        I(f"s_bitcmp1_b32 s{sW}, 0")
        I(f"s_cselect_b32 s4, 0, 2048")
        I(f"s_cselect_b32 s6, 0, 2080")
        I(f"s_add_u32 s10, s10, s4")
        I(f"s_add_u32 s11, s11, s6")
        for i in range(2):
            I(f"s_add_u32 m0, s11, {XO + i*1040}")
            I(f"s_add_u32 s4, s10, {i*1024}")
            I(f"buffer_load_dwordx4 v{vXS}, s[{sX}:{sX+3}], s4 offen{pol(opt('xo', ''))} lds"); vq.append("X")
    XE = opt("xe", 0)
    if XE == 1: xshared()
    mark = len(out)
    OFF = opt("off", 20)
    lo0, hi0, lo1, hi1 = sT, sN, sMSK, sMSK + 1
    I(f"s_lshr_b32 s10, s{sW}, 1")
    I(f"s_mul_i32 s10, s10, 49")
    I(f"s_bitcmp1_b32 s{sW}, 0")
    I(f"s_cselect_b32 s{lo0}, {OFF}, -4")
    I(f"s_cselect_b32 s{hi0}, 28, {OFF - 17}")
    I(f"s_cselect_b32 s{lo1}, 45, {OFF}")
    I(f"s_add_i32 s{lo0}, s{lo0}, s10")
    I(f"s_add_i32 s{hi0}, s{hi0}, s10")
    I(f"s_add_i32 s{lo1}, s{lo1}, s10")
    I(f"s_add_i32 s{hi1}, s{lo0}, 32")
    I(f"s_max_i32 s{sWIN}, s{lo0}, 0")
    I(f"s_cmp_eq_u32 s{sW}, 7")
    I(f"s_cselect_b32 s{lo1}, {BN}, s{lo1}")
    I(f"s_cselect_b32 s{hi1}, {BN}, s{hi1}")
    I(f"v_lshrrev_b32 v{u(5)}, 5, v{lane}")
    def wloads():
        srd(q0, KA+10, KA+11, 8192)
        I(f"buffer_load_dwordx4 {rr(pW,4)}, v5, s[{q0}:{q0+3}], 0 offen"); vq.append("B")
        srd(q1, KA+12, KA+13, 2048)
        I(f"buffer_load_dwordx4 {rr(pW+4,4)}, v5, s[{q1}:{q1+3}], 0 offen"); vq.append("B")
        I(f"s_lshl_b32 s10, s7, 10")
        for kp, off in ((KA+8, WI_A), (KA+16, WI_V), (KA+14, WI_U)):
            I(f"s_mov_b32 s{q0}, s{kp}")
            I(f"s_mov_b32 s{q0+1}, s{kp+1}")
            I(f"s_add_u32 m0, s10, {WL + off}")
            I("s_nop 0")
            I(f"buffer_load_dwordx4 v5, s[{q0}:{q0+3}], 0 offen lds"); vq.append("W")
    def xloads():
        I(f"s_mul_i32 s10, s{sB}, {BN}")
        I(f"s_add_u32 s10, s10, s{sWIN}")
        I(f"s_lshl_b32 s10, s10, 7")
        I(f"s_mul_i32 s11, s7, 4160")
        for i in range(4):
            I(f"s_add_u32 m0, s11, {XO + i*1040}")
            I(f"s_add_u32 s{sTMP}, s10, {i*1024}")
            I(f"buffer_load_dwordx4 v{vXS}, s[{sX}:{sX+3}], s{sTMP} offen{pol(opt('xo', ''))} lds")
    srd(sEP, KA+2, KA+3, E*32)
    srd(sOUT, KA+18, KA+19, N*128)
    srd(sWS, 8, 9, WS_USED)
    I(f"v_lshrrev_b32 v{u(6)}, 5, v{tid}")
    I(f"v_and_b32 v{u(7)}, 15, v{tid}")
    I(f"v_cmp_eq_u32 vcc, v{u(6)}, v{u(7)}")
    I(f"v_and_b32 v{u(6)}, 16, v{tid}")
    I(f"v_mov_b32 v{u(7)}, 0x3f80")
    I(f"v_lshlrev_b32 v{u(7)}, v{u(6)}, v{u(7)}")
    I(f"v_cndmask_b32 v{u(7)}, 0, v{u(7)}, vcc")
    I(f"v_lshlrev_b32 v{u(6)}, 2, v{tid}")
    I(f"v_mov_b32 v{u(8)}, 0")
    I(f"ds_write_b32 v{u(6)}, v{u(7)}")
    if SM1:
        I(f"v_bfe_u32 v{u(7)}, v{tid}, 3, 1")
        I(f"v_and_b32 v{u(13)}, 7, v{tid}")
        I(f"v_lshl_add_u32 v{u(7)}, v{u(7)}, 2, v{u(13)}")
        I(f"v_lshrrev_b32 v{u(12)}, 6, v{tid}")
        I(f"v_cmp_eq_u32 vcc, v{u(7)}, v{u(12)}")
        I(f"v_bfe_u32 v{u(12)}, v{tid}, 4, 2")
        I(f"v_mov_b32 v{u(7)}, 0x3f80")
        I(f"v_cndmask_b32 v{u(7)}, 0, v{u(7)}, vcc")
        I(f"v_cmp_lt_u32 vcc, 3, v{u(13)}")
        I(f"v_mul_u32_u24 v{u(12)}, 0x5555, v{u(12)}")
        I(f"v_and_b32 v{u(13)}, 60, v{u(6)}")
        I(f"v_cndmask_b32 v{u(7)}, v{u(7)}, v{u(12)}, vcc")
        I(f"ds_write_b32 v{u(6)}, v{u(7)} offset:{T1B}")
        I(f"ds_write_b32 v{u(13)}, v{u(8)} offset:{T1B + 2048}")
    I(f"ds_write_b32 v{u(6)}, v{u(8)} offset:{ZROW}")
    I(f"ds_write2st64_b32 v{u(6)}, v{u(8)}, v{u(8)} offset0:{HIST//256} offset1:{HIST//256 + 8}")
    I(f"s_movk_i32 s{s128}, 128")
    I(f"s_mul_i32 s{sSTG}, s{sW}, {WST}")
    I(f"s_add_u32 s{sSTG}, s{sSTG}, {STG}")
    I(f"s_movk_i32 s{sSKIP}, {QCAP}")
    I(f"s_add_u32 s{sNUL}, s{sWIN}, 32")
    I(f"s_lshl_b32 s11, s{sWIN}, 6")
    I(f"s_mov_b32 s{sXT}, 0")
    I(f"v_bfe_u32 v{u(6)}, v{lane}, 4, 1")
    I(f"v_and_b32 v{vCH}, 1, v{lane}")
    I(f"v_lshlrev_b32 v{vCH}, 4, v{vCH}")
    I(f"v_lshlrev_b32 v{vC1}, 5, v{u(5)}")
    I(f"v_subrev_u32 v{vC1}, s11, v{vC1}")
    I(f"v_and_b32 v{u(7)}, 3, v{lane}")
    I(f"v_lshlrev_b32 v{u(7)}, 3, v{u(7)}")
    I(f"v_lshl_add_u32 v{vC2}, v{u(6)}, 5, v{u(7)}")
    I(f"v_subrev_u32 v{vC2}, s11, v{vC2}")
    I(f"v_mul_u32_u24 v{u(8)}, 130, v{u(7)}")
    I(f"v_and_b32 v{u(6)}, 28, v{lane}")
    I(f"v_lshl_add_u32 v{u(8)}, v{u(6)}, 5, v{u(8)}")
    I(f"v_bfe_u32 v{u(6)}, v{lane}, 3, 1")
    I(f"v_xor_b32 v{u(6)}, v{u(6)}, v{u(5)}")
    I(f"v_lshl_add_u32 v{u(8)}, v{u(6)}, 6, v{u(8)}")
    I(f"v_add_u32 v{vAX}, s{sSTG}, v{u(8)}")
    I(f"v_and_b32 v{u(6)}, 31, v{lane}")
    I(f"v_lshl_add_u32 v{u(6)}, v{u(6)}, 1, v{u(5)}")
    I(f"v_lshl_add_u32 v{vAE}, v{u(6)}, 4, s{sSTG}")
    I(f"v_add_u32 v{vAE}, 4160, v{vAE}")
    I(f"s_mul_i32 s{sL}, s{sW}, {LCAP*4}")
    I(f"s_add_u32 s{sL}, s{sL}, {R0}")
    listaddr(lane, u(6), u(7))
    def ownaddr(d, lab, t):
        I(f"v_and_b32 v{d}, 31, v{lab}")
        I(f"v_bfe_u32 v{t}, v{d}, 1, 1")
        I(f"v_xor_b32 v{t}, v{t}, v{u(5)}")
        I(f"v_lshlrev_b32 v{t}, 6, v{t}")
        I(f"v_lshl_add_u32 v{t}, v{d}, 7, v{t}")
        I(f"v_lshrrev_b32 v{d}, 3, v{d}")
        I(f"v_lshl_add_u32 v{d}, v{d}, 4, v{t}")
        I(f"v_add_u32 v{d}, s10, v{d}")
    I(f"s_mul_i32 s10, s7, 4160")
    I(f"s_add_u32 s10, s10, {XO}")
    ownaddr(u(14), lane, u(6))
    I(f"v_lshrrev_b32 v{u(6)}, 1, v{lane}")
    I(f"v_xor_b32 v{u(6)}, v{u(6)}, v{lane}")
    I(f"v_and_b32 v{u(6)}, 4, v{u(6)}")
    I(f"v_mul_u32_u24 v{u(6)}, 3, v{u(6)}")
    I(f"v_xor_b32 v{u(6)}, v{u(6)}, v{lane}")
    ownaddr(vXA, u(6), u(7))
    I(f"v_mov_b32 v{vIX}, 0xdddd")
    I(f"v_lshlrev_b32 v{k4}, 2, v{u(9)}")
    vEB = vQ + 4
    I(f"v_mul_u32_u24 v{vEB}, {CH*8}, v{hda}")
    for i in range(1, 4):
        I(f"v_add_u32 v{vEB+i}, {64*i*CH*32}, v{vEB}")
    I(f"v_mov_b32 v{one}, 4")
    I(f"v_mov_b32 v{ecb}, 1")
    I(f"v_and_b32 v{u(11)}, 31, v{lane}")
    I(f"v_add_u32 v{u(11)}, s{sWIN}, v{u(11)}")
    I(f"v_lshlrev_b32 v{u(12)}, 4, v{u(11)}")
    I(f"v_lshl_add_u32 v{u(12)}, v{u(5)}, 3, v{u(12)}")
    for i in range(4): I(f"v_mov_b64 v[{vT2+2*i}:{vT2+2*i+1}], 0")
    I(f"s_lshl_b32 s{sEND}, s{sW}, 2")
    I(f"v_mov_b32 v{vMIN}, s{sEND}")
    I(f"v_lshlrev_b32 v{vMIN+1}, 2, v{u(11)}")
    static = out[mark:]; del out[mark:]
    WLP = opt("wl", 2)
    if WLP == 0: wloads()
    XP_ = opt("xp", 6)
    SP = opt("sp0", 0)
    SPN = opt("spn", 1000)
    if SP:
        out.extend(static[:SPN]); static = static[SPN:]
    c1, c2, c3 = 60, 61, 62
    pm = 78
    pX = 23
    xb = lambda i: (23, 23, 23, 23, 31, 31, 39)[i]
    I(f"s_mov_b32 s{c1}, 85599")
    I(f"s_mov_b32 s{c2}, {-BN & 0xffffffff}")
    I(f"s_movk_i32 s{c3}, {H0}")
    I(f"v_mov_b32 v7, {KQ}")
    I(f"s_mov_b32 s10, {SOFF << 16}")
    I(f"v_lshl_add_u32 v{pI}, v{lane}, 10, s10")
    for i in range(1, 4): I(f"v_add_u32 v{pI+i}, {i << 8}, v{pI}")
    I(f"v_and_b32 v{pI+4}, 127, v{tid}")
    I(f"v_lshl_add_u32 v{pI+4}, v{pI+4}, 9, s10")
    I(f"v_add_u32 v{pI+5}, 256, v{pI+4}")
    I(f"v_lshl_add_u32 v{pI+6}, v{lane}, 8, s10")
    I(f"v_lshrrev_b32 v23, 6, v{tid}")
    I(f"v_lshrrev_b32 v31, 7, v{tid}")
    I(f"v_add_u32 v31, 8, v31")
    I(f"v_mov_b32 v39, 12")
    I(f"v_cmp_gt_u32 s[{pm}:{pm+1}], {CH - 3072}, v{tid}")
    I(f"s_mov_b32 s11, {RS}")
    I(f"v_lshlrev_b32 v3, 4, v{u(9)}")
    I(f"v_mad_u32_u24 v4, v1, s11, v3")
    I(f"v_mul_u32_u24 v6, {LROW // 4}, v1")
    I(f"v_lshl_add_u32 v6, v{u(9)}, 2, v6")
    I(f"v_lshlrev_b32 v3, 2, v6")
    I(f"v_add_u32 v3, {P_CIMG}, v3")
    I(f"v_add_u32 v6, {P_EIMG}, v6")
    I(f"v_mov_b32 v{vTM}, {TMASK:#x}")
    I(f"v_mov_b32 v15, 0x0f0f0f")
    X0 = (LROW // 16) * H0
    sSO = sCI
    def cload(i):
        so = "0" if i == 0 else f"s{sSO+i-1}"
        I(f"buffer_load_dwordx4 {rr(vC+4*i,4)}, v{u(1)}, s[{sCEL}:{sCEL+3}], {so} offen sc1")
    def cloads():
        if opt("dly", 0): I(f"s_sleep {opt('dly', 0)}")
        stamp('w')
        for i in range(4): cload(i); vq.append("C")
    def prod(idx):
        n = len(idx)
        for i in idx: I(f"v_mul_u32_u24 v{pB+i}, s{c1}, v{pD+i}")
        for i in idx: I(f"v_lshrrev_b32 v{pB+i}, 24, v{pB+i}")
        for i in idx:
            I(f"v_lshl_add_u32 v{pH+i}, v{pB+i}, 2, s{c3}")
            I(f"ds_add_rtn_u32 v{pK+i}, v{pH+i}, v7 offset:{P_HIST - H0}")
        for i in idx:
            I(f"v_mad_i32_i24 v{pD+i}, v{pB+i}, s{c2}, v{pD+i}")
            I(f"v_or_b32 v{pD+i}, v{pD+i}, v{pI+i}")
        for j, i in enumerate(idx):
            I(f"s_waitcnt lgkmcnt({n - 1})")
            I(f"v_lshrrev_b32 v{pK+i}, 16, v{pK+i}")
            I(f"v_min_u32 v{pA+i}, {QCAP}, v{pK+i}")
            I(f"v_mad_u32_u24 v{pA+i}, v{pH+i}, {LROW // 16}, v{pA+i}")
            I(f"v_lshlrev_b32 v{pB+i}, 2, v{pA+i}")
            I(f"ds_write_b8 v{pA+i}, v{xb(i)} offset:{P_EIMG - X0}")
    def prod2(idx):
        for i in idx:
            I(f"v_lshl_add_u32 v{pS+i}, v{pS+i}, 16, v{pD+i}")
            I(f"ds_write_b32 v{pB+i}, v{pS+i} offset:{P_CIMG - 4*X0}")
    if WLP == 1: wloads()
    if XE == 2: xshared()
    stamp('q')
    I(f"s_waitcnt vmcnt({younger('D')})")
    stamp('d')
    prod(range(6))
    I(f"s_cmp_lg_u32 s7, 0")
    I("s_cbranch_scc1 K1_NO7")
    I(f"s_mov_b64 exec, s[{pm}:{pm+1}]")
    I("s_waitcnt lgkmcnt(0)")
    prod([6])
    I(f"s_waitcnt vmcnt({younger('S')})")
    prod2([6])
    I("s_mov_b64 exec, -1")
    L("K1_NO7")
    if WLP == 2: wloads()
    if XE == 3: xshared()
    I(f"s_waitcnt vmcnt({younger('S')})")
    prod2(range(6))
    if WLP == 3: wloads()
    I(f"s_lshl_b32 s15, s{sB}, 7")
    sST_ = sCEL
    srd(sST_, 8, 9, 511*RS + CELLB, "s15")
    I("s_waitcnt lgkmcnt(0)")
    I(f"s_add_u32 s{sEPN}, s{sEPN}, 1")
    I(f"s_and_b32 s10, s{sEPN}, 15")
    I(f"s_and_b32 s11, s{sEPN}, 0xf0")
    I(f"s_mul_i32 s{sTAG}, s10, 0x1010")
    I(f"s_lshl_b32 s11, s11, 16")
    I(f"s_or_b32 s{sTAG}, s{sTAG}, s11")
    I(f"s_and_b32 s10, s{sEPN}, 0x700")
    I(f"s_lshl4_add_u32 s10, s10, 0x8000")
    I(f"s_xor_b32 s{sTAG}, s{sTAG}, s10")
    I(f"s_mov_b32 s{sSPIN}, {opt('spin', 300000)}")
    I("s_barrier")
    stamp('i')
    oC, oE, oH, oA = vACC, vACC + 16, vACC + 20, vACC + 24
    I(f"ds_read_b128 {rr(oA,4)}, v{l16} offset:{P_HIST}")
    for i in range(4):
        I(f"ds_read_u16 v{oH+i}, v{hda} offset:{P_HIST + 256*i + 2}")
        I(f"ds_read_b32 v{oE+i}, v6 offset:{16*LROW*i}")
        I(f"ds_read_b128 {rr(oC+4*i,4)}, v3 offset:{64*LROW*i}")
    I("s_waitcnt lgkmcnt(12)")
    I(f"v_max3_u32 v1, v{oA}, v{oA+1}, v{oA+2}")
    I(f"v_max_u32 v1, v1, v{oA+3}")
    I(f"v_cmp_le_u32 vcc, {(QCAP + 1) << 16}, v1")
    I("s_mov_b32 s10, 0")
    I("s_cbranch_vccnz K1_OVF")
    L("K1_OUT")
    for i in range(4):
        r = oC + 4*i
        I(f"s_waitcnt lgkmcnt({9 - 3*i})")
        I(f"v_lshl_or_b32 v{oH+i}, v{oH+i}, 24, s{sTAG}")
        I(f"v_and_or_b32 v{r+3}, v{oE+i}, v15, v{oH+i}")
        I(f"buffer_store_dwordx4 {rr(r,4)}, v4, s[{sST_}:{sST_+3}], s10 offen sc1"); vq.append("O")
        I(f"s_add_u32 s10, s10, {64*RS}")
    I(f"v_max3_u32 v1, v{oH}, v{oH+1}, v{oH+2}")
    I(f"v_max_u32 v1, v1, v{oH+3}")
    I(f"v_cmp_le_u32 vcc, {33 << 24}, v1")
    I("s_cbranch_vccnz K1_EXT")
    L("K1_EXTR")
    if WLP == 4: wloads()
    stamp('o')
    if TS == 10:
        I("s_waitcnt vmcnt(0)")
        stamp('A')
    if opt("bar", 0): I("s_barrier")
    out.extend(static)
    I(f"s_mul_i32 s10, s{sB}, {RS}")
    srd(sCEL, 8, 9, NCH*CELLB, "s10")
    for k in (1, 2, 3):
        I(f"s_movk_i32 s{sSO+k-1}, {64*CELLB*k}")
    CP = opt("cp", 1)
    if CP == 0: cloads()
    I(f"s_mov_b32 s10, {f2u(-LOG2E):#x}")
    I(f"s_waitcnt vmcnt({younger('B')})")
    for i in range(8):
        I(f"v_lshlrev_b32 v{vAT+2*i}, 16, v{pW+i}")
        I(f"v_and_b32 v{vAT+2*i+1}, 0xffff0000, v{pW+i}")
    for i in range(16): I(f"v_mul_f32 v{vAT+i}, s10, v{vAT+i}")
    for i in range(8): I(f"v_cvt_pk_bf16_f32 v{pW+i}, v{vAT+2*i}, v{vAT+2*i+1}")
    I(f"ds_write_b128 v{u(1)}, {rr(pW,4)} offset:{WL + WI_B}")
    I(f"s_cmp_ge_u32 s7, 2")
    I("s_cbranch_scc1 K1_NOWC")
    I(f"ds_write_b128 v{u(1)}, {rr(pW+4,4)} offset:{WL + WI_C}")
    L("K1_NOWC")
    w0, w1, wc0, wc1, xa_ = vT1 + 1, vT1 + 2, vT1 + 3, vT1 + 4, vT
    I(f"v_bfe_u32 v{w0}, v{lane}, 2, 2")
    I(f"v_lshlrev_b32 v{w0}, 7, v{w0}")
    I(f"v_lshl_add_u32 v{w0}, v{vCH}, 2, v{w0}")
    I(f"v_and_b32 v{w1}, 16, v{lane}")
    I(f"v_and_b32 v{wc0}, 2, v{lane}")
    I(f"v_lshl_add_u32 v{w1}, v{wc0}, 2, v{w1}")
    I(f"v_and_b32 v{wc0}, 8, v{lane}")
    I(f"v_lshl_add_u32 v{w1}, v{wc0}, 2, v{w1}")
    I(f"v_add_u32 v{w0}, v{w0}, v{w1}")
    I(f"v_lshl_add_u32 v{wc0}, v{u(5)}, 10, v{w0}")
    I(f"v_lshl_add_u32 v{w0}, v{u(5)}, 12, v{w0}")
    I(f"v_xor_b32 v{w1}, 32, v{w0}")
    I(f"v_xor_b32 v{wc1}, 32, v{wc0}")
    def wtr(reg, img, ft, s_, c=False):
        ad = (wc0, wc1)[ft] if c else (w0, w1)[ft]
        return [f"ds_read_b64_tr_b16 {rr(reg+2*h_,2)}, v{ad} offset:{WL + img + 1024*s_ + 512*h_}" for h_ in range(2)]
    I(f"s_lshl_b32 s10, s7, 10")
    I(f"s_and_b32 s11, s7, 4")
    I(f"s_mul_i32 s11, s11, {8 - 1024}")
    I(f"s_add_u32 s11, s11, s10")
    I(f"v_xor_b32 v{xa_}, s11, v{w0}")
    I(f"s_waitcnt vmcnt({0 if opt('ack', 1) else younger('W')}) lgkmcnt(0)")
    I("s_barrier")
    if CP == 1: cloads()
    for h_ in range(2):
        I(f"ds_read_b64_tr_b16 {rr(vAT+2*h_,2)}, v{xa_} offset:{WL + WI_U + 512*h_}")
        I(f"ds_read_b64_tr_b16 {rr(vAT+4+2*h_,2)}, v{xa_} offset:{WL + WI_A + 512*h_}")
    I(f"v_add_u32 v{xa_}, s10, v{l16}")
    rest = []
    for reg, img in ((vWB, WI_B), (vWC, WI_C), (vWV, WI_V)):
        for ft in range(2):
            if img == WI_C: rest += wtr(vWC + 4*ft, WI_C, ft, 0, True)
            else:
                for s_ in range(4): rest += wtr(reg + 16*ft + 4*s_, img, ft, s_)
    for x_ in rest[:8]: I(x_)
    rest = rest[8:]
    I("s_waitcnt lgkmcnt(8)")
    I(f"ds_write_b128 v{xa_}, {rr(vAT,4)} offset:{WU}")
    I(f"s_mov_b32 s10, {f2u(-LOG2E):#x}")
    for i in range(4):
        I(f"v_lshlrev_b32 v{vAT+8+2*i}, 16, v{vAT+4+i}")
        I(f"v_and_b32 v{vAT+9+2*i}, 0xffff0000, v{vAT+4+i}")
    for i in range(8): I(f"v_mul_f32 v{vAT+8+i}, s10, v{vAT+8+i}")
    for i in range(4): I(f"v_cvt_pk_bf16_f32 v{vAT+4+i}, v{vAT+8+2*i}, v{vAT+9+2*i}")
    I(f"ds_write_b128 v{xa_}, {rr(vAT+4,4)} offset:{WA}")
    QK, QB = opt("qk", 12), 252 * 16
    I(f"v_and_b32 v{u(0)}, 3, v{lane}")
    I(f"v_lshlrev_b32 v{u(2)}, 4, v{u(0)}")
    I(f"v_mul_u32_u24 v{u(0)}, {2*LCAP*4}, v{u(0)}")
    I(f"v_add_u32 v{u(0)}, {LCAP*4}, v{u(0)}")
    I(f"ds_write_b16 v{u(2)}, v{u(0)} offset:{HIST + QB + 2}")
    while rest:
        I("s_waitcnt lgkmcnt(8)")
        for x_ in rest[:6]: I(x_)
        rest = rest[6:]
    stamp('k')
    sPH = 5
    ROT = opt("rot", 1)
    I(f"s_mov_b32 s{sPH}, {64424 if opt('ph', 's') == 'q' else 85899 if ROT else PHM}")
    if ROT:
        assert SOFF == 0
        I(f"s_lshr_b32 s6, s{sB}, 5")
        I(f"s_mul_i32 s6, s6, {32 * BN * 85899}")
        I(f"s_sub_u32 s6, s6, {opt('rof', 0) * 85899}")
    HO = lambda i: 0
    if opt("ph", "s") == "m":
        HO = lambda i: 8 * (i >= 2)
        I(f"s_lshr_b32 s6, s6, 1")
        I(f"s_sub_u32 s6, 0, s6")
        I(f"s_add_u32 s{sPH}, s6, 0x40000000")
        I(f"v_mov_b32 v{u(2)}, 42949")
    if CP == 2:
        if opt("own", -1) >= 0: I(f"s_waitcnt vmcnt({opt('own', -1)})")
        cloads()
    XC = opt("xc", 0)
    if XC == 4: xloads()
    if XC == 2: xshared()
    sSEL = sM + 24
    for j in range(3): I(f"s_mov_b32 s{sSEL+j}, {0x0c0c0001 | (4 + j) << 8:#x}")
    I(f"s_mov_b32 s{sSEL+3}, 0x05040100")
    sQM = [sM + 28, sM + 30, sTMP]
    I(f"s_movk_i32 s4, 1338")
    I(f"s_movk_i32 s13, {QB}")
    I(f"s_movk_i32 s14, {QK * 1338}")
    I("s_waitcnt lgkmcnt(0)")
    I("s_barrier")
    vEO = vX
    SW1 = "dst_sel:DWORD dst_unused:UNUSED_PAD src0_sel:DWORD src1_sel:WORD_1"
    def haddr(d, r):
        return [f"v_mul_u32_u24_sdwa v{d}, s{sPH}, v{r} {SW1}"] + ([f"v_subrev_u32 v{d}, s6, v{d}"] if ROT else []) + [f"v_alignbit_b32 v{d}, v{r}, v{d}, 28", f"v_and_b32 v{d}, 0xffc, v{d}"]
    def remain(d, r, k):
        I(f"v_sub_u32_sdwa v{d}, v{r}, v{k} dst_sel:DWORD dst_unused:UNUSED_PAD src0_sel:BYTE_3 src1_sel:DWORD")
    for i in range(4):
        L(f"K2_CHK{i}")
        I(f"s_waitcnt vmcnt({3 - i + XC})")
        r = vC + 4*i
        I(f"v_bitop3_b32 v{u(0)}, v{r+3}, s{sTAG}, v{vTM} bitop3:0x28")
        I(f"v_cmp_ne_u32 vcc, 0, v{u(0)}")
        remain(u(0), r + 3, k4)
        hs = [haddr(vA+3*i+j, r+j) for j in range(3)]
        PHK = opt("ph", "s")
        if PHK == "e":
            hs = [[f"v_and_b32 v{vA+3*i+j}, 255, v{r+j}", f"v_lshl_add_u32 v{vA+3*i+j}, v{vA+3*i+j}, 4, {4*i}"] for j in range(3)]
        if PHK == "m":
            for j in range(3):
                d_ = vA+3*i+j
                hs[j] = [f"v_mad_u32_u16 v{d_}, v{r+j}, v{u(2)}, s{6 if i < 2 else sPH} op_sel:[1,0,0,0]",
                         f"v_alignbit_b32 v{d_}, v{r+j}, v{d_}, 28", f"v_and_b32 v{d_}, 0xff4, v{d_}"]
        if PHK == "q":
            for j in range(3):
                d_ = vA+3*i+j
                if i == 0: hs[j] = [f"v_and_b32 v{d_}, 255, v{r+j}", f"v_lshlrev_b32 v{d_}, 4, v{d_}"]
                else: hs[j] = [f"v_mul_u32_u24_sdwa v{d_}, s{sPH}, v{r+j} {SW1}", f"v_add_u32 v{d_}, 0x40000000, v{d_}"] + hs[j][-2:]
        for j in range(3): I(hs[j][0])
        I(f"s_cbranch_vccnz K2_RETRY{i}")
        if i == 0: stamp(1)
        for j in range(3):
            m = sM + 2*(3*i+j)
            I(f"v_cmp_lt_i32 s[{m}:{m+1}], {j}, v{u(0)}")
        for st in range(1, len(hs[0])):
            for j in range(3): I(hs[j][st])
        if i == 0:
            qt = hh
            for j in range(3): I(f"v_mul_u32_u24_sdwa v{qt+j}, s4, v{r+j} dst_sel:DWORD dst_unused:UNUSED_PAD src0_sel:DWORD src1_sel:BYTE_0")
            for j in range(3): I(f"v_subrev_u32 v{qt+j}, {30 * 1338}, v{qt+j}")
            for j in range(3): I(f"v_cmp_gt_u16 s[{sQM[j]}:{sQM[j]+1}], s14, v{qt+j}")
            for j in range(3): I(f"v_lshrrev_b32 v{qt+j}, 16, v{qt+j}")
            for j in range(3): I(f"v_lshl_add_u32 v{qt+j}, v{qt+j}, 4, s13")
            for j in range(3): I(f"v_cndmask_b32 v{vA+j}, v{vA+j}, v{qt+j}, s[{sQM[j]}:{sQM[j]+1}]")
        for j in range(3):
            m = sM + 2*(3*i+j)
            I(f"s_mov_b64 exec, s[{m}:{m+1}]")
            I(f"ds_add_rtn_u32 v{vRK+3*i+j}, v{vA+3*i+j}, v{one} offset:{HIST + HO(i)}")
        I("s_mov_b64 exec, -1")
        if i == 0:
            I(f"v_and_b32 v{qt+3}, 0x0f0f0f, v{r+3}")
            for j in range(3):
                I(f"v_perm_b32 v{vEO+j}, v{qt+3}, v{r+j}, s{sSEL+j}")
                I(f"s_and_b64 s[{sQM[j]}:{sQM[j]+1}], s[{sQM[j]}:{sQM[j]+1}], s[{sM+2*j}:{sM+2*j+1}]")
                I(f"v_lshl_add_u32 v{vEO+j}, v{vEO+j}, 5, v{vEB}")
                I(f"s_andn2_b64 s[{sM+2*j}:{sM+2*j+1}], s[{sM+2*j}:{sM+2*j+1}], s[{sQM[j]}:{sQM[j]+1}]")
        if i == 0: I("s_waitcnt lgkmcnt(0)") if opt("qw", 1) == 0 else None
        if i == opt("qw", 1):
            I("s_waitcnt lgkmcnt(0)")
            for j in range(3):
                I(f"v_min_u16 v{qt+j}, {LMAX*4}, v{vRK+j}")
                I(f"v_add_u32_sdwa v{qt+j}, v{qt+j}, v{vRK+j} dst_sel:DWORD dst_unused:UNUSED_PAD src0_sel:WORD_0 src1_sel:WORD_1")
            for j in range(3):
                I(f"s_mov_b64 exec, s[{sQM[j]}:{sQM[j]+1}]")
                I(f"ds_write2st64_b32 v{qt+j}, v{vC+j}, v{vEO+j} offset0:{R0//256} offset1:{R1//256}")
            I("s_mov_b64 exec, -1")
    I(f"v_max3_u32 v{u(0)}, v{vC+3}, v{vC+7}, v{vC+11}")
    I(f"v_max_u32 v{u(0)}, v{u(0)}, v{vC+15}")
    I(f"v_cmp_le_u32 vcc, {33 << 24}, v{u(0)}")
    I("s_cbranch_vccnz K2_XT1")
    L("K2_XT1R")
    fill = []
    for i in range(1, 4):
        fill.append(f"v_and_b32 v{vC+4*i+3}, 0x0f0f0f, v{vC+4*i+3}")
    for i in range(1, 4):
        for j in range(3): fill.append(f"v_perm_b32 v{vEO+3*i+j}, v{vC+4*i+3}, v{vC+4*i+j}, s{sSEL+j}")
    for i in range(1, 4):
        for j in range(3): fill.append(f"v_lshl_add_u32 v{vEO+3*i+j}, v{vEO+3*i+j}, 5, v{vEB+i}")
    I(f"s_lshr_b32 s4, s{sW}, 1")
    I(f"s_add_u32 s4, s4, 60")
    stamp('s')
    I("s_waitcnt lgkmcnt(0)")
    I("s_barrier")
    stamp(2)
    c, p, tot, sc = u(0), u(4), u(8), u(9)
    own, ownn, owna = u(10), u(11), u(12)
    SD = "dst_sel:DWORD dst_unused:UNUSED_PAD src0_sel:WORD_0 src1_sel:WORD_0"
    sQ, sQD = sM + 28, sM + 29
    def first_reads():
        I(f"ds_read_b128 {rr(vQD,4)}, v{vARX}")
        I(f"ds_read_b32 v{vR1}, v{vARE}")
        I(f"ds_read_u8 v{vL1}, v{vARP}")
    I(f"ds_read_b128 {rr(hh+12,4)}, v{l16} offset:{HIST + 3072}")
    first_reads()
    for i in range(3):
        I(f"ds_read_b128 {rr(hh+4*i,4)}, v{l16} offset:{HIST + 1024*i}")
    I(f"ds_read_b64 v[{u(6)}:{u(7)}], v{owna} offset:{HIST}")
    XY = opt("xy", 2)
    if XC == 4: XY = 0
    if not XC and not XE:
        if XY:
            I(f"s_bitcmp1_b32 s{sW}, 0")
            I("s_cbranch_scc0 K2_NOX1")
        xloads()
        L("K2_NOX1")
    def xlate():
        I(f"s_bitcmp1_b32 s{sW}, 0")
        I("s_cbranch_scc1 K2_NOX2")
        xloads()
        L("K2_NOX2")
    I("s_waitcnt lgkmcnt(5)")
    I(f"v_readlane_b32 s{sQ}, v{hh+12}, s4")
    I(fill.pop(0)); I(fill.pop(0))
    I(f"s_and_b32 s{sQ}, s{sQ}, 0xffff")
    I(f"s_bitcmp1_b32 s{sW}, 0")
    I(f"s_cselect_b32 s{sQ}, s{sQ}, 0")
    I(f"s_cmp_ge_u32 s{sQ}, 128")
    I(f"s_cselect_b32 s{sQD}, 1, 0")
    I("s_cbranch_scc0 K2_NOQ")
    for x_ in dma_tile(0, 0): I(x_)
    L("K2_NOQ")
    for i in (3, 0, 1, 2):
        if i < 3: I(f"s_waitcnt lgkmcnt({3 - i})")
        I(f"v_add_u32_sdwa v{c+i}, v{hh+4*i}, v{hh+4*i+1} {SD}")
        I(f"v_add_u32_sdwa v{hh+4*i}, v{hh+4*i+2}, v{hh+4*i+3} {SD}")
        I(f"v_add_u32 v{c+i}, v{c+i}, v{hh+4*i}")
    I(f"v_lshl_or_b32 v{p}, v{c+1}, 16, v{c}")
    I(f"v_lshl_or_b32 v{p+1}, v{c+3}, 16, v{c+2}")
    I("s_waitcnt lgkmcnt(0)")
    I(f"v_perm_b32 v{own}, v{u(7)}, v{u(6)}, s{sSEL+3}")
    for dp in ["row_shr:%d row_mask:0xf bank_mask:0xf bound_ctrl:0" % sh for sh in (1, 2, 4, 8)] + \
              ["row_bcast:15 row_mask:0xa bank_mask:0xf", "row_bcast:31 row_mask:0xc bank_mask:0xf"]:
        I(f"v_add_u32_dpp v{p}, v{p}, v{p} {dp}")
        I(f"v_add_u32_dpp v{p+1}, v{p+1}, v{p+1} {dp}")
        I(fill.pop(0) if fill else "s_nop 0")
    I("s_sub_u32 s4, s4, 1")
    I(f"v_readlane_b32 s10, v{p}, 63")
    I(f"v_readlane_b32 s11, v{p+1}, 63")
    I(f"v_readlane_b32 s{sF1}, v{p+1}, 59")
    I(f"v_readlane_b32 s{sTMP}, v{p+1}, s4")
    for i in range(3):
        I(f"v_lshlrev_b32_sdwa v{hh+i}, v{ecb}, v{p+(i>>1)} dst_sel:DWORD dst_unused:UNUSED_PAD src0_sel:DWORD src1_sel:WORD_{i&1}")
        I(f"v_sub_u32 v{c+i}, v{hh+i}, v{c+i}")
    b1, b2 = 4, 5
    I(f"s_and_b32 s{b1}, s10, 0xffff")
    I("s_lshr_b32 s10, s10, 16")
    I(f"s_add_u32 s{b2}, s{b1}, s10")
    I("s_and_b32 s10, s11, 0xffff")
    I(f"s_add_u32 s10, s{b2}, s10")
    I("s_lshr_b32 s11, s11, 16")
    I(f"s_add_u32 s10, s10, s11")
    I(f"s_lshr_b32 s{sF1}, s{sF1}, 16")
    I(f"s_lshr_b32 s{sTMP}, s{sTMP}, 16")
    I(f"s_sub_u32 s6, s{sTMP}, s{sF1}")
    I(f"s_lshl_b32 s6, s6, 1")
    for i, b in ((1, b1), (2, b2)):
        I(f"v_lshl_add_u32 v{c+i}, s{b}, 1, v{c+i}")
    KV = opt("kv", "1_4_3216_5") if SBK else ""
    if KV:
        klo, khi, kref, ksh = [int(x) for x in KV.split("_")]
        assert klo >= 1
        I(f"s_sub_i32 s{sSB}, {4*kref}, s10")
        I(f"s_ashr_i32 s{sSB}, s{sSB}, {ksh + 2}")
        I(f"s_max_i32 s{sSB}, s{sSB}, {klo}")
        I(f"s_min_i32 s{sSB}, s{sSB}, {khi}")
    I("s_lshr_b32 s11, s10, 5")
    I(f"s_add_u32 s11, s11, 16")
    I("s_and_b32 s11, s11, -32")
    if KV:
        I(f"s_cmp_ge_i32 s{sSB}, {opt('shk', 1)}")
        I(f"s_cselect_b32 s{sF0}, {ASYM + 32}, {ASYM}")
        I(f"s_sub_i32 s11, s11, s{sF0}")
    else: I(f"s_sub_i32 s11, s11, {ASYM + 32*opt('sh', 1)}")
    I("s_lshl_b32 s11, s11, 3")
    I("s_lshr_b32 s10, s10, 1")
    I(f"s_lshr_b32 s{sF0}, s{sW}, 1")
    I(f"s_mul_i32 s{sF0}, s{sF0}, s10")
    I(f"s_sub_i32 s{sF0}, s{sF0}, s6")
    I(f"s_sub_i32 s10, s10, s{sQ}")
    I(f"s_sub_i32 s10, s10, s{sQ}")
    I(f"s_add_i32 s11, s11, s{sF0}")
    I(f"s_add_i32 s10, s10, s{sF0}")
    I(f"s_bitcmp1_b32 s{sW}, 0")
    I(f"s_cselect_b32 s{sEND}, s11, s{sF0}")
    I("s_cselect_b32 s10, s10, s11")
    I(f"s_mov_b32 s{sF0}, 0")
    I(f"s_mov_b32 s{sF1}, 0")
    for i in range(3):
        I(f"v_cmp_gt_i32 vcc, s{sEND}, v{c+i}")
        I(f"v_cmp_gt_i32 s[{sTMP}:{sTMP+1}], s10, v{c+i}")
        I("s_bcnt1_i32_b64 s11, vcc")
        I(f"s_add_u32 s{sF0}, s{sF0}, s11")
        I(f"s_bcnt1_i32_b64 s11, s[{sTMP}:{sTMP+1}]")
        I(f"s_add_u32 s{sF1}, s{sF1}, s11")
    I(f"s_max_i32 s{sF0}, s{sF0}, s{lo0}")
    I(f"s_min_i32 s{sF0}, s{sF0}, s{hi0}")
    I(f"s_max_i32 s{sF1}, s{sF1}, s{lo1}")
    I(f"s_min_i32 s{sF1}, s{sF1}, s{hi1}")
    I(f"v_cmp_le_u32 vcc, s{sF0}, v{ownn}")
    I(f"v_cmp_gt_u32 s[10:11], s{sF1}, v{ownn}")
    I("s_nop 0")
    I("s_and_b64 vcc, vcc, s[10:11]")
    I(f"v_cndmask_b32 v{own}, 0, v{own}, vcc")
    I(f"v_mov_b32 v{tot}, v{own}")
    wave_scan(tot, fill, half=True)
    for x_ in fill: I(x_)
    I(f"s_sub_u32 s{sTMP}, s{sL}, {R0}")
    I(f"s_add_u32 s{sTMP}, s{sTMP}, s{sQ}")
    I(f"v_readlane_b32 s10, v{tot}, 31")
    I(f"v_readlane_b32 s11, v{tot}, 63")
    I(f"v_sub_u32 v{tot}, v{tot}, v{own}")
    I(f"v_mov_b32 v{vOWN}, v{u(14)}")
    I(f"s_and_b32 s{sTH}, s10, 0xffff")
    I("s_lshr_b32 s10, s10, 16")
    I(f"s_add_u32 s{sTH+1}, s{sTH}, s10")
    I("s_and_b32 s10, s11, 0xffff")
    I(f"s_add_u32 s{sTH+2}, s{sTH+1}, s10")
    I("s_lshr_b32 s11, s11, 16")
    I(f"s_add_u32 s{sEND}, s{sTH+2}, s11")
    I(f"s_lshl_b32 s10, s{sTH}, 16")
    I(f"s_pack_ll_b32_b16 s11, s{sTH+1}, s{sTH+2}")
    I(f"s_pack_ll_b32_b16 s{sTMP}, s{sTMP}, s{sTMP}")
    I(f"s_add_u32 s10, s10, s{sTMP}")
    I(f"s_add_u32 s11, s11, s{sTMP}")
    I("s_mov_b32 exec_lo, vcc_lo")
    I("s_mov_b32 exec_hi, 0")
    I(f"v_add_u32 v{tot}, s10, v{tot}")
    I("s_mov_b32 exec_lo, 0")
    I("s_mov_b32 exec_hi, vcc_hi")
    I(f"v_add_u32 v{tot}, s11, v{tot}")
    I("s_mov_b64 exec, vcc")
    I(f"ds_write_b16 v{owna}, v{tot} offset:{HIST + 2}")
    I(f"ds_write_b16_d16_hi v{owna}, v{tot} offset:{HIST + 6}")
    I(f"ds_write_b32 v{vMIN+1}, v{vMIN} offset:{MAP}")
    I("s_mov_b64 exec, -1")
    I(f"v_mov_b32 v{sc}, {FLAG}")
    I(f"s_add_u32 s{sEND}, s{sEND}, s{sQ}")
    I(f"s_add_u32 s{sQ}, s{sQ}, {opt('tho', 64)}")
    I(f"s_cmp_le_u32 s{sEND}, {LMAX*4}")
    I("s_cbranch_scc1 K2_LFIT")
    I(f"ds_write_b32 v{sc}, v{sc}")
    I(f"s_mov_b32 s{sEND}, 0")
    L("K2_LFIT")
    I(f"s_add_u32 s{sEND}, s{sEND}, s{sL}")
    for k in range(3):
        I(f"s_add_i32 s{sTH+k}, s{sTH+k}, s{sQ}")
        I(f"s_lshr_b32 s{sTH+k}, s{sTH+k}, 7")
    pads(lane, u(0), u(1), u(2))
    I(f"v_mov_b32 v{u(0)}, s{sEND}")
    I(f"ds_write_b32 v{vMIN}, v{u(0)} offset:{CNT}")
    if XY == 1: xlate()
    if XC == 2:
        I(f"s_cmp_lg_u32 s{sQD}, 0")
        I("s_cbranch_scc1 K2_XCW")
        I("s_waitcnt vmcnt(0)")
        L("K2_XCW")
    I("s_waitcnt lgkmcnt(0)")
    stamp('a')
    I("s_barrier")
    stamp('b')
    I(f"ds_read_b64 v[{u(6)}:{u(7)}], v{sc}")
    for s in range(12):
        m = sM + 2*s
        I(f"s_mov_b64 exec, s[{m}:{m+1}]")
        I(f"ds_read_u16 v{vA+s}, v{vA+s} offset:{HIST + 2 + HO(s // 3)}")
    I("s_mov_b64 exec, -1")
    I(f"s_waitcnt lgkmcnt(0)")
    I(f"v_readfirstlane_b32 s{sST}, v{u(6)}")
    I(f"v_readfirstlane_b32 s{sCUR}, v{u(7)}")
    for s in range(12): I(f"v_add_u32 v{vA+s}, v{vA+s}, v{vRK+s}")
    I(f"s_cmp_gt_u32 s{sST}, {XMAX}")
    I("s_cbranch_scc1 K2_OVF")
    for s in range(12):
        m = sM + 2*s
        I(f"s_mov_b64 exec, s[{m}:{m+1}]")
        I(f"ds_write2st64_b32 v{vA+s}, v{vC+4*(s//3)+s%3}, v{vEO+s} offset0:{R0//256} offset1:{R1//256}")
    I("s_mov_b64 exec, -1")
    L("K2_PADS0")
    sERL = 1
    I(f"s_add_u32 s10, s{sSB}, 2")
    I(f"s_cmp_gt_u32 s{sN}, s10")
    I(f"s_cselect_b32 s{sERL}, s{sW}, 0")
    I(f"s_sub_u32 s10, s{sF0}, s{sWIN}")
    I("s_mul_i32 s10, s10, 144")
    I(f"s_add_u32 s{sERT}, s10, s{sSTG}")
    I(f"s_mul_i32 s10, s{sB}, {BN}")
    I(f"s_add_u32 s11, s10, s{sF1}")
    I(f"s_add_u32 s10, s10, s{sF0}")
    I(f"s_min_u32 s11, s11, {N}")
    I(f"s_min_u32 s10, s10, {N}")
    I("s_sub_u32 s11, s11, s10")
    I("s_lshl_b32 s10, s10, 7")
    I(f"s_add_u32 s{sOUT}, s{sOUT}, s10")
    I(f"s_addc_u32 s{sOUT+1}, s{sOUT+1}, 0")
    I(f"s_lshl_b32 s{sOUT+2}, s11, 7")
    I(f"s_mov_b32 s{sCI}, -1")
    I(f"s_mov_b64 s[{sMSK}:{sMSK+1}], 0")
    I(f"s_mov_b32 s{sR0}, 0")
    I(f"s_mov_b32 s{sCNT}, 0")
    I(f"s_cmp_lg_u32 s{sCUR}, 0")
    I(f"s_cselect_b32 s{sMORE}, 1, 0")
    def atable():
        vWA = vACC
        for q in range(4): I(f"ds_read_b128 {rr(vX+4*q,4)}, v{vXA} offset:{16*q}")
        I(f"v_add_u32 v{l16}, 8192, v{l16}")
        for k in range(8): I(f"ds_read_b128 {rr(vWA+4*k,4)}, v{l16} offset:{WA - 8192 + 1024*k}")
        I(f"s_mov_b32 s10, {f2u(1e-6):#x}")
        I(f"s_mov_b32 s11, s10")
        I(mfma(NUM(1), vT2, vT2))
        for i in range(8): I(f"v_mov_b64 v[{DEN(1)+2*i}:{DEN(1)+2*i+1}], s[10:11]")
        for k in range(8):
            D = (vP, vQ)[k >> 2]
            I(f"s_waitcnt lgkmcnt({7 - k})")
            I(mfma(D, vX + 4*(k & 3), vWA + 4*k, None if k & 3 == 0 else D))
    def atable2():
        I(mfma(NUM(0), vT2, vT2))
        I(f"s_mov_b32 s10, {f2u(1e-6):#x}")
        I(f"s_mov_b32 s11, s10")
        for i in range(8): I(f"v_mov_b64 v[{DEN(0)+2*i}:{DEN(0)+2*i+1}], s[10:11]")
        for i in range(16): I(f"v_cvt_pk_bf16_f32 v{vAT+i}, v{vP+2*i}, v{vP+2*i+1}")
    def first_tile():
        first_reads()
        I("s_waitcnt lgkmcnt(1)")
        for s in dma_tile(0, 0): I(s)
    EM2 = 1
    def newend(tag):
        I(f"s_cmp_eq_u32 s{sST}, 0")
        I(f"s_cbranch_scc1 K2_NE{tag}")
        I(f"s_lshl_b32 s10, s{sW}, 2")
        I(f"v_mov_b32 v{vT1+6}, s10")
        I(f"ds_read_b32 v{vT1+6}, v{vT1+6} offset:{CNT}")
        I("s_waitcnt lgkmcnt(0)")
        I(f"v_readfirstlane_b32 s{sEND}, v{vT1+6}")
        I("s_nop 3")
        ntiles()
        L(f"K2_NE{tag}")
    I(f"s_and_b32 s{sQD}, s{sQD}, s{sERL}")
    I(f"s_cmp_gt_u32 s{sQD}, s{sXT}")
    I("s_cbranch_scc0 K2_SIDE")
    I("s_waitcnt vmcnt(5) lgkmcnt(0)")
    atable()
    stamp('c')
    I("s_barrier")
    stamp(3)
    atable2()
    I("s_branch K2_HAD0")
    L("K2_SIDE")
    if XY == 2: xlate()
    I("s_waitcnt vmcnt(5) lgkmcnt(0)")
    stamp('c')
    I("s_barrier")
    stamp(3)
    I(f"s_cmp_lg_u32 s{sQD}, 0")
    I("s_cbranch_scc1 K2_SIDE1")
    I(f"s_waitcnt vmcnt({0 if XY in (0, 3) else 4})")
    I(f"s_bitcmp1_b32 s{sW}, 0")
    I("s_cbranch_scc0 K2_SIDE1")
    I("s_waitcnt vmcnt(0)")
    I(f"s_bitcmp1_b32 s{sERL}, 0")
    I("s_cbranch_scc0 K2_SIDE1")
    first_tile()
    L("K2_SIDE1")
    I(f"s_cmp_lg_u32 s{sXT}, 0")
    I("s_cbranch_scc1 K2_XT2")
    L("K2_XT2R")
    I(f"s_bitcmp1_b32 s{sERL}, 0")
    I("s_cbranch_scc1 K2_SIDE2")
    I("s_barrier")
    newend("y")
    if XY == 3: xlate()
    first_tile()
    L("K2_SIDE2")
    I("s_waitcnt vmcnt(5) lgkmcnt(0)")
    atable()
    atable2()
    I("s_branch K2_HAD0")
    L("K2_GO")
    first_tile()
    L("K2_HAD0")
    I("s_waitcnt lgkmcnt(0)")
    I(f"v_lshl_add_u32 v{vL1}, v{vL1}, 6, v{vC1}")
    I(f"ds_read_b128 {rr(vQD,4)}, v{vARX} offset:128")
    I(f"ds_read_b32 v{vR1}, v{vARE} offset:128")
    for s in t1_reads(): I(s)
    I(mfma(vQ, vT2, vT2))
    stamp(4)
    I("s_waitcnt vmcnt(0)")
    stamp(5)
    I(f"ds_read_b128 {rr(vE,4)}, v{vAE}")
    for q in range(4):
        I(f"ds_read_b128 {rr(vX+4*q,4)}, v{vAX} offset:{16*q}")
    I("s_waitcnt lgkmcnt(0)")
    if EM2:
        for x_ in dma_tile(0, 1): I(x_)
        I(f"s_cmp_lt_i32 s{sSB}, 0")
        I("s_cbranch_scc1 K2_B1")
        I("s_barrier")
        I(f"s_bitcmp1_b32 s{sERL}, 0")
        I(f"s_cselect_b32 s{sSB}, s{sSB}, -1")
        I("s_cbranch_scc0 K2_B1")
        newend("o")
        L("K2_B1")
        I(f"s_cmp_lg_u32 s{sN}, 0")
        I("s_cbranch_scc1 K2_NZ")
        I("s_waitcnt vmcnt(0)")
        I("s_branch K2_DONE")
        L("K2_NZ")
    else:
        I(f"s_cmp_eq_u32 s{sN}, 0")
        I("s_cbranch_scc1 K2_DONE")
    for s in g_mfmas(vP, 0):
        if s.startswith("v_smfmac"):
            if EM2: I("s_nop 9")
            else:
                for x_ in dma_tile(0): I(x_)
        I(s)
    stamp('L')
    I(f"s_mov_b32 s{sT}, 0")
    sEV = 87
    TPF, sPFT = opt("tpf", 0), 0
    LT = [int(x) for x in opt("lt", "1234")] if opt("lt", "1234") != "0" else []
    def prio_code(uid):
        return [f"s_cmp_ge_u32 s{sT}, s{sEV}", f"s_cbranch_scc1 K2_EV{uid}", f"K2_EVR{uid}:"]
    def next_event():
        I(f"s_mov_b32 s{sEV}, s{sN}")
        for r in [sTH, sTH+1, sTH+2] + ([sSB] if SBK else []) + ([sN1] if LT else []) + ([sPFT] if TPF else []):
            I(f"s_cmp_gt_i32 s{r}, s{sT}")
            I(f"s_cselect_b32 s10, s{r}, s{sEV}")
            I(f"s_min_u32 s{sEV}, s{sEV}, s10")
    YK = opt("yk", 2)
    if YK:
        I(f"s_sub_u32 s10, s{sN}, {YK - 1 if YK < 10 else 0}")
        I(f"s_bitcmp1_b32 s{sW}, 0")
        I(f"s_cselect_b32 s{sTH+2}, s{sTH+2}, s10")
    I("s_setprio 3")
    if TPF: I(f"s_sub_i32 s{sPFT}, s{sN}, {TPF}")
    next_event()
    tst = ["s_memrealtime s[98:99]", "s_waitcnt lgkmcnt(0)", "s_mov_b32 m0, s72", "s_nop 0", "v_writelane_b32 v255, s98, m0", "s_memtime s[98:99]", "s_waitcnt lgkmcnt(0)", "s_add_u32 m0, s72, 32", "s_nop 0", "v_writelane_b32 v255, s98, m0"] if TS == 4 else []
    body = tst + phaseA(0) + phaseB(0)
    body += prio_code(0)
    body += tst + phaseA(1) + phaseB(1)
    body += [f"v_add_u32 v{r}, 0x100, v{r}" for r in (vARX, vARP, vARE, vART)]
    body += [f"s_cmp_lt_u32 s{sT}, s{sEV}", f"s_cbranch_scc1 K2_LOOP"]
    check_body(body)
    DBG = opt("dbg", "")
    if "ell" in DBG:
        nb = []
        for b in body:
            if b.startswith("v_smfmac") and b.endswith(f"v{vIX}"): continue
            if b.startswith("v_smfmac") and "noA" in DBG: continue
            if b.startswith("ds_read_b64_tr") or b.startswith("ds_read_u8 v23") or b.startswith("v_lshl_add_u32 v23"): continue
            m = re.fullmatch(r"v_mul_f32 v(\d+), v(\d+), v\d+", b)
            if m:
                h, g = int(m.group(1)), int(m.group(2)); ft = 0 if g < vQ else 1; i = h - vQ
                nb.append(f"v_fmac_f32 v{NUM(ft)+i}, v{g}, v{h}")
                nb.append(f"v_add_f32 v{DEN(ft)+i}, v{DEN(ft)+i}, v{g}")
                continue
            nb.append(b)
        body = nb
    if "fl" in DBG:
        nb = []; cnt = 0
        for b in body:
            if b.startswith("ds_read_b128 v[172") or b.startswith("ds_read_b32 v176") or b.startswith("ds_read_u8 v250") or b.startswith("v_lshl_add_u32 v250"): continue
            m = re.fullmatch(r"v_add_f32 v(\d+), v(\d+), v(\d+)", b)
            if m:
                cnt += 1
                if cnt % 4 == 0:
                    k = (cnt // 4) % 4
                    nb.append(f"v_cvt_pk_bf16_f32 v{vT2+k}, v{m.group(1)}, v{int(m.group(1))+16}")
                    nb.append(f"ds_pk_add_bf16 v{vT1+7}, v{vT2+k} offset:{256*(cnt%64)//4}")
                    nb.append(f"ds_read_u16_d16_hi v{vAT+k}, v{vC1} offset:{16384 + 128*k}")
                    if k % 2: nb.append(f"v_add_u32 v{vT2+4}, v{vT2+5}, v{vC1}")
                    continue
            if b.startswith("s_waitcnt lgkmcnt"): b = "s_waitcnt lgkmcnt(0)" if "(0)" in b else b
            nb.append(b)
        body = [f"v_lshl_add_u32 v{vT1+7}, v{lane}, 2, s{sSTG}", f"v_subrev_u32 v{vT1+7}, 33280, v{vT1+7}", f"v_lshlrev_b32 v{vC1}, 1, v{lane}"] + nb
    if "drop" in DBG:
        n = int(DBG[DBG.index("drop") + 4:])
        body = [b for b in body if not (b.startswith("v_add_f32") and (int(b.split()[1][1:-1]) - vP) % 16 < n)]
    if "half" in DBG:
        body = [b for b in body if not (b.startswith("v_smfmac") and b.endswith(f"v{vIX}") and f"v[{vT2+4}:" in b)]
    if "nodma" in DBG: body = [b for b in body if not b.startswith("buffer_load")]
    emit(".p2align 6")
    L("K2_LOOP")
    for s in body:
        if s.endswith(":"): L(s[:-1])
        else: I(s)
    for uid in (1, 0):
        if uid == 0: L("K2_EV0")
        I(f"s_cmp_ge_u32 s{sT}, s{sN}")
        I("s_cbranch_scc1 K2_TAIL")
        if SBK:
            I(f"s_cmp_lg_u32 s{sT}, s{sSB}")
            I(f"s_cbranch_scc1 K2_SB{uid}")
            I("s_barrier")
            if EM2: I(f"s_mov_b32 s{sSB}, -1")
            else: newend(uid)
            L(f"K2_SB{uid}")
        for k in range(3):
            I(f"s_cmp_lg_u32 s{sT}, s{sTH+k}")
            I(f"s_cbranch_scc1 K2_PR{uid}_{k}")
            I(f"s_setprio {2-k}")
            L(f"K2_PR{uid}_{k}")
        if TPF:
            I(f"s_cmp_lg_u32 s{sT}, s{sPFT}")
            I(f"s_cbranch_scc1 K2_TP{uid}")
            I("s_getpc_b64 s[10:11]")
            L(f"K2_TPC{uid}")
            I(f"v_lshlrev_b32 v{vT1+7}, 7, v{lane}")
            I(f"v_min_u32 v{vT1+7}, K2_END-K2_TPC{uid}, v{vT1+7}")
            I(f"global_load_dword v{vT1+6}, v{vT1+7}, s[10:11]")
            L(f"K2_TP{uid}")
        if LT:
            I(f"s_lshl_b32 s10, s{sMORE}, 8")
            I(f"s_add_u32 s10, s10, s{sN1}")
            I(f"s_cmp_eq_u32 s{sT}, s10")
            I(f"s_cbranch_scc1 K2_LT{uid}")
        next_event()
        I("s_branch K2_LOOP" if uid else "s_branch K2_EVR0")
    if LT:
        L("K2_LT0")
        I(f"v_add_u32 v{vART}, 128, v{vART}")
        L("K2_LT1")
        stamp('T')
        I(f"s_sub_u32 s10, s{sEND}, s{sL}")
        I(f"s_sub_u32 s10, s10, 4")
        I(f"s_and_b32 s10, s10, 127")
        for ng in LT[:-1]:
            I(f"s_cmp_lt_u32 s10, {32*ng}")
            I(f"s_cbranch_scc1 K2_LG{ng}")
        for ng in reversed(LT):
            if ng != LT[-1]: L(f"K2_LG{ng}")
            for x_ in last_tile(ng): I(x_)
            I("s_branch K2_EPI2")
    L("K2_TAIL")
    for s in s_mfmas(NUM(1), vQ): I(s)
    L("K2_DONE")
    I(f"s_cmp_lg_u32 s{sMORE}, 0")
    I("s_cbranch_scc1 K2_SLOW")
    L("K2_EPI")
    for x_ in epi_addr() + epi_id() + epi_wu() + [epi_x(q) for q in range(4)]: I(x_)
    L("K2_EPI2")
    stamp(6)
    D = (vP, vAT)
    rc = lambda ft: [f"v_rcp_f32 v{DEN(ft)+i}, v{DEN(ft)+i}" for i in range(16)]
    mu = lambda ft: [f"v_mul_f32 v{NUM(ft)+i}, v{NUM(ft)+i}, v{DEN(ft)+i}" for i in range(16)] + \
                    [f"v_cvt_pk_bf16_f32 v{DEN(ft)+i}, v{NUM(ft)+2*i}, v{NUM(ft)+2*i+1}" for i in range(8)]
    un = lambda ft: sum(([f"v_lshlrev_b32 v{vWV+2*i}, 16, v{vX+i}", f"v_and_b32 v{vWV+2*i+1}, 0xffff0000, v{vX+i}"] for i in range(8*ft, 8*ft+8)), [])
    um = lambda ft: [mfma(D[ft], vWB+16*ft+4*q, vX+4*q, vWV+16*ft if q == 0 else D[ft]) for q in range(4)]
    tm = lambda ft: [mfma(D[ft], DEN(ft)+4*s_, vWC+4*s_, D[ft]) for s_ in range(2)]
    def fin(ft):
        r = []
        for q in range(2):
            r += [f"v_max_f32 v{D[ft]+i}, v{D[ft]+i}, v{vWV+16*ft+i}" for i in range(8*q, 8*q+8)]
            r += [f"v_cvt_pk_bf16_f32 v{vR+8*ft+4*q+d}, v{D[ft]+8*q+2*d}, v{D[ft]+8*q+2*d+1}" for d in range(4)]
            r += [f"ds_write_b128 v{eW}, {rr(vR+8*ft+4*q,4)} offset:{32*ft + 16*q}"]
        return r
    def weave(m, v):
        r = []; k = -(-len(v) // len(m))
        for i, x_ in enumerate(m): r += [x_] + v[i*k:(i+1)*k]
        return r
    seq = ["s_nop 1"] + rc(0)[:8] + ["s_waitcnt lgkmcnt(0)"] + un(0) + rc(0)[8:10] + weave(um(0), rc(0)[10:] + un(1) + mu(0)[:6])
    seq += weave(um(1), mu(0)[6:] + rc(1)[:6]) + weave(tm(0), rc(1)[6:]) + mu(1) + tm(1) + fin(0) + fin(1)
    for x_ in fixnops(seq): I(x_)
    stamp('e3')
    for q in range(4):
        I(f"ds_read_b128 {rr(vX+4*q,4)}, v{eR} offset:{8*144*q}")
    for q in range(4):
        I(f"s_waitcnt lgkmcnt({3-q})")
        I(f"buffer_store_dwordx4 {rr(vX+4*q,4)}, v{eL}, s[{sOUT}:{sOUT+3}], 0 offen offset:{1024*q}{pol(K2_OP)}")
    stamp('e4')
    I(f"s_add_u32 s10, s2, s7")
    I("s_cmp_lg_u32 s10, 0")
    I("s_cbranch_scc1 K2_NOEP")
    I(f"v_mov_b32 v{vP}, {WS_EPOCH}")
    I(f"v_mov_b32 v{vP+1}, s{sEPN}")
    I(f"buffer_store_dword v{vP+1}, v{vP}, s[{sWS}:{sWS+3}], 0 offen sc1")
    L("K2_NOEP")
    if TS == 2 or opt("tsn", 0): I(f"s_mov_b32 s89, s{sN}")
    if TS == 8:
        I(f"s_sub_u32 s94, {opt('spin', 300000)}, s{sSPIN}")
        I(f"s_mul_i32 s94, s94, 100")
        I(f"s_add_u32 s94, s94, s88")
    if TS and WSB:
        I(f"s_sub_u32 s8, s8, {WSB}")
        I("s_subb_u32 s9, s9, 0")
    if TS: I(f"s_mov_b32 s{sW}, s7")
    if TS == 4:
        I("s_mov_b64 exec, -1")
        I(f"s_lshl_b32 s87, s2, 11")
        I(f"s_add_u32 s87, s87, {WS_TS + 0x180000}")
        I(f"s_lshl_b32 s86, s{sW}, 8")
        I("s_add_u32 s87, s87, s86")
        I(f"v_lshl_add_u32 v{vP}, v{lane}, 2, s87")
        I(f"global_store_dword v{vP}, v255, s[8:9]")
    stamp_out(8, 8, sW, 8, 0x100000, vP)
    L("K2_END")
    I("s_endpgm")
    if NT0 > 2:
        for par in range(2):
            L(f"K2_NT{par}")
            I(f"buffer_load_dwordx4 v{vR1}, s[{sEP}:{sEP+3}], 0 offen nt lds")
            I(f"s_branch K2_ND_{par}")
    def spin():
        if opt("slp", 0): I(f"s_sleep {opt('slp', 1)}")
        I(f"s_sub_u32 s{sSPIN}, s{sSPIN}, 1")
        I("s_cbranch_scc1 K2_END")
    for i in range(4):
        L(f"K2_RETRY{i}")
        spin()
        I("s_waitcnt vmcnt(0)")
        for j in range(i, 4):
            I(f"v_bitop3_b32 v{u(0)}, v{vC+4*j+3}, s{sTAG}, v{vTM} bitop3:0x28")
            for dp in ("quad_perm:[1,0,3,2]", "quad_perm:[2,3,0,1]", "row_half_mirror"):
                I("s_nop 1")
                I(f"v_or_b32_dpp v{u(0)}, v{u(0)}, v{u(0)} {dp} row_mask:0xf bank_mask:0xf")
            I(f"v_cmp_ne_u32 vcc, 0, v{u(0)}")
            I("s_and_b64 exec, exec, vcc")
            I(f"s_cbranch_execz K2_RT{i}{j}")
            cload(j)
            L(f"K2_RT{i}{j}")
            I("s_mov_b64 exec, -1")
        I("s_waitcnt vmcnt(0)")
        I(f"s_branch K2_CHK{i}")
    L("K1_EXT")
    I(f"s_mov_b32 s14, 0x0f0f0f0f")
    I(f"s_mov_b32 s15, s14")
    for i in range(4):
        I(f"ds_read_b32 v{oE+i}, v6 offset:{16*LROW*i + 32}")
        I(f"ds_read_b128 {rr(pD+8*i,4)}, v3 offset:{64*LROW*i + 128}")
    I("s_waitcnt lgkmcnt(0)")
    for i in range(4):
        I(f"v_cmp_le_u32 vcc, {33 << 24}, v{oH+i}")
        I(f"v_and_or_b32 v{pD+8*i+3}, v{oE+i}, v15, v{oH+i}")
        I("s_and_b64 exec, vcc, s[14:15]")
        I(f"s_cbranch_execz K1_EX{i}")
        I(f"buffer_store_dwordx4 {rr(pD+8*i,4)}, v4, s[{sST_}:{sST_+3}], s10 offen sc1")
        L(f"K1_EX{i}")
        I("s_mov_b64 exec, -1")
        I(f"s_add_u32 s10, s10, {64*RS}")
    I("s_branch K1_EXTR")
    L("K1_OVF")
    t = vAT
    for i in range(4):
        I(f"v_lshrrev_b32 v{t+i}, 16, v{oA+i}")
        I(f"v_lshrrev_b32 v{t+4}, 18, v{oA+i}")
        I(f"v_sub_u32 v{t+i}, v{t+i}, v{t+4}")
    I(f"v_add_u32 v{t+5}, v{t}, v{t+1}")
    I(f"v_add_u32 v{t+6}, v{t+5}, v{t+2}")
    I(f"v_add_u32 v{t+7}, v{t+6}, v{t+3}")
    I(f"v_mov_b32 v1, v{t+7}")
    wave_scan(1)
    I("s_nop 0")
    I(f"v_sub_u32 v{t+4}, v1, v{t+7}")
    I(f"v_add_u32 v{t+7}, v{t+4}, v{t+6}")
    I(f"v_add_u32 v{t+6}, v{t+4}, v{t+5}")
    I(f"v_add_u32 v{t+5}, v{t+4}, v{t}")
    for i in range(4):
        I(f"v_lshl_or_b32 v{t+4+i}, v{t+i}, 16, v{t+4+i}")
    I("s_waitcnt lgkmcnt(0)")
    I(f"ds_write_b128 v{l16}, {rr(t+4,4)} offset:{P_HDR}")
    for i in range(4): I(f"v_min_u32 v{oH+i}, 255, v{oH+i}")
    I(f"s_lshl_b32 s15, s{sB}, 2")
    I(f"s_add_u32 s15, s15, {WS_HDR}")
    srd(q0, 8, 9, NB*NCH*4, "s15")
    I(f"v_lshlrev_b32 v1, 12, v{lane}")
    for i in range(4):
        I(f"buffer_store_dword v{t+4+i}, v1, s[{q0}:{q0+3}], 0 offen offset:{1024*i} sc1")
    I(f"s_add_u32 s15, s13, {WS_RECS}")
    srd(q0, 8, 9, CH*4, "s15")
    I("s_lshr_b32 s15, s13, 2")
    I(f"s_add_u32 s15, s15, {WS_XB}")
    srd(q1, 8, 9, CH, "s15")
    I(f"v_cndmask_b32 v{pH+6}, v{pH}, v{pH+6}, s[{pm}:{pm+1}]")
    I(f"v_cndmask_b32 v{pK+6}, 0, v{pK+6}, s[{pm}:{pm+1}]")
    for i in range(7):
        I(f"ds_read_u16 v{pA+i}, v{pH+i} offset:{P_HDR - H0}")
    I("s_waitcnt lgkmcnt(0)")
    for i in range(7):
        I(f"v_lshrrev_b32 v1, 2, v{pK+i}")
        I(f"v_sub_u32 v1, v{pK+i}, v1")
        I(f"v_add_u32 v{pA+i}, v{pA+i}, v1")
        I(f"v_cmp_le_u32 vcc, {QCAP}, v{pK+i}")
        I(f"v_lshlrev_b32 v{pB+i}, 2, v{pA+i}")
        I("s_and_saveexec_b64 s[14:15], vcc")
        I(f"s_cbranch_execz K1_OV3_{i}")
        I(f"buffer_store_byte v{xb(i)}, v{pA+i}, s[{q1}:{q1+3}], 0 offen sc1")
        I(f"buffer_store_dword v{pS+i}, v{pB+i}, s[{q0}:{q0+3}], 0 offen sc1")
        L(f"K1_OV3_{i}")
        I("s_mov_b64 exec, -1")
    I("s_waitcnt vmcnt(0)")
    I("s_barrier")
    I("s_branch K1_OUT")
    xd, xa, xk, xrem, xeb, xad, xt = vACC + 44, vACC + 52, vACC + 58, vQ, vQ + 2, vX + 12, vX + 14
    L("K2_XT1")
    I(f"s_mov_b32 s{sXT}, 1")
    I(f"v_cmp_le_u32 vcc, {(QCAP + 1) << 24}, v{u(0)}")
    I(f"v_mov_b32 v{xt}, {FLAG + 4}")
    I("s_cbranch_vccz K2_XT1A")
    I(f"ds_write_b32 v{xt}, v{one}")
    L("K2_XT1A")
    I("s_mov_b32 s10, 0xf0f0f0f0")
    I("s_mov_b32 s11, s10")
    I(f"v_and_b32 v{xt}, 12, v{k4}")
    I(f"v_add_u32 v{xt}, 32, v{xt}")
    I(f"v_and_b32 v{xad}, 64, v{u(1)}")
    I(f"v_mul_u32_u24 v{xad}, 127, v{xad}")
    I(f"v_add_u32 v{xad}, v{xad}, v{u(1)}")
    I(f"v_add_u32 v{xad+1}, 16384, v{xad}")
    I(f"v_mov_b32 v{xt+1}, 0x7ffffff0")
    for g in range(2):
        I(f"v_cndmask_b32 v{xrem+g}, v{vC+8*g+3}, v{vC+8*g+7}, s[10:11]")
        I(f"v_cndmask_b32 v{xeb+g}, v{vEB+2*g}, v{vEB+2*g+1}, s[10:11]")
        I(f"v_cmp_le_u32 vcc, {33 << 24}, v{xrem+g}")
        remain(xrem + g, xrem + g, xt)
        I("s_nop 0")
        I(f"v_cndmask_b32 v{xad+g}, v{xt+1}, v{xad+g}, vcc")
    I(f"s_add_u32 s{sCEL}, s{sCEL}, {WS_EXT}")
    I(f"s_addc_u32 s{sCEL+1}, s{sCEL+1}, 0")
    def xloads2():
        for g in range(2):
            I(f"buffer_load_dwordx4 {rr(xd+4*g,4)}, v{xad+g}, s[{sCEL}:{sCEL+3}], 0 offen sc1")
    xloads2()
    I(f"v_med3_i32 v{xt}, v{xrem}, 0, 3")
    I(f"v_med3_i32 v{xt+1}, v{xrem+1}, 0, 3")
    I(f"v_add_u32 v{xt}, v{xt}, v{xt+1}")
    I(f"v_mov_b32 v{xt+1}, {FLAG}")
    I(f"v_cmpx_lt_u32 vcc, 0, v{xt}")
    I(f"ds_add_u32 v{xt+1}, v{xt}")
    I("s_mov_b64 exec, -1")
    I("s_branch K2_XT1R")
    def xvalid(tag):
        L(f"K2_XV{tag}")
        I("s_mov_b64 s[10:11], 0")
        for g in range(2):
            I(f"v_bitop3_b32 v{xt}, v{xd+4*g+3}, s{sTAG}, v{vTM} bitop3:0x28")
            I(f"v_cmp_ne_u32 s[{sTMP}:{sTMP+1}], 0, v{xt}")
            I(f"v_cmp_gt_u32 vcc, 0x7ffffff0, v{xad+g}")
            I(f"s_and_b64 vcc, vcc, s[{sTMP}:{sTMP+1}]")
            I("s_or_b64 s[10:11], s[10:11], vcc")
        I(f"s_cbranch_scc0 K2_XW{tag}")
        spin()
        xloads2()
        I("s_waitcnt vmcnt(0)")
        I(f"s_branch K2_XV{tag}")
        L(f"K2_XW{tag}")
    L("K2_XT2")
    xvalid("a")
    for g in range(2):
        for j in range(3):
            I(f"v_and_b32 v{xa+3*g+j}, 255, v{xd+4*g+j}")
            I(f"v_lshlrev_b32 v{xa+3*g+j}, 2, v{xa+3*g+j}")
            I(f"ds_read_b32 v{xa+3*g+j}, v{xa+3*g+j} offset:{MAP}")
        I(f"v_and_b32 v{xd+4*g+3}, 0x0f0f0f, v{xd+4*g+3}")
    I("s_waitcnt lgkmcnt(0)")
    for g in range(2):
        for j in range(3):
            i = 3*g + j
            I(f"v_perm_b32 v{xk+i}, v{xd+4*g+3}, v{xd+4*g+j}, s{sSEL+j}")
            I(f"v_lshl_add_u32 v{xk+i}, v{xk+i}, 5, v{xeb+g}")
            I(f"v_cmpx_lt_i32 vcc, {j}, v{xrem+g}")
            I(f"ds_add_rtn_u32 v{xa+i}, v{xa+i}, v{one} offset:{CNT}")
            I("s_mov_b64 exec, -1")
    I("s_waitcnt lgkmcnt(0)")
    for g in range(2):
        for j in range(3):
            i = 3*g + j
            I(f"v_cmpx_lt_i32 vcc, {j}, v{xrem+g}")
            I(f"ds_write2st64_b32 v{xa+i}, v{xd+4*g+j}, v{xk+i} offset0:0 offset1:{(R1-R0)//256}")
            I("s_mov_b64 exec, -1")
    I("s_waitcnt lgkmcnt(0)")
    I("s_branch K2_XT2R")
    L("K2_OVF")
    I(f"s_mov_b32 s{sCUR}, 1")
    I(f"s_mov_b32 s{sST}, 0")
    I(f"s_mov_b32 s{sSKIP}, 0")
    I(f"s_mov_b32 s{sEND}, s{sL}")
    pads(lane, vP, vP+1, vP+2)
    I(f"s_cmp_eq_u32 s{sXT}, 0")
    I("s_cbranch_scc1 K2_PADS0")
    I(f"s_mov_b32 s{sXT}, 0")
    I("s_waitcnt vmcnt(0)")
    xvalid("b")
    I("s_branch K2_PADS0")
    SB = 448
    t0, t1, t2, t3, t4 = vP, vP+1, vP+2, vP+3, vP+4
    L("K2_SLOW")
    I(f"s_add_u32 s{sR0}, s{sR0}, {SB}")
    I(f"s_cmp_lt_u32 s{sR0}, s{sCNT}")
    I("s_cbranch_scc1 K2_BATCH")
    L("K2_FIND")
    I(f"s_cmp_lg_u64 s[{sMSK}:{sMSK+1}], 0")
    I("s_cbranch_scc1 K2_GOT")
    I(f"s_add_u32 s{sCI}, s{sCI}, 1")
    I(f"s_cmp_ge_u32 s{sCI}, 4")
    I("s_cbranch_scc1 K2_EPI")
    I(f"s_mul_i32 s10, s{sB}, {RS}")
    I(f"s_lshl_b32 s11, s{sCI}, 13")
    I("s_add_u32 s10, s10, s11")
    I(f"v_lshlrev_b32 v{vT}, 7, v{lane}")
    I(f"buffer_load_ubyte v{vT}, v{vT}, s[{sWS}:{sWS+3}], s10 offen offset:15 sc1")
    I("s_waitcnt vmcnt(0)")
    I(f"v_cmp_lt_u32 s[{sMSK}:{sMSK+1}], s{sSKIP}, v{vT}")
    I("s_nop 3")
    I("s_branch K2_FIND")
    L("K2_GOT")
    I(f"s_ff1_i32_b64 s10, s[{sMSK}:{sMSK+1}]")
    I(f"s_bitset0_b64 s[{sMSK}:{sMSK+1}], s10")
    I(f"s_lshl_b32 s11, s{sCI}, 6")
    I(f"s_add_u32 s{sCUR}, s10, s11")
    I(f"s_mul_i32 s10, s{sB}, {RS}")
    I(f"s_lshl_b32 s11, s{sCUR}, 7")
    I("s_add_u32 s10, s10, s11")
    I(f"s_lshl_b32 s11, s{sB}, 8")
    I(f"s_add_u32 s11, s11, s{sCUR}")
    I(f"s_lshl_b32 s11, s11, 2")
    I(f"s_add_u32 s11, s11, {WS_HDR}")
    I(f"v_mov_b32 v{t0}, 0")
    I(f"buffer_load_ubyte v{t1}, v{t0}, s[{sWS}:{sWS+3}], s10 offen offset:15 sc1")
    I(f"buffer_load_dword v{t2}, v{t0}, s[{sWS}:{sWS+3}], s11 offen sc1")
    I("s_waitcnt vmcnt(0)")
    I(f"v_readfirstlane_b32 s10, v{t1}")
    I(f"v_readfirstlane_b32 s11, v{t2}")
    I("s_nop 3")
    I(f"s_and_b32 s{sST}, s11, 0xffff")
    I("s_lshr_b32 s11, s11, 16")
    I(f"s_lshr_b32 s{sCNT}, s10, 2")
    I(f"s_sub_u32 s{sCNT}, s10, s{sCNT}")
    I(f"s_cmp_gt_u32 s10, {QCAP}")
    I(f"s_cselect_b32 s{sCNT}, s11, s{sCNT}")
    I(f"s_lshr_b32 s10, s{sSKIP}, 2")
    I(f"s_sub_u32 s{sR0}, s{sSKIP}, s10")
    L("K2_BATCH")
    I("s_barrier")
    I(f"v_and_b32 v{t0}, 7, v{lane}")
    I(f"v_mul_u32_u24 v{t1}, {LCAP*4}, v{t0}")
    I(f"v_add_u32 v{t1}, {R0}, v{t1}")
    I(f"v_lshlrev_b32 v{t0}, 2, v{t0}")
    I(f"ds_write_b32 v{t0}, v{t1} offset:{CNT}")
    I(f"v_add_u32 v{t0}, s{sR0}, v{tid}")
    I(f"s_mul_i32 s10, s{sB}, {RS}")
    I(f"s_lshl_b32 s11, s{sCUR}, 7")
    I("s_add_u32 s10, s10, s11")
    I(f"v_mul_u32_u24 v{t2}, {KQ}, v{t0}")
    I(f"v_lshrrev_b32 v{t2}, 16, v{t2}")
    I(f"v_lshl_add_u32 v{t1}, v{t2}, 2, s10")
    I(f"v_add_u32 v{t3}, {WS_EXT - 128}, v{t1}")
    I(f"v_cmp_lt_u32 vcc, 31, v{t2}")
    I(f"s_mul_i32 s11, s{sCUR}, {CH}")
    I(f"s_add_u32 s11, s11, s{sST}")
    I(f"v_cndmask_b32 v{t1}, v{t1}, v{t3}, vcc")
    I(f"v_or_b32 v{t3}, 12, v{t1}")
    I(f"v_and_b32 v{t4}, 3, v{t2}")
    I(f"v_add_u32 v{t3}, v{t3}, v{t4}")
    I(f"v_cmp_le_u32 vcc, {QCAP}, v{t2}")
    I(f"v_add_u32 v{t2}, s11, v{t0}")
    I(f"v_add_u32 v{t4}, {WS_XB}, v{t2}")
    I(f"v_cndmask_b32 v{t3}, v{t3}, v{t4}, vcc")
    I(f"v_lshlrev_b32 v{t2}, 2, v{t2}")
    I(f"v_add_u32 v{t2}, {WS_RECS}, v{t2}")
    I(f"v_cndmask_b32 v{t1}, v{t1}, v{t2}, vcc")
    I(f"s_add_u32 s10, s{sR0}, {SB}")
    I(f"s_min_u32 s10, s10, s{sCNT}")
    I(f"v_cmp_gt_u32 vcc, s10, v{t0}")
    I(f"v_mov_b32 v{t2}, 0x7ffffff0")
    I(f"s_mul_i32 s{sTMP}, s{sCUR}, {CH*32}")
    I(f"v_cndmask_b32 v{t1}, v{t2}, v{t1}, vcc")
    I(f"v_cndmask_b32 v{t3}, v{t2}, v{t3}, vcc")
    I(f"buffer_load_dword v{t1}, v{t1}, s[{sWS}:{sWS+3}], 0 offen sc1")
    I(f"buffer_load_ubyte v{t3}, v{t3}, s[{sWS}:{sWS+3}], 0 offen sc1")
    I("s_waitcnt lgkmcnt(0)")
    I("s_barrier")
    I("s_and_saveexec_b64 s[10:11], vcc")
    I("s_waitcnt vmcnt(0)")
    I(f"v_and_b32 v{t0}, 255, v{t1}")
    I(f"v_lshlrev_b32 v{t0}, 2, v{t0}")
    I(f"ds_read_b32 v{t0}, v{t0} offset:{MAP}")
    I(f"v_bfe_u32 v{t2}, v{t1}, 8, 8")
    I(f"v_and_b32 v{t3}, 15, v{t3}")
    I(f"v_lshl_or_b32 v{t3}, v{t3}, 8, v{t2}")
    I(f"v_mov_b32 v{t2}, 4")
    I(f"v_lshl_add_u32 v{t3}, v{t3}, 5, s{sTMP}")
    I("s_waitcnt lgkmcnt(0)")
    I(f"ds_add_rtn_u32 v{t0}, v{t0}, v{t2} offset:{CNT}")
    I("s_waitcnt lgkmcnt(0)")
    I(f"ds_write2st64_b32 v{t0}, v{t1}, v{t3} offset0:0 offset1:{(R1-R0)//256}")
    I("s_mov_b64 exec, -1")
    I("s_waitcnt lgkmcnt(0)")
    I("s_barrier")
    I(f"s_lshl_b32 s10, s{sW}, 2")
    I(f"v_mov_b32 v{t0}, s10")
    I(f"ds_read_b32 v{t0}, v{t0} offset:{CNT}")
    for i in range(8): I(f"v_mov_b32 v{vT2+i}, 0")
    listaddr(lane, t1, t2)
    I("s_waitcnt lgkmcnt(0)")
    I(f"v_readfirstlane_b32 s{sEND}, v{t0}")
    I("s_nop 3")
    pads(lane, t0, t1, t2)
    L("K2_LAST")
    I("s_branch K2_GO")

def regs_of(tok):
    tok = tok.strip()
    m = re.fullmatch(r"v\[(\d+):(\d+)\]", tok)
    if m: return list(range(int(m.group(1)), int(m.group(2)) + 1))
    m = re.fullmatch(r"v(\d+)", tok)
    if m: return [int(m.group(1))]
    return []
def parse(ins):
    op, _, rest = ins.partition(" ")
    ops = [o.strip().split(" ")[0] for o in rest.split(",")] if rest else []
    if op.startswith("v_mfma"):
        return "mfma", regs_of(ops[0]), regs_of(ops[1]) + regs_of(ops[2]), regs_of(ops[3])
    if op.startswith("v_smfmac"):
        return "mfma", regs_of(ops[0]), regs_of(ops[1]) + regs_of(ops[2]) + regs_of(ops[3]), regs_of(ops[0])
    if op.startswith("v_"):
        k = "trans" if op in ("v_exp_f32", "v_rcp_f32") else "valu"
        return k, regs_of(ops[0]), sum((regs_of(o) for o in ops[1:]), []), []
    if op.startswith("ds_read"):
        return "ds", regs_of(ops[0]), regs_of(ops[1]), []
    if op.startswith("buffer_load"):
        return "vm", [], regs_of(ops[0]) + regs_of(ops[1]), []
    return "other", [], [], []
def check_body(body):
    seq = [b for b in body if not b.endswith(":")]
    for skip_dma in (False, True):
        s2 = []
        sk = False
        for b in body:
            if skip_dma and b.startswith("s_cbranch_scc0 K2_ND"):
                s2.append(b); sk = True; continue
            if b.startswith("K2_ND"): sk = False
            if b.endswith(":") or sk: continue
            s2.append(b)
        seq = s2 * 3
        last = {}
        lastc = {}
        pend = []
        for i, ins in enumerate(seq):
            k, d, s, c = parse(ins)
            m = re.search(r"lgkmcnt\((\d+)\)", ins)
            if m:
                n = int(m.group(1))
                while len(pend) > n: pend.pop(0)
            pr = set(sum(pend, []))
            for r in d + s + c:
                assert r not in pr or i < len(s2), f"pending LDS reg v{r} used by {ins} @{i}"
            for r in s + c + d:
                if r not in last: continue
                pk, pi = last[r]; dist = i - pi - 1
                if pk == "mfma":
                    if k == "mfma" and r in c and r not in s: need = 0
                    elif k == "mfma" and r in d and r not in s: need = 0
                    else: need = 12
                elif pk in ("valu", "trans") and k == "mfma" and r in s + c: need = 2
                elif pk == "trans" and k in ("valu", "mfma", "ds", "vm") and r in s: need = 1
                else: need = 0
                assert dist >= need, f"hazard {pk}->{k} v{r} dist {dist} need {need}: {ins} @{i}"
            if k in ("valu", "trans"):
                for r in d:
                    if r in lastc: assert i - lastc[r] - 1 >= 7, f"srcC WAR {ins}"
            for r in c: lastc[r] = i
            for r in d: last[r] = (k, i)
            if k == "ds":
                pend.append(d); assert len(pend) <= 15

hdr = open("/code/" + NAME + ".s.ref").read().split("\n")
for l in hdr:
    if l.startswith("; Override"): break
    out.append(l)
LEAK = opt("leak", "")
if LEAK:
    out.append(f"; @launch kernel={KN} grid=(256,1,1) block=(512,1,1) lds={K2_LDS}")
    out.append("; @launch kernel=spin_kernel grid=(1,1,1) block=(64,1,1) lds=0")
else: out.append(f"; @launch grid=(256,1,1) block=(512,1,1) lds={K2_LDS}")
emit('.amdgcn_target "amdgcn-amd-amdhsa--gfx950"\n.text')
k2()
KL = [(KN, 256, 102)]
if LEAK:
    kind, k = LEAK[:3], int(LEAK[3:])
    emit(".globl spin_kernel\n.p2align 8\n.type spin_kernel,@function\nspin_kernel:")
    I("s_memrealtime s[12:13]")
    I("s_cmp_lg_u32 s2, 0")
    I("s_cbranch_scc1 SP_END")
    I("s_load_dwordx2 s[4:5], s[0:1], 88")
    I("s_waitcnt lgkmcnt(0)")
    I(f"s_add_u32 s4, s4, {WS_TS + 0x100000}")
    I("s_addc_u32 s5, s5, 0")
    I("v_lshlrev_b32 v1, 5, v0")
    for j in range(31):
        I(f"global_load_dword v{2+j}, v1, s[4:5]")
        I(f"global_load_dword v{34+j}, v1, s[4:5] offset:{4*(k%8)}")
        I("v_add_u32 v1, 2048, v1")
    I("s_waitcnt vmcnt(0)")
    I("v_readfirstlane_b32 s6, v2")
    I("s_nop 1")
    I("s_sub_u32 s6, s6, 1000")
    for j in range(31):
        I(f"v_subrev_u32 v{2+j}, s6, v{2+j}")
        I(f"v_subrev_u32 v{34+j}, s6, v{34+j}")
    if kind == "cnt":
        for j in range(31):
            I(f"v_cmp_lt_u32 vcc, {1000 + opt('thr', 550)}, v{34+j}")
            I("s_nop 1")
            I(f"v_cndmask_b32 v{34+j}, 0, 1, vcc")
            I(f"v_mov_b32 v{2+j}, 0")
    op = {"max": "max_u32", "min": "min_u32", "avg": "add_u32", "now": "max_u32", "cnt": "add_u32"}[kind]
    for j in range(1, 31):
        I(f"v_min_u32 v2, v2, v{2+j}")
        I(f"v_{op} v34, v34, v{34+j}")
    I("s_nop 1")
    I("v_readlane_b32 s8, v2, 0")
    I("v_readlane_b32 s9, v34, 0")
    for l in range(1, 64):
        I(f"v_readlane_b32 s10, v2, {l}")
        I(f"v_readlane_b32 s11, v34, {l}")
        I("s_min_u32 s8, s8, s10")
        I(f"s_{op} s9, s9, s11")
    if kind == "avg":
        I(f"s_mul_hi_u32 s9, s9, {(1 << 32) // (31*64)}")
    if kind == "now":
        I("s_sub_u32 s8, s12, s6")
        I("s_sub_u32 s6, s8, s9")
    else: I("s_sub_u32 s6, s9, s8")
    I("s_lshl_b32 s6, s6, 2")
    I("s_min_u32 s6, s6, 30000")
    I("s_memrealtime s[8:9]")
    I("s_waitcnt lgkmcnt(0)")
    L("SP_L")
    I("s_memrealtime s[10:11]")
    I("s_waitcnt lgkmcnt(0)")
    I("s_sub_u32 s7, s10, s8")
    I("s_cmp_lt_u32 s7, s6")
    I("s_cbranch_scc1 SP_L")
    L("SP_END")
    I("s_endpgm")
    KL.append(("spin_kernel", 72, 16))
emit('.section .rodata,"a"')
for name, vg, sg in KL:
    emit(f""".p2align 6
.amdhsa_kernel {name}
  .amdhsa_next_free_vgpr {vg}
  .amdhsa_next_free_sgpr {sg}
  .amdhsa_accum_offset {vg}
  .amdhsa_group_segment_fixed_size 0
  .amdhsa_kernarg_size 96
  .amdhsa_user_sgpr_count 2
  .amdhsa_user_sgpr_kernarg_segment_ptr 1
  .amdhsa_system_sgpr_workgroup_id_x 1
.end_amdhsa_kernel""")
path = sys.argv[1] if len(sys.argv) > 1 else "/code/" + NAME + ".s"
open(path, "w").write("\n".join(out) + "\n")
print("wrote", path, len(out), "lines; lds", K2_LDS)
```
